```python
import torch

def _softmax(x, axis=-1):
    return torch.softmax(x, dim=axis)
def _gelu(x):
    return torch.nn.functional.gelu(x, approximate="tanh")
def _silu(x):
    return torch.nn.functional.silu(x)
def _sigmoid(x):
    return torch.sigmoid(x)
def _layernorm(x, axis=-1, eps=1e-5):
    m = x.mean(dim=axis, keepdim=True)
    v = x.var(dim=axis, keepdim=True, unbiased=False)
    return (x - m) / torch.sqrt(v + eps)
def _scatter_add(tgt, idx, src, axis=0):
    return tgt.clone().index_add_(axis, idx, src)
def _segment_sum(src, seg, n):
    out = torch.zeros((n,) + src.shape[1:], dtype=src.dtype)
    return out.index_add_(0, seg, src)
def _pad(x, pw):
    flat = tuple(v for pair in reversed(pw) for v in pair)
    return torch.nn.functional.pad(x, flat)

kernel_name = 'interleave_layers__sliding_local_dilated__moe_arch_mod__prompt'

def setup_inputs():

    _w = (lambda a: (lambda t: t.to(torch.bfloat16) if t.is_floating_point() else t)(torch.as_tensor(a)))
    def _A_setup():
        B, S, D = 1, 2048, 512
        return {
            "x": _w((lambda *s: torch.randn(*s, dtype=torch.bfloat16) * 0.05)(B, S, D)),
            "wqkv": _w((lambda *s: torch.randn(*s, dtype=torch.bfloat16) * 0.05)(D, 3 * D)),
            "wo": _w((lambda *s: torch.randn(*s, dtype=torch.bfloat16) * 0.05)(D, D)),
        }
    _A_in = _A_setup()

    def _B_setup():
        B, S, D, F, C = 1, 2048, 512, 1376, 2
        return {
            "x": _w((lambda *s: torch.randn(*s, dtype=torch.bfloat16) * 0.05)(B, S, D)),
            "w_r": _w((lambda *s: torch.randn(*s, dtype=torch.bfloat16) * 0.05)(D)),
            "w_gate": _w((lambda *s: torch.randn(*s, dtype=torch.bfloat16) * 0.05)(D, F)),
            "w_up": _w((lambda *s: torch.randn(*s, dtype=torch.bfloat16) * 0.05)(D, F)),
            "w_down": _w((lambda *s: torch.randn(*s, dtype=torch.bfloat16) * 0.05)(F, D)),
        }
    _B_in = _B_setup()

    return {
        "A_x": _A_in["x"],
        "A_wqkv": _A_in["wqkv"],
        "A_wo": _A_in["wo"],
        "B_x": _B_in["x"],
        "B_w_r": _B_in["w_r"],
        "B_w_gate": _B_in["w_gate"],
        "B_w_up": _B_in["w_up"],
        "B_w_down": _B_in["w_down"],
    }

def reference(A_x, A_wqkv, A_wo, B_x, B_w_r, B_w_gate, B_w_up, B_w_down):
    def _A_ref(x, wqkv, wo):
        B, S, D = x.shape
        H = 32; Dh = D // H
        W, dil = 8, 2
        qkv = (lambda x, *d: x.permute(*d))((x @ wqkv).reshape(B, S, 3, H, Dh), 2, 0, 3, 1, 4)
        q, k, v = qkv[0], qkv[1], qkv[2]
        scale = Dh ** -0.5
        pos = torch.arange(S)
        off = torch.arange(W) * dil
        idx = pos[:, None] - off[None, :]
        mask = idx >= 0
        idx_c = torch.where(mask, idx, 0).reshape(-1)
        kg = k[:, :, idx_c, :].reshape(B, H, S, W, Dh)
        vg = v[:, :, idx_c, :].reshape(B, H, S, W, Dh)
        logits = torch.einsum("bhsd,bhswd->bhsw", q, kg) * scale
        logits = torch.where(mask[None, None, :, :], logits, -1e9)
        attn = _softmax(logits, axis=-1)
        o = torch.einsum("bhsw,bhswd->bhsd", attn, vg)
        return (lambda x, *d: x.permute(*d))(o, 0, 2, 1, 3).reshape(B, S, D) @ wo

    def _B_ref(x, w_r, w_gate, w_up, w_down):
        B, S, D = x.shape
        C = 2
        r = x @ w_r
        idx = torch.argsort(-r, axis=-1)[:, :C]
        idx_e = (lambda x, n, axis: torch.repeat_interleave(x, n, dim=axis))(idx.reshape(B, C, 1), D, axis=2)
        x_sel = (lambda x, i, axis: torch.take_along_dim(x, i, dim=axis))(x, idx_e, axis=1)
        g = _silu(x_sel @ w_gate)
        u = x_sel @ w_up
        y = (g * u) @ w_down
        r_sel = _sigmoid((lambda x, i, axis: torch.take_along_dim(x, i, dim=axis))(r, idx, axis=1))
        y = y * r_sel.reshape(B, C, 1)
        b_off = (torch.arange(B) * S).reshape(B, 1)
        flat_idx = (idx + b_off).reshape(B * C)
        zero = (x * 0.0).reshape(B * S, D)
        upd = _scatter_add(zero, flat_idx, y.reshape(B * C, D), axis=0)
        return x + upd.reshape(B, S, D)

    x = A_x
    x = x + _A_ref(_layernorm(x, axis=-1), A_wqkv, A_wo)
    x = x + _B_ref(_layernorm(x, axis=-1), B_w_r, B_w_gate, B_w_up, B_w_down)
    x = x + _A_ref(_layernorm(x, axis=-1), A_wqkv, A_wo)
    x = x + _B_ref(_layernorm(x, axis=-1), B_w_r, B_w_gate, B_w_up, B_w_down)
    return x
```

```python
import re

REG = re.compile(r'^(-?)(abs\()?([vas])(?:(\d+)|\[(\d+):(\d+)\])\)?$')

def regs_of(op):
    op = op.strip()
    if op in ('vcc', 'vcc_lo', 'vcc_hi'):
        return [('s', 'vcc')]
    if op == 'exec':
        return [('s', 'exec')]
    if op == 'm0':
        return [('s', 'm0')]
    m = REG.match(op)
    if not m:
        return []
    k = m.group(3)
    if m.group(4) is not None:
        return [(k, int(m.group(4)))]
    return [(k, i) for i in range(int(m.group(5)), int(m.group(6)) + 1)]

def split_ops(s):
    out, depth, cur = [], 0, ''
    for ch in s:
        if ch in '[(':
            depth += 1
        if ch in '])':
            depth -= 1
        if ch == ',' and depth == 0:
            out.append(cur.strip()); cur = ''
        else:
            cur += ch
    if cur.strip():
        out.append(cur.strip())
    return out

TRANS = ('v_exp_f32', 'v_log_f32', 'v_rcp_f32', 'v_rsq_f32', 'v_sqrt_f32', 'v_sin_f32', 'v_cos_f32')

class Ins:
    def __init__(self, text):
        self.text = text
        t = text.split(';')[0].strip()
        parts = t.split(None, 1)
        self.op = parts[0]
        rest = parts[1] if len(parts) > 1 else ''
        ops = split_ops(rest)
        self.mods = ''
        if ops:
            l = ops[-1].split(None, 1)
            ops[-1] = l[0]
            self.mods = l[1] if len(l) > 1 else ''
        self.ops = ops
        op = self.op
        self.kind = 'other'
        self.w, self.r = [], []
        self.mf_a = self.mf_b = self.mf_c = []
        R = [regs_of(o) for o in ops]
        flat = lambda L: [x for l in L for x in l]
        if op.startswith('v_mfma'):
            self.kind = 'mfma'
            self.w = R[0]; self.mf_a = R[1]; self.mf_b = R[2]; self.mf_c = R[3]
            self.r = flat(R[1:])
            self.passes = 8 if '32x32' in op else 4
        elif op.startswith('v_'):
            self.kind = 'valu'
            if op.startswith('v_permlane') and 'swap' in op:
                self.w = R[0] + R[1]; self.r = R[0] + R[1]
            elif op.startswith('v_cmp'):
                self.w = R[0]; self.r = flat(R[1:])
            elif op.startswith(('v_add_co', 'v_sub_co', 'v_addc_co', 'v_subb_co')):
                self.w = R[0] + R[1]; self.r = flat(R[2:])
            elif op == 'v_nop':
                pass
            else:
                self.w = R[0]; self.r = flat(R[1:])
                if op.startswith(('v_fmac', 'v_dot2c', 'v_writelane')) or '_dpp' in op or '_sdwa' in op:
                    self.r = self.r + R[0]
        elif op.startswith('ds_'):
            self.kind = 'ds'
            if op.startswith(('ds_read', 'ds_bpermute', 'ds_permute', 'ds_swizzle')):
                self.w = R[0]; self.r = flat(R[1:])
            else:
                self.r = flat(R)
        elif op.startswith(('buffer_', 'global_')):
            self.kind = 'vmem'
            self.lds = ' lds' in (' ' + self.mods)
            if 'load' in op and not self.lds:
                self.w = R[0]; self.r = flat(R[1:])
            else:
                self.r = flat(R)
            if self.lds:
                self.r = self.r + [('s', 'm0')]
            self.wide_store = ('store' in op) and op.endswith(('x3', 'x4'))
            self.data = (R[0] if op.startswith('buffer_') else R[1]) if 'store' in op else []
        elif op.startswith('s_'):
            self.kind = 'salu'
            if op.startswith(('s_cmp', 's_cbranch', 's_branch', 's_waitcnt', 's_barrier', 's_nop', 's_sleep', 's_endpgm', 's_setprio', 's_bitcmp', 's_set_gpr_idx_off', 's_setpc')):
                self.r = flat(R)
            elif op.startswith('s_set_gpr_idx_on'):
                self.r = flat(R); self.w = [('s', 'm0')]
            else:
                self.w = R[0] if R else []; self.r = flat(R[1:])
                if 'saveexec' in op:
                    self.w = self.w + [('s', 'exec')]
        self.is_trans = op.startswith(TRANS)
        self.is_dpp = '_dpp' in op
        self.is_perm = op.startswith('v_permlane')
        self.is_rl = op.startswith(('v_readlane', 'v_readfirstlane'))
        self.is_dot = op.startswith('v_dot')
        self.is_sel = ('_sdwa' in op) or ('op_sel' in self.mods and not op.startswith('v_pk'))
    def states(self):
        if self.op == 's_nop':
            return int(self.ops[0], 0) + 1
        return 1

def ov(a, b):
    return bool(set(a) & set(b))

def need(p, c):
    n = 0
    vw = [x for x in p.w if x[0] in 'va']
    sw = [x for x in p.w if x[0] == 's']
    if p.kind == 'valu':
        if c.kind == 'mfma' and ov(vw, c.r): n = max(n, 3 if p.is_dot else 2)
        if c.kind == 'valu':
            if (c.is_dpp or c.is_perm) and ov(vw, c.r): n = max(n, 2)
            if c.is_rl and ov(vw, c.r): n = max(n, 1)
            if p.is_trans and ov(vw, c.r): n = max(n, 1)
            if p.is_sel and ov(vw, c.r + c.w): n = max(n, 1)
            if ov(sw, c.r): n = max(n, 4 if (c.is_rl or c.op.startswith('v_writelane')) else 2)
            if p.is_dot and ov(vw, c.r + c.w):
                same = c.op == p.op
                if same:
                    ab = regs_of(c.ops[1]) + regs_of(c.ops[2])
                    if ov(vw, ab): n = max(n, 3)
                else:
                    n = max(n, 3)
        if p.is_dot and c.kind in ('vmem', 'ds') and ov(vw, c.r): n = max(n, 3)
        if p.is_trans and c.kind in ('vmem', 'ds') and ov(vw, c.r): n = max(n, 1)
        if c.kind == 'vmem' and ov(sw, c.r): n = max(n, 5)
        if c.kind == 'salu' and ov(sw, c.r): n = max(n, 1)
        if c.kind == 'salu' and c.op.startswith('s_cbranch_vcc') and ('s', 'vcc') in sw: n = max(n, 1)
    if p.kind == 'mfma':
        P = p.passes
        big = {4: 8, 8: 12}[P]
        if c.kind == 'mfma':
            if ov(p.w, c.mf_a + c.mf_b): n = max(n, big)
            if ov(p.w, c.mf_c):
                if not (p.w == c.mf_c and c.passes == P): n = max(n, big - 2)
            elif ov(p.w, c.w): n = max(n, big - 2)
        elif c.kind in ('valu', 'vmem', 'ds'):
            if ov(p.w, c.r + c.w): n = max(n, big)
            if c.kind == 'valu' and ov(p.mf_c, c.w): n = max(n, {4: 3, 8: 7}[P])
    if p.kind == 'salu':
        if ('s', 'm0') in p.w and c.kind == 'vmem' and getattr(c, 'lds', False): n = max(n, 1)
        if p.op.startswith('s_set_gpr_idx') and c.kind == 'valu': n = max(n, 1)
    if p.kind == 'vmem' and getattr(p, 'wide_store', False):
        if ov(p.data, c.w): n = max(n, 2 if c.kind == 'valu' else 1)
    return n

class Asm:
    def __init__(self):
        self.lines = []
        self.vm = []
        self.nops_added = 0
        self.uid = 0
    def raw(self, s):
        self.lines.append(s)
    def label(self, name):
        self.lines.append(name + ':')
    def comment(self, s):
        self.lines.append('    ; ' + s)
    def newlabel(self, base='L'):
        self.uid += 1
        return f'{base}_{self.uid}'
    def __call__(self, text, tag=None):
        for t in text.split('\n'):
            t = t.strip()
            if not t:
                continue
            ins = Ins(t)
            dist = 0; pad = 0
            for prev in reversed(self.lines):
                if not isinstance(prev, Ins):
                    continue
                nd = need(prev, ins)
                if nd > dist:
                    pad = max(pad, nd - dist)
                dist += prev.states()
                if dist >= 14:
                    break
            if pad:
                self.lines.append(Ins(f's_nop {pad - 1}'))
                self.nops_added += pad
            self.lines.append(ins)
            if ins.kind == 'vmem' and not ins.op.startswith(('buffer_wbl2', 'buffer_inv')):
                self.vm.append(tag)
    def vm_count(self, tag):
        idx = [i for i, t in enumerate(self.vm) if t == tag]
        if not idx:
            return None
        return len(self.vm) - 1 - idx[-1]
    def wait_vm(self, tag, extra=''):
        n = self.vm_count(tag)
        assert n is not None, f'no outstanding op tagged {tag}'
        assert n <= 63, (tag, n)
        self(f's_waitcnt vmcnt({n}) {extra}'.strip())
        self.vm = self.vm[len(self.vm) - n:] if n else []
    def wait_vm0(self, extra=''):
        self(f's_waitcnt vmcnt(0) {extra}'.strip())
        self.vm = []
    def text(self):
        out = []
        for l in self.lines:
            out.append(('    ' + l.text) if isinstance(l, Ins) else l)
        return '\n'.join(out) + '\n'

class Pool:
    def __init__(self, lo, hi):
        self.free = list(range(lo, hi))
        self.hw = lo
    def alloc(self, n=1, align=1):
        fr = self.free
        s = set(fr)
        for a in fr:
            if a % align == 0 and all((a + k) in s for k in range(n)):
                for k in range(n):
                    fr.remove(a + k)
                self.hw = max(self.hw, a + n)
                return a
        raise RuntimeError(f'out of registers for {n}')
    def take(self, a, n=1):
        for k in range(n):
            assert (a + k) in self.free, f'v{a+k} not free'
            self.free.remove(a + k)
        return a
    def release(self, a, n=1):
        for k in range(n):
            assert (a + k) not in self.free, a + k
            self.free.append(a + k)
        self.free.sort()

def vr(a, n=1, k='v'):
    return f'{k}{a}' if n == 1 else f'{k}[{a}:{a + n - 1}]'
def ar(a, n=1):
    return vr(a, n, 'a')
def sr(a, n=1):
    return vr(a, n, 's')
```

```python
import sys, struct
from asmlib import *

NAME = "interleave_layers__sliding_local_dilated__moe_arch_mod__prompt"
STOP = None
STAMPS = False
FORCE_REMOTE = False
for a in sys.argv[2:]:
    if a.startswith('stop='): STOP = a[5:]
    if a == 'stamps': STAMPS = True
    if a == 'remote': FORCE_REMOTE = True

def f2u(x): return struct.unpack('<I', struct.pack('<f', x))[0]
MB = 1 << 20
WS_O = 0
WS_X1 = 2 * MB
WS_HALO = 4 * MB
WS_SENT = 5 * MB
WS_FL = WS_SENT
WS_KEYS = WS_SENT + 16384
WS_HS = WS_SENT + 32768
WS_X2R = WS_SENT + 65536
WS_ST = WS_SENT + 128 * 1024
WS_CAND = WS_SENT + 640 * 1024
WS_YP = WS_SENT + 1152 * 1024
WS_HELLO = 7 * MB
WS_EPOCH = WS_HELLO + 8 * 4096
WS_STAMP = 8 * MB
WS_ERR = 9 * MB
WS_SIZE = 16 * MB
L_A = 0
L_ONES = 72 * 1024
L_W = 73 * 1024
NSLOT = 6
L_WO = L_W
L_FST = L_W + 65536
L_TAB = L_W + NSLOT * 12288
L_CS = L_TAB + 640
L_RED = L_CS + 2048
L_H = L_RED + 4096
L_X2S = L_H + 64
L_ROW = L_X2S + 256
assert L_ROW + 4096 <= 160 * 1024 and L_ROW % 16 == 0
LDS_SIZE = 160 * 1024
SRD_X, SRD_W, SRD_WS, SRD_OUT, SRD_DBG, SRD_T = 4, 8, 12, 16, 20, 24
P = 28
sW, sSET, sI, sHG, sRB, sP, sJ0, sFIRST, sLOCAL, sLAYER = range(50, 60)
sT0, sT1, sT2, sT3, sT4, sT5 = range(60, 66)
sM0, sM1 = 66, 68
sRET = 70
sSTAMP = 72
sXCC = 74
sGUARD = 75
sEX = 76
sTAG, sFS, sHASF, sK0, sK1, sTOK, sRHO, sKEY = range(78, 86)
sST = 86
stamp_n = [0]

A = Asm()
VP = Pool(1, 72)
V = Pool(72, 256)
vST = VP.alloc()
def srd(n): return sr(n, 4)

def stamp():
    if not STAMPS: return
    n = stamp_n[0]; stamp_n[0] += 1
    assert n < 32
    A(f'{"s_memtime" if "cyc" in sys.argv else "s_memrealtime"} {sr(sSTAMP,2)}')
    A(f's_lshl_b32 s{sST}, s{sLAYER}, 5')
    A(f's_add_u32 s{sST}, s{sST}, {n}')
    A('s_waitcnt lgkmcnt(0)')
    A(f's_mov_b32 m0, s{sST}')
    A('s_nop 0')
    A(f'v_writelane_b32 v{vST}, s{sSTAMP}, m0')

def mk_srd(d, ptr, size):
    A(f's_mov_b32 s{d}, s{ptr}')
    A(f's_and_b32 s{d+1}, s{ptr+1}, 0xffff')
    A(f's_mov_b32 s{d+2}, {size}')
    A(f's_mov_b32 s{d+3}, 0x20000')

def bf_round(dst, src):
    A(f'v_cvt_pk_bf16_f32 v{dst}, v{src}, v{src}')
    A(f'v_lshlrev_b32 v{dst}, 16, v{dst}')

def ln_params(s1, s2, mu, var, m, rs, t):
    A(f'v_mul_f32 v{mu}, {hex(f2u(1/512))}, v{s1}')
    A(f'v_mul_f32 v{var}, {hex(f2u(1/512))}, v{s2}')
    A(f'v_fma_f32 v{var}, -v{mu}, v{mu}, v{var}')
    A(f'v_max_f32 v{var}, 0, v{var}')
    round_params(mu, var, m, rs, t)

def round_params(mu, var, m, rs, t):
    A(f'v_cvt_pk_bf16_f32 v{t}, v{mu}, v{var}')
    A(f'v_lshlrev_b32 v{m}, 16, v{t}')
    A(f'v_and_b32 v{t}, 0xffff0000, v{t}')
    A(f'v_add_f32 v{t}, {hex(f2u(1e-5))}, v{t}')
    bf_round(t, t)
    A(f'v_sqrt_f32 v{t}, v{t}')
    bf_round(t, t)
    A(f'v_rcp_f32 v{rs}, v{t}')

def finish():
    if STAMPS:
        stamp()
        A(f's_lshl_b32 s{sT0}, s2, 10')
        A(f's_add_u32 s{sT0}, s{sT0}, {WS_STAMP}')
        A(f'v_lshlrev_b32 v{t0}, 2, v0')
        A(f'buffer_store_dword v{vST}, v{t0}, {srd(SRD_WS)}, s{sT0} offen')
    A('s_endpgm')

A.raw(f'{NAME}_kernel:')
A('s_cmp_ge_u32 s2, 256')
A('s_cbranch_scc1 L_end')
A(f's_load_dwordx16 s[{P}:{P+15}], s[0:1], 0')
A(f's_load_dwordx4 s[{P+16}:{P+19}], s[0:1], 64')
A(f's_load_dwordx2 s[{P+20}:{P+21}], s[0:1], 80')
P_X, P_W, P_WO, P_BX, P_WR, P_WG, P_WU, P_WD, P_OUT, P_DBG, P_WS = [P + 2 * i for i in range(11)]
vL = VP.alloc(); vQ = VP.alloc(); vG = VP.alloc(); vL16 = VP.alloc()
t0 = VP.alloc(); t1 = VP.alloc(); t2 = VP.alloc(); t3 = VP.alloc()
A(f'v_lshrrev_b32 v{t0}, 6, v0')
A(f'v_and_b32 v{vL}, 63, v0')
A(f'v_readfirstlane_b32 s{sW}, v{t0}')
A(f'v_and_b32 v{vQ}, 15, v0')
A(f'v_lshrrev_b32 v{vG}, 4, v{vL}')
A(f'v_lshlrev_b32 v{vL16}, 4, v{vL}')
A(f's_mov_b32 s{sLAYER}, 0')
if STAMPS: A(f'v_mov_b32 v{vST}, 0')
A(f's_and_b32 s{sSET}, s2, 7')
A(f's_lshr_b32 s{sI}, s2, 3')
A(f's_and_b32 s{sHG}, s{sI}, 7')
A(f's_lshr_b32 s{sT0}, s{sI}, 3')
A(f's_lshl_b32 s{sRB}, s{sSET}, 2')
A(f's_add_u32 s{sRB}, s{sRB}, s{sT0}')
A(f's_lshr_b32 s{sP}, s{sRB}, 4')
A(f's_and_b32 s{sJ0}, s{sRB}, 15')
A(f's_cmp_eq_u32 s{sJ0}, 0')
A(f's_cselect_b32 s{sFIRST}, 1, 0')
A(f's_lshl_b32 s{sJ0}, s{sJ0}, 6')
A(f's_getreg_b32 s{sXCC}, hwreg(HW_REG_XCC_ID)')
vXa = VP.alloc(4)
A(f's_lshl_b32 s{sT0}, s{sW}, 4')
A(f'v_xor_b32 v{vXa}, s{sT0}, v{vL16}')
for u in range(1, 4):
    A(f'v_xor_b32 v{vXa+u}, {u << 6}, v{vXa}')
vWd = V.alloc()
A(f'v_lshrrev_b32 v{t0}, 3, v{vL}')
A(f's_lshl_b32 s{sT0}, s{sW}, 3')
A(f'v_add_u32 v{t1}, s{sT0}, v{t0}')
A(f'v_mul_u32_u24 v{vWd}, 3072, v{t1}')
A(f'v_and_b32 v{t0}, 2, v{t0}')
A(f's_and_b32 s{sT0}, s{sW}, 1')
A(f's_lshl_b32 s{sT0}, s{sT0}, 2')
A(f'v_or_b32 v{t0}, s{sT0}, v{t0}')
A(f'v_and_b32 v{t1}, 7, v{vL}')
A(f'v_xor_b32 v{t0}, v{t0}, v{t1}')
A(f'v_lshl_add_u32 v{vWd}, v{t0}, 4, v{vWd}')
A(f's_lshl_b32 s{sT0}, s{sHG}, 7')
A(f'v_add_u32 v{vWd}, s{sT0}, v{vWd}')
A('s_waitcnt lgkmcnt(0)')
stamp()
A(f's_add_u32 s{sT0}, s{P_WS}, {WS_EPOCH}')
A(f's_addc_u32 s{sT1}, s{P_WS+1}, 0')
A(f's_load_dword s{sTAG}, {sr(sT0,2)}, 0')
mk_srd(SRD_X, P_X, 2 * MB)
mk_srd(SRD_W, P_W, 512 * 3072)
A(f's_add_u32 s{sT0}, s{sJ0}, s{sW}')
A(f's_sub_u32 s{sT0}, s{sT0}, 8')
A(f's_lshl_b32 s{sT0}, s{sT0}, 11')
A(f's_lshl_b32 s{sT1}, s{sP}, 10')
A(f's_add_u32 s{sT0}, s{sT0}, s{sT1}')
A(f's_lshl_b32 s{sT2}, s{sW}, 10')
for i in range(18):
    A(f's_add_u32 m0, s{sT2}, {L_A + i * 4096}')
    if i < 2:
        A(f's_add_u32 s{sT1}, s{sT0}, {i * 8192}')
        A(f's_max_i32 s{sT1}, s{sT1}, 0')
    else:
        A(f's_add_u32 s{sT1}, s{sT0}, {i * 8192}')
    A(f'buffer_load_dwordx4 v{vXa + ((i + 2) & 3)}, {srd(SRD_X)}, s{sT1} offen lds', tag='A')
sWM = sT4
A(f's_mul_i32 s{sWM}, s{sW}, 3072')
A(f's_add_u32 s{sWM}, s{sWM}, {L_W}')
def w_dma(ks):
    return [f's_add_u32 m0, s{sWM}, {(ks % NSLOT) * 12288}',
            f's_mov_b32 s{sT3}, {ks * 98304}'] + \
           [(f'buffer_load_dwordx4 v{vWd}, {srd(SRD_W)}, s{sT3} offen offset:{m * 1024} lds', f'W{ks}') for m in range(3)]
def emit(x):
    if x == 'HELLO':
        A(f's_cmp_lg_u32 s{sW}, 0')
        A('s_cbranch_scc1 L_nohello')
        A('s_mov_b64 exec, 1')
        A(f'buffer_store_dword v{t0}, v{t1}, {srd(SRD_WS)}, s{sT0} offen sc1')
        A.vm.pop()
        A('s_mov_b64 exec, -1')
        A.label('L_nohello')
    elif isinstance(x, tuple): A(x[0], tag=x[1])
    else: A(x)
for ks in range(NSLOT):
    for x in w_dma(ks): emit(x)
mk_srd(SRD_WS, P_WS, WS_SIZE)
mk_srd(SRD_OUT, P_OUT, 2 * MB)
mk_srd(SRD_DBG, P_WU, 512 * 2752)
mk_srd(SRD_X, P_WG, 512 * 2752)
mk_srd(SRD_T, P_WD, 1376 * 1024)
SRD_WG, SRD_WU, SRD_WD = SRD_X, SRD_DBG, SRD_T
A(f's_mul_i32 s{sFS}, s{sSET}, 11')
A(f's_add_u32 s{sFS}, s{sFS}, s{sI}')
A(f's_cmp_lt_u32 s{sI}, 11')
A(f's_cselect_b32 s{sHASF}, 1, 0')
A(f's_cmp_lt_u32 s{sFS}, 86')
A(f's_cselect_b32 s{sHASF}, s{sHASF}, 0')
vFg = V.alloc(); vFd = V.alloc()
A(f'v_lshrrev_b32 v{t0}, 1, v{vL}')
A(f's_lshl_b32 s{sT0}, s{sW}, 7')
A(f'v_add_u32 v{t0}, s{sT0}, v{t0}')
A(f'v_mul_u32_u24 v{vFg}, 2752, v{t0}')
A(f'v_and_b32 v{t0}, 1, v{vL}')
A(f'v_lshl_add_u32 v{vFg}, v{t0}, 4, v{vFg}')
A(f's_lshl_b32 s{sT0}, s{sFS}, 5')
A(f's_lshl_b32 s{sT1}, s{sFS}, 14')
A(f's_cmp_eq_u32 s{sHASF}, 1')
A(f's_cselect_b32 s{sT0}, s{sT0}, 0x40000000')
A(f's_cselect_b32 s{sT1}, s{sT1}, 0x40000000')
A(f'v_add_u32 v{vFg}, s{sT0}, v{vFg}')
A(f'v_and_b32 v{t0}, 127, v0')
A(f'v_lshlrev_b32 v{vFd}, 3, v{t0}')
A(f'v_add_u32 v{vFd}, s{sT1}, v{vFd}')
aFG, aFD = 192, 224
ffn_loads = []
for n in range(4):
    ffn_loads.append([f's_mov_b32 s{sT3}, {n * 32 * 2752}',
                      (f'buffer_load_dwordx4 {ar(aFG + 4 * n, 4)}, v{vFg}, {srd(SRD_WG)}, s{sT3} offen', 'F'),
                      (f'buffer_load_dwordx4 {ar(aFG + 16 + 4 * n, 4)}, v{vFg}, {srd(SRD_WU)}, s{sT3} offen', 'F')])
for n in range(2):
    L = []
    for j in range(2):
        L.append(f's_mov_b32 s{sT3}, {(n * 2 + j) * 4096}')
        for f in range(4):
            L.append((f'buffer_load_dwordx2 {ar(aFD + 2 * ((n * 2 + j) * 4 + f), 2)}, v{vFd}, {srd(SRD_WD)}, s{sT3} offen offset:{f * 1024}', 'F'))
    ffn_loads.append(L)
vS4 = V.alloc(4, 2)
for r in range(4): A(f'v_mov_b32 v{vS4+r}, -1')
A(f'v_lshlrev_b32 v{t0}, 4, v0')
A(f's_lshl_b32 s{sT0}, s2, 13')
A(f's_add_u32 s{sT0}, s{sT0}, {WS_SENT}')
if 'nopre' not in sys.argv:
    A(f'buffer_store_dwordx4 {vr(vS4,4)}, v{t0}, {srd(SRD_WS)}, s{sT0} offen sc1', tag='pre')
    A(f's_add_u32 s{sT0}, s{sT0}, 4096')
    A(f'buffer_store_dwordx4 {vr(vS4,4)}, v{t0}, {srd(SRD_WS)}, s{sT0} offen sc1', tag='pre')
vOnes = VP.alloc(2, 2)
A(f'v_mov_b32 v{vOnes}, 0x3f803f80')
A(f'v_mov_b32 v{vOnes+1}, 0x3f803f80')
A(f'v_lshlrev_b32 v{t0}, 2, v0')
A(f'v_add_u32 v{t0}, {L_ONES}, v{t0}')
A(f'ds_write_b32 v{t0}, v{vOnes}')
V.release(vS4, 4)
vA = VP.alloc(4); vH = VP.alloc(4); vS = V.alloc(4)
A(f'v_xor_b32 v{t0}, v{vG}, v{vQ}')
A(f'v_lshlrev_b32 v{t0}, 4, v{t0}')
A(f'v_lshl_add_u32 v{vA}, v{vQ}, 10, v{t0}')
A(f'v_add_u32 v{t1}, {L_ONES}, v{t0}')
A(f'v_subrev_u32 v{t2}, 8192, v{vA}')
A(f'v_cmp_lt_u32 vcc, 7, v{vQ}')
A(f'v_cndmask_b32 v{vH}, v{t1}, v{t2}, vcc')
A(f'v_lshlrev_b32 v{t2}, 14, v{vQ}')
A(f'v_subrev_u32 v{t2}, 8192, v{t2}')
A(f'v_lshl_add_u32 v{t2}, v{vG}, 4, v{t2}')
A(f'v_add_u32 v{t3}, -1, v{vQ}')
A(f'v_cmp_gt_u32 vcc, 4, v{t3}')
A(f'v_cndmask_b32 v{vH}, v{vH}, v{t2}, vcc')
A(f's_lshl_b32 s{sT0}, s{sW}, 14')
A(f's_add_u32 s{sT0}, s{sT0}, 8192')
A(f'v_add_u32 v{t2}, s{sT0}, v{vA}')
A(f'v_cmp_eq_u32 vcc, 0, v{vQ}')
A(f'v_cndmask_b32 v{vS}, v{t2}, v{t1}, vcc')
for u in range(1, 4):
    for b in (vA, vH, vS):
        A(f'v_xor_b32 v{b+u}, {u << 6}, v{b}')
vWr = V.alloc()
A(f'v_mul_u32_u24 v{vWr}, 3072, v{vG}')
A(f'v_bfe_u32 v{t0}, v{vL}, 2, 2')
A(f'v_lshl_add_u32 v{vWr}, v{t0}, 7, v{vWr}')
A(f'v_lshrrev_b32 v{t0}, 1, v{t0}')
A(f'v_and_b32 v{t1}, 1, v{vG}')
A(f'v_lshl_or_b32 v{t0}, v{t1}, 1, v{t0}')
A(f'v_xor_b32 v{t0}, s{sW}, v{t0}')
A(f'v_lshl_add_u32 v{vWr}, v{t0}, 5, v{vWr}')
A(f'v_and_b32 v{t0}, 3, v{vL}')
A(f'v_lshl_add_u32 v{vWr}, v{t0}, 3, v{vWr}')
A(f'v_add_u32 v{vWr}, {L_W}, v{vWr}')
vBP = VP.alloc(4, 2); vBC = VP.alloc(4, 2); vBP0 = VP.alloc(4, 2); vMP = VP.alloc(2)
A(f'v_lshlrev_b32 v{t0}, 2, v{vG}')
A(f'v_sub_u32 v{t0}, v{vQ}, v{t0}')
A(f'v_mov_b32 v{t2}, 0xff800000')
A(f's_cmp_eq_u32 s{sFIRST}, 1')
A(f's_cselect_b64 {sr(sM0,2)}, 0, -1')
for r in range(4):
    A(f'v_add_u32 v{t1}, {-r}, v{t0}')
    A(f'v_cmp_lt_u32 vcc, 7, v{t1}')
    A(f'v_cndmask_b32 v{vBC+r}, 0, v{t2}, vcc')
    A(f'v_cmp_lt_i32 vcc, -9, v{t1}')
    A(f'v_cndmask_b32 v{vBP+r}, 0, v{t2}, vcc')
    A(f'v_cndmask_b32 v{vBP0+r}, v{t2}, v{vBP+r}, {sr(sM0,2)}')
    A(f'v_mov_b32 v{t3}, {hex(0xffff0000 if r & 1 else 0xffff)}')
    if r & 1:
        A(f'v_cndmask_b32 v{t3}, v{t3}, 0, vcc')
        A(f'v_or_b32 v{vMP + (r >> 1)}, v{vMP + (r >> 1)}, v{t3}')
    else:
        A(f'v_cndmask_b32 v{vMP + (r >> 1)}, v{t3}, 0, vcc')

accQ = V.alloc(20, 2); accK = V.alloc(20, 2); accV = V.alloc(20, 2)
gO = V.alloc(4, 2); gH = V.alloc(4, 2)
fr = [V.alloc(24, 2), V.alloc(24, 2)]
def aW(ks, m): return (ks * 3 + m) * 4
def p1_reads(ks):
    L = []
    b = fr[ks & 1]; u = ks & 3; ko = (ks >> 2) * 256
    so = (ks % NSLOT) * 12288
    for m in range(3):
        for h in range(2):
            L.append(f'ds_read_b64_tr_b16 {ar(aW(ks, m) + 2 * h, 2)}, v{vWr} offset:{so + m * 1024 + h * 512}')
    L.append(f'ds_read_b128 {vr(b, 4)}, v{vH+u} offset:{ko}')
    for T in range(4):
        L.append(f'ds_read_b128 {vr(b + 4 + 4 * T, 4)}, v{vA+u} offset:{(8 + 16 * T) * 1024 + ko}')
    L.append(f'ds_read_b128 {vr(b + 20, 4)}, v{vS+u} offset:{ko}')
    return L
def mf(d, a, b, c, k32=True):
    return f'v_mfma_f32_16x16x{32 if k32 else 16}_bf16 {d}, {a}, {b}, {c}'
def p1_mfmas(ks):
    b = fr[ks & 1]; L = []
    c = lambda x: '0' if ks == 0 else vr(x, 4)
    for T in range(5):
        X = vr(b + 4 * T, 4)
        L.append(mf(vr(accQ + 4 * T, 4), ar(aW(ks, 0), 4), X, c(accQ + 4 * T)))
        L.append(mf(vr(accK + 4 * T, 4), ar(aW(ks, 1), 4), X, c(accK + 4 * T)))
        L.append(mf(vr(accV + 4 * T, 4), X, ar(aW(ks, 2), 4), c(accV + 4 * T)))
    L.append(mf(vr(gH, 4), vr(b, 4), vr(b, 4), c(gH)))
    L.append(mf(vr(gO, 4), vr(b + 20, 4), vr(b + 20, 4), c(gO)))
    return L
A.wait_vm('W0', 'lgkmcnt(0)')
A('s_barrier')
stamp()
for x in p1_reads(0): A(x)
for ks in range(16):
    A('s_waitcnt lgkmcnt(0)')
    if 'loopstamps' in sys.argv and ks > 0: stamp()
    M = p1_mfmas(ks)
    fill = []
    A(M[0])
    if ks < 15:
        A.wait_vm(f'W{ks+1}')
        A('s_barrier')
        fill += p1_reads(ks + 1)
        if ks + NSLOT < 16:
            fill += w_dma(ks + NSLOT)
    if ks >= 10:
        fill += ffn_loads[ks - 10]
    if ks == 8:
        fill += [f's_mul_i32 s{sTAG}, s{sTAG}, 0x9e3779b1', f's_add_u32 s{sTAG}, s{sTAG}, 0x7f4a7c15',
                 f's_and_b32 s{sXCC}, s{sXCC}, 15', f's_and_b32 s{sT1}, s{sTAG}, 0xfffffff0', f's_or_b32 s{sXCC}, s{sXCC}, s{sT1}',
                 f's_lshl_b32 s{sT0}, s{sSET}, 10', f's_add_u32 s{sT0}, s{sT0}, s{sI}', f's_lshl_b32 s{sT0}, s{sT0}, 2',
                 f's_add_u32 s{sT0}, s{sT0}, {WS_HELLO}',
                 f'v_mov_b32 v{t0}, s{sXCC}', f'v_mov_b32 v{t1}, 0', 'HELLO']
    fi = 0
    for mi, m in enumerate(M[1:]):
        A(m)
        n = 1 if len(fill) - fi <= len(M) - 2 - mi else 2
        for _ in range(n):
            if fi < len(fill):
                x = fill[fi]; fi += 1
                emit(x)
    while fi < len(fill):
        emit(fill[fi]); fi += 1
stamp()
for b in fr: V.release(b, 24)
V.release(vS, 4); V.release(vWr); V.release(vWd); V.release(vFg); V.release(vFd)

def gram_params(G, mu, rs):
    a = V.alloc(); b = V.alloc(); var = V.alloc(); mm = V.alloc()
    A(f'v_mov_b32 v{a}, v{G}')
    A(f'v_mov_b32 v{b}, v{G}')
    A(f'v_permlane16_swap_b32 v{a}, v{b}')
    A(f'v_mov_b32 v{b}, v{a}')
    A(f'v_permlane32_swap_b32 v{a}, v{b}')
    A(f'v_cndmask_b32 v{b}, v{G}, v{G+1}, {sr(sM0,2)}')
    A(f'v_cndmask_b32 v{var}, v{G+2}, v{G+3}, {sr(sM0,2)}')
    A(f'v_cndmask_b32 v{b}, v{b}, v{var}, {sr(sM1,2)}')
    ln_params(a, b, mm, var, mu, rs, a)
    A(f'v_xor_b32 v{mu}, 0x80000000, v{mu}')
    for x in (a, b, var, mm): V.release(x)
A(f's_mov_b32 s{sM0}, 0xaaaaaaaa')
A(f's_mov_b32 s{sM0+1}, 0xaaaaaaaa')
A(f's_mov_b32 s{sM1}, 0xcccccccc')
A(f's_mov_b32 s{sM1+1}, 0xcccccccc')
pO = V.alloc(2); pH = V.alloc(2)
gram_params(gH, pH, pH + 1)
gram_params(gO, pO, pO + 1)
vQ4 = VP.alloc()
vG16 = VP.alloc()
A(f'v_lshlrev_b32 v{vQ4}, 2, v{vQ}')
A(f'v_add_u32 v{vQ4}, {L_TAB}, v{vQ4}')
A(f'v_lshlrev_b32 v{vG16}, 4, v{vG}')
A(f'v_add_u32 v{vG16}, {L_TAB}, v{vG16}')
A(f's_lshl_b32 s{sT0}, s{sW}, 6')
A(f'v_add_u32 v{t0}, s{sT0}, v{vQ4}')
A(f'v_lshlrev_b32 v{t1}, 6, v{vQ}')
A(f'v_add_u32 v{t1}, {L_TAB}, v{t1}')
A('s_mov_b32 exec_lo, 0x00f0000f')
A('s_mov_b32 exec_hi, 0xf0000f00')
A(f'ds_write2_b32 v{vQ4}, v{pH}, v{pH+1} offset0:0 offset1:80')
A('s_mov_b32 exec_lo, 0x00f0000e')
A(f'ds_write2_b32 v{t0}, v{pO}, v{pO+1} offset0:16 offset1:96')
A('s_mov_b32 exec_lo, 0x0010000e')
A('s_mov_b32 exec_hi, 0')
A(f'ds_write2_b32 v{t1}, v{pH}, v{pH+1} offset0:0 offset1:80')
A('s_mov_b64 exec, -1')
V.release(pO, 2); V.release(pH, 2); V.release(gO, 4); V.release(gH, 4)
csQ = VP.alloc(4, 2); csK = VP.alloc(4, 2); csV = VP.alloc(2, 2)
for r in range(4):
    A(f'v_mov_b32_dpp v{csQ+r}, v{accQ+r} row_newbcast:0 row_mask:0xf bank_mask:0xf')
    A(f'v_mov_b32_dpp v{csK+r}, v{accK+r} row_newbcast:0 row_mask:0xf bank_mask:0xf')
A(f'v_mov_b32 v{csV}, v{accV}')
A(f'v_mov_b32 v{csV+1}, v{accV}')
A(f'v_permlane16_swap_b32 v{csV}, v{csV+1}')
A(f'v_mov_b32 v{csV+1}, v{csV}')
A(f'v_permlane32_swap_b32 v{csV}, v{csV+1}')
A('s_waitcnt lgkmcnt(0)')
A('s_barrier')
SPIN = 20000
def poll(issue, check, name):
    L = A.newlabel('L_poll'); E = A.newlabel('L_ok')
    A(f's_mov_b32 s{sGUARD}, {SPIN}')
    A.label(L)
    issue()
    A.wait_vm0()
    check()
    A(f's_cbranch_vccz {E}')
    A(f's_sub_u32 s{sGUARD}, s{sGUARD}, 1')
    A(f's_cbranch_scc0 {L}')
    A.label(E)
def local_stores(lines):
    R = A.newlabel('L_rem'); E = A.newlabel('L_st')
    A(f's_cmp_eq_u32 s{sLOCAL}, 0')
    A(f's_cbranch_scc1 {R}')
    for l in lines: A(l)
    A(f's_branch {E}')
    A.label(R)
    for l in lines:
        A(l + (' sc1' if l.startswith('buffer_') else ''))
        if l.startswith('buffer_'): A.vm.pop()
    A.label(E)
    A('s_nop 1')
def if_layer(n):
    E = A.newlabel('L_lay')
    A(f's_cmp_lg_u32 s{sLAYER}, {n}')
    A(f's_cbranch_scc1 {E}')
    return E
def endif(E):
    A.label(E)
    A('s_nop 1')

xP = VP.alloc(8, 2)
aux = VP.alloc(8, 2)
vSW = VP.alloc()
hel = V.alloc(4, 2); wra = V.alloc(4, 2)
vHel = V.alloc(); vWo = V.alloc()
A(f's_lshl_b32 s{sT0}, s{sHG}, 3')
A(f'v_add_u32 v{t0}, s{sT0}, v{vG}')
A(f'v_xor_b32 v{t0}, v{t0}, v{vQ}')
A(f'v_lshlrev_b32 v{t0}, 4, v{t0}')
A(f'v_lshl_add_u32 v{t0}, v{vQ}, 10, v{t0}')
A(f's_lshl_b32 s{sT0}, s{sW}, 14')
A(f's_add_u32 s{sT0}, s{sT0}, 8192')
A(f'v_add_u32 v{t0}, s{sT0}, v{t0}')
A(f'v_xor_b32 v{t1}, 64, v{t0}')
A(f'ds_read_b128 {vr(xP,4)}, v{t0}')
A(f'ds_read_b128 {vr(xP+4,4)}, v{t1}')
A(f'v_lshrrev_b32 v{t2}, 3, v{vL}')
A(f'v_lshlrev_b32 v{vHel}, 12, v{t2}')
A(f'v_and_b32 v{t3}, 7, v{vL}')
A(f'v_lshl_add_u32 v{vHel}, v{t3}, 4, v{vHel}')
A(f'v_add_u32 v{vHel}, {WS_HELLO}, v{vHel}')
A(f'buffer_load_dwordx4 {vr(hel,4)}, v{vHel}, {srd(SRD_WS)}, 0 offen sc1')
mk_srd(SRD_X, P_WR, 1024)
mk_srd(SRD_W, P_WO, 512 * 1024)
A(f'v_lshlrev_b32 v{vWo}, 4, v{vG}')
A(f's_lshl_b32 s{sT0}, s{sHG}, 7')
A(f'buffer_load_dwordx4 {vr(aux,4)}, v{vWo}, {srd(SRD_X)}, s{sT0} offen')
A(f'buffer_load_dwordx4 {vr(aux+4,4)}, v{vWo}, {srd(SRD_X)}, s{sT0} offen offset:64')
A(f'buffer_load_dwordx4 {vr(wra,4)}, v{vL16}, {srd(SRD_X)}, 0 offen')
A(f'v_lshlrev_b32 v{vWo}, 10, v{t2}')
A(f'v_lshl_add_u32 v{vWo}, v{t3}, 4, v{vWo}')
A(f's_lshl_b32 s{sT1}, s{sW}, 17')
A(f's_add_u32 s{sT0}, s{sT0}, s{sT1}')
A(f's_lshl_b32 s{sT2}, s{sW}, 14')
for n in range(16):
    A(f's_add_u32 m0, s{sT2}, {L_WO + n * 1024}')
    A(f's_add_u32 s{sT1}, s{sT0}, {n * 8192}')
    A(f'buffer_load_dwordx4 v{vWo}, {srd(SRD_W)}, s{sT1} offen lds')
V.release(vWo)
vOst = VP.alloc()
A(f'v_and_b32 v{t0}, 1, v{vG}')
A(f'v_lshlrev_b32 v{vOst}, 14, v{t0}')
A(f'v_lshrrev_b32 v{t0}, 1, v{vG}')
A(f'v_lshl_add_u32 v{vOst}, v{t0}, 8, v{vOst}')
A(f'v_lshl_add_u32 v{vOst}, v{vQ}, 4, v{vOst}')
A(f's_lshl_b32 s{sT0}, s{sRB}, 16')
A(f's_lshl_b32 s{sT1}, s{sHG}, 11')
A(f's_add_u32 s{sT0}, s{sT0}, s{sT1}')
A(f's_lshl_b32 s{sT1}, s{sW}, 9')
A(f's_add_u32 s{sT0}, s{sT0}, s{sT1}')
A(f'v_add_u32 v{vOst}, s{sT0}, v{vOst}')
A('s_waitcnt lgkmcnt(0)')

A.label('L_epi')
A('s_nop 7')
hQ = V.alloc(8, 2); hK = V.alloc(10, 2); hV = V.alloc(10, 2); hC = V.alloc(4)
rp = V.alloc(10, 2); vm = V.alloc(20, 2); vc = V.alloc(20, 2)
for T in range(5):
    A(f'ds_read2_b32 {vr(rp + 2 * T, 2)}, v{vQ4} offset0:{16 * T} offset1:{80 + 16 * T}')
    A(f'ds_read_b128 {vr(vm + 4 * T, 4)}, v{vG16} offset:{64 * T}')
    A(f'ds_read_b128 {vr(vc + 4 * T, 4)}, v{vG16} offset:{320 + 64 * T}')
QSC = 0.25 * 1.4426950408889634
def norm_tile(aq, ak, av, rpp, vmm, vcc_, oq, ok, ov_, oc):
    for h in range(2):
        if aq is not None:
            A(f'v_pk_fma_f32 {vr(aq+2*h,2)}, {vr(csQ+2*h,2)}, {vr(rpp,2)}, {vr(aq+2*h,2)} op_sel_hi:[1,0,1]')
        A(f'v_pk_fma_f32 {vr(ak+2*h,2)}, {vr(csK+2*h,2)}, {vr(rpp,2)}, {vr(ak+2*h,2)} op_sel_hi:[1,0,1]')
        A(f'v_pk_fma_f32 {vr(av+2*h,2)}, {vr(vmm+2*h,2)}, {vr(csV,2)}, {vr(av+2*h,2)} op_sel_hi:[1,0,1]')
    for h in range(2):
        A(f'v_pk_mul_f32 {vr(ak+2*h,2)}, {vr(ak+2*h,2)}, {vr(rpp,2)} op_sel:[0,1] op_sel_hi:[1,1]')
        A(f'v_pk_mul_f32 {vr(av+2*h,2)}, {vr(av+2*h,2)}, {vr(vcc_+2*h,2)}')
    for h in range(2):
        if aq is not None:
            A(f'v_cvt_pk_bf16_f32 v{oq+h}, v{aq+2*h}, v{aq+2*h+1}')
        A(f'v_cvt_pk_bf16_f32 v{ok+h}, v{ak+2*h}, v{ak+2*h+1}')
        A(f'v_cvt_pk_bf16_f32 v{ov_+h}, v{av+2*h}, v{av+2*h+1}')
    if aq is not None:
        A(f'v_mul_f32 v{oc}, {hex(f2u(QSC))}, v{rpp+1}')
for T in range(5):
    A(f's_waitcnt lgkmcnt({12 - 3 * T})')
    norm_tile(accQ + 4 * T if T else None, accK + 4 * T, accV + 4 * T, rp + 2 * T, vm + 4 * T, vc + 4 * T,
              hQ + 2 * (T - 1), hK + 2 * T, hV + 2 * T, hC + T - 1)
V.release(rp, 10); V.release(vm, 20); V.release(vc, 20)
V.release(accQ, 20); V.release(accK, 20); V.release(accV, 20)
def attention(tiles):
    n = len(tiles)
    Sp = V.alloc(4 * n, 2); Sc = V.alloc(4 * n, 2); mx = V.alloc(2 * n, 2); pk = V.alloc(2 * n, 2); oP = V.alloc(2 * n, 2)
    for i, T in enumerate(tiles):
        A(mf(vr(Sp + 4 * i, 4), vr(hK + 2 * T, 2), vr(hQ + 2 * T, 2), vr(vBP0 if T == 0 else vBP, 4), False))
        A(mf(vr(Sc + 4 * i, 4), vr(hK + 2 * T + 2, 2), vr(hQ + 2 * T, 2), vr(vBC, 4), False))
    for i in range(n):
        for r in range(4):
            A(f'v_max_f32 v{Sc+4*i+r}, v{Sp+4*i+r}, v{Sc+4*i+r}')
        A(f'v_max3_f32 v{mx+2*i}, v{Sc+4*i}, v{Sc+4*i+1}, v{Sc+4*i+2}')
        A(f'v_max_f32 v{mx+2*i}, v{mx+2*i}, v{Sc+4*i+3}')
    prs = [(mx + 4 * j, mx + 4 * j + 2) for j in range(n // 2)]
    for a, b in prs: A(f'v_permlane16_swap_b32 v{a}, v{b}')
    for a, b in prs: A(f'v_max_f32 v{a}, v{a}, v{b}')
    for a, b in prs: A(f'v_mov_b32 v{b}, v{a}')
    for a, b in prs: A(f'v_permlane32_swap_b32 v{a}, v{b}')
    for a, b in prs: A(f'v_max_f32 v{a}, v{a}, v{b}')
    for a, b in prs: A(f'v_mov_b32 v{b}, v{a}')
    for a, b in prs: A(f'v_permlane16_swap_b32 v{a}, v{b}')
    for i, T in enumerate(tiles):
        A(f'v_mul_f32 v{mx+2*i+1}, v{mx+2*i}, v{hC+T}')
        A(f'v_mov_b32 v{mx+2*i}, v{hC+T}')
        for h in range(2):
            A(f'v_pk_fma_f32 {vr(Sc+4*i+2*h,2)}, {vr(Sc+4*i+2*h,2)}, {vr(mx+2*i,2)}, {vr(mx+2*i,2)} op_sel:[0,0,1] op_sel_hi:[1,0,1] neg_lo:[0,0,1] neg_hi:[0,0,1]')
    for i in range(n):
        for r in range(4):
            A(f'v_exp_f32 v{Sc+4*i+r}, v{Sc+4*i+r}')
    for i in range(n):
        for h in range(2):
            A(f'v_cvt_pk_bf16_f32 v{pk+2*i+h}, v{Sc+4*i+2*h}, v{Sc+4*i+2*h+1}')
        for h in range(2):
            A(f'v_and_b32 v{Sp+4*i+h}, v{pk+2*i+h}, v{vMP+h}')
        for h in range(2):
            A(f'v_xor_b32 v{Sp+4*i+2+h}, v{pk+2*i+h}, v{Sp+4*i+h}')
    Ls = V.alloc(4 * n, 2)
    for i, T in enumerate(tiles):
        A(mf(vr(Ls + 4 * i, 4), vr(vOnes, 2), vr(pk + 2 * i, 2), '0', False))
        A(mf(vr(Sc + 4 * i, 4), vr(hV + 2 * T, 4), vr(Sp + 4 * i, 4), '0'))
    for i in range(n):
        A(f'v_rcp_f32 v{Ls+4*i}, v{Ls+4*i}')
    for i in range(n):
        for h in range(2):
            A(f'v_pk_mul_f32 {vr(Sc+4*i+2*h,2)}, {vr(Sc+4*i+2*h,2)}, {vr(Ls+4*i,2)} op_sel_hi:[1,0]')
        for h in range(2):
            A(f'v_cvt_pk_bf16_f32 v{oP+2*i+h}, v{Sc+4*i+2*h}, v{Sc+4*i+2*h+1}')
    for j in range(n // 2):
        for h in range(2):
            A(f'v_permlane16_swap_b32 v{oP+4*j+h}, v{oP+4*j+2+h}')
    V.release(Sp, 4 * n); V.release(Sc, 4 * n); V.release(mx, 2 * n); V.release(pk, 2 * n); V.release(Ls, 4 * n)
    return oP
oP = attention([0, 1, 2, 3])
V.release(hQ, 8); V.release(hK, 10); V.release(hV, 10); V.release(hC, 4)
stamp()
E = if_layer(0)
Lh = A.newlabel('L_hel'); Lok = A.newlabel('L_helok')
A(f's_mov_b32 s{sGUARD}, {SPIN}')
A.label(Lh)
A.wait_vm0()
for r in range(4): A(f'v_xor_b32 v{hel+r}, s{sXCC}, v{hel+r}')
A(f'v_or3_b32 v{t0}, v{hel}, v{hel+1}, v{hel+2}')
A(f'v_or_b32 v{t0}, v{t0}, v{hel+3}')
A(f'v_cmp_lt_u32 vcc, 15, v{t0}')
A(f's_cbranch_vccz {Lok}')
A(f'buffer_load_dwordx4 {vr(hel,4)}, v{vHel}, {srd(SRD_WS)}, 0 offen sc1')
A(f's_sub_u32 s{sGUARD}, s{sGUARD}, 1')
A(f's_cbranch_scc0 {Lh}')
A.label(Lok); A.vm = []
A(f'v_cmp_ne_u32 vcc, 0, v{t0}')
A(f's_lshl_b32 s{sT0}, s{sSET}, 3')
A(f's_lshr_b64 vcc, vcc, s{sT0}')
A(f's_and_b32 s{sT0}, vcc_lo, 0xff')
A(f's_cselect_b32 s{sLOCAL}, 0, {0 if FORCE_REMOTE else 1}')
Lne = A.newlabel('L_noep')
A(f's_or_b32 s{sT0}, s2, s{sW}')
A(f's_cbranch_scc1 {Lne}')
A(f'v_mov_b32 v{t0}, s{sTAG}')
A(f'v_mov_b32 v{t1}, {WS_EPOCH}')
A('s_mov_b64 exec, 1')
A(f'buffer_store_dword v{t0}, v{t1}, {srd(SRD_WS)}, 0 offen sc1')
A('s_mov_b64 exec, -1')
A.label(Lne)
endif(E)
V.release(hel, 4); V.release(vHel)
A(f's_mov_b32 s{sT0}, 32768')
A(f's_lshl_b32 s{sT1}, s{sLAYER}, 13')
A(f's_lshl_b32 s{sT2}, s{sRB}, 8')
A(f's_add_u32 s{sT1}, s{sT1}, s{sT2}')
A(f's_add_u32 s{sT5}, s{sT1}, {WS_FL}')
A(f's_lshl_b32 s{sT2}, s{sHG}, 2')
A(f's_add_u32 s{sT2}, s{sT2}, s{sW}')
A(f's_lshl_b32 s{sT2}, s{sT2}, 2')
A(f'v_mov_b32 v{t0}, 0')
A(f'v_mov_b32 v{t1}, s{sT2}')
local_stores([f'buffer_store_dwordx4 {vr(oP,4)}, v{vOst}, {srd(SRD_WS)}, 0 offen',
              f'buffer_store_dwordx4 {vr(oP+4,4)}, v{vOst}, {srd(SRD_WS)}, s{sT0} offen',
              's_waitcnt vmcnt(0)',
              's_mov_b64 exec, 1',
              f'buffer_store_dword v{t0}, v{t1}, {srd(SRD_WS)}, s{sT5} offen',
              's_mov_b64 exec, -1'])
V.release(oP, 8)
stamp()
if STOP == 'o1': finish()

E = if_layer(0)
big = V.alloc(64, 2)
A(f'v_lshlrev_b32 v{t0}, 10, v{vG}')
A(f'v_bfe_u32 v{t1}, v{vL}, 2, 2')
A(f'v_lshl_add_u32 v{t0}, v{t1}, 7, v{t0}')
A(f'v_and_b32 v{t2}, 3, v{vL}')
A(f'v_lshl_add_u32 v{t0}, v{t2}, 4, v{t0}')
A(f's_lshl_b32 s{sT0}, s{sW}, 14')
A(f's_add_u32 s{sT1}, s{sT0}, {L_WO}')
A(f'v_add_u32 v{t0}, s{sT1}, v{t0}')
for ksl in range(4):
    for t in range(4):
        for h in range(2):
            A(f'ds_read_b64_tr_b16 {vr(big + (ksl*4+t)*4 + 2*h, 2)}, v{t0} offset:{ksl*4096 + h*512 + (t>>1)*64 + (t&1)*8}')
A(f's_add_u32 s{sT2}, s{sT0}, 8192')
A(f'v_add_u32 v{t3}, s{sT2}, v{vL16}')
for n in range(8):
    A(f'ds_write_b128 v{t3}, {ar(aFG + 4*n, 4)} offset:{n*1024}')
A(f'v_add_u32 v{t3}, s{sT1}, v{vL16}')
A('s_waitcnt lgkmcnt(0)')
for j in range(16):
    A(f'ds_write_b128 v{t3}, {vr(big + 4*j, 4)} offset:{j*1024}')
A(f'v_lshlrev_b32 v{t0}, 8, v{vG}')
A(f'v_lshl_add_u32 v{t0}, v{t1}, 5, v{t0}')
A(f'v_and_b32 v{t1}, 1, v{t2}')
A(f'v_lshl_add_u32 v{t0}, v{t1}, 12, v{t0}')
A(f'v_lshrrev_b32 v{t1}, 1, v{t2}')
A(f'v_lshl_add_u32 v{t0}, v{t1}, 15, v{t0}')
A(f's_lshl_b32 s{sT0}, s{sW}, 3')
A(f's_add_u32 s{sT0}, s{sT0}, 8192')
A(f'v_add_u32 v{t0}, s{sT0}, v{t0}')
A('s_waitcnt lgkmcnt(0)')
A('s_barrier')
for s_ in range(8):
    for h in range(2):
        A(f'ds_read_b64_tr_b16 {ar(aFG + 4*s_ + 2*h, 2)}, v{t0} offset:{(s_>>2)*16384 + ((s_&3)*32 + 4*h)*32}')
A(f's_mov_b32 s{sT0}, 0x05040100')
A(f's_mov_b32 s{sT1}, 0x07060302')
for j in range(8):
    for k_ in range(4): A(f'v_accvgpr_read_b32 v{big + 4*(j&1) + k_}, a{aFD + 4*j + k_}')
    b = big + 4 * (j & 1)
    A(f'v_perm_b32 v{big+8}, v{b+2}, v{b}, s{sT0}')
    A(f'v_perm_b32 v{big+9}, v{b+2}, v{b}, s{sT1}')
    A(f'v_perm_b32 v{big+10}, v{b+3}, v{b+1}, s{sT0}')
    A(f'v_perm_b32 v{big+11}, v{b+3}, v{b+1}, s{sT1}')
    for k_ in range(4): A(f'v_accvgpr_write_b32 a{aFD + 4*j + k_}, v{big + 8 + k_}')
A(f's_mov_b32 vcc_lo, 0x11111111')
A(f's_mov_b32 vcc_hi, 0x11111111')
for r in range(8): A(f'v_cndmask_b32 v{aux+r}, v{aux+r}, v{vOnes}, vcc')
A(mf(vr(big, 4), vr(vOnes, 2), vr(wra, 2), '0', False))
A(mf(vr(big, 4), vr(vOnes, 2), vr(wra + 2, 2), vr(big, 4), False))
A(f'v_add_f32_dpp v{vSW}, v{big}, v{big} row_ror:8 row_mask:0xf bank_mask:0xf')
for sh in (4, 2, 1):
    A(f'v_add_f32_dpp v{vSW}, v{vSW}, v{vSW} row_ror:{sh} row_mask:0xf bank_mask:0xf')
A('s_waitcnt lgkmcnt(0)')
V.release(big, 64); V.release(wra, 4)
endif(E)

acc = V.alloc(16, 2); oF = V.alloc(64, 2); bR = V.alloc(64, 2)
vB = V.alloc()
A(f'v_add_u32 v{vB}, {L_WO}, v{vL16}')
def b_read(ks, t): return f'ds_read_b128 {vr(bR + ((ks & 3)*4 + t)*4, 4)}, v{vB} offset:{(ks*4 + t)*1024}'
for ks in range(4):
    for t in range(4): A(b_read(ks, t))
for j in range(8):
    A(f'v_lshlrev_b32 v{acc+2*j}, 16, v{xP+j}')
    A(f'v_and_b32 v{acc+2*j+1}, 0xffff0000, v{xP+j}')
A(f'v_and_b32 v{t1}, 31, v{vL}')
A(f'v_lshlrev_b32 v{t1}, 2, v{t1}')
A(f's_lshl_b32 s{sT0}, s{sRB}, 16')
A(f's_lshl_b32 s{sT1}, s{sW}, 14')
A(f's_add_u32 s{sT0}, s{sT0}, s{sT1}')
A(f'v_add_u32 v{t2}, s{sT0}, v{vL16}')
poll(lambda: A(f'buffer_load_dword v{t0}, v{t1}, {srd(SRD_WS)}, s{sT5} offen sc1'),
     lambda: A(f'v_cmp_ne_u32 vcc, 0, v{t0}'), 'FL')
stamp()
for ks in range(16):
    if ks % 4 == 0: A(f's_mov_b32 s{sT0}, {ks*1024}')
    A(f'buffer_load_dwordx4 {vr(oF + 4*ks, 4)}, v{t2}, {srd(SRD_WS)}, s{sT0} offen offset:{(ks%4)*1024} sc1', tag=f'o{ks}')
for ks in range(16):
    nl = min(12, (15 - ks) * 4)
    A.wait_vm(f'o{ks}', f'lgkmcnt({nl})')
    for t in range(4):
        A(mf(vr(acc + 4*t, 4), vr(bR + ((ks & 3)*4 + t)*4, 4), vr(oF + 4*ks, 4), vr(acc + 4*t, 4)))
        if ks + 4 < 16: A(b_read(ks + 4, t))
V.release(oF, 64); V.release(bR, 64); V.release(vB)
for j in range(8):
    A(f'v_cvt_pk_bf16_f32 v{xP+j}, v{acc+2*j}, v{acc+2*j+1}')
stamp()
gG = V.alloc(4, 2); gS = V.alloc(4, 2)
vRow = V.alloc()
A(f'v_lshlrev_b32 v{vRow}, 10, v{vQ}')
A(f'v_lshl_add_u32 v{vRow}, v{vG}, 4, v{vRow}')
A(f's_lshl_b32 s{sT0}, s{sRB}, 16')
A(f's_lshl_b32 s{sT1}, s{sW}, 14')
A(f's_add_u32 s{sT0}, s{sT0}, s{sT1}')
A(f's_lshl_b32 s{sT1}, s{sHG}, 7')
A(f's_add_u32 s{sT0}, s{sT0}, s{sT1}')
A(f's_add_u32 s{sT0}, s{sT0}, {WS_X1}')
E = if_layer(0)
local_stores([f'buffer_store_dwordx4 {vr(xP,4)}, v{vRow}, {srd(SRD_WS)}, s{sT0} offen',
              f'buffer_store_dwordx4 {vr(xP+4,4)}, v{vRow}, {srd(SRD_WS)}, s{sT0} offen offset:64'])
endif(E)
A(mf(vr(gG, 4), vr(xP, 4), vr(xP, 4), '0'))
A(mf(vr(gS, 4), vr(aux, 4), vr(xP, 4), '0'))
A(mf(vr(gG, 4), vr(xP + 4, 4), vr(xP + 4, 4), vr(gG, 4)))
A(mf(vr(gS, 4), vr(aux + 4, 4), vr(xP + 4, 4), vr(gS, 4)))
A(f's_lshl_b32 s{sT1}, s{sLAYER}, 18')
A(f's_lshl_b32 s{sT2}, s{sRB}, 13')
A(f's_add_u32 s{sT1}, s{sT1}, s{sT2}')
A(f's_lshl_b32 s{sT2}, s{sW}, 11')
A(f's_add_u32 s{sT1}, s{sT1}, s{sT2}')
A(f's_add_u32 s{sT5}, s{sT1}, {WS_ST}')
A(f's_lshl_b32 s{sT2}, s{sHG}, 8')
A(f's_add_u32 s{sT1}, s{sT5}, s{sT2}')
A(f'v_lshlrev_b32 v{t1}, 4, v{vQ}')
A(f'v_cndmask_b32 v{t0}, v{gG}, v{gG+1}, {sr(sM0,2)}')
A(f'v_cndmask_b32 v{gS+2}, v{gG+2}, v{gG+3}, {sr(sM0,2)}')
A(f'v_cndmask_b32 v{gS+2}, v{t0}, v{gS+2}, {sr(sM1,2)}')
A(f'v_mov_b32 v{gS+3}, 0')
A.wait_vm0()
A('s_mov_b32 exec_lo, 0x00f0000f')
A('s_mov_b32 exec_hi, 0xf0000f00')
local_stores([f'buffer_store_dwordx4 {vr(gS,4)}, v{t1}, {srd(SRD_WS)}, s{sT1} offen'])
A('s_mov_b64 exec, -1')
E = if_layer(0)
A(f's_cmp_lg_u32 s{sW}, 3')
A(f's_cbranch_scc1 {E}')
A(f's_lshl_b32 s{sT0}, s{sRB}, 13')
A(f's_lshl_b32 s{sT1}, s{sHG}, 7')
A(f's_add_u32 s{sT0}, s{sT0}, s{sT1}')
A(f's_add_u32 s{sT0}, s{sT0}, {WS_HALO - 8192}')
A('s_mov_b32 exec_lo, 0xff00ff00')
A('s_mov_b32 exec_hi, 0xff00ff00')
A(f'buffer_store_dwordx4 {vr(xP,4)}, v{vRow}, {srd(SRD_WS)}, s{sT0} offen sc1')
A(f'buffer_store_dwordx4 {vr(xP+4,4)}, v{vRow}, {srd(SRD_WS)}, s{sT0} offen offset:64 sc1')
A(f's_lshl_b32 s{sT0}, s{sRB}, 10')
A(f's_add_u32 s{sT0}, s{sT0}, s{sT1}')
A(f's_add_u32 s{sT0}, s{sT0}, {WS_HS - 128}')
A.wait_vm0()
A('s_mov_b32 exec_lo, 0')
A('s_mov_b32 exec_hi, 0xf0000f00')
A(f'buffer_store_dwordx4 {vr(gS,4)}, v{t1}, {srd(SRD_WS)}, s{sT0} offen sc1')
A('s_mov_b64 exec, -1')
endif(E)
V.release(gG, 4); V.release(gS, 4)
for j in range(8):
    A(f'v_lshlrev_b32 v{acc+2*j}, 16, v{xP+j}')
    A(f'v_and_b32 v{acc+2*j+1}, 0xffff0000, v{xP+j}')
if STOP == 'x1': finish()

sa = V.alloc(8, 2)
def h1_issue():
    A(f'buffer_load_dwordx4 {vr(sa,4)}, v{vL16}, {srd(SRD_WS)}, s{sT5} offen sc1')
    A(f'buffer_load_dwordx4 {vr(sa+4,4)}, v{vL16}, {srd(SRD_WS)}, s{sT5} offen offset:1024 sc1')
def h1_check():
    A(f'v_or_b32 v{t0}, v{sa+3}, v{sa+7}')
    A(f'v_cmp_ne_u32 vcc, 0, v{t0}')
poll(h1_issue, h1_check, 'ST')
stamp()
A(f'v_pk_add_f32 {vr(sa,2)}, {vr(sa,2)}, {vr(sa+4,2)}')
A(f'v_add_f32 v{sa+2}, v{sa+2}, v{sa+6}')
for sw in ('v_permlane16_swap_b32', 'v_permlane32_swap_b32'):
    for r in range(3): A(f'v_mov_b32 v{sa+4+r}, v{sa+r}')
    for r in range(3): A(f'{sw} v{sa+r}, v{sa+4+r}')
    for r in range(3): A(f'v_add_f32 v{sa+r}, v{sa+r}, v{sa+4+r}')
mu = V.alloc(); var = V.alloc(); pr = V.alloc(2, 2); mm = V.alloc()
ln_params(sa, sa + 2, mu, var, mm, pr, t0)
key = V.alloc(); ka = V.alloc(); kb = V.alloc()
A(f'v_fma_f32 v{key}, -v{mm}, v{vSW}, v{sa+1}')
A(f'v_mul_f32 v{pr+1}, -v{mm}, v{pr}')
A(f'v_mul_f32 v{key}, v{key}, v{pr}')
A(f's_lshl_b32 s{sT0}, s{sRB}, 2')
A(f's_add_u32 s{sT0}, s{sT0}, s{sW}')
A(f's_lshl_b32 s{sT1}, s{sT0}, 4')
A(f'v_ashrrev_i32 v{t0}, 31, v{key}')
A(f'v_or_b32 v{t0}, 0x80000000, v{t0}')
A(f'v_xor_b32 v{key}, v{key}, v{t0}')
A(f'v_and_b32 v{key}, 0xfffff800, v{key}')
A(f'v_or3_b32 v{key}, v{key}, v{vQ}, s{sT1}')
xn = V.alloc(8, 2); xf = V.alloc(16, 2)
DP = 'row_mask:0xf bank_mask:0xf'
fillx = [f'v_pk_fma_f32 {vr(xf+2*j,2)}, {vr(acc+2*j,2)}, {vr(pr,2)}, {vr(pr,2)} op_sel:[0,0,1] op_sel_hi:[1,0,1]' for j in range(8)] + \
        [f'v_cvt_pk_bf16_f32 v{xn+j}, v{xf+2*j}, v{xf+2*j+1}' for j in range(8)]
def top2_levels(a, b, levels, fill):
    for lv in levels:
        for _ in range(2):
            if fill: A(fill.pop(0))
        A(f'v_min_u32_dpp v{t0}, v{a}, v{a} {lv} {DP}')
        A(f'v_max_u32_dpp v{t1}, v{b}, v{b} {lv} {DP}')
        A(f'v_max_u32_dpp v{a}, v{a}, v{a} {lv} {DP}')
        A(f'v_max_u32 v{b}, v{t0}, v{t1}')
A(fillx.pop(0)); A(fillx.pop(0))
A(f'v_max_u32_dpp v{ka}, v{key}, v{key} quad_perm:[1,0,3,2] {DP}')
A(f'v_min_u32_dpp v{kb}, v{key}, v{key} quad_perm:[1,0,3,2] {DP}')
top2_levels(ka, kb, ['quad_perm:[2,3,0,1]', 'row_half_mirror', 'row_mirror'], fillx)
while fillx: A(fillx.pop(0))
assert kb == ka + 1
k2 = V.alloc(2, 2)
A(f'v_mov_b32 v{k2}, v{ka}')
A(f'v_mov_b32 v{k2+1}, v{kb}')
A(f's_lshl_b32 s{sT1}, s{sLAYER}, 18')
A(f's_lshl_b32 s{sT2}, s{sT0}, 11')
A(f's_add_u32 s{sT1}, s{sT1}, s{sT2}')
A(f's_lshl_b32 s{sT2}, s{sHG}, 7')
A(f's_add_u32 s{sT1}, s{sT1}, s{sT2}')
A(f's_add_u32 s{sT1}, s{sT1}, {WS_CAND}')
A(f'v_cmp_eq_u32 vcc, v{key}, v{kb}')
A(f'v_cndmask_b32 v{t0}, 0, 1, vcc')
A(f'v_lshlrev_b32 v{t1}, 4, v{vG}')
A(f'v_lshl_add_u32 v{t2}, v{t0}, 10, v{t1}')
A(f'v_lshl_add_u32 v{t3}, v{t0}, 8, v{t1}')
A(f's_lshl_b32 s{sT2}, s{sW}, 9')
A(f's_add_u32 s{sT2}, s{sT2}, {L_CS}')
A(f'v_add_u32 v{t3}, s{sT2}, v{t3}')
A(f'v_cmp_ge_u32 vcc, v{key}, v{kb}')
A(f's_mov_b64 exec, vcc')
A(f'buffer_store_dwordx4 {vr(xn,4)}, v{t2}, {srd(SRD_WS)}, s{sT1} offen sc1')
A(f'buffer_store_dwordx4 {vr(xn+4,4)}, v{t2}, {srd(SRD_WS)}, s{sT1} offen offset:64 sc1')
A(f'ds_write_b128 v{t3}, {vr(xP,4)}')
A(f'ds_write_b128 v{t3}, {vr(xP+4,4)} offset:64')
A(f'ds_write_b128 v{t3}, {vr(xn,4)} offset:128')
A(f'ds_write_b128 v{t3}, {vr(xn+4,4)} offset:192')
A('s_mov_b64 exec, 1')
A(f's_lshl_b32 s{sT1}, s{sLAYER}, 13')
A(f's_lshl_b32 s{sT2}, s{sHG}, 10')
A(f's_add_u32 s{sT2}, s{sT1}, s{sT2}')
A(f's_lshl_b32 s{sT0}, s{sT0}, 3')
A(f's_add_u32 s{sT2}, s{sT2}, s{sT0}')
A(f's_add_u32 s{sT2}, s{sT2}, {WS_KEYS}')
A(f'buffer_store_dwordx2 {vr(k2,2)}, v{vL16}, {srd(SRD_WS)}, s{sT2} offen sc1')
A('s_mov_b64 exec, -1')
A(f's_lshl_b32 s{sT2}, s{sSET}, 10')
A(f's_add_u32 s{sT5}, s{sT1}, s{sT2}')
A(f's_add_u32 s{sT5}, s{sT5}, {WS_KEYS}')
stamp()
V.release(key); V.release(ka); V.release(kb); V.release(k2, 2)
for j in range(8):
    A(f'v_lshlrev_b32 v{xf+2*j}, 16, v{xn+j}')
    A(f'v_and_b32 v{xf+2*j+1}, 0xffff0000, v{xn+j}')
for j in range(8):
    A(f'v_pk_add_f32 {vr(xf+2*j,2)}, {vr(xf+2*j,2)}, {vr(acc+2*j,2)}')
A('s_waitcnt lgkmcnt(0)')
for j in range(8):
    A(f'v_cvt_pk_bf16_f32 v{xP+j}, v{xf+2*j}, v{xf+2*j+1}')
V.release(xn, 8); V.release(xf, 16); V.release(acc, 16)
E = if_layer(1)
A(f's_add_u32 s{sT0}, s{sJ0}, 0')
A(f's_lshl_b32 s{sT1}, s{sW}, 4')
A(f's_add_u32 s{sT0}, s{sT0}, s{sT1}')
A(f's_lshl_b32 s{sT0}, s{sT0}, 11')
A(f's_lshl_b32 s{sT1}, s{sP}, 10')
A(f's_add_u32 s{sT0}, s{sT0}, s{sT1}')
A(f's_lshl_b32 s{sT1}, s{sHG}, 7')
A(f's_add_u32 s{sT0}, s{sT0}, s{sT1}')
A(f'v_lshl_add_u32 v{t0}, v{vQ}, 10, v{vRow}')
A(f'buffer_store_dwordx4 {vr(xP,4)}, v{t0}, {srd(SRD_OUT)}, s{sT0} offen')
A(f'buffer_store_dwordx4 {vr(xP+4,4)}, v{t0}, {srd(SRD_OUT)}, s{sT0} offen offset:64')
endif(E)
V.release(vRow)
def chain_params(mu, var, mm, rs, om, oc):
    a = V.alloc(); u = V.alloc(); w_ = V.alloc(); m2 = V.alloc(); r2 = V.alloc()
    A(f'v_add_f32 v{a}, 1.0, v{rs}')
    A(f'v_mul_f32 v{u}, v{mm}, v{rs}')
    A(f'v_fma_f32 v{mu}, v{mu}, v{a}, -v{u}')
    A(f'v_mul_f32 v{w_}, v{a}, v{a}')
    A(f'v_mul_f32 v{var}, v{var}, v{w_}')
    round_params(mu, var, m2, r2, w_)
    A(f'v_rcp_f32 v{w_}, v{a}')
    A(f'v_add_f32 v{u}, v{u}, v{m2}')
    A(f'v_mul_f32 v{oc}, v{a}, v{r2}')
    A(f'v_mul_f32 v{om}, -v{u}, v{w_}')
    for x in (a, u, w_, m2, r2): V.release(x)
E = if_layer(0)
chain_params(mu, var, mm, pr, t2, t3)
A(f's_lshl_b32 s{sT0}, s{sW}, 6')
A(f'v_add_u32 v{t0}, s{sT0}, v{vQ4}')
A(f'ds_write2_b32 v{t0}, v{t2}, v{t3} offset0:16 offset1:96')
Lnh = A.newlabel('L_nohalo')
A(f's_cmp_lg_u32 s{sW}, 0')
A(f's_cbranch_scc1 {Lnh}')
A(f's_cmp_lg_u32 s{sFIRST}, 0')
A(f's_cbranch_scc1 {Lnh}')
A(f's_lshl_b32 s{sT0}, s{sRB}, 10')
A(f's_add_u32 s{sT0}, s{sT0}, {WS_HS - 1024}')
poll(lambda: A(f'buffer_load_dwordx4 {vr(sa,4)}, v{vL16}, {srd(SRD_WS)}, s{sT0} offen sc1'),
     lambda: A(f'v_cmp_ne_u32 vcc, 0, v{sa+3}'), 'HS')
for r in (0, 2): A(f'v_add_f32_dpp v{sa+r}, v{sa+r}, v{sa+r} row_ror:8 {DP}')
for sw in ('v_permlane16_swap_b32', 'v_permlane32_swap_b32'):
    for r in (0, 2): A(f'v_mov_b32 v{sa+4+r}, v{sa+r}')
    for r in (0, 2): A(f'{sw} v{sa+r}, v{sa+4+r}')
    for r in (0, 2): A(f'v_add_f32 v{sa+r}, v{sa+r}, v{sa+4+r}')
ln_params(sa, sa + 2, mu, var, mm, pr, t0)
chain_params(mu, var, mm, pr, t2, t3)
A(f'ds_write2_b32 v{vQ4}, v{t2}, v{t3} offset0:0 offset1:80')
A.label(Lnh)
A('s_waitcnt lgkmcnt(0)')
A('s_barrier')
A(f's_lshl_b32 s{sT2}, s{sW}, 10')
A(f's_lshl_b32 s{sT0}, s{sRB}, 16')
A(f's_add_u32 s{sT0}, s{sT0}, s{sT2}')
for i in range(2, 18):
    A(f's_add_u32 m0, s{sT2}, {L_A + i * 4096}')
    A(f's_add_u32 s{sT1}, s{sT0}, {WS_X1 + (i - 2) * 4096}')
    A(f'buffer_load_dwordx4 v{vXa + ((i + 2) & 3)}, {srd(SRD_WS)}, s{sT1} offen sc1 lds')
A(f's_cmp_lg_u32 s{sFIRST}, 0')
A(f's_cbranch_scc1 {E}')
A(f's_lshl_b32 s{sT0}, s{sRB}, 13')
A(f's_add_u32 s{sT0}, s{sT0}, s{sT2}')
for i in range(2):
    A(f's_add_u32 m0, s{sT2}, {L_A + i * 4096}')
    A(f's_add_u32 s{sT1}, s{sT0}, {WS_HALO - 8192 + i * 4096}')
    A(f'buffer_load_dwordx4 v{vXa + ((i + 2) & 3)}, {srd(SRD_WS)}, s{sT1} offen sc1 lds')
endif(E)
V.release(mu); V.release(var); V.release(pr, 2); V.release(mm)
if STOP == 'keys':
    A.wait_vm0(); finish()

def h2_check():
    A(f'v_max3_u32 v{t0}, v{sa}, v{sa+1}, v{sa+2}')
    A(f'v_max_u32 v{t0}, v{t0}, v{sa+3}')
    A(f'v_cmp_eq_u32 vcc, -1, v{t0}')
poll(lambda: A(f'buffer_load_dwordx4 {vr(sa,4)}, v{vL16}, {srd(SRD_WS)}, s{sT5} offen sc1'), h2_check, 'KEYS')
stamp()
A(f'v_min_u32 v{t0}, v{sa}, v{sa+2}')
A(f'v_max_u32 v{sa}, v{sa}, v{sa+2}')
A(f'v_max3_u32 v{sa+1}, v{sa+1}, v{sa+3}, v{t0}')
top2_levels(sa, sa + 1, ['quad_perm:[1,0,3,2]', 'quad_perm:[2,3,0,1]', 'row_half_mirror', 'row_mirror'], [])
A(f'v_readlane_b32 s{sK0}, v{sa}, 0')
A(f'v_readlane_b32 s{sK1}, v{sa+1}, 0')
for ln in (16, 32, 48):
    A(f'v_readlane_b32 s{sT0}, v{sa}, {ln}')
    A(f'v_readlane_b32 s{sT1}, v{sa+1}, {ln}')
    A(f's_min_u32 s{sT2}, s{sK0}, s{sT0}')
    A(f's_max_u32 s{sK0}, s{sK0}, s{sT0}')
    A(f's_max_u32 s{sK1}, s{sK1}, s{sT1}')
    A(f's_max_u32 s{sK1}, s{sK1}, s{sT2}')
V.release(sa, 8)

Lnf = A.newlabel('L_noffn')
A(f's_cmp_eq_u32 s{sHASF}, 0')
A(f's_cbranch_scc1 {Lnf}')
xs = V.alloc(32, 2); wd = V.alloc(32, 2); d4 = V.alloc(4, 2); hp = V.alloc(8, 2)
A(f's_bfe_u32 s{sT0}, s{sK0}, 0x70004')
A(f's_bfe_u32 s{sT1}, s{sK1}, 0x70004')
A(f's_cmp_eq_u32 s{sT0}, s{sT1}')
A(f's_cselect_b32 s{sT2}, 1024, 0')
A(f's_lshl_b32 s{sT0}, s{sT0}, 11')
A(f's_lshl_b32 s{sT1}, s{sT1}, 11')
A(f's_add_u32 s{sT1}, s{sT1}, s{sT2}')
A(f'v_mov_b32 v{t0}, s{sT0}')
A(f'v_mov_b32 v{t1}, s{sT1}')
A(f's_mov_b32 vcc_lo, 0xf0f0f0f0')
A(f's_mov_b32 vcc_hi, 0xf0f0f0f0')
A(f'v_cndmask_b32 v{t2}, v{t0}, v{t1}, vcc')
A(f'v_and_b32 v{t0}, 1, v{vL}')
A(f'v_lshl_add_u32 v{t2}, v{t0}, 9, v{t2}')
A(f'v_lshl_add_u32 v{t2}, v{vG}, 4, v{t2}')
A(f's_lshl_b32 s{sT0}, s{sLAYER}, 18')
A(f's_add_u32 s{sT0}, s{sT0}, {WS_CAND}')
first = [True]
def f_issue():
    for s_ in range(8):
        A(f'buffer_load_dwordx4 {vr(xs + 4*s_, 4)}, v{t2}, {srd(SRD_WS)}, s{sT0} offen offset:{64*s_} sc1')
    for j in range(32): A(f'v_accvgpr_read_b32 v{wd+j}, a{aFD+j}')
def f_check():
    A(f'v_max3_u32 v{t0}, v{xs}, v{xs+4}, v{xs+8}')
    A(f'v_max3_u32 v{t1}, v{xs+12}, v{xs+16}, v{xs+20}')
    A(f'v_max3_u32 v{t0}, v{t0}, v{xs+24}, v{xs+28}')
    A(f'v_max_u32 v{t0}, v{t0}, v{t1}')
    A(f'v_cmp_eq_u32 vcc, -1, v{t0}')
poll(f_issue, f_check, 'CAND')
for s_ in range(8):
    A(mf(vr(d4, 4), vr(xs + 4*s_, 4), ar(aFG + 4*s_, 4), '0' if s_ == 0 else vr(d4, 4)))
A(f's_lshl_b32 s{sT1}, s{sW}, 3')
A(f's_add_u32 s{sT1}, s{sT1}, {L_H}')
A(f'v_lshlrev_b32 v{t2}, 5, v{vG}')
A(f'v_lshl_add_u32 v{t2}, v{vQ}, 1, v{t2}')
A(f'v_add_u32 v{t2}, s{sT1}, v{t2}')
A(f'v_add_f32_dpp v{t0}, v{d4+1}, v{d4} row_shl:8 {DP}')
bf_round(t0, t0)
A(f'v_mul_f32 v{t1}, {hex(f2u(-1.4426950408889634))}, v{t0}')
A(f'v_exp_f32 v{t1}, v{t1}')
A(f'v_add_f32 v{t1}, 1.0, v{t1}')
A(f'v_rcp_f32 v{t1}, v{t1}')
A(f'v_mul_f32 v{t1}, v{t0}, v{t1}')
bf_round(t1, t1)
A(f'v_mul_f32_dpp v{t1}, v{t0}, v{t1} row_shl:4 {DP}')
A(f'v_cvt_pk_bf16_f32 v{t1}, v{t1}, v{t1}')
A('s_mov_b32 exec_lo, 0x000f000f')
A('s_mov_b32 exec_hi, 0')
A(f'ds_write_b16 v{t2}, v{t1}')
A('s_mov_b64 exec, -1')
A(f's_lshr_b32 s{sT1}, s{sW}, 1')
A(f's_lshl_b32 s{sT2}, s{sT1}, 5')
A(f's_add_u32 s{sT2}, s{sT2}, {L_H}')
A(f'v_mov_b32 v{t2}, s{sT2}')
A('s_waitcnt lgkmcnt(0)')
A('s_barrier')
A(f'ds_read_b128 {vr(hp,4)}, v{t2}')
A(f'ds_read_b128 {vr(hp+4,4)}, v{t2} offset:16')
A(f's_mul_i32 s{sT0}, s{sLAYER}, {86*4096}')
A(f's_lshl_b32 s{sT1}, s{sFS}, 12')
A(f's_add_u32 s{sT0}, s{sT0}, s{sT1}')
A(f's_add_u32 s{sT0}, s{sT0}, {WS_YP}')
A(f'v_lshlrev_b32 v{t0}, 4, v0')
for c in range(4): A(f'v_mov_b32 v{d4+c}, 0')
A('s_waitcnt lgkmcnt(0)')
for j in range(8):
    for c in range(4):
        A(f'v_dot2c_f32_bf16 v{d4+c}, v{wd+4*j+c}, v{hp+j}')
A(f'buffer_store_dwordx4 {vr(d4,4)}, v{t0}, {srd(SRD_WS)}, s{sT0} offen sc1')
V.release(xs, 32); V.release(wd, 32); V.release(d4, 4); V.release(hp, 8)
A.label(Lnf)
A('s_nop 1')
stamp()
if STOP == 'y1':
    A.wait_vm0(); finish()

V.take(accQ, 20); V.take(accK, 20); V.take(accV, 20)
E = if_layer(0)
fr = [V.alloc(20, 2), V.alloc(20, 2)]
def p4_reads(ks):
    b = fr[ks & 1]; u = ks & 3; ko = (ks >> 2) * 256
    return [f'ds_read_b128 {vr(b, 4)}, v{vH+u} offset:{ko}'] + \
           [f'ds_read_b128 {vr(b + 4 + 4 * T, 4)}, v{vA+u} offset:{(8 + 16 * T) * 1024 + ko}' for T in range(4)]
A('s_barrier')
for x in p4_reads(0): A(x)
for ks in range(16):
    A('s_waitcnt lgkmcnt(0)')
    b = fr[ks & 1]; fill = p4_reads(ks + 1) if ks < 15 else []
    c = lambda x: '0' if ks == 0 else vr(x, 4)
    for T in range(5):
        X = vr(b + 4 * T, 4)
        if T: A(mf(vr(accQ + 4 * T, 4), ar(aW(ks, 0), 4), X, c(accQ + 4 * T)))
        A(mf(vr(accK + 4 * T, 4), ar(aW(ks, 1), 4), X, c(accK + 4 * T)))
        if fill: A(fill.pop(0))
        A(mf(vr(accV + 4 * T, 4), X, ar(aW(ks, 2), 4), c(accV + 4 * T)))
        if fill: A(fill.pop(0))
for b in fr: V.release(b, 20)
endif(E)
stamp()

A(f's_mov_b32 s{sTOK}, 0')
A(f's_mov_b32 s{sKEY}, s{sK0}')
A.label('L_own')
A(f's_and_b32 s{sRHO}, s{sKEY}, 2047')
A(f's_lshr_b32 s{sT0}, s{sRHO}, 6')
A(f's_cmp_lg_u32 s{sT0}, s{sRB}')
A('s_cbranch_scc1 L_own_next')
yp = V.alloc(24, 2)
A(f's_mul_i32 s{sT0}, s{sLAYER}, {86*4096}')
A(f's_lshl_b32 s{sT1}, s{sTOK}, 11')
A(f's_add_u32 s{sT0}, s{sT0}, s{sT1}')
A(f's_lshl_b32 s{sT1}, s{sHG}, 8')
A(f's_add_u32 s{sT0}, s{sT0}, s{sT1}')
A(f's_add_u32 s{sT0}, s{sT0}, {WS_YP}')
A(f'v_lshrrev_b32 v{t0}, 4, v0')
A(f'v_lshlrev_b32 v{t2}, 12, v{t0}')
A(f'v_lshl_add_u32 v{t2}, v{vQ}, 4, v{t2}')
A(f'v_add_u32 v{t2}, s{sT0}, v{t2}')
A(f'v_mov_b32 v{t1}, 0x40000000')
A(f'v_cmp_gt_u32 vcc, 6, v{t0}')
A(f'v_cndmask_b32 v{t3}, v{t1}, v{t2}, vcc')
def y_issue():
    for j in range(6):
        A(f's_mov_b32 s{sT1}, {j * 65536}')
        A(f'buffer_load_dwordx4 {vr(yp + 4*j, 4)}, v{t3 if j == 5 else t2}, {srd(SRD_WS)}, s{sT1} offen sc1')
def y_check():
    A(f'v_max3_u32 v{t0}, v{yp}, v{yp+4}, v{yp+8}')
    A(f'v_max3_u32 v{t1}, v{yp+12}, v{yp+16}, v{yp+20}')
    A(f'v_max_u32 v{t0}, v{t0}, v{t1}')
    A(f'v_cmp_eq_u32 vcc, -1, v{t0}')
poll(y_issue, y_check, 'YP')
for a_, b_ in ((0, 4), (8, 12), (16, 20), (0, 8), (0, 16)):
    for h in range(2):
        A(f'v_pk_add_f32 {vr(yp+a_+2*h,2)}, {vr(yp+a_+2*h,2)}, {vr(yp+b_+2*h,2)}')
A(f'v_lshlrev_b32 v{t0}, 4, v0')
A(f'v_add_u32 v{t0}, {L_RED}, v{t0}')
A(f'ds_write_b128 v{t0}, {vr(yp,4)}')
A(f's_bfe_u32 s{sT0}, s{sK0}, 0x70004')
A(f's_bfe_u32 s{sT1}, s{sKEY}, 0x70004')
A(f's_cmp_eq_u32 s{sT0}, s{sT1}')
A(f's_cselect_b32 s{sT0}, s{sTOK}, 0')
A(f's_lshl_b32 s{sT0}, s{sT0}, 8')
A(f's_and_b32 s{sT1}, s{sT1}, 3')
A(f's_lshl_b32 s{sT1}, s{sT1}, 9')
A(f's_add_u32 s{sT0}, s{sT0}, s{sT1}')
A(f's_add_u32 s{sT0}, s{sT0}, {L_CS}')
A(f'v_lshl_add_u32 v{t1}, v{vL}, 1, s{sT0}')
A(f'v_lshlrev_b32 v{t0}, 2, v{vL}')
A(f'v_add_u32 v{t0}, {L_RED}, v{t0}')
A(f's_ashr_i32 s{sT1}, s{sKEY}, 31')
A(f's_not_b32 s{sT1}, s{sT1}')
A(f's_or_b32 s{sT1}, s{sT1}, 0x80000000')
A(f's_xor_b32 s{sT1}, s{sT1}, s{sKEY}')
A(f'v_mov_b32 v{t2}, s{sT1}')
bf_round(t2, t2)
A(f'v_mul_f32 v{t2}, {hex(f2u(-1.4426950408889634))}, v{t2}')
A(f'v_exp_f32 v{t2}, v{t2}')
A(f'v_add_f32 v{t2}, 1.0, v{t2}')
A(f'v_rcp_f32 v{t2}, v{t2}')
bf_round(t2, t2)
A('s_waitcnt lgkmcnt(0)')
A('s_barrier')
for j in range(8):
    A(f'ds_read2st64_b32 {vr(yp + 2*j, 2)}, v{t0} offset0:{2*j} offset1:{2*j+1}')
A(f'ds_read_u16 v{yp+16}, v{t1}')
A(f'ds_read_u16 v{yp+17}, v{t1} offset:128')
A('s_waitcnt lgkmcnt(0)')
for a_, b_ in ((0, 2), (4, 6), (8, 10), (12, 14), (0, 4), (8, 12), (0, 8)):
    A(f'v_pk_add_f32 {vr(yp+a_,2)}, {vr(yp+a_,2)}, {vr(yp+b_,2)}')
A(f'v_add_f32 v{yp}, v{yp}, v{yp+1}')
A(f'v_lshlrev_b32 v{yp+16}, 16, v{yp+16}')
A(f'v_lshlrev_b32 v{yp+17}, 16, v{yp+17}')
bf_round(yp, yp)
A(f'v_mul_f32 v{yp}, v{yp}, v{t2}')
bf_round(yp, yp)
A(f'v_add_f32 v{yp}, v{yp}, v{yp+17}')
bf_round(yp, yp)
A(f'v_add_f32 v{yp}, v{yp}, v{yp+16}')
A(f'v_mov_b32_dpp v{yp+1}, v{yp} quad_perm:[1,0,3,2] {DP}')
A(f'v_cvt_pk_bf16_f32 v{yp}, v{yp}, v{yp+1}')
A(f'v_lshlrev_b32 v{t0}, 1, v{vL}')
A(f's_lshl_b32 s{sT2}, s{sHG}, 7')
A(f's_cmp_lg_u32 s{sW}, 0')
A('s_cbranch_scc1 L_own_sync')
A('s_mov_b32 exec_lo, 0x55555555')
A('s_mov_b32 exec_hi, 0x55555555')
A(f's_cmp_eq_u32 s{sLAYER}, 0')
A('s_cbranch_scc1 L_own_x2')
A(f's_and_b32 s{sT0}, s{sRHO}, 1023')
A(f's_lshl_b32 s{sT0}, s{sT0}, 11')
A(f's_and_b32 s{sT1}, s{sRHO}, 1024')
A(f's_add_u32 s{sT0}, s{sT0}, s{sT1}')
A(f's_add_u32 s{sT0}, s{sT0}, s{sT2}')
A(f'buffer_store_dword v{yp}, v{t0}, {srd(SRD_OUT)}, s{sT0} offen')
A('s_branch L_own_fin')
A.label('L_own_x2')
A(f's_lshl_b32 s{sT0}, s{sTOK}, 10')
A(f's_add_u32 s{sT0}, s{sT0}, s{sT2}')
A(f's_add_u32 s{sT0}, s{sT0}, {WS_X2R}')
A(f'buffer_store_dword v{yp}, v{t0}, {srd(SRD_WS)}, s{sT0} offen sc1')
A(f'v_add_u32 v{t0}, {L_X2S}, v{t0}')
A(f'ds_write_b32 v{t0}, v{yp}')
A.label('L_own_fin')
A('s_mov_b64 exec, -1')
A.label('L_own_sync')
A('s_waitcnt lgkmcnt(0)')
A('s_barrier')
A(f's_bfe_u32 s{sT0}, s{sRHO}, 0x20004')
A(f's_cmp_lg_u32 s{sT0}, s{sW}')
A('s_cbranch_scc1 L_own_b')
A(f's_and_b32 s{sT0}, s{sRHO}, 15')
A(f'v_lshlrev_b32 v{t0}, 4, v{vG}')
A(f'v_add_u32 v{t0}, {L_X2S}, v{t0}')
A(f'v_cmp_eq_u32 vcc, s{sT0}, v{vQ}')
A('s_mov_b64 exec, vcc')
A(f'ds_read_b128 {vr(xP,4)}, v{t0}')
A(f'ds_read_b128 {vr(xP+4,4)}, v{t0} offset:64')
A('s_mov_b64 exec, -1')
A('s_waitcnt lgkmcnt(0)')
A.label('L_own_b')
A('s_barrier')
V.release(yp, 24)
A.label('L_own_next')
A(f's_mov_b32 s{sKEY}, s{sK1}')
A(f's_add_u32 s{sTOK}, s{sTOK}, 1')
A(f's_cmp_lt_u32 s{sTOK}, 2')
A('s_cbranch_scc1 L_own')
A(f's_cmp_eq_u32 s{sLAYER}, 1')
A('s_cbranch_scc1 L_fin')
stamp()
if STOP == 'x2r':
    A.wait_vm0(); finish()

A(f's_mov_b32 s{sTOK}, 0')
A(f's_mov_b32 s{sKEY}, s{sK0}')
A.label('L_fix')
A(f's_and_b32 s{sRHO}, s{sKEY}, 2047')
A(f's_lshl_b32 s{sT0}, s{sRB}, 6')
A(f's_sub_u32 s{sT0}, s{sRHO}, s{sT0}')
A(f's_add_u32 s{sT4}, s{sT0}, 16')
A(f's_cmp_ge_u32 s{sT4}, 80')
A('s_cbranch_scc1 L_fix_next')
A(f's_lshl_b32 s{sT1}, s{sFIRST}, 3')
A(f's_add_u32 s{sT1}, s{sT1}, 8')
A(f's_cmp_lt_u32 s{sT4}, s{sT1}')
A('s_cbranch_scc1 L_fix_next')
rw = V.alloc(4, 2); xr = V.alloc(64, 2); nq = V.alloc(12, 2); s12 = V.alloc(4, 2)
A(f's_lshl_b32 s{sT0}, s{sTOK}, 10')
A(f's_add_u32 s{sT0}, s{sT0}, {WS_X2R}')
A(f's_lshl_b32 s{sT1}, s{sW}, 10')
A(f's_add_u32 s{sT1}, s{sT1}, {L_ROW}')
A(f'v_add_u32 v{t2}, s{sT1}, v{vL16}')
A(f'v_lshl_add_u32 v{t3}, v{vG}, 4, s{sT1}')
def r_check():
    A(f'v_max3_u32 v{t0}, v{rw}, v{rw+1}, v{rw+2}')
    A(f'v_max_u32 v{t0}, v{t0}, v{rw+3}')
    A(f'v_cmp_eq_u32 vcc, -1, v{t0}')
poll(lambda: A(f'buffer_load_dwordx4 {vr(rw,4)}, v{vL16}, {srd(SRD_WS)}, s{sT0} offen sc1'), r_check, 'X2R')
A(f'ds_write_b128 v{t2}, {vr(rw,4)}')
A(f'v_mov_b32 v{s12}, 0')
A(f'v_mov_b32 v{s12+1}, 0')
A('s_waitcnt lgkmcnt(0)')
for ks in range(16):
    A(f'ds_read_b128 {vr(xr + 4*ks, 4)}, v{t3} offset:{64*ks}')
for j in range(4):
    A(f'v_dot2c_f32_bf16 v{s12}, v{rw+j}, v{vOnes}')
    A(f'v_dot2c_f32_bf16 v{s12+1}, v{rw+j}, v{rw+j}')
A('s_waitcnt lgkmcnt(0)')
for ks in range(16):
    c = lambda x: '0' if ks == 0 else vr(x, 4)
    X = vr(xr + 4 * ks, 4)
    A(mf(vr(nq, 4), ar(aW(ks, 0), 4), X, c(nq)))
    A(mf(vr(nq + 4, 4), ar(aW(ks, 1), 4), X, c(nq + 4)))
    A(mf(vr(nq + 8, 4), X, ar(aW(ks, 2), 4), c(nq + 8)))
for sh in (8, 4, 2, 1):
    for r in range(2): A(f'v_add_f32_dpp v{s12+r}, v{s12+r}, v{s12+r} row_ror:{sh} {DP}')
for sw in ('v_permlane16_swap_b32', 'v_permlane32_swap_b32'):
    for r in range(2): A(f'v_mov_b32 v{s12+2+r}, v{s12+r}')
    for r in range(2): A(f'{sw} v{s12+r}, v{s12+2+r}')
    for r in range(2): A(f'v_add_f32 v{s12+r}, v{s12+r}, v{s12+2+r}')
ln_params(s12, s12 + 1, rw, rw + 1, rw + 2, rw + 3, t0)
A(f'v_xor_b32 v{rw+2}, 0x80000000, v{rw+2}')
A(f's_lshl_b32 s{sT0}, s{sT4}, 2')
A(f's_add_u32 s{sT0}, s{sT0}, {L_TAB}')
A(f'v_mov_b32 v{t0}, s{sT0}')
A(f'ds_write2_b32 v{t0}, v{rw+2}, v{rw+3} offset0:0 offset1:80')
A(f's_and_b32 s{sT0}, s{sT4}, 15')
A(f's_lshr_b32 s{sT1}, s{sT4}, 4')
A(f's_lshl_b32 s{sT1}, s{sT1}, 2')
A(f'v_cmp_eq_u32 vcc, s{sT0}, v{vQ}')
A('s_mov_b64 exec, vcc')
A(f's_set_gpr_idx_on s{sT1}, gpr_idx(DST)')
for r in range(4):
    A(f'v_mov_b32 v{accQ+r}, v{nq+r}')
    A(f'v_mov_b32 v{accK+r}, v{nq+4+r}')
A('s_set_gpr_idx_off')
A('s_mov_b64 exec, -1')
A(f's_lshr_b32 s{sT2}, s{sT0}, 2')
A(f's_and_b32 s{sT0}, s{sT0}, 3')
A(f's_add_u32 s{sT1}, s{sT1}, s{sT0}')
A(f'v_cmp_eq_u32 vcc, s{sT2}, v{vG}')
A('s_mov_b64 exec, vcc')
A(f's_set_gpr_idx_on s{sT1}, gpr_idx(DST)')
A(f'v_mov_b32 v{accV}, v{nq+8}')
A('s_set_gpr_idx_off')
A('s_mov_b64 exec, -1')
A('s_waitcnt lgkmcnt(0)')
V.release(rw, 4); V.release(xr, 64); V.release(nq, 12); V.release(s12, 4)
A.label('L_fix_next')
A(f's_mov_b32 s{sKEY}, s{sK1}')
A(f's_add_u32 s{sTOK}, s{sTOK}, 1')
A(f's_cmp_lt_u32 s{sTOK}, 2')
A('s_cbranch_scc1 L_fix')
A(f's_mov_b32 s{sLAYER}, 1')
A('s_branch L_epi')
A.label('L_fin')
finish()
A.label('L_end')
A('s_endpgm')

hdr = f"""; @launch grid=(256,1,1) block=(256,1,1) lds={LDS_SIZE}
.amdgcn_target "amdgcn-amd-amdhsa--gfx950"
.text
.globl {NAME}_kernel
.p2align 8
.type {NAME}_kernel,@function
"""
tail = f"""
.section .rodata,"a"
.p2align 6
.amdhsa_kernel {NAME}_kernel
  .amdhsa_next_free_vgpr 512
  .amdhsa_next_free_sgpr 102
  .amdhsa_accum_offset 256
  .amdhsa_group_segment_fixed_size 0
  .amdhsa_kernarg_size 88
  .amdhsa_user_sgpr_count 2
  .amdhsa_user_sgpr_kernarg_segment_ptr 1
  .amdhsa_system_sgpr_workgroup_id_x 1
.end_amdhsa_kernel
"""
open(sys.argv[1], 'w').write(hdr + A.text() + tail)
print('vgpr high water', V.hw, 'nops added', A.nops_added, 'lines', len(A.lines))
```

```python
import re

REG = re.compile(r'^(-?)(abs\()?([vas])(?:(\d+)|\[(\d+):(\d+)\])\)?$')

def regs_of(op):
    op = op.strip()
    if op in ('vcc', 'vcc_lo', 'vcc_hi'):
        return [('s', 'vcc')]
    if op == 'exec':
        return [('s', 'exec')]
    if op == 'm0':
        return [('s', 'm0')]
    m = REG.match(op)
    if not m:
        return []
    k = m.group(3)
    if m.group(4) is not None:
        return [(k, int(m.group(4)))]
    return [(k, i) for i in range(int(m.group(5)), int(m.group(6)) + 1)]

def split_ops(s):
    out, depth, cur = [], 0, ''
    for ch in s:
        if ch in '[(':
            depth += 1
        if ch in '])':
            depth -= 1
        if ch == ',' and depth == 0:
            out.append(cur.strip()); cur = ''
        else:
            cur += ch
    if cur.strip():
        out.append(cur.strip())
    return out

TRANS = ('v_exp_f32', 'v_log_f32', 'v_rcp_f32', 'v_rsq_f32', 'v_sqrt_f32', 'v_sin_f32', 'v_cos_f32')

class Ins:
    def __init__(self, text):
        self.text = text
        t = text.split(';')[0].strip()
        parts = t.split(None, 1)
        self.op = parts[0]
        rest = parts[1] if len(parts) > 1 else ''
        ops = split_ops(rest)
        self.mods = ''
        if ops:
            l = ops[-1].split(None, 1)
            ops[-1] = l[0]
            self.mods = l[1] if len(l) > 1 else ''
        self.ops = ops
        op = self.op
        self.kind = 'other'
        self.w, self.r = [], []
        self.mf_a = self.mf_b = self.mf_c = []
        R = [regs_of(o) for o in ops]
        flat = lambda L: [x for l in L for x in l]
        if op.startswith('v_mfma'):
            self.kind = 'mfma'
            self.w = R[0]; self.mf_a = R[1]; self.mf_b = R[2]; self.mf_c = R[3]
            self.r = flat(R[1:])
            self.passes = 8 if '32x32' in op else 4
        elif op.startswith('v_'):
            self.kind = 'valu'
            if op.startswith('v_permlane') and 'swap' in op:
                self.w = R[0] + R[1]; self.r = R[0] + R[1]
            elif op.startswith('v_cmp'):
                self.w = R[0]; self.r = flat(R[1:])
            elif op.startswith(('v_add_co', 'v_sub_co', 'v_addc_co', 'v_subb_co')):
                self.w = R[0] + R[1]; self.r = flat(R[2:])
            elif op == 'v_nop':
                pass
            else:
                self.w = R[0]; self.r = flat(R[1:])
                if op.startswith(('v_fmac', 'v_dot2c', 'v_writelane')) or '_dpp' in op or '_sdwa' in op:
                    self.r = self.r + R[0]
        elif op.startswith('ds_'):
            self.kind = 'ds'
            if op.startswith(('ds_read', 'ds_bpermute', 'ds_permute', 'ds_swizzle')):
                self.w = R[0]; self.r = flat(R[1:])
            else:
                self.r = flat(R)
        elif op.startswith(('buffer_', 'global_')):
            self.kind = 'vmem'
            self.lds = ' lds' in (' ' + self.mods)
            if 'load' in op and not self.lds:
                self.w = R[0]; self.r = flat(R[1:])
            else:
                self.r = flat(R)
            if self.lds:
                self.r = self.r + [('s', 'm0')]
            self.wide_store = ('store' in op) and op.endswith(('x3', 'x4'))
            self.data = (R[0] if op.startswith('buffer_') else R[1]) if 'store' in op else []
        elif op.startswith('s_'):
            self.kind = 'salu'
            if op.startswith(('s_cmp', 's_cbranch', 's_branch', 's_waitcnt', 's_barrier', 's_nop', 's_sleep', 's_endpgm', 's_setprio', 's_bitcmp', 's_set_gpr_idx_off', 's_setpc')):
                self.r = flat(R)
            elif op.startswith(('s_set_gpr_idx_on', 's_set_gpr_idx_idx')):
                self.r = flat(R); self.w = [('s', 'm0')]
            else:
                self.w = R[0] if R else []; self.r = flat(R[1:])
                if 'saveexec' in op:
                    self.w = self.w + [('s', 'exec')]
        self.is_trans = op.startswith(TRANS)
        self.is_dpp = '_dpp' in op
        self.is_perm = op.startswith('v_permlane')
        self.is_rl = op.startswith(('v_readlane', 'v_readfirstlane'))
        self.is_dot = op.startswith('v_dot')
        self.is_sel = ('_sdwa' in op) or ('op_sel' in self.mods and not op.startswith('v_pk'))
    def states(self):
        if self.op == 's_nop':
            return int(self.ops[0], 0) + 1
        return 1

def ov(a, b):
    return bool(set(a) & set(b))

def need(p, c):
    n = 0
    vw = [x for x in p.w if x[0] in 'va']
    sw = [x for x in p.w if x[0] == 's']
    if p.kind == 'valu':
        if c.kind == 'mfma' and ov(vw, c.r): n = max(n, 3 if p.is_dot else 2)
        if c.kind == 'valu':
            if (c.is_dpp or c.is_perm) and ov(vw, c.r): n = max(n, 2)
            if c.is_rl and ov(vw, c.r): n = max(n, 1)
            if p.is_trans and ov(vw, c.r): n = max(n, 1)
            if p.is_sel and ov(vw, c.r + c.w): n = max(n, 1)
            if ov(sw, c.r): n = max(n, 4 if (c.is_rl or c.op.startswith('v_writelane')) else 2)
            if p.is_dot and ov(vw, c.r + c.w):
                same = c.op == p.op
                if same:
                    ab = regs_of(c.ops[1]) + regs_of(c.ops[2])
                    if ov(vw, ab): n = max(n, 3)
                else:
                    n = max(n, 3)
        if p.is_dot and c.kind in ('vmem', 'ds') and ov(vw, c.r): n = max(n, 3)
        if p.is_trans and c.kind in ('vmem', 'ds') and ov(vw, c.r): n = max(n, 1)
        if c.kind == 'vmem' and ov(sw, c.r): n = max(n, 5)
        if c.kind == 'salu' and ov(sw, c.r): n = max(n, 1)
        if c.kind == 'salu' and c.op.startswith('s_cbranch_vcc') and ('s', 'vcc') in sw: n = max(n, 1)
    if p.kind == 'mfma':
        P = p.passes
        big = {4: 8, 8: 12}[P]
        if c.kind == 'mfma':
            if ov(p.w, c.mf_a + c.mf_b): n = max(n, big)
            if ov(p.w, c.mf_c):
                if not (p.w == c.mf_c and c.passes == P): n = max(n, big - 2)
            elif ov(p.w, c.w): n = max(n, big - 2)
        elif c.kind in ('valu', 'vmem', 'ds'):
            if ov(p.w, c.r + c.w): n = max(n, big)
            if c.kind == 'valu' and ov(p.mf_c, c.w): n = max(n, {4: 3, 8: 7}[P])
    if p.kind == 'salu':
        if ('s', 'm0') in p.w and c.kind == 'vmem' and getattr(c, 'lds', False): n = max(n, 1)
        if p.op.startswith('s_set_gpr_idx') and c.kind == 'valu': n = max(n, 1)
    if p.kind == 'vmem' and getattr(p, 'wide_store', False):
        if ov(p.data, c.w): n = max(n, 2 if c.kind == 'valu' else 1)
    return n

class Asm:
    def __init__(self):
        self.lines = []
        self.vm = []
        self.nops_added = 0
        self.uid = 0
        self.sprinkle = None
        self._cnt = 0
    def raw(self, s):
        self.lines.append(s)
    def label(self, name):
        self.lines.append(name + ':')
    def comment(self, s):
        self.lines.append('    ; ' + s)
    def newlabel(self, base='L'):
        self.uid += 1
        return f'{base}_{self.uid}'
    def __call__(self, text, tag=None):
        for t in text.split('\n'):
            t = t.strip()
            if not t:
                continue
            ins = Ins(t)
            dist = 0; pad = 0
            for prev in reversed(self.lines):
                if not isinstance(prev, Ins):
                    continue
                nd = need(prev, ins)
                if nd > dist:
                    pad = max(pad, nd - dist)
                dist += prev.states()
                if dist >= 14:
                    break
            if pad:
                self.lines.append(Ins(f's_nop {pad - 1}'))
                self.nops_added += pad
            self.lines.append(ins)
            if ins.kind == 'vmem' and not ins.op.startswith(('buffer_wbl2', 'buffer_inv')):
                self.vm.append(tag)
            if self.sprinkle and self.sprinkle[0]:
                self._cnt += 1
                if self._cnt >= self.sprinkle[1]:
                    self._cnt = 0
                    sp = self.sprinkle; self.sprinkle = None
                    for x in sp[0].pop(0): sp[2](x)
                    self.sprinkle = sp
    def vm_count(self, tag):
        idx = [i for i, t in enumerate(self.vm) if t == tag]
        if not idx:
            return None
        return len(self.vm) - 1 - idx[-1]
    def wait_vm(self, tag, extra=''):
        n = self.vm_count(tag)
        assert n is not None, f'no outstanding op tagged {tag}'
        assert n <= 63, (tag, n)
        self(f's_waitcnt vmcnt({n}) {extra}'.strip())
        self.vm = self.vm[len(self.vm) - n:] if n else []
    def wait_vm0(self, extra=''):
        self(f's_waitcnt vmcnt(0) {extra}'.strip())
        self.vm = []
    def text(self):
        out = []
        for l in self.lines:
            out.append(('    ' + l.text) if isinstance(l, Ins) else l)
        return '\n'.join(out) + '\n'

class Pool:
    def __init__(self, lo, hi):
        self.free = list(range(lo, hi))
        self.hw = lo
    def alloc(self, n=1, align=1):
        fr = self.free
        s = set(fr)
        for a in fr:
            if a % align == 0 and all((a + k) in s for k in range(n)):
                for k in range(n):
                    fr.remove(a + k)
                self.hw = max(self.hw, a + n)
                return a
        raise RuntimeError(f'out of registers for {n}')
    def take(self, a, n=1):
        for k in range(n):
            assert (a + k) in self.free, f'v{a+k} not free'
            self.free.remove(a + k)
        return a
    def release(self, a, n=1):
        for k in range(n):
            assert (a + k) not in self.free, a + k
            self.free.append(a + k)
        self.free.sort()

def vr(a, n=1, k='v'):
    return f'{k}{a}' if n == 1 else f'{k}[{a}:{a + n - 1}]'
def ar(a, n=1):
    return vr(a, n, 'a')
def sr(a, n=1):
    return vr(a, n, 's')
```

```python
import sys, struct
from asmlib import *

NAME = "interleave_layers__sliding_local_dilated__moe_arch_mod__prompt"
STOP = None
STAMPS = False
FORCE_REMOTE = False
OPT = set(sys.argv[2:])
for a in sys.argv[2:]:
    if a.startswith('stop='): STOP = a[5:]
    if a == 'stamps': STAMPS = True
    if a == 'remote': FORCE_REMOTE = True

def f2u(x): return struct.unpack('<I', struct.pack('<f', x))[0]
MB = 1 << 20
WS_O = 0
WS_X1 = 2 * MB
WS_SENT = 4 * MB
WS_KEYS = WS_SENT + 16384
WS_HS = WS_SENT + 32768
WS_X2R = WS_SENT
WS_CAND = WS_SENT + 64 * 1024
WS_YP = WS_SENT + 576 * 1024
assert WS_YP + 2 * 86 * 4096 <= WS_SENT + 1280 * 1024
WS_ST = WS_SENT + 1280 * 1024
WS_HALO = 6 * MB
WS_ST0 = WS_HALO + 256 * 1024 + 128
WS_FL = WS_HALO + 320 * 1024
WS_X1F = WS_HALO + 352 * 1024
WS_HELLO = WS_HALO + 384 * 1024
WS_EPOCH = WS_HELLO + 8 * 4096
WS_FT = 10 * MB
WS_STAMP = 8 * MB
WS_SIZE = 16 * MB
L_A = 0
L_HA = 65536
L_W = L_HA + 8 * 1152
SLOT = {1: 0, 0: 24576, 2: 49152}
L_WO = L_W + 12288
def wo_off(ks): return 61440 if ks == 15 else ((ks - 12) * 4096 if ks >= 12 else (12288 + (ks - 6) * 4096 if ks >= 6 else 36864 + ks * 4096))
L_W15 = L_A
L_FT = L_A + 12288
L_WD = L_A + 24576
L_RED = L_W
L_ROW = L_W + 4096
L_XS = L_W + 8192
L_TAB = L_W + 3 * 24576 + 4096
L_CS = L_TAB + 640
L_H = L_CS + 2048
L_X2S = L_H + 64
L_KEY = L_X2S + 128
LDS_SIZE = 160 * 1024
assert L_KEY + 64 <= LDS_SIZE
SRD_X, SRD_W, SRD_WS, SRD_OUT, SRD_U, SRD_T = 4, 8, 12, 16, 20, 24
P = 28
sW, sSET, sI, sHG, sRB, sP, sJ0, sFIRST, sLOCAL, sLAYER = range(50, 60)
sT0, sT1, sT2, sT3, sT4, sT5 = range(60, 66)
sM0, sM1 = 66, 68
sRET = 70
sSTAMP = 72
sGUARD = 75
sTAG, sTAGB = 76, 77
sFS, sHASF, sK0, sK1, sTOK, sRHO, sKEY, sST = range(78, 86)
sAB, sAM, sWM, sOM = range(86, 90)
sSTB = 92
sU0, sU1, sU2, sU3 = range(94, 98)
stamp_n = [0]

A = Asm()
VP = Pool(1, 72)
V = Pool(72, 256)
vST = VP.alloc()
oP = V.take(72, 8); wra = V.take(80, 4)
def srd(n): return sr(n, 4)
DP = 'row_mask:0xf bank_mask:0xf'

def stamp():
    if not STAMPS: return
    n = stamp_n[0]; stamp_n[0] += 1
    assert n < 32
    A(f'{"s_memtime" if "cyc" in sys.argv else "s_memrealtime"} {sr(sSTAMP,2)}')
    A(f's_lshl_b32 s{sST}, s{sLAYER}, 5')
    A(f's_add_u32 s{sST}, s{sST}, {n}')
    A('s_waitcnt lgkmcnt(0)')
    A(f's_mov_b32 m0, s{sST}')
    A('s_nop 0')
    A(f'v_writelane_b32 v{vST}, s{sSTAMP}, m0')

def mk_srd(d, ptr, size):
    A(f's_mov_b32 s{d}, s{ptr}')
    A(f's_and_b32 s{d+1}, s{ptr+1}, 0xffff')
    A(f's_mov_b32 s{d+2}, {size}')
    A(f's_mov_b32 s{d+3}, 0x20000')

def bf_round(dst, src):
    A(f'v_cvt_pk_bf16_f32 v{dst}, v{src}, v{src}')
    A(f'v_lshlrev_b32 v{dst}, 16, v{dst}')

def ln_params(s1, s2, mu, var, m, rs, t):
    A(f'v_mul_f32 v{mu}, {hex(f2u(1/512))}, v{s1}')
    A(f'v_mul_f32 v{var}, {hex(f2u(1/512))}, v{s2}')
    A(f'v_fma_f32 v{var}, -v{mu}, v{mu}, v{var}')
    A(f'v_max_f32 v{var}, 0, v{var}')
    round_params(mu, var, m, rs, t)

def round_params(mu, var, m, rs, t):
    A(f'v_cvt_pk_bf16_f32 v{t}, v{mu}, v{var}')
    A(f'v_lshlrev_b32 v{m}, 16, v{t}')
    A(f'v_and_b32 v{t}, 0xffff0000, v{t}')
    A(f'v_add_f32 v{t}, {hex(f2u(1e-5))}, v{t}')
    bf_round(t, t)
    A(f'v_sqrt_f32 v{t}, v{t}')
    bf_round(t, t)
    A(f'v_rcp_f32 v{rs}, v{t}')

def finish():
    if STAMPS:
        stamp()
        A(f's_lshl_b32 s{sT0}, s2, 10')
        A(f's_add_u32 s{sT0}, s{sT0}, {WS_STAMP}')
        A(f'v_lshlrev_b32 v{t0}, 2, v0')
        A(f'buffer_store_dword v{vST}, v{t0}, {srd(SRD_WS)}, s{sT0} offen')
    A('s_endpgm')

def mf(d, a, b, c, k32=True):
    return f'v_mfma_f32_16x16x{32 if k32 else 16}_bf16 {d}, {a}, {b}, {c}'
def emit(x):
    if callable(x): x()
    elif isinstance(x, tuple): A(x[0], tag=x[1])
    else: A(x)

A.raw(f'{NAME}_kernel:')
A('s_cmp_ge_u32 s2, 256')
A('s_cbranch_scc1 L_end')
if STAMPS: A(f'{"s_memtime" if "cyc" in sys.argv else "s_memrealtime"} s[90:91]')
A(f's_load_dwordx16 s[{P}:{P+15}], s[0:1], 0')
A(f's_load_dwordx4 s[{P+16}:{P+19}], s[0:1], 64')
A(f's_load_dwordx2 s[{P+20}:{P+21}], s[0:1], 80')
P_X, P_W, P_WO, P_BX, P_WR, P_WG, P_WU, P_WD, P_OUT, P_DBG, P_WS = [P + 2 * i for i in range(11)]
vL = VP.alloc(); vQ = VP.alloc(); vG = VP.alloc(); vL16 = VP.alloc()
t0 = VP.alloc(); t1 = VP.alloc(); t2 = VP.alloc(); t3 = VP.alloc()
vDum = VP.alloc()
A(f'v_lshrrev_b32 v{t0}, 6, v0')
A(f'v_and_b32 v{vL}, 63, v0')
A(f'v_readfirstlane_b32 s{sW}, v{t0}')
A(f's_lshr_b32 s{sI}, s2, 3')
A(f's_getpc_b64 {sr(sT0,2)}')
A.label('L_pc')
A(f's_lshl_b32 s{sT2}, s{sI}, 2')
A(f's_add_u32 s{sT2}, s{sT2}, s{sW}')
A(f's_lshl_b32 s{sT2}, s{sT2}, 8')
A(f'v_lshl_add_u32 v{t0}, v{vL}, 7, s{sT2}')
A(f'v_min_u32 v{t0}, L_end-L_pc, v{t0}')
A('s_mov_b64 exec, 3')
A(f'global_load_dword v{vDum}, v{t0}, {sr(sT0,2)}', tag='code')
A('s_mov_b64 exec, -1')
A(f'v_and_b32 v{vQ}, 15, v0')
A(f'v_lshrrev_b32 v{vG}, 4, v{vL}')
A(f'v_lshlrev_b32 v{vL16}, 4, v{vL}')
A(f's_mov_b32 s{sLAYER}, 0')
if STAMPS: A(f'v_mov_b32 v{vST}, 0')
A(f's_and_b32 s{sSET}, s2, 7')
A(f's_and_b32 s{sHG}, s{sI}, 7')
A(f's_lshr_b32 s{sT0}, s{sI}, 3')
A(f's_lshl_b32 s{sRB}, s{sSET}, 2')
A(f's_add_u32 s{sRB}, s{sRB}, s{sT0}')
A(f's_lshr_b32 s{sP}, s{sRB}, 4')
A(f's_and_b32 s{sJ0}, s{sRB}, 15')
A(f's_cmp_eq_u32 s{sJ0}, 0')
A(f's_cselect_b32 s{sFIRST}, 1, 0')
A(f's_lshl_b32 s{sJ0}, s{sJ0}, 6')
vXe = VP.alloc(); vXo = VP.alloc()
vR8 = V.alloc()
A(f'v_lshrrev_b32 v{vR8}, 3, v{vL}')
A(f'v_and_b32 v{t1}, 7, v{vL}')
A(f'v_xor_b32 v{t2}, v{t1}, v{vG}')
A(f'v_lshlrev_b32 v{t2}, 4, v{t2}')
A(f'v_lshl_add_u32 v{vXe}, v{vR8}, 11, v{t2}')
A(f'v_xor_b32 v{vXo}, 64, v{vXe}')
A(f'v_add_u32 v{vXo}, {8 * 2048}, v{vXo}')
vWd = V.alloc(); vWo = V.alloc(); vSt = V.alloc()
A(f'v_and_b32 v{t0}, 2, v{vR8}')
A(f's_and_b32 s{sT0}, s{sW}, 1')
A(f's_lshl_b32 s{sT0}, s{sT0}, 2')
A(f'v_or_b32 v{t0}, s{sT0}, v{t0}')
A(f'v_xor_b32 v{t0}, v{t0}, v{t1}')
A(f's_lshl_b32 s{sT0}, s{sHG}, 7')
A(f'v_lshl_add_u32 v{t0}, v{t0}, 4, s{sT0}')
A(f's_lshl_b32 s{sT0}, s{sW}, 3')
A(f'v_add_u32 v{t1}, s{sT0}, v{vR8}')
A(f'v_mul_u32_u24 v{vWd}, 3072, v{t1}')
A(f'v_add_u32 v{vWd}, v{vWd}, v{t0}')
A(f'v_lshl_add_u32 v{vWo}, v{t1}, 10, v{t0}')
V.release(vR8)
A(f'v_lshrrev_b32 v{t0}, 5, v{vL}')
A(f'v_and_b32 v{t1}, 31, v{vL}')
A(f'v_lshlrev_b32 v{t1}, 4, v{t1}')
A(f'v_lshl_add_u32 v{vSt}, v{t0}, 11, v{t1}')
A(f's_lshl_b32 s{sT4}, s{sJ0}, 11')
A(f's_lshl_b32 s{sT1}, s{sP}, 10')
A(f's_add_u32 s{sT4}, s{sT4}, s{sT1}')
A(f's_lshl_b32 s{sAB}, s{sW}, 15')
A(f's_add_u32 s{sAB}, s{sAB}, s{sT4}')
A(f's_lshl_b32 s{sAM}, s{sW}, 11')
A(f's_mul_i32 s{sWM}, s{sW}, 3072')
A(f's_add_u32 s{sWM}, s{sWM}, {L_W}')
A(f's_lshl_b32 s{sT2}, s{sHG}, 2')
A(f's_add_u32 s{sT2}, s{sT2}, s{sW}')
A(f's_lshl_b32 s{sT2}, s{sT2}, 12')
A(f's_add_u32 s{sT2}, s{sT2}, s{sT4}')
A(f's_cmp_eq_u32 s{sFIRST}, 1')
A(f's_cselect_b32 s{sT5}, 0, 32768')
A(f's_sub_u32 s{sT5}, s{sT4}, s{sT5}')
A(f's_lshl_b32 s{sT3}, s{sW}, 8')
A(f's_add_u32 s{sT5}, s{sT5}, s{sT3}')
A(f's_mul_i32 s{sT4}, s{sW}, 2304')
A('s_waitcnt lgkmcnt(0)')
if STAMPS:
    A(f'v_writelane_b32 v{vST}, s90, 0'); stamp_n[0] = 1
stamp()
A(f's_add_u32 s{sT0}, s{P_WS}, {WS_EPOCH}')
A(f's_addc_u32 s{sT1}, s{P_WS+1}, 0')
A(f's_load_dword s{sTAG}, {sr(sT0,2)}, 0')
mk_srd(SRD_X, P_X, 2 * MB)
srow = V.alloc(8, 2)
A(f'buffer_load_dwordx4 {vr(srow,4)}, v{vSt}, {srd(SRD_X)}, s{sT2} offen', tag='srow')
A(f'buffer_load_dwordx4 {vr(srow+4,4)}, v{vSt}, {srd(SRD_X)}, s{sT2} offen offset:512', tag='srow')
V.release(vSt)
mk_srd(SRD_W, P_W, 512 * 3072)
def stage_dma(s):
    H = []
    for ksl in range(2):
        ks = 2 * s + ksl
        H.append([f's_add_u32 m0, s{sAM}, {L_A + s * 8192 + ksl * 1024}',
                  f's_add_u32 s{sT3}, s{sAB}, {s * 128}',
                  (f'buffer_load_dwordx4 v{vXo if ksl else vXe}, {srd(SRD_X)}, s{sT3} offen lds', f'S{s}'),
                  (f's_sub_u32 m0, s{sWM}, {L_W - L_W15}' if ks == 15 else f's_add_u32 m0, s{sWM}, {SLOT[s % 3] + ksl * 12288}'),
                  f's_mov_b32 s{sT3}, {ks * 98304}'] +
                 [(f'buffer_load_dwordx4 v{vWd}, {srd(SRD_W)}, s{sT3} offen offset:{m * 1024} lds', f'S{s}') for m in range(3)])
    return H
for j in range(2):
    A(f's_add_u32 m0, s{sT4}, {L_HA + j * 1152}')
    if j: A(f's_add_u32 s{sT5}, s{sT5}, 128')
    A(f'buffer_load_dwordx4 v{vXo}, {srd(SRD_X)}, s{sT5} offen lds', tag='S0')
for h in stage_dma(0):
    for x in h: emit(x)
for x in stage_dma(1)[0]: emit(x)
tp = V.alloc(2, 2)
A(f's_lshl_b32 s{sT0}, s2, 2')
A(f's_add_u32 s{sT0}, s{sT0}, s{sW}')
A(f's_mul_i32 s{sT1}, s{sT0}, {12 * 128}')
A(f's_lshl_b32 s{sT0}, s{sT0}, 9')
A(f's_sub_u32 s{sT0}, s{sT0}, {12 * 128}')
A(f's_add_u32 s{sT2}, s{P_W}, s{sT1}')
A(f's_addc_u32 s{sT3}, s{P_W+1}, 0')
A(f's_ashr_i32 s{sT1}, s{sT0}, 31')
A(f's_add_u32 s{sT0}, s{P_WO}, s{sT0}')
A(f's_addc_u32 s{sT1}, s{P_WO+1}, s{sT1}')
A(f'v_mov_b32 v{tp}, s{sT2}')
A(f'v_mov_b32 v{tp+1}, s{sT3}')
A(f'v_mov_b32 v{t0}, s{sT0}')
A(f'v_mov_b32 v{t1}, s{sT1}')
A(f'v_cmp_lt_u32 vcc, 11, v{vL}')
A(f'v_cndmask_b32 v{tp}, v{tp}, v{t0}, vcc')
A(f'v_cndmask_b32 v{tp+1}, v{tp+1}, v{t1}, vcc')
A(f'v_lshlrev_b32 v{t0}, 7, v{vL}')
A(f'v_add_co_u32 v{tp}, vcc, v{tp}, v{t0}')
A(f'v_addc_co_u32 v{tp+1}, vcc, 0, v{tp+1}, vcc')
pages = [(P_WS, 0), (P_WS, 2 * MB), (P_WS, 4 * MB), (P_WS, 6 * MB), (P_WS, 10 * MB), (P_WS, 12 * MB), (P_OUT, 0)] + [(P_WR, 128 * j) for j in range(8)] + [ (P_WG, 0), (P_WU, 0), (P_WD, 0)]
for n, (p_, off) in enumerate(pages):
    if off:
        A(f's_add_u32 s{sT0}, s{p_}, {off}')
        A(f's_addc_u32 s{sT1}, s{p_+1}, 0')
        A(f'v_writelane_b32 v{tp}, s{sT0}, {16 + n}')
        A(f'v_writelane_b32 v{tp+1}, s{sT1}, {16 + n}')
    else:
        A(f'v_writelane_b32 v{tp}, s{p_}, {16 + n}')
        A(f'v_writelane_b32 v{tp+1}, s{p_+1}, {16 + n}')
if 'notouch' not in OPT:
    A(f's_mov_b32 exec_hi, {hex((1 << (len(pages) - 16)) - 1)}')
    A(f'global_load_dword v{vDum}, {vr(tp,2)}, off', tag='touch')
    A('s_mov_b64 exec, -1')
if 'nor3' not in OPT:
    A(f's_lshl_b32 s{sT0}, s{sI}, 2')
    A(f's_add_u32 s{sT0}, s{sT0}, s{sW}')
    A(f's_sub_u32 s{sT1}, 384, s{P_W}')
    A(f's_and_b32 s{sT1}, s{sT1}, 0x380')
    A(f'v_lshlrev_b32 v{t0}, 17, v{vL}')
    A(f's_lshl_b32 s{sT0}, s{sT0}, 10')
    A(f's_add_u32 s{sT1}, s{sT1}, s{sT0}')
    A('s_mov_b64 exec, 0xfff')
    A(f'buffer_load_dword v{vDum}, v{t0}, {srd(SRD_W)}, s{sT1} offen', tag='touch')
    A(f's_sub_u32 s{sT1}, 384, s{P_WO}')
    A(f's_and_b32 s{sT1}, s{sT1}, 0x380')
    A(f's_add_u32 s{sT1}, s{sT1}, s{sT0}')
    A(f'v_add_u32 v{t0}, s{sT1}, v{t0}')
    A('s_mov_b64 exec, 0xf')
    A(f'global_load_dword v{vDum}, v{t0}, {sr(P_WO,2)}', tag='touch')
    A('s_mov_b64 exec, -1')
V.release(tp, 2)
mk_srd(SRD_WS, P_WS, WS_SIZE)
mk_srd(SRD_OUT, P_OUT, 2 * MB)
A(f's_cmp_lt_u32 s{sW}, 2')
A(f's_cselect_b64 {sr(SRD_T,2)}, {sr(P_WG,2)}, {sr(P_WU,2)}')
A(f's_and_b32 s{SRD_T+1}, s{SRD_T+1}, 0xffff')
A(f's_mov_b32 s{SRD_T+2}, {512 * 2752}')
A(f's_mov_b32 s{SRD_T+3}, 0x20000')
mk_srd(SRD_U, P_WD, 1376 * 1024)
A(f's_mul_i32 s{sFS}, s{sSET}, 11')
A(f's_add_u32 s{sFS}, s{sFS}, s{sI}')
A(f's_cmp_lt_u32 s{sI}, 11')
A(f's_cselect_b32 s{sHASF}, 1, 0')
A(f's_cmp_lt_u32 s{sFS}, 86')
A(f's_cselect_b32 s{sHASF}, s{sHASF}, 0')
vFp = V.alloc(3); vFd = V.alloc(); vFr = VP.alloc(); vFs = VP.alloc()
A(f's_lshl_b32 s{sT0}, s{sI}, 1')
A(f's_and_b32 s{sT1}, s{sW}, 1')
A(f's_add_u32 s{sT0}, s{sT0}, s{sT1}')
A(f's_mul_i32 s{sT0}, s{sT0}, {8 * 2752}')
A(f's_mul_i32 s{sT1}, s{sSET}, 352')
A(f's_add_u32 s{sT0}, s{sT0}, s{sT1}')
for n in range(3):
    A(f'v_add_u32 v{t0}, {64 * n}, v{vL}')
    A(f'v_mul_u32_u24 v{t1}, 171, v{t0}')
    A(f'v_lshrrev_b32 v{t1}, 12, v{t1}')
    A(f'v_mul_u32_u24 v{t1}, {2752 - 384}, v{t1}')
    A(f'v_lshl_add_u32 v{t0}, v{t0}, 4, s{sT0}')
    A(f'v_add_u32 v{vFp+n}, v{t0}, v{t1}')
A(f'v_bfe_u32 v{t1}, v{vL}, 2, 2')
A(f'v_mul_u32_u24 v{vFr}, 384, v{t1}')
A(f'v_and_b32 v{t0}, 3, v{vL}')
A(f'v_lshl_add_u32 v{vFr}, v{t0}, 3, v{vFr}')
A(f'v_lshl_add_u32 v{vFr}, v{vG}, 5, v{vFr}')
A(f's_sub_u32 s{sT0}, s{sWM}, {L_W - L_FT}')
A(f'v_add_u32 v{vFr}, s{sT0}, v{vFr}')
A(f'v_lshlrev_b32 v{vFs}, 4, v{t0}')
A(f'v_lshl_add_u32 v{vFs}, v{t1}, 13, v{vFs}')
A(f'v_lshl_add_u32 v{vFs}, v{vG}, 15, v{vFs}')
A(f's_mul_i32 s{sT0}, s{sSET}, {12 * 32768}')
A(f's_and_b32 s{sT1}, s{sI}, 15')
A(f's_lshl_b32 s{sT1}, s{sT1}, 9')
A(f's_add_u32 s{sT0}, s{sT0}, s{sT1}')
A(f's_lshr_b32 s{sT1}, s{sI}, 4')
A(f's_lshl_b32 s{sT1}, s{sT1}, 7')
A(f's_add_u32 s{sT0}, s{sT0}, s{sT1}')
A(f's_and_b32 s{sT1}, s{sW}, 1')
A(f's_lshl_b32 s{sT1}, s{sT1}, 8')
A(f's_add_u32 s{sT0}, s{sT0}, s{sT1}')
A(f's_lshr_b32 s{sT1}, s{sW}, 1')
A(f's_lshl_b32 s{sT1}, s{sT1}, 6')
A(f's_add_u32 s{sT0}, s{sT0}, s{sT1}')
A(f's_add_u32 s{sT0}, s{sT0}, {WS_FT}')
A(f'v_add_u32 v{vFs}, s{sT0}, v{vFs}')
A(f's_lshl_b32 s{sT1}, s{sFS}, 14')
A(f's_cmp_eq_u32 s{sHASF}, 1')
A(f's_cselect_b32 s{sT1}, s{sT1}, 0x40000000')
A(f's_lshl_b32 s{sT0}, s{sW}, 12')
A(f's_add_u32 s{sT1}, s{sT1}, s{sT0}')
A(f'v_add_u32 v{vFd}, s{sT1}, v{vL16}')
aFG, aFD = 192, 224
vOnes = VP.alloc(2, 2)
A(f'v_mov_b32 v{vOnes}, 0x3f803f80')
A(f'v_mov_b32 v{vOnes+1}, 0x3f803f80')
A(f'v_lshrrev_b32 v{t0}, 5, v0')
A(f'v_mul_u32_u24 v{t0}, 1152, v{t0}')
A(f'v_and_b32 v{t1}, 31, v0')
A(f'v_lshl_add_u32 v{t0}, v{t1}, 2, v{t0}')
A(f'v_add_u32 v{t0}, {L_HA + 1024}, v{t0}')
A(f'ds_write_b32 v{t0}, v{vOnes}')
vQ4 = VP.alloc(); vG16 = VP.alloc(); vGm = VP.alloc()
A(f'v_lshlrev_b32 v{vQ4}, 2, v{vQ}')
A(f'v_add_u32 v{vQ4}, {L_TAB}, v{vQ4}')
A(f'v_lshlrev_b32 v{vG16}, 4, v{vG}')
A(f'v_add_u32 v{vG16}, {L_TAB}, v{vG16}')
A(f'v_mov_b32 v{t0}, 0')
A(f'ds_write2_b32 v{vQ4}, v{t0}, v{t0} offset0:0 offset1:80')
A(f'v_and_b32 v{t0}, 1, v{vG}')
A(f'v_lshlrev_b32 v{vGm}, 5, v{t0}')
A(f'v_lshrrev_b32 v{t1}, 1, v{vG}')
A(f'v_lshl_add_u32 v{vGm}, v{t1}, 4, v{vGm}')
vOst = VP.alloc()
A(f'v_lshlrev_b32 v{vOst}, 14, v{t0}')
A(f'v_lshl_add_u32 v{vOst}, v{t1}, 8, v{vOst}')
A(f'v_lshl_add_u32 v{vOst}, v{vQ}, 4, v{vOst}')
A(f's_lshl_b32 s{sT0}, s{sRB}, 16')
A(f's_lshl_b32 s{sT1}, s{sHG}, 11')
A(f's_add_u32 s{sT0}, s{sT0}, s{sT1}')
A(f's_lshl_b32 s{sT1}, s{sW}, 9')
A(f's_add_u32 s{sT0}, s{sT0}, s{sT1}')
A(f'v_add_u32 v{vOst}, s{sT0}, v{vOst}')
vA = VP.alloc(2); vH = VP.alloc(2)
A(f'v_lshrrev_b32 v{t0}, 1, v{vQ}')
A(f'v_xor_b32 v{t0}, v{vG}, v{t0}')
A(f'v_lshlrev_b32 v{t0}, 4, v{t0}')
A(f'v_lshl_add_u32 v{vA}, v{vQ}, 7, v{t0}')
A(f'v_add_u32 v{t1}, {L_HA + 1024}, v{t0}')
A(f'v_add_u32 v{t2}, {L_HA - 1024}, v{vA}')
A(f'v_cmp_lt_u32 vcc, 7, v{vQ}')
A(f'v_cndmask_b32 v{vH}, v{t1}, v{t2}, vcc')
A(f'v_xor_b32 v{vA+1}, 64, v{vA}')
A(f'v_xor_b32 v{vH+1}, 64, v{vH}')
vWr = V.alloc(); vBo = VP.alloc(4)
A(f'v_bfe_u32 v{t0}, v{vL}, 2, 2')
A(f'v_and_b32 v{t2}, 3, v{vL}')
A(f'v_lshlrev_b32 v{t2}, 3, v{t2}')
A(f'v_lshl_add_u32 v{t2}, v{t0}, 7, v{t2}')
A(f'v_lshrrev_b32 v{t0}, 1, v{t0}')
A(f'v_and_b32 v{t1}, 1, v{vG}')
A(f'v_lshl_or_b32 v{t0}, v{t1}, 1, v{t0}')
A(f'v_lshl_add_u32 v{t2}, v{t0}, 5, v{t2}')
A(f'v_lshl_add_u32 v{vBo}, v{vG}, 10, v{t2}')
A(f'v_add_u32 v{vBo}, {L_WO}, v{vBo}')
assert L_WO % 128 == 0 and L_W % 128 == 0
for t in range(1, 4): A(f'v_xor_b32 v{vBo+t}, {t << 5}, v{vBo}')
A(f's_lshl_b32 s{sT0}, s{sW}, 5')
A(f'v_xor_b32 v{t2}, s{sT0}, v{t2}')
A(f'v_mul_u32_u24 v{vWr}, 3072, v{vG}')
vWr15 = V.alloc()
A(f'v_add_u32 v{vWr15}, v{vWr}, v{t2}')
A(f'v_add_u32 v{vWr}, {L_W}, v{vWr15}')
assert L_W15 == 0
A(f's_lshl_b32 s{sOM}, s{sW}, 10')
A(f's_add_u32 s{sOM}, s{sOM}, {L_WO}')
vBP = VP.alloc(4, 2); vBC = VP.alloc(4, 2); vBP0 = VP.alloc(4, 2); vMP = VP.alloc(2)
A(f'v_lshlrev_b32 v{t0}, 2, v{vG}')
A(f'v_sub_u32 v{t0}, v{vQ}, v{t0}')
A(f'v_mov_b32 v{t2}, 0xff800000')
A(f's_cmp_eq_u32 s{sFIRST}, 1')
A(f's_cselect_b64 {sr(sM0,2)}, 0, -1')
for r in range(4):
    A(f'v_add_u32 v{t1}, {-r}, v{t0}')
    A(f'v_cmp_lt_u32 vcc, 7, v{t1}')
    A(f'v_cndmask_b32 v{vBC+r}, 0, v{t2}, vcc')
    A(f'v_cmp_lt_i32 vcc, -9, v{t1}')
    A(f'v_cndmask_b32 v{vBP+r}, 0, v{t2}, vcc')
    A(f'v_cndmask_b32 v{vBP0+r}, v{t2}, v{vBP+r}, {sr(sM0,2)}')
    A(f'v_mov_b32 v{t3}, {hex(0xffff0000 if r & 1 else 0xffff)}')
    if r & 1:
        A(f'v_cndmask_b32 v{t3}, v{t3}, 0, vcc')
        A(f'v_or_b32 v{vMP + (r >> 1)}, v{vMP + (r >> 1)}, v{t3}')
    else:
        A(f'v_cndmask_b32 v{vMP + (r >> 1)}, v{t3}, 0, vcc')
A(f's_mov_b32 s{sM0}, 0xaaaaaaaa')
A(f's_mov_b32 s{sM0+1}, 0xaaaaaaaa')
A(f's_mov_b32 s{sM1}, 0xcccccccc')
A(f's_mov_b32 s{sM1+1}, 0xcccccccc')
vS0 = V.alloc(); vS0w = V.alloc(); vPf = V.alloc(); vS4 = V.alloc(4, 2)
A(f's_lshl_b32 s{sT0}, s{sRB}, 10')
A(f's_add_u32 s{sT0}, s{sT0}, {WS_ST0 - 128}')
A(f'v_lshl_add_u32 v{vS0}, v0, 4, s{sT0}')
A(f's_lshl_b32 s{sT0}, s{sSET}, 12')
A(f's_add_u32 s{sT0}, s{sT0}, {WS_ST0}')
A(f'v_and_b32 v{t0}, 31, v{vL}')
A(f'v_lshl_add_u32 v{t0}, v{t0}, 7, s{sT0}')
A(f'v_cmp_le_u32 vcc, 128, v0')
A(f'v_cndmask_b32 v{vS0}, v{vS0}, v{t0}, vcc')
A(f'v_lshlrev_b32 v{vS0w}, 2, v0')
A(f'v_add_u32 v{vS0w}, {L_TAB + 32}, v{vS0w}')
vPf2 = V.alloc()
A(f's_mul_i32 s{sT0}, s2, 5120')
A(f's_add_u32 s{sT0}, s{sT0}, {WS_SENT}')
A(f'v_lshl_add_u32 v{vPf}, v0, 4, s{sT0}')
A(f's_lshl_b32 s{sT1}, s{sW}, 8')
A(f's_add_u32 s{sT0}, s{sT0}, s{sT1}')
A(f's_add_u32 s{sT0}, s{sT0}, 4096')
A(f'v_lshl_add_u32 v{t0}, v{vQ}, 4, s{sT0}')
A(f's_lshl_b32 s{sSTB}, s{sRB}, 2')
A(f's_add_u32 s{sSTB}, s{sSTB}, s{sW}')
A(f'v_mov_b32 v{t1}, 0x40000000')
A(f'v_cmp_gt_u32 vcc, 16, v{vL}')
A(f'v_cndmask_b32 v{vPf2}, v{t1}, v{t0}, vcc')
vTo = V.alloc(); vTs = V.alloc()
A(f's_lshl_b32 s{sT0}, s{sI}, 2')
A(f's_add_u32 s{sT0}, s{sT0}, s{sW}')
A(f's_lshl_b32 s{sT0}, s{sT0}, 11')
A(f's_lshl_b32 s{sT1}, s{sSET}, 18')
A(f's_add_u32 s{sT0}, s{sT0}, s{sT1}')
A(f'v_lshl_add_u32 v{t0}, v{vL}, 7, s{sT0}')
A(f'v_cndmask_b32 v{vTo}, v{t1}, v{t0}, vcc')
A(f'v_mov_b32 v{vTs}, v{vTo}')
A(f's_lshl_b32 s{sT0}, s{sSTB}, 11')
A(f's_lshl_b32 s{sT1}, s{sHG}, 8')
A(f's_add_u32 s{sT0}, s{sT0}, s{sT1}')
for n, off in enumerate((0, 128, 1 << 18, (1 << 18) + 128)):
    A(f's_add_u32 s{sT1}, s{sT0}, {WS_ST + off}')
    A(f'v_writelane_b32 v{vTs}, s{sT1}, {16 + n}')
A(f's_lshl_b32 s{sT0}, s{sRB}, 9')
for n, off in enumerate((0, 128, 1 << 14, (1 << 14) + 128)):
    A(f's_add_u32 s{sT1}, s{sT0}, {WS_FL + off}')
    A(f'v_writelane_b32 v{vTs}, s{sT1}, {20 + n}')
A(f's_lshl_b32 s{sT0}, s{sSTB}, 7')
A(f's_add_u32 s{sT0}, s{sT0}, {WS_X1F}')
A(f'v_writelane_b32 v{vTs}, s{sT0}, 24')
A(f's_lshl_b32 s{sT0}, s{sSET}, 12')
for n, off in enumerate((2048, 2048 + 128)):
    A(f's_add_u32 s{sT1}, s{sT0}, {WS_HELLO + off}')
    A(f'v_writelane_b32 v{vTs}, s{sT1}, {25 + n}')
for r in range(4): A(f'v_mov_b32 v{vS4+r}, -1')
s12 = V.alloc(4, 2); gr = V.alloc(4, 2)
A(f'v_mov_b32 v{s12}, 0')
A(f'v_mov_b32 v{s12+1}, 0')
A(f's_getreg_b32 s{sTAGB}, hwreg(HW_REG_XCC_ID)')
A(f's_and_b32 s{sTAGB}, s{sTAGB}, 15')
A(f's_lshl_b32 s{sT2}, s{sRB}, 3')
A(f's_add_u32 s{sT2}, s{sT2}, s{sHG}')
A(f's_lshl_b32 s{sT2}, s{sT2}, 2')
A(f's_add_u32 s{sT2}, s{sT2}, s{sW}')
A(f's_lshl_b32 s{sT2}, s{sT2}, 5')
A(f's_add_u32 s{sT2}, s{sT2}, {WS_ST0}')
A(f'v_lshrrev_b32 v{t1}, 1, v{vL}')
for x in stage_dma(1)[1]: emit(x)
A.wait_vm('srow', 'lgkmcnt(0)')
stamp()
H = stage_dma(2); g2 = []
for hh in H: g2 += [hh[:3], hh[3:6], hh[6:7], hh[7:8]]
if 'nos2' not in OPT: A.sprinkle = (g2, 5, emit)
for j in range(8):
    A(f'v_dot2c_f32_bf16 v{s12}, v{srow+j}, v{vOnes}')
    A(f'v_dot2c_f32_bf16 v{s12+1}, v{srow+j}, v{srow+j}')
A(f's_mul_i32 s{sTAG}, s{sTAG}, 0x9e3779b1')
A(f's_add_u32 s{sTAG}, s{sTAG}, 0x7f4a7c15')
A(f's_mul_i32 s{sT0}, s{sTAG}, 0x85ebca6b')
for sh in (8, 4, 2, 1):
    for r in range(2): A(f'v_add_f32_dpp v{s12+r}, v{s12+r}, v{s12+r} row_ror:{sh} {DP}')
    if sh == 8: A(f's_brev_b32 s{sT0}, s{sT0}')
    if sh == 4: A(f's_and_b32 s{sT0}, s{sT0}, 0xfffffff0')
    if sh == 2: A(f's_or_b32 s{sTAGB}, s{sTAGB}, s{sT0}')
for r in range(2): A(f'v_mov_b32 v{s12+2+r}, v{s12+r}')
A(f'v_mov_b32 v{gr+2}, s{sTAG}')
for r in range(2): A(f'v_permlane16_swap_b32 v{s12+r}, v{s12+2+r}')
for r in range(2): A(f'v_add_f32 v{s12+r}, v{s12+r}, v{s12+2+r}')
ln_params(s12, s12 + 1, s12 + 2, s12 + 3, gr, gr + 1, t0)
A(f'v_xor_b32 v{gr}, 0x80000000, v{gr}')
A(f'v_mov_b32 v{gr+3}, s{sTAGB}')
A.sprinkle = None
A('s_mov_b32 exec_lo, 1')
A('s_mov_b32 exec_hi, 1')
A(f'buffer_store_dwordx4 {vr(gr,4)}, v{t1}, {srd(SRD_WS)}, s{sT2} offen sc1', tag='st0')
A('s_mov_b64 exec, -1')
V.release(srow, 8); V.release(s12, 4)

accQ = V.take(196, 20); accK = V.take(216, 20); accV = V.take(236, 20)
fr = [V.alloc(20, 2), V.alloc(20, 2)]
xP = VP.alloc(8, 2)
aux = VP.alloc(8, 2)
vSW = VP.alloc()
def aW(ks, m): return (ks * 3 + m) * 4
def x_reads(ks, b):
    u = ks & 1; kc = ks >> 1
    return [f'ds_read_b128 {vr(b, 4)}, v{vH+u} offset:{kc * 1152}'] + \
           [f'ds_read_b128 {vr(b + 4 + 4 * T, 4)}, v{vA+u} offset:{(kc * 8 + 2 * T) * 1024}' for T in range(4)]
def p1_reads(ks):
    so = SLOT[(ks >> 1) % 3] + (ks & 1) * 12288
    if ks == 15: so = 0
    W_ = [f'ds_read_b64_tr_b16 {ar(aW(ks, m) + 2 * h, 2)}, v{vWr15 if ks == 15 else vWr} offset:{so + m * 1024 + h * 512}' for m in range(3) for h in range(2)]
    X_ = x_reads(ks, fr[ks & 1])
    return W_[:2] + X_[:1] + W_[2:] + X_[1:]
def p1_mfmas(ks):
    b = fr[ks & 1]; L = []
    c = lambda x: '0' if ks == 0 else vr(x, 4)
    for T in range(5):
        X = vr(b + 4 * T, 4)
        L.append(mf(vr(accQ + 4 * T, 4), ar(aW(ks, 0), 4), X, c(accQ + 4 * T)))
        L.append(mf(vr(accK + 4 * T, 4), ar(aW(ks, 1), 4), X, c(accK + 4 * T)))
        L.append(mf(vr(accV + 4 * T, 4), X, ar(aW(ks, 2), 4), c(accV + 4 * T)))
    return L
def wo_dma(kss):
    L = []
    for ks in kss:
        L += [f's_add_u32 m0, s{sOM}, {wo_off(ks)}', f's_mov_b32 s{sT3}, {ks * 32768}',
              (f'buffer_load_dwordx4 v{vWo}, {srd(SRD_W)}, s{sT3} offen lds', 'wo')]
    return L
def hello():
    A('s_mov_b64 exec, 1')
    A(f'buffer_store_dwordx2 {vr(gr+2,2)}, v{vPf}, {srd(SRD_WS)}, s{sU2} offen sc1')
    A('s_mov_b64 exec, -1')
def srd_lines(d, ptr, size):
    return [f's_mov_b32 s{d}, s{ptr}', f's_and_b32 s{d+1}, s{ptr+1}, 0xffff', f's_mov_b32 s{d+2}, {size}', f's_mov_b32 s{d+3}, 0x20000']
s0g = V.alloc(4, 2)
extra = {ks: [] for ks in range(16)}
for g_ in g2: extra[0] += g_
extra[0] += [(f'buffer_store_dwordx4 {vr(vS4,4)}, v{vPf}, {srd(SRD_WS)}, 0 offen sc1', 'pre'),
             (f'buffer_store_dwordx4 {vr(vS4,4)}, v{vPf2}, {srd(SRD_WS)}, 0 offen sc1', 'pre')]
KO, KX = [int(x) for x in next((a[3:] for a in OPT if a.startswith('kt=')), '5,7').split(',')]
extra[KO] += [(f'buffer_load_dword v{vDum}, v{vTs}, {srd(SRD_WS)}, 0 offen', 'to')]
extra[KX] += [f's_mov_b32 s{sT3}, {WS_X1}', (f'buffer_load_dword v{vDum}, v{vTo}, {srd(SRD_WS)}, s{sT3} offen', 'to')]
for s in range(5):
    H = stage_dma(s + 3); extra[2 * s + 1] += H[0]; extra[2 * s + 2] += H[1]
extra[10] += [(f'buffer_load_dwordx4 {vr(s0g,4)}, v{vS0}, {srd(SRD_WS)}, 0 offen sc1', 's0g')]
extra[10] += [f's_lshl_b32 s{sU2}, s{sSET}, 9', f's_add_u32 s{sU2}, s{sU2}, s{sI}', f's_lshl_b32 s{sU2}, s{sU2}, 3',
              f's_add_u32 s{sU2}, s{sU2}, {WS_HELLO}', f's_lshl_b32 s{sT0}, s{sW}, 30', f'v_mov_b32 v{vPf}, s{sT0}']
extra[11] += [hello]
vRs = V.alloc(2)
def res_read(early):
    def f():
        L = A.newlabel('L_res')
        A(f's_cmp_lt_u32 s{sHG}, 5')
        A(f's_cbranch_scc{0 if early else 1} {L}')
        A(f'ds_read_b128 {vr(xP,4)}, v{vRs}')
        A(f'ds_read_b128 {vr(xP+4,4)}, v{vRs+1}')
        A.label(L)
    return f
extra[0] += [f'v_lshlrev_b32 v{t0}, 3, v{vQ}', f'v_and_b32 v{t0}, 0x70, v{t0}', f'v_xor_b32 v{t0}, v{t0}, v{vGm}',
             f'v_lshl_add_u32 v{t0}, v{vQ}, 7, v{t0}', f's_lshl_b32 s{sT0}, s{sHG}, 13', f's_add_u32 s{sT0}, s{sT0}, s{sAM}',
             f'v_add_u32 v{vRs}, s{sT0}, v{t0}', f'v_xor_b32 v{vRs+1}, 64, v{vRs}']
extra[8] += [res_read(True)]
ft_dma = []
for n in range(3):
    ft_dma += [f's_sub_u32 m0, s{sWM}, {L_W - L_FT - n * 1024}', (f'buffer_load_dwordx4 v{vFp+n}, {srd(SRD_T)}, 0 offen lds', 'ft')]
wd_dma = [f's_lshl_b32 s{sT0}, s{sW}, 12', f's_add_u32 m0, s{sT0}, {L_WD}'] + \
         [(f'buffer_load_dwordx4 v{vFd}, {srd(SRD_U)}, 0 offen offset:{f * 1024} lds', 'wd') for f in range(4)]
extra[11] += srd_lines(SRD_W, P_WO, 512 * 1024)
if 'ftlate' in OPT:
    extra[11] += wo_dma([0, 1, 2, 3]); extra[12] += wo_dma([4, 5, 12, 13]); extra[13] += wo_dma([14, 15, 6, 7])
    extra[14] += ft_dma; extra[15] += wd_dma
else:
    extra[11] += ft_dma; extra[12] += wd_dma
    extra[13] += wo_dma([0, 1, 2, 3]); extra[14] += wo_dma([4, 5, 12, 13]); extra[15] += wo_dma([14, 15, 6, 7])
extra[14] += srd_lines(SRD_X, P_WR, 1024)
extra[15] += [res_read(False)]
def drop(L, key): return [x for x in L if not (isinstance(x, tuple) and x[1] == key)]
for key in ('pre', 'wo', 'ft', 'wd', 'to'):
    if 'x' + key in OPT:
        for ks in extra: extra[ks] = drop(extra[ks], key)
A.wait_vm('S0', 'lgkmcnt(0)')
A('s_barrier')
stamp()
for x in p1_reads(0): A(x)
for ks in range(16):
    A('s_waitcnt lgkmcnt(0)')
    if 'loopstamps' in OPT and ks % 2 == 0 and ks: stamp()
    M = p1_mfmas(ks)
    A(M[0])
    if ks & 1 and ks < 15:
        if not ('nodma' in OPT and ks > 1): A.wait_vm(f'S{(ks + 1) >> 1}')
        if 'nobar' not in OPT: A('s_barrier')
    rd = p1_reads(ks + 1) if ks < 15 else []
    if 'nord' in OPT: rd = []
    if 'notr' in OPT: rd = [x for x in rd if '_tr_' not in x]
    if 'nob128' in OPT: rd = [x for x in rd if '_tr_' in x]
    ex = list(extra[ks])
    if 'nodma' in OPT: ex = [x for x in ex if not (isinstance(x, tuple) and x[0].endswith(' lds'))]
    isvm = lambda x: callable(x) or (x[0] if isinstance(x, tuple) else x).startswith('buffer_')
    nvm = sum(map(isvm, ex)); gaps = len(M) - 1
    slots = [int((j + 0.5) * gaps / nvm) for j in range(nvm)] if nvm else []
    groups = []; cur = []
    for x in ex:
        cur.append(x)
        if isvm(x): groups.append(cur); cur = []
    tail_ = cur
    place = {gi: [] for gi in range(gaps)}
    prev = -1
    for j, grp in enumerate(groups):
        lo = prev + 1 if prev + 1 <= slots[j] else slots[j]
        pre = grp[:-1]
        span = slots[j] - lo + 1
        for n_, x in enumerate(pre): place[lo + n_ * span // max(1, len(pre))].append(x)
        place[slots[j]].append(grp[-1]); prev = slots[j]
    lo = min(prev + 1, gaps - 1); span = gaps - lo
    for n_, x in enumerate(tail_): place[lo + n_ * span // len(tail_)].append(x)
    for mi, m in enumerate(M[1:]):
        A(m)
        if rd: A(rd.pop(0))
        for x in place[mi]: emit(x)
stamp()
for b in fr: V.release(b, 20)
V.release(vWr); V.release(vWr15); V.release(vRs, 2); V.release(vFd); V.release(vWd); V.release(vFp, 3); V.release(vPf); V.release(vPf2); V.release(vTo); V.release(vTs); V.release(vS4, 4)
Ls0 = A.newlabel('L_s0'); Ls0ok = A.newlabel('L_s0ok')
A(f's_lshl_b32 s{sT0}, s{sFIRST}, 3')
A(f'v_subrev_u32 v{t2}, s{sT0}, v0')
A(f's_sub_u32 s{sT0}, 72, s{sT0}')
A(f'v_cmp_gt_u32 {sr(sT4,2)}, s{sT0}, v{t2}')
A(f's_cmp_eq_u32 s{sW}, 2')
A(f's_cselect_b64 {sr(sU0,2)}, -1, {sr(sT4,2)}')
A(f's_mov_b32 s{sGUARD}, 20000')
A.wait_vm('s0g')
A.label(Ls0)
A(f'v_xor_b32 v{t0}, s{sTAG}, v{s0g+2}')
A(f'v_xor_b32 v{t1}, s{sTAGB}, v{s0g+3}')
A(f'v_lshrrev_b32 v{t3}, 4, v{t1}')
A(f'v_or_b32 v{t0}, v{t0}, v{t3}')
A(f'v_cmp_ne_u32 vcc, 0, v{t0}')
A(f's_and_b64 vcc, vcc, {sr(sU0,2)}')
A(f's_cbranch_vccz {Ls0ok}')
A(f'buffer_load_dwordx4 {vr(s0g,4)}, v{vS0}, {srd(SRD_WS)}, 0 offen sc1'); A.vm.pop()
A('s_waitcnt vmcnt(0)')
A(f's_sub_u32 s{sGUARD}, s{sGUARD}, 1')
A(f's_cbranch_scc0 {Ls0}')
A.label(Ls0ok)
A(f's_mov_b64 exec, {sr(sT4,2)}')
A(f'ds_write2_b32 v{vS0w}, v{s0g}, v{s0g+1} offset0:0 offset1:80')
A('s_mov_b64 exec, -1')
A(f'ds_write_b32 v{vS0w}, v{t1} offset:{640 - 32}')
V.release(s0g, 4); V.release(vS0); V.release(vS0w); V.release(gr, 4)
csQ = VP.alloc(4, 2); csK = VP.alloc(4, 2); csV = VP.alloc(2, 2)
for r in range(4):
    A(f'v_mov_b32_dpp v{csQ+r}, v{accQ+r} row_newbcast:0 {DP}')
    A(f'v_mov_b32_dpp v{csK+r}, v{accK+r} row_newbcast:0 {DP}')
A(f'v_mov_b32 v{csV}, v{accV}')
A(f'v_mov_b32 v{csV+1}, v{accV}')
A(f'v_lshlrev_b32 v{t0}, 2, v{vL}')
A(f'v_permlane32_swap_b32 v{csV}, v{csV+1}')
A(f'v_add_u32 v{t0}, {L_CS + 512}, v{t0}')
A('s_waitcnt lgkmcnt(0)')
A('s_barrier')
A(f'ds_read_b32 v{vDum}, v{t0}')
epi_ins = [wo_dma([ks]) for ks in range(8, 12)]
epi_ins += [[f's_lshl_b32 s{sT0}, s{sHG}, 7', f'buffer_load_dwordx4 {vr(aux,4)}, v{vGm}, {srd(SRD_X)}, s{sT0} offen'],
            [f'buffer_load_dwordx4 {vr(aux+4,4)}, v{vGm}, {srd(SRD_X)}, s{sT0} offen offset:64'],
            [f'buffer_load_dwordx4 {vr(wra,4)}, v{vL16}, {srd(SRD_X)}, 0 offen']]
if 'xwo' in OPT: epi_ins = [drop(g_, 'wo') for g_ in epi_ins]
SPIN = 20000
def poll(issue, check, name):
    L = A.newlabel('L_poll'); E = A.newlabel('L_ok')
    A(f's_mov_b32 s{sGUARD}, {SPIN}')
    A.label(L)
    issue()
    A.wait_vm0()
    check()
    A(f's_cbranch_vccz {E}')
    A(f's_sub_u32 s{sGUARD}, s{sGUARD}, 1')
    A(f's_cbranch_scc0 {L}')
    A.label(E)
def repoll(issue, check, name):
    L = A.newlabel('L_rp'); E = A.newlabel('L_ok')
    A(f's_mov_b32 s{sGUARD}, {SPIN}')
    A.label(L)
    A.wait_vm0()
    check()
    A(f's_cbranch_vccz {E}')
    issue(); A.vm = []
    A(f's_sub_u32 s{sGUARD}, s{sGUARD}, 1')
    A(f's_cbranch_scc0 {L}')
    A.label(E)
def local_stores(lines):
    R = A.newlabel('L_rem'); E = A.newlabel('L_st')
    A(f's_cmp_eq_u32 s{sLOCAL}, 0')
    A(f's_cbranch_scc1 {R}')
    for l in lines: A(l)
    A.label(E)
    A('s_nop 0')
    far.append((R, E, lines))
far = []
def emit_far():
    for R, E, lines in far:
        A.label(R)
        for l in lines:
            A(l + (' sc1' if l.startswith('buffer_') else ''))
        A(f's_branch {E}')
def skip_unless(cond_lines):
    E = A.newlabel('L_sk')
    for l in cond_lines: A(l)
    A(f's_cbranch_scc1 {E}')
    return E
def if_layer(n): return skip_unless([f's_cmp_lg_u32 s{sLAYER}, {n}'])
def if_wave(n): return skip_unless([f's_cmp_lg_u32 s{sW}, {n}'])
def if_ffn(): return skip_unless([f's_cmp_eq_u32 s{sHASF}, 0'])
def endif(E, pad=True):
    A.label(E)
    if pad: A('s_nop 1')
def tag_check(r):
    A(f'v_xor_b32 v{r+1}, s{sTAGB}, v{r+1}')
    A(f'v_xor_b32 v{r}, s{sTAG}, v{r}')
    A(f'v_lshrrev_b32 v{r+1}, 4, v{r+1}')
    A(f'v_or_b32 v{r}, v{r}, v{r+1}')
    A(f'v_cmp_ne_u32 vcc, 0, v{r}')

QSC = 0.25 * 1.4426950408889634
def epilogue(first):
    hQ = V.alloc(8, 2); hK = V.alloc(10, 2); hV = V.alloc(10, 2); hC = V.alloc(4)
    rp = V.alloc(10, 2); vm = V.alloc(20, 2); vc = V.alloc(20, 2)
    for T in range(5):
        A(f'ds_read2_b32 {vr(rp + 2 * T, 2)}, v{vQ4} offset0:{16 * T} offset1:{80 + 16 * T}')
        A(f'ds_read_b128 {vr(vm + 4 * T, 4)}, v{vG16} offset:{64 * T}')
        A(f'ds_read_b128 {vr(vc + 4 * T, 4)}, v{vG16} offset:{320 + 64 * T}')
    if first: A.sprinkle = (epi_ins, 16, emit)
    def norm_tile(aq, ak, av, rpp, vmm, vcc_, oq, ok, ov_, oc):
        for h in range(2):
            if aq is not None:
                A(f'v_pk_fma_f32 {vr(aq+2*h,2)}, {vr(csQ+2*h,2)}, {vr(rpp,2)}, {vr(aq+2*h,2)} op_sel_hi:[1,0,1]')
            A(f'v_pk_fma_f32 {vr(ak+2*h,2)}, {vr(csK+2*h,2)}, {vr(rpp,2)}, {vr(ak+2*h,2)} op_sel_hi:[1,0,1]')
            A(f'v_pk_fma_f32 {vr(av+2*h,2)}, {vr(vmm+2*h,2)}, {vr(csV,2)}, {vr(av+2*h,2)} op_sel_hi:[1,0,1]')
        for h in range(2):
            A(f'v_pk_mul_f32 {vr(ak+2*h,2)}, {vr(ak+2*h,2)}, {vr(rpp,2)} op_sel:[0,1] op_sel_hi:[1,1]')
            A(f'v_pk_mul_f32 {vr(av+2*h,2)}, {vr(av+2*h,2)}, {vr(vcc_+2*h,2)}')
        for h in range(2):
            if aq is not None:
                A(f'v_cvt_pk_bf16_f32 v{oq+h}, v{aq+2*h}, v{aq+2*h+1}')
            A(f'v_cvt_pk_bf16_f32 v{ok+h}, v{ak+2*h}, v{ak+2*h+1}')
            A(f'v_cvt_pk_bf16_f32 v{ov_+h}, v{av+2*h}, v{av+2*h+1}')
        if aq is not None:
            A(f'v_mul_f32 v{oc}, {hex(f2u(QSC))}, v{rpp+1}')
    for T in range(5):
        A(f's_waitcnt lgkmcnt({12 - 3 * T})')
        if first and T == 0:
            A(f'v_cmp_ne_u32 vcc, 0, v{vDum}')
        norm_tile(accQ + 4 * T if T else None, accK + 4 * T, accV + 4 * T, rp + 2 * T, vm + 4 * T, vc + 4 * T,
                  hQ + 2 * (T - 1), hK + 2 * T, hV + 2 * T, hC + T - 1)
        if first and T == 0:
            sp = A.sprinkle; A.sprinkle = None
            A(f's_cmp_eq_u64 vcc, 0')
            A(f's_cselect_b32 s{sLOCAL}, {0 if FORCE_REMOTE else 1}, 0')
            A.sprinkle = sp
    V.release(rp, 10); V.release(vm, 20); V.release(vc, 20)
    V.release(accQ, 20); V.release(accK, 20); V.release(accV, 20)
    tiles = [0, 1, 2, 3]
    n = len(tiles)
    Sp = V.alloc(4 * n, 2); Sc = V.alloc(4 * n, 2); mx = V.alloc(2 * n, 2); pk = V.alloc(2 * n, 2)
    for i, T in enumerate(tiles):
        A(mf(vr(Sp + 4 * i, 4), vr(hK + 2 * T, 2), vr(hQ + 2 * T, 2), vr(vBP0 if T == 0 else vBP, 4), False))
        A(mf(vr(Sc + 4 * i, 4), vr(hK + 2 * T + 2, 2), vr(hQ + 2 * T, 2), vr(vBC, 4), False))
    for i in range(n):
        for r in range(4):
            A(f'v_max_f32 v{Sc+4*i+r}, v{Sp+4*i+r}, v{Sc+4*i+r}')
        A(f'v_max3_f32 v{mx+2*i}, v{Sc+4*i}, v{Sc+4*i+1}, v{Sc+4*i+2}')
        A(f'v_max_f32 v{mx+2*i}, v{mx+2*i}, v{Sc+4*i+3}')
    prs = [(mx + 4 * j, mx + 4 * j + 2) for j in range(n // 2)]
    for a, b in prs: A(f'v_permlane16_swap_b32 v{a}, v{b}')
    for a, b in prs: A(f'v_max_f32 v{a}, v{a}, v{b}')
    for a, b in prs: A(f'v_mov_b32 v{b}, v{a}')
    for a, b in prs: A(f'v_permlane32_swap_b32 v{a}, v{b}')
    for a, b in prs: A(f'v_max_f32 v{a}, v{a}, v{b}')
    for a, b in prs: A(f'v_mov_b32 v{b}, v{a}')
    for a, b in prs: A(f'v_permlane16_swap_b32 v{a}, v{b}')
    for i, T in enumerate(tiles):
        A(f'v_mul_f32 v{mx+2*i+1}, v{mx+2*i}, v{hC+T}')
        A(f'v_mov_b32 v{mx+2*i}, v{hC+T}')
        for h in range(2):
            A(f'v_pk_fma_f32 {vr(Sc+4*i+2*h,2)}, {vr(Sc+4*i+2*h,2)}, {vr(mx+2*i,2)}, {vr(mx+2*i,2)} op_sel:[0,0,1] op_sel_hi:[1,0,1] neg_lo:[0,0,1] neg_hi:[0,0,1]')
    for i in range(n):
        for r in range(4):
            A(f'v_exp_f32 v{Sc+4*i+r}, v{Sc+4*i+r}')
    for i in range(n):
        for h in range(2):
            A(f'v_cvt_pk_bf16_f32 v{pk+2*i+h}, v{Sc+4*i+2*h}, v{Sc+4*i+2*h+1}')
        for h in range(2):
            A(f'v_and_b32 v{Sp+4*i+h}, v{pk+2*i+h}, v{vMP+h}')
        for h in range(2):
            A(f'v_xor_b32 v{Sp+4*i+2+h}, v{pk+2*i+h}, v{Sp+4*i+h}')
    if first:
        sp = A.sprinkle; A.sprinkle = None
        for grp in sp[0]:
            for x in grp: emit(x)
    Ls = V.alloc(4 * n, 2)
    for i, T in enumerate(tiles):
        A(mf(vr(Ls + 4 * i, 4), vr(vOnes, 2), vr(pk + 2 * i, 2), '0', False))
        A(mf(vr(Sc + 4 * i, 4), vr(hV + 2 * T, 4), vr(Sp + 4 * i, 4), '0'))
    for i in range(n):
        A(f'v_rcp_f32 v{Ls+4*i}, v{Ls+4*i}')
    for i in range(n):
        for h in range(2):
            A(f'v_pk_mul_f32 {vr(Sc+4*i+2*h,2)}, {vr(Sc+4*i+2*h,2)}, {vr(Ls+4*i,2)} op_sel_hi:[1,0]')
        for h in range(2):
            A(f'v_cvt_pk_bf16_f32 v{oP+2*i+h}, v{Sc+4*i+2*h}, v{Sc+4*i+2*h+1}')
    for j in range(n // 2):
        for h in range(2):
            A(f'v_permlane16_swap_b32 v{oP+4*j+h}, v{oP+4*j+2+h}')
    V.release(Sp, 4 * n); V.release(Sc, 4 * n); V.release(mx, 2 * n); V.release(pk, 2 * n); V.release(Ls, 4 * n)
    V.release(hQ, 8); V.release(hK, 10); V.release(hV, 10); V.release(hC, 4)
epilogue(True)
V.release(vWo)

A.label('L_pub')
stamp()
A(f's_mov_b32 s{sT0}, 32768')
A(f's_lshl_b32 s{sT1}, s{sLAYER}, 14')
A(f's_lshl_b32 s{sT2}, s{sRB}, 9')
A(f's_add_u32 s{sT1}, s{sT1}, s{sT2}')
A(f's_add_u32 s{sT5}, s{sT1}, {WS_FL}')
local_stores([f'buffer_store_dwordx4 {vr(oP,4)}, v{vOst}, {srd(SRD_WS)}, 0 offen',
              f'buffer_store_dwordx4 {vr(oP+4,4)}, v{vOst}, {srd(SRD_WS)}, s{sT0} offen'])
tg = VP.alloc(2, 2)
acc = V.alloc(16, 2); oF = V.alloc(64, 2); bR = V.alloc(64, 2)
A(f's_lshl_b32 s{sT2}, s{sHG}, 2')
A(f's_add_u32 s{sT2}, s{sT2}, s{sW}')
A(f's_lshl_b32 s{sT2}, s{sT2}, 3')
A(f's_add_u32 s{sT2}, s{sT2}, s{sT5}')
A(f'v_mov_b32 v{tg}, s{sTAG}')
A(f'v_mov_b32 v{tg+1}, s{sTAGB}')
for a_ in (0, 1, 4, 5): A(f'v_permlane16_swap_b32 v{xP+a_}, v{xP+a_+2}')
for j in range(8):
    A(f'v_lshlrev_b32 v{acc+2*j}, 16, v{xP+j}')
    A(f'v_and_b32 v{acc+2*j+1}, 0xffff0000, v{xP+j}')
A(f'v_and_b32 v{t1}, 31, v{vL}')
A(f'v_lshlrev_b32 v{t1}, 3, v{t1}')
A(f's_lshl_b32 s{sT0}, s{sSTB}, 14')
vO4 = V.alloc(4)
A(f'v_add_u32 v{vO4}, s{sT0}, v{vL16}')
for j in range(1, 4): A(f'v_add_u32 v{vO4+j}, {4096 * j}, v{vO4}')
A.wait_vm0()
A('s_mov_b64 exec, 1')
local_stores([f'buffer_store_dwordx2 {vr(tg,2)}, v{vL16}, {srd(SRD_WS)}, s{sT2} offen'])
A('s_mov_b64 exec, -1')
V.release(oP, 8)
stamp()
if STOP == 'o1': finish()
ftr = V.alloc(12, 2); fl = V.alloc(2, 2)
E = if_layer(0)
A('s_barrier')
for n in range(3):
    for hh in range(2):
        A(f'ds_read_b64_tr_b16 {vr(ftr + 4 * n + 2 * hh, 2)}, v{vFr} offset:{n * 128 + hh * 4 * 384}')
A(f'v_and_b32 v{t0}, 127, v0')
A(f'v_lshlrev_b32 v{t0}, 3, v{t0}')
for f in range(16):
    A(f'ds_read_b64 {ar(aFD + 2 * f, 2)}, v{t0} offset:{L_WD + f * 1024}')
endif(E, False)
def b_read(ks, t, h): return f'ds_read_b64_tr_b16 {vr(bR + ((ks & 3)*4 + t)*4 + 2*h, 2)}, v{vBo+t} offset:{wo_off(ks) + h*512}'
fl_issue = lambda: A(f'buffer_load_dwordx2 {vr(fl,2)}, v{t1}, {srd(SRD_WS)}, s{sT5} offen sc1')
fl_issue()
for ks in range(4):
    for t in range(4):
        for h in range(2): A(b_read(ks, t, h))
E = if_layer(0)
A(f's_lshl_b32 s{sU0}, s{sSET}, 9')
A(f's_add_u32 s{sU0}, s{sU0}, s{sI}')
A(f's_lshl_b32 s{sU0}, s{sU0}, 3')
A(f's_add_u32 s{sU0}, s{sU0}, {WS_HELLO}')
A(f's_mov_b32 vcc_lo, 0x11111111')
A(f's_mov_b32 vcc_hi, 0x11111111')
for r in range(8): A(f'v_cndmask_b32 v{aux+r}, v{aux+r}, v{vOnes}, vcc')
A(f'v_mov_b32 v{vSW}, 0')
for r in range(4): A(f'v_dot2c_f32_bf16 v{vSW}, v{wra+r}, v{vOnes}')
for sh in (8, 4, 2, 1):
    A(f'v_add_f32_dpp v{vSW}, v{vSW}, v{vSW} row_ror:{sh} {DP}')
for sw in ('v_permlane16_swap_b32', 'v_permlane32_swap_b32'):
    A(f'v_mov_b32 v{t0}, v{vSW}')
    A(f'{sw} v{vSW}, v{t0}')
    A(f'v_add_f32 v{vSW}, v{vSW}, v{t0}')
endif(E, False)
repoll(fl_issue, lambda: tag_check(fl), 'FL')
V.release(fl, 2)
stamp()
NPRE = 6
def o_load(ks): return [(f'buffer_load_dwordx4 {vr(oF + 4*ks, 4)}, v{vO4 + (ks >> 2)}, {srd(SRD_WS)}, 0 offen offset:{(ks%4)*1024} sc1', f'o{ks}')]
for ks in range(NPRE): emit(o_load(ks)[0])
late = {ks: o_load(ks + NPRE) for ks in range(16 - NPRE)}
for n in range(3):
    late[16 - NPRE + n] = [f's_mov_b32 s{sT0}, {n * 4 * 32768}', f'buffer_store_dwordx4 {vr(ftr + 4 * n, 4)}, v{vFs}, {srd(SRD_WS)}, s{sT0} offen sc1']
late[19 - NPRE] = [f'v_mov_b32 v{vFs}, 0x40000000']
V.release(wra, 4)
vRow = V.alloc(); vHel = V.alloc(); hel = V.alloc(8, 2)
pre = [f'v_lshl_add_u32 v{vRow}, v{vQ}, 10, v{vGm}',
       f's_lshl_b32 s{sU1}, s{sSTB}, 14', f's_lshl_b32 s{sT1}, s{sHG}, 7', f's_add_u32 s{sU1}, s{sU1}, s{sT1}', f's_add_u32 s{sU1}, s{sU1}, {WS_X1}',
       f's_lshl_b32 s{sT1}, s{sLAYER}, 18', f's_lshl_b32 s{sT2}, s{sSTB}, 11', f's_add_u32 s{sT1}, s{sT1}, s{sT2}', f's_add_u32 s{sT5}, s{sT1}, {WS_ST}',
       f's_lshl_b32 s{sT2}, s{sHG}, 8', f's_add_u32 s{sT1}, s{sT5}, s{sT2}', f'v_lshlrev_b32 v{t1}, 4, v{vQ}',
       f'v_lshrrev_b32 v{t0}, 3, v{vL}', f'v_lshlrev_b32 v{vHel}, 12, v{t0}', f'v_and_b32 v{t3}, 7, v{vL}', f'v_lshl_add_u32 v{vHel}, v{t3}, 5, v{vHel}',
       f'v_add_u32 v{vHel}, {WS_HELLO}, v{vHel}',
       f's_lshl_b32 s{sU2}, s{sSTB}, 7', f's_add_u32 s{sU2}, s{sU2}, {WS_X1F}', f's_lshl_b32 s{sT2}, s{sHG}, 3', f's_add_u32 s{sU3}, s{sU2}, s{sT2}']
for ks in range(16):
    nl = min(15, (15 - ks) * 8)
    A.wait_vm(f'o{ks}', f'lgkmcnt({nl})')
    for t in range(4):
        A(mf(vr(acc + 4*t, 4), vr(bR + ((ks & 3)*4 + t)*4, 4), vr(oF + 4*ks, 4), vr(acc + 4*t, 4)))
        if t == 0:
            for x in late.get(ks, []): emit(x)
        if ks + 4 < 16:
            A(b_read(ks + 4, t, 0)); A(b_read(ks + 4, t, 1))
        else:
            for _ in range(2):
                if pre: A(pre.pop(0))
assert not pre
V.release(oF, 64); V.release(bR, 64); V.release(ftr, 12); V.release(vO4, 4)
for j in range(8):
    A(f'v_cvt_pk_bf16_f32 v{xP+j}, v{acc+2*j}, v{acc+2*j+1}')
for a_ in (0, 1, 4, 5): A(f'v_permlane16_swap_b32 v{xP+a_}, v{xP+a_+2}')
stamp()
gG = V.alloc(4, 2); gS = V.alloc(4, 2)
A(mf(vr(gG, 4), vr(xP, 4), vr(xP, 4), '0'))
A(mf(vr(gS, 4), vr(aux, 4), vr(xP, 4), '0'))
A(mf(vr(gG, 4), vr(xP + 4, 4), vr(xP + 4, 4), vr(gG, 4)))
A(mf(vr(gS, 4), vr(aux + 4, 4), vr(xP + 4, 4), vr(gS, 4)))
unp = []
for j in range(8):
    unp += [f'v_lshlrev_b32 v{acc+2*j}, 16, v{xP+j}', f'v_and_b32 v{acc+2*j+1}, 0xffff0000, v{xP+j}']
for _ in range(7): A(unp.pop(0))
A(f'v_cndmask_b32 v{t0}, v{gG}, v{gG+1}, {sr(sM0,2)}')
A(f'v_cndmask_b32 v{t2}, v{gG+2}, v{gG+3}, {sr(sM0,2)}')
A(f'v_cndmask_b32 v{gS+2}, v{t0}, v{t2}, {sr(sM1,2)}')
A(f'v_mov_b32 v{gS+3}, s{sTAG}')
A('s_mov_b32 exec_lo, 0x00f0000f')
A('s_mov_b32 exec_hi, 0xf0000f00')
local_stores([f'buffer_store_dwordx4 {vr(gS,4)}, v{t1}, {srd(SRD_WS)}, s{sT1} offen'])
A('s_mov_b64 exec, -1')
hel_issue = lambda: (A(f'buffer_load_dwordx4 {vr(hel,4)}, v{vHel}, {srd(SRD_WS)}, 0 offen sc1'),
                     A(f'buffer_load_dwordx4 {vr(hel+4,4)}, v{vHel}, {srd(SRD_WS)}, 0 offen offset:16 sc1'))
E = if_layer(0)
local_stores([f'buffer_store_dwordx4 {vr(xP,4)}, v{vRow}, {srd(SRD_WS)}, s{sU1} offen',
              f'buffer_store_dwordx4 {vr(xP+4,4)}, v{vRow}, {srd(SRD_WS)}, s{sU1} offen offset:64'])
A(f's_cmp_lg_u32 s{sW}, 3')
A(f's_cbranch_scc1 {E}')
hel_issue()
endif(E, False)
V.release(gG, 4)
while unp: A(unp.pop(0))
if STOP == 'x1': finish()

sa = V.alloc(8, 2)
def h1_issue():
    A(f'buffer_load_dwordx4 {vr(sa,4)}, v{vL16}, {srd(SRD_WS)}, s{sT5} offen sc1')
    A(f'buffer_load_dwordx4 {vr(sa+4,4)}, v{vL16}, {srd(SRD_WS)}, s{sT5} offen offset:1024 sc1')
def h1_check():
    A(f'v_cmp_ne_u32 vcc, s{sTAG}, v{sa+3}')
    A(f'v_cmp_ne_u32 {sr(sT2,2)}, s{sTAG}, v{sa+7}')
    A(f's_or_b64 vcc, vcc, {sr(sT2,2)}')
poll(h1_issue, h1_check, 'ST')
stamp()
A(f'v_pk_add_f32 {vr(sa,2)}, {vr(sa,2)}, {vr(sa+4,2)}')
A(f'v_add_f32 v{sa+2}, v{sa+2}, v{sa+6}')
A('s_mov_b64 exec, 1')
local_stores([f'buffer_store_dwordx2 {vr(tg,2)}, v{vL16}, {srd(SRD_WS)}, s{sU3} offen'])
A('s_mov_b64 exec, -1')
for sw in ('v_permlane16_swap_b32', 'v_permlane32_swap_b32'):
    for r in range(3): A(f'v_mov_b32 v{sa+4+r}, v{sa+r}')
    for r in range(3): A(f'{sw} v{sa+r}, v{sa+4+r}')
    for r in range(3): A(f'v_add_f32 v{sa+r}, v{sa+r}, v{sa+4+r}')
mu = V.alloc(); var = V.alloc(); pr = V.alloc(2, 2); mm = V.alloc()
ln_params(sa, sa + 2, mu, var, mm, pr, t0)
key = V.alloc(); ka = V.alloc(2, 2); kb = ka + 1
A(f'v_fma_f32 v{key}, -v{mm}, v{vSW}, v{sa+1}')
A(f'v_mul_f32 v{pr+1}, -v{mm}, v{pr}')
A(f'v_mul_f32 v{key}, v{key}, v{pr}')
A(f's_lshl_b32 s{sT1}, s{sSTB}, 4')
A(f'v_ashrrev_i32 v{t0}, 31, v{key}')
A(f'v_or_b32 v{t0}, 0x80000000, v{t0}')
A(f'v_xor_b32 v{key}, v{key}, v{t0}')
A(f'v_and_b32 v{key}, 0xfffff800, v{key}')
A(f'v_or3_b32 v{key}, v{key}, v{vQ}, s{sT1}')
xn = V.alloc(8, 2); xf = V.alloc(16, 2)
fillx = [f'v_pk_fma_f32 {vr(xf+2*j,2)}, {vr(acc+2*j,2)}, {vr(pr,2)}, {vr(pr,2)} op_sel:[0,0,1] op_sel_hi:[1,0,1]' for j in range(8)] + \
        [f'v_cvt_pk_bf16_f32 v{xn+j}, v{xf+2*j}, v{xf+2*j+1}' for j in range(8)]
def top2_levels(a, b, levels, fill):
    for lv in levels:
        for _ in range(2):
            if fill: A(fill.pop(0))
        A(f'v_min_u32_dpp v{t0}, v{a}, v{a} {lv} {DP}')
        A(f'v_max_u32_dpp v{t1}, v{b}, v{b} {lv} {DP}')
        A(f'v_max_u32_dpp v{a}, v{a}, v{a} {lv} {DP}')
        A(f'v_max_u32 v{b}, v{t0}, v{t1}')
A(fillx.pop(0)); A(fillx.pop(0))
A(f'v_max_u32_dpp v{ka}, v{key}, v{key} quad_perm:[1,0,3,2] {DP}')
A(f'v_min_u32_dpp v{kb}, v{key}, v{key} quad_perm:[1,0,3,2] {DP}')
top2_levels(ka, kb, ['quad_perm:[2,3,0,1]', 'row_half_mirror', 'row_mirror'], fillx)
A(f's_lshl_b32 s{sT2}, s{sW}, 9')
A(f's_add_u32 s{sT2}, s{sT2}, {L_CS}')
A(f'v_cmp_eq_u32 vcc, v{key}, v{kb}')
A(f'v_add_u32 v{t3}, s{sT2}, v{vGm}')
A(f'v_add_u32 v{t2}, 256, v{t3}')
A(f'v_cndmask_b32 v{t3}, v{t3}, v{t2}, vcc')
A(f'v_cmp_ge_u32 vcc, v{key}, v{kb}')
A(f's_lshl_b32 s{sT2}, s{sW}, 3')
A(f's_add_u32 s{sT2}, s{sT2}, {L_KEY}')
A(f'v_mov_b32 v{t2}, s{sT2}')
while fillx: A(fillx.pop(0))
A(f's_mov_b64 exec, vcc')
A(f'ds_write_b128 v{t3}, {vr(xn,4)} offset:128')
A(f'ds_write_b128 v{t3}, {vr(xn+4,4)} offset:192')
A(f'ds_write_b64 v{t2}, {vr(ka,2)}')
A(f'ds_write_b128 v{t3}, {vr(xP,4)}')
A(f'ds_write_b128 v{t3}, {vr(xP+4,4)} offset:64')
A('s_mov_b64 exec, -1')
V.release(key); V.release(ka, 2)
pb = V.alloc(8, 2)
E3 = if_wave(3)
E = if_layer(0)
def hel_check():
    for r in range(8): A(f'v_xor_b32 v{hel+r}, s{sTAGB if r & 1 else sTAG}, v{hel+r}')
    A(f'v_or3_b32 v{t0}, v{hel+1}, v{hel+3}, v{hel+5}')
    A(f'v_or_b32 v{t0}, v{t0}, v{hel+7}')
    A(f'v_lshrrev_b32 v{t0}, 4, v{t0}')
    A(f'v_or3_b32 v{t0}, v{t0}, v{hel}, v{hel+2}')
    A(f'v_or3_b32 v{t0}, v{t0}, v{hel+4}, v{hel+6}')
    A(f'v_cmp_ne_u32 vcc, 0, v{t0}')
Lh = A.newlabel('L_hel'); Lhk = A.newlabel('L_helok')
A(f's_mov_b32 s{sGUARD}, {SPIN}')
A.label(Lh)
hel_check()
A(f's_cbranch_vccz {Lhk}')
hel_issue(); A.wait_vm0()
A(f's_sub_u32 s{sGUARD}, s{sGUARD}, 1')
A(f's_cbranch_scc0 {Lh}')
A.label(Lhk)
endif(E, False)
A(f'v_lshrrev_b32 v{t0}, 3, v{vL}')
A(f'v_and_b32 v{t1}, 7, v{vL}')
A(f'v_lshlrev_b32 v{t1}, 4, v{t1}')
A(f'v_lshl_add_u32 v{t2}, v{t0}, 8, v{t1}')
A(f'v_add_u32 v{t2}, {L_CS + 128}, v{t2}')
A(f'v_lshl_add_u32 v{t3}, v{t0}, 10, v{t1}')
A(f'v_add_u32 v{t1}, {L_KEY}, v{t1}')
A(f's_lshl_b32 s{sT1}, s{sLAYER}, 18')
A(f's_lshl_b32 s{sT2}, s{sRB}, 13')
A(f's_add_u32 s{sT1}, s{sT1}, s{sT2}')
A(f's_lshl_b32 s{sT2}, s{sHG}, 7')
A(f's_add_u32 s{sT1}, s{sT1}, s{sT2}')
A(f's_add_u32 s{sT1}, s{sT1}, {WS_CAND}')
A(f's_lshl_b32 s{sT0}, s{sLAYER}, 13')
A(f's_lshl_b32 s{sT2}, s{sHG}, 10')
A(f's_add_u32 s{sT0}, s{sT0}, s{sT2}')
A(f's_lshl_b32 s{sT2}, s{sRB}, 5')
A(f's_add_u32 s{sT0}, s{sT0}, s{sT2}')
A(f's_add_u32 s{sT0}, s{sT0}, {WS_KEYS}')
endif(E3, False)
V.release(hel, 8); V.release(vHel)
A('s_waitcnt lgkmcnt(0)')
A('s_barrier')
xfl = V.alloc(2, 2); vXf = V.alloc()
xf_issue = lambda: A(f'buffer_load_dwordx2 {vr(xfl,2)}, v{vXf}, {srd(SRD_WS)}, s{sU2} offen sc1')
E3 = if_wave(3)
A(f'ds_read_b128 {vr(pb+4,4)}, v{t1}')
A(f'ds_read_b128 {vr(pb,4)}, v{t2}')
endif(E3, False)
A(f'v_and_b32 v{vXf}, 7, v{vL}')
A(f'v_lshlrev_b32 v{vXf}, 3, v{vXf}')
E = if_layer(0)
xf_issue()
endif(E, False)
E3 = if_wave(3)
A('s_mov_b64 exec, 3')
A('s_waitcnt lgkmcnt(1)')
A(f'buffer_store_dwordx4 {vr(pb+4,4)}, v{vL16}, {srd(SRD_WS)}, s{sT0} offen sc1')
A('s_mov_b64 exec, -1')
A('s_waitcnt lgkmcnt(0)')
A(f'buffer_store_dwordx4 {vr(pb,4)}, v{t3}, {srd(SRD_WS)}, s{sT1} offen sc1')
E = if_layer(0)
A('s_mov_b64 exec, 1')
local_stores([f'buffer_store_dwordx2 {vr(tg,2)}, v{vL16}, {srd(SRD_WS)}, s{sU0} offen offset:2048'])
A(f's_cmp_lg_u32 s2, 0')
A(f's_cbranch_scc1 {E}x')
A(f's_mov_b32 s{sT0}, {WS_EPOCH}')
A(f'buffer_store_dword v{tg}, v{vL16}, {srd(SRD_WS)}, s{sT0} offen sc1')
A.label(E + 'x')
A('s_mov_b64 exec, -1')
A('s_waitcnt vmcnt(3)')
A('s_branch L_xfchk')
endif(E, False)
endif(E3, False)
A(f's_cmp_lg_u32 s{sLAYER}, 0')
A('s_cbranch_scc1 L_xfchk')
A('s_waitcnt vmcnt(0)')
A.label('L_xfchk')
V.release(pb, 8)
stamp()
A(f's_lshl_b32 s{sT1}, s{sLAYER}, 13')
A(f's_lshl_b32 s{sT2}, s{sSET}, 10')
A(f's_add_u32 s{sT5}, s{sT1}, s{sT2}')
A(f's_add_u32 s{sT5}, s{sT5}, {WS_KEYS}')
def chain_params(mu, var, mm, rs, om, oc):
    a = V.alloc(); u = V.alloc(); w_ = V.alloc(); m2 = V.alloc(); r2 = V.alloc()
    A(f'v_add_f32 v{a}, 1.0, v{rs}')
    A(f'v_mul_f32 v{u}, v{mm}, v{rs}')
    A(f'v_fma_f32 v{mu}, v{mu}, v{a}, -v{u}')
    A(f'v_mul_f32 v{w_}, v{a}, v{a}')
    A(f'v_mul_f32 v{var}, v{var}, v{w_}')
    round_params(mu, var, m2, r2, w_)
    A(f'v_rcp_f32 v{w_}, v{a}')
    A(f'v_add_f32 v{u}, v{u}, v{m2}')
    A(f'v_mul_f32 v{oc}, v{a}, v{r2}')
    A(f'v_mul_f32 v{om}, -v{u}, v{w_}')
    for x in (a, u, w_, m2, r2): V.release(x)
E = if_layer(0)
Lx = A.newlabel('L_xf'); Lxk = A.newlabel('L_xfok')
A(f's_mov_b32 s{sGUARD}, {SPIN}')
A.label(Lx)
tag_check(xfl)
A(f's_cbranch_vccz {Lxk}')
xf_issue(); A.wait_vm0()
A(f's_sub_u32 s{sGUARD}, s{sGUARD}, 1')
A(f's_cbranch_scc0 {Lx}')
A.label(Lxk)
A(f'v_lshrrev_b32 v{t0}, 3, v{vL}')
A(f'v_lshlrev_b32 v{t0}, 10, v{t0}')
A(f'v_sub_u32 v{vXe}, v{vXe}, v{t0}')
A(f'v_xor_b32 v{vXo}, 64, v{vXe}')
A(f'v_add_u32 v{vXo}, 8192, v{vXo}')
A(f's_lshl_b32 s{sU1}, s{sSTB}, 14')
grp = []
for kc in range(8):
    for o in range(2):
        grp.append(([f's_add_u32 s{sU2}, s{sU1}, {WS_X1 + kc * 128}'] if o == 0 else []) +
                   [f's_add_u32 m0, s{sAM}, {L_A + kc * 8192 + o * 1024}',
                    f'buffer_load_dwordx4 v{vXo if o else vXe}, {srd(SRD_WS)}, s{sU2} offen sc1 lds'])
A.sprinkle = (grp, 2, emit)
chain_params(mu, var, mm, pr, t2, t3)
A(f's_lshl_b32 s{sT0}, s{sW}, 6')
A(f'v_add_u32 v{t0}, s{sT0}, v{vQ4}')
A(f'ds_write2_b32 v{t0}, v{t2}, v{t3} offset0:16 offset1:96')
A.sprinkle = None
for g_ in grp:
    for x in g_: emit(x)
A(f's_cmp_lg_u32 s{sW}, 3')
A(f's_cbranch_scc1 {E}')
A(f's_lshl_b32 s{sT0}, s{sRB}, 13')
A(f's_lshl_b32 s{sT1}, s{sHG}, 7')
A(f's_add_u32 s{sT0}, s{sT0}, s{sT1}')
A(f's_add_u32 s{sT0}, s{sT0}, {WS_HALO - 8192}')
A('s_mov_b32 exec_lo, 0xff00ff00')
A('s_mov_b32 exec_hi, 0xff00ff00')
A(f'buffer_store_dwordx4 {vr(xP,4)}, v{vRow}, {srd(SRD_WS)}, s{sT0} offen sc1')
A(f'buffer_store_dwordx4 {vr(xP+4,4)}, v{vRow}, {srd(SRD_WS)}, s{sT0} offen offset:64 sc1')
A('s_mov_b64 exec, -1')
endif(E)
V.release(mu); V.release(var); V.release(pr, 2); V.release(mm); V.release(xfl, 2); V.release(vXf)
for j in range(8):
    A(f'v_lshlrev_b32 v{xf+2*j}, 16, v{xn+j}')
    A(f'v_and_b32 v{xf+2*j+1}, 0xffff0000, v{xn+j}')
for j in range(8):
    A(f'v_pk_add_f32 {vr(xf+2*j,2)}, {vr(xf+2*j,2)}, {vr(acc+2*j,2)}')
for j in range(8):
    A(f'v_cvt_pk_bf16_f32 v{xP+j}, v{xf+2*j}, v{xf+2*j+1}')
V.release(xn, 8); V.release(xf, 16); V.release(acc, 16)
E = if_layer(1)
A(f's_lshl_b32 s{sT1}, s{sHG}, 7')
A(f's_add_u32 s{sT0}, s{sAB}, s{sT1}')
A(f'v_lshl_add_u32 v{t0}, v{vQ}, 10, v{vRow}')
A(f'buffer_store_dwordx4 {vr(xP,4)}, v{t0}, {srd(SRD_OUT)}, s{sT0} offen')
A(f'buffer_store_dwordx4 {vr(xP+4,4)}, v{t0}, {srd(SRD_OUT)}, s{sT0} offen offset:64')
endif(E, False)
V.release(vRow)
V.release(sa, 8)
gS_old = gS; V.release(gS, 4)
V.take(accQ, 20); V.take(accK, 20); V.take(accV, 20)
fr = [V.alloc(16, 2), V.alloc(16, 2)]; gS = V.alloc(4, 2); sa = V.alloc(8, 2); wd = V.alloc(32, 2)
if gS != gS_old:
    assert abs(gS - gS_old) >= 4
    for r in range(4): A(f'v_mov_b32 v{gS+r}, v{gS_old+r}')
E = if_ffn()
A(f's_mov_b32 s{sT0}, 0x05040100')
A(f's_mov_b32 s{sT1}, 0x07060302')
for j in range(8):
    b = sa + 4 * (j & 1)
    for k_ in range(4): A(f'v_accvgpr_read_b32 v{b + k_}, a{aFD + 4*j + k_}')
    A(f'v_perm_b32 v{wd+4*j}, v{b+2}, v{b}, s{sT0}')
    A(f'v_perm_b32 v{wd+4*j+1}, v{b+2}, v{b}, s{sT1}')
    A(f'v_perm_b32 v{wd+4*j+2}, v{b+3}, v{b+1}, s{sT0}')
    A(f'v_perm_b32 v{wd+4*j+3}, v{b+3}, v{b+1}, s{sT1}')
A(f's_cmp_lg_u32 s{sW}, 1')
A(f's_cbranch_scc1 {E}')
A(f's_cmp_lg_u32 s{sLAYER}, 0')
A(f's_cbranch_scc1 {E}')
A(f's_lshl_b32 s{sT0}, s{sSET}, 12')
A(f's_add_u32 s{sT0}, s{sT0}, {WS_HELLO + 2048}')
A(f'v_and_b32 v{t1}, 31, v{vL}')
A(f'v_lshlrev_b32 v{t1}, 3, v{t1}')
poll(lambda: A(f'buffer_load_dwordx2 {vr(sa,2)}, v{t1}, {srd(SRD_WS)}, s{sT0} offen sc1'), lambda: tag_check(sa), 'H2')
endif(E, False)
def own_reads(ks):
    u = ks & 1; kc = ks >> 1; b = fr[ks & 1]
    return [f'ds_read_b128 {vr(b + 4 * T, 4)}, v{vA+u} offset:{(kc * 8 + 2 * T) * 1024}' for T in range(4)]
def gemm_part(k0, k1, tail=None):
    for ks in range(k0, k1):
        A('s_waitcnt lgkmcnt(0)')
        b = fr[ks & 1]; fill = own_reads(ks + 1) if ks < 15 else []
        c = lambda x: '0' if ks == 0 else vr(x, 4)
        for T in range(1, 5):
            X = vr(b + 4 * (T - 1), 4)
            A(mf(vr(accQ + 4 * T, 4), ar(aW(ks, 0), 4), X, c(accQ + 4 * T)))
            if fill: A(fill.pop(0))
            A(mf(vr(accK + 4 * T, 4), ar(aW(ks, 1), 4), X, c(accK + 4 * T)))
            if fill: A(fill.pop(0))
            A(mf(vr(accV + 4 * T, 4), X, ar(aW(ks, 2), 4), c(accV + 4 * T)))
E = if_layer(0)
A(f's_cmp_eq_u32 s{sW}, 3')
A(f's_cbranch_scc1 {E}w')
A('s_waitcnt vmcnt(0)')
A.label(E + 'w')
A('s_waitcnt vmcnt(2) lgkmcnt(0)')
A('s_barrier')
for x in own_reads(0): A(x)
A(f's_cmp_eq_u32 s{sHASF}, 0')
A(f's_cbranch_scc1 {E}')
A(f's_mul_i32 s{sT0}, s{sSET}, 12')
A(f's_add_u32 s{sT0}, s{sT0}, s{sI}')
A(f's_lshl_b32 s{sT0}, s{sT0}, 2')
A(f's_add_u32 s{sT0}, s{sT0}, s{sW}')
A(f's_lshl_b32 s{sT0}, s{sT0}, 13')
A(f's_add_u32 s{sU0}, s{sT0}, {WS_FT}')
A(f's_add_u32 s{sU1}, s{sU0}, 4096')
def ft_loads():
    for s_ in range(8):
        A(f'buffer_load_dwordx4 {ar(aFG + 4*s_, 4)}, v{vL16}, {srd(SRD_WS)}, s{sU1 if s_ >= 4 else sU0} offen offset:{(s_ & 3)*1024} sc1')
A(f's_cmp_eq_u32 s{sW}, 0')
A(f's_cbranch_scc1 {E}')
ft_loads()
endif(E, False)
stamp()
E0 = if_wave(0)
def h2_check():
    A(f'v_max3_u32 v{t0}, v{sa}, v{sa+1}, v{sa+2}')
    A(f'v_max_u32 v{t0}, v{t0}, v{sa+3}')
    A(f'v_cmp_eq_u32 vcc, -1, v{t0}')
poll(lambda: A(f'buffer_load_dwordx4 {vr(sa,4)}, v{vL16}, {srd(SRD_WS)}, s{sT5} offen sc1'), h2_check, 'KEYS')
stamp()
A(f'v_min_u32 v{t0}, v{sa}, v{sa+2}')
A(f'v_max_u32 v{sa}, v{sa}, v{sa+2}')
A(f'v_max3_u32 v{sa+1}, v{sa+1}, v{sa+3}, v{t0}')
top2_levels(sa, sa + 1, ['quad_perm:[1,0,3,2]', 'quad_perm:[2,3,0,1]', 'row_half_mirror', 'row_mirror'], [])
A(f'v_readlane_b32 s{sK0}, v{sa}, 0')
A(f'v_readlane_b32 s{sK1}, v{sa+1}, 0')
for ln in (16, 32, 48):
    A(f'v_readlane_b32 s{sT0}, v{sa}, {ln}')
    A(f'v_readlane_b32 s{sT1}, v{sa+1}, {ln}')
    A(f's_min_u32 s{sT2}, s{sK0}, s{sT0}')
    A(f's_max_u32 s{sK0}, s{sK0}, s{sT0}')
    A(f's_max_u32 s{sK1}, s{sK1}, s{sT1}')
    A(f's_max_u32 s{sK1}, s{sK1}, s{sT2}')
E = if_ffn()
A(f's_bfe_u32 s{sU2}, s{sK0}, 0x70004')
A(f's_bfe_u32 s{sU3}, s{sK1}, 0x70004')
A(f's_cmp_eq_u32 s{sU2}, s{sU3}')
A(f's_cselect_b32 s{sT2}, 1024, 0')
A(f's_lshl_b32 s{sT0}, s{sLAYER}, 18')
A(f's_add_u32 s{sT0}, s{sT0}, {WS_CAND}')
A(f's_lshl_b32 s{sU2}, s{sU2}, 11')
A(f's_add_u32 s{sU2}, s{sU2}, s{sT0}')
A(f's_lshl_b32 s{sU3}, s{sU3}, 11')
A(f's_add_u32 s{sU3}, s{sU3}, s{sT0}')
A(f's_add_u32 s{sU3}, s{sU3}, s{sT2}')
def f_issue():
    A(f'buffer_load_dwordx4 {vr(sa,4)}, v{vL16}, {srd(SRD_WS)}, s{sU2} offen sc1')
    A(f'buffer_load_dwordx4 {vr(sa+4,4)}, v{vL16}, {srd(SRD_WS)}, s{sU3} offen sc1')
f_issue()
A(f's_cmp_lg_u32 s{sLAYER}, 0')
A(f's_cbranch_scc1 {E}')
ft_loads()
endif(E, False)
A(f'v_mov_b32 v{t0}, s{sK0}')
A(f'v_mov_b32 v{t1}, s{sK1}')
A(f'v_mov_b32 v{t2}, {L_KEY + 32}')
A(f'ds_write2_b32 v{t2}, v{t0}, v{t1} offset0:0 offset1:1')
endif(E0, False)
N1, N2 = 3, 10
E = if_layer(0)
gemm_part(0, N1)
endif(E, False)
E = skip_unless([f's_cmp_eq_u32 s{sW}, 0', f's_cselect_b32 s{sT0}, s{sHASF}, 0', f's_cmp_eq_u32 s{sT0}, 0'])
A(f'v_lshrrev_b32 v{t2}, 5, v{vL}')
A(f'v_lshl_add_u32 v{t2}, v{t2}, 6, v{vL16}')
def f_check():
    A(f'v_max_u32 v{t0}, v{sa}, v{sa+4}')
    A(f'v_cmp_eq_u32 vcc, -1, v{t0}')
repoll(f_issue, f_check, 'CAND')
A(f'v_add_u32 v{t2}, {L_XS}, v{t2}')
A(f'ds_write_b128 v{t2}, {vr(sa,4)}')
A(f'ds_write_b128 v{t2}, {vr(sa+4,4)} offset:1152')
endif(E, False)
A('s_waitcnt vmcnt(0)')
E = skip_unless([f's_xor_b32 s{sT0}, s{sW}, 3', f's_or_b32 s{sT0}, s{sT0}, s{sLAYER}'])
A(f's_lshl_b32 s{sT0}, s{sRB}, 10')
A(f's_lshl_b32 s{sT1}, s{sHG}, 7')
A(f's_add_u32 s{sT0}, s{sT0}, s{sT1}')
A(f's_add_u32 s{sT0}, s{sT0}, {WS_HS - 128}')
A(f'v_lshlrev_b32 v{t1}, 4, v{vQ}')
A('s_mov_b32 exec_lo, 0')
A('s_mov_b32 exec_hi, 0xf0000f00')
A(f'buffer_store_dwordx4 {vr(gS,4)}, v{t1}, {srd(SRD_WS)}, s{sT0} offen sc1')
A('s_mov_b64 exec, -1')
endif(E, False)
V.release(gS, 4)
A(f'v_mov_b32 v{t2}, {L_KEY + 32}')
A(f'v_bfe_u32 v{t0}, v{vL}, 2, 1')
A(f'v_and_b32 v{t1}, 1, v{vL}')
A(f'v_lshl_or_b32 v{t0}, v{t0}, 1, v{t1}')
A(f'v_mul_u32_u24 v{t3}, 576, v{t0}')
A(f'v_lshl_add_u32 v{t3}, v{vG}, 4, v{t3}')
A(f'v_add_u32 v{t3}, {L_XS}, v{t3}')
A('s_waitcnt lgkmcnt(0)')
A('s_barrier')
A(f'ds_read_b64 {vr(sa,2)}, v{t2}')
Lnf = if_ffn()
xs = V.alloc(32, 2); d4 = V.alloc(4, 2); hp = xs
for s_ in range(8):
    A(f'ds_read_b128 {vr(xs + 4*s_, 4)}, v{t3} offset:{64*s_}')
A(f's_lshl_b32 s{sT1}, s{sW}, 3')
A(f's_add_u32 s{sT1}, s{sT1}, {L_H}')
A(f'v_lshlrev_b32 v{t2}, 5, v{vG}')
A(f'v_lshl_add_u32 v{t2}, v{vQ}, 1, v{t2}')
A(f'v_add_u32 v{t2}, s{sT1}, v{t2}')
for s_ in range(8):
    A(f's_waitcnt lgkmcnt({7 - s_})')
    A(mf(vr(d4, 4), vr(xs + 4*s_, 4), ar(aFG + 4*s_, 4), '0' if s_ == 0 else vr(d4, 4)))
A(f's_lshr_b32 s{sT1}, s{sW}, 1')
A(f's_lshl_b32 s{sT2}, s{sT1}, 5')
A(f's_add_u32 s{sT2}, s{sT2}, {L_H}')
A(f'v_mov_b32 v{t3}, s{sT2}')
A(f's_mul_i32 s{sT0}, s{sLAYER}, {86*4096}')
A(f's_lshl_b32 s{sT1}, s{sFS}, 12')
A(f's_add_u32 s{sT0}, s{sT0}, s{sT1}')
A(f's_add_u32 s{sT0}, s{sT0}, {WS_YP}')
A(f'v_add_f32_dpp v{t0}, v{d4+1}, v{d4} row_shl:8 {DP}')
bf_round(t0, t0)
A(f'v_mul_f32 v{t1}, {hex(f2u(-1.4426950408889634))}, v{t0}')
A(f'v_exp_f32 v{t1}, v{t1}')
A(f'v_mov_b32 v{d4}, 0')
A(f'v_add_f32 v{t1}, 1.0, v{t1}')
A(f'v_rcp_f32 v{t1}, v{t1}')
A(f'v_mov_b32 v{d4+1}, 0')
A(f'v_mul_f32 v{t1}, v{t0}, v{t1}')
bf_round(t1, t1)
A(f'v_mov_b32 v{d4+2}, 0')
A(f'v_mov_b32 v{d4+3}, 0')
A(f'v_mul_f32_dpp v{t1}, v{t0}, v{t1} row_shl:4 {DP}')
A(f'v_cvt_pk_bf16_f32 v{t1}, v{t1}, v{t1}')
A('s_mov_b32 exec_lo, 0x000f000f')
A('s_mov_b32 exec_hi, 0')
A(f'ds_write_b16 v{t2}, v{t1}')
A('s_mov_b64 exec, -1')
A(f'v_lshlrev_b32 v{t0}, 4, v0')
A('s_waitcnt lgkmcnt(0)')
A('s_barrier')
A(f'ds_read_b128 {vr(hp,4)}, v{t3}')
A(f'ds_read_b128 {vr(hp+4,4)}, v{t3} offset:16')
for j in range(8):
    if j % 4 == 0: A(f's_waitcnt lgkmcnt({1 - j // 4})')
    for c in range(4):
        A(f'v_dot2c_f32_bf16 v{d4+c}, v{wd+4*j+c}, v{hp+j}')
A(f'buffer_store_dwordx4 {vr(d4,4)}, v{t0}, {srd(SRD_WS)}, s{sT0} offen sc1')
V.release(xs, 32); V.release(wd, 32); V.release(d4, 4)
endif(Lnf, False)
A('s_waitcnt lgkmcnt(0)')
A(f'v_readfirstlane_b32 s{sK0}, v{sa}')
A(f'v_readfirstlane_b32 s{sK1}, v{sa+1}')
stamp()
E = if_layer(0)
gemm_part(N1, N2)
A(f's_xor_b32 s{sT0}, s{sW}, 1')
A(f's_or_b32 s{sT0}, s{sT0}, s{sFIRST}')
A(f's_cbranch_scc1 {E}')
A(f's_lshl_b32 s{sT0}, s{sRB}, 10')
A(f's_add_u32 s{sT0}, s{sT0}, {WS_HS - 1024}')
poll(lambda: A(f'buffer_load_dwordx4 {vr(sa,4)}, v{vL16}, {srd(SRD_WS)}, s{sT0} offen sc1'),
     lambda: A(f'v_cmp_ne_u32 vcc, s{sTAG}, v{sa+3}'), 'HS')
A(f's_lshl_b32 s{sU1}, s{sRB}, 13')
grp = [[f's_mov_b32 m0, {L_HA + kc * 1152}', f's_add_u32 s{sU2}, s{sU1}, {WS_HALO - 16384 + kc * 128}',
        f'buffer_load_dwordx4 v{vXo}, {srd(SRD_WS)}, s{sU2} offen sc1 lds'] for kc in range(8)]
A.sprinkle = (grp, 3, emit)
mu = V.alloc(); var = V.alloc(); pr = V.alloc(); mm = V.alloc()
for r in (0, 2): A(f'v_add_f32_dpp v{sa+r}, v{sa+r}, v{sa+r} row_ror:8 {DP}')
for sw in ('v_permlane16_swap_b32', 'v_permlane32_swap_b32'):
    for r in (0, 2): A(f'v_mov_b32 v{sa+4+r}, v{sa+r}')
    for r in (0, 2): A(f'{sw} v{sa+r}, v{sa+4+r}')
    for r in (0, 2): A(f'v_add_f32 v{sa+r}, v{sa+r}, v{sa+4+r}')
ln_params(sa, sa + 2, mu, var, mm, pr, t0)
chain_params(mu, var, mm, pr, t2, t3)
A.sprinkle = None
assert not grp
A(f'ds_write2_b32 v{vQ4}, v{t2}, v{t3} offset0:0 offset1:80')
V.release(mu); V.release(var); V.release(pr); V.release(mm)
endif(E, False)
V.release(sa, 8)
stamp()

A(f's_mov_b32 s{sTOK}, 0')
A(f's_mov_b32 s{sKEY}, s{sK0}')
A.label('L_own')
A(f's_and_b32 s{sRHO}, s{sKEY}, 2047')
A(f's_lshr_b32 s{sT0}, s{sRHO}, 6')
A(f's_cmp_lg_u32 s{sT0}, s{sRB}')
A('s_cbranch_scc1 L_own_next')
yp = V.alloc(24, 2); sg = V.alloc(); ya = V.alloc(); yb = V.alloc(); yc = V.alloc()
A(f's_mul_i32 s{sT0}, s{sLAYER}, {86*4096}')
A(f's_lshl_b32 s{sT1}, s{sTOK}, 11')
A(f's_add_u32 s{sT0}, s{sT0}, s{sT1}')
A(f's_lshl_b32 s{sT1}, s{sHG}, 8')
A(f's_add_u32 s{sT0}, s{sT0}, s{sT1}')
A(f's_add_u32 s{sT0}, s{sT0}, {WS_YP}')
A(f'v_lshrrev_b32 v{t0}, 4, v0')
A(f'v_lshlrev_b32 v{t2}, 12, v{t0}')
A(f'v_lshl_add_u32 v{t2}, v{vQ}, 4, v{t2}')
A(f'v_add_u32 v{t2}, s{sT0}, v{t2}')
A(f'v_mov_b32 v{t1}, 0x40000000')
A(f'v_cmp_gt_u32 vcc, 6, v{t0}')
A(f'v_cndmask_b32 v{t3}, v{t1}, v{t2}, vcc')
def y_issue():
    for j in range(6):
        A(f's_mov_b32 s{sT1}, {j * 65536}')
        A(f'buffer_load_dwordx4 {vr(yp + 4*j, 4)}, v{t3 if j == 5 else t2}, {srd(SRD_WS)}, s{sT1} offen sc1')
def y_check():
    A(f'v_max3_u32 v{t0}, v{yp}, v{yp+4}, v{yp+8}')
    A(f'v_max3_u32 v{t1}, v{yp+12}, v{yp+16}, v{yp+20}')
    A(f'v_max_u32 v{t0}, v{t0}, v{t1}')
    A(f'v_cmp_eq_u32 vcc, -1, v{t0}')
y_issue()
A(f's_bfe_u32 s{sT0}, s{sK0}, 0x70004')
A(f's_bfe_u32 s{sT2}, s{sKEY}, 0x70004')
A(f's_cmp_eq_u32 s{sT0}, s{sT2}')
A(f's_cselect_b32 s{sT0}, s{sTOK}, 0')
A(f's_lshl_b32 s{sT0}, s{sT0}, 8')
A(f's_and_b32 s{sT2}, s{sT2}, 3')
A(f's_lshl_b32 s{sT2}, s{sT2}, 9')
A(f's_add_u32 s{sT0}, s{sT0}, s{sT2}')
A(f's_add_u32 s{sT0}, s{sT0}, {L_CS}')
A(f'v_lshl_add_u32 v{yc}, v{vL}, 1, s{sT0}')
A(f'ds_read_u16 v{ya}, v{yc}')
A(f'ds_read_u16 v{yb}, v{yc} offset:128')
A(f's_ashr_i32 s{sT2}, s{sKEY}, 31')
A(f's_not_b32 s{sT2}, s{sT2}')
A(f's_or_b32 s{sT2}, s{sT2}, 0x80000000')
A(f's_xor_b32 s{sT2}, s{sT2}, s{sKEY}')
A(f'v_mov_b32 v{sg}, s{sT2}')
bf_round(sg, sg)
A(f'v_mul_f32 v{sg}, {hex(f2u(-1.4426950408889634))}, v{sg}')
A(f'v_exp_f32 v{sg}, v{sg}')
A(f'v_add_f32 v{sg}, 1.0, v{sg}')
A(f'v_rcp_f32 v{sg}, v{sg}')
bf_round(sg, sg)
A('s_waitcnt lgkmcnt(0)')
A(f'v_lshlrev_b32 v{ya}, 16, v{ya}')
A(f'v_lshlrev_b32 v{yb}, 16, v{yb}')
A(f'v_lshlrev_b32 v{yc}, 4, v0')
A(f'v_add_u32 v{yc}, {L_RED}, v{yc}')
A(f's_lshl_b32 s{sT2}, s{sHG}, 7')
A(f's_and_b32 s{sU0}, s{sRHO}, 1023')
A(f's_lshl_b32 s{sU0}, s{sU0}, 11')
A(f's_and_b32 s{sT0}, s{sRHO}, 1024')
A(f's_add_u32 s{sU0}, s{sU0}, s{sT0}')
A(f's_add_u32 s{sU0}, s{sU0}, s{sT2}')
A(f's_lshl_b32 s{sU1}, s{sTOK}, 10')
A(f's_add_u32 s{sU1}, s{sU1}, s{sT2}')
A(f's_add_u32 s{sU1}, s{sU1}, {WS_X2R}')
repoll(y_issue, y_check, 'YP')
for a_, b_ in ((0, 4), (8, 12), (16, 20), (0, 8), (0, 16)):
    for h in range(2):
        A(f'v_pk_add_f32 {vr(yp+a_+2*h,2)}, {vr(yp+a_+2*h,2)}, {vr(yp+b_+2*h,2)}')
A(f'ds_write_b128 v{yc}, {vr(yp,4)}')
A(f'v_lshlrev_b32 v{t0}, 2, v{vL}')
A(f'v_add_u32 v{t0}, {L_RED}, v{t0}')
A('s_waitcnt lgkmcnt(0)')
A('s_barrier')
A(f's_cmp_lg_u32 s{sW}, 3')
A('s_cbranch_scc1 L_own_sync')
for j in range(8):
    A(f'ds_read2st64_b32 {vr(yp + 2*j, 2)}, v{t0} offset0:{2*j} offset1:{2*j+1}')
A(f'v_lshlrev_b32 v{t0}, 1, v{vL}')
for n_, (a_, b_) in enumerate(((0, 2), (4, 6), (8, 10), (12, 14), (0, 4), (8, 12), (0, 8))):
    if n_ < 4: A(f's_waitcnt lgkmcnt({6 - 2 * n_})')
    A(f'v_pk_add_f32 {vr(yp+a_,2)}, {vr(yp+a_,2)}, {vr(yp+b_,2)}')
A(f'v_add_f32 v{yp}, v{yp}, v{yp+1}')
bf_round(yp, yp)
A(f'v_mul_f32 v{yp}, v{yp}, v{sg}')
bf_round(yp, yp)
A(f'v_add_f32 v{yp}, v{yp}, v{yb}')
bf_round(yp, yp)
A(f'v_add_f32 v{yp}, v{yp}, v{ya}')
A(f'v_mov_b32_dpp v{yp+1}, v{yp} quad_perm:[1,0,3,2] {DP}')
A(f'v_cvt_pk_bf16_f32 v{yp}, v{yp}, v{yp+1}')
A('s_mov_b32 exec_lo, 0x55555555')
A('s_mov_b32 exec_hi, 0x55555555')
A(f's_cmp_eq_u32 s{sLAYER}, 0')
A('s_cbranch_scc1 L_own_x2')
A(f'buffer_store_dword v{yp}, v{t0}, {srd(SRD_OUT)}, s{sU0} offen')
A('s_branch L_own_fin')
A.label('L_own_x2')
local_stores([f'buffer_store_dword v{yp}, v{t0}, {srd(SRD_WS)}, s{sU1} offen'])
A(f's_and_b32 s{sT0}, s{sRHO}, 63')
A(f's_cmp_lt_u32 s{sT0}, 56')
A('s_cbranch_scc1 L_own_nh')
A(f'buffer_store_dword v{yp}, v{t0}, {srd(SRD_WS)}, s{sU1} offen offset:2048 sc1')
A.label('L_own_nh')
A(f'v_add_u32 v{t0}, {L_X2S}, v{t0}')
A(f'ds_write_b32 v{t0}, v{yp}')
A.label('L_own_fin')
A('s_mov_b64 exec, -1')
A.label('L_own_sync')
A('s_waitcnt lgkmcnt(0)')
A('s_barrier')
A(f's_bfe_u32 s{sT0}, s{sRHO}, 0x20004')
A(f's_cmp_lg_u32 s{sT0}, s{sW}')
A('s_cbranch_scc1 L_own_next')
A(f's_and_b32 s{sT0}, s{sRHO}, 15')
A(f'v_add_u32 v{t0}, {L_X2S}, v{vGm}')
A(f'v_cmp_eq_u32 vcc, s{sT0}, v{vQ}')
A('s_mov_b64 exec, vcc')
A(f'ds_read_b128 {vr(xP,4)}, v{t0}')
A(f'ds_read_b128 {vr(xP+4,4)}, v{t0} offset:64')
A('s_mov_b64 exec, -1')
A('s_waitcnt lgkmcnt(0)')
V.release(yp, 24); V.release(sg); V.release(ya); V.release(yb); V.release(yc)
A.label('L_own_next')
A(f's_mov_b32 s{sKEY}, s{sK1}')
A(f's_add_u32 s{sTOK}, s{sTOK}, 1')
A(f's_cmp_lt_u32 s{sTOK}, 2')
A('s_cbranch_scc1 L_own')
A(f's_cmp_eq_u32 s{sLAYER}, 1')
A('s_cbranch_scc1 L_fin')
stamp()
gemm_part(N2, 15)
E = if_wave(1)
A('s_waitcnt vmcnt(0)')
endif(E, False)
A('s_barrier')
xr = V.alloc(64, 2)
hr = [f'ds_read_b128 {vr(xr + 4*ks, 4)}, v{vH + (ks & 1)} offset:{(ks >> 1) * 1152}' for ks in range(16)]
A('s_waitcnt lgkmcnt(0)')
b = fr[1]
for T in range(1, 5):
    X = vr(b + 4 * (T - 1), 4)
    A(mf(vr(accQ + 4 * T, 4), ar(aW(15, 0), 4), X, vr(accQ + 4 * T, 4))); A(hr.pop(0))
    A(mf(vr(accK + 4 * T, 4), ar(aW(15, 1), 4), X, vr(accK + 4 * T, 4))); A(hr.pop(0))
    A(mf(vr(accV + 4 * T, 4), X, ar(aW(15, 2), 4), vr(accV + 4 * T, 4))); A(hr.pop(0))
for ks in range(16):
    c = lambda x: '0' if ks == 0 else vr(x, 4)
    X = vr(xr + 4 * ks, 4)
    if ks == 0: A('s_waitcnt lgkmcnt(4)')
    if ks == 8: A('s_waitcnt lgkmcnt(0)')
    A(mf(vr(accK, 4), ar(aW(ks, 1), 4), X, c(accK)))
    if hr: A(hr.pop(0))
    A(mf(vr(accV, 4), X, ar(aW(ks, 2), 4), c(accV)))
for b in fr: V.release(b, 16)
stamp()

A(f's_mov_b32 s{sTOK}, 0')
A(f's_mov_b32 s{sKEY}, s{sK0}')
A.label('L_fix')
A(f's_and_b32 s{sRHO}, s{sKEY}, 2047')
A(f's_lshl_b32 s{sT0}, s{sRB}, 6')
A(f's_sub_u32 s{sT0}, s{sRHO}, s{sT0}')
A(f's_add_u32 s{sT4}, s{sT0}, 16')
A(f's_cmp_ge_u32 s{sT4}, 80')
A('s_cbranch_scc1 L_fix_next')
A(f's_lshl_b32 s{sT1}, s{sFIRST}, 3')
A(f's_add_u32 s{sT1}, s{sT1}, 8')
A(f's_cmp_lt_u32 s{sT4}, s{sT1}')
A('s_cbranch_scc1 L_fix_next')
rw = V.alloc(4, 2); nq = V.alloc(12, 2); s12 = V.alloc(4, 2)
A(f's_cmp_lt_u32 s{sT4}, 16')
A(f's_cselect_b32 s{sT1}, 2, 0')
A(f's_add_u32 s{sT0}, s{sTOK}, s{sT1}')
A(f's_lshl_b32 s{sT0}, s{sT0}, 10')
A(f's_add_u32 s{sT0}, s{sT0}, {WS_X2R}')
A(f's_lshl_b32 s{sT1}, s{sW}, 10')
A(f's_add_u32 s{sT1}, s{sT1}, {L_ROW}')
A(f'v_add_u32 v{t2}, s{sT1}, v{vL16}')
A(f'v_lshl_add_u32 v{t3}, v{vG}, 4, s{sT1}')
def r_check():
    A(f'v_max3_u32 v{t0}, v{rw}, v{rw+1}, v{rw+2}')
    A(f'v_max_u32 v{t0}, v{t0}, v{rw+3}')
    A(f'v_cmp_eq_u32 vcc, -1, v{t0}')
poll(lambda: A(f'buffer_load_dwordx4 {vr(rw,4)}, v{vL16}, {srd(SRD_WS)}, s{sT0} offen sc1'), r_check, 'X2R')
A(f'ds_write_b128 v{t2}, {vr(rw,4)}')
A(f'v_mov_b32 v{s12}, 0')
A(f'v_mov_b32 v{s12+1}, 0')
for j in range(4):
    A(f'v_dot2c_f32_bf16 v{s12}, v{rw+j}, v{vOnes}')
    A(f'v_dot2c_f32_bf16 v{s12+1}, v{rw+j}, v{rw+j}')
A('s_waitcnt lgkmcnt(0)')
for ks in range(16):
    A(f'ds_read_b128 {vr(xr + 4*ks, 4)}, v{t3} offset:{64*ks}')
mm_ = []
for ks in range(16):
    c = lambda x: '0' if ks == 0 else vr(x, 4)
    X = vr(xr + 4 * ks, 4)
    g_ = [mf(vr(nq, 4), ar(aW(ks, 0), 4), X, c(nq))]
    if ks % 4 == 0: g_ = [f's_waitcnt lgkmcnt({12 - ks})'] + g_
    mm_ += [g_, [mf(vr(nq + 4, 4), ar(aW(ks, 1), 4), X, c(nq + 4))], [mf(vr(nq + 8, 4), X, ar(aW(ks, 2), 4), c(nq + 8))]]
A.sprinkle = (mm_, 1, emit)
for sh in (8, 4, 2, 1):
    for r in range(2): A(f'v_add_f32_dpp v{s12+r}, v{s12+r}, v{s12+r} row_ror:{sh} {DP}')
for sw in ('v_permlane16_swap_b32', 'v_permlane32_swap_b32'):
    for r in range(2): A(f'v_mov_b32 v{s12+2+r}, v{s12+r}')
    for r in range(2): A(f'{sw} v{s12+r}, v{s12+2+r}')
    for r in range(2): A(f'v_add_f32 v{s12+r}, v{s12+r}, v{s12+2+r}')
ln_params(s12, s12 + 1, rw, rw + 1, rw + 2, rw + 3, t0)
A(f'v_xor_b32 v{rw+2}, 0x80000000, v{rw+2}')
A(f's_lshl_b32 s{sT0}, s{sT4}, 2')
A(f's_add_u32 s{sT0}, s{sT0}, {L_TAB}')
A(f'v_mov_b32 v{t0}, s{sT0}')
A(f's_and_b32 s{sT0}, s{sT4}, 15')
A(f's_lshr_b32 s{sT1}, s{sT4}, 4')
A(f's_lshl_b32 s{sT1}, s{sT1}, 2')
A(f'v_cmp_eq_u32 vcc, s{sT0}, v{vQ}')
A(f's_lshr_b32 s{sT2}, s{sT0}, 2')
A(f's_and_b32 s{sT0}, s{sT0}, 3')
A(f's_add_u32 s{sT0}, s{sT1}, s{sT0}')
A(f'v_cmp_eq_u32 {sr(sU0,2)}, s{sT2}, v{vG}')
A.sprinkle = None
for g_ in mm_:
    for x in g_: emit(x)
A(f'ds_write2_b32 v{t0}, v{rw+2}, v{rw+3} offset0:0 offset1:80')
A('s_mov_b64 exec, vcc')
A(f's_set_gpr_idx_on s{sT1}, gpr_idx(DST)')
for r in range(4):
    A(f'v_mov_b32 v{accQ+r}, v{nq+r}')
for r in range(4):
    A(f'v_mov_b32 v{accK+r}, v{nq+4+r}')
A('s_set_gpr_idx_off')
A(f's_mov_b64 exec, {sr(sU0,2)}')
A(f's_set_gpr_idx_on s{sT0}, gpr_idx(DST)')
A(f'v_mov_b32 v{accV}, v{nq+8}')
A('s_set_gpr_idx_off')
A('s_mov_b64 exec, -1')
A('s_waitcnt lgkmcnt(0)')
V.release(rw, 4); V.release(nq, 12); V.release(s12, 4)
A.label('L_fix_next')
A(f's_mov_b32 s{sKEY}, s{sK1}')
A(f's_add_u32 s{sTOK}, s{sTOK}, 1')
A(f's_cmp_lt_u32 s{sTOK}, 2')
A('s_cbranch_scc1 L_fix')
V.release(xr, 64)
stamp()
A(f's_mov_b32 s{sLAYER}, 1')
V.take(oP, 8)
epilogue(False)
A('s_branch L_pub')
A.label('L_fin')
finish()
emit_far()
A.label('L_end')
A('s_endpgm')

hdr = f"""; @launch grid=(256,1,1) block=(256,1,1) lds={LDS_SIZE}
.amdgcn_target "amdgcn-amd-amdhsa--gfx950"
.text
.globl {NAME}_kernel
.p2align 8
.type {NAME}_kernel,@function
"""
tail = f"""
.section .rodata,"a"
.p2align 6
.amdhsa_kernel {NAME}_kernel
  .amdhsa_next_free_vgpr 512
  .amdhsa_next_free_sgpr 102
  .amdhsa_accum_offset 256
  .amdhsa_group_segment_fixed_size 0
  .amdhsa_kernarg_size 88
  .amdhsa_user_sgpr_count 2
  .amdhsa_user_sgpr_kernarg_segment_ptr 1
  .amdhsa_system_sgpr_workgroup_id_x 1
.end_amdhsa_kernel
"""
open(sys.argv[1], 'w').write(hdr + A.text() + tail)
print('vgpr high water', V.hw, 'nops added', A.nops_added, 'lines', len(A.lines))
```

```python
import sys, struct
from asmlib import *

NAME = "interleave_layers__sliding_local_dilated__moe_arch_mod__prompt"
STOP = None
STAMPS = False
FORCE_REMOTE = False
OPT = set(sys.argv[2:])
for a in sys.argv[2:]:
    if a.startswith('stop='): STOP = a[5:]
    if a == 'stamps': STAMPS = True
    if a == 'remote': FORCE_REMOTE = True

def f2u(x): return struct.unpack('<I', struct.pack('<f', x))[0]
MB = 1 << 20
WS_O = 0
WS_X1 = WS_O
WS_SENT = 4 * MB
WS_KEYS = WS_SENT + 16384
WS_HS = WS_SENT + 32768
WS_X2R = WS_SENT
WS_CAND = WS_SENT + 64 * 1024
WS_YP = WS_SENT + 576 * 1024
assert WS_YP + 2 * 86 * 4096 <= WS_SENT + 1280 * 1024
WS_ST = WS_SENT + 1280 * 1024
WS_HALO = 6 * MB
WS_ST0 = WS_HALO + 256 * 1024 + 128
WS_FL = WS_HALO + 320 * 1024
WS_X1F = WS_HALO + 352 * 1024
WS_HELLO = WS_HALO + 384 * 1024
WS_EPOCH = WS_HELLO + 8 * 4096
WS_FT = 10 * MB
WS_STAMP = 8 * MB
WS_SIZE = 16 * MB
L_A = 0
L_HA = 65536
HST = 1280
L_W = L_HA + 8 * HST
SLOT = {1: 0, 0: 24576, 2: 49152}
L_WO = L_W + 12288
def wo_off(ks): return 61440 if ks == 15 else ((ks - 12) * 4096 if ks >= 12 else (12288 + (ks - 6) * 4096 if ks >= 6 else 36864 + ks * 4096))
L_W15 = L_A
L_FT = L_A + 12288
L_WD = L_A + 24576
L_RED = L_W
L_ROW = L_W + 4096
L_XS = L_W + 8192
L_TAB = L_W + 3 * 24576 + 4096
L_CS = L_TAB + 640
L_H = L_CS + 2048
L_X2S = L_H + 64
L_KEY = L_X2S + 128
LDS_SIZE = 160 * 1024
assert L_KEY + 64 <= LDS_SIZE
SRD_X, SRD_W, SRD_WS, SRD_OUT, SRD_U, SRD_T = 4, 8, 12, 16, 20, 24
P = 28
sW, sSET, sI, sHG, sRB, sP, sJ0, sFIRST, sLOCAL, sLAYER = range(50, 60)
sT0, sT1, sT2, sT3, sT4, sT5 = range(60, 66)
sM0, sM1 = 66, 68
sRET = 70
sSTAMP = 72
sGUARD = 75
sTAG, sTAGB = 76, 77
sFS, sHASF, sK0, sK1, sTOK, sRHO, sKEY, sST = range(78, 86)
sAB, sAM, sWM, sOM = range(86, 90)
sSTB = 92
sU0, sU1, sU2, sU3 = range(94, 98)
stamp_n = [0]

A = Asm()
VP = Pool(1, 80)
V = Pool(80, 256)
vST = VP.alloc()
oP = V.take(80, 8); wra = V.take(88, 4)
def srd(n): return sr(n, 4)
DP = 'row_mask:0xf bank_mask:0xf'

def stamp(force=False):
    if not STAMPS: return
    n = stamp_n[0]; stamp_n[0] += 1
    if 'minstamp' in OPT and not force: return
    assert n < 32
    A(f'{"s_memtime" if "cyc" in sys.argv else "s_memrealtime"} {sr(sSTAMP,2)}')
    A(f's_lshl_b32 s{sST}, s{sLAYER}, 5')
    A(f's_add_u32 s{sST}, s{sST}, {n}')
    A('s_waitcnt lgkmcnt(0)')
    A(f's_mov_b32 m0, s{sST}')
    A('s_nop 0')
    A(f'v_writelane_b32 v{vST}, s{sSTAMP}, m0')

def mk_srd(d, ptr, size):
    A(f's_mov_b32 s{d}, s{ptr}')
    A(f's_and_b32 s{d+1}, s{ptr+1}, 0xffff')
    A(f's_mov_b32 s{d+2}, {size}')
    A(f's_mov_b32 s{d+3}, 0x20000')

def bf_round(dst, src):
    A(f'v_cvt_pk_bf16_f32 v{dst}, 0, v{src}')

def ln_params(s1, s2, mu, var, m, rs, t):
    A(f'v_mul_f32 v{mu}, {hex(f2u(1/512))}, v{s1}')
    A(f'v_mul_f32 v{var}, {hex(f2u(1/512))}, v{s2}')
    A(f'v_fma_f32 v{var}, -v{mu}, v{mu}, v{var}')
    A(f'v_max_f32 v{var}, 0, v{var}')
    round_params(mu, var, m, rs, t)

def round_params(mu, var, m, rs, t):
    bf_round(t, var)
    A(f'v_add_f32 v{t}, {hex(f2u(1e-5))}, v{t}')
    bf_round(t, t)
    A(f'v_sqrt_f32 v{t}, v{t}')
    bf_round(m, mu)
    bf_round(t, t)
    A(f'v_rcp_f32 v{rs}, v{t}')

def finish():
    if STAMPS:
        stamp(True)
        A(f's_lshl_b32 s{sT0}, s2, 10')
        A(f's_add_u32 s{sT0}, s{sT0}, {WS_STAMP}')
        A(f'v_lshlrev_b32 v{t0}, 2, v0')
        A(f'buffer_store_dword v{vST}, v{t0}, {srd(SRD_WS)}, s{sT0} offen')
    A('s_endpgm')

def mf(d, a, b, c, k32=True):
    return f'v_mfma_f32_16x16x{32 if k32 else 16}_bf16 {d}, {a}, {b}, {c}'
def emit(x):
    if callable(x): x()
    elif isinstance(x, tuple): A(x[0], tag=x[1])
    else: A(x)

A.raw(f'{NAME}_kernel:')
A('s_cmp_ge_u32 s2, 256')
A('s_cbranch_scc1 L_end')
if STAMPS: A(f'{"s_memtime" if "cyc" in sys.argv else "s_memrealtime"} s[90:91]')
A(f's_load_dwordx16 s[{P}:{P+15}], s[0:1], 0')
A(f's_load_dwordx4 s[{P+16}:{P+19}], s[0:1], 64')
A(f's_load_dwordx2 s[{P+20}:{P+21}], s[0:1], 80')
P_X, P_W, P_WO, P_BX, P_WR, P_WG, P_WU, P_WD, P_OUT, P_DBG, P_WS = [P + 2 * i for i in range(11)]
vL = VP.alloc(); vQ = VP.alloc(); vG = VP.alloc(); vL16 = VP.alloc()
t0 = VP.alloc(); t1 = VP.alloc(); t2 = VP.alloc(); t3 = VP.alloc()
vDum = VP.alloc()
A(f'v_lshrrev_b32 v{t0}, 6, v0')
A(f'v_and_b32 v{vL}, 63, v0')
A(f'v_readfirstlane_b32 s{sW}, v{t0}')
A(f's_lshr_b32 s{sI}, s2, 3')
A(f's_getpc_b64 {sr(sT0,2)}')
A.label('L_pc')
A(f's_lshl_b32 s{sT2}, s{sI}, 2')
A(f's_add_u32 s{sT2}, s{sT2}, s{sW}')
A(f's_lshl_b32 s{sT2}, s{sT2}, 8')
A(f'v_lshl_add_u32 v{t0}, v{vL}, 7, s{sT2}')
A(f'v_min_u32 v{t0}, L_end-L_pc, v{t0}')
A('s_mov_b64 exec, 3')
A(f'global_load_dword v{vDum}, v{t0}, {sr(sT0,2)}', tag='code')
A('s_mov_b64 exec, -1')
A(f'v_and_b32 v{vQ}, 15, v0')
A(f'v_lshrrev_b32 v{vG}, 4, v{vL}')
A(f'v_lshlrev_b32 v{vL16}, 4, v{vL}')
A(f's_mov_b32 s{sLAYER}, 0')
if STAMPS: A(f'v_mov_b32 v{vST}, 0')
A(f's_and_b32 s{sSET}, s2, 7')
A(f's_and_b32 s{sHG}, s{sI}, 7')
A(f's_lshr_b32 s{sT0}, s{sI}, 3')
A(f's_lshl_b32 s{sRB}, s{sSET}, 2')
A(f's_add_u32 s{sRB}, s{sRB}, s{sT0}')
A(f's_lshr_b32 s{sP}, s{sRB}, 4')
A(f's_and_b32 s{sJ0}, s{sRB}, 15')
A(f's_cmp_eq_u32 s{sJ0}, 0')
A(f's_cselect_b32 s{sFIRST}, 1, 0')
A(f's_lshl_b32 s{sJ0}, s{sJ0}, 6')
vXe = VP.alloc(); vXo = VP.alloc()
vR8 = V.take(93)
A(f'v_lshrrev_b32 v{vR8}, 3, v{vL}')
A(f'v_and_b32 v{t1}, 7, v{vL}')
A(f'v_xor_b32 v{t2}, v{t1}, v{vG}')
A(f'v_lshlrev_b32 v{t2}, 4, v{t2}')
A(f'v_lshl_add_u32 v{vXe}, v{vR8}, 11, v{t2}')
A(f'v_xor_b32 v{vXo}, 64, v{vXe}')
A(f'v_add_u32 v{vXo}, {8 * 2048}, v{vXo}')
vWo = V.take(92); vWd = V.alloc(); vSt = V.alloc()
A(f'v_and_b32 v{t0}, 2, v{vR8}')
A(f's_and_b32 s{sT0}, s{sW}, 1')
A(f's_lshl_b32 s{sT0}, s{sT0}, 2')
A(f'v_or_b32 v{t0}, s{sT0}, v{t0}')
A(f'v_xor_b32 v{t0}, v{t0}, v{t1}')
A(f's_lshl_b32 s{sT0}, s{sHG}, 7')
A(f'v_lshl_add_u32 v{t0}, v{t0}, 4, s{sT0}')
A(f's_lshl_b32 s{sT0}, s{sW}, 3')
A(f'v_add_u32 v{t1}, s{sT0}, v{vR8}')
A(f'v_mul_u32_u24 v{vWd}, 3072, v{t1}')
A(f'v_add_u32 v{vWd}, v{vWd}, v{t0}')
A(f'v_lshl_add_u32 v{vWo}, v{t1}, 10, v{t0}')
A(f'v_lshrrev_b32 v{t0}, 5, v{vL}')
A(f'v_and_b32 v{t1}, 31, v{vL}')
A(f'v_lshlrev_b32 v{t1}, 4, v{t1}')
A(f'v_lshl_add_u32 v{vSt}, v{t0}, 11, v{t1}')
A(f's_lshl_b32 s{sT4}, s{sJ0}, 11')
A(f's_lshl_b32 s{sT1}, s{sP}, 10')
A(f's_add_u32 s{sT4}, s{sT4}, s{sT1}')
A(f's_lshl_b32 s{sAB}, s{sW}, 15')
A(f's_add_u32 s{sAB}, s{sAB}, s{sT4}')
A(f's_lshl_b32 s{sAM}, s{sW}, 11')
A(f's_mul_i32 s{sWM}, s{sW}, 3072')
A(f's_add_u32 s{sWM}, s{sWM}, {L_W}')
A(f's_lshl_b32 s{sT2}, s{sHG}, 2')
A(f's_add_u32 s{sT2}, s{sT2}, s{sW}')
A(f's_lshl_b32 s{sT2}, s{sT2}, 12')
A(f's_add_u32 s{sT2}, s{sT2}, s{sT4}')
A(f's_cmp_eq_u32 s{sFIRST}, 1')
A(f's_cselect_b32 s{sT5}, 0, 32768')
A(f's_sub_u32 s{sT5}, s{sT4}, s{sT5}')
A(f's_lshl_b32 s{sT3}, s{sW}, 8')
A(f's_add_u32 s{sT5}, s{sT5}, s{sT3}')
A(f's_mul_i32 s{sT4}, s{sW}, {2 * HST}')
vTw = V.alloc(); vTo = V.alloc()
A(f's_lshl_b32 s{sT0}, s2, 2')
A(f's_add_u32 s{sT0}, s{sT0}, s{sW}')
A(f's_mul_i32 s{sT1}, s{sT0}, {12 * 128}')
A(f's_lshl_b32 s{sT0}, s{sT0}, 9')
A(f'v_lshl_add_u32 v{vTw}, v{vL}, 7, s{sT1}')
A(f'v_lshl_add_u32 v{vTo}, v{vL}, 7, s{sT0}')
A(f's_lshl_b32 s{sT0}, s{sI}, 2')
A(f's_add_u32 s{sT0}, s{sT0}, s{sW}')
A(f's_lshl_b32 s{sT0}, s{sT0}, 10')
A(f'v_lshl_add_u32 v{t3}, v{vQ}, 17, s{sT0}')
A(f'v_cmp_lt_u32 vcc, 15, v{vL}')
A('s_waitcnt lgkmcnt(0)')
if STAMPS:
    A(f'v_writelane_b32 v{vST}, s90, 0'); stamp_n[0] = 1
stamp()
mk_srd(SRD_W, P_W, 512 * 3072)
A(f's_sub_u32 s{sT0}, 384, s{P_W}')
A(f's_and_b32 s{sT0}, s{sT0}, 0x380')
A(f'v_add_u32 v{t0}, s{sT0}, v{t3}')
A(f'v_cndmask_b32 v{vTw}, v{vTw}, v{t0}, vcc')
A(f's_sub_u32 s{sT0}, 384, s{P_WO}')
A(f's_and_b32 s{sT0}, s{sT0}, 0x380')
A(f'v_add_u32 v{t0}, s{sT0}, v{t3}')
A(f'v_cndmask_b32 v{vTo}, v{vTo}, v{t0}, vcc')
A('s_mov_b64 exec, 0x0fff0fff')
A(f'buffer_load_dword v{vDum}, v{vTw}, {srd(SRD_W)}, 0 offen', tag='touch')
if 'woearly' in OPT:
    A('s_mov_b64 exec, 0x000f000f')
    A(f'global_load_dword v{vDum}, v{vTo}, {sr(P_WO,2)}', tag='touch')
A('s_mov_b64 exec, -1')
A(f's_add_u32 s{sT0}, s{P_WS}, {WS_EPOCH}')
A(f's_addc_u32 s{sT1}, s{P_WS+1}, 0')
A(f's_load_dword s{sTAG}, {sr(sT0,2)}, 0')
mk_srd(SRD_X, P_X, 2 * MB)
srow = V.alloc(8, 2)
A(f'buffer_load_dwordx4 {vr(srow,4)}, v{vSt}, {srd(SRD_X)}, s{sT2} offen', tag='srow')
A(f'buffer_load_dwordx4 {vr(srow+4,4)}, v{vSt}, {srd(SRD_X)}, s{sT2} offen offset:512', tag='srow')
V.release(vSt); V.release(vTw)
def stage_dma(s):
    H = []
    for ksl in range(2):
        ks = 2 * s + ksl
        H.append([f's_add_u32 m0, s{sAM}, {L_A + s * 8192 + ksl * 1024}',
                  f's_add_u32 s{sT3}, s{sAB}, {s * 128}',
                  (f'buffer_load_dwordx4 v{vXo if ksl else vXe}, {srd(SRD_X)}, s{sT3} offen lds', f'S{s}'),
                  (f's_sub_u32 m0, s{sWM}, {L_W - L_W15}' if ks == 15 else f's_add_u32 m0, s{sWM}, {SLOT[s % 3] + ksl * 12288}'),
                  f's_mov_b32 s{sT3}, {ks * 98304}'] +
                 [(f'buffer_load_dwordx4 v{vWd}, {srd(SRD_W)}, s{sT3} offen offset:{m * 1024} lds', f'S{s}') for m in range(3)])
    return H
for h in stage_dma(0):
    for x in h: emit(x)
for j in range(2):
    A(f's_add_u32 m0, s{sT4}, {L_HA + j * HST}')
    if j: A(f's_add_u32 s{sT5}, s{sT5}, 128')
    A(f'buffer_load_dwordx4 v{vXo}, {srd(SRD_X)}, s{sT5} offen lds', tag='S0')
tp = V.alloc(2, 2)
A(f'v_mov_b32 v{tp}, s{P_WR}')
A(f'v_mov_b32 v{tp+1}, s{P_WR+1}')
A(f'v_lshl_add_u32 v{tp}, v{vL}, 7, v{tp}')
pages = [(P_WS, 2 * MB - 128), (P_WS, 4 * MB), (P_WS, 6 * MB), (P_WS, 10 * MB), (P_WS, 12 * MB), (P_OUT, 0), (P_WG, 0), (P_WU, 0), (P_WD, 0)]
for n, (p_, off) in enumerate(pages):
    if off:
        A(f's_add_u32 s{sT0}, s{p_}, {off}')
        A(f's_addc_u32 s{sT1}, s{p_+1}, 0')
        A(f'v_writelane_b32 v{tp}, s{sT0}, {8 + n}')
        A(f'v_writelane_b32 v{tp+1}, s{sT1}, {8 + n}')
    else:
        A(f'v_writelane_b32 v{tp}, s{p_}, {8 + n}')
        A(f'v_writelane_b32 v{tp+1}, s{p_+1}, {8 + n}')
A(f's_add_u32 s{sT0}, s{P_WR}, 1024')
A(f's_cselect_b32 s{sT0}, {hex(((1 << len(pages)) - 1) << 8)}, {0}')
A(f's_cselect_b32 s{sT0}, s{sT0}, {hex((1 << (8 + len(pages))) - 1)}')
A(f's_lshl_b32 s{sT1}, 0x11111111, s{sW}')
A(f's_and_b32 exec_lo, s{sT0}, s{sT1}')
A('s_mov_b32 exec_hi, 0')
A(f'global_load_dword v{vDum}, {vr(tp,2)}, off sc1', tag='touch')
if 'woearly' not in OPT:
    A('s_mov_b64 exec, 0x000f000f')
    A(f'global_load_dword v{vDum}, v{vTo}, {sr(P_WO,2)}', tag='touch')
A('s_mov_b64 exec, -1')
V.release(vTo)
V.release(tp, 2)
mk_srd(SRD_WS, P_WS, WS_SIZE)
mk_srd(SRD_OUT, P_OUT, 2 * MB)
A(f's_cmp_lt_u32 s{sW}, 2')
A(f's_cselect_b64 {sr(SRD_T,2)}, {sr(P_WG,2)}, {sr(P_WU,2)}')
A(f's_and_b32 s{SRD_T+1}, s{SRD_T+1}, 0xffff')
A(f's_mov_b32 s{SRD_T+2}, {512 * 2752}')
A(f's_mov_b32 s{SRD_T+3}, 0x20000')
mk_srd(SRD_U, P_WD, 1376 * 1024)
A(f's_mul_i32 s{sFS}, s{sSET}, 11')
A(f's_add_u32 s{sFS}, s{sFS}, s{sI}')
A(f's_cmp_lt_u32 s{sI}, 11')
A(f's_cselect_b32 s{sHASF}, 1, 0')
A(f's_cmp_lt_u32 s{sFS}, 86')
A(f's_cselect_b32 s{sHASF}, s{sHASF}, 0')
vFp = V.alloc(3); vFd = vR8; vFr = VP.alloc(); vFs = VP.alloc()
A(f's_lshl_b32 s{sT0}, s{sI}, 1')
A(f's_and_b32 s{sT1}, s{sW}, 1')
A(f's_add_u32 s{sT0}, s{sT0}, s{sT1}')
A(f's_mul_i32 s{sT0}, s{sT0}, {8 * 2752}')
A(f's_mul_i32 s{sT1}, s{sSET}, 352')
A(f's_add_u32 s{sT0}, s{sT0}, s{sT1}')
vDt = V.alloc()
A(f's_lshl_b32 s{sT1}, s{sSET}, 5')
A(f's_add_u32 s{sT1}, s{sT1}, s{sI}')
A(f's_lshl_b32 s{sT1}, s{sT1}, 2')
A(f's_add_u32 s{sT1}, s{sT1}, s{sW}')
A(f's_mul_i32 s{sT1}, s{sT1}, {11 * 128}')
A(f'v_min_u32 v{t0}, 10, v{vL}')
A(f'v_lshl_add_u32 v{vDt}, v{t0}, 7, s{sT1}')
for n in range(3):
    A(f'v_add_u32 v{t0}, {64 * n}, v{vL}')
    A(f'v_mul_u32_u24 v{t1}, 171, v{t0}')
    A(f'v_lshrrev_b32 v{t1}, 12, v{t1}')
    A(f'v_mul_u32_u24 v{t1}, {2752 - 384}, v{t1}')
    A(f'v_lshl_add_u32 v{t0}, v{t0}, 4, s{sT0}')
    A(f'v_add_u32 v{vFp+n}, v{t0}, v{t1}')
A(f'v_bfe_u32 v{t1}, v{vL}, 2, 2')
A(f'v_lshl_add_u32 v{t0}, v{vG}, 3, v{t1}')
A(f'v_mul_u32_u24 v{vFr}, 384, v{t0}')
A(f'v_and_b32 v{t0}, 3, v{vL}')
A(f'v_lshl_add_u32 v{vFr}, v{t0}, 3, v{vFr}')
A(f's_lshl_b32 s{sT0}, s{sW}, 5')
A(f's_add_u32 s{sT0}, s{sT0}, {L_FT}')
A(f'v_add_u32 v{vFr}, s{sT0}, v{vFr}')
A(f'v_lshlrev_b32 v{vFs}, 4, v{t0}')
A(f'v_lshl_add_u32 v{vFs}, v{t1}, 13, v{vFs}')
A(f'v_and_b32 v{t0}, 1, v{vG}')
A(f'v_lshl_add_u32 v{vFs}, v{t0}, 8, v{vFs}')
A(f'v_lshrrev_b32 v{t0}, 1, v{vG}')
A(f'v_lshl_add_u32 v{vFs}, v{t0}, 6, v{vFs}')
A(f's_mul_i32 s{sT0}, s{sSET}, 12')
A(f's_add_u32 s{sT0}, s{sT0}, s{sW}')
A(f's_lshl_b32 s{sT0}, s{sT0}, 15')
A(f's_and_b32 s{sT1}, s{sI}, 15')
A(f's_lshl_b32 s{sT1}, s{sT1}, 9')
A(f's_add_u32 s{sT0}, s{sT0}, s{sT1}')
A(f's_lshr_b32 s{sT1}, s{sI}, 4')
A(f's_lshl_b32 s{sT1}, s{sT1}, 7')
A(f's_add_u32 s{sT0}, s{sT0}, s{sT1}')
A(f's_add_u32 s{sT0}, s{sT0}, {WS_FT}')
A(f'v_add_u32 v{vFs}, s{sT0}, v{vFs}')
A(f's_lshl_b32 s{sT1}, s{sFS}, 14')
A(f's_cmp_eq_u32 s{sHASF}, 1')
A(f's_cselect_b32 s{sT1}, s{sT1}, 0x40000000')
A(f's_lshl_b32 s{sT0}, s{sW}, 12')
A(f's_add_u32 s{sT1}, s{sT1}, s{sT0}')
A(f'v_add_u32 v{vFd}, s{sT1}, v{vL16}')
aFG, aFD = 192, 224
vOnes = VP.alloc(2, 2)
A(f'v_mov_b32 v{vOnes}, 0x3f803f80')
A(f'v_mov_b32 v{vOnes+1}, 0x3f803f80')
A(f'v_lshrrev_b32 v{t0}, 5, v0')
A(f'v_mul_u32_u24 v{t0}, {HST}, v{t0}')
A(f'v_and_b32 v{t1}, 31, v0')
A(f'v_lshl_add_u32 v{t0}, v{t1}, 2, v{t0}')
A(f'v_add_u32 v{t0}, {L_HA + 1024}, v{t0}')
A(f'ds_write2_b32 v{t0}, v{vOnes}, v{vOnes} offset0:0 offset1:32')
vQ4 = VP.alloc(); vG16 = VP.alloc(); vGm = VP.alloc()
A(f'v_lshlrev_b32 v{vQ4}, 2, v{vQ}')
A(f'v_add_u32 v{vQ4}, {L_TAB}, v{vQ4}')
A(f'v_lshlrev_b32 v{vG16}, 4, v{vG}')
A(f'v_add_u32 v{vG16}, {L_TAB}, v{vG16}')
A(f'v_mov_b32 v{t0}, 0')
A(f'ds_write2_b32 v{vQ4}, v{t0}, v{t0} offset0:0 offset1:80')
A(f'v_and_b32 v{t0}, 1, v{vG}')
A(f'v_lshlrev_b32 v{vGm}, 5, v{t0}')
A(f'v_lshrrev_b32 v{t1}, 1, v{vG}')
A(f'v_lshl_add_u32 v{vGm}, v{t1}, 4, v{vGm}')
vOst = VP.alloc()
A(f'v_lshlrev_b32 v{vOst}, 14, v{t0}')
A(f'v_lshl_add_u32 v{vOst}, v{t1}, 8, v{vOst}')
A(f'v_lshl_add_u32 v{vOst}, v{vQ}, 4, v{vOst}')
A(f's_lshl_b32 s{sT0}, s{sRB}, 16')
A(f's_lshl_b32 s{sT1}, s{sHG}, 11')
A(f's_add_u32 s{sT0}, s{sT0}, s{sT1}')
A(f's_lshl_b32 s{sT1}, s{sW}, 9')
A(f's_add_u32 s{sT0}, s{sT0}, s{sT1}')
A(f'v_add_u32 v{vOst}, s{sT0}, v{vOst}')
vA = VP.alloc(2); vH = VP.alloc(2)
A(f'v_lshrrev_b32 v{t0}, 1, v{vQ}')
A(f'v_xor_b32 v{t0}, v{vG}, v{t0}')
A(f'v_lshlrev_b32 v{t0}, 4, v{t0}')
A(f'v_lshl_add_u32 v{vA}, v{vQ}, 7, v{t0}')
A(f'v_and_b32 v{t1}, 1, v{vQ}')
A(f'v_lshlrev_b32 v{t1}, 7, v{t1}')
A(f'v_lshl_add_u32 v{t1}, v{vG}, 4, v{t1}')
A(f'v_add_u32 v{t1}, {L_HA + 1024}, v{t1}')
A(f'v_add_u32 v{t2}, {L_HA - 1024}, v{vA}')
A(f'v_cmp_lt_u32 vcc, 7, v{vQ}')
A(f'v_cndmask_b32 v{vH}, v{t1}, v{t2}, vcc')
A(f'v_xor_b32 v{vA+1}, 64, v{vA}')
A(f'v_xor_b32 v{vH+1}, 64, v{vH}')
vWr = V.alloc(); vBo = VP.alloc(4)
A(f'v_bfe_u32 v{t0}, v{vL}, 2, 2')
A(f'v_and_b32 v{t2}, 3, v{vL}')
A(f'v_lshlrev_b32 v{t2}, 3, v{t2}')
A(f'v_lshl_add_u32 v{t2}, v{t0}, 7, v{t2}')
A(f'v_lshrrev_b32 v{t0}, 1, v{t0}')
A(f'v_and_b32 v{t1}, 1, v{vG}')
A(f'v_lshl_or_b32 v{t0}, v{t1}, 1, v{t0}')
A(f'v_lshl_add_u32 v{t2}, v{t0}, 5, v{t2}')
A(f'v_lshl_add_u32 v{vBo}, v{vG}, 10, v{t2}')
A(f'v_add_u32 v{vBo}, {L_WO}, v{vBo}')
assert L_WO % 128 == 0 and L_W % 128 == 0
for t in range(1, 4): A(f'v_xor_b32 v{vBo+t}, {t << 5}, v{vBo}')
A(f's_lshl_b32 s{sT0}, s{sW}, 5')
A(f'v_xor_b32 v{t2}, s{sT0}, v{t2}')
A(f'v_mul_u32_u24 v{vWr}, 3072, v{vG}')
vWr15 = V.alloc()
A(f'v_add_u32 v{vWr15}, v{vWr}, v{t2}')
A(f'v_add_u32 v{vWr}, {L_W}, v{vWr15}')
assert L_W15 == 0
A(f's_lshl_b32 s{sOM}, s{sW}, 10')
A(f's_add_u32 s{sOM}, s{sOM}, {L_WO}')
vBP = VP.alloc(4, 2); vBC = VP.alloc(4, 2); vBP0 = VP.alloc(4, 2); vMP = VP.alloc(2)
A(f'v_lshlrev_b32 v{t0}, 2, v{vG}')
A(f'v_sub_u32 v{t0}, v{vQ}, v{t0}')
A(f'v_mov_b32 v{t2}, 0xff800000')
A(f's_cmp_eq_u32 s{sFIRST}, 1')
A(f's_cselect_b64 {sr(sM0,2)}, 0, -1')
for r in range(4):
    A(f'v_add_u32 v{t1}, {-r}, v{t0}')
    A(f'v_cmp_lt_u32 vcc, 7, v{t1}')
    A(f'v_cndmask_b32 v{vBC+r}, 0, v{t2}, vcc')
    A(f'v_cmp_lt_i32 vcc, -9, v{t1}')
    A(f'v_cndmask_b32 v{vBP+r}, 0, v{t2}, vcc')
    A(f'v_cndmask_b32 v{vBP0+r}, v{t2}, v{vBP+r}, {sr(sM0,2)}')
    A(f'v_mov_b32 v{t3}, {hex(0xffff0000 if r & 1 else 0xffff)}')
    if r & 1:
        A(f'v_cndmask_b32 v{t3}, v{t3}, 0, vcc')
        A(f'v_or_b32 v{vMP + (r >> 1)}, v{vMP + (r >> 1)}, v{t3}')
    else:
        A(f'v_cndmask_b32 v{vMP + (r >> 1)}, v{t3}, 0, vcc')
A(f's_mov_b32 s{sM0}, 0xaaaaaaaa')
A(f's_mov_b32 s{sM0+1}, 0xaaaaaaaa')
A(f's_mov_b32 s{sM1}, 0xcccccccc')
A(f's_mov_b32 s{sM1+1}, 0xcccccccc')
vS0 = V.alloc(); vS0w = V.alloc(); vPf = V.alloc(); vS4 = V.alloc(4, 2)
A(f's_lshl_b32 s{sT0}, s{sRB}, 10')
A(f's_add_u32 s{sT0}, s{sT0}, {WS_ST0 - 128}')
A(f'v_lshl_add_u32 v{vS0}, v0, 4, s{sT0}')
A(f's_lshl_b32 s{sT0}, s{sSET}, 12')
A(f's_add_u32 s{sT0}, s{sT0}, {WS_ST0}')
A(f'v_and_b32 v{t0}, 31, v{vL}')
A(f'v_lshl_add_u32 v{t0}, v{t0}, 7, s{sT0}')
A(f'v_cmp_le_u32 vcc, 128, v0')
A(f'v_cndmask_b32 v{vS0}, v{vS0}, v{t0}, vcc')
A(f'v_lshlrev_b32 v{vS0w}, 2, v0')
A(f'v_add_u32 v{vS0w}, {L_TAB + 32}, v{vS0w}')
vPf2 = V.alloc()
A(f's_mul_i32 s{sT0}, s2, 5120')
A(f's_add_u32 s{sT0}, s{sT0}, {WS_SENT}')
A(f'v_lshl_add_u32 v{vPf}, v0, 4, s{sT0}')
A(f's_lshl_b32 s{sT1}, s{sW}, 8')
A(f's_add_u32 s{sT0}, s{sT0}, s{sT1}')
A(f's_add_u32 s{sT0}, s{sT0}, 4096')
A(f'v_lshl_add_u32 v{t0}, v{vQ}, 4, s{sT0}')
A(f's_lshl_b32 s{sSTB}, s{sRB}, 2')
A(f's_add_u32 s{sSTB}, s{sSTB}, s{sW}')
A(f'v_mov_b32 v{t1}, 0x40000000')
A(f'v_cmp_gt_u32 vcc, 16, v{vL}')
A(f'v_cndmask_b32 v{vPf2}, v{t1}, v{t0}, vcc')
vTs = V.alloc()
A(f'v_mov_b32 v{vTs}, v{t1}')
A(f's_lshl_b32 s{sT0}, s{sSTB}, 11')
A(f's_lshl_b32 s{sT1}, s{sHG}, 8')
A(f's_add_u32 s{sT0}, s{sT0}, s{sT1}')
for n, off in enumerate((0, 128, 1 << 18, (1 << 18) + 128)):
    A(f's_add_u32 s{sT1}, s{sT0}, {WS_ST + off}')
    A(f'v_writelane_b32 v{vTs}, s{sT1}, {16 + n}')
A(f's_lshl_b32 s{sT0}, s{sRB}, 9')
for n, off in enumerate((0, 128, 1 << 14, (1 << 14) + 128)):
    A(f's_add_u32 s{sT1}, s{sT0}, {WS_FL + off}')
    A(f'v_writelane_b32 v{vTs}, s{sT1}, {20 + n}')
for n, off in enumerate((0, 128, 256)):
    A(f's_add_u32 s{sT1}, s{sT0}, {WS_X1F + off}')
    A(f'v_writelane_b32 v{vTs}, s{sT1}, {27 + n}')
A(f's_lshl_b32 s{sT0}, s{sSET}, 12')
A(f's_lshl_b32 s{sT1}, s{sI}, 5')
A(f's_add_u32 s{sT0}, s{sT0}, s{sT1}')
A(f's_add_u32 s{sT0}, s{sT0}, {WS_HELLO + 2048}')
A(f'v_writelane_b32 v{vTs}, s{sT0}, 25')
for r in range(4): A(f'v_mov_b32 v{vS4+r}, -1')
A(f'buffer_load_dword v{vDum}, v{vTs}, {srd(SRD_WS)}, 0 offen sc1', tag='to')
s12 = V.alloc(4, 2); gr = V.alloc(4, 2)
A(f'v_mov_b32 v{s12}, 0')
A(f'v_mov_b32 v{s12+1}, 0')
A(f's_getreg_b32 s{sTAGB}, hwreg(HW_REG_XCC_ID)')
A(f's_and_b32 s{sTAGB}, s{sTAGB}, 15')
A(f's_lshl_b32 s{sT2}, s{sRB}, 3')
A(f's_add_u32 s{sT2}, s{sT2}, s{sHG}')
A(f's_lshl_b32 s{sT2}, s{sT2}, 2')
A(f's_add_u32 s{sT2}, s{sT2}, s{sW}')
A(f's_lshl_b32 s{sT2}, s{sT2}, 5')
A(f's_add_u32 s{sT2}, s{sT2}, {WS_ST0}')
A(f'v_lshrrev_b32 v{t1}, 1, v{vL}')
A.wait_vm('srow', 'lgkmcnt(0)')
stamp()
g1 = []; g2 = []
for hh in stage_dma(1): g1 += [hh[:3], hh[3:6], hh[6:7], hh[7:8]]
for hh in stage_dma(2): g2 += [hh[:3], hh[3:6], hh[6:7], hh[7:8]]
A.sprinkle = (g1, 2 if 'stlate' in OPT else 4, emit)
for j in range(8):
    A(f'v_dot2c_f32_bf16 v{s12}, v{srow+j}, v{vOnes}')
    A(f'v_dot2c_f32_bf16 v{s12+1}, v{srow+j}, v{srow+j}')
if 'stlate' in OPT:
    A.sprinkle = None
    for g_ in g1:
        for x in g_: emit(x)
    save = A.lines; vmsave = list(A.vm); A.lines = []
    A(f's_mul_i32 s{sTAG}, s{sTAG}, 0x9e3779b1')
    A(f's_add_u32 s{sTAG}, s{sTAG}, 0x7f4a7c15')
    A(f's_mul_i32 s{sT0}, s{sTAG}, 0x85ebca6b')
    for sh in (8, 4, 2, 1):
        for r in range(2): A(f'v_add_f32_dpp v{s12+r}, v{s12+r}, v{s12+r} row_ror:{sh} {DP}')
        if sh == 8: A(f's_brev_b32 s{sT0}, s{sT0}')
        if sh == 4: A(f's_and_b32 s{sT0}, s{sT0}, 0xfffffff0')
        if sh == 2: A(f's_or_b32 s{sTAGB}, s{sTAGB}, s{sT0}')
    for r in range(2): A(f'v_mov_b32 v{s12+2+r}, v{s12+r}')
    A(f'v_mov_b32 v{gr+2}, s{sTAG}')
    for r in range(2): A(f'v_permlane16_swap_b32 v{s12+r}, v{s12+2+r}')
    for r in range(2): A(f'v_add_f32 v{s12+r}, v{s12+r}, v{s12+2+r}')
    ln_params(s12, s12 + 1, s12 + 2, s12 + 3, gr, gr + 1, t0)
    A(f'v_xor_b32 v{gr}, 0x80000000, v{gr}')
    A(f'v_mov_b32 v{gr+3}, s{sTAGB}')
    A('s_mov_b32 exec_lo, 1')
    A('s_mov_b32 exec_hi, 1')
    A(f'buffer_store_dwordx4 {vr(gr,4)}, v{t1}, {srd(SRD_WS)}, s{sT2} offen sc1', tag='st0')
    A('s_mov_b64 exec, -1')
    st_lines = [l.text for l in A.lines if l.op != 's_nop']; A.lines = save; A.vm = vmsave
else:
    A(f's_mul_i32 s{sTAG}, s{sTAG}, 0x9e3779b1')
    A(f's_add_u32 s{sTAG}, s{sTAG}, 0x7f4a7c15')
    A(f's_mul_i32 s{sT0}, s{sTAG}, 0x85ebca6b')
    for sh in (8, 4, 2, 1):
        for r in range(2): A(f'v_add_f32_dpp v{s12+r}, v{s12+r}, v{s12+r} row_ror:{sh} {DP}')
        if sh == 8: A(f's_brev_b32 s{sT0}, s{sT0}')
        if sh == 4: A(f's_and_b32 s{sT0}, s{sT0}, 0xfffffff0')
        if sh == 2: A(f's_or_b32 s{sTAGB}, s{sTAGB}, s{sT0}')
    for r in range(2): A(f'v_mov_b32 v{s12+2+r}, v{s12+r}')
    A(f'v_mov_b32 v{gr+2}, s{sTAG}')
    for r in range(2): A(f'v_permlane16_swap_b32 v{s12+r}, v{s12+2+r}')
    for r in range(2): A(f'v_add_f32 v{s12+r}, v{s12+r}, v{s12+2+r}')
    ln_params(s12, s12 + 1, s12 + 2, s12 + 3, gr, gr + 1, t0)
    A(f'v_xor_b32 v{gr}, 0x80000000, v{gr}')
    A(f'v_mov_b32 v{gr+3}, s{sTAGB}')
    A.sprinkle = None
    assert not g1
    A('s_mov_b32 exec_lo, 1')
    A('s_mov_b32 exec_hi, 1')
    A(f'buffer_store_dwordx4 {vr(gr,4)}, v{t1}, {srd(SRD_WS)}, s{sT2} offen sc1', tag='st0')
    A('s_mov_b64 exec, -1')
V.release(srow, 8)

accQ = V.take(196, 20); accK = V.take(216, 20); accV = V.take(236, 20)
fr = [V.alloc(20, 2), V.alloc(20, 2)]
xP = VP.alloc(8, 2)
aux = VP.alloc(8, 2)
vSW = VP.alloc()
def aW(ks, m): return (ks * 3 + m) * 4
def x_reads(ks, b):
    u = ks & 1; kc = ks >> 1
    return [f'ds_read_b128 {vr(b, 4)}, v{vH+u} offset:{kc * HST}'] + \
           [f'ds_read_b128 {vr(b + 4 + 4 * T, 4)}, v{vA+u} offset:{(kc * 8 + 2 * T) * 1024}' for T in range(4)]
def p1_reads(ks):
    so = SLOT[(ks >> 1) % 3] + (ks & 1) * 12288
    if ks == 15: so = 0
    W_ = [f'ds_read_b64_tr_b16 {ar(aW(ks, m) + 2 * h, 2)}, v{vWr15 if ks == 15 else vWr} offset:{so + m * 1024 + h * 512}' for m in range(3) for h in range(2)]
    X_ = x_reads(ks, fr[ks & 1])
    return W_[:2] + X_[:1] + W_[2:] + X_[1:]
def p1_mfmas(ks):
    b = fr[ks & 1]; L = []
    c = lambda x: '0' if ks == 0 else vr(x, 4)
    for T in range(5):
        X = vr(b + 4 * T, 4)
        L.append(mf(vr(accQ + 4 * T, 4), ar(aW(ks, 0), 4), X, c(accQ + 4 * T)))
        L.append(mf(vr(accK + 4 * T, 4), ar(aW(ks, 1), 4), X, c(accK + 4 * T)))
        L.append(mf(vr(accV + 4 * T, 4), X, ar(aW(ks, 2), 4), c(accV + 4 * T)))
    return L
def wo_dma(kss):
    L = []
    for ks in kss:
        L += [f's_add_u32 m0, s{sOM}, {wo_off(ks)}', f's_mov_b32 s{sT3}, {ks * 32768}',
              (f'buffer_load_dwordx4 v{vWo}, {srd(SRD_W)}, s{sT3} offen lds', 'wo')]
    return L
def hello():
    A('s_mov_b64 exec, 1')
    A(f'buffer_store_dwordx2 {vr(gr+2,2)}, v{vPf}, {srd(SRD_WS)}, s{sU2} offen sc1')
    A('s_mov_b64 exec, -1')
def srd_lines(d, ptr, size):
    return [f's_mov_b32 s{d}, s{ptr}', f's_and_b32 s{d+1}, s{ptr+1}, 0xffff', f's_mov_b32 s{d+2}, {size}', f's_mov_b32 s{d+3}, 0x20000']
s0g = V.alloc(4, 2)
extra = {ks: [] for ks in range(16)}
for g_ in g2: extra[0] += g_
for s in range(5):
    H = stage_dma(s + 3); extra[2 * s + 1] += H[0]; extra[2 * s + 2] += H[1]
extra[11] += [(f'buffer_store_dwordx4 {vr(vS4,4)}, v{vPf}, {srd(SRD_WS)}, 0 offen sc1', 'pre'),
              (f'buffer_store_dwordx4 {vr(vS4,4)}, v{vPf2}, {srd(SRD_WS)}, 0 offen sc1', 'pre'),
              (f'buffer_load_dwordx4 {vr(s0g,4)}, v{vS0}, {srd(SRD_WS)}, 0 offen sc1', 's0g')]
extra[12] += [f's_lshl_b32 s{sU2}, s{sSET}, 9', f's_add_u32 s{sU2}, s{sU2}, s{sI}', f's_lshl_b32 s{sU2}, s{sU2}, 3',
              f's_add_u32 s{sU2}, s{sU2}, {WS_HELLO}', f's_lshl_b32 s{sT0}, s{sW}, 30', f'v_mov_b32 v{vPf}, s{sT0}']
if 'stlate' in OPT:
    tailn = st_lines[-4:]; st_lines = st_lines[:-4]
    nh = len(st_lines) // 2
    valu_extra = {1: st_lines[:nh], 2: st_lines[nh:]}
    extra[3] = [lambda: [A(x) for x in tailn]] + extra[3]
else: valu_extra = {}
vRs = V.alloc(2)
def res_read(early):
    def f():
        L = A.newlabel('L_res')
        A(f's_cmp_lt_u32 s{sHG}, 5')
        A(f's_cbranch_scc{0 if early else 1} {L}')
        A(f'ds_read_b128 {vr(xP,4)}, v{vRs}')
        A(f'ds_read_b128 {vr(xP+4,4)}, v{vRs+1}')
        A.label(L)
    return f
extra[0] += [f'v_lshlrev_b32 v{t0}, 3, v{vQ}', f'v_and_b32 v{t0}, 0x70, v{t0}', f'v_xor_b32 v{t0}, v{t0}, v{vGm}',
             f'v_lshl_add_u32 v{t0}, v{vQ}, 7, v{t0}', f's_lshl_b32 s{sT0}, s{sHG}, 13', f's_add_u32 s{sT0}, s{sT0}, s{sAM}',
             f'v_add_u32 v{vRs}, s{sT0}, v{t0}', f'v_xor_b32 v{vRs+1}, 64, v{vRs}']
extra[8] += [res_read(True)]
ft_dma = []
for n in range(3):
    ft_dma += [f's_sub_u32 m0, s{sWM}, {L_W - L_FT - n * 1024}', (f'buffer_load_dwordx4 v{vFp+n}, {srd(SRD_T)}, 0 offen lds', 'ft')]
wd_dma = [f's_lshl_b32 s{sT0}, s{sW}, 12', f's_add_u32 m0, s{sT0}, {L_WD}'] + \
         [(f'buffer_load_dwordx4 v{vFd}, {srd(SRD_U)}, 0 offen offset:{f * 1024} lds', 'wd') for f in range(4)]
extra[11] += srd_lines(SRD_W, P_WO, 512 * 1024)
aux_ld = [f's_lshl_b32 s{sT0}, s{sHG}, 7', f'buffer_load_dwordx4 {vr(aux,4)}, v{vGm}, {srd(SRD_X)}, s{sT0} offen',
          f'buffer_load_dwordx4 {vr(aux+4,4)}, v{vGm}, {srd(SRD_X)}, s{sT0} offen offset:64',
          f'buffer_load_dwordx4 {vr(wra,4)}, v{vL16}, {srd(SRD_X)}, 0 offen']
wd_touch = [(f'buffer_load_dword v{vDum}, v{vDt}, {srd(SRD_U)}, 0 offen', 'to')]
if 'wdnew' not in OPT and 'lean' not in OPT and 'lean2' not in OPT:
    extra[11] += wo_dma([0]); extra[12] += wo_dma([1, 2, 3, 4]); extra[13] += wo_dma([5, 12, 13, 14]); extra[14] += wo_dma([15]) + ft_dma; extra[15] += wd_dma
    wo_rest = [6, 7, 8, 9, 10, 11]; wd_late = []
elif 'lean' in OPT:
    extra[12] += wo_dma([0, 1, 2]); extra[13] += wo_dma([3, 4, 5]); extra[14] += wd_touch + ft_dma
    wo_rest = [6, 7, 8, 9, 10, 11, 12, 13, 14, 15]; wd_late = wd_dma
elif 'lean2' in OPT:
    extra[12] += wo_dma([0, 1, 2]); extra[13] += wo_dma([3, 4, 5]); extra[14] += wo_dma([6, 7, 8]); extra[15] += wd_touch + ft_dma
    wo_rest = [9, 10, 11, 12, 13, 14, 15]; wd_late = wd_dma
else:
    extra[11] += wo_dma([0]); extra[12] += wo_dma([1, 2, 3, 4]); extra[13] += wo_dma([5, 12, 13, 14]); extra[14] += wo_dma([15]) + wd_touch + ft_dma
    wo_rest = [6, 7, 8, 9, 10, 11]; wd_late = wd_dma
extra[12] += srd_lines(SRD_X, P_WR, 1024)
extra[15] += [res_read(False)]
def drop(L, key): return [x for x in L if not (isinstance(x, tuple) and x[1] == key)]
for key in ('pre', 'wo', 'ft', 'wd', 'to'):
    if 'x' + key in OPT:
        for ks in extra: extra[ks] = drop(extra[ks], key)
A.wait_vm('S0', 'lgkmcnt(0)')
A('s_barrier')
stamp()
for x in p1_reads(0): A(x)
for ks in range(16):
    A('s_waitcnt lgkmcnt(0)')
    if 'loopstamps' in OPT and ks % 2 == 0 and ks: stamp()
    M = p1_mfmas(ks)
    A(M[0])
    if ks & 1 and ks < 15:
        if not ('nodma' in OPT and ks > 1): A.wait_vm(f'S{(ks + 1) >> 1}')
        if 'nobar' not in OPT: A('s_barrier')
    rd = p1_reads(ks + 1) if ks < 15 else []
    if 'nord' in OPT: rd = []
    if 'notr' in OPT: rd = [x for x in rd if '_tr_' not in x]
    if 'nob128' in OPT: rd = [x for x in rd if '_tr_' in x]
    ex = list(extra[ks])
    if 'nodma' in OPT: ex = [x for x in ex if not (isinstance(x, tuple) and x[0].endswith(' lds'))]
    isvm = lambda x: callable(x) or (x[0] if isinstance(x, tuple) else x).startswith('buffer_')
    nvm = sum(map(isvm, ex)); gaps = len(M) - 1
    slots = [int((j + 0.5) * gaps / nvm) for j in range(nvm)] if nvm else []
    groups = []; cur = []
    for x in ex:
        cur.append(x)
        if isvm(x): groups.append(cur); cur = []
    tail_ = cur
    place = {gi: [] for gi in range(gaps)}
    prev = -1
    for j, grp in enumerate(groups):
        lo = prev + 1 if prev + 1 <= slots[j] else slots[j]
        pre = grp[:-1]
        span = slots[j] - lo + 1
        for n_, x in enumerate(pre): place[lo + n_ * span // max(1, len(pre))].append(x)
        place[slots[j]].append(grp[-1]); prev = slots[j]
    lo = min(prev + 1, gaps - 1); span = gaps - lo
    for n_, x in enumerate(tail_): place[lo + n_ * span // len(tail_)].append(x)
    for mi, m in enumerate(M[1:]):
        A(m)
        if rd: A(rd.pop(0))
        for x in place[mi]: emit(x)
        ve = valu_extra.get(ks, [])
        for _ in range(-(-len(ve) // (gaps - mi))): A(ve.pop(0))
stamp()
for b in fr: V.release(b, 20)
V.release(s12, 4); V.release(vWr); V.release(vWr15); V.release(vRs, 2); V.release(vWd); V.release(vDt); V.release(vPf2); V.release(vTs); V.release(vS4, 4)
Ls0 = A.newlabel('L_s0'); Ls0ok = A.newlabel('L_s0ok')
A(f's_lshl_b32 s{sT0}, s{sFIRST}, 3')
A(f'v_subrev_u32 v{t2}, s{sT0}, v0')
A(f's_sub_u32 s{sT0}, 72, s{sT0}')
A(f'v_cmp_gt_u32 {sr(sT4,2)}, s{sT0}, v{t2}')
A(f's_cmp_eq_u32 s{sW}, 2')
A(f's_cselect_b64 {sr(sU0,2)}, -1, {sr(sT4,2)}')
A(f's_mov_b32 s{sGUARD}, 20000')
A.wait_vm('s0g')
A.label(Ls0)
A(f'v_xor_b32 v{t0}, s{sTAG}, v{s0g+2}')
A(f'v_xor_b32 v{t1}, s{sTAGB}, v{s0g+3}')
A(f'v_lshrrev_b32 v{t3}, 4, v{t1}')
A(f'v_or_b32 v{t0}, v{t0}, v{t3}')
A(f'v_cmp_ne_u32 vcc, 0, v{t0}')
A(f's_and_b64 vcc, vcc, {sr(sU0,2)}')
A(f's_cbranch_vccz {Ls0ok}')
A(f'buffer_load_dwordx4 {vr(s0g,4)}, v{vS0}, {srd(SRD_WS)}, 0 offen sc1'); A.vm.pop()
A('s_waitcnt vmcnt(0)')
A(f's_sub_u32 s{sGUARD}, s{sGUARD}, 1')
A(f's_cbranch_scc0 {Ls0}')
A.label(Ls0ok)
A(f's_mov_b64 exec, {sr(sT4,2)}')
A(f'ds_write2_b32 v{vS0w}, v{s0g}, v{s0g+1} offset0:0 offset1:80')
A('s_mov_b64 exec, -1')
A(f'ds_write_b32 v{vS0w}, v{t1} offset:{640 - 32}')
V.release(s0g, 4); V.release(vS0); V.release(vS0w)
csQ = VP.alloc(4, 2); csK = VP.alloc(4, 2); csV = VP.alloc(2, 2)
for r in range(4):
    A(f'v_mov_b32_dpp v{csQ+r}, v{accQ+r} row_newbcast:0 {DP}')
    A(f'v_mov_b32_dpp v{csK+r}, v{accK+r} row_newbcast:0 {DP}')
A(f'v_mov_b32 v{csV}, v{accV}')
A(f'v_mov_b32 v{csV+1}, v{accV}')
A(f'v_lshlrev_b32 v{t0}, 2, v{vL}')
A(f'v_permlane32_swap_b32 v{csV}, v{csV+1}')
A(f'v_add_u32 v{t0}, {L_CS + 512}, v{t0}')
A('s_waitcnt lgkmcnt(0)')
A('s_barrier')
A(f'ds_read_b32 v{vDum}, v{t0}')
epi_ins = [[hello]] + ([] if 'v1' in OPT else [[]] * 8 + [aux_ld[:2], aux_ld[2:3], aux_ld[3:]])
SPIN = 20000
def fine():
    if 'fine' in OPT: stamp()
def poll(issue, check, name):
    L = A.newlabel('L_poll'); E = A.newlabel('L_ok')
    A(f's_mov_b32 s{sGUARD}, {SPIN}')
    A.label(L)
    issue()
    A.wait_vm0()
    check()
    A(f's_cbranch_vccz {E}')
    backoff(name)
    A(f's_sub_u32 s{sGUARD}, s{sGUARD}, 1')
    A(f's_cbranch_scc0 {L}')
    A.label(E)
def backoff(name):
    n = int(next((x.split('=')[1] for x in OPT if x.startswith('sl' + name + '=')), next((x[3:] for x in OPT if x.startswith('sl=')), '0')))
    if n: A(f's_sleep {n}')
def repoll(issue, check, name):
    L = A.newlabel('L_rp'); E = A.newlabel('L_ok')
    A(f's_mov_b32 s{sGUARD}, {SPIN}')
    A.label(L)
    A.wait_vm0()
    check()
    A(f's_cbranch_vccz {E}')
    backoff(name)
    issue(); A.vm = []
    A(f's_sub_u32 s{sGUARD}, s{sGUARD}, 1')
    A(f's_cbranch_scc0 {L}')
    A.label(E)
PD = int(next((x[3:] for x in OPT if x.startswith('pd=')), '3'))
def ppoll(issue, check, nld, depth=None, pre=0, gap=7):
    D = depth or PD
    L = A.newlabel('L_pp'); E = A.newlabel('L_ok')
    A(f's_mov_b32 s{sGUARD}, {SPIN}')
    for j in range(pre, D):
        if j and gap: A(f's_nop {gap}'); A(f's_nop {gap}'); A(f's_nop {gap}')
        issue(j)
    A.label(L)
    for j in range(D):
        A(f's_waitcnt vmcnt({(D - 1) * nld})')
        check(j)
        A(f's_cbranch_vccz {E}')
        issue(j)
    A(f's_sub_u32 s{sGUARD}, s{sGUARD}, 1')
    A(f's_cbranch_scc0 {L}')
    A.label(E)
    A.vm = []
def local_stores(lines):
    R = A.newlabel('L_rem'); E = A.newlabel('L_st')
    A(f's_cmp_eq_u32 s{sLOCAL}, 0')
    A(f's_cbranch_scc1 {R}')
    for l in lines: A(l)
    A.label(E)
    A('s_nop 0')
    far.append((R, E, lines))
far = []
def emit_far():
    for R, E, lines in far:
        A.label(R)
        for l in lines:
            A(l + (' sc1' if l.startswith('buffer_') else ''))
        A(f's_branch {E}')
def skip_unless(cond_lines):
    E = A.newlabel('L_sk')
    for l in cond_lines: A(l)
    A(f's_cbranch_scc1 {E}')
    return E
def if_layer(n): return skip_unless([f's_cmp_lg_u32 s{sLAYER}, {n}'])
def if_wave(n): return skip_unless([f's_cmp_lg_u32 s{sW}, {n}'])
def if_ffn(): return skip_unless([f's_cmp_eq_u32 s{sHASF}, 0'])
def endif(E, pad=True):
    A.label(E)
    if pad: A('s_nop 1')
def tag_check(r):
    A(f'v_xor_b32 v{r+1}, s{sTAGB}, v{r+1}')
    A(f'v_xor_b32 v{r}, s{sTAG}, v{r}')
    A(f'v_lshrrev_b32 v{r+1}, 4, v{r+1}')
    A(f'v_or_b32 v{r}, v{r}, v{r+1}')
    A(f'v_cmp_ne_u32 vcc, 0, v{r}')

QSC = 0.25 * 1.4426950408889634
hV = V.take(176, 10); mxc = V.take(186, 8)
hQ = lambda T: accQ + 4 * (T + 1)
hK = lambda T: accK + 4 * (T + 1)
def s_mfmas(T, Sp, Sc):
    return [mf(vr(Sp + 4 * T, 4), vr(hK(T - 1), 2), vr(hQ(T), 2), vr(vBP0 if T == 0 else vBP, 4), False),
            mf(vr(Sc + 4 * T, 4), vr(hK(T), 2), vr(hQ(T), 2), vr(vBC, 4), False)]
def attention(pre):
    Sp = V.alloc(16, 2); Sc = V.alloc(16, 2); mx = V.alloc(4); pk = V.alloc(8, 2); Ls = accV
    pre = list(pre)
    for T in (1, 2, 3, 0):
        for m_ in s_mfmas(T, Sp, Sc):
            A(m_)
            for _ in range(2):
                if pre: A(pre.pop(0))
    while pre: A(pre.pop(0))
    for T in (1, 2, 3, 0):
        for r in range(4):
            A(f'v_max_f32 v{Sc+4*T+r}, v{Sp+4*T+r}, v{Sc+4*T+r}')
        A(f'v_max3_f32 v{mx+T}, v{Sc+4*T}, v{Sc+4*T+1}, v{Sc+4*T+2}')
        A(f'v_max_f32 v{mx+T}, v{mx+T}, v{Sc+4*T+3}')
    prs = [(mx + 1, mx + 2), (mx + 3, mx)]
    for a_, b_ in prs: A(f'v_permlane16_swap_b32 v{a_}, v{b_}')
    for a_, b_ in prs: A(f'v_max_f32 v{a_}, v{a_}, v{b_}')
    for a_, b_ in prs: A(f'v_mov_b32 v{b_}, v{a_}')
    for a_, b_ in prs: A(f'v_permlane32_swap_b32 v{a_}, v{b_}')
    for a_, b_ in prs: A(f'v_max_f32 v{a_}, v{a_}, v{b_}')
    for a_, b_ in prs: A(f'v_mov_b32 v{b_}, v{a_}')
    for a_, b_ in prs: A(f'v_permlane16_swap_b32 v{a_}, v{b_}')
    for T in range(4):
        A(f'v_mul_f32 v{mxc+2*T+1}, v{mx+T}, v{mxc+2*T}')
    for T in range(4):
        for h in range(2):
            A(f'v_pk_fma_f32 {vr(Sc+4*T+2*h,2)}, {vr(Sc+4*T+2*h,2)}, {vr(mxc+2*T,2)}, {vr(mxc+2*T,2)} op_sel:[0,0,1] op_sel_hi:[1,0,1] neg_lo:[0,0,1] neg_hi:[0,0,1]')
    pend = []
    for T in range(4):
        for r in range(4):
            A(f'v_exp_f32 v{Sc+4*T+r}, v{Sc+4*T+r}')
            if pend and r in (0, 2): A(pend.pop(0))
        for h in range(2):
            A(f'v_cvt_pk_bf16_f32 v{pk+2*T+h}, v{Sc+4*T+2*h}, v{Sc+4*T+2*h+1}')
        for h in range(2):
            A(f'v_and_b32 v{Sp+4*T+h}, v{pk+2*T+h}, v{vMP+h}')
        for h in range(2):
            A(f'v_xor_b32 v{Sp+4*T+2+h}, v{pk+2*T+h}, v{Sp+4*T+h}')
        pend = [mf(vr(Ls + 4 * T, 4), vr(vOnes, 2), vr(pk + 2 * T, 2), '0', False),
                mf(vr(Sc + 4 * T, 4), vr(hV + 2 * T, 4), vr(Sp + 4 * T, 4), '0')]
    A(pend.pop(0))
    A(f'v_rcp_f32 v{Ls}, v{Ls}')
    A(pend.pop(0))
    for T in (1, 2): A(f'v_rcp_f32 v{Ls+4*T}, v{Ls+4*T}')
    for T in range(4):
        if T == 3: A(f'v_rcp_f32 v{Ls+12}, v{Ls+12}')
        if T == 2:
            for h in range(2): A(f'v_permlane16_swap_b32 v{oP+h}, v{oP+2+h}')
        for h in range(2):
            A(f'v_pk_mul_f32 {vr(Sc+4*T+2*h,2)}, {vr(Sc+4*T+2*h,2)}, {vr(Ls+4*T,2)} op_sel_hi:[1,0]')
        for h in range(2):
            A(f'v_cvt_pk_bf16_f32 v{oP+2*T+h}, v{Sc+4*T+2*h}, v{Sc+4*T+2*h+1}')
    for h in range(2): A(f'v_permlane16_swap_b32 v{oP+4+h}, v{oP+6+h}')
    V.release(Sp, 16); V.release(Sc, 16); V.release(mx, 4); V.release(pk, 8)
def norm_pk(T, rpp, vmm, vcc_):
    aq, ak, av = accQ + 4 * (T + 1), accK + 4 * (T + 1), accV + 4 * (T + 1)
    for h in range(2):
        if T >= 0:
            A(f'v_pk_fma_f32 {vr(aq+2*h,2)}, {vr(csQ+2*h,2)}, {vr(rpp,2)}, {vr(aq+2*h,2)} op_sel_hi:[1,0,1]')
        A(f'v_pk_fma_f32 {vr(ak+2*h,2)}, {vr(csK+2*h,2)}, {vr(rpp,2)}, {vr(ak+2*h,2)} op_sel_hi:[1,0,1]')
        A(f'v_pk_fma_f32 {vr(av+2*h,2)}, {vr(vmm+2*h,2)}, {vr(csV,2)}, {vr(av+2*h,2)} op_sel_hi:[1,0,1]')
    for h in range(2):
        A(f'v_pk_mul_f32 {vr(ak+2*h,2)}, {vr(ak+2*h,2)}, {vr(rpp,2)} op_sel:[0,1] op_sel_hi:[1,1]')
        A(f'v_pk_mul_f32 {vr(av+2*h,2)}, {vr(av+2*h,2)}, {vr(vcc_+2*h,2)}')
def pack2(dst, src): return [f'v_cvt_pk_bf16_f32 v{dst+h}, v{src+2*h}, v{src+2*h+1}' for h in range(2)]
def epilogue(first):
    rp = V.alloc(10, 2); vm = V.alloc(20, 2); vc = V.alloc(20, 2)
    for T in range(5):
        A(f'ds_read2_b32 {vr(rp + 2 * T, 2)}, v{vQ4} offset0:{16 * T} offset1:{80 + 16 * T}')
        A(f'ds_read_b128 {vr(vm + 4 * T, 4)}, v{vG16} offset:{64 * T}')
        A(f'ds_read_b128 {vr(vc + 4 * T, 4)}, v{vG16} offset:{320 + 64 * T}')
    A.sprinkle = (epi_ins, 12, emit)
    for T in range(5):
        A(f's_waitcnt lgkmcnt({12 - 3 * T})')
        if T == 0: A(f'v_cmp_ne_u32 vcc, 0, v{vDum}')
        norm_pk(T - 1, rp + 2 * T, vm + 4 * T, vc + 4 * T)
        for x in pack2(hK(T - 1), hK(T - 1)) + (pack2(hQ(T - 1), hQ(T - 1)) if T else []): A(x)
        if T == 0:
            sp = A.sprinkle; A.sprinkle = None
            A(f's_cmp_eq_u64 vcc, 0')
            A(f's_cselect_b32 s{sLOCAL}, {0 if FORCE_REMOTE else 1}, 0')
            A.sprinkle = sp
    pre = [f'v_mul_f32 v{mxc+2*T}, {hex(f2u(QSC))}, v{rp+2*T+3}' for T in range(4)]
    for T in range(5): pre += pack2(hV + 2 * T, accV + 4 * T)
    V.release(vm, 20); V.release(vc, 20)
    attention(pre)
    sp = A.sprinkle; A.sprinkle = None
    for grp in sp[0]:
        for x in grp: emit(x)
    V.release(rp, 10)
    V.release(accQ, 20); V.release(accK, 20); V.release(accV, 20); V.release(hV, 10); V.release(mxc, 8)
epilogue(True)
V.release(vPf); V.release(gr, 4); V.release(vFp, 3)

(aFLp, aFLs, aSTp, aSTs, aKEYs, aKEYp, aCANDs, aCANDb, aYPs, aYPb, aXs, aX1Fp, aX1Fs, aFTFs, aFTFp, aFT, aROW, aOUT) = range(28, 46)
A(f's_lshl_b32 s{aFLp}, s{sRB}, 9')
A(f's_add_u32 s{aFLp}, s{aFLp}, {WS_FL}')
tg = VP.alloc(2, 2)
vRow = VP.alloc(); vXs = VP.alloc(); vStash = VP.alloc(); vQ16 = VP.alloc(); vL8 = VP.alloc(); vO4 = VP.alloc(2)
A.label('L_pub')
stamp()
A(f's_mov_b32 s{sT0}, 32768')
A(f's_and_b32 s{sT1}, s{sLOCAL}, s{sLAYER}')
A(f's_cbranch_scc0 L_opr')
A(f'buffer_store_dwordx4 {vr(oP,4)}, v{vOst}, {srd(SRD_WS)}, 0 offen')
A(f'buffer_store_dwordx4 {vr(oP+4,4)}, v{vOst}, {srd(SRD_WS)}, s{sT0} offen')
A.label('L_opd')
far.append(('L_opr', 'L_opd', [f'buffer_store_dwordx4 {vr(oP,4)}, v{vOst}, {srd(SRD_WS)}, 0 offen',
                               f'buffer_store_dwordx4 {vr(oP+4,4)}, v{vOst}, {srd(SRD_WS)}, s{sT0} offen']))
acc = V.alloc(16, 2); oF = V.alloc(64, 2); bR = V.alloc(64, 2)
for a_ in (0, 1, 4, 5): A(f'v_permlane16_swap_b32 v{xP+a_}, v{xP+a_+2}')
for j in range(8):
    A(f'v_lshlrev_b32 v{acc+2*j}, 16, v{xP+j}')
    A(f'v_and_b32 v{acc+2*j+1}, 0xffff0000, v{xP+j}')
def b_read(ks, t, h): return f'ds_read_b64_tr_b16 {vr(bR + ((ks & 3)*4 + t)*4 + 2*h, 2)}, v{vBo+t} offset:{wo_off(ks) + h*512}'
def b_read_a(ks, t, h): return f'ds_read_b64_tr_b16 {ar(((ks - 4)*4 + t)*4 + 2*h, 2)}, v{vBo+t} offset:{wo_off(ks) + h*512}'
fl = V.alloc(2, 2)
fl_issue = lambda: A(f'buffer_load_dwordx2 {vr(fl,2)}, v{vL8}, {srd(SRD_WS)}, s{aFLp} offen sc1')
def o_flag(n=0):
    A(f's_waitcnt vmcnt({n})')
    A('s_mov_b64 exec, 1')
    local_stores([f'buffer_store_dwordx2 {vr(tg,2)}, v{vL16}, {srd(SRD_WS)}, s{aFLs} offen'])
    A('s_mov_b64 exec, -1')
def o_load(ks): return (f'buffer_load_dwordx4 {vr(oF + 4*ks, 4)}, v{vO4 + (ks >> 3)}, {srd(SRD_WS)}, {"s%d" % sT4 if ks & 4 else 0} offen offset:{(ks%4)*1024} sc1', f'o{ks}')
NPRE = 6
A(f's_mov_b32 s{sT4}, 4096')
A(f's_cmp_lg_u32 s{sLAYER}, 0')
A('s_cbranch_scc1 L_p5')
nyo = 0
if 'otouch' in OPT:
    A('s_mov_b32 exec_lo, 0x01010101')
    A('s_mov_b32 exec_hi, 0x01010101')
    A(f'buffer_load_dword v{vDum}, v{vOst}, {srd(SRD_WS)}, 0 offen sc1')
    A(f'buffer_load_dword v{vDum}, v{vOst}, {srd(SRD_WS)}, s{sT0} offen sc1')
    A('s_mov_b64 exec, -1')
    nyo += 2
if True:
    A.sprinkle = ([wo_dma([k_]) for k_ in wo_rest], 5, emit); nyo += len(wo_rest)
A(f's_lshl_b32 s{sT2}, s{sHG}, 2')
A(f's_add_u32 s{sT2}, s{sT2}, s{sW}')
A(f's_lshl_b32 s{sT2}, s{sT2}, 3')
A(f's_add_u32 s{aFLs}, s{sT2}, s{aFLp}')
A(f'v_mov_b32 v{tg}, s{sTAG}')
A(f'v_mov_b32 v{tg+1}, s{sTAGB}')
A(f'v_and_b32 v{vL8}, 31, v{vL}')
A(f'v_lshlrev_b32 v{vL8}, 3, v{vL8}')
A(f's_lshl_b32 s{sT0}, s{sSTB}, 14')
A(f'v_add_u32 v{vO4}, s{sT0}, v{vL16}')
A(f'v_add_u32 v{vO4+1}, 8192, v{vO4}')
A(f's_lshl_b32 s{sT1}, s{sHG}, 7')
A(f's_add_u32 s{aXs}, s{sT0}, s{sT1}')
A(f's_add_u32 s{aOUT}, s{sAB}, s{sT1}')
A(f's_lshl_b32 s{aCANDs}, s{sRB}, 13')
A(f's_add_u32 s{aCANDs}, s{aCANDs}, s{sT1}')
A(f's_add_u32 s{aCANDs}, s{aCANDs}, {WS_CAND}')
A(f's_mov_b32 s{aCANDb}, {WS_CAND}')
A(f's_lshl_b32 s{aSTp}, s{sSTB}, 11')
A(f's_add_u32 s{aSTp}, s{aSTp}, {WS_ST}')
A(f's_lshl_b32 s{sT1}, s{sHG}, 8')
A(f's_add_u32 s{aSTs}, s{aSTp}, s{sT1}')
A(f's_add_u32 s{aYPb}, s{sT1}, {WS_YP}')
A(f's_lshl_b32 s{aYPs}, s{sFS}, 12')
A(f's_add_u32 s{aYPs}, s{aYPs}, {WS_YP}')
A(f's_lshl_b32 s{aKEYs}, s{sHG}, 7')
A(f's_add_u32 s{aKEYs}, s{aKEYs}, s{sSTB}')
A(f's_lshl_b32 s{aKEYs}, s{aKEYs}, 3')
A(f's_add_u32 s{aKEYs}, s{aKEYs}, {WS_KEYS}')
A(f's_lshl_b32 s{aKEYp}, s{sSET}, 10')
A(f's_add_u32 s{aKEYp}, s{aKEYp}, {WS_KEYS}')
A(f's_add_u32 s{aX1Fp}, s{aFLp}, {WS_X1F - WS_FL}')
A(f's_lshl_b32 s{sT2}, s{sW}, 3')
A(f's_add_u32 s{sT2}, s{sT2}, s{sHG}')
A(f's_lshl_b32 s{sT2}, s{sT2}, 3')
A(f's_add_u32 s{aX1Fs}, s{aX1Fp}, s{sT2}')
A(f's_lshl_b32 s{aFTFp}, s{sSET}, 12')
A(f's_add_u32 s{aFTFp}, s{aFTFp}, {WS_HELLO + 2048}')
A(f's_lshl_b32 s{sT2}, s{sI}, 2')
A(f's_add_u32 s{sT2}, s{sT2}, s{sW}')
A(f's_lshl_b32 s{sT1}, s{sT2}, 3')
A(f's_add_u32 s{aFTFs}, s{aFTFp}, s{sT1}')
A(f's_mul_i32 s{sT1}, s{sSET}, 48')
A(f's_add_u32 s{sT1}, s{sT1}, s{sT2}')
A(f's_lshl_b32 s{aFT}, s{sT1}, 13')
A(f's_add_u32 s{aFT}, s{aFT}, {WS_FT}')
A(f's_lshl_b32 s{aROW}, s{sSTB}, 4')
A(f'v_lshl_add_u32 v{vRow}, v{vQ}, 10, v{vGm}')
A(f'v_mov_b32 v{vXs}, v{vRow}')
A(f'v_lshlrev_b32 v{vQ16}, 4, v{vQ}')
A(f's_lshl_b32 s{sT2}, s{sW}, 9')
A(f's_add_u32 s{sT2}, s{sT2}, {L_CS}')
A(f'v_add_u32 v{vStash}, s{sT2}, v{vGm}')
A(f'v_lshrrev_b32 v{t0}, 3, v{vL}')
A(f'v_lshlrev_b32 v{t0}, 10, v{t0}')
A(f'v_sub_u32 v{vXe}, v{vXe}, v{t0}')
A(f'v_xor_b32 v{vXo}, 64, v{vXe}')
A(f'v_add_u32 v{vXo}, 8192, v{vXo}')
assert not A.sprinkle or not A.sprinkle[0]
A.sprinkle = None
o_flag(nyo)
stamp()
if STOP == 'o1': finish()

for x in wd_late: emit(x)
V.release(vWo); V.release(vFd)
V.release(oP, 8)
ftr = V.alloc(12, 2); hel = V.alloc(8, 2)
A(f'v_lshlrev_b32 v{t2}, 2, v{t0}')
A(f'v_and_b32 v{t3}, 7, v{vL}')
A(f'v_lshl_add_u32 v{t2}, v{t3}, 5, v{t2}')
A(f'v_add_u32 v{t2}, {WS_HELLO}, v{t2}')
hel_issue = lambda: (A(f'buffer_load_dwordx4 {vr(hel,4)}, v{t2}, {srd(SRD_WS)}, 0 offen sc1'),
                     A(f'buffer_load_dwordx4 {vr(hel+4,4)}, v{t2}, {srd(SRD_WS)}, 0 offen offset:16 sc1'))
A('s_barrier')
for n in range(3):
    for hh in range(2):
        A(f'ds_read_b64_tr_b16 {vr(ftr + 4 * n + 2 * hh, 2)}, v{vFr} offset:{n * 128 + hh * 4 * 384}')
A(f'v_and_b32 v{t0}, 127, v0')
A(f'v_lshlrev_b32 v{t0}, 3, v{t0}')
for f in range(16):
    A(f'ds_read_b64 {vr(oF + 32 + 2 * f, 2)}, v{t0} offset:{L_WD + f * 1024}')
fl_issue()
for ks in range(4):
    for t in range(4):
        for h in range(2): A(b_read(ks, t, h))
A(f's_mov_b32 vcc_lo, 0x11111111')
A(f's_mov_b32 vcc_hi, 0x11111111')
for a_ in (0, 1, 4, 5): A(f'v_permlane16_swap_b32 v{aux+a_}, v{aux+a_+2}')
for r in range(8): A(f'v_cndmask_b32 v{aux+r}, v{aux+r}, v{vOnes}, vcc')
A(f'v_mov_b32 v{vSW}, 0')
for r in range(4): A(f'v_dot2c_f32_bf16 v{vSW}, v{wra+r}, v{vOnes}')
for sh in (8, 4, 2, 1):
    A(f'v_add_f32_dpp v{vSW}, v{vSW}, v{vSW} row_ror:{sh} {DP}')
for sw in ('v_permlane16_swap_b32', 'v_permlane32_swap_b32'):
    A(f'v_mov_b32 v{t0}, v{vSW}')
    A(f'{sw} v{vSW}, v{t0}')
    A(f'v_add_f32 v{vSW}, v{vSW}, v{t0}')
V.release(wra, 4)
repoll(fl_issue, lambda: tag_check(fl), 'FL')
A('s_barrier')
stamp()
NP0 = int(next((a[4:] for a in OPT if a.startswith('np0=')), '8'))
for ks in range(NP0): emit(o_load(ks))
late = {ks: [o_load(ks + NP0)] for ks in range(16 - NP0)}
late[16 - NP0] = [hel_issue]
for n in range(3):
    late[17 - NP0 + n] = [f's_mov_b32 s{sT0}, {n * 4 * 32768}', f'buffer_store_dwordx4 {vr(ftr + 4 * n, 4)}, v{vFs}, {srd(SRD_WS)}, s{sT0} offen sc1']
NY = 4
if True:
    def ft_touch():
        A('s_mov_b32 exec_lo, 0x11111111')
        A('s_mov_b32 exec_hi, 0')
        for n in range(3):
            A(f's_mov_b32 s{sT0}, {n * 4 * 32768}')
            A(f'buffer_load_dword v{vDum}, v{vFs}, {srd(SRD_WS)}, s{sT0} offen sc1')
        A('s_mov_b64 exec, -1')
E = if_ffn()
A(f's_mov_b32 s{sT0}, 0x05040100')
A(f's_mov_b32 s{sT1}, 0x07060302')
A('s_waitcnt lgkmcnt(0)')
for j in range(8):
    b = oF + 32 + 4 * j
    for c, (hi_, lo_, sel) in enumerate(((2, 0, sT0), (2, 0, sT1), (3, 1, sT0), (3, 1, sT1))):
        A(f'v_perm_b32 v{hel+c}, v{b+hi_}, v{b+lo_}, s{sel}')
    for c in range(4): A(f'v_accvgpr_write_b32 a{aFD + 4*j + c}, v{hel+c}')
endif(E, False)
for ks in range(16):
    nl = min(15, (15 - ks) * 8)
    A.wait_vm(f'o{ks}', f'lgkmcnt({nl})')
    for t in range(4):
        A(mf(vr(acc + 4*t, 4), vr(bR + ((ks & 3)*4 + t)*4, 4), vr(oF + 4*ks, 4), vr(acc + 4*t, 4)))
        if t == 0:
            for x in late.get(ks, []): emit(x)
        if ks + 4 < 16:
            A(b_read(ks + 4, t, 0)); A(b_read(ks + 4, t, 1))
V.release(ftr, 12)
A('s_branch L_p2e')
A.label('L_p5')
rdl = [b_read(ks, t, h) for ks in range(4) for t in range(4) for h in range(2)] + \
      [b_read_a(ks, t, h) for ks in range(4, 16) for t in range(4) for h in range(2)]
for _ in range(40): A(rdl.pop(0))
o_flag()
stamp_n[0] -= 2; stamp()
fl_issue()
for _ in range(40): A(rdl.pop(0))
repoll(fl_issue, lambda: tag_check(fl), 'FL')
stamp()
for ks in range(NPRE): emit(o_load(ks))
while rdl: A(rdl.pop(0))
for ks in range(16):
    A.wait_vm(f'o{ks}', {0: 'lgkmcnt(14)', 2: 'lgkmcnt(0)'}.get(ks, ''))
    for t in range(4):
        B_ = vr(bR + (ks*4 + t)*4, 4) if ks < 4 else ar(((ks - 4)*4 + t)*4, 4)
        A(mf(vr(acc + 4*t, 4), B_, vr(oF + 4*ks, 4), vr(acc + 4*t, 4)))
        if t == 0 and ks + NPRE < 16: emit(o_load(ks + NPRE))
A.label('L_p2e')
V.release(oF, 64); V.release(bR, 64); V.release(fl, 2)
gG = V.alloc(4, 2); gS = V.take(96, 4) if False else V.alloc(4, 2)
A('s_nop 3')
for j in range(4):
    A(f'v_cvt_pk_bf16_f32 v{xP+j}, v{acc+2*j}, v{acc+2*j+1}')
A(f'v_cvt_pk_bf16_f32 v{xP+4}, v{acc+8}, v{acc+9}')
A(f'v_cvt_pk_bf16_f32 v{xP+5}, v{acc+10}, v{acc+11}')
A(mf(vr(gG, 4), vr(xP, 4), vr(xP, 4), '0'))
A(f'v_cvt_pk_bf16_f32 v{xP+6}, v{acc+12}, v{acc+13}')
A(f'v_cvt_pk_bf16_f32 v{xP+7}, v{acc+14}, v{acc+15}')
A(mf(vr(gS, 4), vr(aux, 4), vr(xP, 4), '0'))
A(f'v_permlane16_swap_b32 v{xP}, v{xP+2}')
A(mf(vr(gG, 4), vr(xP + 4, 4), vr(xP + 4, 4), vr(gG, 4)))
A(f'v_permlane16_swap_b32 v{xP+1}, v{xP+3}')
A(mf(vr(gS, 4), vr(aux + 4, 4), vr(xP + 4, 4), vr(gS, 4)))
A(f'v_permlane16_swap_b32 v{xP+4}, v{xP+6}')
A(f'v_permlane16_swap_b32 v{xP+5}, v{xP+7}')
unp = []
for j in range(8):
    unp += [f'v_lshlrev_b32 v{acc+2*j}, 16, v{xP+j}', f'v_and_b32 v{acc+2*j+1}, 0xffff0000, v{xP+j}']
for _ in range(4): A(unp.pop(0))
A(f'v_cndmask_b32 v{t0}, v{gG}, v{gG+1}, {sr(sM0,2)}')
A(f'v_cndmask_b32 v{t1}, v{gG+2}, v{gG+3}, {sr(sM0,2)}')
A(f'v_cndmask_b32 v{gS+2}, v{t0}, v{t1}, {sr(sM1,2)}')
A(f'v_mov_b32 v{gS+3}, s{sTAG}')
A('s_mov_b32 exec_lo, 0x00f0000f')
A('s_mov_b32 exec_hi, 0xf0000f00')
local_stores([f'buffer_store_dwordx4 {vr(gS,4)}, v{vQ16}, {srd(SRD_WS)}, s{aSTs} offen'])
A('s_mov_b64 exec, -1')
stamp()
V.release(gG, 4)
sa = V.alloc(8, 2)
def h1_issue():
    A(f'buffer_load_dwordx4 {vr(sa,4)}, v{vL16}, {srd(SRD_WS)}, s{aSTp} offen sc1')
    A(f'buffer_load_dwordx4 {vr(sa+4,4)}, v{vL16}, {srd(SRD_WS)}, s{aSTp} offen offset:1024 sc1')
while unp: A(unp.pop(0))
E = if_layer(0)
Lh = A.newlabel('L_hel'); Lhk = A.newlabel('L_helok')
A(f's_mov_b32 s{sGUARD}, {SPIN}')
A(f's_waitcnt vmcnt({NY})')
A.label(Lh)
for r in range(8): A(f'v_xor_b32 v{hel+r}, s{sTAGB if r & 1 else sTAG}, v{hel+r}')
A(f'v_or3_b32 v{t0}, v{hel+1}, v{hel+3}, v{hel+5}')
A(f'v_or_b32 v{t0}, v{t0}, v{hel+7}')
A(f'v_lshrrev_b32 v{t0}, 4, v{t0}')
A(f'v_or3_b32 v{t0}, v{t0}, v{hel}, v{hel+2}')
A(f'v_or3_b32 v{t0}, v{t0}, v{hel+4}, v{hel+6}')
A(f'v_cmp_ne_u32 vcc, 0, v{t0}')
A(f's_cbranch_vccz {E}')
A('s_sleep 8')
hel_issue(); A.wait_vm0()
A(f's_sub_u32 s{sGUARD}, s{sGUARD}, 1')
A(f's_cbranch_scc0 {Lh}')
endif(E, False)
V.release(hel, 8)

def h1_check():
    A(f'v_cmp_ne_u32 vcc, s{sTAG}, v{sa+3}')
    A(f'v_cmp_ne_u32 {sr(sT2,2)}, s{sTAG}, v{sa+7}')
    A(f'v_pk_add_f32 {vr(sa,2)}, {vr(sa,2)}, {vr(sa+4,2)}')
    A(f's_or_b64 vcc, vcc, {sr(sT2,2)}')
poll(h1_issue, h1_check, 'ST')
stamp()
A(f'v_add_f32 v{sa+2}, v{sa+2}, v{sa+6}')
A(f'v_mov_b32 v{sa+4}, v{sa}')
A(f'v_mov_b32 v{sa+5}, v{sa+1}')
A(f'v_mov_b32 v{sa+6}, v{sa+2}')
local_stores([f'buffer_store_dwordx4 {vr(xP,4)}, v{vXs}, {srd(SRD_WS)}, s{aXs} offen',
              f'buffer_store_dwordx4 {vr(xP+4,4)}, v{vXs}, {srd(SRD_WS)}, s{aXs} offen offset:64'])
for r in range(3): A(f'v_permlane16_swap_b32 v{sa+r}, v{sa+4+r}')
A(f'v_pk_add_f32 {vr(sa,2)}, {vr(sa,2)}, {vr(sa+4,2)}')
A(f'v_add_f32 v{sa+2}, v{sa+2}, v{sa+6}')
for r in range(3): A(f'v_mov_b32 v{sa+4+r}, v{sa+r}')
for r in range(3): A(f'v_permlane32_swap_b32 v{sa+r}, v{sa+4+r}')
A(f'v_pk_add_f32 {vr(sa,2)}, {vr(sa,2)}, {vr(sa+4,2)}')
A(f'v_add_f32 v{sa+2}, v{sa+2}, v{sa+6}')
mu = V.alloc(); var = V.alloc(); pr = V.alloc(2, 2); mm = V.alloc()
ln_params(sa, sa + 2, mu, var, mm, pr, t0)
key = V.alloc(); ka = V.alloc(2, 2); kb = ka + 1
A(f'v_fma_f32 v{key}, -v{mm}, v{vSW}, v{sa+1}')
A(f'v_mul_f32 v{key}, v{key}, v{pr}')
A(f'v_mul_f32 v{pr+1}, -v{mm}, v{pr}')
A(f'v_ashrrev_i32 v{t0}, 31, v{key}')
A(f'v_or_b32 v{t0}, 0x80000000, v{t0}')
A(f'v_xor_b32 v{key}, v{key}, v{t0}')
A(f'v_and_b32 v{key}, 0xfffff800, v{key}')
A(f'v_or3_b32 v{key}, v{key}, v{vQ}, s{aROW}')
xn = V.alloc(8, 2); xf = V.alloc(16, 2)
fillx = [f'v_pk_fma_f32 {vr(xf+2*j,2)}, {vr(acc+2*j,2)}, {vr(pr,2)}, {vr(pr,2)} op_sel:[0,0,1] op_sel_hi:[1,0,1]' for j in range(8)] + \
        [f'v_cvt_pk_bf16_f32 v{xn+j}, v{xf+2*j}, v{xf+2*j+1}' for j in range(8)]
def top2_levels(a, b, levels, fill):
    for lv in levels:
        if fill: A(fill.pop(0))
        A(f'v_min_u32_dpp v{t0}, v{a}, v{a} {lv} {DP}')
        A(f'v_max_u32_dpp v{t1}, v{b}, v{b} {lv} {DP}')
        A(f'v_max_u32_dpp v{a}, v{a}, v{a} {lv} {DP}')
        A(f'v_max_u32 v{b}, v{t0}, v{t1}')
A(fillx.pop(0)); A(fillx.pop(0))
A(f'v_max_u32_dpp v{ka}, v{key}, v{key} quad_perm:[1,0,3,2] {DP}')
A(f'v_min_u32_dpp v{kb}, v{key}, v{key} quad_perm:[1,0,3,2] {DP}')
top2_levels(ka, kb, ['quad_perm:[2,3,0,1]', 'row_half_mirror', 'row_mirror'], fillx)
A('s_mov_b64 exec, 1')
A(f'buffer_store_dwordx2 {vr(ka,2)}, v{vL16}, {srd(SRD_WS)}, s{aKEYs} offen sc1')
E = if_layer(0)
A('s_waitcnt vmcnt(1)')
local_stores([f'buffer_store_dwordx2 {vr(tg,2)}, v{vL16}, {srd(SRD_WS)}, s{aX1Fs} offen',
              f'buffer_store_dwordx2 {vr(tg,2)}, v{vL16}, {srd(SRD_WS)}, s{aFTFs} offen'])
if True: ft_touch()
endif(E, False)
A('s_mov_b64 exec, -1')
stamp()
A(f'v_cmp_eq_u32 vcc, v{key}, v{kb}')
A(f'v_add_u32 v{t2}, 256, v{vStash}')
while fillx: A(fillx.pop(0))
A(f'v_cndmask_b32 v{t3}, v{vStash}, v{t2}, vcc')
A(f'v_cmp_ge_u32 vcc, v{key}, v{kb}')
A(f'v_lshrrev_b32 v{t0}, 3, v{vL}')
A(f'v_and_b32 v{t1}, 0x70, v{vL16}')
A(f's_mov_b64 exec, vcc')
A(f'ds_write_b128 v{t3}, {vr(xn,4)} offset:128')
A(f'ds_write_b128 v{t3}, {vr(xn+4,4)} offset:192')
A(f'ds_write_b128 v{t3}, {vr(xP,4)}')
A(f'ds_write_b128 v{t3}, {vr(xP+4,4)} offset:64')
A('s_mov_b64 exec, -1')
V.release(key); V.release(ka, 2)
A(f'v_lshl_add_u32 v{t2}, v{t0}, 8, v{t1}')
A(f'v_add_u32 v{t2}, {L_CS + 128}, v{t2}')
A(f'v_lshl_add_u32 v{t3}, v{t0}, 10, v{t1}')
A('s_waitcnt lgkmcnt(0)')
A('s_barrier')
E3 = if_wave(3)
A(f'ds_read_b128 {vr(sa,4)}, v{t2}')
A('s_waitcnt lgkmcnt(0)')
A(f'buffer_store_dwordx4 {vr(sa,4)}, v{t3}, {srd(SRD_WS)}, s{aCANDs} offen sc1')
A(f's_cmp_lg_u32 s{sLAYER}, 0')
A(f's_cbranch_scc1 {E3}')
A(f'v_lshl_add_u32 v{t0}, v{vQ}, 7, v{vGm}')
A(f'ds_write_b128 v{t0}, {vr(xP,4)} offset:{L_ROW - 65536}') if False else None
A(f'v_add_u32 v{t0}, {L_ROW}, v{t0}')
A(f'ds_write_b128 v{t0}, {vr(xP,4)}')
A(f'ds_write_b128 v{t0}, {vr(xP+4,4)} offset:64')
A(f'v_add_u32 v{t0}, {L_ROW + 1024}, v{vL16}')
A(f's_add_u32 s{sT0}, s{aCANDs}, {WS_HALO - WS_CAND}')
A('s_waitcnt lgkmcnt(0)')
A(f'ds_read_b128 {vr(sa+4,4)}, v{t0}')
A('s_waitcnt lgkmcnt(0)')
A(f'buffer_store_dwordx4 {vr(sa+4,4)}, v{t3}, {srd(SRD_WS)}, s{sT0} offen sc1')
endif(E3)
fine()
def chain_params(mu, var, mm, rs, om, oc):
    a = V.alloc(); u = V.alloc(); w_ = V.alloc(); m2 = V.alloc(); r2 = V.alloc()
    A(f'v_add_f32 v{a}, 1.0, v{rs}')
    A(f'v_mul_f32 v{u}, v{mm}, v{rs}')
    A(f'v_fma_f32 v{mu}, v{mu}, v{a}, -v{u}')
    A(f'v_mul_f32 v{w_}, v{a}, v{a}')
    A(f'v_mul_f32 v{var}, v{var}, v{w_}')
    round_params(mu, var, m2, r2, w_)
    A(f'v_rcp_f32 v{w_}, v{a}')
    A(f'v_add_f32 v{u}, v{u}, v{m2}')
    A(f'v_mul_f32 v{oc}, v{a}, v{r2}')
    A(f'v_mul_f32 v{om}, -v{u}, v{w_}')
    for x in (a, u, w_, m2, r2): V.release(x)
xfl = sa
def xf_issue():
    A(f'buffer_load_dwordx2 {vr(xfl,2)}, v{vL8}, {srd(SRD_WS)}, s{aX1Fp} offen sc1')
    A(f'buffer_load_dwordx4 {vr(xfl+2,4)}, v{vL16}, {srd(SRD_WS)}, s{aFTFp} offen sc1')
def xf_check():
    for r in range(6): A(f'v_xor_b32 v{xfl+r}, s{sTAGB if r & 1 else sTAG}, v{xfl+r}')
    A(f'v_or_b32 v{xfl+3}, v{xfl+3}, v{xfl+5}')
    A(f'v_lshrrev_b32 v{xfl+3}, 4, v{xfl+3}')
    A(f'v_or3_b32 v{xfl+2}, v{xfl+2}, v{xfl+3}, v{xfl+4}')
    A(f'v_mul_lo_u32 v{xfl+2}, v{xfl+2}, s{sHASF}')
    A(f'v_lshrrev_b32 v{xfl+1}, 4, v{xfl+1}')
    A(f'v_or3_b32 v{xfl}, v{xfl}, v{xfl+1}, v{xfl+2}')
    A(f'v_cmp_ne_u32 vcc, 0, v{xfl}')
E = skip_unless([f's_xor_b32 s{sT0}, s{sW}, 1', f's_or_b32 s{sT0}, s{sT0}, s{sLAYER}'])
xf_issue()
endif(E, False)
for j in range(8):
    A(f'v_lshlrev_b32 v{xf+2*j}, 16, v{xn+j}')
    A(f'v_and_b32 v{xf+2*j+1}, 0xffff0000, v{xn+j}')
for j in range(8):
    A(f'v_pk_add_f32 {vr(xf+2*j,2)}, {vr(xf+2*j,2)}, {vr(acc+2*j,2)}')
for j in range(8):
    A(f'v_cvt_pk_bf16_f32 v{xP+j}, v{xf+2*j}, v{xf+2*j+1}')
V.release(xn, 8); V.release(xf, 16); V.release(acc, 16)
A(f's_cmp_eq_u32 s{sLAYER}, 0')
A('s_cbranch_scc1 L_x1')
A(f'v_lshl_add_u32 v{t0}, v{vQ}, 10, v{vRow}')
OSC = next((' ' + a[4:].replace('+', ' ') for a in OPT if a.startswith('osc=')), '')
A(f'buffer_store_dwordx4 {vr(xP,4)}, v{t0}, {srd(SRD_OUT)}, s{aOUT} offen{OSC}')
A(f'buffer_store_dwordx4 {vr(xP+4,4)}, v{t0}, {srd(SRD_OUT)}, s{aOUT} offen offset:64{OSC}')
A('s_branch L_x1e')
A.label('L_x1')
chain_params(mu, var, mm, pr, t2, t3)
A(f's_lshl_b32 s{sT0}, s{sW}, 6')
A(f'v_add_u32 v{t0}, s{sT0}, v{vQ4}')
A(f'ds_write2_b32 v{t0}, v{t2}, v{t3} offset0:16 offset1:96')
V.release(mu); V.release(var); V.release(pr, 2); V.release(mm)
E1 = if_wave(1)
repoll(xf_issue, xf_check, 'X1F')
endif(E1, False)
A('s_waitcnt lgkmcnt(0)')
A('s_barrier')
fine()
V.take(accQ, 20); V.take(accK, 20); V.take(accV, 20); V.take(hV, 10); V.take(mxc, 8)
fr = [V.alloc(16, 2), V.alloc(16, 2)]
def own_reads(ks):
    u = ks & 1; kc = ks >> 1; b = fr[ks & 1]
    return [f'ds_read_b128 {vr(b + 4 * T, 4)}, v{vA+u} offset:{(kc * 8 + 2 * T) * 1024}' for T in range(4)]
def gemm_groups(k0, k1, noread=()):
    G = []
    for ks in range(k0, k1):
        b = fr[ks & 1]; fill = own_reads(ks + 1) if ks < 15 and ks not in noread else []
        for T in range(1, 5):
            X = vr(b + 4 * (T - 1), 4)
            for m_, (d_, a_, b_) in enumerate(((accQ, ar(aW(ks, 0), 4), X), (accK, ar(aW(ks, 1), 4), X), (accV, X, ar(aW(ks, 2), 4)))):
                g_ = [mf(vr(d_ + 4 * T, 4), a_, b_, vr(d_ + 4 * T, 4))]
                if T == 1 and m_ == 0: g_ = ['s_waitcnt lgkmcnt(0)'] + g_
                elif fill and m_ < 2: g_.append(fill.pop(0))
                G.append(g_)
    return G
def gemm_part(k0, k1, ins=None):
    for n_, g_ in enumerate(gemm_groups(k0, k1)):
        for x in g_: A(x)
        for x in (ins or {}).get(n_, []): emit(x)
A.vm = []
def x1_dma(kc, o):
    return ([f's_add_u32 s{sXA}, s{sXB}, {WS_X1 + kc * 128}'] if o == 0 else []) + \
           [f's_add_u32 m0, s{sAM}, {L_A + kc * 8192 + o * 1024}',
            (f'buffer_load_dwordx4 v{vXo if o else vXe}, {srd(SRD_WS)}, s{sXA} offen sc1 lds', f'x{kc >> 1}')]
sXA, sXB = 46, 47
A(f's_lshl_b32 s{sXB}, s{sSTB}, 14')
ci = V.alloc(4, 2); vFo = V.alloc()
A(f'ds_read2_b32 {vr(ci,2)}, v{vQ4} offset0:16 offset1:32')
A(f'ds_read2_b32 {vr(ci+2,2)}, v{vQ4} offset0:48 offset1:64')
for T in range(1, 5): A(f'ds_read_b128 {vr(accV + 4 * T, 4)}, v{vG16} offset:{64 * T}')
grp = [x1_dma(kc, o) for kc in range(4) for o in range(2)]
for _ in range(2):
    for x in grp.pop(0): emit(x)
A.sprinkle = (grp, 4, emit)
A('s_waitcnt lgkmcnt(4)')
for T in range(1, 5):
    sel = (T - 1) & 1
    for acc_, cs_ in ((accQ, csQ), (accK, csK)):
        for h in range(2):
            A(f'v_pk_mul_f32 {vr(acc_+4*T+2*h,2)}, {vr(cs_+2*h,2)}, {vr(ci + ((T-1)&2),2)} op_sel:[0,{sel}] op_sel_hi:[1,{sel}]')
A('s_waitcnt lgkmcnt(0)')
for T in range(1, 5):
    for h in range(2):
        A(f'v_pk_mul_f32 {vr(accV+4*T+2*h,2)}, {vr(accV+4*T+2*h,2)}, {vr(csV,2)} op_sel_hi:[1,0]')
A.sprinkle = None
assert not grp
V.release(ci, 4)
A(f's_xor_b32 s{sT0}, s{sHASF}, 1')
A(f's_lshl_b32 s{sT0}, s{sT0}, 30')
A(f'v_add_u32 v{vFo}, s{sT0}, v{vL16}')
A(f's_add_u32 s{sT5}, s{aFT}, 4096')
A.wait_vm('x0')
A('s_barrier')
fine()
for x in own_reads(0): A(x)
key_issue = lambda: A(f'buffer_load_dwordx4 {vr(sa,4)}, v{vL16}, {srd(SRD_WS)}, s{aKEYp} offen sc1', tag='key')
ft_ld = [f'buffer_load_dwordx4 {ar(aFG + 4*s_, 4)}, v{vFo}, {srd(SRD_WS)}, s{sT5 if s_ >= 4 else aFT} offen offset:{(s_ & 3)*1024} sc1' for s_ in range(8)]
KC, N1, N2, PER = [int(x) for x in next((a[2:] for a in OPT if a.startswith('n=')), '3,5,13,3').split(',')]
queue = [x1_dma(kc, o) for kc in range(4, 8) for o in range(2)] + [[x] for x in ft_ld]
if 'ftx' in OPT: queue = queue[8:] + queue[:8]
ins = {}
pos = 1
while queue and pos < N1 * 12 - 6:
    ins[pos] = queue.pop(0); pos += PER
assert not queue
ins[KC * 12 - 14] = ins.get(KC * 12 - 14, []) + [key_issue]
def b2b():
    if A.vm_count('x1') is not None and KC > 3: A.wait_vm('x1')
    A('s_barrier')
ins[36] = [b2b] + ins.get(36, [])
gemm_part(0, KC, ins)
A.wait_vm('key')
A(f's_cmp_lg_u32 s{sW}, 0')
A('s_cbranch_scc1 L_keye')
A(f's_mov_b32 s{sGUARD}, {SPIN}')
A('s_branch L_keyc')
A.label('L_x1e')
stamp()
A(f's_cmp_lg_u32 s{sW}, 0')
A('s_cbranch_scc1 L_keye')
A(f's_mov_b32 s{sGUARD}, {SPIN}')
A.label('L_keyp')
key_issue()
A('s_waitcnt vmcnt(0)')
A.label('L_keyc')
A(f'v_max3_u32 v{t0}, v{sa}, v{sa+1}, v{sa+2}')
A(f'v_min_u32 v{t2}, v{sa}, v{sa+2}')
A(f'v_max_u32 v{t0}, v{t0}, v{sa+3}')
A(f'v_max_u32 v{sa}, v{sa}, v{sa+2}')
A(f'v_cmp_eq_u32 vcc, -1, v{t0}')
A(f'v_max3_u32 v{sa+1}, v{sa+1}, v{sa+3}, v{t2}')
A('s_cbranch_vccz L_keyk')
A(f's_sub_u32 s{sGUARD}, s{sGUARD}, 1')
A('s_cbranch_scc0 L_keyp')
A.label('L_keyk')
stamp()
top2_levels(sa, sa + 1, ['quad_perm:[1,0,3,2]', 'quad_perm:[2,3,0,1]', 'row_half_mirror', 'row_mirror'], [])
for n_, ln in enumerate((0, 16, 32, 48)):
    A(f'v_readlane_b32 s{(sK0, sT0, sT2, sU0)[n_]}, v{sa}, {ln}')
for n_, ln in enumerate((0, 16, 32, 48)):
    A(f'v_readlane_b32 s{(sK1, sT1, sT3, sU1)[n_]}, v{sa+1}, {ln}')
for a_, b_ in ((sT0, sT1), (sT2, sT3), (sU0, sU1)):
    A(f's_max_u32 s{sK1}, s{sK1}, s{b_}')
    A(f's_min_u32 s{b_}, s{sK0}, s{a_}')
    A(f's_max_u32 s{sK0}, s{sK0}, s{a_}')
    A(f's_max_u32 s{sK1}, s{sK1}, s{b_}')
A(f's_and_b32 s{sU2}, s{sK0}, 0x7f0')
A(f's_and_b32 s{sU3}, s{sK1}, 0x7f0')
A(f's_cmp_eq_u32 s{sU2}, s{sU3}')
A(f's_cselect_b32 s{sT2}, 8, 0')
A(f's_lshl_b32 s{sU2}, s{sU2}, 7')
A(f's_add_u32 s{sU2}, s{sU2}, s{aCANDb}')
A(f's_or_b32 s{sU3}, s{sU3}, s{sT2}')
A(f's_lshl_b32 s{sU3}, s{sU3}, 7')
A(f's_add_u32 s{sU3}, s{sU3}, s{aCANDb}')
def f_issue():
    A(f'buffer_load_dwordx4 {vr(sa,4)}, v{vL16}, {srd(SRD_WS)}, s{sU2} offen sc1')
    A(f'buffer_load_dwordx4 {vr(sa+4,4)}, v{vL16}, {srd(SRD_WS)}, s{sU3} offen sc1')
E = if_ffn()
f_issue()
endif(E, False)
A(f'v_mov_b32 v{t0}, s{sK0}')
A(f'v_mov_b32 v{t1}, s{sK1}')
A(f'v_mov_b32 v{t2}, {L_KEY}')
A(f'ds_write2_b32 v{t2}, v{t0}, v{t1} offset0:0 offset1:1')
A.label('L_keye')
E = if_layer(0)
gemm_part(KC, N1, {k_ - KC * 12: v_ for k_, v_ in ins.items()})
V.release(vFo)
A('s_waitcnt vmcnt(0)')
A(f's_cmp_lg_u32 s{sW}, 3')
A(f's_cbranch_scc1 {E}')
A(f's_lshl_b32 s{sT0}, s{sRB}, 10')
A(f's_lshl_b32 s{sT1}, s{sHG}, 7')
A(f's_add_u32 s{sT0}, s{sT0}, s{sT1}')
A(f's_add_u32 s{sT0}, s{sT0}, {WS_HS - 128}')
A('s_mov_b32 exec_lo, 0')
A('s_mov_b32 exec_hi, 0xf0000f00')
A(f'buffer_store_dwordx4 {vr(gS,4)}, v{vQ16}, {srd(SRD_WS)}, s{sT0} offen sc1')
A('s_mov_b64 exec, -1')
endif(E, False)
V.release(gS, 4)
fine()
fa = V.alloc(4)
A(f'v_bfe_u32 v{t0}, v{vL}, 2, 1')
A(f'v_and_b32 v{t1}, 1, v{vL}')
A(f'v_lshl_or_b32 v{t0}, v{t0}, 1, v{t1}')
A(f'v_mul_u32_u24 v{fa}, 576, v{t0}')
A(f'v_lshl_add_u32 v{fa}, v{vG}, 4, v{fa}')
A(f'v_add_u32 v{fa}, {L_XS}, v{fa}')
A(f's_lshl_b32 s{sT1}, s{sW}, 3')
A(f's_add_u32 s{sT1}, s{sT1}, {L_H}')
A(f'v_lshlrev_b32 v{fa+1}, 5, v{vG}')
A(f'v_lshl_add_u32 v{fa+1}, v{vQ}, 1, v{fa+1}')
A(f'v_add_u32 v{fa+1}, s{sT1}, v{fa+1}')
A(f's_lshr_b32 s{sT1}, s{sW}, 1')
A(f's_lshl_b32 s{sT1}, s{sT1}, 5')
A(f's_add_u32 s{sT1}, s{sT1}, {L_H}')
A(f'v_mov_b32 v{fa+2}, s{sT1}')
A(f'v_lshlrev_b32 v{fa+3}, 4, v0')
A(f'v_mov_b32 v{t3}, {L_KEY}')
A(f'v_lshrrev_b32 v{t2}, 5, v{vL}')
A(f'v_lshl_add_u32 v{t2}, v{t2}, 6, v{vL16}')
A(f'v_add_u32 v{t2}, {L_XS}, v{t2}')
E = skip_unless([f's_cmp_eq_u32 s{sW}, 0', f's_cselect_b32 s{sT0}, s{sHASF}, 0', f's_cmp_eq_u32 s{sT0}, 0'])
def f_check():
    A(f'v_max_u32 v{t0}, v{sa}, v{sa+4}')
    A(f'ds_write_b128 v{t2}, {vr(sa,4)}')
    A(f'v_cmp_eq_u32 vcc, -1, v{t0}')
    A(f'ds_write_b128 v{t2}, {vr(sa+4,4)} offset:1152')
    A('s_waitcnt lgkmcnt(0)')
repoll(f_issue, f_check, 'CAND')
endif(E, False)
A('s_waitcnt lgkmcnt(0)')
A('s_barrier')
fine()
A(f's_cmp_eq_u32 s{sHASF}, 0')
A('s_cbranch_scc1 L_noffn')
xs = V.alloc(32, 2); d4 = V.alloc(4, 2); hp = V.alloc(8, 2); y4 = V.alloc(4, 2); wd = xs
for s_ in range(8):
    A(f'ds_read_b128 {vr(xs + 4*s_, 4)}, v{fa} offset:{64*s_}')
for c in range(4): A(f'v_mov_b32 v{y4+c}, 0')
wrd = [f'v_accvgpr_read_b32 v{wd+j}, a{aFD+j}' for j in range(32)]
for s_ in range(8):
    A(f's_waitcnt lgkmcnt({7 - s_})')
    A(mf(vr(d4, 4), vr(xs + 4*s_, 4), ar(aFG + 4*s_, 4), '0' if s_ == 0 else vr(d4, 4)))
    if s_: A(wrd.pop(0)); A(wrd.pop(0))
for _ in range(6): A(wrd.pop(0))
A(f'v_add_f32_dpp v{t0}, v{d4+1}, v{d4} row_shl:8 {DP}')
bf_round(t0, t0)
A(f'v_mul_f32 v{t1}, {hex(f2u(-1.4426950408889634))}, v{t0}')
A(f'v_exp_f32 v{t1}, v{t1}')
A(f'v_mov_b32_dpp v{t2}, v{t0} row_shl:4 {DP}')
A(f'v_add_f32 v{t1}, 1.0, v{t1}')
A(f'v_rcp_f32 v{t1}, v{t1}')
A('s_mov_b64 exec, 0x000f000f')
A(f'v_mul_f32 v{t1}, v{t0}, v{t1}')
bf_round(t1, t1)
A(f'v_mul_f32 v{t1}, v{t2}, v{t1}')
A(f'v_cvt_pk_bf16_f32 v{t1}, v{t1}, v{t1}')
A(f'ds_write_b16 v{fa+1}, v{t1}')
A('s_mov_b64 exec, -1')
for _ in range(8): A(wrd.pop(0))
A('s_waitcnt lgkmcnt(0)')
A('s_barrier')
A(f'ds_read_b128 {vr(hp,4)}, v{fa+2}')
A(f'ds_read_b128 {vr(hp+4,4)}, v{fa+2} offset:16')
while wrd: A(wrd.pop(0))
for j in range(8):
    if j % 4 == 0: A(f's_waitcnt lgkmcnt({1 - j // 4})')
    for c in range(4):
        A(f'v_dot2c_f32_bf16 v{y4+c}, v{wd+4*j+c}, v{hp+j}')
A(f'buffer_store_dwordx4 {vr(y4,4)}, v{fa+3}, {srd(SRD_WS)}, s{aYPs} offen sc1')
V.release(xs, 32); V.release(d4, 4); V.release(hp, 8); V.release(y4, 4)
A.label('L_noffn')
A(f'ds_read_b64 {vr(sa,2)}, v{t3}')
V.release(fa, 4)
A('s_waitcnt lgkmcnt(0)')
A(f'v_readfirstlane_b32 s{sK0}, v{sa}')
A(f'v_readfirstlane_b32 s{sK1}, v{sa+1}')
stamp()
sOWN = 48
A(f's_bfe_u32 s{sT0}, s{sK0}, 0x50006')
A(f's_bfe_u32 s{sT1}, s{sK1}, 0x50006')
A(f's_cmp_eq_u32 s{sT0}, s{sRB}')
A(f's_cselect_b32 s{sT1}, s{sRB}, s{sT1}')
A(f's_cselect_b32 s{sTOK}, 0, 1')
A(f's_cselect_b32 s{sKEY}, s{sK0}, s{sK1}')
A(f's_cmp_eq_u32 s{sT1}, s{sRB}')
A(f's_cselect_b32 s{sOWN}, 1, 0')
yp = V.alloc(24, 2); yo = V.alloc(2)
def y_issue():
    for j in range(6):
        A(f's_mov_b32 s{sT1}, {j * 65536}')
        A(f'buffer_load_dwordx4 {vr(yp + 4*j, 4)}, v{yo + 1 if j == 5 else yo}, {srd(SRD_WS)}, s{sT1} offen sc1')
def y_start():
    A(f's_lshl_b32 s{sT0}, s{sTOK}, 11')
    A(f's_add_u32 s{sT0}, s{sT0}, s{aYPb}')
    A(f'v_lshrrev_b32 v{t0}, 4, v0')
    A(f'v_lshl_add_u32 v{yo}, v{t0}, 12, v{vQ16}')
    A(f'v_cmp_gt_u32 vcc, 6, v{t0}')
    A(f'v_add_u32 v{yo}, s{sT0}, v{yo}')
    A(f'v_mov_b32 v{t1}, 0x40000000')
    A(f'v_cndmask_b32 v{yo+1}, v{t1}, v{yo}, vcc')
    y_issue()
E = if_layer(0)
E2 = if_wave(2)
A(f's_lshl_b32 s{sT0}, s{sHG}, 3')
A(f's_add_u32 s{sT0}, s{sT0}, s{aX1Fp}')
A('s_mov_b64 exec, 1')
local_stores([f'buffer_store_dwordx2 {vr(tg,2)}, v{vL16}, {srd(SRD_WS)}, s{sT0} offen offset:256'])
A('s_mov_b64 exec, -1')
endif(E2, False)
NH = int(next((a[3:] for a in OPT if a.startswith('nh=')), '10'))
gemm_part(N1, NH - 1)
A(f's_lshl_b32 s{sU0}, s{sRB}, 10')
A(f's_add_u32 s{sU0}, s{sU0}, {WS_HS - 1024}')
hs_issue = lambda: A(f'buffer_load_dwordx4 {vr(sa,4)}, v{vL16}, {srd(SRD_WS)}, s{sU0} offen sc1')
hs_issue()
gemm_part(NH - 1, NH + 1)
A('s_waitcnt vmcnt(0)')
Eh = skip_unless([f's_cmp_lg_u32 s{sFIRST}, 0'])
repoll(hs_issue, lambda: A(f'v_cmp_ne_u32 vcc, s{sTAG}, v{sa+3}'), 'HS')
A(f's_lshl_b32 s{sU1}, s{sRB}, 13')
A(f's_lshl_b32 s{sT0}, s{sW}, 8')
A(f's_add_u32 s{sU1}, s{sU1}, s{sT0}')
A(f's_mul_i32 s{sT0}, s{sW}, {2 * HST}')
for j in range(2):
    A(f's_add_u32 m0, s{sT0}, {L_HA + j * HST}')
    A(f's_add_u32 s{sT1}, s{sU1}, {WS_HALO - 16384 + j * 128}')
    A(f'buffer_load_dwordx4 v{vXo}, {srd(SRD_WS)}, s{sT1} offen sc1 lds')
endif(Eh, False)
Eh = skip_unless([f's_cmp_eq_u32 s{sOWN}, 0'])
y_start()
endif(Eh, False)
G = gemm_groups(NH + 1, N2)
for x in G.pop(0): A(x)
A.sprinkle = (G, 2, emit)
mu = V.alloc(); var = V.alloc(); pr = V.alloc(); mm = V.alloc()
for r in (0, 2): A(f'v_add_f32_dpp v{sa+r}, v{sa+r}, v{sa+r} row_ror:8 {DP}')
for sw in ('v_permlane16_swap_b32', 'v_permlane32_swap_b32'):
    for r in (0, 2): A(f'v_mov_b32 v{sa+4+r}, v{sa+r}')
    for r in (0, 2): A(f'{sw} v{sa+r}, v{sa+4+r}')
    for r in (0, 2): A(f'v_add_f32 v{sa+r}, v{sa+r}, v{sa+4+r}')
ln_params(sa, sa + 2, mu, var, mm, pr, t0)
chain_params(mu, var, mm, pr, t2, t3)
A.sprinkle = None
for g_ in G:
    for x in g_: emit(x)
A(f's_xor_b32 s{sT0}, s{sW}, 1')
A(f's_or_b32 s{sT0}, s{sT0}, s{sFIRST}')
A(f's_cbranch_scc1 {E}')
A(f'ds_write2_b32 v{vQ4}, v{t2}, v{t3} offset0:0 offset1:80')
V.release(mu); V.release(var); V.release(pr); V.release(mm)
endif(E, False)
V.release(sa, 8)
stamp()
A(f's_cmp_eq_u32 s{sOWN}, 0')
A('s_cbranch_scc1 L_own_end')
A(f's_cmp_eq_u32 s{sLAYER}, 0')
A('s_cbranch_scc1 L_own2')
A.label('L_own')
A(f's_bfe_u32 s{sT0}, s{sKEY}, 0x50006')
A(f's_cmp_lg_u32 s{sT0}, s{sRB}')
A('s_cbranch_scc1 L_own_end')
y_start()
A.label('L_own2')
A(f's_and_b32 s{sRHO}, s{sKEY}, 2047')
sg = V.alloc(); ya = V.alloc(); yb = V.alloc(); yc = V.alloc()
def y_check():
    A(f'v_max3_u32 v{t0}, v{yp}, v{yp+4}, v{yp+8}')
    A(f'v_max3_u32 v{t1}, v{yp+12}, v{yp+16}, v{yp+20}')
    A(f'v_max_u32 v{t0}, v{t0}, v{t1}')
    A(f'v_cmp_eq_u32 vcc, -1, v{t0}')
A(f's_bfe_u32 s{sT0}, s{sK0}, 0x70004')
A(f's_bfe_u32 s{sT2}, s{sKEY}, 0x70004')
A(f's_cmp_eq_u32 s{sT0}, s{sT2}')
A(f's_cselect_b32 s{sT0}, s{sTOK}, 0')
A(f's_lshl_b32 s{sT0}, s{sT0}, 8')
A(f's_and_b32 s{sT2}, s{sT2}, 3')
A(f's_lshl_b32 s{sT2}, s{sT2}, 9')
A(f's_add_u32 s{sT0}, s{sT0}, s{sT2}')
A(f's_add_u32 s{sT0}, s{sT0}, {L_CS}')
A(f'v_lshl_add_u32 v{yc}, v{vL}, 1, s{sT0}')
A(f'ds_read_u16 v{ya}, v{yc}')
A(f'ds_read_u16 v{yb}, v{yc} offset:128')
A(f's_ashr_i32 s{sT2}, s{sKEY}, 31')
A(f's_not_b32 s{sT2}, s{sT2}')
A(f's_or_b32 s{sT2}, s{sT2}, 0x80000000')
A(f's_xor_b32 s{sT2}, s{sT2}, s{sKEY}')
A(f'v_mov_b32 v{sg}, s{sT2}')
bf_round(sg, sg)
A(f'v_mul_f32 v{sg}, {hex(f2u(-1.4426950408889634))}, v{sg}')
A(f'v_exp_f32 v{sg}, v{sg}')
A(f'v_add_f32 v{sg}, 1.0, v{sg}')
A(f'v_rcp_f32 v{sg}, v{sg}')
bf_round(sg, sg)
A('s_waitcnt lgkmcnt(0)')
A(f'v_lshlrev_b32 v{ya}, 16, v{ya}')
A(f'v_lshlrev_b32 v{yb}, 16, v{yb}')
A(f'v_lshlrev_b32 v{yc}, 4, v0')
A(f'v_add_u32 v{yc}, {L_RED}, v{yc}')
A(f's_lshl_b32 s{sT2}, s{sHG}, 7')
A(f's_and_b32 s{sU0}, s{sRHO}, 1023')
A(f's_lshl_b32 s{sU0}, s{sU0}, 11')
A(f's_and_b32 s{sT0}, s{sRHO}, 1024')
A(f's_add_u32 s{sU0}, s{sU0}, s{sT0}')
A(f's_add_u32 s{sU0}, s{sU0}, s{sT2}')
A(f's_lshl_b32 s{sU1}, s{sTOK}, 10')
A(f's_add_u32 s{sU1}, s{sU1}, s{sT2}')
A(f's_add_u32 s{sU1}, s{sU1}, {WS_X2R}')
repoll(y_issue, y_check, 'YP')
fine()
for a_, b_ in ((0, 4), (8, 12), (16, 20), (0, 8), (0, 16)):
    for h in range(2):
        A(f'v_pk_add_f32 {vr(yp+a_+2*h,2)}, {vr(yp+a_+2*h,2)}, {vr(yp+b_+2*h,2)}')
A(f'ds_write_b128 v{yc}, {vr(yp,4)}')
A(f'v_lshlrev_b32 v{t0}, 2, v{vL}')
A(f'v_add_u32 v{t0}, {L_RED}, v{t0}')
A('s_waitcnt lgkmcnt(0)')
A('s_barrier')
A(f's_cmp_lg_u32 s{sW}, 3')
A('s_cbranch_scc1 L_own_sync')
for j in range(8):
    A(f'ds_read2st64_b32 {vr(yp + 2*j, 2)}, v{t0} offset0:{2*j} offset1:{2*j+1}')
A(f'v_lshlrev_b32 v{t0}, 1, v{vL}')
for n_, (a_, b_) in enumerate(((0, 2), (4, 6), (8, 10), (12, 14), (0, 4), (8, 12), (0, 8))):
    if n_ < 4: A(f's_waitcnt lgkmcnt({6 - 2 * n_})')
    A(f'v_pk_add_f32 {vr(yp+a_,2)}, {vr(yp+a_,2)}, {vr(yp+b_,2)}')
A(f'v_add_f32 v{yp}, v{yp}, v{yp+1}')
bf_round(yp, yp)
A(f'v_mul_f32 v{yp}, v{yp}, v{sg}')
bf_round(yp, yp)
A(f'v_add_f32 v{yp}, v{yp}, v{yb}')
bf_round(yp, yp)
A(f'v_add_f32 v{yp}, v{yp}, v{ya}')
A(f'v_mov_b32_dpp v{yp+1}, v{yp} quad_perm:[1,0,3,2] {DP}')
A(f'v_cvt_pk_bf16_f32 v{yp}, v{yp}, v{yp+1}')
A('s_mov_b32 exec_lo, 0x55555555')
A('s_mov_b32 exec_hi, 0x55555555')
A(f's_cmp_eq_u32 s{sLAYER}, 0')
A('s_cbranch_scc1 L_own_x2')
A(f'buffer_store_dword v{yp}, v{t0}, {srd(SRD_OUT)}, s{sU0} offen')
A('s_branch L_own_fin')
A.label('L_own_x2')
local_stores([f'buffer_store_dword v{yp}, v{t0}, {srd(SRD_WS)}, s{sU1} offen'])
A(f's_and_b32 s{sT0}, s{sRHO}, 63')
A(f's_cmp_lt_u32 s{sT0}, 56')
A('s_cbranch_scc1 L_own_nh')
A(f'buffer_store_dword v{yp}, v{t0}, {srd(SRD_WS)}, s{sU1} offen offset:2048 sc1')
A.label('L_own_nh')
A(f'v_add_u32 v{t0}, {L_X2S}, v{t0}')
A(f'ds_write_b32 v{t0}, v{yp}')
A.label('L_own_fin')
A('s_mov_b64 exec, -1')
A.label('L_own_sync')
A('s_waitcnt lgkmcnt(0)')
A('s_barrier')
A(f's_bfe_u32 s{sT0}, s{sRHO}, 0x20004')
A(f's_cmp_lg_u32 s{sT0}, s{sW}')
A('s_cbranch_scc1 L_own_next')
A(f's_and_b32 s{sT0}, s{sRHO}, 15')
A(f'v_add_u32 v{t0}, {L_X2S}, v{vGm}')
A(f'v_cmp_eq_u32 vcc, s{sT0}, v{vQ}')
A('s_mov_b64 exec, vcc')
A(f'ds_read_b128 {vr(xP,4)}, v{t0}')
A(f'ds_read_b128 {vr(xP+4,4)}, v{t0} offset:64')
A('s_mov_b64 exec, -1')
A('s_waitcnt lgkmcnt(0)')
V.release(yp, 24); V.release(yo, 2); V.release(sg); V.release(ya); V.release(yb); V.release(yc)
A.label('L_own_next')
A(f's_mov_b32 s{sKEY}, s{sK1}')
A(f's_add_u32 s{sTOK}, s{sTOK}, 1')
A(f's_cmp_lt_u32 s{sTOK}, 2')
A('s_cbranch_scc1 L_own')
A.label('L_own_end')
A(f's_cmp_eq_u32 s{sLAYER}, 1')
A('s_cbranch_scc1 L_fin')
stamp()
G = gemm_groups(N2, 16)
for x in G.pop(0): A(x)
A.sprinkle = (G, 1, emit)
sS0, sS1 = sU2, sU3
for key_, dst in ((sK0, sS0), (sK1, sS1)):
    A(f's_and_b32 s{sT0}, s{key_}, 2047')
    A(f's_lshl_b32 s{sT1}, s{sRB}, 6')
    A(f's_sub_u32 s{sT0}, s{sT0}, s{sT1}')
    A(f's_add_u32 s{dst}, s{sT0}, 16')
    A(f's_cmp_lt_u32 s{dst}, 80')
    A(f's_cselect_b32 s{dst}, s{dst}, 0')
    A(f's_lshl_b32 s{sT1}, s{sFIRST}, 3')
    A(f's_add_u32 s{sT1}, s{sT1}, 8')
    A(f's_cmp_ge_u32 s{dst}, s{sT1}')
    A(f's_cselect_b32 s{dst}, s{dst}, 0')
A(f's_cmp_eq_u32 s{sW}, 2')
A.sprinkle = None
A(f's_cselect_b32 s{sT4}, s{sS0}, s{sS1}')
A(f's_cselect_b32 s{sTOK}, 0, 1')
A(f's_bitcmp1_b32 s{sW}, 0')
A(f's_cselect_b32 s{sT4}, 0, s{sT4}')
rw = V.take(144, 4); rc = V.take(148, 4); vc = V.take(152, 16); dfl = V.take(168, 2); vRw = V.take(170); vDf = V.take(171)
df_issue = lambda: A(f'buffer_load_dwordx2 {vr(dfl,2)}, v{vDf}, {srd(SRD_WS)}, s{aX1Fp} offen offset:256 sc1')
bump = [f'v_mov_b32 v{vXs}, 0x40000000', f'v_and_b32 v{vDf}, 56, v{vL8}',
        f'v_lshrrev_b32 v{vRw}, 3, v{vL}', f'v_mul_u32_u24 v{vRw}, {HST - 128}, v{vRw}', f'v_add_u32 v{vRw}, v{vRw}, v{vL16}', f'v_add_u32 v{vRw}, {L_HA + 1024}, v{vRw}']
for a_, d_ in ((aFLp, 1 << 14), (aFLs, 1 << 14), (aSTp, 1 << 18), (aSTs, 1 << 18), (aKEYs, 1 << 13), (aKEYp, 1 << 13),
               (aCANDs, 1 << 18), (aCANDb, 1 << 18), (aYPs, 86 * 4096), (aYPb, 86 * 4096)):
    bump.append(f's_add_u32 s{a_}, s{a_}, {d_}')
for g_ in G:
    for x in g_: emit(x)
    for _ in range(2):
        if bump: A(bump.pop(0))
while bump: A(bump.pop(0))
df_issue()
A(f'ds_read2_b32 {vr(rc,2)}, v{vQ4} offset0:96 offset1:112')
A(f'ds_read2_b32 {vr(rc+2,2)}, v{vQ4} offset0:128 offset1:144')
for T in range(4): A(f'ds_read_b128 {vr(vc + 4 * T, 4)}, v{vG16} offset:{320 + 64 * (T + 1)}')
for b in fr: V.release(b, 16)
E = skip_unless([f's_cmp_eq_u32 s{sT4}, 0'])
A(f's_cmp_lt_u32 s{sT4}, 16')
A(f's_cselect_b32 s{sT1}, 2, 0')
A(f's_add_u32 s{sT0}, s{sTOK}, s{sT1}')
A(f's_lshl_b32 s{sT0}, s{sT0}, 10')
A(f's_add_u32 s{sT0}, s{sT0}, {WS_X2R}')
r_issue = lambda: A(f'buffer_load_dwordx4 {vr(rw,4)}, v{vL16}, {srd(SRD_WS)}, s{sT0} offen sc1')
r_issue()
A(f's_lshl_b32 s{sT1}, s{sTOK}, 7')
A(f'v_add_u32 v{t2}, s{sT1}, v{vRw}')
def r_check():
    A(f'v_max3_u32 v{t0}, v{rw}, v{rw+1}, v{rw+2}')
    A(f'ds_write_b128 v{t2}, {vr(rw,4)}')
    A(f'v_max_u32 v{t0}, v{t0}, v{rw+3}')
    A(f'v_cmp_eq_u32 vcc, -1, v{t0}')
    A('s_waitcnt lgkmcnt(0)')
repoll(r_issue, r_check, 'X2R')
endif(E, False)
A('s_waitcnt vmcnt(0) lgkmcnt(0)')
fine()
A('s_barrier')
fine()
xr = V.alloc(64, 2); hp_ = vc
for ks in range(10):
    A(f'ds_read_b128 {vr(xr + 4*ks, 4)}, v{vH + (ks & 1)} offset:{(ks >> 1) * HST}')
hr = [f'ds_read_b128 {vr(xr + 4*ks, 4)}, v{vH + (ks & 1)} offset:{(ks >> 1) * HST}' for ks in range(10, 16)]
hr2 = [f'ds_read2_b32 {vr(hp_,2)}, v{vQ4} offset0:0 offset1:80', f'ds_read_b128 {vr(hp_+2,4)}, v{vG16}', f'ds_read_b128 {vr(hp_+6,4)}, v{vG16} offset:320']
sh = []
for T in range(4):
    sh += pack2(hQ(T), hQ(T))
    sh += [f'v_mul_f32 v{hK(T)+r}, v{hK(T)+r}, v{rc+T}' for r in range(4)] + pack2(hK(T), hK(T))
    sh += [f'v_mul_f32 v{accV+4*T+4+r}, v{accV+4*T+4+r}, v{vc+4*T+r}' for r in range(4)] + pack2(hV + 2 * T + 2, accV + 4 * T + 4)
    sh += [f'v_mul_f32 v{mxc+2*T}, {hex(f2u(QSC))}, v{rc+T}']
for _ in range(6): A(sh.pop(0))
for ks in range(16):
    c = lambda x: '0' if ks == 0 else vr(x, 4)
    X = vr(xr + 4 * ks, 4)
    if ks == 0: A('s_waitcnt lgkmcnt(7)')
    if ks == 3: A('s_waitcnt lgkmcnt(3)')
    if ks == 10: A('s_waitcnt lgkmcnt(0)')
    A(mf(vr(accK, 4), ar(aW(ks, 1), 4), X, c(accK)))
    if hr: A(hr.pop(0))
    if ks >= 12 and hr2:
        assert len(sh) <= 15
        A(hr2.pop(0))
    for _ in range(2):
        if sh: A(sh.pop(0))
    A(mf(vr(accV, 4), X, ar(aW(ks, 2), 4), c(accV)))
    for _ in range(2):
        if sh: A(sh.pop(0))
assert not sh and not hr and not hr2
A('s_waitcnt lgkmcnt(0)')
stamp()
A(f's_or_b32 s{sT0}, s{sS0}, s{sS1}')
A('s_cbranch_scc0 L_nofix')
nq = xr; rr = accV + 4; s12 = accV + 12; pp = accV + 16
for tok in range(2): A(f'ds_read_b128 {vr(rr + 4 * tok, 4)}, v{vRw} offset:{128 * tok}')
for r in range(4): A(f'v_mov_b32 v{s12+r}, 0')
A('s_waitcnt lgkmcnt(0)')
for j in range(4):
    for tok in range(2):
        A(f'v_dot2c_f32_bf16 v{s12+2*tok}, v{rr+4*tok+j}, v{vOnes}')
        A(f'v_dot2c_f32_bf16 v{s12+2*tok+1}, v{rr+4*tok+j}, v{rr+4*tok+j}')
mm_ = [[mf(vr(accQ, 4), ar(aW(ks, 0), 4), vr(xr + 4 * ks, 4), '0' if ks == 0 else vr(accQ, 4))] for ks in range(16)]
for x in mm_.pop(0): A(x)
A.sprinkle = (mm_, 2, emit)
for r in range(2): A(f'v_permlane32_swap_b32 v{s12+r}, v{s12+2+r}')
for r in range(2): A(f'v_add_f32 v{s12+r}, v{s12+r}, v{s12+2+r}')
for sh_ in (8, 4, 2, 1):
    for r in range(2): A(f'v_add_f32_dpp v{s12+r}, v{s12+r}, v{s12+r} row_ror:{sh_} {DP}')
for r in range(2): A(f'v_mov_b32 v{s12+2+r}, v{s12+r}')
for r in range(2): A(f'v_permlane16_swap_b32 v{s12+r}, v{s12+2+r}')
for r in range(2): A(f'v_add_f32 v{s12+r}, v{s12+r}, v{s12+2+r}')
ln_params(s12, s12 + 1, rw, rw + 1, pp, pp + 1, t0)
A.sprinkle = None
for g_ in mm_:
    for x in g_: emit(x)
A(f'v_xor_b32 v{pp}, 0x80000000, v{pp}')
A(f'v_mov_b32 v{pp+3}, v{pp+1}')
A(f'v_mov_b32 v{pp+2}, v{pp}')
for tok in range(2):
    for r in range(4): A(f'v_mov_b32_dpp v{nq+10*tok+4+r}, v{accK+r} row_newbcast:{tok} {DP}')
    A(f'v_mov_b32 v{nq+10*tok+8}, v{accV+tok}')
    A(f'v_mov_b32 v{nq+10*tok+9}, v{accV+tok}')
for r in range(2): A(f'v_permlane32_swap_b32 v{pp+r}, v{pp+2+r}')
for tok in range(2):
    A(f'v_permlane32_swap_b32 v{nq+10*tok+8}, v{nq+10*tok+9}')
norm_pk(-1, hp_, hp_ + 2, hp_ + 6)
for x in pack2(hK(-1), hK(-1)) + pack2(hV, accV): A(x)
for tok, sl in ((0, sS0), (1, sS1)):
    E = skip_unless([f's_cmp_eq_u32 s{sl}, 0'])
    n_ = nq + 10 * tok; p_ = pp + 2 * tok
    for r in range(4): A(f'v_mov_b32_dpp v{n_+r}, v{accQ+r} row_newbcast:{tok} {DP}')
    for h in range(2):
        A(f'v_pk_fma_f32 {vr(n_+4+2*h,2)}, {vr(csK+2*h,2)}, {vr(p_,2)}, {vr(n_+4+2*h,2)} op_sel_hi:[1,0,1]')
        A(f'v_pk_fma_f32 {vr(n_+2*h,2)}, {vr(csQ+2*h,2)}, {vr(p_,2)}, {vr(n_+2*h,2)} op_sel_hi:[1,0,1]')
    A(f'v_fma_f32 v{n_+8}, v{csV}, v{p_}, v{n_+8}')
    for h in range(2):
        A(f'v_pk_mul_f32 {vr(n_+4+2*h,2)}, {vr(n_+4+2*h,2)}, {vr(p_,2)} op_sel:[0,1] op_sel_hi:[1,1]')
    A(f'v_mul_f32 v{n_+8}, v{n_+8}, v{p_+1}')
    for x in pack2(n_, n_) + pack2(n_ + 4, n_ + 4): A(x)
    A(f'v_cvt_pk_bf16_f32 v{n_+8}, v{n_+8}, v{n_+8}')
    A(f'v_mul_f32 v{n_+9}, {hex(f2u(QSC))}, v{p_+1}')
    A(f's_and_b32 s{sT0}, s{sl}, 15')
    A(f's_lshr_b32 s{sT1}, s{sl}, 4')
    A(f's_lshl_b32 s{sT2}, 0x00010001, s{sT0}')
    A(f's_mov_b32 exec_lo, s{sT2}')
    A(f's_mov_b32 exec_hi, s{sT2}')
    A(f's_lshl_b32 s{sT2}, s{sT1}, 2')
    A(f's_set_gpr_idx_on s{sT2}, gpr_idx(DST)')
    for r in range(2): A(f'v_mov_b32 v{accQ+r}, v{n_+r}')
    for r in range(2): A(f'v_mov_b32 v{accK+r}, v{n_+4+r}')
    A(f's_lshl_b32 s{sT1}, s{sT1}, 1')
    A(f's_max_u32 s{sT2}, s{sT1}, 3')
    A(f's_cmp_eq_u32 s{sT1}, 2')
    A(f's_cselect_b32 s{sT2}, 2, s{sT2}')
    A(f's_set_gpr_idx_idx s{sT2}')
    A(f'v_mov_b32 v{mxc-2}, v{n_+9}')
    A('s_set_gpr_idx_off')
    A(f's_and_b32 s{sT2}, s{sT0}, 12')
    A(f's_lshl_b32 s{sT2}, s{sT2}, 2')
    A(f's_lshl_b64 exec, 0xffff, s{sT2}')
    A(f's_bfe_u32 s{sT2}, s{sT0}, 0x10001')
    A(f's_add_u32 s{sT1}, s{sT1}, s{sT2}')
    A(f's_lshl_b32 s{sT0}, s{sT0}, 4')
    A(f's_lshl_b32 s{sT0}, 0xffff, s{sT0}')
    A(f's_set_gpr_idx_on s{sT1}, gpr_idx(SRC2,DST)')
    A(f'v_bfi_b32 v{hV}, s{sT0}, v{n_+8}, v{hV}')
    A('s_set_gpr_idx_off')
    A('s_mov_b64 exec, -1')
    endif(E, False)
tag_check(dfl)
A('s_branch L_fixed')
A.label('L_nofix')
tag_check(dfl)
A('s_nop 0')
norm_pk(-1, hp_, hp_ + 2, hp_ + 6)
for x in pack2(hK(-1), hK(-1)) + pack2(hV, accV): A(x)
A.label('L_fixed')
V.release(rw, 4); V.release(xr, 64); V.release(rc, 4); V.release(vc, 16); V.release(vRw)
A(f's_cbranch_vccz L_dfok')
poll(df_issue, lambda: tag_check(dfl), 'DF')
A.label('L_dfok')
V.release(dfl, 2); V.release(vDf)
stamp()
A(f's_mov_b32 s{sLAYER}, 1')
V.take(oP, 8)
attention([])
A('s_branch L_pub')
A.label('L_fin')
A(f's_or_b32 s{sT0}, s2, s{sW}')
A('s_cbranch_scc1 L_fin2')
A(f's_mov_b32 s{sT1}, {WS_EPOCH}')
A('s_mov_b64 exec, 1')
A(f'buffer_store_dword v{tg}, v{vL16}, {srd(SRD_WS)}, s{sT1} offen')
A('s_mov_b64 exec, -1')
A.label('L_fin2')
finish()
emit_far()
A.label('L_end')
A('s_endpgm')

hdr = f"""; @launch grid=(256,1,1) block=(256,1,1) lds={LDS_SIZE}
.amdgcn_target "amdgcn-amd-amdhsa--gfx950"
.text
.globl {NAME}_kernel
.p2align 8
.type {NAME}_kernel,@function
"""
tail = f"""
.section .rodata,"a"
.p2align 6
.amdhsa_kernel {NAME}_kernel
  .amdhsa_next_free_vgpr 512
  .amdhsa_next_free_sgpr 102
  .amdhsa_accum_offset 256
  .amdhsa_group_segment_fixed_size 0
  .amdhsa_kernarg_size 88
  .amdhsa_user_sgpr_count 2
  .amdhsa_user_sgpr_kernarg_segment_ptr 1
  .amdhsa_system_sgpr_workgroup_id_x 1
.end_amdhsa_kernel
"""
open(sys.argv[1], 'w').write(hdr + A.text() + tail)
print('vgpr high water', V.hw, 'nops added', A.nops_added, 'lines', len(A.lines))
```

```python
import sys, struct
from asmlib import *

NAME = "interleave_layers__sliding_local_dilated__moe_arch_mod__prompt"
STOP = None
STAMPS = False
FORCE_REMOTE = False
OPT = set(sys.argv[2:])
for a in sys.argv[2:]:
    if a.startswith('stop='): STOP = a[5:]
    if a == 'stamps': STAMPS = True
    if a == 'remote': FORCE_REMOTE = True

def f2u(x): return struct.unpack('<I', struct.pack('<f', x))[0]
MB = 1 << 20
WS_O = 0
WS_X1 = WS_O
WS_SENT = 4 * MB
WS_KEYS = WS_SENT + 16384
WS_HS = WS_SENT + 32768
WS_X2R = WS_SENT
WS_CAND = WS_SENT + 64 * 1024
WS_YP = WS_SENT + 576 * 1024
assert WS_YP + 2 * 86 * 4096 <= WS_SENT + 1280 * 1024
WS_ST = WS_SENT + 1280 * 1024
WS_HALO = 6 * MB
WS_ST0 = WS_HALO + 256 * 1024 + 128
WS_FL = WS_HALO + 320 * 1024
WS_X1F = WS_HALO + 352 * 1024
WS_HELLO = WS_HALO + 384 * 1024
WS_EPOCH = WS_HELLO + 8 * 4096
WS_FT = 10 * MB
WS_STAMP = 8 * MB
WS_SIZE = 16 * MB
L_A = 0
L_HA = 65536
HST = 1280
L_W = L_HA + 8 * HST
SLOT = {1: 0, 0: 24576, 2: 49152}
L_WO = L_W + 12288
def wo_off(ks): return 61440 if ks == 15 else ((ks - 12) * 4096 if ks >= 12 else (12288 + (ks - 6) * 4096 if ks >= 6 else 36864 + ks * 4096))
L_W15 = L_A
L_FT = L_A + 12288
L_WD = L_A + 24576
L_RED = L_W
L_ROW = L_W + 4096
L_XS = L_W + 8192
L_TAB = L_W + 3 * 24576 + 4096
L_CS = L_TAB + 640
L_H = L_CS + 2048
L_X2S = L_H + 64
L_KEY = L_X2S + 128
LDS_SIZE = 160 * 1024
assert L_KEY + 64 <= LDS_SIZE
SRD_X, SRD_W, SRD_WS, SRD_OUT, SRD_U, SRD_T = 4, 8, 12, 16, 20, 24
P = 28
sW, sSET, sI, sHG, sRB, sP, sJ0, sFIRST, sLOCAL, sLAYER = range(50, 60)
sT0, sT1, sT2, sT3, sT4, sT5 = range(60, 66)
sM0, sM1 = 66, 68
sRET = 70
sSTAMP = 72
sGUARD = 75
sTAG, sTAGB = 76, 77
sFS, sHASF, sK0, sK1, sTOK, sRHO, sKEY, sST = range(78, 86)
sAB, sAM, sWM, sOM = range(86, 90)
sSTB = 92
sU0, sU1, sU2, sU3 = range(94, 98)
stamp_n = [0]

A = Asm()
VP = Pool(1, 80)
V = Pool(80, 256)
vST = VP.alloc()
oP = V.take(80, 8); wra = V.take(88, 4)
def srd(n): return sr(n, 4)
DP = 'row_mask:0xf bank_mask:0xf'

def stamp():
    if not STAMPS: return
    n = stamp_n[0]; stamp_n[0] += 1
    assert n < 32
    A(f'{"s_memtime" if "cyc" in sys.argv else "s_memrealtime"} {sr(sSTAMP,2)}')
    A(f's_lshl_b32 s{sST}, s{sLAYER}, 5')
    A(f's_add_u32 s{sST}, s{sST}, {n}')
    A('s_waitcnt lgkmcnt(0)')
    A(f's_mov_b32 m0, s{sST}')
    A('s_nop 0')
    A(f'v_writelane_b32 v{vST}, s{sSTAMP}, m0')

def mk_srd(d, ptr, size):
    A(f's_mov_b32 s{d}, s{ptr}')
    A(f's_and_b32 s{d+1}, s{ptr+1}, 0xffff')
    A(f's_mov_b32 s{d+2}, {size}')
    A(f's_mov_b32 s{d+3}, 0x20000')

def bf_round(dst, src):
    A(f'v_cvt_pk_bf16_f32 v{dst}, 0, v{src}')

def ln_params(s1, s2, mu, var, m, rs, t):
    A(f'v_mul_f32 v{mu}, {hex(f2u(1/512))}, v{s1}')
    A(f'v_mul_f32 v{var}, {hex(f2u(1/512))}, v{s2}')
    A(f'v_fma_f32 v{var}, -v{mu}, v{mu}, v{var}')
    A(f'v_max_f32 v{var}, 0, v{var}')
    round_params(mu, var, m, rs, t)

def round_params(mu, var, m, rs, t):
    bf_round(t, var)
    A(f'v_add_f32 v{t}, {hex(f2u(1e-5))}, v{t}')
    bf_round(t, t)
    A(f'v_sqrt_f32 v{t}, v{t}')
    bf_round(m, mu)
    bf_round(t, t)
    A(f'v_rcp_f32 v{rs}, v{t}')

def finish():
    if STAMPS:
        stamp()
        A(f's_lshl_b32 s{sT0}, s2, 10')
        A(f's_add_u32 s{sT0}, s{sT0}, {WS_STAMP}')
        A(f'v_lshlrev_b32 v{t0}, 2, v0')
        A(f'buffer_store_dword v{vST}, v{t0}, {srd(SRD_WS)}, s{sT0} offen')
    A('s_endpgm')

def mf(d, a, b, c, k32=True):
    return f'v_mfma_f32_16x16x{32 if k32 else 16}_bf16 {d}, {a}, {b}, {c}'
def emit(x):
    if callable(x): x()
    elif isinstance(x, tuple): A(x[0], tag=x[1])
    else: A(x)

A.raw(f'{NAME}_kernel:')
A('s_cmp_ge_u32 s2, 256')
A('s_cbranch_scc1 L_end')
if STAMPS: A(f'{"s_memtime" if "cyc" in sys.argv else "s_memrealtime"} s[90:91]')
A(f's_load_dwordx16 s[{P}:{P+15}], s[0:1], 0')
A(f's_load_dwordx4 s[{P+16}:{P+19}], s[0:1], 64')
A(f's_load_dwordx2 s[{P+20}:{P+21}], s[0:1], 80')
P_X, P_W, P_WO, P_BX, P_WR, P_WG, P_WU, P_WD, P_OUT, P_DBG, P_WS = [P + 2 * i for i in range(11)]
vL = VP.alloc(); vQ = VP.alloc(); vG = VP.alloc(); vL16 = VP.alloc()
t0 = VP.alloc(); t1 = VP.alloc(); t2 = VP.alloc(); t3 = VP.alloc()
vDum = VP.alloc()
A(f'v_lshrrev_b32 v{t0}, 6, v0')
A(f'v_and_b32 v{vL}, 63, v0')
A(f'v_readfirstlane_b32 s{sW}, v{t0}')
A(f's_lshr_b32 s{sI}, s2, 3')
A(f's_getpc_b64 {sr(sT0,2)}')
A.label('L_pc')
A(f's_lshl_b32 s{sT2}, s{sI}, 2')
A(f's_add_u32 s{sT2}, s{sT2}, s{sW}')
A(f's_lshl_b32 s{sT2}, s{sT2}, 8')
A(f'v_lshl_add_u32 v{t0}, v{vL}, 7, s{sT2}')
A(f'v_min_u32 v{t0}, L_end-L_pc, v{t0}')
A('s_mov_b64 exec, 3')
A(f'global_load_dword v{vDum}, v{t0}, {sr(sT0,2)}', tag='code')
A('s_mov_b64 exec, -1')
A(f'v_and_b32 v{vQ}, 15, v0')
A(f'v_lshrrev_b32 v{vG}, 4, v{vL}')
A(f'v_lshlrev_b32 v{vL16}, 4, v{vL}')
A(f's_mov_b32 s{sLAYER}, 0')
if STAMPS: A(f'v_mov_b32 v{vST}, 0')
A(f's_and_b32 s{sSET}, s2, 7')
A(f's_and_b32 s{sHG}, s{sI}, 7')
A(f's_lshr_b32 s{sT0}, s{sI}, 3')
A(f's_lshl_b32 s{sRB}, s{sSET}, 2')
A(f's_add_u32 s{sRB}, s{sRB}, s{sT0}')
A(f's_lshr_b32 s{sP}, s{sRB}, 4')
A(f's_and_b32 s{sJ0}, s{sRB}, 15')
A(f's_cmp_eq_u32 s{sJ0}, 0')
A(f's_cselect_b32 s{sFIRST}, 1, 0')
A(f's_lshl_b32 s{sJ0}, s{sJ0}, 6')
vXe = VP.alloc(); vXo = VP.alloc()
vR8 = V.take(93)
A(f'v_lshrrev_b32 v{vR8}, 3, v{vL}')
A(f'v_and_b32 v{t1}, 7, v{vL}')
A(f'v_xor_b32 v{t2}, v{t1}, v{vG}')
A(f'v_lshlrev_b32 v{t2}, 4, v{t2}')
A(f'v_lshl_add_u32 v{vXe}, v{vR8}, 11, v{t2}')
A(f'v_xor_b32 v{vXo}, 64, v{vXe}')
A(f'v_add_u32 v{vXo}, {8 * 2048}, v{vXo}')
vWo = V.take(92); vWd = V.alloc(); vSt = V.alloc()
A(f'v_and_b32 v{t0}, 2, v{vR8}')
A(f's_and_b32 s{sT0}, s{sW}, 1')
A(f's_lshl_b32 s{sT0}, s{sT0}, 2')
A(f'v_or_b32 v{t0}, s{sT0}, v{t0}')
A(f'v_xor_b32 v{t0}, v{t0}, v{t1}')
A(f's_lshl_b32 s{sT0}, s{sHG}, 7')
A(f'v_lshl_add_u32 v{t0}, v{t0}, 4, s{sT0}')
A(f's_lshl_b32 s{sT0}, s{sW}, 3')
A(f'v_add_u32 v{t1}, s{sT0}, v{vR8}')
A(f'v_mul_u32_u24 v{vWd}, 3072, v{t1}')
A(f'v_add_u32 v{vWd}, v{vWd}, v{t0}')
A(f'v_lshl_add_u32 v{vWo}, v{t1}, 10, v{t0}')
V.release(vR8)
A(f'v_lshrrev_b32 v{t0}, 5, v{vL}')
A(f'v_and_b32 v{t1}, 31, v{vL}')
A(f'v_lshlrev_b32 v{t1}, 4, v{t1}')
A(f'v_lshl_add_u32 v{vSt}, v{t0}, 11, v{t1}')
A(f's_lshl_b32 s{sT4}, s{sJ0}, 11')
A(f's_lshl_b32 s{sT1}, s{sP}, 10')
A(f's_add_u32 s{sT4}, s{sT4}, s{sT1}')
A(f's_lshl_b32 s{sAB}, s{sW}, 15')
A(f's_add_u32 s{sAB}, s{sAB}, s{sT4}')
A(f's_lshl_b32 s{sAM}, s{sW}, 11')
A(f's_mul_i32 s{sWM}, s{sW}, 3072')
A(f's_add_u32 s{sWM}, s{sWM}, {L_W}')
A(f's_lshl_b32 s{sT2}, s{sHG}, 2')
A(f's_add_u32 s{sT2}, s{sT2}, s{sW}')
A(f's_lshl_b32 s{sT2}, s{sT2}, 12')
A(f's_add_u32 s{sT2}, s{sT2}, s{sT4}')
A(f's_cmp_eq_u32 s{sFIRST}, 1')
A(f's_cselect_b32 s{sT5}, 0, 32768')
A(f's_sub_u32 s{sT5}, s{sT4}, s{sT5}')
A(f's_lshl_b32 s{sT3}, s{sW}, 8')
A(f's_add_u32 s{sT5}, s{sT5}, s{sT3}')
A(f's_mul_i32 s{sT4}, s{sW}, {2 * HST}')
vTw = V.alloc(); vTo = V.alloc()
A(f's_lshl_b32 s{sT0}, s2, 2')
A(f's_add_u32 s{sT0}, s{sT0}, s{sW}')
A(f's_mul_i32 s{sT1}, s{sT0}, {12 * 128}')
A(f's_lshl_b32 s{sT0}, s{sT0}, 9')
A(f'v_lshl_add_u32 v{vTw}, v{vL}, 7, s{sT1}')
A(f'v_lshl_add_u32 v{vTo}, v{vL}, 7, s{sT0}')
A(f's_lshl_b32 s{sT0}, s{sI}, 2')
A(f's_add_u32 s{sT0}, s{sT0}, s{sW}')
A(f's_lshl_b32 s{sT0}, s{sT0}, 10')
A(f'v_lshl_add_u32 v{t3}, v{vQ}, 17, s{sT0}')
A(f'v_cmp_lt_u32 vcc, 15, v{vL}')
A('s_waitcnt lgkmcnt(0)')
if STAMPS:
    A(f'v_writelane_b32 v{vST}, s90, 0'); stamp_n[0] = 1
stamp()
mk_srd(SRD_W, P_W, 512 * 3072)
A(f's_sub_u32 s{sT0}, 384, s{P_W}')
A(f's_and_b32 s{sT0}, s{sT0}, 0x380')
A(f'v_add_u32 v{t0}, s{sT0}, v{t3}')
A(f'v_cndmask_b32 v{vTw}, v{vTw}, v{t0}, vcc')
A(f's_sub_u32 s{sT0}, 384, s{P_WO}')
A(f's_and_b32 s{sT0}, s{sT0}, 0x380')
A(f'v_add_u32 v{t0}, s{sT0}, v{t3}')
A(f'v_cndmask_b32 v{vTo}, v{vTo}, v{t0}, vcc')
A('s_mov_b64 exec, 0x0fff0fff')
A(f'buffer_load_dword v{vDum}, v{vTw}, {srd(SRD_W)}, 0 offen', tag='touch')
if 'woearly' in OPT:
    A('s_mov_b64 exec, 0x000f000f')
    A(f'global_load_dword v{vDum}, v{vTo}, {sr(P_WO,2)}', tag='touch')
A('s_mov_b64 exec, -1')
A(f's_add_u32 s{sT0}, s{P_WS}, {WS_EPOCH}')
A(f's_addc_u32 s{sT1}, s{P_WS+1}, 0')
A(f's_load_dword s{sTAG}, {sr(sT0,2)}, 0')
mk_srd(SRD_X, P_X, 2 * MB)
srow = V.alloc(8, 2)
A(f'buffer_load_dwordx4 {vr(srow,4)}, v{vSt}, {srd(SRD_X)}, s{sT2} offen', tag='srow')
A(f'buffer_load_dwordx4 {vr(srow+4,4)}, v{vSt}, {srd(SRD_X)}, s{sT2} offen offset:512', tag='srow')
V.release(vSt); V.release(vTw)
def stage_dma(s):
    H = []
    for ksl in range(2):
        ks = 2 * s + ksl
        H.append([f's_add_u32 m0, s{sAM}, {L_A + s * 8192 + ksl * 1024}',
                  f's_add_u32 s{sT3}, s{sAB}, {s * 128}',
                  (f'buffer_load_dwordx4 v{vXo if ksl else vXe}, {srd(SRD_X)}, s{sT3} offen lds', f'S{s}'),
                  (f's_sub_u32 m0, s{sWM}, {L_W - L_W15}' if ks == 15 else f's_add_u32 m0, s{sWM}, {SLOT[s % 3] + ksl * 12288}'),
                  f's_mov_b32 s{sT3}, {ks * 98304}'] +
                 [(f'buffer_load_dwordx4 v{vWd}, {srd(SRD_W)}, s{sT3} offen offset:{m * 1024} lds', f'S{s}') for m in range(3)])
    return H
for h in stage_dma(0):
    for x in h: emit(x)
for j in range(2):
    A(f's_add_u32 m0, s{sT4}, {L_HA + j * HST}')
    if j: A(f's_add_u32 s{sT5}, s{sT5}, 128')
    A(f'buffer_load_dwordx4 v{vXo}, {srd(SRD_X)}, s{sT5} offen lds', tag='S0')
tp = V.alloc(2, 2)
A(f'v_mov_b32 v{tp}, s{P_WR}')
A(f'v_mov_b32 v{tp+1}, s{P_WR+1}')
A(f'v_lshl_add_u32 v{tp}, v{vL}, 7, v{tp}')
pages = [(P_WS, 2 * MB - 128), (P_WS, 4 * MB), (P_WS, 6 * MB), (P_WS, 10 * MB), (P_WS, 12 * MB), (P_OUT, 0), (P_WG, 0), (P_WU, 0), (P_WD, 0)]
for n, (p_, off) in enumerate(pages):
    if off:
        A(f's_add_u32 s{sT0}, s{p_}, {off}')
        A(f's_addc_u32 s{sT1}, s{p_+1}, 0')
        A(f'v_writelane_b32 v{tp}, s{sT0}, {8 + n}')
        A(f'v_writelane_b32 v{tp+1}, s{sT1}, {8 + n}')
    else:
        A(f'v_writelane_b32 v{tp}, s{p_}, {8 + n}')
        A(f'v_writelane_b32 v{tp+1}, s{p_+1}, {8 + n}')
A(f's_add_u32 s{sT0}, s{P_WR}, 1024')
A(f's_cselect_b32 s{sT0}, {hex(((1 << len(pages)) - 1) << 8)}, {0}')
A(f's_cselect_b32 s{sT0}, s{sT0}, {hex((1 << (8 + len(pages))) - 1)}')
A(f's_lshl_b32 s{sT1}, 0x11111111, s{sW}')
A(f's_and_b32 exec_lo, s{sT0}, s{sT1}')
A('s_mov_b32 exec_hi, 0')
A(f'global_load_dword v{vDum}, {vr(tp,2)}, off sc1', tag='touch')
if 'woearly' not in OPT:
    A('s_mov_b64 exec, 0x000f000f')
    A(f'global_load_dword v{vDum}, v{vTo}, {sr(P_WO,2)}', tag='touch')
A('s_mov_b64 exec, -1')
V.release(vTo)
V.release(tp, 2)
mk_srd(SRD_WS, P_WS, WS_SIZE)
mk_srd(SRD_OUT, P_OUT, 2 * MB)
A(f's_cmp_lt_u32 s{sW}, 2')
A(f's_cselect_b64 {sr(SRD_T,2)}, {sr(P_WG,2)}, {sr(P_WU,2)}')
A(f's_and_b32 s{SRD_T+1}, s{SRD_T+1}, 0xffff')
A(f's_mov_b32 s{SRD_T+2}, {512 * 2752}')
A(f's_mov_b32 s{SRD_T+3}, 0x20000')
mk_srd(SRD_U, P_WD, 1376 * 1024)
A(f's_mul_i32 s{sFS}, s{sSET}, 11')
A(f's_add_u32 s{sFS}, s{sFS}, s{sI}')
A(f's_cmp_lt_u32 s{sI}, 11')
A(f's_cselect_b32 s{sHASF}, 1, 0')
A(f's_cmp_lt_u32 s{sFS}, 86')
A(f's_cselect_b32 s{sHASF}, s{sHASF}, 0')
vFp = V.alloc(3); vFd = V.alloc(); vFr = VP.alloc(); vFs = VP.alloc()
A(f's_lshl_b32 s{sT0}, s{sI}, 1')
A(f's_and_b32 s{sT1}, s{sW}, 1')
A(f's_add_u32 s{sT0}, s{sT0}, s{sT1}')
A(f's_mul_i32 s{sT0}, s{sT0}, {8 * 2752}')
A(f's_mul_i32 s{sT1}, s{sSET}, 352')
A(f's_add_u32 s{sT0}, s{sT0}, s{sT1}')
for n in range(3):
    A(f'v_add_u32 v{t0}, {64 * n}, v{vL}')
    A(f'v_mul_u32_u24 v{t1}, 171, v{t0}')
    A(f'v_lshrrev_b32 v{t1}, 12, v{t1}')
    A(f'v_mul_u32_u24 v{t1}, {2752 - 384}, v{t1}')
    A(f'v_lshl_add_u32 v{t0}, v{t0}, 4, s{sT0}')
    A(f'v_add_u32 v{vFp+n}, v{t0}, v{t1}')
A(f'v_bfe_u32 v{t1}, v{vL}, 2, 2')
A(f'v_lshl_add_u32 v{t0}, v{vG}, 3, v{t1}')
A(f'v_mul_u32_u24 v{vFr}, 384, v{t0}')
A(f'v_and_b32 v{t0}, 3, v{vL}')
A(f'v_lshl_add_u32 v{vFr}, v{t0}, 3, v{vFr}')
A(f's_lshl_b32 s{sT0}, s{sW}, 5')
A(f's_add_u32 s{sT0}, s{sT0}, {L_FT}')
A(f'v_add_u32 v{vFr}, s{sT0}, v{vFr}')
A(f'v_lshlrev_b32 v{vFs}, 4, v{t0}')
A(f'v_lshl_add_u32 v{vFs}, v{t1}, 13, v{vFs}')
A(f'v_and_b32 v{t0}, 1, v{vG}')
A(f'v_lshl_add_u32 v{vFs}, v{t0}, 8, v{vFs}')
A(f'v_lshrrev_b32 v{t0}, 1, v{vG}')
A(f'v_lshl_add_u32 v{vFs}, v{t0}, 6, v{vFs}')
A(f's_mul_i32 s{sT0}, s{sSET}, 12')
A(f's_add_u32 s{sT0}, s{sT0}, s{sW}')
A(f's_lshl_b32 s{sT0}, s{sT0}, 15')
A(f's_and_b32 s{sT1}, s{sI}, 15')
A(f's_lshl_b32 s{sT1}, s{sT1}, 9')
A(f's_add_u32 s{sT0}, s{sT0}, s{sT1}')
A(f's_lshr_b32 s{sT1}, s{sI}, 4')
A(f's_lshl_b32 s{sT1}, s{sT1}, 7')
A(f's_add_u32 s{sT0}, s{sT0}, s{sT1}')
A(f's_add_u32 s{sT0}, s{sT0}, {WS_FT}')
A(f'v_add_u32 v{vFs}, s{sT0}, v{vFs}')
A(f's_lshl_b32 s{sT1}, s{sFS}, 14')
A(f's_cmp_eq_u32 s{sHASF}, 1')
A(f's_cselect_b32 s{sT1}, s{sT1}, 0x40000000')
A(f's_lshl_b32 s{sT0}, s{sW}, 12')
A(f's_add_u32 s{sT1}, s{sT1}, s{sT0}')
A(f'v_add_u32 v{vFd}, s{sT1}, v{vL16}')
aFG, aFD = 192, 224
vOnes = VP.alloc(2, 2)
A(f'v_mov_b32 v{vOnes}, 0x3f803f80')
A(f'v_mov_b32 v{vOnes+1}, 0x3f803f80')
A(f'v_lshrrev_b32 v{t0}, 5, v0')
A(f'v_mul_u32_u24 v{t0}, {HST}, v{t0}')
A(f'v_and_b32 v{t1}, 31, v0')
A(f'v_lshl_add_u32 v{t0}, v{t1}, 2, v{t0}')
A(f'v_add_u32 v{t0}, {L_HA + 1024}, v{t0}')
A(f'ds_write2_b32 v{t0}, v{vOnes}, v{vOnes} offset0:0 offset1:32')
vQ4 = VP.alloc(); vG16 = VP.alloc(); vGm = VP.alloc()
A(f'v_lshlrev_b32 v{vQ4}, 2, v{vQ}')
A(f'v_add_u32 v{vQ4}, {L_TAB}, v{vQ4}')
A(f'v_lshlrev_b32 v{vG16}, 4, v{vG}')
A(f'v_add_u32 v{vG16}, {L_TAB}, v{vG16}')
A(f'v_mov_b32 v{t0}, 0')
A(f'ds_write2_b32 v{vQ4}, v{t0}, v{t0} offset0:0 offset1:80')
A(f'v_and_b32 v{t0}, 1, v{vG}')
A(f'v_lshlrev_b32 v{vGm}, 5, v{t0}')
A(f'v_lshrrev_b32 v{t1}, 1, v{vG}')
A(f'v_lshl_add_u32 v{vGm}, v{t1}, 4, v{vGm}')
vOst = VP.alloc()
A(f'v_lshlrev_b32 v{vOst}, 14, v{t0}')
A(f'v_lshl_add_u32 v{vOst}, v{t1}, 8, v{vOst}')
A(f'v_lshl_add_u32 v{vOst}, v{vQ}, 4, v{vOst}')
A(f's_lshl_b32 s{sT0}, s{sRB}, 16')
A(f's_lshl_b32 s{sT1}, s{sHG}, 11')
A(f's_add_u32 s{sT0}, s{sT0}, s{sT1}')
A(f's_lshl_b32 s{sT1}, s{sW}, 9')
A(f's_add_u32 s{sT0}, s{sT0}, s{sT1}')
A(f'v_add_u32 v{vOst}, s{sT0}, v{vOst}')
vA = VP.alloc(2); vH = VP.alloc(2)
A(f'v_lshrrev_b32 v{t0}, 1, v{vQ}')
A(f'v_xor_b32 v{t0}, v{vG}, v{t0}')
A(f'v_lshlrev_b32 v{t0}, 4, v{t0}')
A(f'v_lshl_add_u32 v{vA}, v{vQ}, 7, v{t0}')
A(f'v_and_b32 v{t1}, 1, v{vQ}')
A(f'v_lshlrev_b32 v{t1}, 7, v{t1}')
A(f'v_lshl_add_u32 v{t1}, v{vG}, 4, v{t1}')
A(f'v_add_u32 v{t1}, {L_HA + 1024}, v{t1}')
A(f'v_add_u32 v{t2}, {L_HA - 1024}, v{vA}')
A(f'v_cmp_lt_u32 vcc, 7, v{vQ}')
A(f'v_cndmask_b32 v{vH}, v{t1}, v{t2}, vcc')
A(f'v_xor_b32 v{vA+1}, 64, v{vA}')
A(f'v_xor_b32 v{vH+1}, 64, v{vH}')
vWr = V.alloc(); vBo = VP.alloc(4)
A(f'v_bfe_u32 v{t0}, v{vL}, 2, 2')
A(f'v_and_b32 v{t2}, 3, v{vL}')
A(f'v_lshlrev_b32 v{t2}, 3, v{t2}')
A(f'v_lshl_add_u32 v{t2}, v{t0}, 7, v{t2}')
A(f'v_lshrrev_b32 v{t0}, 1, v{t0}')
A(f'v_and_b32 v{t1}, 1, v{vG}')
A(f'v_lshl_or_b32 v{t0}, v{t1}, 1, v{t0}')
A(f'v_lshl_add_u32 v{t2}, v{t0}, 5, v{t2}')
A(f'v_lshl_add_u32 v{vBo}, v{vG}, 10, v{t2}')
A(f'v_add_u32 v{vBo}, {L_WO}, v{vBo}')
assert L_WO % 128 == 0 and L_W % 128 == 0
for t in range(1, 4): A(f'v_xor_b32 v{vBo+t}, {t << 5}, v{vBo}')
A(f's_lshl_b32 s{sT0}, s{sW}, 5')
A(f'v_xor_b32 v{t2}, s{sT0}, v{t2}')
A(f'v_mul_u32_u24 v{vWr}, 3072, v{vG}')
vWr15 = V.alloc()
A(f'v_add_u32 v{vWr15}, v{vWr}, v{t2}')
A(f'v_add_u32 v{vWr}, {L_W}, v{vWr15}')
assert L_W15 == 0
A(f's_lshl_b32 s{sOM}, s{sW}, 10')
A(f's_add_u32 s{sOM}, s{sOM}, {L_WO}')
vBP = VP.alloc(4, 2); vBC = VP.alloc(4, 2); vBP0 = VP.alloc(4, 2); vMP = VP.alloc(2)
A(f'v_lshlrev_b32 v{t0}, 2, v{vG}')
A(f'v_sub_u32 v{t0}, v{vQ}, v{t0}')
A(f'v_mov_b32 v{t2}, 0xff800000')
A(f's_cmp_eq_u32 s{sFIRST}, 1')
A(f's_cselect_b64 {sr(sM0,2)}, 0, -1')
for r in range(4):
    A(f'v_add_u32 v{t1}, {-r}, v{t0}')
    A(f'v_cmp_lt_u32 vcc, 7, v{t1}')
    A(f'v_cndmask_b32 v{vBC+r}, 0, v{t2}, vcc')
    A(f'v_cmp_lt_i32 vcc, -9, v{t1}')
    A(f'v_cndmask_b32 v{vBP+r}, 0, v{t2}, vcc')
    A(f'v_cndmask_b32 v{vBP0+r}, v{t2}, v{vBP+r}, {sr(sM0,2)}')
    A(f'v_mov_b32 v{t3}, {hex(0xffff0000 if r & 1 else 0xffff)}')
    if r & 1:
        A(f'v_cndmask_b32 v{t3}, v{t3}, 0, vcc')
        A(f'v_or_b32 v{vMP + (r >> 1)}, v{vMP + (r >> 1)}, v{t3}')
    else:
        A(f'v_cndmask_b32 v{vMP + (r >> 1)}, v{t3}, 0, vcc')
A(f's_mov_b32 s{sM0}, 0xaaaaaaaa')
A(f's_mov_b32 s{sM0+1}, 0xaaaaaaaa')
A(f's_mov_b32 s{sM1}, 0xcccccccc')
A(f's_mov_b32 s{sM1+1}, 0xcccccccc')
vS0 = V.alloc(); vS0w = V.alloc(); vPf = V.alloc(); vS4 = V.alloc(4, 2)
A(f's_lshl_b32 s{sT0}, s{sRB}, 10')
A(f's_add_u32 s{sT0}, s{sT0}, {WS_ST0 - 128}')
A(f'v_lshl_add_u32 v{vS0}, v0, 4, s{sT0}')
A(f's_lshl_b32 s{sT0}, s{sSET}, 12')
A(f's_add_u32 s{sT0}, s{sT0}, {WS_ST0}')
A(f'v_and_b32 v{t0}, 31, v{vL}')
A(f'v_lshl_add_u32 v{t0}, v{t0}, 7, s{sT0}')
A(f'v_cmp_le_u32 vcc, 128, v0')
A(f'v_cndmask_b32 v{vS0}, v{vS0}, v{t0}, vcc')
A(f'v_lshlrev_b32 v{vS0w}, 2, v0')
A(f'v_add_u32 v{vS0w}, {L_TAB + 32}, v{vS0w}')
vPf2 = V.alloc()
A(f's_mul_i32 s{sT0}, s2, 5120')
A(f's_add_u32 s{sT0}, s{sT0}, {WS_SENT}')
A(f'v_lshl_add_u32 v{vPf}, v0, 4, s{sT0}')
A(f's_lshl_b32 s{sT1}, s{sW}, 8')
A(f's_add_u32 s{sT0}, s{sT0}, s{sT1}')
A(f's_add_u32 s{sT0}, s{sT0}, 4096')
A(f'v_lshl_add_u32 v{t0}, v{vQ}, 4, s{sT0}')
A(f's_lshl_b32 s{sSTB}, s{sRB}, 2')
A(f's_add_u32 s{sSTB}, s{sSTB}, s{sW}')
A(f'v_mov_b32 v{t1}, 0x40000000')
A(f'v_cmp_gt_u32 vcc, 16, v{vL}')
A(f'v_cndmask_b32 v{vPf2}, v{t1}, v{t0}, vcc')
vTs = V.alloc()
A(f'v_mov_b32 v{vTs}, v{t1}')
A(f's_lshl_b32 s{sT0}, s{sSTB}, 11')
A(f's_lshl_b32 s{sT1}, s{sHG}, 8')
A(f's_add_u32 s{sT0}, s{sT0}, s{sT1}')
for n, off in enumerate((0, 128, 1 << 18, (1 << 18) + 128)):
    A(f's_add_u32 s{sT1}, s{sT0}, {WS_ST + off}')
    A(f'v_writelane_b32 v{vTs}, s{sT1}, {16 + n}')
A(f's_lshl_b32 s{sT0}, s{sRB}, 9')
for n, off in enumerate((0, 128, 1 << 14, (1 << 14) + 128)):
    A(f's_add_u32 s{sT1}, s{sT0}, {WS_FL + off}')
    A(f'v_writelane_b32 v{vTs}, s{sT1}, {20 + n}')
for n, off in enumerate((0, 128, 256)):
    A(f's_add_u32 s{sT1}, s{sT0}, {WS_X1F + off}')
    A(f'v_writelane_b32 v{vTs}, s{sT1}, {27 + n}')
A(f's_lshl_b32 s{sT0}, s{sSET}, 12')
A(f's_lshl_b32 s{sT1}, s{sI}, 5')
A(f's_add_u32 s{sT0}, s{sT0}, s{sT1}')
A(f's_add_u32 s{sT0}, s{sT0}, {WS_HELLO + 2048}')
A(f'v_writelane_b32 v{vTs}, s{sT0}, 25')
for r in range(4): A(f'v_mov_b32 v{vS4+r}, -1')
A(f'buffer_load_dword v{vDum}, v{vTs}, {srd(SRD_WS)}, 0 offen sc1', tag='to')
s12 = V.alloc(4, 2); gr = V.alloc(4, 2)
A(f'v_mov_b32 v{s12}, 0')
A(f'v_mov_b32 v{s12+1}, 0')
A(f's_getreg_b32 s{sTAGB}, hwreg(HW_REG_XCC_ID)')
A(f's_and_b32 s{sTAGB}, s{sTAGB}, 15')
A(f's_lshl_b32 s{sT2}, s{sRB}, 3')
A(f's_add_u32 s{sT2}, s{sT2}, s{sHG}')
A(f's_lshl_b32 s{sT2}, s{sT2}, 2')
A(f's_add_u32 s{sT2}, s{sT2}, s{sW}')
A(f's_lshl_b32 s{sT2}, s{sT2}, 5')
A(f's_add_u32 s{sT2}, s{sT2}, {WS_ST0}')
A(f'v_lshrrev_b32 v{t1}, 1, v{vL}')
A.wait_vm('srow', 'lgkmcnt(0)')
stamp()
g1 = []; g2 = []
for hh in stage_dma(1): g1 += [hh[:3], hh[3:6], hh[6:7], hh[7:8]]
for hh in stage_dma(2): g2 += [hh[:3], hh[3:6], hh[6:7], hh[7:8]]
A.sprinkle = (g1, 4, emit)
for j in range(8):
    A(f'v_dot2c_f32_bf16 v{s12}, v{srow+j}, v{vOnes}')
    A(f'v_dot2c_f32_bf16 v{s12+1}, v{srow+j}, v{srow+j}')
A(f's_mul_i32 s{sTAG}, s{sTAG}, 0x9e3779b1')
A(f's_add_u32 s{sTAG}, s{sTAG}, 0x7f4a7c15')
A(f's_mul_i32 s{sT0}, s{sTAG}, 0x85ebca6b')
for sh in (8, 4, 2, 1):
    for r in range(2): A(f'v_add_f32_dpp v{s12+r}, v{s12+r}, v{s12+r} row_ror:{sh} {DP}')
    if sh == 8: A(f's_brev_b32 s{sT0}, s{sT0}')
    if sh == 4: A(f's_and_b32 s{sT0}, s{sT0}, 0xfffffff0')
    if sh == 2: A(f's_or_b32 s{sTAGB}, s{sTAGB}, s{sT0}')
for r in range(2): A(f'v_mov_b32 v{s12+2+r}, v{s12+r}')
A(f'v_mov_b32 v{gr+2}, s{sTAG}')
for r in range(2): A(f'v_permlane16_swap_b32 v{s12+r}, v{s12+2+r}')
for r in range(2): A(f'v_add_f32 v{s12+r}, v{s12+r}, v{s12+2+r}')
ln_params(s12, s12 + 1, s12 + 2, s12 + 3, gr, gr + 1, t0)
A(f'v_xor_b32 v{gr}, 0x80000000, v{gr}')
A(f'v_mov_b32 v{gr+3}, s{sTAGB}')
A.sprinkle = None
assert not g1
A('s_mov_b32 exec_lo, 1')
A('s_mov_b32 exec_hi, 1')
A(f'buffer_store_dwordx4 {vr(gr,4)}, v{t1}, {srd(SRD_WS)}, s{sT2} offen sc1', tag='st0')
A('s_mov_b64 exec, -1')
V.release(srow, 8); V.release(s12, 4)

accQ = V.take(196, 20); accK = V.take(216, 20); accV = V.take(236, 20)
fr = [V.alloc(20, 2), V.alloc(20, 2)]
xP = VP.alloc(8, 2)
aux = VP.alloc(8, 2)
vSW = VP.alloc()
def aW(ks, m): return (ks * 3 + m) * 4
def x_reads(ks, b):
    u = ks & 1; kc = ks >> 1
    return [f'ds_read_b128 {vr(b, 4)}, v{vH+u} offset:{kc * HST}'] + \
           [f'ds_read_b128 {vr(b + 4 + 4 * T, 4)}, v{vA+u} offset:{(kc * 8 + 2 * T) * 1024}' for T in range(4)]
def p1_reads(ks):
    so = SLOT[(ks >> 1) % 3] + (ks & 1) * 12288
    if ks == 15: so = 0
    W_ = [f'ds_read_b64_tr_b16 {ar(aW(ks, m) + 2 * h, 2)}, v{vWr15 if ks == 15 else vWr} offset:{so + m * 1024 + h * 512}' for m in range(3) for h in range(2)]
    X_ = x_reads(ks, fr[ks & 1])
    return W_[:2] + X_[:1] + W_[2:] + X_[1:]
def p1_mfmas(ks):
    b = fr[ks & 1]; L = []
    c = lambda x: '0' if ks == 0 else vr(x, 4)
    for T in range(5):
        X = vr(b + 4 * T, 4)
        L.append(mf(vr(accQ + 4 * T, 4), ar(aW(ks, 0), 4), X, c(accQ + 4 * T)))
        L.append(mf(vr(accK + 4 * T, 4), ar(aW(ks, 1), 4), X, c(accK + 4 * T)))
        L.append(mf(vr(accV + 4 * T, 4), X, ar(aW(ks, 2), 4), c(accV + 4 * T)))
    return L
def wo_dma(kss):
    L = []
    for ks in kss:
        L += [f's_add_u32 m0, s{sOM}, {wo_off(ks)}', f's_mov_b32 s{sT3}, {ks * 32768}',
              (f'buffer_load_dwordx4 v{vWo}, {srd(SRD_W)}, s{sT3} offen lds', 'wo')]
    return L
def hello():
    A('s_mov_b64 exec, 1')
    A(f'buffer_store_dwordx2 {vr(gr+2,2)}, v{vPf}, {srd(SRD_WS)}, s{sU2} offen sc1')
    A('s_mov_b64 exec, -1')
def srd_lines(d, ptr, size):
    return [f's_mov_b32 s{d}, s{ptr}', f's_and_b32 s{d+1}, s{ptr+1}, 0xffff', f's_mov_b32 s{d+2}, {size}', f's_mov_b32 s{d+3}, 0x20000']
s0g = V.alloc(4, 2)
extra = {ks: [] for ks in range(16)}
for g_ in g2: extra[0] += g_
for s in range(5):
    H = stage_dma(s + 3); extra[2 * s + 1] += H[0]; extra[2 * s + 2] += H[1]
extra[11] += [(f'buffer_store_dwordx4 {vr(vS4,4)}, v{vPf}, {srd(SRD_WS)}, 0 offen sc1', 'pre'),
              (f'buffer_store_dwordx4 {vr(vS4,4)}, v{vPf2}, {srd(SRD_WS)}, 0 offen sc1', 'pre'),
              (f'buffer_load_dwordx4 {vr(s0g,4)}, v{vS0}, {srd(SRD_WS)}, 0 offen sc1', 's0g')]
extra[12] += [f's_lshl_b32 s{sU2}, s{sSET}, 9', f's_add_u32 s{sU2}, s{sU2}, s{sI}', f's_lshl_b32 s{sU2}, s{sU2}, 3',
              f's_add_u32 s{sU2}, s{sU2}, {WS_HELLO}', f's_lshl_b32 s{sT0}, s{sW}, 30', f'v_mov_b32 v{vPf}, s{sT0}']
vRs = V.alloc(2)
def res_read(early):
    def f():
        L = A.newlabel('L_res')
        A(f's_cmp_lt_u32 s{sHG}, 5')
        A(f's_cbranch_scc{0 if early else 1} {L}')
        A(f'ds_read_b128 {vr(xP,4)}, v{vRs}')
        A(f'ds_read_b128 {vr(xP+4,4)}, v{vRs+1}')
        A.label(L)
    return f
extra[0] += [f'v_lshlrev_b32 v{t0}, 3, v{vQ}', f'v_and_b32 v{t0}, 0x70, v{t0}', f'v_xor_b32 v{t0}, v{t0}, v{vGm}',
             f'v_lshl_add_u32 v{t0}, v{vQ}, 7, v{t0}', f's_lshl_b32 s{sT0}, s{sHG}, 13', f's_add_u32 s{sT0}, s{sT0}, s{sAM}',
             f'v_add_u32 v{vRs}, s{sT0}, v{t0}', f'v_xor_b32 v{vRs+1}, 64, v{vRs}']
extra[8] += [res_read(True)]
ft_dma = []
for n in range(3):
    ft_dma += [f's_sub_u32 m0, s{sWM}, {L_W - L_FT - n * 1024}', (f'buffer_load_dwordx4 v{vFp+n}, {srd(SRD_T)}, 0 offen lds', 'ft')]
wd_dma = [f's_lshl_b32 s{sT0}, s{sW}, 12', f's_add_u32 m0, s{sT0}, {L_WD}'] + \
         [(f'buffer_load_dwordx4 v{vFd}, {srd(SRD_U)}, 0 offen offset:{f * 1024} lds', 'wd') for f in range(4)]
extra[11] += srd_lines(SRD_W, P_WO, 512 * 1024)
aux_ld = [f's_lshl_b32 s{sT0}, s{sHG}, 7', f'buffer_load_dwordx4 {vr(aux,4)}, v{vGm}, {srd(SRD_X)}, s{sT0} offen',
          f'buffer_load_dwordx4 {vr(aux+4,4)}, v{vGm}, {srd(SRD_X)}, s{sT0} offen offset:64',
          f'buffer_load_dwordx4 {vr(wra,4)}, v{vL16}, {srd(SRD_X)}, 0 offen']
if 'v1' in OPT:
    extra[11] += wo_dma([0]); extra[12] += wo_dma([1, 2, 3, 4]); extra[13] += ft_dma; extra[14] += wd_dma; extra[15] += aux_ld
    wo_rest = [5, 12, 13, 14, 15, 6, 7, 8, 9, 10, 11]
else:
    extra[11] += wo_dma([0]); extra[12] += wo_dma([1, 2, 3, 4]); extra[13] += wo_dma([5, 12, 13, 14]); extra[14] += wo_dma([15]) + ft_dma; extra[15] += wd_dma
    wo_rest = [6, 7, 8, 9, 10, 11]
extra[12] += srd_lines(SRD_X, P_WR, 1024)
extra[15] += [res_read(False)]
def drop(L, key): return [x for x in L if not (isinstance(x, tuple) and x[1] == key)]
for key in ('pre', 'wo', 'ft', 'wd', 'to'):
    if 'x' + key in OPT:
        for ks in extra: extra[ks] = drop(extra[ks], key)
A.wait_vm('S0', 'lgkmcnt(0)')
A('s_barrier')
stamp()
for x in p1_reads(0): A(x)
for ks in range(16):
    A('s_waitcnt lgkmcnt(0)')
    if 'loopstamps' in OPT and ks % 2 == 0 and ks: stamp()
    M = p1_mfmas(ks)
    A(M[0])
    if ks & 1 and ks < 15:
        if not ('nodma' in OPT and ks > 1): A.wait_vm(f'S{(ks + 1) >> 1}')
        if 'nobar' not in OPT: A('s_barrier')
    rd = p1_reads(ks + 1) if ks < 15 else []
    if 'nord' in OPT: rd = []
    if 'notr' in OPT: rd = [x for x in rd if '_tr_' not in x]
    if 'nob128' in OPT: rd = [x for x in rd if '_tr_' in x]
    ex = list(extra[ks])
    if 'nodma' in OPT: ex = [x for x in ex if not (isinstance(x, tuple) and x[0].endswith(' lds'))]
    isvm = lambda x: callable(x) or (x[0] if isinstance(x, tuple) else x).startswith('buffer_')
    nvm = sum(map(isvm, ex)); gaps = len(M) - 1
    slots = [int((j + 0.5) * gaps / nvm) for j in range(nvm)] if nvm else []
    groups = []; cur = []
    for x in ex:
        cur.append(x)
        if isvm(x): groups.append(cur); cur = []
    tail_ = cur
    place = {gi: [] for gi in range(gaps)}
    prev = -1
    for j, grp in enumerate(groups):
        lo = prev + 1 if prev + 1 <= slots[j] else slots[j]
        pre = grp[:-1]
        span = slots[j] - lo + 1
        for n_, x in enumerate(pre): place[lo + n_ * span // max(1, len(pre))].append(x)
        place[slots[j]].append(grp[-1]); prev = slots[j]
    lo = min(prev + 1, gaps - 1); span = gaps - lo
    for n_, x in enumerate(tail_): place[lo + n_ * span // len(tail_)].append(x)
    for mi, m in enumerate(M[1:]):
        A(m)
        if rd: A(rd.pop(0))
        for x in place[mi]: emit(x)
stamp()
for b in fr: V.release(b, 20)
V.release(vWr); V.release(vWr15); V.release(vRs, 2); V.release(vWd); V.release(vPf2); V.release(vTs); V.release(vS4, 4)
Ls0 = A.newlabel('L_s0'); Ls0ok = A.newlabel('L_s0ok')
A(f's_lshl_b32 s{sT0}, s{sFIRST}, 3')
A(f'v_subrev_u32 v{t2}, s{sT0}, v0')
A(f's_sub_u32 s{sT0}, 72, s{sT0}')
A(f'v_cmp_gt_u32 {sr(sT4,2)}, s{sT0}, v{t2}')
A(f's_cmp_eq_u32 s{sW}, 2')
A(f's_cselect_b64 {sr(sU0,2)}, -1, {sr(sT4,2)}')
A(f's_mov_b32 s{sGUARD}, 20000')
A.wait_vm('s0g')
A.label(Ls0)
A(f'v_xor_b32 v{t0}, s{sTAG}, v{s0g+2}')
A(f'v_xor_b32 v{t1}, s{sTAGB}, v{s0g+3}')
A(f'v_lshrrev_b32 v{t3}, 4, v{t1}')
A(f'v_or_b32 v{t0}, v{t0}, v{t3}')
A(f'v_cmp_ne_u32 vcc, 0, v{t0}')
A(f's_and_b64 vcc, vcc, {sr(sU0,2)}')
A(f's_cbranch_vccz {Ls0ok}')
A(f'buffer_load_dwordx4 {vr(s0g,4)}, v{vS0}, {srd(SRD_WS)}, 0 offen sc1'); A.vm.pop()
A('s_waitcnt vmcnt(0)')
A(f's_sub_u32 s{sGUARD}, s{sGUARD}, 1')
A(f's_cbranch_scc0 {Ls0}')
A.label(Ls0ok)
A(f's_mov_b64 exec, {sr(sT4,2)}')
A(f'ds_write2_b32 v{vS0w}, v{s0g}, v{s0g+1} offset0:0 offset1:80')
A('s_mov_b64 exec, -1')
A(f'ds_write_b32 v{vS0w}, v{t1} offset:{640 - 32}')
V.release(s0g, 4); V.release(vS0); V.release(vS0w)
csQ = VP.alloc(4, 2); csK = VP.alloc(4, 2); csV = VP.alloc(2, 2)
for r in range(4):
    A(f'v_mov_b32_dpp v{csQ+r}, v{accQ+r} row_newbcast:0 {DP}')
    A(f'v_mov_b32_dpp v{csK+r}, v{accK+r} row_newbcast:0 {DP}')
A(f'v_mov_b32 v{csV}, v{accV}')
A(f'v_mov_b32 v{csV+1}, v{accV}')
A(f'v_lshlrev_b32 v{t0}, 2, v{vL}')
A(f'v_permlane32_swap_b32 v{csV}, v{csV+1}')
A(f'v_add_u32 v{t0}, {L_CS + 512}, v{t0}')
A('s_waitcnt lgkmcnt(0)')
A('s_barrier')
A(f'ds_read_b32 v{vDum}, v{t0}')
epi_ins = [[hello]] + ([] if 'v1' in OPT else [[]] * 8 + [aux_ld[:2], aux_ld[2:3], aux_ld[3:]])
SPIN = 20000
def fine():
    if 'fine' in OPT: stamp()
def poll(issue, check, name):
    L = A.newlabel('L_poll'); E = A.newlabel('L_ok')
    A(f's_mov_b32 s{sGUARD}, {SPIN}')
    A.label(L)
    issue()
    A.wait_vm0()
    check()
    A(f's_cbranch_vccz {E}')
    A(f's_sub_u32 s{sGUARD}, s{sGUARD}, 1')
    A(f's_cbranch_scc0 {L}')
    A.label(E)
def repoll(issue, check, name):
    L = A.newlabel('L_rp'); E = A.newlabel('L_ok')
    A(f's_mov_b32 s{sGUARD}, {SPIN}')
    A.label(L)
    A.wait_vm0()
    check()
    A(f's_cbranch_vccz {E}')
    issue(); A.vm = []
    A(f's_sub_u32 s{sGUARD}, s{sGUARD}, 1')
    A(f's_cbranch_scc0 {L}')
    A.label(E)
def local_stores(lines):
    R = A.newlabel('L_rem'); E = A.newlabel('L_st')
    A(f's_cmp_eq_u32 s{sLOCAL}, 0')
    A(f's_cbranch_scc1 {R}')
    for l in lines: A(l)
    A.label(E)
    A('s_nop 0')
    far.append((R, E, lines))
far = []
def emit_far():
    for R, E, lines in far:
        A.label(R)
        for l in lines:
            A(l + (' sc1' if l.startswith('buffer_') else ''))
        A(f's_branch {E}')
def skip_unless(cond_lines):
    E = A.newlabel('L_sk')
    for l in cond_lines: A(l)
    A(f's_cbranch_scc1 {E}')
    return E
def if_layer(n): return skip_unless([f's_cmp_lg_u32 s{sLAYER}, {n}'])
def if_wave(n): return skip_unless([f's_cmp_lg_u32 s{sW}, {n}'])
def if_ffn(): return skip_unless([f's_cmp_eq_u32 s{sHASF}, 0'])
def endif(E, pad=True):
    A.label(E)
    if pad: A('s_nop 1')
def tag_check(r):
    A(f'v_xor_b32 v{r+1}, s{sTAGB}, v{r+1}')
    A(f'v_xor_b32 v{r}, s{sTAG}, v{r}')
    A(f'v_lshrrev_b32 v{r+1}, 4, v{r+1}')
    A(f'v_or_b32 v{r}, v{r}, v{r+1}')
    A(f'v_cmp_ne_u32 vcc, 0, v{r}')

QSC = 0.25 * 1.4426950408889634
def epilogue(first, early=()):
    hQ = V.alloc(8, 2); hK = V.alloc(10, 2); hV = V.alloc(10, 2); hC = V.alloc(4)
    rp = V.alloc(10, 2); vm = V.alloc(20, 2); vc = V.alloc(20, 2)
    for T in range(5):
        A(f'ds_read2_b32 {vr(rp + 2 * T, 2)}, v{vQ4} offset0:{16 * T} offset1:{80 + 16 * T}')
        A(f'ds_read_b128 {vr(vm + 4 * T, 4)}, v{vG16} offset:{64 * T}')
        A(f'ds_read_b128 {vr(vc + 4 * T, 4)}, v{vG16} offset:{320 + 64 * T}')
    for x in early: A(x)
    if first: A.sprinkle = (epi_ins, 12, emit)
    def norm_tile(aq, ak, av, rpp, vmm, vcc_, oq, ok, ov_, oc):
        for h in range(2):
            if aq is not None:
                A(f'v_pk_fma_f32 {vr(aq+2*h,2)}, {vr(csQ+2*h,2)}, {vr(rpp,2)}, {vr(aq+2*h,2)} op_sel_hi:[1,0,1]')
            A(f'v_pk_fma_f32 {vr(ak+2*h,2)}, {vr(csK+2*h,2)}, {vr(rpp,2)}, {vr(ak+2*h,2)} op_sel_hi:[1,0,1]')
            A(f'v_pk_fma_f32 {vr(av+2*h,2)}, {vr(vmm+2*h,2)}, {vr(csV,2)}, {vr(av+2*h,2)} op_sel_hi:[1,0,1]')
        for h in range(2):
            A(f'v_pk_mul_f32 {vr(ak+2*h,2)}, {vr(ak+2*h,2)}, {vr(rpp,2)} op_sel:[0,1] op_sel_hi:[1,1]')
            A(f'v_pk_mul_f32 {vr(av+2*h,2)}, {vr(av+2*h,2)}, {vr(vcc_+2*h,2)}')
        for h in range(2):
            if aq is not None:
                A(f'v_cvt_pk_bf16_f32 v{oq+h}, v{aq+2*h}, v{aq+2*h+1}')
            A(f'v_cvt_pk_bf16_f32 v{ok+h}, v{ak+2*h}, v{ak+2*h+1}')
            A(f'v_cvt_pk_bf16_f32 v{ov_+h}, v{av+2*h}, v{av+2*h+1}')
        if aq is not None:
            A(f'v_mul_f32 v{oc}, {hex(f2u(QSC))}, v{rpp+1}')
    for T in range(5):
        A(f's_waitcnt lgkmcnt({12 - 3 * T})')
        if first and T == 0:
            A(f'v_cmp_ne_u32 vcc, 0, v{vDum}')
        norm_tile(accQ + 4 * T if T else None, accK + 4 * T, accV + 4 * T, rp + 2 * T, vm + 4 * T, vc + 4 * T,
                  hQ + 2 * (T - 1), hK + 2 * T, hV + 2 * T, hC + T - 1)
        if first and T == 0:
            sp = A.sprinkle; A.sprinkle = None
            A(f's_cmp_eq_u64 vcc, 0')
            A(f's_cselect_b32 s{sLOCAL}, {0 if FORCE_REMOTE else 1}, 0')
            A.sprinkle = sp
    V.release(rp, 10); V.release(vm, 20); V.release(vc, 20)
    V.release(accQ, 20); V.release(accK, 20); V.release(accV, 20)
    tiles = [0, 1, 2, 3]
    n = len(tiles)
    Sp = V.alloc(4 * n, 2); Sc = V.alloc(4 * n, 2); mx = V.alloc(2 * n, 2); pk = V.alloc(2 * n, 2)
    for i, T in enumerate(tiles):
        A(mf(vr(Sp + 4 * i, 4), vr(hK + 2 * T, 2), vr(hQ + 2 * T, 2), vr(vBP0 if T == 0 else vBP, 4), False))
        A(mf(vr(Sc + 4 * i, 4), vr(hK + 2 * T + 2, 2), vr(hQ + 2 * T, 2), vr(vBC, 4), False))
    for i in range(n):
        for r in range(4):
            A(f'v_max_f32 v{Sc+4*i+r}, v{Sp+4*i+r}, v{Sc+4*i+r}')
        A(f'v_max3_f32 v{mx+2*i}, v{Sc+4*i}, v{Sc+4*i+1}, v{Sc+4*i+2}')
        A(f'v_max_f32 v{mx+2*i}, v{mx+2*i}, v{Sc+4*i+3}')
    prs = [(mx + 4 * j, mx + 4 * j + 2) for j in range(n // 2)]
    for a, b in prs: A(f'v_permlane16_swap_b32 v{a}, v{b}')
    for a, b in prs: A(f'v_max_f32 v{a}, v{a}, v{b}')
    for a, b in prs: A(f'v_mov_b32 v{b}, v{a}')
    for a, b in prs: A(f'v_permlane32_swap_b32 v{a}, v{b}')
    for a, b in prs: A(f'v_max_f32 v{a}, v{a}, v{b}')
    for a, b in prs: A(f'v_mov_b32 v{b}, v{a}')
    for a, b in prs: A(f'v_permlane16_swap_b32 v{a}, v{b}')
    for i, T in enumerate(tiles):
        A(f'v_mul_f32 v{mx+2*i+1}, v{mx+2*i}, v{hC+T}')
        A(f'v_mov_b32 v{mx+2*i}, v{hC+T}')
        for h in range(2):
            A(f'v_pk_fma_f32 {vr(Sc+4*i+2*h,2)}, {vr(Sc+4*i+2*h,2)}, {vr(mx+2*i,2)}, {vr(mx+2*i,2)} op_sel:[0,0,1] op_sel_hi:[1,0,1] neg_lo:[0,0,1] neg_hi:[0,0,1]')
    for i in range(n):
        for r in range(4):
            A(f'v_exp_f32 v{Sc+4*i+r}, v{Sc+4*i+r}')
    for i in range(n):
        for h in range(2):
            A(f'v_cvt_pk_bf16_f32 v{pk+2*i+h}, v{Sc+4*i+2*h}, v{Sc+4*i+2*h+1}')
        for h in range(2):
            A(f'v_and_b32 v{Sp+4*i+h}, v{pk+2*i+h}, v{vMP+h}')
        for h in range(2):
            A(f'v_xor_b32 v{Sp+4*i+2+h}, v{pk+2*i+h}, v{Sp+4*i+h}')
    if first:
        sp = A.sprinkle; A.sprinkle = None
        for grp in sp[0]:
            for x in grp: emit(x)
    Ls = V.alloc(4 * n, 2)
    for i, T in enumerate(tiles):
        A(mf(vr(Ls + 4 * i, 4), vr(vOnes, 2), vr(pk + 2 * i, 2), '0', False))
        A(mf(vr(Sc + 4 * i, 4), vr(hV + 2 * T, 4), vr(Sp + 4 * i, 4), '0'))
    for i in range(n):
        A(f'v_rcp_f32 v{Ls+4*i}, v{Ls+4*i}')
    for i in range(n):
        for h in range(2):
            A(f'v_pk_mul_f32 {vr(Sc+4*i+2*h,2)}, {vr(Sc+4*i+2*h,2)}, {vr(Ls+4*i,2)} op_sel_hi:[1,0]')
        for h in range(2):
            A(f'v_cvt_pk_bf16_f32 v{oP+2*i+h}, v{Sc+4*i+2*h}, v{Sc+4*i+2*h+1}')
    for j in range(n // 2):
        for h in range(2):
            A(f'v_permlane16_swap_b32 v{oP+4*j+h}, v{oP+4*j+2+h}')
    V.release(Sp, 4 * n); V.release(Sc, 4 * n); V.release(mx, 2 * n); V.release(pk, 2 * n); V.release(Ls, 4 * n)
    V.release(hQ, 8); V.release(hK, 10); V.release(hV, 10); V.release(hC, 4)
epilogue(True)
V.release(vPf); V.release(gr, 4); V.release(vFd); V.release(vFp, 3)

(aFLp, aFLs, aSTp, aSTs, aKEYs, aKEYp, aCANDs, aCANDb, aYPs, aYPb, aXs, aX1Fp, aX1Fs, aFTFs, aFTFp, aFT, aROW, aOUT) = range(28, 46)
A(f's_lshl_b32 s{aFLp}, s{sRB}, 9')
A(f's_add_u32 s{aFLp}, s{aFLp}, {WS_FL}')
tg = VP.alloc(2, 2)
vRow = VP.alloc(); vXs = VP.alloc(); vStash = VP.alloc(); vQ16 = VP.alloc(); vL8 = VP.alloc(); vO4 = VP.alloc(2)
A.label('L_pub')
stamp()
A(f's_mov_b32 s{sT0}, 32768')
A(f's_and_b32 s{sT1}, s{sLOCAL}, s{sLAYER}')
A(f's_cbranch_scc0 L_opr')
A(f'buffer_store_dwordx4 {vr(oP,4)}, v{vOst}, {srd(SRD_WS)}, 0 offen')
A(f'buffer_store_dwordx4 {vr(oP+4,4)}, v{vOst}, {srd(SRD_WS)}, s{sT0} offen')
A.label('L_opd')
far.append(('L_opr', 'L_opd', [f'buffer_store_dwordx4 {vr(oP,4)}, v{vOst}, {srd(SRD_WS)}, 0 offen',
                               f'buffer_store_dwordx4 {vr(oP+4,4)}, v{vOst}, {srd(SRD_WS)}, s{sT0} offen']))
acc = V.alloc(16, 2); oF = V.alloc(64, 2); bR = V.alloc(64, 2)
for a_ in (0, 1, 4, 5): A(f'v_permlane16_swap_b32 v{xP+a_}, v{xP+a_+2}')
for j in range(8):
    A(f'v_lshlrev_b32 v{acc+2*j}, 16, v{xP+j}')
    A(f'v_and_b32 v{acc+2*j+1}, 0xffff0000, v{xP+j}')
def b_read(ks, t, h): return f'ds_read_b64_tr_b16 {vr(bR + ((ks & 3)*4 + t)*4 + 2*h, 2)}, v{vBo+t} offset:{wo_off(ks) + h*512}'
def b_read_a(ks, t, h): return f'ds_read_b64_tr_b16 {ar(((ks - 4)*4 + t)*4 + 2*h, 2)}, v{vBo+t} offset:{wo_off(ks) + h*512}'
fl = V.alloc(2, 2)
fl_issue = lambda: A(f'buffer_load_dwordx2 {vr(fl,2)}, v{vL8}, {srd(SRD_WS)}, s{aFLp} offen sc1')
def o_flag():
    A.wait_vm0()
    A('s_mov_b64 exec, 1')
    local_stores([f'buffer_store_dwordx2 {vr(tg,2)}, v{vL16}, {srd(SRD_WS)}, s{aFLs} offen'])
    A('s_mov_b64 exec, -1')
def o_load(ks): return (f'buffer_load_dwordx4 {vr(oF + 4*ks, 4)}, v{vO4 + (ks >> 3)}, {srd(SRD_WS)}, {"s%d" % sT4 if ks & 4 else 0} offen offset:{(ks%4)*1024} sc1', f'o{ks}')
NPRE = 6
A(f's_mov_b32 s{sT4}, 4096')
A(f's_cmp_lg_u32 s{sLAYER}, 0')
A('s_cbranch_scc1 L_p5')
A(f's_lshl_b32 s{sT2}, s{sHG}, 2')
A(f's_add_u32 s{sT2}, s{sT2}, s{sW}')
A(f's_lshl_b32 s{sT2}, s{sT2}, 3')
A(f's_add_u32 s{aFLs}, s{sT2}, s{aFLp}')
A(f'v_mov_b32 v{tg}, s{sTAG}')
A(f'v_mov_b32 v{tg+1}, s{sTAGB}')
A(f'v_and_b32 v{vL8}, 31, v{vL}')
A(f'v_lshlrev_b32 v{vL8}, 3, v{vL8}')
A(f's_lshl_b32 s{sT0}, s{sSTB}, 14')
A(f'v_add_u32 v{vO4}, s{sT0}, v{vL16}')
A(f'v_add_u32 v{vO4+1}, 8192, v{vO4}')
A(f's_lshl_b32 s{sT1}, s{sHG}, 7')
A(f's_add_u32 s{aXs}, s{sT0}, s{sT1}')
A(f's_add_u32 s{aOUT}, s{sAB}, s{sT1}')
A(f's_lshl_b32 s{aCANDs}, s{sRB}, 13')
A(f's_add_u32 s{aCANDs}, s{aCANDs}, s{sT1}')
A(f's_add_u32 s{aCANDs}, s{aCANDs}, {WS_CAND}')
A(f's_mov_b32 s{aCANDb}, {WS_CAND}')
A(f's_lshl_b32 s{aSTp}, s{sSTB}, 11')
A(f's_add_u32 s{aSTp}, s{aSTp}, {WS_ST}')
A(f's_lshl_b32 s{sT1}, s{sHG}, 8')
A(f's_add_u32 s{aSTs}, s{aSTp}, s{sT1}')
A(f's_add_u32 s{aYPb}, s{sT1}, {WS_YP}')
A(f's_lshl_b32 s{aYPs}, s{sFS}, 12')
A(f's_add_u32 s{aYPs}, s{aYPs}, {WS_YP}')
A(f's_lshl_b32 s{aKEYs}, s{sHG}, 7')
A(f's_add_u32 s{aKEYs}, s{aKEYs}, s{sSTB}')
A(f's_lshl_b32 s{aKEYs}, s{aKEYs}, 3')
A(f's_add_u32 s{aKEYs}, s{aKEYs}, {WS_KEYS}')
A(f's_lshl_b32 s{aKEYp}, s{sSET}, 10')
A(f's_add_u32 s{aKEYp}, s{aKEYp}, {WS_KEYS}')
A(f's_add_u32 s{aX1Fp}, s{aFLp}, {WS_X1F - WS_FL}')
A(f's_lshl_b32 s{sT2}, s{sW}, 3')
A(f's_add_u32 s{sT2}, s{sT2}, s{sHG}')
A(f's_lshl_b32 s{sT2}, s{sT2}, 3')
A(f's_add_u32 s{aX1Fs}, s{aX1Fp}, s{sT2}')
A(f's_lshl_b32 s{aFTFp}, s{sSET}, 12')
A(f's_add_u32 s{aFTFp}, s{aFTFp}, {WS_HELLO + 2048}')
A(f's_lshl_b32 s{sT2}, s{sI}, 2')
A(f's_add_u32 s{sT2}, s{sT2}, s{sW}')
A(f's_lshl_b32 s{sT1}, s{sT2}, 3')
A(f's_add_u32 s{aFTFs}, s{aFTFp}, s{sT1}')
A(f's_mul_i32 s{sT1}, s{sSET}, 48')
A(f's_add_u32 s{sT1}, s{sT1}, s{sT2}')
A(f's_lshl_b32 s{aFT}, s{sT1}, 13')
A(f's_add_u32 s{aFT}, s{aFT}, {WS_FT}')
A(f's_lshl_b32 s{aROW}, s{sSTB}, 4')
A(f'v_lshl_add_u32 v{vRow}, v{vQ}, 10, v{vGm}')
A(f'v_mov_b32 v{vXs}, v{vRow}')
A(f'v_lshlrev_b32 v{vQ16}, 4, v{vQ}')
A(f's_lshl_b32 s{sT2}, s{sW}, 9')
A(f's_add_u32 s{sT2}, s{sT2}, {L_CS}')
A(f'v_add_u32 v{vStash}, s{sT2}, v{vGm}')
A(f'v_lshrrev_b32 v{t0}, 3, v{vL}')
A(f'v_lshlrev_b32 v{t0}, 10, v{t0}')
A(f'v_sub_u32 v{vXe}, v{vXe}, v{t0}')
A(f'v_xor_b32 v{vXo}, 64, v{vXe}')
A(f'v_add_u32 v{vXo}, 8192, v{vXo}')
o_flag()
stamp()
if STOP == 'o1': finish()
for x in wo_dma(wo_rest): emit(x)
V.release(vWo)
V.release(oP, 8)
ftr = V.alloc(12, 2); hel = V.alloc(8, 2)
A(f'v_lshlrev_b32 v{t2}, 2, v{t0}')
A(f'v_and_b32 v{t3}, 7, v{vL}')
A(f'v_lshl_add_u32 v{t2}, v{t3}, 5, v{t2}')
A(f'v_add_u32 v{t2}, {WS_HELLO}, v{t2}')
hel_issue = lambda: (A(f'buffer_load_dwordx4 {vr(hel,4)}, v{t2}, {srd(SRD_WS)}, 0 offen sc1'),
                     A(f'buffer_load_dwordx4 {vr(hel+4,4)}, v{t2}, {srd(SRD_WS)}, 0 offen offset:16 sc1'))
A('s_barrier')
for n in range(3):
    for hh in range(2):
        A(f'ds_read_b64_tr_b16 {vr(ftr + 4 * n + 2 * hh, 2)}, v{vFr} offset:{n * 128 + hh * 4 * 384}')
A(f'v_and_b32 v{t0}, 127, v0')
A(f'v_lshlrev_b32 v{t0}, 3, v{t0}')
for f in range(16):
    A(f'ds_read_b64 {vr(oF + 32 + 2 * f, 2)}, v{t0} offset:{L_WD + f * 1024}')
fl_issue()
for ks in range(4):
    for t in range(4):
        for h in range(2): A(b_read(ks, t, h))
A(f's_mov_b32 vcc_lo, 0x11111111')
A(f's_mov_b32 vcc_hi, 0x11111111')
for a_ in (0, 1, 4, 5): A(f'v_permlane16_swap_b32 v{aux+a_}, v{aux+a_+2}')
for r in range(8): A(f'v_cndmask_b32 v{aux+r}, v{aux+r}, v{vOnes}, vcc')
A(f'v_mov_b32 v{vSW}, 0')
for r in range(4): A(f'v_dot2c_f32_bf16 v{vSW}, v{wra+r}, v{vOnes}')
for sh in (8, 4, 2, 1):
    A(f'v_add_f32_dpp v{vSW}, v{vSW}, v{vSW} row_ror:{sh} {DP}')
for sw in ('v_permlane16_swap_b32', 'v_permlane32_swap_b32'):
    A(f'v_mov_b32 v{t0}, v{vSW}')
    A(f'{sw} v{vSW}, v{t0}')
    A(f'v_add_f32 v{vSW}, v{vSW}, v{t0}')
V.release(wra, 4)
repoll(fl_issue, lambda: tag_check(fl), 'FL')
A('s_barrier')
stamp()
for ks in range(NPRE): emit(o_load(ks))
late = {ks: [o_load(ks + NPRE)] for ks in range(16 - NPRE)}
late[16 - NPRE] = [hel_issue]
for n in range(3):
    late[17 - NPRE + n] = [f's_mov_b32 s{sT0}, {n * 4 * 32768}', f'buffer_store_dwordx4 {vr(ftr + 4 * n, 4)}, v{vFs}, {srd(SRD_WS)}, s{sT0} offen sc1']
E = if_ffn()
A(f's_mov_b32 s{sT0}, 0x05040100')
A(f's_mov_b32 s{sT1}, 0x07060302')
A('s_waitcnt lgkmcnt(0)')
for j in range(8):
    b = oF + 32 + 4 * j
    for c, (hi_, lo_, sel) in enumerate(((2, 0, sT0), (2, 0, sT1), (3, 1, sT0), (3, 1, sT1))):
        A(f'v_perm_b32 v{hel+c}, v{b+hi_}, v{b+lo_}, s{sel}')
    for c in range(4): A(f'v_accvgpr_write_b32 a{aFD + 4*j + c}, v{hel+c}')
endif(E, False)
for ks in range(16):
    nl = min(15, (15 - ks) * 8)
    A.wait_vm(f'o{ks}', f'lgkmcnt({nl})')
    for t in range(4):
        A(mf(vr(acc + 4*t, 4), vr(bR + ((ks & 3)*4 + t)*4, 4), vr(oF + 4*ks, 4), vr(acc + 4*t, 4)))
        if t == 0:
            for x in late.get(ks, []): emit(x)
        if ks + 4 < 16:
            A(b_read(ks + 4, t, 0)); A(b_read(ks + 4, t, 1))
V.release(ftr, 12)
A('s_branch L_p2e')
A.label('L_p5')
rdl = [b_read(ks, t, h) for ks in range(4) for t in range(4) for h in range(2)] + \
      [b_read_a(ks, t, h) for ks in range(4, 16) for t in range(4) for h in range(2)]
for _ in range(40): A(rdl.pop(0))
o_flag()
stamp_n[0] -= 2; stamp()
fl_issue()
for _ in range(40): A(rdl.pop(0))
repoll(fl_issue, lambda: tag_check(fl), 'FL')
stamp()
for ks in range(NPRE): emit(o_load(ks))
while rdl: A(rdl.pop(0))
for ks in range(16):
    A.wait_vm(f'o{ks}', {0: 'lgkmcnt(14)', 2: 'lgkmcnt(0)'}.get(ks, ''))
    for t in range(4):
        B_ = vr(bR + (ks*4 + t)*4, 4) if ks < 4 else ar(((ks - 4)*4 + t)*4, 4)
        A(mf(vr(acc + 4*t, 4), B_, vr(oF + 4*ks, 4), vr(acc + 4*t, 4)))
        if t == 0 and ks + NPRE < 16: emit(o_load(ks + NPRE))
A.label('L_p2e')
V.release(oF, 64); V.release(bR, 64); V.release(fl, 2)
gG = V.alloc(4, 2); gS = V.take(96, 4) if False else V.alloc(4, 2)
A('s_nop 3')
for j in range(4):
    A(f'v_cvt_pk_bf16_f32 v{xP+j}, v{acc+2*j}, v{acc+2*j+1}')
A(f'v_cvt_pk_bf16_f32 v{xP+4}, v{acc+8}, v{acc+9}')
A(f'v_cvt_pk_bf16_f32 v{xP+5}, v{acc+10}, v{acc+11}')
A(mf(vr(gG, 4), vr(xP, 4), vr(xP, 4), '0'))
A(f'v_cvt_pk_bf16_f32 v{xP+6}, v{acc+12}, v{acc+13}')
A(f'v_cvt_pk_bf16_f32 v{xP+7}, v{acc+14}, v{acc+15}')
A(mf(vr(gS, 4), vr(aux, 4), vr(xP, 4), '0'))
A(f'v_permlane16_swap_b32 v{xP}, v{xP+2}')
A(mf(vr(gG, 4), vr(xP + 4, 4), vr(xP + 4, 4), vr(gG, 4)))
A(f'v_permlane16_swap_b32 v{xP+1}, v{xP+3}')
A(mf(vr(gS, 4), vr(aux + 4, 4), vr(xP + 4, 4), vr(gS, 4)))
A(f'v_permlane16_swap_b32 v{xP+4}, v{xP+6}')
A(f'v_permlane16_swap_b32 v{xP+5}, v{xP+7}')
unp = []
for j in range(8):
    unp += [f'v_lshlrev_b32 v{acc+2*j}, 16, v{xP+j}', f'v_and_b32 v{acc+2*j+1}, 0xffff0000, v{xP+j}']
for _ in range(4): A(unp.pop(0))
A(f'v_cndmask_b32 v{t0}, v{gG}, v{gG+1}, {sr(sM0,2)}')
A(f'v_cndmask_b32 v{t1}, v{gG+2}, v{gG+3}, {sr(sM0,2)}')
A(f'v_cndmask_b32 v{gS+2}, v{t0}, v{t1}, {sr(sM1,2)}')
A(f'v_mov_b32 v{gS+3}, s{sTAG}')
A('s_mov_b32 exec_lo, 0x00f0000f')
A('s_mov_b32 exec_hi, 0xf0000f00')
local_stores([f'buffer_store_dwordx4 {vr(gS,4)}, v{vQ16}, {srd(SRD_WS)}, s{aSTs} offen'])
A('s_mov_b64 exec, -1')
stamp()
V.release(gG, 4)
sa = V.alloc(8, 2)
def h1_issue():
    A(f'buffer_load_dwordx4 {vr(sa,4)}, v{vL16}, {srd(SRD_WS)}, s{aSTp} offen sc1')
    A(f'buffer_load_dwordx4 {vr(sa+4,4)}, v{vL16}, {srd(SRD_WS)}, s{aSTp} offen offset:1024 sc1')
while unp: A(unp.pop(0))
E = if_layer(0)
Lh = A.newlabel('L_hel'); Lhk = A.newlabel('L_helok')
A(f's_mov_b32 s{sGUARD}, {SPIN}')
A('s_waitcnt vmcnt(4)')
A.label(Lh)
for r in range(8): A(f'v_xor_b32 v{hel+r}, s{sTAGB if r & 1 else sTAG}, v{hel+r}')
A(f'v_or3_b32 v{t0}, v{hel+1}, v{hel+3}, v{hel+5}')
A(f'v_or_b32 v{t0}, v{t0}, v{hel+7}')
A(f'v_lshrrev_b32 v{t0}, 4, v{t0}')
A(f'v_or3_b32 v{t0}, v{t0}, v{hel}, v{hel+2}')
A(f'v_or3_b32 v{t0}, v{t0}, v{hel+4}, v{hel+6}')
A(f'v_cmp_ne_u32 vcc, 0, v{t0}')
A(f's_cbranch_vccz {E}')
A('s_sleep 8')
hel_issue(); A.wait_vm0()
A(f's_sub_u32 s{sGUARD}, s{sGUARD}, 1')
A(f's_cbranch_scc0 {Lh}')
endif(E, False)
V.release(hel, 8)

def h1_check():
    A(f'v_cmp_ne_u32 vcc, s{sTAG}, v{sa+3}')
    A(f'v_cmp_ne_u32 {sr(sT2,2)}, s{sTAG}, v{sa+7}')
    A(f'v_pk_add_f32 {vr(sa,2)}, {vr(sa,2)}, {vr(sa+4,2)}')
    A(f's_or_b64 vcc, vcc, {sr(sT2,2)}')
poll(h1_issue, h1_check, 'ST')
stamp()
A(f'v_add_f32 v{sa+2}, v{sa+2}, v{sa+6}')
A(f'v_mov_b32 v{sa+4}, v{sa}')
A(f'v_mov_b32 v{sa+5}, v{sa+1}')
A(f'v_mov_b32 v{sa+6}, v{sa+2}')
local_stores([f'buffer_store_dwordx4 {vr(xP,4)}, v{vXs}, {srd(SRD_WS)}, s{aXs} offen',
              f'buffer_store_dwordx4 {vr(xP+4,4)}, v{vXs}, {srd(SRD_WS)}, s{aXs} offen offset:64'])
for r in range(3): A(f'v_permlane16_swap_b32 v{sa+r}, v{sa+4+r}')
A(f'v_pk_add_f32 {vr(sa,2)}, {vr(sa,2)}, {vr(sa+4,2)}')
A(f'v_add_f32 v{sa+2}, v{sa+2}, v{sa+6}')
for r in range(3): A(f'v_mov_b32 v{sa+4+r}, v{sa+r}')
for r in range(3): A(f'v_permlane32_swap_b32 v{sa+r}, v{sa+4+r}')
A(f'v_pk_add_f32 {vr(sa,2)}, {vr(sa,2)}, {vr(sa+4,2)}')
A(f'v_add_f32 v{sa+2}, v{sa+2}, v{sa+6}')
mu = V.alloc(); var = V.alloc(); pr = V.alloc(2, 2); mm = V.alloc()
ln_params(sa, sa + 2, mu, var, mm, pr, t0)
key = V.alloc(); ka = V.alloc(2, 2); kb = ka + 1
A(f'v_fma_f32 v{key}, -v{mm}, v{vSW}, v{sa+1}')
A(f'v_mul_f32 v{key}, v{key}, v{pr}')
A(f'v_mul_f32 v{pr+1}, -v{mm}, v{pr}')
A(f'v_ashrrev_i32 v{t0}, 31, v{key}')
A(f'v_or_b32 v{t0}, 0x80000000, v{t0}')
A(f'v_xor_b32 v{key}, v{key}, v{t0}')
A(f'v_and_b32 v{key}, 0xfffff800, v{key}')
A(f'v_or3_b32 v{key}, v{key}, v{vQ}, s{aROW}')
xn = V.alloc(8, 2); xf = V.alloc(16, 2)
fillx = [f'v_pk_fma_f32 {vr(xf+2*j,2)}, {vr(acc+2*j,2)}, {vr(pr,2)}, {vr(pr,2)} op_sel:[0,0,1] op_sel_hi:[1,0,1]' for j in range(8)] + \
        [f'v_cvt_pk_bf16_f32 v{xn+j}, v{xf+2*j}, v{xf+2*j+1}' for j in range(8)]
def top2_levels(a, b, levels, fill):
    for lv in levels:
        if fill: A(fill.pop(0))
        A(f'v_min_u32_dpp v{t0}, v{a}, v{a} {lv} {DP}')
        A(f'v_max_u32_dpp v{t1}, v{b}, v{b} {lv} {DP}')
        A(f'v_max_u32_dpp v{a}, v{a}, v{a} {lv} {DP}')
        A(f'v_max_u32 v{b}, v{t0}, v{t1}')
A(fillx.pop(0)); A(fillx.pop(0))
A(f'v_max_u32_dpp v{ka}, v{key}, v{key} quad_perm:[1,0,3,2] {DP}')
A(f'v_min_u32_dpp v{kb}, v{key}, v{key} quad_perm:[1,0,3,2] {DP}')
top2_levels(ka, kb, ['quad_perm:[2,3,0,1]', 'row_half_mirror', 'row_mirror'], fillx)
A('s_mov_b64 exec, 1')
A(f'buffer_store_dwordx2 {vr(ka,2)}, v{vL16}, {srd(SRD_WS)}, s{aKEYs} offen sc1')
E = if_layer(0)
A('s_waitcnt vmcnt(1)')
local_stores([f'buffer_store_dwordx2 {vr(tg,2)}, v{vL16}, {srd(SRD_WS)}, s{aX1Fs} offen',
              f'buffer_store_dwordx2 {vr(tg,2)}, v{vL16}, {srd(SRD_WS)}, s{aFTFs} offen'])
endif(E, False)
A('s_mov_b64 exec, -1')
stamp()
A(f'v_cmp_eq_u32 vcc, v{key}, v{kb}')
A(f'v_add_u32 v{t2}, 256, v{vStash}')
while fillx: A(fillx.pop(0))
A(f'v_cndmask_b32 v{t3}, v{vStash}, v{t2}, vcc')
A(f'v_cmp_ge_u32 vcc, v{key}, v{kb}')
A(f'v_lshrrev_b32 v{t0}, 3, v{vL}')
A(f'v_and_b32 v{t1}, 0x70, v{vL16}')
A(f's_mov_b64 exec, vcc')
A(f'ds_write_b128 v{t3}, {vr(xn,4)} offset:128')
A(f'ds_write_b128 v{t3}, {vr(xn+4,4)} offset:192')
A(f'ds_write_b128 v{t3}, {vr(xP,4)}')
A(f'ds_write_b128 v{t3}, {vr(xP+4,4)} offset:64')
A('s_mov_b64 exec, -1')
V.release(key); V.release(ka, 2)
A(f'v_lshl_add_u32 v{t2}, v{t0}, 8, v{t1}')
A(f'v_add_u32 v{t2}, {L_CS + 128}, v{t2}')
A(f'v_lshl_add_u32 v{t3}, v{t0}, 10, v{t1}')
A('s_waitcnt lgkmcnt(0)')
A('s_barrier')
E3 = if_wave(3)
A(f'ds_read_b128 {vr(sa,4)}, v{t2}')
A('s_waitcnt lgkmcnt(0)')
A(f'buffer_store_dwordx4 {vr(sa,4)}, v{t3}, {srd(SRD_WS)}, s{aCANDs} offen sc1')
A(f's_cmp_lg_u32 s{sLAYER}, 0')
A(f's_cbranch_scc1 {E3}')
A(f's_add_u32 s{sT0}, s{aCANDs}, {WS_HALO - 8192 - WS_CAND}')
A('s_mov_b32 exec_lo, 0xff00ff00')
A('s_mov_b32 exec_hi, 0xff00ff00')
A(f'buffer_store_dwordx4 {vr(xP,4)}, v{vRow}, {srd(SRD_WS)}, s{sT0} offen sc1')
A(f'buffer_store_dwordx4 {vr(xP+4,4)}, v{vRow}, {srd(SRD_WS)}, s{sT0} offen offset:64 sc1')
A('s_mov_b64 exec, 1')
A(f's_cmp_eq_u32 s2, 0')
A(f's_cselect_b32 s{sT0}, {WS_EPOCH}, 0x40000000') if False else None
A(f's_mov_b32 s{sT1}, {WS_EPOCH}')
A(f's_cselect_b32 s{sT0}, s{sT1}, 0x40000000')
A(f'v_mov_b32 v{t0}, s{sT0}')
A(f'buffer_store_dword v{tg}, v{t0}, {srd(SRD_WS)}, 0 offen sc1')
A('s_mov_b64 exec, -1')
endif(E3)
fine()
def chain_params(mu, var, mm, rs, om, oc):
    a = V.alloc(); u = V.alloc(); w_ = V.alloc(); m2 = V.alloc(); r2 = V.alloc()
    A(f'v_add_f32 v{a}, 1.0, v{rs}')
    A(f'v_mul_f32 v{u}, v{mm}, v{rs}')
    A(f'v_fma_f32 v{mu}, v{mu}, v{a}, -v{u}')
    A(f'v_mul_f32 v{w_}, v{a}, v{a}')
    A(f'v_mul_f32 v{var}, v{var}, v{w_}')
    round_params(mu, var, m2, r2, w_)
    A(f'v_rcp_f32 v{w_}, v{a}')
    A(f'v_add_f32 v{u}, v{u}, v{m2}')
    A(f'v_mul_f32 v{oc}, v{a}, v{r2}')
    A(f'v_mul_f32 v{om}, -v{u}, v{w_}')
    for x in (a, u, w_, m2, r2): V.release(x)
xfl = sa
def xf_issue():
    A(f'buffer_load_dwordx2 {vr(xfl,2)}, v{vL8}, {srd(SRD_WS)}, s{aX1Fp} offen sc1')
    A(f'buffer_load_dwordx4 {vr(xfl+2,4)}, v{vL16}, {srd(SRD_WS)}, s{aFTFp} offen sc1')
def xf_check():
    for r in range(6): A(f'v_xor_b32 v{xfl+r}, s{sTAGB if r & 1 else sTAG}, v{xfl+r}')
    A(f'v_or_b32 v{xfl+3}, v{xfl+3}, v{xfl+5}')
    A(f'v_lshrrev_b32 v{xfl+3}, 4, v{xfl+3}')
    A(f'v_or3_b32 v{xfl+2}, v{xfl+2}, v{xfl+3}, v{xfl+4}')
    A(f'v_mul_lo_u32 v{xfl+2}, v{xfl+2}, s{sHASF}')
    A(f'v_lshrrev_b32 v{xfl+1}, 4, v{xfl+1}')
    A(f'v_or3_b32 v{xfl}, v{xfl}, v{xfl+1}, v{xfl+2}')
    A(f'v_cmp_ne_u32 vcc, 0, v{xfl}')
E = skip_unless([f's_xor_b32 s{sT0}, s{sW}, 1', f's_or_b32 s{sT0}, s{sT0}, s{sLAYER}'])
xf_issue()
endif(E, False)
for j in range(8):
    A(f'v_lshlrev_b32 v{xf+2*j}, 16, v{xn+j}')
    A(f'v_and_b32 v{xf+2*j+1}, 0xffff0000, v{xn+j}')
for j in range(8):
    A(f'v_pk_add_f32 {vr(xf+2*j,2)}, {vr(xf+2*j,2)}, {vr(acc+2*j,2)}')
for j in range(8):
    A(f'v_cvt_pk_bf16_f32 v{xP+j}, v{xf+2*j}, v{xf+2*j+1}')
V.release(xn, 8); V.release(xf, 16); V.release(acc, 16)
A(f's_cmp_eq_u32 s{sLAYER}, 0')
A('s_cbranch_scc1 L_x1')
A(f'v_lshl_add_u32 v{t0}, v{vQ}, 10, v{vRow}')
A(f'buffer_store_dwordx4 {vr(xP,4)}, v{t0}, {srd(SRD_OUT)}, s{aOUT} offen')
A(f'buffer_store_dwordx4 {vr(xP+4,4)}, v{t0}, {srd(SRD_OUT)}, s{aOUT} offen offset:64')
A('s_branch L_x1e')
A.label('L_x1')
chain_params(mu, var, mm, pr, t2, t3)
A(f's_lshl_b32 s{sT0}, s{sW}, 6')
A(f'v_add_u32 v{t0}, s{sT0}, v{vQ4}')
A(f'ds_write2_b32 v{t0}, v{t2}, v{t3} offset0:16 offset1:96')
V.release(mu); V.release(var); V.release(pr, 2); V.release(mm)
E1 = if_wave(1)
repoll(xf_issue, xf_check, 'X1F')
endif(E1, False)
A('s_barrier')
fine()
def ft_loads():
    E1 = if_ffn()
    A(f's_add_u32 s{sT1}, s{aFT}, 4096')
    for s_ in range(8):
        A(f'buffer_load_dwordx4 {ar(aFG + 4*s_, 4)}, v{vL16}, {srd(SRD_WS)}, s{sT1 if s_ >= 4 else aFT} offen offset:{(s_ & 3)*1024} sc1')
    endif(E1, False)
if 'ftfirst' in OPT: ft_loads()
Ed = skip_unless([f's_cmp_eq_u32 s{sW}, 0'])
A(f's_lshl_b32 s{sU1}, s{sSTB}, 14')
for kc in range(8):
    A(f's_add_u32 s{sT1}, s{sU1}, {WS_X1 + kc * 128}')
    for o in range(2):
        A(f's_add_u32 m0, s{sAM}, {L_A + kc * 8192 + o * 1024}')
        A(f'buffer_load_dwordx4 v{vXo if o else vXe}, {srd(SRD_WS)}, s{sT1} offen sc1 lds')
A(f's_cmp_eq_u32 s{sW}, 3')
A(f's_cbranch_scc1 L_hs')
A(f's_lshl_b32 s{sU1}, s{sRB}, 16')
A(f's_sub_u32 s{sT0}, s{sW}, 1')
A(f's_lshl_b32 s{sT1}, s{sT0}, 9')
A(f's_add_u32 s{sU1}, s{sU1}, s{sT1}')
A(f's_lshl_b32 s{sT0}, s{sT0}, 15')
for kc in range(4):
    A(f's_add_u32 s{sT1}, s{sU1}, {WS_X1 + kc * 128}')
    for o in range(2):
        A(f's_add_u32 m0, s{sT0}, {L_A + kc * 8192 + o * 1024}')
        A(f'buffer_load_dwordx4 v{vXo if o else vXe}, {srd(SRD_WS)}, s{sT1} offen sc1 lds')
A('s_waitcnt vmcnt(0)')
A(f's_branch {Ed}')
A.label('L_hs')
A(f's_lshl_b32 s{sT0}, s{sRB}, 10')
A(f's_lshl_b32 s{sT1}, s{sHG}, 7')
A(f's_add_u32 s{sT0}, s{sT0}, s{sT1}')
A(f's_add_u32 s{sT0}, s{sT0}, {WS_HS - 128}')
A('s_waitcnt vmcnt(0)')
A('s_mov_b32 exec_lo, 0')
A('s_mov_b32 exec_hi, 0xf0000f00')
A(f'buffer_store_dwordx4 {vr(gS,4)}, v{vQ16}, {srd(SRD_WS)}, s{sT0} offen sc1')
A('s_mov_b64 exec, -1')
endif(Ed, False)
if 'ftfirst' not in OPT: ft_loads()
A.label('L_x1e')
V.release(gS, 4); V.release(sa, 8)
V.take(accQ, 20); V.take(accK, 20); V.take(accV, 20)
fr = [V.alloc(16, 2), V.alloc(16, 2)]; sa = V.alloc(8, 2)
def own_reads(ks):
    u = ks & 1; kc = ks >> 1; b = fr[ks & 1]
    return [f'ds_read_b128 {vr(b + 4 * T, 4)}, v{vA+u} offset:{(kc * 8 + 2 * T) * 1024}' for T in range(4)]
def gemm_groups(k0, k1):
    G = []
    for ks in range(k0, k1):
        b = fr[ks & 1]; fill = own_reads(ks + 1) if ks < 15 else []
        c = lambda x: '0' if ks == 0 else vr(x, 4)
        for T in range(1, 5):
            X = vr(b + 4 * (T - 1), 4)
            for m_, (d_, a_, b_) in enumerate(((accQ, ar(aW(ks, 0), 4), X), (accK, ar(aW(ks, 1), 4), X), (accV, X, ar(aW(ks, 2), 4)))):
                g_ = [mf(vr(d_ + 4 * T, 4), a_, b_, c(d_ + 4 * T))]
                if T == 1 and m_ == 0: g_ = ['s_waitcnt lgkmcnt(0)'] + g_
                if fill and m_ < 2: g_.append(fill.pop(0))
                G.append(g_)
    return G
def gemm_part(k0, k1):
    for g_ in gemm_groups(k0, k1):
        for x in g_: A(x)
stamp()
E0 = if_wave(0)
def h2_check():
    A(f'v_max3_u32 v{t0}, v{sa}, v{sa+1}, v{sa+2}')
    A(f'v_min_u32 v{t2}, v{sa}, v{sa+2}')
    A(f'v_max_u32 v{t0}, v{t0}, v{sa+3}')
    A(f'v_max_u32 v{sa}, v{sa}, v{sa+2}')
    A(f'v_cmp_eq_u32 vcc, -1, v{t0}')
    A(f'v_max3_u32 v{sa+1}, v{sa+1}, v{sa+3}, v{t2}')
poll(lambda: A(f'buffer_load_dwordx4 {vr(sa,4)}, v{vL16}, {srd(SRD_WS)}, s{aKEYp} offen sc1'), h2_check, 'KEYS')
stamp()
top2_levels(sa, sa + 1, ['quad_perm:[1,0,3,2]', 'quad_perm:[2,3,0,1]', 'row_half_mirror', 'row_mirror'], [])
for n_, ln in enumerate((0, 16, 32, 48)):
    A(f'v_readlane_b32 s{(sK0, sT0, sT2, sU0)[n_]}, v{sa}, {ln}')
for n_, ln in enumerate((0, 16, 32, 48)):
    A(f'v_readlane_b32 s{(sK1, sT1, sT3, sU1)[n_]}, v{sa+1}, {ln}')
for a_, b_ in ((sT0, sT1), (sT2, sT3), (sU0, sU1)):
    A(f's_max_u32 s{sK1}, s{sK1}, s{b_}')
    A(f's_min_u32 s{b_}, s{sK0}, s{a_}')
    A(f's_max_u32 s{sK0}, s{sK0}, s{a_}')
    A(f's_max_u32 s{sK1}, s{sK1}, s{b_}')
A(f's_and_b32 s{sU2}, s{sK0}, 0x7f0')
A(f's_and_b32 s{sU3}, s{sK1}, 0x7f0')
A(f's_cmp_eq_u32 s{sU2}, s{sU3}')
A(f's_cselect_b32 s{sT2}, 8, 0')
A(f's_lshl_b32 s{sU2}, s{sU2}, 7')
A(f's_add_u32 s{sU2}, s{sU2}, s{aCANDb}')
A(f's_or_b32 s{sU3}, s{sU3}, s{sT2}')
A(f's_lshl_b32 s{sU3}, s{sU3}, 7')
A(f's_add_u32 s{sU3}, s{sU3}, s{aCANDb}')
def f_issue():
    A(f'buffer_load_dwordx4 {vr(sa,4)}, v{vL16}, {srd(SRD_WS)}, s{sU2} offen sc1')
    A(f'buffer_load_dwordx4 {vr(sa+4,4)}, v{vL16}, {srd(SRD_WS)}, s{sU3} offen sc1')
E = if_ffn()
f_issue()
endif(E, False)
A(f'v_mov_b32 v{t0}, s{sK0}')
A(f'v_mov_b32 v{t1}, s{sK1}')
A(f'v_mov_b32 v{t2}, {L_KEY}')
A(f'ds_write2_b32 v{t2}, v{t0}, v{t1} offset0:0 offset1:1')
endif(E0, False)
N1, N2 = [int(x) for x in next((a[2:] for a in OPT if a.startswith('n=')), '2,13').split(',')]
E = if_layer(0)
A('s_waitcnt lgkmcnt(0)')
A('s_barrier')
fine()
for x in own_reads(0): A(x)
E2 = if_wave(2)
A(f's_lshl_b32 s{sT0}, s{sHG}, 3')
A(f's_add_u32 s{sT0}, s{sT0}, s{aX1Fp}')
A('s_mov_b64 exec, 1')
local_stores([f'buffer_store_dwordx2 {vr(tg,2)}, v{vL16}, {srd(SRD_WS)}, s{sT0} offen offset:256'])
A('s_mov_b64 exec, -1')
endif(E2, False)
gemm_part(0, N1)
endif(E, False)
fine()
fa = V.alloc(4)
A(f'v_bfe_u32 v{t0}, v{vL}, 2, 1')
A(f'v_and_b32 v{t1}, 1, v{vL}')
A(f'v_lshl_or_b32 v{t0}, v{t0}, 1, v{t1}')
A(f'v_mul_u32_u24 v{fa}, 576, v{t0}')
A(f'v_lshl_add_u32 v{fa}, v{vG}, 4, v{fa}')
A(f'v_add_u32 v{fa}, {L_XS}, v{fa}')
A(f's_lshl_b32 s{sT1}, s{sW}, 3')
A(f's_add_u32 s{sT1}, s{sT1}, {L_H}')
A(f'v_lshlrev_b32 v{fa+1}, 5, v{vG}')
A(f'v_lshl_add_u32 v{fa+1}, v{vQ}, 1, v{fa+1}')
A(f'v_add_u32 v{fa+1}, s{sT1}, v{fa+1}')
A(f's_lshr_b32 s{sT1}, s{sW}, 1')
A(f's_lshl_b32 s{sT1}, s{sT1}, 5')
A(f's_add_u32 s{sT1}, s{sT1}, {L_H}')
A(f'v_mov_b32 v{fa+2}, s{sT1}')
A(f'v_lshlrev_b32 v{fa+3}, 4, v0')
A(f'v_mov_b32 v{t3}, {L_KEY}')
A(f'v_lshrrev_b32 v{t2}, 5, v{vL}')
A(f'v_lshl_add_u32 v{t2}, v{t2}, 6, v{vL16}')
A(f'v_add_u32 v{t2}, {L_XS}, v{t2}')
E = if_ffn()
A(f's_cmp_eq_u32 s{sW}, 0')
A(f's_cbranch_scc1 {E}r')
A(f's_cmp_lg_u32 s{sLAYER}, 0')
A(f's_cbranch_scc1 {E}')
A('s_waitcnt vmcnt(0)')
A(f's_branch {E}')
A.label(E + 'r')
def f_check():
    A(f'v_max_u32 v{t0}, v{sa}, v{sa+4}')
    A(f'ds_write_b128 v{t2}, {vr(sa,4)}')
    A(f'v_cmp_eq_u32 vcc, -1, v{t0}')
    A(f'ds_write_b128 v{t2}, {vr(sa+4,4)} offset:1152')
    A('s_waitcnt lgkmcnt(0)')
repoll(f_issue, f_check, 'CAND')
endif(E, False)
A('s_waitcnt lgkmcnt(0)')
A('s_barrier')
fine()
A(f's_cmp_eq_u32 s{sHASF}, 0')
A('s_cbranch_scc1 L_noffn')
xs = V.alloc(32, 2); d4 = V.alloc(4, 2); hp = V.alloc(8, 2); y4 = V.alloc(4, 2); wd = xs
for s_ in range(8):
    A(f'ds_read_b128 {vr(xs + 4*s_, 4)}, v{fa} offset:{64*s_}')
for c in range(4): A(f'v_mov_b32 v{y4+c}, 0')
wrd = [f'v_accvgpr_read_b32 v{wd+j}, a{aFD+j}' for j in range(32)]
for s_ in range(8):
    A(f's_waitcnt lgkmcnt({7 - s_})')
    A(mf(vr(d4, 4), vr(xs + 4*s_, 4), ar(aFG + 4*s_, 4), '0' if s_ == 0 else vr(d4, 4)))
    if s_: A(wrd.pop(0)); A(wrd.pop(0))
for _ in range(6): A(wrd.pop(0))
A(f'v_add_f32_dpp v{t0}, v{d4+1}, v{d4} row_shl:8 {DP}')
bf_round(t0, t0)
A(f'v_mul_f32 v{t1}, {hex(f2u(-1.4426950408889634))}, v{t0}')
A(f'v_exp_f32 v{t1}, v{t1}')
A(f'v_mov_b32_dpp v{t2}, v{t0} row_shl:4 {DP}')
A(f'v_add_f32 v{t1}, 1.0, v{t1}')
A(f'v_rcp_f32 v{t1}, v{t1}')
A('s_mov_b64 exec, 0x000f000f')
A(f'v_mul_f32 v{t1}, v{t0}, v{t1}')
bf_round(t1, t1)
A(f'v_mul_f32 v{t1}, v{t2}, v{t1}')
A(f'v_cvt_pk_bf16_f32 v{t1}, v{t1}, v{t1}')
A(f'ds_write_b16 v{fa+1}, v{t1}')
A('s_mov_b64 exec, -1')
for _ in range(8): A(wrd.pop(0))
A('s_waitcnt lgkmcnt(0)')
A('s_barrier')
A(f'ds_read_b128 {vr(hp,4)}, v{fa+2}')
A(f'ds_read_b128 {vr(hp+4,4)}, v{fa+2} offset:16')
while wrd: A(wrd.pop(0))
for j in range(8):
    if j % 4 == 0: A(f's_waitcnt lgkmcnt({1 - j // 4})')
    for c in range(4):
        A(f'v_dot2c_f32_bf16 v{y4+c}, v{wd+4*j+c}, v{hp+j}')
A(f'buffer_store_dwordx4 {vr(y4,4)}, v{fa+3}, {srd(SRD_WS)}, s{aYPs} offen sc1')
V.release(xs, 32); V.release(d4, 4); V.release(hp, 8); V.release(y4, 4)
A.label('L_noffn')
A(f'ds_read_b64 {vr(sa,2)}, v{t3}')
V.release(fa, 4)
A('s_waitcnt lgkmcnt(0)')
A(f'v_readfirstlane_b32 s{sK0}, v{sa}')
A(f'v_readfirstlane_b32 s{sK1}, v{sa+1}')
stamp()
E = if_layer(0)
NH = N2 - 3
gemm_part(N1, NH - 1)
A(f's_lshl_b32 s{sU0}, s{sRB}, 10')
A(f's_add_u32 s{sU0}, s{sU0}, {WS_HS - 1024}')
hs_issue = lambda: A(f'buffer_load_dwordx4 {vr(sa,4)}, v{vL16}, {srd(SRD_WS)}, s{sU0} offen sc1')
hs_issue()
gemm_part(NH - 1, NH + 1)
A('s_waitcnt vmcnt(0)')
Eh = skip_unless([f's_cmp_lg_u32 s{sFIRST}, 0'])
repoll(hs_issue, lambda: A(f'v_cmp_ne_u32 vcc, s{sTAG}, v{sa+3}'), 'HS')
A(f's_lshl_b32 s{sU1}, s{sRB}, 13')
A(f's_lshl_b32 s{sT0}, s{sW}, 8')
A(f's_add_u32 s{sU1}, s{sU1}, s{sT0}')
A(f's_mul_i32 s{sT0}, s{sW}, {2 * HST}')
for j in range(2):
    A(f's_add_u32 m0, s{sT0}, {L_HA + j * HST}')
    A(f's_add_u32 s{sT1}, s{sU1}, {WS_HALO - 16384 + j * 128}')
    A(f'buffer_load_dwordx4 v{vXo}, {srd(SRD_WS)}, s{sT1} offen sc1 lds')
endif(Eh, False)
G = gemm_groups(NH + 1, N2)
for x in G.pop(0): A(x)
A.sprinkle = (G, 2, emit)
mu = V.alloc(); var = V.alloc(); pr = V.alloc(); mm = V.alloc()
for r in (0, 2): A(f'v_add_f32_dpp v{sa+r}, v{sa+r}, v{sa+r} row_ror:8 {DP}')
for sw in ('v_permlane16_swap_b32', 'v_permlane32_swap_b32'):
    for r in (0, 2): A(f'v_mov_b32 v{sa+4+r}, v{sa+r}')
    for r in (0, 2): A(f'{sw} v{sa+r}, v{sa+4+r}')
    for r in (0, 2): A(f'v_add_f32 v{sa+r}, v{sa+r}, v{sa+4+r}')
ln_params(sa, sa + 2, mu, var, mm, pr, t0)
chain_params(mu, var, mm, pr, t2, t3)
A.sprinkle = None
for g_ in G:
    for x in g_: emit(x)
A(f's_xor_b32 s{sT0}, s{sW}, 1')
A(f's_or_b32 s{sT0}, s{sT0}, s{sFIRST}')
A(f's_cbranch_scc1 {E}')
A(f'ds_write2_b32 v{vQ4}, v{t2}, v{t3} offset0:0 offset1:80')
V.release(mu); V.release(var); V.release(pr); V.release(mm)
endif(E, False)
V.release(sa, 8)
stamp()
A(f's_bfe_u32 s{sT0}, s{sK0}, 0x50006')
A(f's_bfe_u32 s{sT1}, s{sK1}, 0x50006')
A(f's_cmp_eq_u32 s{sT0}, s{sRB}')
A(f's_cselect_b32 s{sT1}, s{sRB}, s{sT1}')
A(f's_cselect_b32 s{sTOK}, 0, 1')
A(f's_cselect_b32 s{sKEY}, s{sK0}, s{sK1}')
A(f's_cmp_lg_u32 s{sT1}, s{sRB}')
A('s_cbranch_scc1 L_own_end')
A.label('L_own')
A(f's_and_b32 s{sRHO}, s{sKEY}, 2047')
A(f's_lshr_b32 s{sT0}, s{sRHO}, 6')
A(f's_cmp_lg_u32 s{sT0}, s{sRB}')
A('s_cbranch_scc1 L_own_next')
yp = V.alloc(24, 2); sg = V.alloc(); ya = V.alloc(); yb = V.alloc(); yc = V.alloc()
A(f's_lshl_b32 s{sT0}, s{sTOK}, 11')
A(f's_add_u32 s{sT0}, s{sT0}, s{aYPb}')
A(f'v_lshrrev_b32 v{t0}, 4, v0')
A(f'v_lshlrev_b32 v{t2}, 12, v{t0}')
A(f'v_lshl_add_u32 v{t2}, v{vQ}, 4, v{t2}')
A(f'v_add_u32 v{t2}, s{sT0}, v{t2}')
A(f'v_mov_b32 v{t1}, 0x40000000')
A(f'v_cmp_gt_u32 vcc, 6, v{t0}')
A(f'v_cndmask_b32 v{t3}, v{t1}, v{t2}, vcc')
def y_issue():
    for j in range(6):
        A(f's_mov_b32 s{sT1}, {j * 65536}')
        A(f'buffer_load_dwordx4 {vr(yp + 4*j, 4)}, v{t3 if j == 5 else t2}, {srd(SRD_WS)}, s{sT1} offen sc1')
def y_check():
    A(f'v_max3_u32 v{t0}, v{yp}, v{yp+4}, v{yp+8}')
    A(f'v_max3_u32 v{t1}, v{yp+12}, v{yp+16}, v{yp+20}')
    A(f'v_max_u32 v{t0}, v{t0}, v{t1}')
    A(f'v_cmp_eq_u32 vcc, -1, v{t0}')
y_issue()
A(f's_bfe_u32 s{sT0}, s{sK0}, 0x70004')
A(f's_bfe_u32 s{sT2}, s{sKEY}, 0x70004')
A(f's_cmp_eq_u32 s{sT0}, s{sT2}')
A(f's_cselect_b32 s{sT0}, s{sTOK}, 0')
A(f's_lshl_b32 s{sT0}, s{sT0}, 8')
A(f's_and_b32 s{sT2}, s{sT2}, 3')
A(f's_lshl_b32 s{sT2}, s{sT2}, 9')
A(f's_add_u32 s{sT0}, s{sT0}, s{sT2}')
A(f's_add_u32 s{sT0}, s{sT0}, {L_CS}')
A(f'v_lshl_add_u32 v{yc}, v{vL}, 1, s{sT0}')
A(f'ds_read_u16 v{ya}, v{yc}')
A(f'ds_read_u16 v{yb}, v{yc} offset:128')
A(f's_ashr_i32 s{sT2}, s{sKEY}, 31')
A(f's_not_b32 s{sT2}, s{sT2}')
A(f's_or_b32 s{sT2}, s{sT2}, 0x80000000')
A(f's_xor_b32 s{sT2}, s{sT2}, s{sKEY}')
A(f'v_mov_b32 v{sg}, s{sT2}')
bf_round(sg, sg)
A(f'v_mul_f32 v{sg}, {hex(f2u(-1.4426950408889634))}, v{sg}')
A(f'v_exp_f32 v{sg}, v{sg}')
A(f'v_add_f32 v{sg}, 1.0, v{sg}')
A(f'v_rcp_f32 v{sg}, v{sg}')
bf_round(sg, sg)
A('s_waitcnt lgkmcnt(0)')
A(f'v_lshlrev_b32 v{ya}, 16, v{ya}')
A(f'v_lshlrev_b32 v{yb}, 16, v{yb}')
A(f'v_lshlrev_b32 v{yc}, 4, v0')
A(f'v_add_u32 v{yc}, {L_RED}, v{yc}')
A(f's_lshl_b32 s{sT2}, s{sHG}, 7')
A(f's_and_b32 s{sU0}, s{sRHO}, 1023')
A(f's_lshl_b32 s{sU0}, s{sU0}, 11')
A(f's_and_b32 s{sT0}, s{sRHO}, 1024')
A(f's_add_u32 s{sU0}, s{sU0}, s{sT0}')
A(f's_add_u32 s{sU0}, s{sU0}, s{sT2}')
A(f's_lshl_b32 s{sU1}, s{sTOK}, 10')
A(f's_add_u32 s{sU1}, s{sU1}, s{sT2}')
A(f's_add_u32 s{sU1}, s{sU1}, {WS_X2R}')
repoll(y_issue, y_check, 'YP')
fine()
for a_, b_ in ((0, 4), (8, 12), (16, 20), (0, 8), (0, 16)):
    for h in range(2):
        A(f'v_pk_add_f32 {vr(yp+a_+2*h,2)}, {vr(yp+a_+2*h,2)}, {vr(yp+b_+2*h,2)}')
A(f'ds_write_b128 v{yc}, {vr(yp,4)}')
A(f'v_lshlrev_b32 v{t0}, 2, v{vL}')
A(f'v_add_u32 v{t0}, {L_RED}, v{t0}')
A('s_waitcnt lgkmcnt(0)')
A('s_barrier')
A(f's_cmp_lg_u32 s{sW}, 3')
A('s_cbranch_scc1 L_own_sync')
for j in range(8):
    A(f'ds_read2st64_b32 {vr(yp + 2*j, 2)}, v{t0} offset0:{2*j} offset1:{2*j+1}')
A(f'v_lshlrev_b32 v{t0}, 1, v{vL}')
for n_, (a_, b_) in enumerate(((0, 2), (4, 6), (8, 10), (12, 14), (0, 4), (8, 12), (0, 8))):
    if n_ < 4: A(f's_waitcnt lgkmcnt({6 - 2 * n_})')
    A(f'v_pk_add_f32 {vr(yp+a_,2)}, {vr(yp+a_,2)}, {vr(yp+b_,2)}')
A(f'v_add_f32 v{yp}, v{yp}, v{yp+1}')
bf_round(yp, yp)
A(f'v_mul_f32 v{yp}, v{yp}, v{sg}')
bf_round(yp, yp)
A(f'v_add_f32 v{yp}, v{yp}, v{yb}')
bf_round(yp, yp)
A(f'v_add_f32 v{yp}, v{yp}, v{ya}')
A(f'v_mov_b32_dpp v{yp+1}, v{yp} quad_perm:[1,0,3,2] {DP}')
A(f'v_cvt_pk_bf16_f32 v{yp}, v{yp}, v{yp+1}')
A('s_mov_b32 exec_lo, 0x55555555')
A('s_mov_b32 exec_hi, 0x55555555')
A(f's_cmp_eq_u32 s{sLAYER}, 0')
A('s_cbranch_scc1 L_own_x2')
A(f'buffer_store_dword v{yp}, v{t0}, {srd(SRD_OUT)}, s{sU0} offen')
A('s_branch L_own_fin')
A.label('L_own_x2')
local_stores([f'buffer_store_dword v{yp}, v{t0}, {srd(SRD_WS)}, s{sU1} offen'])
A(f's_and_b32 s{sT0}, s{sRHO}, 63')
A(f's_cmp_lt_u32 s{sT0}, 56')
A('s_cbranch_scc1 L_own_nh')
A(f'buffer_store_dword v{yp}, v{t0}, {srd(SRD_WS)}, s{sU1} offen offset:2048 sc1')
A.label('L_own_nh')
A(f'v_add_u32 v{t0}, {L_X2S}, v{t0}')
A(f'ds_write_b32 v{t0}, v{yp}')
A.label('L_own_fin')
A('s_mov_b64 exec, -1')
A.label('L_own_sync')
A('s_waitcnt lgkmcnt(0)')
A('s_barrier')
A(f's_bfe_u32 s{sT0}, s{sRHO}, 0x20004')
A(f's_cmp_lg_u32 s{sT0}, s{sW}')
A('s_cbranch_scc1 L_own_next')
A(f's_and_b32 s{sT0}, s{sRHO}, 15')
A(f'v_add_u32 v{t0}, {L_X2S}, v{vGm}')
A(f'v_cmp_eq_u32 vcc, s{sT0}, v{vQ}')
A('s_mov_b64 exec, vcc')
A(f'ds_read_b128 {vr(xP,4)}, v{t0}')
A(f'ds_read_b128 {vr(xP+4,4)}, v{t0} offset:64')
A('s_mov_b64 exec, -1')
A('s_waitcnt lgkmcnt(0)')
V.release(yp, 24); V.release(sg); V.release(ya); V.release(yb); V.release(yc)
A.label('L_own_next')
A(f's_mov_b32 s{sKEY}, s{sK1}')
A(f's_add_u32 s{sTOK}, s{sTOK}, 1')
A(f's_cmp_lt_u32 s{sTOK}, 2')
A('s_cbranch_scc1 L_own')
A.label('L_own_end')
A(f's_cmp_eq_u32 s{sLAYER}, 1')
A('s_cbranch_scc1 L_fin')
stamp()
gemm_part(N2, 15)
sS0, sS1 = sU2, sU3
for key_, dst in ((sK0, sS0), (sK1, sS1)):
    A(f's_and_b32 s{sT0}, s{key_}, 2047')
    A(f's_lshl_b32 s{sT1}, s{sRB}, 6')
    A(f's_sub_u32 s{sT0}, s{sT0}, s{sT1}')
    A(f's_add_u32 s{dst}, s{sT0}, 16')
    A(f's_cmp_lt_u32 s{dst}, 80')
    A(f's_cselect_b32 s{dst}, s{dst}, 0')
    A(f's_lshl_b32 s{sT1}, s{sFIRST}, 3')
    A(f's_add_u32 s{sT1}, s{sT1}, 8')
    A(f's_cmp_ge_u32 s{dst}, s{sT1}')
    A(f's_cselect_b32 s{dst}, s{dst}, 0')
rw = V.alloc(4, 2); s12 = V.alloc(4, 2)
A(f's_cmp_eq_u32 s{sW}, 2')
A(f's_cselect_b32 s{sT4}, s{sS0}, s{sS1}')
A(f's_cselect_b32 s{sTOK}, 0, 1')
A(f's_bitcmp1_b32 s{sW}, 0')
A(f's_cselect_b32 s{sT4}, 0, s{sT4}')
E = skip_unless([f's_cmp_eq_u32 s{sT4}, 0'])
A(f's_cmp_lt_u32 s{sT4}, 16')
A(f's_cselect_b32 s{sT1}, 2, 0')
A(f's_add_u32 s{sT0}, s{sTOK}, s{sT1}')
A(f's_lshl_b32 s{sT0}, s{sT0}, 10')
A(f's_add_u32 s{sT0}, s{sT0}, {WS_X2R}')
r_issue = lambda: A(f'buffer_load_dwordx4 {vr(rw,4)}, v{vL16}, {srd(SRD_WS)}, s{sT0} offen sc1')
r_issue()
A(f'v_lshrrev_b32 v{t2}, 3, v{vL}')
A(f'v_mul_u32_u24 v{t2}, {HST - 128}, v{t2}')
A(f's_lshl_b32 s{sT1}, s{sTOK}, 7')
A(f's_add_u32 s{sT1}, s{sT1}, {L_HA + 1024}')
A(f'v_add3_u32 v{t2}, v{t2}, v{vL16}, s{sT1}')
A(f's_lshl_b32 s{sT1}, s{sT4}, 2')
A(f's_add_u32 s{sT1}, s{sT1}, {L_TAB}')
A(f'v_mov_b32 v{t3}, s{sT1}')
A(f'v_mov_b32 v{s12}, 0')
A(f'v_mov_b32 v{s12+1}, 0')
def r_check():
    A(f'v_max3_u32 v{t0}, v{rw}, v{rw+1}, v{rw+2}')
    A(f'v_max_u32 v{t0}, v{t0}, v{rw+3}')
    A(f'v_cmp_eq_u32 vcc, -1, v{t0}')
repoll(r_issue, r_check, 'X2R')
A(f'ds_write_b128 v{t2}, {vr(rw,4)}')
for j in range(4):
    A(f'v_dot2c_f32_bf16 v{s12}, v{rw+j}, v{vOnes}')
    A(f'v_dot2c_f32_bf16 v{s12+1}, v{rw+j}, v{rw+j}')
endif(E, False)
A('s_waitcnt vmcnt(0) lgkmcnt(0)')
fine()
A('s_barrier')
fine()
xr = V.alloc(64, 2)
hr = [f'ds_read_b128 {vr(xr + 4*ks, 4)}, v{vH + (ks & 1)} offset:{(ks >> 1) * HST}' for ks in range(16)]
b = fr[1]
for T in range(1, 5):
    X = vr(b + 4 * (T - 1), 4)
    A(mf(vr(accQ + 4 * T, 4), ar(aW(15, 0), 4), X, vr(accQ + 4 * T, 4))); A(hr.pop(0))
    A(mf(vr(accK + 4 * T, 4), ar(aW(15, 1), 4), X, vr(accK + 4 * T, 4))); A(hr.pop(0))
    A(mf(vr(accV + 4 * T, 4), X, ar(aW(15, 2), 4), vr(accV + 4 * T, 4))); A(hr.pop(0))
mm_ = []
for ks in range(16):
    c = lambda x: '0' if ks == 0 else vr(x, 4)
    X = vr(xr + 4 * ks, 4)
    g_ = [mf(vr(accK, 4), ar(aW(ks, 1), 4), X, c(accK))]
    if ks == 0: g_ = ['s_waitcnt lgkmcnt(4)'] + g_
    if ks == 8: g_ = ['s_waitcnt lgkmcnt(0)'] + g_
    if hr: g_.append(hr.pop(0))
    mm_ += [g_, [mf(vr(accV, 4), X, ar(aW(ks, 2), 4), c(accV))]]
A.sprinkle = (mm_, 1, emit)
for sh in (8, 4, 2, 1):
    for r in range(2): A(f'v_add_f32_dpp v{s12+r}, v{s12+r}, v{s12+r} row_ror:{sh} {DP}')
for sw in ('v_permlane16_swap_b32', 'v_permlane32_swap_b32'):
    for r in range(2): A(f'v_mov_b32 v{s12+2+r}, v{s12+r}')
    for r in range(2): A(f'{sw} v{s12+r}, v{s12+2+r}')
    for r in range(2): A(f'v_add_f32 v{s12+r}, v{s12+r}, v{s12+2+r}')
ln_params(s12, s12 + 1, rw, rw + 1, rw + 2, rw + 3, t0)
A.sprinkle = None
for g_ in mm_:
    for x in g_: emit(x)
for b in fr: V.release(b, 16)
stamp()
A(f's_or_b32 s{sT0}, s{sS0}, s{sS1}')
A('s_cbranch_scc0 L_nofix')
for ks in range(16):
    A(mf(vr(accQ, 4), ar(aW(ks, 0), 4), vr(xr + 4 * ks, 4), '0' if ks == 0 else vr(accQ, 4)))
    if ks == 0: A(f'v_xor_b32 v{rw+2}, 0x80000000, v{rw+2}')
    if ks == 1:
        E = skip_unless([f's_cmp_eq_u32 s{sT4}, 0'])
        A(f'ds_write2_b32 v{t3}, v{rw+2}, v{rw+3} offset0:0 offset1:80')
        endif(E, False)
nq = xr
for tok in range(2):
    for r in range(4): A(f'v_mov_b32_dpp v{nq+10*tok+4+r}, v{accK+r} row_newbcast:{tok} {DP}')
    A(f'v_mov_b32 v{nq+10*tok+8}, v{accV+tok}')
    A(f'v_mov_b32 v{nq+10*tok+9}, v{accV+tok}')
for tok in range(2):
    A(f'v_permlane32_swap_b32 v{nq+10*tok+8}, v{nq+10*tok+9}')
for tok in range(2):
    for r in range(4): A(f'v_mov_b32_dpp v{nq+10*tok+r}, v{accQ+r} row_newbcast:{tok} {DP}')
for tok, sl in ((0, sS0), (1, sS1)):
    E = skip_unless([f's_cmp_eq_u32 s{sl}, 0'])
    A(f's_and_b32 s{sT0}, s{sl}, 15')
    A(f's_lshr_b32 s{sT1}, s{sl}, 4')
    A(f's_lshl_b32 s{sT1}, s{sT1}, 2')
    A(f's_lshl_b32 s{sT2}, 0x00010001, s{sT0}')
    A(f's_mov_b32 exec_lo, s{sT2}')
    A(f's_mov_b32 exec_hi, s{sT2}')
    A(f's_set_gpr_idx_on s{sT1}, gpr_idx(DST)')
    for r in range(4): A(f'v_mov_b32 v{accQ+r}, v{nq+10*tok+r}')
    for r in range(4): A(f'v_mov_b32 v{accK+r}, v{nq+10*tok+4+r}')
    A('s_set_gpr_idx_off')
    A(f's_and_b32 s{sT2}, s{sT0}, 12')
    A(f's_lshl_b32 s{sT2}, s{sT2}, 2')
    A(f's_lshl_b64 exec, 0xffff, s{sT2}')
    A(f's_and_b32 s{sT0}, s{sT0}, 3')
    A(f's_add_u32 s{sT0}, s{sT1}, s{sT0}')
    A(f's_set_gpr_idx_on s{sT0}, gpr_idx(DST)')
    A(f'v_mov_b32 v{accV}, v{nq+10*tok+8}')
    A('s_set_gpr_idx_off')
    A('s_mov_b64 exec, -1')
    endif(E, False)
A('s_waitcnt lgkmcnt(0)')
A('s_barrier')
A.label('L_nofix')
V.release(rw, 4); V.release(s12, 4); V.release(xr, 64)
bump = [f'v_mov_b32 v{vXs}, 0x40000000']
stamp()
A(f's_mov_b32 s{sLAYER}, 1')
V.take(oP, 8)
dfl = V.alloc(2, 2); vDf = V.alloc()
A(f'v_and_b32 v{vDf}, 56, v{vL8}')
df_issue = lambda: A(f'buffer_load_dwordx2 {vr(dfl,2)}, v{vDf}, {srd(SRD_WS)}, s{aX1Fp} offen offset:256 sc1')
for a_, d_ in ((aFLp, 1 << 14), (aFLs, 1 << 14), (aSTp, 1 << 18), (aSTs, 1 << 18), (aKEYs, 1 << 13), (aKEYp, 1 << 13),
               (aCANDs, 1 << 18), (aCANDb, 1 << 18), (aYPs, 86 * 4096), (aYPb, 86 * 4096)):
    bump.append(f's_add_u32 s{a_}, s{a_}, {d_}')
df_issue()
epilogue(False, bump)
repoll(df_issue, lambda: tag_check(dfl), 'DF')
A('s_branch L_pub')
A.label('L_fin')
finish()
emit_far()
A.label('L_end')
A('s_endpgm')

hdr = f"""; @launch grid=(256,1,1) block=(256,1,1) lds={LDS_SIZE}
.amdgcn_target "amdgcn-amd-amdhsa--gfx950"
.text
.globl {NAME}_kernel
.p2align 8
.type {NAME}_kernel,@function
"""
tail = f"""
.section .rodata,"a"
.p2align 6
.amdhsa_kernel {NAME}_kernel
  .amdhsa_next_free_vgpr 512
  .amdhsa_next_free_sgpr 102
  .amdhsa_accum_offset 256
  .amdhsa_group_segment_fixed_size 0
  .amdhsa_kernarg_size 88
  .amdhsa_user_sgpr_count 2
  .amdhsa_user_sgpr_kernarg_segment_ptr 1
  .amdhsa_system_sgpr_workgroup_id_x 1
.end_amdhsa_kernel
"""
open(sys.argv[1], 'w').write(hdr + A.text() + tail)
print('vgpr high water', V.hw, 'nops added', A.nops_added, 'lines', len(A.lines))
```

```python
import sys, struct
from asmlib import *

NAME = "interleave_layers__sliding_local_dilated__moe_arch_mod__prompt"
STOP = None
STAMPS = False
FORCE_REMOTE = False
OPT = set(sys.argv[2:])
for a in sys.argv[2:]:
    if a.startswith('stop='): STOP = a[5:]
    if a == 'stamps': STAMPS = True
    if a == 'remote': FORCE_REMOTE = True

def f2u(x): return struct.unpack('<I', struct.pack('<f', x))[0]
MB = 1 << 20
WS_O = 0
WS_X1 = WS_O
WS_SENT = 4 * MB
WS_KEYS = WS_SENT + 16384
WS_HS = WS_SENT + 32768
WS_X2R = WS_SENT
WS_CAND = WS_SENT + 64 * 1024
WS_YP = WS_SENT + 576 * 1024
assert WS_YP + 2 * 86 * 4096 <= WS_SENT + 1280 * 1024
WS_ST = WS_SENT + 1280 * 1024
WS_HALO = 6 * MB
WS_ST0 = WS_HALO + 256 * 1024 + 128
WS_FL = WS_HALO + 320 * 1024
WS_X1F = WS_HALO + 352 * 1024
WS_HELLO = WS_HALO + 384 * 1024
WS_EPOCH = WS_HELLO + 8 * 4096
WS_FT = 10 * MB
WS_STAMP = 8 * MB
WS_SIZE = 16 * MB
L_A = 0
L_HA = 65536
HST = 1280
L_W = L_HA + 8 * HST
SLOT = {1: 0, 0: 24576, 2: 49152}
L_WO = L_W + 12288
def wo_off(ks): return 61440 if ks == 15 else ((ks - 12) * 4096 if ks >= 12 else (12288 + (ks - 6) * 4096 if ks >= 6 else 36864 + ks * 4096))
L_W15 = L_A
L_FT = L_A + 12288
L_WD = L_A + 24576
L_RED = L_W
L_ROW = L_W + 4096
L_XS = L_W + 8192
L_TAB = L_W + 3 * 24576 + 4096
L_CS = L_TAB + 640
L_H = L_CS + 2048
L_X2S = L_H + 64
L_KEY = L_X2S + 128
LDS_SIZE = 160 * 1024
assert L_KEY + 64 <= LDS_SIZE
SRD_X, SRD_W, SRD_WS, SRD_OUT, SRD_U, SRD_T = 4, 8, 12, 16, 20, 24
P = 28
sW, sSET, sI, sHG, sRB, sP, sJ0, sFIRST, sLOCAL, sLAYER = range(50, 60)
sT0, sT1, sT2, sT3, sT4, sT5 = range(60, 66)
sM0, sM1 = 66, 68
sRET = 70
sSTAMP = 72
sGUARD = 75
sTAG, sTAGB = 76, 77
sFS, sHASF, sK0, sK1, sTOK, sRHO, sKEY, sST = range(78, 86)
sAB, sAM, sWM, sOM = range(86, 90)
sSTB = 92
sU0, sU1, sU2, sU3 = range(94, 98)
stamp_n = [0]

A = Asm()
VP = Pool(1, 80)
V = Pool(80, 256)
vST = VP.alloc()
oP = V.take(80, 8); wra = V.take(88, 4)
def srd(n): return sr(n, 4)
DP = 'row_mask:0xf bank_mask:0xf'

def stamp(force=False):
    if not STAMPS: return
    n = stamp_n[0]; stamp_n[0] += 1
    if 'minstamp' in OPT and not force: return
    assert n < 32
    A(f'{"s_memtime" if "cyc" in sys.argv else "s_memrealtime"} {sr(sSTAMP,2)}')
    A(f's_lshl_b32 s{sST}, s{sLAYER}, 5')
    A(f's_add_u32 s{sST}, s{sST}, {n}')
    A('s_waitcnt lgkmcnt(0)')
    A(f's_mov_b32 m0, s{sST}')
    A('s_nop 0')
    A(f'v_writelane_b32 v{vST}, s{sSTAMP}, m0')

def mk_srd(d, ptr, size):
    A(f's_mov_b32 s{d}, s{ptr}')
    A(f's_and_b32 s{d+1}, s{ptr+1}, 0xffff')
    A(f's_mov_b32 s{d+2}, {size}')
    A(f's_mov_b32 s{d+3}, 0x20000')

def bf_round(dst, src):
    A(f'v_cvt_pk_bf16_f32 v{dst}, 0, v{src}')

def ln_params(s1, s2, mu, var, m, rs, t):
    A(f'v_mul_f32 v{mu}, {hex(f2u(1/512))}, v{s1}')
    A(f'v_mul_f32 v{var}, {hex(f2u(1/512))}, v{s2}')
    A(f'v_fma_f32 v{var}, -v{mu}, v{mu}, v{var}')
    A(f'v_max_f32 v{var}, 0, v{var}')
    round_params(mu, var, m, rs, t)

def round_params(mu, var, m, rs, t):
    bf_round(t, var)
    A(f'v_add_f32 v{t}, {hex(f2u(1e-5))}, v{t}')
    bf_round(t, t)
    A(f'v_sqrt_f32 v{t}, v{t}')
    bf_round(m, mu)
    bf_round(t, t)
    A(f'v_rcp_f32 v{rs}, v{t}')

def finish():
    if PAD:
        L = A.newlabel('L_pad')
        A.label(L)
        A(f's_memrealtime {sr(sSTAMP,2)}')
        A('s_waitcnt lgkmcnt(0)')
        A(f's_sub_u32 s{sSTAMP}, s{sSTAMP}, s90')
        A(f's_cmp_lt_u32 s{sSTAMP}, {PAD}')
        A(f's_cbranch_scc1 {L}')
    if STAMPS:
        stamp(True)
        A(f's_lshl_b32 s{sT0}, s2, 10')
        A(f's_add_u32 s{sT0}, s{sT0}, {WS_STAMP}')
        A(f'v_lshlrev_b32 v{t0}, 2, v0')
        A(f'buffer_store_dword v{vST}, v{t0}, {srd(SRD_WS)}, s{sT0} offen')
    A('s_endpgm')

def mf(d, a, b, c, k32=True):
    return f'v_mfma_f32_16x16x{32 if k32 else 16}_bf16 {d}, {a}, {b}, {c}'
def emit(x):
    if callable(x): x()
    elif isinstance(x, tuple): A(x[0], tag=x[1])
    else: A(x)

A.raw(f'{NAME}_kernel:')
A('s_cmp_ge_u32 s2, 256')
A('s_cbranch_scc1 L_end')
PAD = int(next((a[6:] for a in OPT if a.startswith('padto=')), '0'))
if PAD: A('s_memrealtime s[90:91]')
if STAMPS: A(f'{"s_memtime" if "cyc" in sys.argv else "s_memrealtime"} s[90:91]')
A(f's_load_dwordx2 {sr(SRD_W,2)}, s[0:1], 8')
A(f's_load_dwordx2 {sr(SRD_X,2)}, s[0:1], 0')
P_X, P_W, P_WO, P_BX, P_WR, P_WG, P_WU, P_WD, P_OUT, P_DBG, P_WS = [P + 2 * i for i in range(11)]
vL = VP.alloc(); vQ = VP.alloc(); vG = VP.alloc(); vL16 = VP.alloc()
t0 = VP.alloc(); t1 = VP.alloc(); t2 = VP.alloc(); t3 = VP.alloc()
vDum = VP.alloc()
vXe = VP.alloc(); vXo = VP.alloc()
vR8 = V.take(93); vWo = V.take(92); vWd = V.alloc(); vSt = V.alloc()
A(f'v_lshrrev_b32 v{t0}, 6, v0')
A(f'v_lshrrev_b32 v{t1}, 3, v0')
A(f'v_readfirstlane_b32 s{sW}, v{t0}')
A(f'v_and_b32 v{t2}, 2, v{t1}')
A(f'v_and_b32 v{t0}, 1, v{t0}')
A(f'v_lshl_or_b32 v{t2}, v{t0}, 2, v{t2}')
A(f'v_and_b32 v{t3}, 7, v0')
A(f'v_xor_b32 v{t2}, v{t2}, v{t3}')
A(f's_bfe_u32 s{sHG}, s2, 0x30003')
A(f's_lshl_b32 s{sT0}, s{sHG}, 7')
A(f'v_lshl_add_u32 v{t2}, v{t2}, 4, s{sT0}')
A(f'v_mul_u32_u24 v{vWd}, 3072, v{t1}')
A(f'v_add_u32 v{vWd}, v{vWd}, v{t2}')
A(f's_mul_i32 s{sWM}, s{sW}, 3072')
A(f's_add_u32 s{sWM}, s{sWM}, {L_W}')
A(f's_mov_b32 s{SRD_W+2}, {512 * 3072}')
A(f's_mov_b32 s{SRD_W+3}, 0x20000')
A(f's_mov_b32 s{SRD_X+2}, {2 * MB}')
A(f's_mov_b32 s{SRD_X+3}, 0x20000')
A(f'v_lshl_add_u32 v{vWo}, v{t1}, 10, v{t2}')
A(f'v_bfe_u32 v{vG}, v0, 4, 2')
A(f'v_and_b32 v{vR8}, 7, v{t1}')
A(f'v_xor_b32 v{t2}, v{t3}, v{vG}')
A(f'v_lshlrev_b32 v{t2}, 4, v{t2}')
A(f'v_lshl_add_u32 v{vXe}, v{vR8}, 11, v{t2}')
A(f'v_xor_b32 v{vXo}, 64, v{vXe}')
A(f'v_add_u32 v{vXo}, {8 * 2048}, v{vXo}')
A(f's_and_b32 s{sSET}, s2, 7')
A(f's_lshr_b32 s{sT0}, s2, 6')
A(f's_lshl_b32 s{sRB}, s{sSET}, 2')
A(f's_add_u32 s{sRB}, s{sRB}, s{sT0}')
A(f's_and_b32 s{sJ0}, s{sRB}, 15')
A(f's_lshl_b32 s{sT4}, s{sJ0}, 17')
A(f's_and_b32 s{sT1}, s{sRB}, 16')
A(f's_lshl_b32 s{sT1}, s{sT1}, 6')
A(f's_add_u32 s{sT4}, s{sT4}, s{sT1}')
A(f's_lshl_b32 s{sAB}, s{sW}, 15')
A(f's_add_u32 s{sAB}, s{sAB}, s{sT4}')
A(f's_lshl_b32 s{sAM}, s{sW}, 11')
A(f's_mov_b32 s{sLAYER}, 0')
if STAMPS: A(f'v_mov_b32 v{vST}, 0')
A('s_waitcnt lgkmcnt(0)')
if STAMPS:
    A(f'v_writelane_b32 v{vST}, s90, 0'); stamp_n[0] = 1
stamp()
def stage_dma(s):
    H = []
    for ksl in range(2):
        ks = 2 * s + ksl
        H.append([f's_add_u32 m0, s{sAM}, {L_A + s * 8192 + ksl * 1024}',
                  f's_add_u32 s{sT3}, s{sAB}, {s * 128}',
                  (f'buffer_load_dwordx4 v{vXo if ksl else vXe}, {srd(SRD_X)}, s{sT3} offen{" nt" if s == 0 else ""} lds', f'S{s}'),
                  (f's_sub_u32 m0, s{sWM}, {L_W - L_W15}' if ks == 15 else f's_add_u32 m0, s{sWM}, {SLOT[s % 3] + ksl * 12288}'),
                  f's_mov_b32 s{sT3}, {ks * 98304}'] +
                 [(f'buffer_load_dwordx4 v{vWd}, {srd(SRD_W)}, s{sT3} offen offset:{m * 1024} lds', f'S{s}') for m in range(3)])
    return H
srow = V.alloc(8, 2)
NTX = ' nt'; NTP = ''
def halo_dma(j): return [f's_add_u32 m0, s{sT4}, {L_HA + 4 * j * HST}'] + ([f's_add_u32 s{sT5}, s{sT5}, 512'] if j else []) + \
                        [(f'buffer_load_dwordx4 v{vXo}, {srd(SRD_X)}, s{sT5} offen nt lds', 'S2' if j else 'S0')]
g0 = []
for hh in stage_dma(0): g0 += [hh[:3], hh[3:6], hh[6:7], hh[7:8]]
for _ in range(2):
    for x in g0.pop(0): emit(x)
A(f's_load_dwordx16 s[{P}:{P+15}], s[0:1], 0')
A(f's_load_dwordx4 s[{P+16}:{P+19}], s[0:1], 64')
A(f's_load_dwordx2 s[{P+20}:{P+21}], s[0:1], 80')
vTw = V.alloc(); vTo = V.alloc()
A.sprinkle = (g0, 5, emit)
A(f'v_and_b32 v{vL}, 63, v0')
A(f'v_and_b32 v{vQ}, 15, v0')
A(f'v_lshlrev_b32 v{vL16}, 4, v{vL}')
A(f's_lshr_b32 s{sI}, s2, 3')
A(f's_lshr_b32 s{sP}, s{sRB}, 4')
A(f's_lshl_b32 s{sT2}, s{sHG}, 2')
A(f's_add_u32 s{sT2}, s{sT2}, s{sW}')
A(f's_lshl_b32 s{sT2}, s{sT2}, 12')
A(f's_add_u32 s{sT2}, s{sT2}, s{sT4}')
A(f'v_lshrrev_b32 v{t0}, 5, v{vL}')
A(f'v_and_b32 v{t1}, 31, v{vL}')
A(f'v_lshlrev_b32 v{t1}, 4, v{t1}')
A(f'v_lshl_add_u32 v{vSt}, v{t0}, 11, v{t1}')
A(f's_min_u32 s{sT5}, s{sJ0}, 1')
A(f's_xor_b32 s{sFIRST}, s{sT5}, 1')
A(f's_lshl_b32 s{sT5}, s{sT5}, 15')
A(f's_sub_u32 s{sT5}, s{sT4}, s{sT5}')
A(f's_lshl_b32 s{sT1}, s{sW}, 7')
A(f's_add_u32 s{sT5}, s{sT5}, s{sT1}')
A(f's_mul_i32 s{sT4}, s{sW}, {HST}')
A(f's_lshl_b32 s{sJ0}, s{sJ0}, 6')
A(f's_lshl_b32 s{sT0}, s2, 2')
A(f's_add_u32 s{sT0}, s{sT0}, s{sW}')
A(f's_mul_i32 s{sT1}, s{sT0}, {12 * 128}')
A(f's_lshl_b32 s{sT0}, s{sT0}, 9')
A(f'v_lshl_add_u32 v{vTw}, v{vL}, 7, s{sT1}')
A(f'v_lshl_add_u32 v{vTo}, v{vL}, 7, s{sT0}')
A(f's_lshl_b32 s{sU0}, s{sI}, 2')
A(f's_add_u32 s{sU0}, s{sU0}, s{sW}')
A(f's_lshl_b32 s{sT0}, s{sU0}, 10')
A(f'v_lshl_add_u32 v{t3}, v{vQ}, 17, s{sT0}')
A(f'v_cmp_lt_u32 vcc, 15, v{vL}')
A.sprinkle = None
assert not g0
for x in halo_dma(0): emit(x)
A(f's_sub_u32 s{sT0}, 384, s{SRD_W}')
A(f's_and_b32 s{sT0}, s{sT0}, 0x380')
A(f'v_add_u32 v{t0}, s{sT0}, v{t3}')
A(f'v_cndmask_b32 v{vTw}, v{vTw}, v{t0}, vcc')
A(f's_getpc_b64 {sr(sT0,2)}')
A.label('L_pc')
A(f's_lshl_b32 s{sU0}, s{sU0}, 8')
A(f'v_lshl_add_u32 v{t0}, v{vL}, 7, s{sU0}')
A(f'v_min_u32 v{t0}, L_end-L_pc, v{t0}')
A('s_mov_b64 exec, 3')
A(f'global_load_dword v{vDum}, v{t0}, {sr(sT0,2)}', tag='code')
A('s_mov_b64 exec, 0x0fff0fff')
A(f'buffer_load_dword v{vDum}, v{vTw}, {srd(SRD_W)}, 0 offen', tag='touch')
A('s_mov_b64 exec, -1')
A(f'buffer_load_dwordx4 {vr(srow,4)}, v{vSt}, {srd(SRD_X)}, s{sT2} offen{NTX}', tag='srow')
A(f'buffer_load_dwordx4 {vr(srow+4,4)}, v{vSt}, {srd(SRD_X)}, s{sT2} offen offset:512{NTX}', tag='srow')
A('s_waitcnt lgkmcnt(0)')
A(f's_add_u32 s{sT0}, s{P_WS}, {WS_EPOCH}')
A(f's_addc_u32 s{sT1}, s{P_WS+1}, 0')
A(f's_load_dword s{sTAG}, {sr(sT0,2)}, 0')
A(f's_sub_u32 s{sT0}, 384, s{P_WO}')
A(f's_and_b32 s{sT0}, s{sT0}, 0x380')
A(f'v_add_u32 v{t0}, s{sT0}, v{t3}')
A(f'v_cndmask_b32 v{vTo}, v{vTo}, v{t0}, vcc')
V.release(vSt); V.release(vTw)
tp = V.alloc(2, 2)
A(f'v_mov_b32 v{tp}, s{P_WR}')
A(f'v_mov_b32 v{tp+1}, s{P_WR+1}')
A(f'v_lshl_add_u32 v{tp}, v{vL}, 7, v{tp}')
pages = [(P_WS, 2 * MB - 128), (P_WS, 4 * MB), (P_WS, 6 * MB), (P_WS, 10 * MB), (P_WS, 12 * MB), (P_OUT, 0), (P_WG, 0), (P_WU, 0), (P_WD, 0)]
for n, (p_, off) in enumerate(pages):
    if off == 6 * MB:
        A(f's_lshl_b32 s{sT0}, s{sRB}, 3')
        A(f's_add_u32 s{sT0}, s{sT0}, s{sHG}')
        A(f's_lshl_b32 s{sT0}, s{sT0}, 7')
        A(f's_add_u32 s{sT0}, s{sT0}, {WS_ST0}')
        A(f's_add_u32 s{sT0}, s{p_}, s{sT0}')
        A(f's_addc_u32 s{sT1}, s{p_+1}, 0')
        A(f'v_writelane_b32 v{tp}, s{sT0}, {8 + n}')
        A(f'v_writelane_b32 v{tp+1}, s{sT1}, {8 + n}')
    elif off:
        A(f's_add_u32 s{sT0}, s{p_}, {off}')
        A(f's_addc_u32 s{sT1}, s{p_+1}, 0')
        A(f'v_writelane_b32 v{tp}, s{sT0}, {8 + n}')
        A(f'v_writelane_b32 v{tp+1}, s{sT1}, {8 + n}')
    else:
        A(f'v_writelane_b32 v{tp}, s{p_}, {8 + n}')
        A(f'v_writelane_b32 v{tp+1}, s{p_+1}, {8 + n}')
A(f's_add_u32 s{sT0}, s{P_WR}, 1024')
A(f's_cselect_b32 s{sT0}, {hex(((1 << len(pages)) - 1) << 8)}, {0}')
A(f's_cselect_b32 s{sT0}, s{sT0}, {hex((1 << (8 + len(pages))) - 1)}')
A(f's_lshl_b32 s{sT1}, 0x11111111, s{sW}')
A(f's_and_b32 exec_lo, s{sT0}, s{sT1}')
A('s_mov_b32 exec_hi, 0')
A(f'global_load_dword v{vDum}, {vr(tp,2)}, off sc1', tag='touch')
if True:
    A('s_mov_b64 exec, 0x000f000f')
    A(f'global_load_dword v{vDum}, v{vTo}, {sr(P_WO,2)}', tag='touch')
A('s_mov_b64 exec, -1')
V.release(vTo)
V.release(tp, 2)
mk_srd(SRD_WS, P_WS, WS_SIZE)
mk_srd(SRD_OUT, P_OUT, 2 * MB)
A(f's_cmp_lt_u32 s{sW}, 2')
A(f's_cselect_b64 {sr(SRD_T,2)}, {sr(P_WG,2)}, {sr(P_WU,2)}')
A(f's_and_b32 s{SRD_T+1}, s{SRD_T+1}, 0xffff')
A(f's_mov_b32 s{SRD_T+2}, {512 * 2752}')
A(f's_mov_b32 s{SRD_T+3}, 0x20000')
mk_srd(SRD_U, P_WD, 1376 * 1024)
A(f's_mul_i32 s{sFS}, s{sSET}, 11')
A(f's_add_u32 s{sFS}, s{sFS}, s{sI}')
A(f's_cmp_lt_u32 s{sI}, 11')
A(f's_cselect_b32 s{sHASF}, 1, 0')
A(f's_cmp_lt_u32 s{sFS}, 86')
A(f's_cselect_b32 s{sHASF}, s{sHASF}, 0')
vFp = V.alloc(3); vFd = vR8; vFr = VP.alloc(); vFs = VP.alloc()
A(f's_lshl_b32 s{sT0}, s{sI}, 1')
A(f's_and_b32 s{sT1}, s{sW}, 1')
A(f's_add_u32 s{sT0}, s{sT0}, s{sT1}')
A(f's_mul_i32 s{sT0}, s{sT0}, {8 * 2752}')
A(f's_mul_i32 s{sT1}, s{sSET}, 352')
A(f's_add_u32 s{sT0}, s{sT0}, s{sT1}')
vDt = V.alloc()
A(f's_lshl_b32 s{sT1}, s{sSET}, 5')
A(f's_add_u32 s{sT1}, s{sT1}, s{sI}')
A(f's_lshl_b32 s{sT1}, s{sT1}, 2')
A(f's_add_u32 s{sT1}, s{sT1}, s{sW}')
A(f's_mul_i32 s{sT1}, s{sT1}, {11 * 128}')
A(f'v_min_u32 v{t0}, 10, v{vL}')
A(f'v_lshl_add_u32 v{vDt}, v{t0}, 7, s{sT1}')
for n in range(3):
    A(f'v_add_u32 v{t0}, {64 * n}, v{vL}')
    A(f'v_mul_u32_u24 v{t1}, 171, v{t0}')
    A(f'v_lshrrev_b32 v{t1}, 12, v{t1}')
    A(f'v_mul_u32_u24 v{t1}, {2752 - 384}, v{t1}')
    A(f'v_lshl_add_u32 v{t0}, v{t0}, 4, s{sT0}')
    A(f'v_add_u32 v{vFp+n}, v{t0}, v{t1}')
A(f'v_bfe_u32 v{t1}, v{vL}, 2, 2')
A(f'v_lshl_add_u32 v{t0}, v{vG}, 3, v{t1}')
A(f'v_mul_u32_u24 v{vFr}, 384, v{t0}')
A(f'v_and_b32 v{t0}, 3, v{vL}')
A(f'v_lshl_add_u32 v{vFr}, v{t0}, 3, v{vFr}')
A(f's_lshl_b32 s{sT0}, s{sW}, 5')
A(f's_add_u32 s{sT0}, s{sT0}, {L_FT}')
A(f'v_add_u32 v{vFr}, s{sT0}, v{vFr}')
A(f'v_lshlrev_b32 v{vFs}, 4, v{t0}')
A(f'v_lshl_add_u32 v{vFs}, v{t1}, 13, v{vFs}')
A(f'v_and_b32 v{t0}, 1, v{vG}')
A(f'v_lshl_add_u32 v{vFs}, v{t0}, 8, v{vFs}')
A(f'v_lshrrev_b32 v{t0}, 1, v{vG}')
A(f'v_lshl_add_u32 v{vFs}, v{t0}, 6, v{vFs}')
A(f's_mul_i32 s{sT0}, s{sSET}, 12')
A(f's_add_u32 s{sT0}, s{sT0}, s{sW}')
A(f's_lshl_b32 s{sT0}, s{sT0}, 15')
A(f's_and_b32 s{sT1}, s{sI}, 15')
A(f's_lshl_b32 s{sT1}, s{sT1}, 9')
A(f's_add_u32 s{sT0}, s{sT0}, s{sT1}')
A(f's_lshr_b32 s{sT1}, s{sI}, 4')
A(f's_lshl_b32 s{sT1}, s{sT1}, 7')
A(f's_add_u32 s{sT0}, s{sT0}, s{sT1}')
A(f's_add_u32 s{sT0}, s{sT0}, {WS_FT}')
A(f'v_add_u32 v{vFs}, s{sT0}, v{vFs}')
A(f's_lshl_b32 s{sT1}, s{sFS}, 14')
A(f's_cmp_eq_u32 s{sHASF}, 1')
A(f's_cselect_b32 s{sT1}, s{sT1}, 0x40000000')
A(f's_lshl_b32 s{sT0}, s{sW}, 12')
A(f's_add_u32 s{sT1}, s{sT1}, s{sT0}')
A(f'v_add_u32 v{vFd}, s{sT1}, v{vL16}')
aFG, aFD = 192, 224
vOnes = VP.alloc(2, 2)
A(f'v_mov_b32 v{vOnes}, 0x3f803f80')
A(f'v_mov_b32 v{vOnes+1}, 0x3f803f80')
A(f'v_lshrrev_b32 v{t0}, 5, v0')
A(f'v_mul_u32_u24 v{t0}, {HST}, v{t0}')
A(f'v_and_b32 v{t1}, 31, v0')
A(f'v_lshl_add_u32 v{t0}, v{t1}, 2, v{t0}')
A(f'v_add_u32 v{t0}, {L_HA + 1024}, v{t0}')
A(f'ds_write2_b32 v{t0}, v{vOnes}, v{vOnes} offset0:0 offset1:32')
vQ4 = VP.alloc(); vG16 = VP.alloc(); vGm = VP.alloc()
A(f'v_lshlrev_b32 v{vQ4}, 2, v{vQ}')
A(f'v_add_u32 v{vQ4}, {L_TAB}, v{vQ4}')
A(f'v_lshlrev_b32 v{vG16}, 4, v{vG}')
A(f'v_add_u32 v{vG16}, {L_TAB}, v{vG16}')
A(f'v_mov_b32 v{t0}, 0')
A(f'ds_write2_b32 v{vQ4}, v{t0}, v{t0} offset0:0 offset1:80')
A(f'v_and_b32 v{t0}, 1, v{vG}')
A(f'v_lshlrev_b32 v{vGm}, 5, v{t0}')
A(f'v_lshrrev_b32 v{t1}, 1, v{vG}')
A(f'v_lshl_add_u32 v{vGm}, v{t1}, 4, v{vGm}')
vOst = VP.alloc()
A(f'v_lshlrev_b32 v{vOst}, 14, v{t0}')
A(f'v_lshl_add_u32 v{vOst}, v{t1}, 8, v{vOst}')
A(f'v_lshl_add_u32 v{vOst}, v{vQ}, 4, v{vOst}')
A(f's_lshl_b32 s{sT0}, s{sRB}, 16')
A(f's_lshl_b32 s{sT1}, s{sHG}, 11')
A(f's_add_u32 s{sT0}, s{sT0}, s{sT1}')
A(f's_lshl_b32 s{sT1}, s{sW}, 9')
A(f's_add_u32 s{sT0}, s{sT0}, s{sT1}')
A(f'v_add_u32 v{vOst}, s{sT0}, v{vOst}')
vA = VP.alloc(2); vH = VP.alloc(2)
A(f'v_lshrrev_b32 v{t0}, 1, v{vQ}')
A(f'v_xor_b32 v{t0}, v{vG}, v{t0}')
A(f'v_lshlrev_b32 v{t0}, 4, v{t0}')
A(f'v_lshl_add_u32 v{vA}, v{vQ}, 7, v{t0}')
A(f'v_and_b32 v{t1}, 1, v{vQ}')
A(f'v_lshlrev_b32 v{t1}, 7, v{t1}')
A(f'v_lshl_add_u32 v{t1}, v{vG}, 4, v{t1}')
A(f'v_add_u32 v{t1}, {L_HA + 1024}, v{t1}')
A(f'v_add_u32 v{t2}, {L_HA - 1024}, v{vA}')
A(f'v_cmp_lt_u32 vcc, 7, v{vQ}')
A(f'v_cndmask_b32 v{vH}, v{t1}, v{t2}, vcc')
A(f'v_xor_b32 v{vA+1}, 64, v{vA}')
A(f'v_xor_b32 v{vH+1}, 64, v{vH}')
vWr = V.alloc(); vBo = VP.alloc(4)
A(f'v_bfe_u32 v{t0}, v{vL}, 2, 2')
A(f'v_and_b32 v{t2}, 3, v{vL}')
A(f'v_lshlrev_b32 v{t2}, 3, v{t2}')
A(f'v_lshl_add_u32 v{t2}, v{t0}, 7, v{t2}')
A(f'v_lshrrev_b32 v{t0}, 1, v{t0}')
A(f'v_and_b32 v{t1}, 1, v{vG}')
A(f'v_lshl_or_b32 v{t0}, v{t1}, 1, v{t0}')
A(f'v_lshl_add_u32 v{t2}, v{t0}, 5, v{t2}')
A(f'v_lshl_add_u32 v{vBo}, v{vG}, 10, v{t2}')
A(f'v_add_u32 v{vBo}, {L_WO}, v{vBo}')
assert L_WO % 128 == 0 and L_W % 128 == 0
for t in range(1, 4): A(f'v_xor_b32 v{vBo+t}, {t << 5}, v{vBo}')
A(f's_lshl_b32 s{sT0}, s{sW}, 5')
A(f'v_xor_b32 v{t2}, s{sT0}, v{t2}')
A(f'v_mul_u32_u24 v{vWr}, 3072, v{vG}')
vWr15 = V.alloc()
A(f'v_add_u32 v{vWr15}, v{vWr}, v{t2}')
A(f'v_add_u32 v{vWr}, {L_W}, v{vWr15}')
assert L_W15 == 0
A(f's_lshl_b32 s{sOM}, s{sW}, 10')
A(f's_add_u32 s{sOM}, s{sOM}, {L_WO}')
vBP = VP.alloc(4, 2); vBC = VP.alloc(4, 2); vBP0 = VP.alloc(4, 2); vMP = VP.alloc(2)
A(f'v_lshlrev_b32 v{t0}, 2, v{vG}')
A(f'v_sub_u32 v{t0}, v{vQ}, v{t0}')
A(f'v_mov_b32 v{t2}, 0xff800000')
A(f's_cmp_eq_u32 s{sFIRST}, 1')
A(f's_cselect_b64 {sr(sM0,2)}, 0, -1')
for r in range(4):
    A(f'v_add_u32 v{t1}, {-r}, v{t0}')
    A(f'v_cmp_lt_u32 vcc, 7, v{t1}')
    A(f'v_cndmask_b32 v{vBC+r}, 0, v{t2}, vcc')
    A(f'v_cmp_lt_i32 vcc, -9, v{t1}')
    A(f'v_cndmask_b32 v{vBP+r}, 0, v{t2}, vcc')
    A(f'v_cndmask_b32 v{vBP0+r}, v{t2}, v{vBP+r}, {sr(sM0,2)}')
    A(f'v_mov_b32 v{t3}, {hex(0xffff0000 if r & 1 else 0xffff)}')
    if r & 1:
        A(f'v_cndmask_b32 v{t3}, v{t3}, 0, vcc')
        A(f'v_or_b32 v{vMP + (r >> 1)}, v{vMP + (r >> 1)}, v{t3}')
    else:
        A(f'v_cndmask_b32 v{vMP + (r >> 1)}, v{t3}, 0, vcc')
A(f's_mov_b32 s{sM0}, 0xaaaaaaaa')
A(f's_mov_b32 s{sM0+1}, 0xaaaaaaaa')
A(f's_mov_b32 s{sM1}, 0xcccccccc')
A(f's_mov_b32 s{sM1+1}, 0xcccccccc')
vS0 = V.alloc(); vS0w = V.alloc(); vPf = V.alloc(); vS4 = V.alloc(4, 2)
A(f's_lshl_b32 s{sT0}, s{sRB}, 10')
A(f's_add_u32 s{sT0}, s{sT0}, {WS_ST0 - 128}')
A(f'v_lshl_add_u32 v{vS0}, v0, 4, s{sT0}')
A(f's_lshl_b32 s{sT0}, s{sSET}, 12')
A(f's_add_u32 s{sT0}, s{sT0}, {WS_ST0}')
A(f'v_and_b32 v{t0}, 31, v{vL}')
A(f'v_lshl_add_u32 v{t0}, v{t0}, 7, s{sT0}')
A(f'v_cmp_le_u32 vcc, 128, v0')
A(f'v_cndmask_b32 v{vS0}, v{vS0}, v{t0}, vcc')
A(f'v_lshlrev_b32 v{vS0w}, 2, v0')
A(f'v_add_u32 v{vS0w}, {L_TAB + 32}, v{vS0w}')
vPf2 = V.alloc()
A(f's_mul_i32 s{sT0}, s2, 5120')
A(f's_add_u32 s{sT0}, s{sT0}, {WS_SENT}')
A(f'v_lshl_add_u32 v{vPf}, v0, 4, s{sT0}')
A(f's_lshl_b32 s{sT1}, s{sW}, 8')
A(f's_add_u32 s{sT0}, s{sT0}, s{sT1}')
A(f's_add_u32 s{sT0}, s{sT0}, 4096')
A(f'v_lshl_add_u32 v{t0}, v{vQ}, 4, s{sT0}')
A(f's_lshl_b32 s{sSTB}, s{sRB}, 2')
A(f's_add_u32 s{sSTB}, s{sSTB}, s{sW}')
A(f'v_mov_b32 v{t1}, 0x40000000')
A(f'v_cmp_gt_u32 vcc, 16, v{vL}')
A(f'v_cndmask_b32 v{vPf2}, v{t1}, v{t0}, vcc')
vTs = V.alloc()
A(f'v_mov_b32 v{vTs}, v{t1}')
if 'olocal' in OPT:
    A(f's_lshl_b32 s{sT0}, s{sI}, 2')
    A(f's_add_u32 s{sT0}, s{sT0}, s{sW}')
    A(f's_lshl_b32 s{sT0}, s{sT0}, 11')
    A(f's_lshl_b32 s{sT1}, s{sSET}, 18')
    A(f's_add_u32 s{sT0}, s{sT0}, s{sT1}')
    A(f'v_lshl_add_u32 v{t0}, v{vL}, 7, s{sT0}')
    A(f'v_cndmask_b32 v{vTs}, v{t1}, v{t0}, vcc')
A(f's_lshl_b32 s{sT0}, s{sSTB}, 11')
A(f's_lshl_b32 s{sT1}, s{sHG}, 8')
A(f's_add_u32 s{sT0}, s{sT0}, s{sT1}')
for n, off in enumerate((0, 128, 1 << 18, (1 << 18) + 128)):
    A(f's_add_u32 s{sT1}, s{sT0}, {WS_ST + off}')
    A(f'v_writelane_b32 v{vTs}, s{sT1}, {16 + n}')
A(f's_lshl_b32 s{sT0}, s{sRB}, 9')
for n, off in enumerate((0, 128, 1 << 14, (1 << 14) + 128)):
    A(f's_add_u32 s{sT1}, s{sT0}, {WS_FL + off}')
    A(f'v_writelane_b32 v{vTs}, s{sT1}, {20 + n}')
for n, off in enumerate((0, 128, 256)):
    A(f's_add_u32 s{sT1}, s{sT0}, {WS_X1F + off}')
    A(f'v_writelane_b32 v{vTs}, s{sT1}, {27 + n}')
for r in range(4): A(f'v_mov_b32 v{vS4+r}, -1')
if 'tsearly' in OPT: A(f'buffer_load_dword v{vDum}, v{vTs}, {srd(SRD_WS)}, 0 offen sc1', tag='to')
s12 = V.alloc(4, 2); gr = V.alloc(4, 2)
A(f'v_mov_b32 v{s12}, 0')
A(f'v_mov_b32 v{s12+1}, 0')
A(f's_getreg_b32 s{sTAGB}, hwreg(HW_REG_XCC_ID)')
A(f's_and_b32 s{sTAGB}, s{sTAGB}, 15')
A(f's_lshl_b32 s{sT2}, s{sRB}, 3')
A(f's_add_u32 s{sT2}, s{sT2}, s{sHG}')
A(f's_lshl_b32 s{sT2}, s{sT2}, 2')
A(f's_add_u32 s{sT2}, s{sT2}, s{sW}')
A(f's_lshl_b32 s{sT2}, s{sT2}, 5')
A(f's_add_u32 s{sT2}, s{sT2}, {WS_ST0}')
A(f'v_lshrrev_b32 v{t1}, 1, v{vL}')
g1 = []; g2 = []
for hh in stage_dma(1): g1 += [hh[:3], hh[3:6], hh[6:7], hh[7:8]]
for hh in stage_dma(2): g2 += [hh[:3], hh[3:6], hh[6:7], hh[7:8]]
g2.append(halo_dma(1))
def dots():
    A.wait_vm('srow')
    for j in range(8):
        A(f'v_dot2c_f32_bf16 v{s12}, v{srow+j}, v{vOnes}')
        A(f'v_dot2c_f32_bf16 v{s12+1}, v{srow+j}, v{srow+j}')
if 's0old' in OPT:
    A.wait_vm('srow', 'lgkmcnt(0)')
    stamp()
    A.sprinkle = (g1, 2 if 'stlate' in OPT else 4, emit)
    for j in range(8):
        A(f'v_dot2c_f32_bf16 v{s12}, v{srow+j}, v{vOnes}')
        A(f'v_dot2c_f32_bf16 v{s12+1}, v{srow+j}, v{srow+j}')
else:
    OPT.add('stlate')
    A.wait_vm('S0')
    stamp()
if 'stlate' in OPT:
    A.sprinkle = None
    for g_ in g1:
        for x in g_: emit(x)
    save = A.lines; vmsave = list(A.vm); A.lines = []
    A(f's_mul_i32 s{sTAG}, s{sTAG}, 0x9e3779b1')
    A(f's_add_u32 s{sTAG}, s{sTAG}, 0x7f4a7c15')
    A(f's_mul_i32 s{sT0}, s{sTAG}, 0x85ebca6b')
    for sh in (8, 4, 2, 1):
        for r in range(2): A(f'v_add_f32_dpp v{s12+r}, v{s12+r}, v{s12+r} row_ror:{sh} {DP}')
        if sh == 8: A(f's_brev_b32 s{sT0}, s{sT0}')
        if sh == 4: A(f's_and_b32 s{sT0}, s{sT0}, 0xfffffff0')
        if sh == 2: A(f's_or_b32 s{sTAGB}, s{sTAGB}, s{sT0}')
    for r in range(2): A(f'v_mov_b32 v{s12+2+r}, v{s12+r}')
    A(f'v_mov_b32 v{gr+2}, s{sTAG}')
    for r in range(2): A(f'v_permlane16_swap_b32 v{s12+r}, v{s12+2+r}')
    for r in range(2): A(f'v_add_f32 v{s12+r}, v{s12+r}, v{s12+2+r}')
    ln_params(s12, s12 + 1, s12 + 2, s12 + 3, gr, gr + 1, t0)
    A(f'v_xor_b32 v{gr}, 0x80000000, v{gr}')
    A(f'v_mov_b32 v{gr+3}, s{sTAGB}')
    A('s_mov_b32 exec_lo, 1')
    A('s_mov_b32 exec_hi, 1')
    A(f'buffer_store_dwordx4 {vr(gr,4)}, v{t1}, {srd(SRD_WS)}, s{sT2} offen sc1', tag='st0')
    A('s_mov_b64 exec, -1')
    st_lines = [l.text for l in A.lines if l.op != 's_nop']; A.lines = save; A.vm = vmsave
else:
    A(f's_mul_i32 s{sTAG}, s{sTAG}, 0x9e3779b1')
    A(f's_add_u32 s{sTAG}, s{sTAG}, 0x7f4a7c15')
    A(f's_mul_i32 s{sT0}, s{sTAG}, 0x85ebca6b')
    for sh in (8, 4, 2, 1):
        for r in range(2): A(f'v_add_f32_dpp v{s12+r}, v{s12+r}, v{s12+r} row_ror:{sh} {DP}')
        if sh == 8: A(f's_brev_b32 s{sT0}, s{sT0}')
        if sh == 4: A(f's_and_b32 s{sT0}, s{sT0}, 0xfffffff0')
        if sh == 2: A(f's_or_b32 s{sTAGB}, s{sTAGB}, s{sT0}')
    for r in range(2): A(f'v_mov_b32 v{s12+2+r}, v{s12+r}')
    A(f'v_mov_b32 v{gr+2}, s{sTAG}')
    for r in range(2): A(f'v_permlane16_swap_b32 v{s12+r}, v{s12+2+r}')
    for r in range(2): A(f'v_add_f32 v{s12+r}, v{s12+r}, v{s12+2+r}')
    ln_params(s12, s12 + 1, s12 + 2, s12 + 3, gr, gr + 1, t0)
    A(f'v_xor_b32 v{gr}, 0x80000000, v{gr}')
    A(f'v_mov_b32 v{gr+3}, s{sTAGB}')
    A.sprinkle = None
    assert not g1
    A('s_mov_b32 exec_lo, 1')
    A('s_mov_b32 exec_hi, 1')
    A(f'buffer_store_dwordx4 {vr(gr,4)}, v{t1}, {srd(SRD_WS)}, s{sT2} offen sc1', tag='st0')
    A('s_mov_b64 exec, -1')

accQ = V.take(196, 20); accK = V.take(216, 20); accV = V.take(236, 20)
fr = [V.alloc(20, 2), V.alloc(20, 2)]
xP = VP.alloc(8, 2)
aux = VP.alloc(8, 2)
vSW = VP.alloc()
def aW(ks, m): return (ks * 3 + m) * 4
def x_reads(ks, b):
    u = ks & 1; kc = ks >> 1
    return [f'ds_read_b128 {vr(b, 4)}, v{vH+u} offset:{kc * HST}'] + \
           [f'ds_read_b128 {vr(b + 4 + 4 * T, 4)}, v{vA+u} offset:{(kc * 8 + 2 * T) * 1024}' for T in range(4)]
def p1_reads(ks):
    so = SLOT[(ks >> 1) % 3] + (ks & 1) * 12288
    if ks == 15: so = 0
    W_ = [f'ds_read_b64_tr_b16 {ar(aW(ks, m) + 2 * h, 2)}, v{vWr15 if ks == 15 else vWr} offset:{so + m * 1024 + h * 512}' for m in range(3) for h in range(2)]
    X_ = x_reads(ks, fr[ks & 1])
    return W_[:2] + X_[:1] + W_[2:] + X_[1:]
def p1_mfmas(ks):
    b = fr[ks & 1]; L = []
    c = lambda x: '0' if ks == 0 else vr(x, 4)
    for T in range(5):
        X = vr(b + 4 * T, 4)
        L.append(mf(vr(accQ + 4 * T, 4), ar(aW(ks, 0), 4), X, c(accQ + 4 * T)))
        L.append(mf(vr(accK + 4 * T, 4), ar(aW(ks, 1), 4), X, c(accK + 4 * T)))
        L.append(mf(vr(accV + 4 * T, 4), X, ar(aW(ks, 2), 4), c(accV + 4 * T)))
    return L
def wo_dma(kss):
    L = []
    for ks in kss:
        L += [f's_add_u32 m0, s{sOM}, {wo_off(ks)}', f's_mov_b32 s{sT3}, {ks * 32768}',
              (f'buffer_load_dwordx4 v{vWo}, {srd(SRD_W)}, s{sT3} offen lds', 'wo')]
    return L
def hello():
    A('s_mov_b64 exec, 1')
    A(f'buffer_store_dwordx2 {vr(gr+2,2)}, v{vPf}, {srd(SRD_WS)}, s{sU2} offen sc1')
    A('s_mov_b64 exec, -1')
def srd_lines(d, ptr, size):
    return [f's_mov_b32 s{d}, s{ptr}', f's_and_b32 s{d+1}, s{ptr+1}, 0xffff', f's_mov_b32 s{d+2}, {size}', f's_mov_b32 s{d+3}, 0x20000']
s0g = V.alloc(4, 2)
extra = {ks: [] for ks in range(16)}
for g_ in g2: extra[0] += g_
for s in range(5):
    H = stage_dma(s + 3); extra[2 * s + 1] += H[0]; extra[2 * s + 2] += H[1]
extra[11] += [(f'buffer_store_dwordx4 {vr(vS4,4)}, v{vPf}, {srd(SRD_WS)}, 0 offen sc1{NTP}', 'pre'),
              (f'buffer_store_dwordx4 {vr(vS4,4)}, v{vPf2}, {srd(SRD_WS)}, 0 offen sc1{NTP}', 'pre'),
              (f'buffer_load_dwordx4 {vr(s0g,4)}, v{vS0}, {srd(SRD_WS)}, 0 offen sc1', 's0g')]
extra[12] += [f's_lshl_b32 s{sU2}, s{sSET}, 9', f's_add_u32 s{sU2}, s{sU2}, s{sI}', f's_lshl_b32 s{sU2}, s{sU2}, 3',
              f's_add_u32 s{sU2}, s{sU2}, {WS_HELLO}', f's_lshl_b32 s{sT0}, s{sW}, 30', f'v_mov_b32 v{vPf}, s{sT0}']
if 'stlate' in OPT:
    tailn = st_lines[-4:]; st_lines = st_lines[:-4]
    nh = len(st_lines) // 2
    valu_extra = {1: st_lines[:nh], 2: st_lines[nh:]}
    extra[3] = [lambda: [A(x) for x in tailn]] + extra[3]
else: valu_extra = {}
vRs = V.alloc(2)
def res_read(early):
    def f():
        L = A.newlabel('L_res')
        A(f's_cmp_lt_u32 s{sHG}, 5')
        A(f's_cbranch_scc{0 if early else 1} {L}')
        A(f'ds_read_b128 {vr(xP,4)}, v{vRs}')
        A(f'ds_read_b128 {vr(xP+4,4)}, v{vRs+1}')
        A.label(L)
    return f
extra[0] += [f'v_lshlrev_b32 v{t0}, 3, v{vQ}', f'v_and_b32 v{t0}, 0x70, v{t0}', f'v_xor_b32 v{t0}, v{t0}, v{vGm}',
             f'v_lshl_add_u32 v{t0}, v{vQ}, 7, v{t0}', f's_lshl_b32 s{sT0}, s{sHG}, 13', f's_add_u32 s{sT0}, s{sT0}, s{sAM}',
             f'v_add_u32 v{vRs}, s{sT0}, v{t0}', f'v_xor_b32 v{vRs+1}, 64, v{vRs}']
extra[8] += [res_read(True)]
NTF = NTD = '' if 'nont' in OPT else ' nt'
ft_dma = []
for n in range(3):
    ft_dma += [f's_sub_u32 m0, s{sWM}, {L_W - L_FT - n * 1024}', (f'buffer_load_dwordx4 v{vFp+n}, {srd(SRD_T)}, 0 offen{NTF} lds', 'ft')]
wd_dma = [f's_lshl_b32 s{sT0}, s{sW}, 12', f's_add_u32 m0, s{sT0}, {L_WD}'] + \
         [(f'buffer_load_dwordx4 v{vFd}, {srd(SRD_U)}, 0 offen offset:{f * 1024}{NTD} lds', 'wd') for f in range(4)]
extra[11] += srd_lines(SRD_W, P_WO, 512 * 1024)
aux_ld = [f's_lshl_b32 s{sT0}, s{sHG}, 7', f'buffer_load_dwordx4 {vr(aux,4)}, v{vGm}, {srd(SRD_X)}, s{sT0} offen',
          f'buffer_load_dwordx4 {vr(aux+4,4)}, v{vGm}, {srd(SRD_X)}, s{sT0} offen offset:64',
          f'buffer_load_dwordx4 {vr(wra,4)}, v{vL16}, {srd(SRD_X)}, 0 offen']
wd_touch = [(f'buffer_load_dword v{vDum}, v{vDt}, {srd(SRD_U)}, 0 offen', 'to')]
if 'wdnew' not in OPT and 'lean' not in OPT and 'lean2' not in OPT:
    extra[11] += wo_dma([0]); extra[12] += wo_dma([1, 2, 3, 4]); extra[13] += wo_dma([5, 12, 13, 14]); extra[14] += wo_dma([15]) + ft_dma; extra[15] += wd_dma
    wo_rest = [6, 7, 8, 9, 10, 11]; wd_late = []
elif 'wdnew' in OPT and 'c11' in OPT:
    extra[11] += ft_dma; extra[12] += wd_dma
    wo_rest = list(range(16)); wd_late = []
elif 'wdnew' in OPT and 'c12' in OPT:
    extra[11] += wo_dma([0]); extra[12] += wo_dma([1, 2, 3]) + ft_dma[:2]; extra[13] += ft_dma[2:] + wd_dma
    wo_rest = [4, 5, 6, 7, 8, 9, 10, 11, 12, 13, 14, 15]; wd_late = []
elif 'wdnew' in OPT and 'c13' in OPT:
    extra[11] += wo_dma([0]); extra[12] += wo_dma([1, 2, 3, 4]); extra[13] += wo_dma([5]) + ft_dma; extra[14] += wd_dma
    wo_rest = [6, 7, 8, 9, 10, 11, 12, 13, 14, 15]; wd_late = []
elif 'lean' in OPT:
    extra[12] += wo_dma([0, 1, 2]); extra[13] += wo_dma([3, 4, 5]); extra[14] += wd_touch + ft_dma
    wo_rest = [6, 7, 8, 9, 10, 11, 12, 13, 14, 15]; wd_late = wd_dma
elif 'lean2' in OPT:
    extra[12] += wo_dma([0, 1, 2]); extra[13] += wo_dma([3, 4, 5]); extra[14] += wo_dma([6, 7, 8]); extra[15] += wd_touch + ft_dma
    wo_rest = [9, 10, 11, 12, 13, 14, 15]; wd_late = wd_dma
else:
    extra[11] += wo_dma([0]); extra[12] += wo_dma([1, 2, 3, 4]); extra[13] += wo_dma([5, 12, 13, 14]); extra[14] += wo_dma([15]) + wd_touch + ft_dma
    wo_rest = [6, 7, 8, 9, 10, 11]; wd_late = wd_dma
extra[12] += srd_lines(SRD_X, P_WR, 1024)
TSM = next((' ' + a[4:].replace('+', ' ') for a in OPT if a.startswith('tsm=')), ' sc1')
KTS = int(next((a[4:] for a in OPT if a.startswith('kts=')), '14'))
if 'tsearly' not in OPT: extra[KTS] += [(f'buffer_load_dword v{vDum}, v{vTs}, {srd(SRD_WS)}, 0 offen{TSM}', 'to')]
extra[15] += [res_read(False)]
def drop(L, key): return [x for x in L if not (isinstance(x, tuple) and x[1] == key)]
for key in ('pre', 'wo', 'ft', 'wd', 'to'):
    if 'x' + key in OPT:
        for ks in extra: extra[ks] = drop(extra[ks], key)
if 's0old' in OPT: A.wait_vm('S0', 'lgkmcnt(0)')
else: A('s_waitcnt lgkmcnt(0)')
A('s_barrier')
stamp()
for x in p1_reads(0): A(x)
for ks in range(16):
    A('s_waitcnt lgkmcnt(0)')
    if 'loopstamps' in OPT and ks % 2 == 0 and ks: stamp()
    M = p1_mfmas(ks)
    if ks == 1 and 's0old' not in OPT: dots()
    A(M[0])
    if ks & 1 and ks < 15:
        if not ('nodma' in OPT and ks > 1): A.wait_vm(f'S{(ks + 1) >> 1}')
        if 'nobar' not in OPT: A('s_barrier')
    rd = p1_reads(ks + 1) if ks < 15 else []
    if 'nord' in OPT: rd = []
    if 'notr' in OPT: rd = [x for x in rd if '_tr_' not in x]
    if 'nob128' in OPT: rd = [x for x in rd if '_tr_' in x]
    ex = list(extra[ks])
    if 'nodma' in OPT: ex = [x for x in ex if not (isinstance(x, tuple) and x[0].endswith(' lds'))]
    isvm = lambda x: callable(x) or (x[0] if isinstance(x, tuple) else x).startswith('buffer_')
    nvm = sum(map(isvm, ex)); gaps = len(M) - 1
    slots = [int((j + 0.5) * gaps / nvm) for j in range(nvm)] if nvm else []
    groups = []; cur = []
    for x in ex:
        cur.append(x)
        if isvm(x): groups.append(cur); cur = []
    tail_ = cur
    place = {gi: [] for gi in range(gaps)}
    prev = -1
    for j, grp in enumerate(groups):
        lo = prev + 1 if prev + 1 <= slots[j] else slots[j]
        pre = grp[:-1]
        span = slots[j] - lo + 1
        for n_, x in enumerate(pre): place[lo + n_ * span // max(1, len(pre))].append(x)
        place[slots[j]].append(grp[-1]); prev = slots[j]
    lo = min(prev + 1, gaps - 1); span = gaps - lo
    for n_, x in enumerate(tail_): place[lo + n_ * span // len(tail_)].append(x)
    for mi, m in enumerate(M[1:]):
        A(m)
        if rd: A(rd.pop(0))
        for x in place[mi]: emit(x)
        ve = valu_extra.get(ks, [])
        for _ in range(-(-len(ve) // (gaps - mi))): A(ve.pop(0))
stamp()
for b in fr: V.release(b, 20)
V.release(srow, 8); V.release(s12, 4); V.release(vWr); V.release(vWr15); V.release(vRs, 2); V.release(vWd); V.release(vDt); V.release(vPf2); V.release(vTs); V.release(vS4, 4)
Ls0 = A.newlabel('L_s0'); Ls0ok = A.newlabel('L_s0ok')
A(f's_lshl_b32 s{sT0}, s{sFIRST}, 3')
A(f'v_subrev_u32 v{t2}, s{sT0}, v0')
A(f's_sub_u32 s{sT0}, 72, s{sT0}')
A(f'v_cmp_gt_u32 {sr(sT4,2)}, s{sT0}, v{t2}')
A(f's_cmp_eq_u32 s{sW}, 2')
A(f's_cselect_b64 {sr(sU0,2)}, -1, {sr(sT4,2)}')
A(f's_mov_b32 s{sGUARD}, 20000')
A.wait_vm('s0g')
A.label(Ls0)
A(f'v_xor_b32 v{t0}, s{sTAG}, v{s0g+2}')
A(f'v_xor_b32 v{t1}, s{sTAGB}, v{s0g+3}')
A(f'v_lshrrev_b32 v{t3}, 4, v{t1}')
A(f'v_or_b32 v{t0}, v{t0}, v{t3}')
A(f'v_cmp_ne_u32 vcc, 0, v{t0}')
A(f's_and_b64 vcc, vcc, {sr(sU0,2)}')
A(f's_cbranch_vccz {Ls0ok}')
A(f'buffer_load_dwordx4 {vr(s0g,4)}, v{vS0}, {srd(SRD_WS)}, 0 offen sc1'); A.vm.pop()
A('s_waitcnt vmcnt(0)')
A(f's_sub_u32 s{sGUARD}, s{sGUARD}, 1')
A(f's_cbranch_scc0 {Ls0}')
A.label(Ls0ok)
A(f's_mov_b64 exec, {sr(sT4,2)}')
A(f'ds_write2_b32 v{vS0w}, v{s0g}, v{s0g+1} offset0:0 offset1:80')
A('s_mov_b64 exec, -1')
A(f'ds_write_b32 v{vS0w}, v{t1} offset:{640 - 32}')
V.release(s0g, 4); V.release(vS0); V.release(vS0w)
csQ = VP.alloc(4, 2); csK = VP.alloc(4, 2); csV = VP.alloc(2, 2)
for r in range(4):
    A(f'v_mov_b32_dpp v{csQ+r}, v{accQ+r} row_newbcast:0 {DP}')
    A(f'v_mov_b32_dpp v{csK+r}, v{accK+r} row_newbcast:0 {DP}')
A(f'v_mov_b32 v{csV}, v{accV}')
A(f'v_mov_b32 v{csV+1}, v{accV}')
A(f'v_lshlrev_b32 v{t0}, 2, v{vL}')
A(f'v_permlane32_swap_b32 v{csV}, v{csV+1}')
A(f'v_add_u32 v{t0}, {L_CS + 512}, v{t0}')
A.wait_vm('wo', 'lgkmcnt(0)')
A('s_barrier')
A(f'ds_read_b32 v{t1}, v{t0}')
epi_ins = [[hello]] + ([] if 'v1' in OPT else [[]] * 8 + [aux_ld[:2], aux_ld[2:3], aux_ld[3:]])
SPIN = 20000
def fine():
    if 'fine' in OPT: stamp()
def poll(issue, check, name):
    L = A.newlabel('L_poll'); E = A.newlabel('L_ok')
    A(f's_mov_b32 s{sGUARD}, {SPIN}')
    A.label(L)
    issue()
    A.wait_vm0()
    check()
    A(f's_cbranch_vccz {E}')
    backoff(name)
    A(f's_sub_u32 s{sGUARD}, s{sGUARD}, 1')
    A(f's_cbranch_scc0 {L}')
    A.label(E)
def backoff(name):
    n = int(next((x.split('=')[1] for x in OPT if x.startswith('sl' + name + '=')), next((x[3:] for x in OPT if x.startswith('sl=')), '0')))
    if n: A(f's_sleep {n}')
def repoll(issue, check, name):
    L = A.newlabel('L_rp'); E = A.newlabel('L_ok')
    A(f's_mov_b32 s{sGUARD}, {SPIN}')
    A.label(L)
    A.wait_vm0()
    check()
    A(f's_cbranch_vccz {E}')
    backoff(name)
    issue(); A.vm = []
    A(f's_sub_u32 s{sGUARD}, s{sGUARD}, 1')
    A(f's_cbranch_scc0 {L}')
    A.label(E)
PD = int(next((x[3:] for x in OPT if x.startswith('pd=')), '3'))
def ppoll(issue, check, nld, depth=None, pre=0, gap=7):
    D = depth or PD
    L = A.newlabel('L_pp'); E = A.newlabel('L_ok')
    A(f's_mov_b32 s{sGUARD}, {SPIN}')
    for j in range(pre, D):
        if j and gap: A(f's_nop {gap}'); A(f's_nop {gap}'); A(f's_nop {gap}')
        issue(j)
    A.label(L)
    for j in range(D):
        A(f's_waitcnt vmcnt({(D - 1) * nld})')
        check(j)
        A(f's_cbranch_vccz {E}')
        issue(j)
    A(f's_sub_u32 s{sGUARD}, s{sGUARD}, 1')
    A(f's_cbranch_scc0 {L}')
    A.label(E)
    A.vm = []
def local_stores(lines):
    R = A.newlabel('L_rem'); E = A.newlabel('L_st')
    A(f's_cmp_eq_u32 s{sLOCAL}, 0')
    A(f's_cbranch_scc1 {R}')
    for l in lines: A(l)
    A.label(E)
    A('s_nop 0')
    far.append((R, E, lines))
far = []
def emit_far():
    for R, E, lines in far:
        A.label(R)
        for l in lines:
            A(l + (' sc1' if l.startswith('buffer_') else ''))
        A(f's_branch {E}')
def skip_unless(cond_lines):
    E = A.newlabel('L_sk')
    for l in cond_lines: A(l)
    A(f's_cbranch_scc1 {E}')
    return E
def if_layer(n): return skip_unless([f's_cmp_lg_u32 s{sLAYER}, {n}'])
def if_wave(n): return skip_unless([f's_cmp_lg_u32 s{sW}, {n}'])
def if_ffn(): return skip_unless([f's_cmp_eq_u32 s{sHASF}, 0'])
def endif(E, pad=True):
    A.label(E)
    if pad: A('s_nop 1')
def tag_check(r):
    A(f'v_xor_b32 v{r+1}, s{sTAGB}, v{r+1}')
    A(f'v_xor_b32 v{r}, s{sTAG}, v{r}')
    A(f'v_lshrrev_b32 v{r+1}, 4, v{r+1}')
    A(f'v_or_b32 v{r}, v{r}, v{r+1}')
    A(f'v_cmp_ne_u32 vcc, 0, v{r}')

QSC = 0.25 * 1.4426950408889634
hV = V.take(176, 10); mxc = V.take(186, 8)
hQ = lambda T: accQ + 4 * (T + 1)
hK = lambda T: accK + 4 * (T + 1)
def s_mfmas(T, Sp, Sc):
    return [mf(vr(Sp + 4 * T, 4), vr(hK(T - 1), 2), vr(hQ(T), 2), vr(vBP0 if T == 0 else vBP, 4), False),
            mf(vr(Sc + 4 * T, 4), vr(hK(T), 2), vr(hQ(T), 2), vr(vBC, 4), False)]
def attention(pre):
    Sp = V.alloc(16, 2); Sc = V.alloc(16, 2); mx = V.alloc(4); pk = V.alloc(8, 2); Ls = accV
    pre = list(pre)
    for T in (1, 2, 3, 0):
        for m_ in s_mfmas(T, Sp, Sc):
            A(m_)
            for _ in range(2):
                if pre: A(pre.pop(0))
    while pre: A(pre.pop(0))
    for T in (1, 2, 3, 0):
        for r in range(4):
            A(f'v_max_f32 v{Sc+4*T+r}, v{Sp+4*T+r}, v{Sc+4*T+r}')
        A(f'v_max3_f32 v{mx+T}, v{Sc+4*T}, v{Sc+4*T+1}, v{Sc+4*T+2}')
        A(f'v_max_f32 v{mx+T}, v{mx+T}, v{Sc+4*T+3}')
    prs = [(mx + 1, mx + 2), (mx + 3, mx)]
    for a_, b_ in prs: A(f'v_permlane16_swap_b32 v{a_}, v{b_}')
    for a_, b_ in prs: A(f'v_max_f32 v{a_}, v{a_}, v{b_}')
    for a_, b_ in prs: A(f'v_mov_b32 v{b_}, v{a_}')
    for a_, b_ in prs: A(f'v_permlane32_swap_b32 v{a_}, v{b_}')
    for a_, b_ in prs: A(f'v_max_f32 v{a_}, v{a_}, v{b_}')
    for a_, b_ in prs: A(f'v_mov_b32 v{b_}, v{a_}')
    for a_, b_ in prs: A(f'v_permlane16_swap_b32 v{a_}, v{b_}')
    for T in range(4):
        A(f'v_mul_f32 v{mxc+2*T+1}, v{mx+T}, v{mxc+2*T}')
    for T in range(4):
        for h in range(2):
            A(f'v_pk_fma_f32 {vr(Sc+4*T+2*h,2)}, {vr(Sc+4*T+2*h,2)}, {vr(mxc+2*T,2)}, {vr(mxc+2*T,2)} op_sel:[0,0,1] op_sel_hi:[1,0,1] neg_lo:[0,0,1] neg_hi:[0,0,1]')
    pend = []
    for T in range(4):
        for r in range(4):
            A(f'v_exp_f32 v{Sc+4*T+r}, v{Sc+4*T+r}')
            if pend and r in (0, 2): A(pend.pop(0))
        for h in range(2):
            A(f'v_cvt_pk_bf16_f32 v{pk+2*T+h}, v{Sc+4*T+2*h}, v{Sc+4*T+2*h+1}')
        for h in range(2):
            A(f'v_and_b32 v{Sp+4*T+h}, v{pk+2*T+h}, v{vMP+h}')
        for h in range(2):
            A(f'v_xor_b32 v{Sp+4*T+2+h}, v{pk+2*T+h}, v{Sp+4*T+h}')
        pend = [mf(vr(Ls + 4 * T, 4), vr(vOnes, 2), vr(pk + 2 * T, 2), '0', False),
                mf(vr(Sc + 4 * T, 4), vr(hV + 2 * T, 4), vr(Sp + 4 * T, 4), '0')]
    A(pend.pop(0))
    A(f'v_rcp_f32 v{Ls}, v{Ls}')
    A(pend.pop(0))
    for T in (1, 2): A(f'v_rcp_f32 v{Ls+4*T}, v{Ls+4*T}')
    for T in range(4):
        if T == 3: A(f'v_rcp_f32 v{Ls+12}, v{Ls+12}')
        if T == 2:
            for h in range(2): A(f'v_permlane16_swap_b32 v{oP+h}, v{oP+2+h}')
        for h in range(2):
            A(f'v_pk_mul_f32 {vr(Sc+4*T+2*h,2)}, {vr(Sc+4*T+2*h,2)}, {vr(Ls+4*T,2)} op_sel_hi:[1,0]')
        for h in range(2):
            A(f'v_cvt_pk_bf16_f32 v{oP+2*T+h}, v{Sc+4*T+2*h}, v{Sc+4*T+2*h+1}')
    for h in range(2): A(f'v_permlane16_swap_b32 v{oP+4+h}, v{oP+6+h}')
    V.release(Sp, 16); V.release(Sc, 16); V.release(mx, 4); V.release(pk, 8)
def norm_pk(T, rpp, vmm, vcc_):
    aq, ak, av = accQ + 4 * (T + 1), accK + 4 * (T + 1), accV + 4 * (T + 1)
    for h in range(2):
        if T >= 0:
            A(f'v_pk_fma_f32 {vr(aq+2*h,2)}, {vr(csQ+2*h,2)}, {vr(rpp,2)}, {vr(aq+2*h,2)} op_sel_hi:[1,0,1]')
        A(f'v_pk_fma_f32 {vr(ak+2*h,2)}, {vr(csK+2*h,2)}, {vr(rpp,2)}, {vr(ak+2*h,2)} op_sel_hi:[1,0,1]')
        A(f'v_pk_fma_f32 {vr(av+2*h,2)}, {vr(vmm+2*h,2)}, {vr(csV,2)}, {vr(av+2*h,2)} op_sel_hi:[1,0,1]')
    for h in range(2):
        A(f'v_pk_mul_f32 {vr(ak+2*h,2)}, {vr(ak+2*h,2)}, {vr(rpp,2)} op_sel:[0,1] op_sel_hi:[1,1]')
        A(f'v_pk_mul_f32 {vr(av+2*h,2)}, {vr(av+2*h,2)}, {vr(vcc_+2*h,2)}')
def pack2(dst, src): return [f'v_cvt_pk_bf16_f32 v{dst+h}, v{src+2*h}, v{src+2*h+1}' for h in range(2)]
def epilogue(first):
    rp = V.alloc(10, 2); vm = V.alloc(20, 2); vc = V.alloc(20, 2)
    for T in range(5):
        A(f'ds_read2_b32 {vr(rp + 2 * T, 2)}, v{vQ4} offset0:{16 * T} offset1:{80 + 16 * T}')
        A(f'ds_read_b128 {vr(vm + 4 * T, 4)}, v{vG16} offset:{64 * T}')
        A(f'ds_read_b128 {vr(vc + 4 * T, 4)}, v{vG16} offset:{320 + 64 * T}')
    A.sprinkle = (epi_ins, 12, emit)
    for T in range(5):
        A(f's_waitcnt lgkmcnt({12 - 3 * T})')
        if T == 0: A(f'v_cmp_ne_u32 vcc, 0, v{t1}')
        norm_pk(T - 1, rp + 2 * T, vm + 4 * T, vc + 4 * T)
        for x in pack2(hK(T - 1), hK(T - 1)) + (pack2(hQ(T - 1), hQ(T - 1)) if T else []): A(x)
        if T == 0:
            sp = A.sprinkle; A.sprinkle = None
            A(f's_cmp_eq_u64 vcc, 0')
            A(f's_cselect_b32 s{sLOCAL}, {0 if FORCE_REMOTE else 1}, 0')
            A.sprinkle = sp
    pre = [f'v_mul_f32 v{mxc+2*T}, {hex(f2u(QSC))}, v{rp+2*T+3}' for T in range(4)]
    for T in range(5): pre += pack2(hV + 2 * T, accV + 4 * T)
    V.release(vm, 20); V.release(vc, 20)
    attention(pre)
    sp = A.sprinkle; A.sprinkle = None
    for grp in sp[0]:
        for x in grp: emit(x)
    V.release(rp, 10)
    V.release(accQ, 20); V.release(accK, 20); V.release(accV, 20); V.release(hV, 10); V.release(mxc, 8)
epilogue(True)
V.release(vPf); V.release(gr, 4); V.release(vFp, 3)

(aFLp, aFLs, aSTp, aSTs, aKEYs, aKEYp, aCANDs, aCANDb, aYPs, aYPb, aXs, aX1Fp, aX1Fs, aFTFs, aFTFp, aFT, aROW, aOUT) = range(28, 46)
A(f's_lshl_b32 s{aFLp}, s{sRB}, 9')
A(f's_add_u32 s{aFLp}, s{aFLp}, {WS_FL}')
tg = VP.alloc(2, 2)
vRow = VP.alloc(); vXs = VP.alloc(); vStash = VP.alloc(); vQ16 = VP.alloc(); vL8 = VP.alloc(); vO4 = VP.alloc(2)
A.label('L_pub')
stamp()
A(f's_mov_b32 s{sT0}, 32768')
A(f's_and_b32 s{sT1}, s{sLOCAL}, s{sLOCAL if "olocal" in OPT else sLAYER}')
A(f's_cbranch_scc0 L_opr')
A(f'buffer_store_dwordx4 {vr(oP,4)}, v{vOst}, {srd(SRD_WS)}, 0 offen')
A(f'buffer_store_dwordx4 {vr(oP+4,4)}, v{vOst}, {srd(SRD_WS)}, s{sT0} offen')
A.label('L_opd')
far.append(('L_opr', 'L_opd', [f'buffer_store_dwordx4 {vr(oP,4)}, v{vOst}, {srd(SRD_WS)}, 0 offen',
                               f'buffer_store_dwordx4 {vr(oP+4,4)}, v{vOst}, {srd(SRD_WS)}, s{sT0} offen']))
acc = V.alloc(16, 2); oF = V.alloc(64, 2); bR = V.alloc(64, 2)
for a_ in (0, 1, 4, 5): A(f'v_permlane16_swap_b32 v{xP+a_}, v{xP+a_+2}')
for j in range(8):
    A(f'v_lshlrev_b32 v{acc+2*j}, 16, v{xP+j}')
    A(f'v_and_b32 v{acc+2*j+1}, 0xffff0000, v{xP+j}')
def b_read(ks, t, h): return f'ds_read_b64_tr_b16 {vr(bR + ((ks & 3)*4 + t)*4 + 2*h, 2)}, v{vBo+t} offset:{wo_off(ks) + h*512}'
def b_read_a(ks, t, h): return f'ds_read_b64_tr_b16 {ar(((ks - 4)*4 + t)*4 + 2*h, 2)}, v{vBo+t} offset:{wo_off(ks) + h*512}'
fl = V.alloc(2, 2)
fl_issue = lambda: A(f'buffer_load_dwordx2 {vr(fl,2)}, v{vL8}, {srd(SRD_WS)}, s{aFLp} offen sc1')
def o_flag(n=0):
    A(f's_waitcnt vmcnt({n})')
    A('s_mov_b64 exec, 1')
    local_stores([f'buffer_store_dwordx2 {vr(tg,2)}, v{vL16}, {srd(SRD_WS)}, s{aFLs} offen'])
    A('s_mov_b64 exec, -1')
def o_load(ks): return (f'buffer_load_dwordx4 {vr(oF + 4*ks, 4)}, v{vO4 + (ks >> 3)}, {srd(SRD_WS)}, {"s%d" % sT4 if ks & 4 else 0} offen offset:{(ks%4)*1024} sc1', f'o{ks}')
NPRE = 6
A(f's_mov_b32 s{sT4}, 4096')
A(f's_cmp_lg_u32 s{sLAYER}, 0')
A('s_cbranch_scc1 L_p5')
nyo = 0
if 'otouch' in OPT:
    A('s_mov_b32 exec_lo, 0x01010101')
    A('s_mov_b32 exec_hi, 0x01010101')
    A(f'buffer_load_dword v{vDum}, v{vOst}, {srd(SRD_WS)}, 0 offen sc1')
    A(f'buffer_load_dword v{vDum}, v{vOst}, {srd(SRD_WS)}, s{sT0} offen sc1')
    A('s_mov_b64 exec, -1')
    nyo += 2
if True:
    A.sprinkle = ([wo_dma([k_]) for k_ in wo_rest], 50 // len(wo_rest) if len(wo_rest) > 10 else 5, emit); nyo += len(wo_rest)
A(f's_lshl_b32 s{sT2}, s{sHG}, 2')
A(f's_add_u32 s{sT2}, s{sT2}, s{sW}')
A(f's_lshl_b32 s{sT2}, s{sT2}, 3')
A(f's_add_u32 s{aFLs}, s{sT2}, s{aFLp}')
A(f'v_mov_b32 v{tg}, s{sTAG}')
A(f'v_mov_b32 v{tg+1}, s{sTAGB}')
A(f'v_and_b32 v{vL8}, 31, v{vL}')
A(f'v_lshlrev_b32 v{vL8}, 3, v{vL8}')
A(f's_lshl_b32 s{sT0}, s{sSTB}, 14')
A(f'v_add_u32 v{vO4}, s{sT0}, v{vL16}')
A(f'v_add_u32 v{vO4+1}, 8192, v{vO4}')
A(f's_lshl_b32 s{sT1}, s{sHG}, 7')
A(f's_add_u32 s{aXs}, s{sT0}, s{sT1}')
A(f's_add_u32 s{aOUT}, s{sAB}, s{sT1}')
A(f's_lshl_b32 s{aCANDs}, s{sRB}, 13')
A(f's_add_u32 s{aCANDs}, s{aCANDs}, s{sT1}')
A(f's_add_u32 s{aCANDs}, s{aCANDs}, {WS_CAND}')
A(f's_mov_b32 s{aCANDb}, {WS_CAND}')
A(f's_lshl_b32 s{aSTp}, s{sSTB}, 11')
A(f's_add_u32 s{aSTp}, s{aSTp}, {WS_ST}')
A(f's_lshl_b32 s{sT1}, s{sHG}, 8')
A(f's_add_u32 s{aSTs}, s{aSTp}, s{sT1}')
A(f's_add_u32 s{aYPb}, s{sT1}, {WS_YP}')
A(f's_lshl_b32 s{aYPs}, s{sFS}, 12')
A(f's_add_u32 s{aYPs}, s{aYPs}, {WS_YP}')
A(f's_lshl_b32 s{aKEYs}, s{sHG}, 7')
A(f's_add_u32 s{aKEYs}, s{aKEYs}, s{sSTB}')
A(f's_lshl_b32 s{aKEYs}, s{aKEYs}, 3')
A(f's_add_u32 s{aKEYs}, s{aKEYs}, {WS_KEYS}')
A(f's_lshl_b32 s{aKEYp}, s{sSET}, 10')
A(f's_add_u32 s{aKEYp}, s{aKEYp}, {WS_KEYS}')
A(f's_add_u32 s{aX1Fp}, s{aFLp}, {WS_X1F - WS_FL}')
A(f's_lshl_b32 s{sT2}, s{sW}, 3')
A(f's_add_u32 s{sT2}, s{sT2}, s{sHG}')
A(f's_lshl_b32 s{sT2}, s{sT2}, 3')
A(f's_add_u32 s{aX1Fs}, s{aX1Fp}, s{sT2}')
A(f's_lshl_b32 s{sT2}, s{sI}, 2')
A(f's_add_u32 s{sT2}, s{sT2}, s{sW}')
A(f's_mul_i32 s{sT1}, s{sSET}, 48')
A(f's_add_u32 s{sT1}, s{sT1}, s{sT2}')
A(f's_lshl_b32 s{aFT}, s{sT1}, 13')
A(f's_add_u32 s{aFT}, s{aFT}, {WS_FT}')
A(f's_lshl_b32 s{aROW}, s{sSTB}, 4')
A(f'v_lshl_add_u32 v{vRow}, v{vQ}, 10, v{vGm}')
A(f'v_mov_b32 v{vXs}, v{vRow}')
A(f'v_lshlrev_b32 v{vQ16}, 4, v{vQ}')
A(f's_lshl_b32 s{sT2}, s{sW}, 9')
A(f's_add_u32 s{sT2}, s{sT2}, {L_CS}')
A(f'v_add_u32 v{vStash}, s{sT2}, v{vGm}')
A(f'v_lshrrev_b32 v{t0}, 3, v{vL}')
A(f'v_lshlrev_b32 v{t0}, 10, v{t0}')
A(f'v_sub_u32 v{vXe}, v{vXe}, v{t0}')
A(f'v_xor_b32 v{vXo}, 64, v{vXe}')
A(f'v_add_u32 v{vXo}, 8192, v{vXo}')
assert not A.sprinkle or not A.sprinkle[0]
A.sprinkle = None
V.release(vWo); V.release(vFd)
ftr = V.alloc(12, 2)
A(f'v_lshlrev_b32 v{t2}, 2, v{t0}')
A(f'v_and_b32 v{t3}, 7, v{vL}')
A(f'v_lshl_add_u32 v{t2}, v{t3}, 5, v{t2}')
A(f'v_add_u32 v{t2}, {WS_HELLO}, v{t2}')
A(f'v_and_b32 v{t3}, 127, v0')
A(f'v_lshlrev_b32 v{t3}, 3, v{t3}')
assert min(wo_rest) >= 4 and not wd_late
for ks in range(4):
    for t in range(4):
        for h in range(2): A(b_read(ks, t, h))
o_flag(nyo)
stamp()
if STOP == 'o1': finish()
fl_issue()
A(f's_mov_b32 vcc_lo, 0x11111111')
A(f's_mov_b32 vcc_hi, 0x11111111')
for a_ in (0, 1, 4, 5): A(f'v_permlane16_swap_b32 v{aux+a_}, v{aux+a_+2}')
for r in range(8): A(f'v_cndmask_b32 v{aux+r}, v{aux+r}, v{vOnes}, vcc')
A(f'v_mov_b32 v{vSW}, 0')
for r in range(4): A(f'v_dot2c_f32_bf16 v{vSW}, v{wra+r}, v{vOnes}')
for sh in (8, 4, 2, 1):
    A(f'v_add_f32_dpp v{vSW}, v{vSW}, v{vSW} row_ror:{sh} {DP}')
for sw in ('v_permlane16_swap_b32', 'v_permlane32_swap_b32'):
    A(f'v_mov_b32 v{t0}, v{vSW}')
    A(f'{sw} v{vSW}, v{t0}')
    A(f'v_add_f32 v{vSW}, v{vSW}, v{t0}')
V.release(wra, 4)
V.release(oP, 8)
hel = V.alloc(8, 2)
hel_issue = lambda: (A(f'buffer_load_dwordx4 {vr(hel,4)}, v{t2}, {srd(SRD_WS)}, 0 offen sc1'),
                     A(f'buffer_load_dwordx4 {vr(hel+4,4)}, v{t2}, {srd(SRD_WS)}, 0 offen offset:16 sc1'))
repoll(fl_issue, lambda: tag_check(fl), 'FL')
stamp()
NP0 = int(next((a[4:] for a in OPT if a.startswith('np0=')), '8'))
assert NP0 <= 8
for ks in range(3): emit(o_load(ks))
A('s_barrier')
A.sprinkle = ([[o_load(ks)] for ks in range(3, NP0)], 4, emit)
for f in range(16):
    A(f'ds_read_b64 {vr(oF + 32 + 2 * f, 2)}, v{t3} offset:{L_WD + f * 1024}')
for n in range(3):
    for hh in range(2):
        A(f'ds_read_b64_tr_b16 {vr(ftr + 4 * n + 2 * hh, 2)}, v{vFr} offset:{n * 128 + hh * 4 * 384}')
assert not A.sprinkle[0]
A.sprinkle = None
late = {ks: [o_load(ks + NP0)] for ks in range(16 - NP0)}
late[16 - NP0] = [hel_issue]
for n in range(3):
    late[17 - NP0 + n] = [f's_mov_b32 s{sT0}, {n * 4 * 32768}', f'buffer_store_dwordx4 {vr(ftr + 4 * n, 4)}, v{vFs}, {srd(SRD_WS)}, s{sT0} offen sc1']
NY = 4
if True:
    def ft_touch():
        A('s_mov_b32 exec_lo, 0x11111111')
        A('s_mov_b32 exec_hi, 0')
        for n in range(3):
            A(f's_mov_b32 s{sT0}, {n * 4 * 32768}')
            A(f'buffer_load_dword v{vDum}, v{vFs}, {srd(SRD_WS)}, s{sT0} offen sc1')
        A('s_mov_b64 exec, -1')
E = if_ffn()
A(f's_mov_b32 s{sT0}, 0x05040100')
A(f's_mov_b32 s{sT1}, 0x07060302')
A('s_waitcnt lgkmcnt(6)')
for j in range(8):
    b = oF + 32 + 4 * j
    for c, (hi_, lo_, sel) in enumerate(((2, 0, sT0), (2, 0, sT1), (3, 1, sT0), (3, 1, sT1))):
        A(f'v_perm_b32 v{hel+c}, v{b+hi_}, v{b+lo_}, s{sel}')
    for c in range(4): A(f'v_accvgpr_write_b32 a{aFD + 4*j + c}, v{hel+c}')
endif(E, False)
A('s_waitcnt lgkmcnt(0)')
for ks in range(16):
    nl = min(15, (15 - ks) * 8)
    A.wait_vm(f'o{ks}', f'lgkmcnt({nl})')
    for t in range(4):
        A(mf(vr(acc + 4*t, 4), vr(bR + ((ks & 3)*4 + t)*4, 4), vr(oF + 4*ks, 4), vr(acc + 4*t, 4)))
        if t == 0:
            for x in late.get(ks, []): emit(x)
        if ks + 4 < 16:
            A(b_read(ks + 4, t, 0)); A(b_read(ks + 4, t, 1))
V.release(ftr, 12)
A('s_branch L_p2e')
A.label('L_p5')
rdl = [b_read(ks, t, h) for ks in range(4) for t in range(4) for h in range(2)] + \
      [b_read_a(ks, t, h) for ks in range(4, 16) for t in range(4) for h in range(2)]
for _ in range(40): A(rdl.pop(0))
o_flag()
stamp_n[0] -= 2; stamp()
fl_issue()
for _ in range(40): A(rdl.pop(0))
repoll(fl_issue, lambda: tag_check(fl), 'FL')
stamp()
for ks in range(NPRE): emit(o_load(ks))
while rdl: A(rdl.pop(0))
for ks in range(16):
    A.wait_vm(f'o{ks}', {0: 'lgkmcnt(14)', 2: 'lgkmcnt(0)'}.get(ks, ''))
    for t in range(4):
        B_ = vr(bR + (ks*4 + t)*4, 4) if ks < 4 else ar(((ks - 4)*4 + t)*4, 4)
        A(mf(vr(acc + 4*t, 4), B_, vr(oF + 4*ks, 4), vr(acc + 4*t, 4)))
        if t == 0 and ks + NPRE < 16: emit(o_load(ks + NPRE))
A.label('L_p2e')
V.release(oF, 64); V.release(bR, 64); V.release(fl, 2)
gG = V.alloc(4, 2); gS = V.take(96, 4) if False else V.alloc(4, 2)
A('s_nop 3')
for j in range(4):
    A(f'v_cvt_pk_bf16_f32 v{xP+j}, v{acc+2*j}, v{acc+2*j+1}')
A(f'v_cvt_pk_bf16_f32 v{xP+4}, v{acc+8}, v{acc+9}')
A(f'v_cvt_pk_bf16_f32 v{xP+5}, v{acc+10}, v{acc+11}')
A(mf(vr(gG, 4), vr(xP, 4), vr(xP, 4), '0'))
A(f'v_cvt_pk_bf16_f32 v{xP+6}, v{acc+12}, v{acc+13}')
A(f'v_cvt_pk_bf16_f32 v{xP+7}, v{acc+14}, v{acc+15}')
A(mf(vr(gS, 4), vr(aux, 4), vr(xP, 4), '0'))
A(f'v_permlane16_swap_b32 v{xP}, v{xP+2}')
A(mf(vr(gG, 4), vr(xP + 4, 4), vr(xP + 4, 4), vr(gG, 4)))
A(f'v_permlane16_swap_b32 v{xP+1}, v{xP+3}')
A(mf(vr(gS, 4), vr(aux + 4, 4), vr(xP + 4, 4), vr(gS, 4)))
A(f'v_permlane16_swap_b32 v{xP+4}, v{xP+6}')
A(f'v_permlane16_swap_b32 v{xP+5}, v{xP+7}')
unp = []
for j in range(8):
    unp += [f'v_lshlrev_b32 v{acc+2*j}, 16, v{xP+j}', f'v_and_b32 v{acc+2*j+1}, 0xffff0000, v{xP+j}']
for _ in range(4): A(unp.pop(0))
A(f'v_cndmask_b32 v{t0}, v{gG}, v{gG+1}, {sr(sM0,2)}')
A(f'v_cndmask_b32 v{t1}, v{gG+2}, v{gG+3}, {sr(sM0,2)}')
A(f'v_cndmask_b32 v{gS+2}, v{t0}, v{t1}, {sr(sM1,2)}')
A(f'v_mov_b32 v{gS+3}, s{sTAG}')
A('s_mov_b32 exec_lo, 0x00f0000f')
A('s_mov_b32 exec_hi, 0xf0000f00')
local_stores([f'buffer_store_dwordx4 {vr(gS,4)}, v{vQ16}, {srd(SRD_WS)}, s{aSTs} offen'])
A('s_mov_b64 exec, -1')
stamp()
V.release(gG, 4)
sa = V.alloc(8, 2)
def h1_issue():
    A(f'buffer_load_dwordx4 {vr(sa,4)}, v{vL16}, {srd(SRD_WS)}, s{aSTp} offen sc1')
    A(f'buffer_load_dwordx4 {vr(sa+4,4)}, v{vL16}, {srd(SRD_WS)}, s{aSTp} offen offset:1024 sc1')
while unp: A(unp.pop(0))
E = if_layer(0)
Lh = A.newlabel('L_hel'); Lhk = A.newlabel('L_helok')
A(f's_mov_b32 s{sGUARD}, {SPIN}')
A(f's_waitcnt vmcnt({NY})')
A.label(Lh)
for r in range(8): A(f'v_xor_b32 v{hel+r}, s{sTAGB if r & 1 else sTAG}, v{hel+r}')
A(f'v_or3_b32 v{t0}, v{hel+1}, v{hel+3}, v{hel+5}')
A(f'v_or_b32 v{t0}, v{t0}, v{hel+7}')
A(f'v_lshrrev_b32 v{t0}, 4, v{t0}')
A(f'v_or3_b32 v{t0}, v{t0}, v{hel}, v{hel+2}')
A(f'v_or3_b32 v{t0}, v{t0}, v{hel+4}, v{hel+6}')
A(f'v_cmp_ne_u32 vcc, 0, v{t0}')
A(f's_cbranch_vccz {E}')
A('s_sleep 8')
hel_issue(); A.wait_vm0()
A(f's_sub_u32 s{sGUARD}, s{sGUARD}, 1')
A(f's_cbranch_scc0 {Lh}')
endif(E, False)
V.release(hel, 8)

def h1_check():
    A(f'v_cmp_ne_u32 vcc, s{sTAG}, v{sa+3}')
    A(f'v_cmp_ne_u32 {sr(sT2,2)}, s{sTAG}, v{sa+7}')
    A(f'v_pk_add_f32 {vr(sa,2)}, {vr(sa,2)}, {vr(sa+4,2)}')
    A(f's_or_b64 vcc, vcc, {sr(sT2,2)}')
poll(h1_issue, h1_check, 'ST')
stamp()
A(f'v_add_f32 v{sa+2}, v{sa+2}, v{sa+6}')
A(f'v_mov_b32 v{sa+4}, v{sa}')
A(f'v_mov_b32 v{sa+5}, v{sa+1}')
A(f'v_mov_b32 v{sa+6}, v{sa+2}')
local_stores([f'buffer_store_dwordx4 {vr(xP,4)}, v{vXs}, {srd(SRD_WS)}, s{aXs} offen',
              f'buffer_store_dwordx4 {vr(xP+4,4)}, v{vXs}, {srd(SRD_WS)}, s{aXs} offen offset:64'])
for r in range(3): A(f'v_permlane16_swap_b32 v{sa+r}, v{sa+4+r}')
A(f'v_pk_add_f32 {vr(sa,2)}, {vr(sa,2)}, {vr(sa+4,2)}')
A(f'v_add_f32 v{sa+2}, v{sa+2}, v{sa+6}')
for r in range(3): A(f'v_mov_b32 v{sa+4+r}, v{sa+r}')
for r in range(3): A(f'v_permlane32_swap_b32 v{sa+r}, v{sa+4+r}')
A(f'v_pk_add_f32 {vr(sa,2)}, {vr(sa,2)}, {vr(sa+4,2)}')
A(f'v_add_f32 v{sa+2}, v{sa+2}, v{sa+6}')
mu = V.alloc(); var = V.alloc(); pr = V.alloc(2, 2); mm = V.alloc()
ln_params(sa, sa + 2, mu, var, mm, pr, t0)
key = V.alloc(); ka = V.alloc(2, 2); kb = ka + 1
A(f'v_fma_f32 v{key}, -v{mm}, v{vSW}, v{sa+1}')
A(f'v_mul_f32 v{key}, v{key}, v{pr}')
A(f'v_mul_f32 v{pr+1}, -v{mm}, v{pr}')
A(f'v_ashrrev_i32 v{t0}, 31, v{key}')
A(f'v_or_b32 v{t0}, 0x80000000, v{t0}')
A(f'v_xor_b32 v{key}, v{key}, v{t0}')
A(f'v_and_b32 v{key}, 0xfffff800, v{key}')
A(f'v_or3_b32 v{key}, v{key}, v{vQ}, s{aROW}')
xn = V.alloc(8, 2); xf = V.alloc(16, 2)
fillx = [f'v_pk_fma_f32 {vr(xf+2*j,2)}, {vr(acc+2*j,2)}, {vr(pr,2)}, {vr(pr,2)} op_sel:[0,0,1] op_sel_hi:[1,0,1]' for j in range(8)] + \
        [f'v_cvt_pk_bf16_f32 v{xn+j}, v{xf+2*j}, v{xf+2*j+1}' for j in range(8)]
def top2_levels(a, b, levels, fill):
    for lv in levels:
        if fill: A(fill.pop(0))
        A(f'v_min_u32_dpp v{t0}, v{a}, v{a} {lv} {DP}')
        A(f'v_max_u32_dpp v{t1}, v{b}, v{b} {lv} {DP}')
        A(f'v_max_u32_dpp v{a}, v{a}, v{a} {lv} {DP}')
        A(f'v_max_u32 v{b}, v{t0}, v{t1}')
A(fillx.pop(0)); A(fillx.pop(0))
A(f'v_max_u32_dpp v{ka}, v{key}, v{key} quad_perm:[1,0,3,2] {DP}')
A(f'v_min_u32_dpp v{kb}, v{key}, v{key} quad_perm:[1,0,3,2] {DP}')
top2_levels(ka, kb, ['quad_perm:[2,3,0,1]', 'row_half_mirror', 'row_mirror'], fillx)
A('s_mov_b64 exec, 1')
A(f'buffer_store_dwordx2 {vr(ka,2)}, v{vL16}, {srd(SRD_WS)}, s{aKEYs} offen sc1')
E = if_layer(0)
A('s_waitcnt vmcnt(1)')
local_stores([f'buffer_store_dwordx2 {vr(tg,2)}, v{vL16}, {srd(SRD_WS)}, s{aX1Fs} offen'])
FTT = int(next((a[4:] for a in OPT if a.startswith('ftt=')), '0'))
if FTT == 0: ft_touch()
endif(E, False)
A('s_mov_b64 exec, -1')
stamp()
A(f'v_cmp_eq_u32 vcc, v{key}, v{kb}')
A(f'v_add_u32 v{t2}, 256, v{vStash}')
while fillx: A(fillx.pop(0))
A(f'v_cndmask_b32 v{t3}, v{vStash}, v{t2}, vcc')
A(f'v_cmp_ge_u32 vcc, v{key}, v{kb}')
A(f'v_lshrrev_b32 v{t0}, 3, v{vL}')
A(f'v_and_b32 v{t1}, 0x70, v{vL16}')
A(f's_mov_b64 exec, vcc')
A(f'ds_write_b128 v{t3}, {vr(xn,4)} offset:128')
A(f'ds_write_b128 v{t3}, {vr(xn+4,4)} offset:192')
A(f'ds_write_b128 v{t3}, {vr(xP,4)}')
A(f'ds_write_b128 v{t3}, {vr(xP+4,4)} offset:64')
A('s_mov_b64 exec, -1')
V.release(key); V.release(ka, 2)
A(f'v_lshl_add_u32 v{t2}, v{t0}, 8, v{t1}')
A(f'v_add_u32 v{t2}, {L_CS + 128}, v{t2}')
A(f'v_lshl_add_u32 v{t3}, v{t0}, 10, v{t1}')
A(f's_lshl_b32 s{sT0}, s{sW}, 4')
A('s_waitcnt lgkmcnt(2)')
A(f'ds_read_b128 {vr(sa,4)}, v{t2}')
A(f'v_lshl_add_u32 v{t0}, v{vQ}, 7, v{vGm}')
A(f'v_add_u32 v{t0}, {L_ROW}, v{t0}')
A(f'v_add_u32 v{t1}, {L_ROW + 1024}, v{vL16}')
A(f's_lshl_b64 exec, 0xffff, s{sT0}')
A('s_waitcnt lgkmcnt(0)')
A(f'buffer_store_dwordx4 {vr(sa,4)}, v{t3}, {srd(SRD_WS)}, s{aCANDs} offen sc1')
A('s_mov_b64 exec, -1')
E3 = skip_unless([f's_xor_b32 s{sT0}, s{sW}, 3', f's_or_b32 s{sT0}, s{sT0}, s{sLAYER}'])
A(f'ds_write_b128 v{t0}, {vr(xP,4)}')
A(f'ds_write_b128 v{t0}, {vr(xP+4,4)} offset:64')
A(f's_add_u32 s{sT0}, s{aCANDs}, {WS_HALO - WS_CAND}')
A('s_waitcnt lgkmcnt(0)')
A(f'ds_read_b128 {vr(sa+4,4)}, v{t1}')
A('s_waitcnt lgkmcnt(0)')
A(f'buffer_store_dwordx4 {vr(sa+4,4)}, v{t3}, {srd(SRD_WS)}, s{sT0} offen sc1')
endif(E3)
fine()
def chain_params(mu, var, mm, rs, om, oc):
    a = V.alloc(); u = V.alloc(); w_ = V.alloc(); m2 = V.alloc(); r2 = V.alloc()
    A(f'v_add_f32 v{a}, 1.0, v{rs}')
    A(f'v_mul_f32 v{u}, v{mm}, v{rs}')
    A(f'v_fma_f32 v{mu}, v{mu}, v{a}, -v{u}')
    A(f'v_mul_f32 v{w_}, v{a}, v{a}')
    A(f'v_mul_f32 v{var}, v{var}, v{w_}')
    round_params(mu, var, m2, r2, w_)
    A(f'v_rcp_f32 v{w_}, v{a}')
    A(f'v_add_f32 v{u}, v{u}, v{m2}')
    A(f'v_mul_f32 v{oc}, v{a}, v{r2}')
    A(f'v_mul_f32 v{om}, -v{u}, v{w_}')
    for x in (a, u, w_, m2, r2): V.release(x)
xfl = sa
xf_issue = lambda: A(f'buffer_load_dwordx2 {vr(xfl,2)}, v{vL8}, {srd(SRD_WS)}, s{aX1Fp} offen sc1')
for j in range(8):
    A(f'v_lshlrev_b32 v{xf+2*j}, 16, v{xn+j}')
    A(f'v_and_b32 v{xf+2*j+1}, 0xffff0000, v{xn+j}')
for j in range(8):
    A(f'v_pk_add_f32 {vr(xf+2*j,2)}, {vr(xf+2*j,2)}, {vr(acc+2*j,2)}')
for j in range(8):
    A(f'v_cvt_pk_bf16_f32 v{xP+j}, v{xf+2*j}, v{xf+2*j+1}')
V.release(xn, 8); V.release(xf, 16); V.release(acc, 16)
A(f's_cmp_eq_u32 s{sLAYER}, 0')
A('s_cbranch_scc1 L_x1')
for j in range(4):
    A(f'v_mov_b32 v{sa+j}, v{xP+j}')
for j in range(4):
    A(f'v_mov_b32_dpp v{xP+j}, v{xP+4+j} row_ror:8 row_mask:0xf bank_mask:0xc')
for j in range(4):
    A(f'v_mov_b32_dpp v{xP+4+j}, v{sa+j} row_ror:8 row_mask:0xf bank_mask:0x3')
A(f'v_and_b32 v{t0}, 7, v{vQ}')
A(f'v_lshl_add_u32 v{vXs}, v{t0}, 11, v{vGm}')
A(f'v_and_b32 v{t0}, 8, v{vQ}')
A(f'v_lshl_add_u32 v{vXs}, v{t0}, 3, v{vXs}')
def out_stores():
    A(f's_add_u32 s{sT0}, s{aOUT}, 16384')
    A(f'buffer_store_dwordx4 {vr(xP,4)}, v{vXs}, {srd(SRD_OUT)}, s{aOUT} offen{OSC}')
    A(f'buffer_store_dwordx4 {vr(xP+4,4)}, v{vXs}, {srd(SRD_OUT)}, s{sT0} offen{OSC}')
    if 'clean' in OPT:
        A(f's_lshl_b32 s{sT0}, s{sHG}, 11')
        A(f'buffer_store_dwordx4 {vr(xP,4)}, v{vO4}, {srd(SRD_WS)}, s{sT0} offen sc1')
        A(f'buffer_store_dwordx4 {vr(xP,4)}, v{vO4}, {srd(SRD_WS)}, s{sT0} offen offset:1024 sc1')
OSC = ' sc1 nt' if 'ont' in OPT else ' sc1'
if 'outearly' in OPT:
    A(f's_cmp_eq_u32 s{sHASF}, 1')
    A('s_cbranch_scc1 L_x1e')
    out_stores()
A('s_branch L_x1e')
A.label('L_x1')
chain_params(mu, var, mm, pr, t2, t3)
A(f's_lshl_b32 s{sT0}, s{sW}, 6')
A(f'v_add_u32 v{t0}, s{sT0}, v{vQ4}')
A(f'ds_write2_b32 v{t0}, v{t2}, v{t3} offset0:16 offset1:96')
V.release(mu); V.release(var); V.release(pr, 2); V.release(mm)
E1 = if_wave(1)
poll(xf_issue, lambda: tag_check(xfl), 'X1F')
endif(E1, False)
A('s_waitcnt lgkmcnt(0)')
A('s_barrier')
fine()
V.take(accQ, 20); V.take(accK, 20); V.take(accV, 20); V.take(hV, 10); V.take(mxc, 8)
fr = [V.alloc(16, 2), V.alloc(16, 2)]
def own_reads(ks):
    u = ks & 1; kc = ks >> 1; b = fr[ks & 1]
    return [f'ds_read_b128 {vr(b + 4 * T, 4)}, v{vA+u} offset:{(kc * 8 + 2 * T) * 1024}' for T in range(4)]
def gemm_groups(k0, k1, noread=()):
    G = []
    for ks in range(k0, k1):
        b = fr[ks & 1]; fill = own_reads(ks + 1) if ks < 15 and ks not in noread else []
        for T in range(1, 5):
            X = vr(b + 4 * (T - 1), 4)
            for m_, (d_, a_, b_) in enumerate(((accQ, ar(aW(ks, 0), 4), X), (accK, ar(aW(ks, 1), 4), X), (accV, X, ar(aW(ks, 2), 4)))):
                g_ = [mf(vr(d_ + 4 * T, 4), a_, b_, vr(d_ + 4 * T, 4))]
                if T == 1 and m_ == 0: g_ = ['s_waitcnt lgkmcnt(0)'] + g_
                elif fill and m_ < 2: g_.append(fill.pop(0))
                G.append(g_)
    return G
def gemm_part(k0, k1, ins=None):
    for n_, g_ in enumerate(gemm_groups(k0, k1)):
        for x in g_: A(x)
        for x in (ins or {}).get(n_, []): emit(x)
A.vm = []
def x1_dma(kc, o):
    return ([f's_add_u32 s{sXA}, s{sXB}, {WS_X1 + kc * 128}'] if o == 0 else []) + \
           [f's_add_u32 m0, s{sAM}, {L_A + kc * 8192 + o * 1024}',
            (f'buffer_load_dwordx4 v{vXo if o else vXe}, {srd(SRD_WS)}, s{sXA} offen sc1 lds', f'x{kc >> 1}')]
sXA, sXB = 46, 47
A(f's_lshl_b32 s{sXB}, s{sSTB}, 14')
ci = V.alloc(4, 2); vFo = V.alloc()
A(f'ds_read2_b32 {vr(ci,2)}, v{vQ4} offset0:16 offset1:32')
A(f'ds_read2_b32 {vr(ci+2,2)}, v{vQ4} offset0:48 offset1:64')
for T in range(1, 5): A(f'ds_read_b128 {vr(accV + 4 * T, 4)}, v{vG16} offset:{64 * T}')
grp = [x1_dma(kc, o) for kc in range(4) for o in range(2)]
for _ in range(2):
    for x in grp.pop(0): emit(x)
A.sprinkle = (grp, 4, emit)
A('s_waitcnt lgkmcnt(4)')
for T in range(1, 5):
    sel = (T - 1) & 1
    for acc_, cs_ in ((accQ, csQ), (accK, csK)):
        for h in range(2):
            A(f'v_pk_mul_f32 {vr(acc_+4*T+2*h,2)}, {vr(cs_+2*h,2)}, {vr(ci + ((T-1)&2),2)} op_sel:[0,{sel}] op_sel_hi:[1,{sel}]')
A('s_waitcnt lgkmcnt(0)')
for T in range(1, 5):
    for h in range(2):
        A(f'v_pk_mul_f32 {vr(accV+4*T+2*h,2)}, {vr(accV+4*T+2*h,2)}, {vr(csV,2)} op_sel_hi:[1,0]')
A.sprinkle = None
assert not grp
V.release(ci, 4)
A(f's_xor_b32 s{sT0}, s{sHASF}, 1')
A(f's_lshl_b32 s{sT0}, s{sT0}, 30')
A(f'v_add_u32 v{vFo}, s{sT0}, v{vL16}')
vSf = V.alloc()
A(f's_lshl_b32 s{sT0}, s{sSET}, 11')
A(f's_add_u32 s{sT0}, s{sT0}, {WS_X1F}')
A(f'v_lshl_add_u32 v{vSf}, v{vG}, 9, v{vQ16}')
A(f'v_add_u32 v{vSf}, s{sT0}, v{vSf}')
A(f's_add_u32 s{sT5}, s{aFT}, 4096')
if FTT == 1: ft_touch()
A.wait_vm('x0')
A('s_barrier')
fine()
for x in own_reads(0): A(x)
key_issue = lambda: A(f'buffer_load_dwordx4 {vr(sa,4)}, v{vL16}, {srd(SRD_WS)}, s{aKEYp} offen sc1', tag='key')
ft_ld = [f'buffer_load_dwordx4 {ar(aFG + 4*s_, 4)}, v{vFo}, {srd(SRD_WS)}, s{sT5 if s_ >= 4 else aFT} offen offset:{(s_ & 3)*1024} sc1' for s_ in range(8)]
KC, N1, N2, PER = [int(x) for x in next((a[2:] for a in OPT if a.startswith('n=')), '3,5,13,3').split(',')]
assert KC <= 3
ins = {1 + PER * n_: x1_dma(kc, o) for n_, (kc, o) in enumerate([(kc, o) for kc in range(4, 8) for o in range(2)])}
for n_, x in enumerate(ft_ld): ins[36 + n_] = [x]
sf_issue = lambda: A(f'buffer_load_dwordx4 {vr(sa+4,4)}, v{vSf}, {srd(SRD_WS)}, 0 offen sc1')
ins[KC * 12 - 14] = ins.get(KC * 12 - 14, []) + [sf_issue, key_issue]
def b2b():
    if A.vm_count('x1') is not None and KC > 3: A.wait_vm('x1')
    A('s_barrier')
ins[36] = [b2b] + ins.get(36, [])
gemm_part(0, KC, ins)
A.wait_vm('key')
A(f's_cmp_lg_u32 s{sW}, 0')
A('s_cbranch_scc1 L_keye')
Lsf = A.newlabel('L_sf')
A(f's_mov_b32 s{sGUARD}, {SPIN}')
A(f's_cmp_eq_u32 s{sHASF}, 0')
A('s_cbranch_scc1 L_keyc')
A.label(Lsf)
for k in range(4): A(f'v_xor_b32 v{sa+4+k}, s{sTAGB if k & 1 else sTAG}, v{sa+4+k}')
A(f'v_or_b32 v{sa+5}, v{sa+5}, v{sa+7}')
A(f'v_lshrrev_b32 v{sa+5}, 4, v{sa+5}')
A(f'v_or3_b32 v{sa+4}, v{sa+4}, v{sa+5}, v{sa+6}')
A(f'v_cmp_ne_u32 vcc, 0, v{sa+4}')
A('s_cbranch_vccz L_keyc')
sf_issue(); key_issue()
A('s_waitcnt vmcnt(0)')
A(f's_sub_u32 s{sGUARD}, s{sGUARD}, 1')
A(f's_cbranch_scc0 {Lsf}')
A('s_branch L_keyc')
V.release(vSf)
A.label('L_x1e')
stamp()
A(f's_cmp_lg_u32 s{sW}, 0')
A('s_cbranch_scc1 L_keye')
A(f's_mov_b32 s{sGUARD}, {SPIN}')
A.label('L_keyp')
key_issue()
A('s_waitcnt vmcnt(0)')
A.label('L_keyc')
A(f'v_max3_u32 v{t0}, v{sa}, v{sa+1}, v{sa+2}')
A(f'v_min_u32 v{t2}, v{sa}, v{sa+2}')
A(f'v_max_u32 v{t0}, v{t0}, v{sa+3}')
A(f'v_max_u32 v{sa}, v{sa}, v{sa+2}')
A(f'v_cmp_eq_u32 vcc, -1, v{t0}')
A(f'v_max3_u32 v{sa+1}, v{sa+1}, v{sa+3}, v{t2}')
A('s_cbranch_vccz L_keyk')
backoff('KEYS')
NS = int(next((a[4:] for a in OPT if a.startswith('nsl=')), '8'))
if NS:
    A(f's_cmp_eq_u32 s{sHASF}, 1')
    A('s_cbranch_scc1 L_keyh')
    A(f's_sleep {NS}')
    A.label('L_keyh')
A(f's_sub_u32 s{sGUARD}, s{sGUARD}, 1')
A('s_cbranch_scc0 L_keyp')
A.label('L_keyk')
stamp()
top2_levels(sa, sa + 1, ['quad_perm:[1,0,3,2]', 'quad_perm:[2,3,0,1]', 'row_half_mirror', 'row_mirror'], [])
for n_, ln in enumerate((0, 16, 32, 48)):
    A(f'v_readlane_b32 s{(sK0, sT0, sT2, sU0)[n_]}, v{sa}, {ln}')
for n_, ln in enumerate((0, 16, 32, 48)):
    A(f'v_readlane_b32 s{(sK1, sT1, sT3, sU1)[n_]}, v{sa+1}, {ln}')
for a_, b_ in ((sT0, sT1), (sT2, sT3), (sU0, sU1)):
    A(f's_max_u32 s{sK1}, s{sK1}, s{b_}')
    A(f's_min_u32 s{b_}, s{sK0}, s{a_}')
    A(f's_max_u32 s{sK0}, s{sK0}, s{a_}')
    A(f's_max_u32 s{sK1}, s{sK1}, s{b_}')
A(f's_and_b32 s{sU2}, s{sK0}, 0x7f0')
A(f's_and_b32 s{sU3}, s{sK1}, 0x7f0')
A(f's_cmp_eq_u32 s{sU2}, s{sU3}')
A(f's_cselect_b32 s{sT2}, 8, 0')
A(f's_lshl_b32 s{sU2}, s{sU2}, 7')
A(f's_add_u32 s{sU2}, s{sU2}, s{aCANDb}')
A(f's_or_b32 s{sU3}, s{sU3}, s{sT2}')
A(f's_lshl_b32 s{sU3}, s{sU3}, 7')
A(f's_add_u32 s{sU3}, s{sU3}, s{aCANDb}')
def f_issue():
    A(f'buffer_load_dwordx4 {vr(sa,4)}, v{vL16}, {srd(SRD_WS)}, s{sU2} offen sc1')
    A(f'buffer_load_dwordx4 {vr(sa+4,4)}, v{vL16}, {srd(SRD_WS)}, s{sU3} offen sc1')
E = if_ffn()
f_issue()
endif(E, False)
A(f'v_mov_b32 v{t0}, s{sK0}')
A(f'v_mov_b32 v{t1}, s{sK1}')
A(f'v_mov_b32 v{t2}, {L_KEY}')
A(f'ds_write2_b32 v{t2}, v{t0}, v{t1} offset0:0 offset1:1')
A.label('L_keye')
E = if_layer(0)
gemm_part(KC, N1, {k_ - KC * 12: v_ for k_, v_ in ins.items()})
V.release(vFo)
A('s_waitcnt vmcnt(0)')
A(f's_cmp_lg_u32 s{sW}, 3')
A(f's_cbranch_scc1 {E}')
A(f's_lshl_b32 s{sT0}, s{sRB}, 10')
A(f's_lshl_b32 s{sT1}, s{sHG}, 7')
A(f's_add_u32 s{sT0}, s{sT0}, s{sT1}')
A(f's_add_u32 s{sT0}, s{sT0}, {WS_HS - 128}')
A('s_mov_b32 exec_lo, 0')
A('s_mov_b32 exec_hi, 0xf0000f00')
A(f'buffer_store_dwordx4 {vr(gS,4)}, v{vQ16}, {srd(SRD_WS)}, s{sT0} offen sc1')
A('s_mov_b64 exec, -1')
endif(E, False)
V.release(gS, 4)
fine()
fa = V.alloc(4)
A(f'v_bfe_u32 v{t0}, v{vL}, 2, 1')
A(f'v_and_b32 v{t1}, 1, v{vL}')
A(f'v_lshl_or_b32 v{t0}, v{t0}, 1, v{t1}')
A(f'v_mul_u32_u24 v{fa}, 576, v{t0}')
A(f'v_lshl_add_u32 v{fa}, v{vG}, 4, v{fa}')
A(f'v_add_u32 v{fa}, {L_XS}, v{fa}')
A(f's_lshl_b32 s{sT1}, s{sW}, 3')
A(f's_add_u32 s{sT1}, s{sT1}, {L_H}')
A(f'v_lshlrev_b32 v{fa+1}, 5, v{vG}')
A(f'v_lshl_add_u32 v{fa+1}, v{vQ}, 1, v{fa+1}')
A(f'v_add_u32 v{fa+1}, s{sT1}, v{fa+1}')
A(f's_lshr_b32 s{sT1}, s{sW}, 1')
A(f's_lshl_b32 s{sT1}, s{sT1}, 5')
A(f's_add_u32 s{sT1}, s{sT1}, {L_H}')
A(f'v_mov_b32 v{fa+2}, s{sT1}')
A(f'v_lshlrev_b32 v{fa+3}, 4, v0')
A(f'v_mov_b32 v{t3}, {L_KEY}')
A(f'v_lshrrev_b32 v{t2}, 5, v{vL}')
A(f'v_lshl_add_u32 v{t2}, v{t2}, 6, v{vL16}')
A(f'v_add_u32 v{t2}, {L_XS}, v{t2}')
E = skip_unless([f's_cmp_eq_u32 s{sW}, 0', f's_cselect_b32 s{sT0}, s{sHASF}, 0', f's_cmp_eq_u32 s{sT0}, 0'])
def f_check():
    A(f'v_max_u32 v{t0}, v{sa}, v{sa+4}')
    A(f'ds_write_b128 v{t2}, {vr(sa,4)}')
    A(f'v_cmp_eq_u32 vcc, -1, v{t0}')
    A(f'ds_write_b128 v{t2}, {vr(sa+4,4)} offset:1152')
    A('s_waitcnt lgkmcnt(0)')
repoll(f_issue, f_check, 'CAND')
endif(E, False)
A('s_waitcnt lgkmcnt(0)')
A('s_barrier')
fine()
A(f's_cmp_eq_u32 s{sHASF}, 0')
A('s_cbranch_scc1 L_noffn')
xs = V.alloc(32, 2); d4 = V.alloc(4, 2); hp = V.alloc(8, 2); y4 = V.alloc(4, 2); wd = xs
for s_ in range(8):
    A(f'ds_read_b128 {vr(xs + 4*s_, 4)}, v{fa} offset:{64*s_}')
for c in range(4): A(f'v_mov_b32 v{y4+c}, 0')
wrd = [f'v_accvgpr_read_b32 v{wd+j}, a{aFD+j}' for j in range(32)]
for s_ in range(8):
    A(f's_waitcnt lgkmcnt({7 - s_})')
    A(mf(vr(d4, 4), vr(xs + 4*s_, 4), ar(aFG + 4*s_, 4), '0' if s_ == 0 else vr(d4, 4)))
    if s_: A(wrd.pop(0)); A(wrd.pop(0))
for _ in range(6): A(wrd.pop(0))
A(f'v_add_f32_dpp v{t0}, v{d4+1}, v{d4} row_shl:8 {DP}')
bf_round(t0, t0)
A(f'v_mul_f32 v{t1}, {hex(f2u(-1.4426950408889634))}, v{t0}')
A(f'v_exp_f32 v{t1}, v{t1}')
A(f'v_mov_b32_dpp v{t2}, v{t0} row_shl:4 {DP}')
A(f'v_add_f32 v{t1}, 1.0, v{t1}')
A(f'v_rcp_f32 v{t1}, v{t1}')
A('s_mov_b64 exec, 0x000f000f')
A(f'v_mul_f32 v{t1}, v{t0}, v{t1}')
bf_round(t1, t1)
A(f'v_mul_f32 v{t1}, v{t2}, v{t1}')
A(f'v_cvt_pk_bf16_f32 v{t1}, v{t1}, v{t1}')
A(f'ds_write_b16 v{fa+1}, v{t1}')
A('s_mov_b64 exec, -1')
for _ in range(8): A(wrd.pop(0))
A('s_waitcnt lgkmcnt(0)')
A('s_barrier')
A(f'ds_read_b128 {vr(hp,4)}, v{fa+2}')
A(f'ds_read_b128 {vr(hp+4,4)}, v{fa+2} offset:16')
while wrd: A(wrd.pop(0))
for j in range(8):
    if j % 4 == 0: A(f's_waitcnt lgkmcnt({1 - j // 4})')
    for c in range(4):
        A(f'v_dot2c_f32_bf16 v{y4+c}, v{wd+4*j+c}, v{hp+j}')
A(f'buffer_store_dwordx4 {vr(y4,4)}, v{fa+3}, {srd(SRD_WS)}, s{aYPs} offen sc1')
V.release(xs, 32); V.release(d4, 4); V.release(hp, 8); V.release(y4, 4)
if 'outearly' not in OPT: A.label('L_noffn')
A(f's_cmp_eq_u32 s{sLAYER}, 0')
A('s_cbranch_scc1 L_noffn2')
out_stores()
if 'outearly' in OPT: A.label('L_noffn')
A.label('L_noffn2')
A(f'ds_read_b64 {vr(sa,2)}, v{t3}')
V.release(fa, 4)
A('s_waitcnt lgkmcnt(0)')
A(f'v_readfirstlane_b32 s{sK0}, v{sa}')
A(f'v_readfirstlane_b32 s{sK1}, v{sa+1}')
stamp()
sOWN = 48
A(f's_bfe_u32 s{sT0}, s{sK0}, 0x50006')
A(f's_bfe_u32 s{sT1}, s{sK1}, 0x50006')
A(f's_cmp_eq_u32 s{sT0}, s{sRB}')
A(f's_cselect_b32 s{sT1}, s{sRB}, s{sT1}')
A(f's_cselect_b32 s{sTOK}, 0, 1')
A(f's_cselect_b32 s{sKEY}, s{sK0}, s{sK1}')
A(f's_cmp_eq_u32 s{sT1}, s{sRB}')
A(f's_cselect_b32 s{sOWN}, 1, 0')
yp = V.alloc(24, 2); yo = V.alloc(2)
def y_issue():
    for j in range(6):
        A(f's_mov_b32 s{sT1}, {j * 65536}')
        A(f'buffer_load_dwordx4 {vr(yp + 4*j, 4)}, v{yo + 1 if j == 5 else yo}, {srd(SRD_WS)}, s{sT1} offen sc1')
def y_start():
    A(f's_lshl_b32 s{sT0}, s{sTOK}, 11')
    A(f's_add_u32 s{sT0}, s{sT0}, s{aYPb}')
    A(f'v_lshrrev_b32 v{t0}, 4, v0')
    A(f'v_lshl_add_u32 v{yo}, v{t0}, 12, v{vQ16}')
    A(f'v_cmp_gt_u32 vcc, 6, v{t0}')
    A(f'v_add_u32 v{yo}, s{sT0}, v{yo}')
    A(f'v_mov_b32 v{t1}, 0x40000000')
    A(f'v_cndmask_b32 v{yo+1}, v{t1}, v{yo}, vcc')
    y_issue()
E = if_layer(0)
E2 = if_wave(2)
A(f's_lshl_b32 s{sT0}, s{sHG}, 3')
A(f's_add_u32 s{sT0}, s{sT0}, s{aX1Fp}')
A('s_mov_b64 exec, 1')
local_stores([f'buffer_store_dwordx2 {vr(tg,2)}, v{vL16}, {srd(SRD_WS)}, s{sT0} offen offset:256'])
A('s_mov_b64 exec, -1')
endif(E2, False)
NH = int(next((a[3:] for a in OPT if a.startswith('nh=')), '10'))
gemm_part(N1, NH - 1)
A(f's_lshl_b32 s{sU0}, s{sRB}, 10')
A(f's_add_u32 s{sU0}, s{sU0}, {WS_HS - 1024}')
hs_issue = lambda: A(f'buffer_load_dwordx4 {vr(sa,4)}, v{vL16}, {srd(SRD_WS)}, s{sU0} offen sc1')
hs_issue()
gemm_part(NH - 1, NH + 1)
A('s_waitcnt vmcnt(0)')
Eh = skip_unless([f's_cmp_lg_u32 s{sFIRST}, 0'])
repoll(hs_issue, lambda: A(f'v_cmp_ne_u32 vcc, s{sTAG}, v{sa+3}'), 'HS')
A(f's_lshl_b32 s{sU1}, s{sRB}, 13')
A(f's_lshl_b32 s{sT0}, s{sW}, 8')
A(f's_add_u32 s{sU1}, s{sU1}, s{sT0}')
A(f's_mul_i32 s{sT0}, s{sW}, {2 * HST}')
for j in range(2):
    A(f's_add_u32 m0, s{sT0}, {L_HA + j * HST}')
    A(f's_add_u32 s{sT1}, s{sU1}, {WS_HALO - 16384 + j * 128}')
    A(f'buffer_load_dwordx4 v{vXo}, {srd(SRD_WS)}, s{sT1} offen sc1 lds')
endif(Eh, False)
Eh = skip_unless([f's_cmp_eq_u32 s{sOWN}, 0'])
y_start()
endif(Eh, False)
G = gemm_groups(NH + 1, N2)
for x in G.pop(0): A(x)
A.sprinkle = (G, 2, emit)
mu = V.alloc(); var = V.alloc(); pr = V.alloc(); mm = V.alloc()
for r in (0, 2): A(f'v_add_f32_dpp v{sa+r}, v{sa+r}, v{sa+r} row_ror:8 {DP}')
for sw in ('v_permlane16_swap_b32', 'v_permlane32_swap_b32'):
    for r in (0, 2): A(f'v_mov_b32 v{sa+4+r}, v{sa+r}')
    for r in (0, 2): A(f'{sw} v{sa+r}, v{sa+4+r}')
    for r in (0, 2): A(f'v_add_f32 v{sa+r}, v{sa+r}, v{sa+4+r}')
ln_params(sa, sa + 2, mu, var, mm, pr, t0)
chain_params(mu, var, mm, pr, t2, t3)
A.sprinkle = None
for g_ in G:
    for x in g_: emit(x)
A(f's_xor_b32 s{sT0}, s{sW}, 1')
A(f's_or_b32 s{sT0}, s{sT0}, s{sFIRST}')
A(f's_cbranch_scc1 {E}')
A(f'ds_write2_b32 v{vQ4}, v{t2}, v{t3} offset0:0 offset1:80')
V.release(mu); V.release(var); V.release(pr); V.release(mm)
endif(E, False)
V.release(sa, 8)
stamp()
A(f's_cmp_eq_u32 s{sOWN}, 0')
A('s_cbranch_scc1 L_own_end')
A(f's_cmp_eq_u32 s{sLAYER}, 0')
A('s_cbranch_scc1 L_own2')
A.label('L_own')
A(f's_bfe_u32 s{sT0}, s{sKEY}, 0x50006')
A(f's_cmp_lg_u32 s{sT0}, s{sRB}')
A('s_cbranch_scc1 L_own_end')
y_start()
A.label('L_own2')
A(f's_and_b32 s{sRHO}, s{sKEY}, 2047')
sg = V.alloc(); ya = V.alloc(); yb = V.alloc(); yc = V.alloc()
def y_check():
    A(f'v_max3_u32 v{t0}, v{yp}, v{yp+4}, v{yp+8}')
    A(f'v_max3_u32 v{t1}, v{yp+12}, v{yp+16}, v{yp+20}')
    A(f'v_max_u32 v{t0}, v{t0}, v{t1}')
    A(f'v_cmp_eq_u32 vcc, -1, v{t0}')
A(f's_bfe_u32 s{sT0}, s{sK0}, 0x70004')
A(f's_bfe_u32 s{sT2}, s{sKEY}, 0x70004')
A(f's_cmp_eq_u32 s{sT0}, s{sT2}')
A(f's_cselect_b32 s{sT0}, s{sTOK}, 0')
A(f's_lshl_b32 s{sT0}, s{sT0}, 8')
A(f's_and_b32 s{sT2}, s{sT2}, 3')
A(f's_lshl_b32 s{sT2}, s{sT2}, 9')
A(f's_add_u32 s{sT0}, s{sT0}, s{sT2}')
A(f's_add_u32 s{sT0}, s{sT0}, {L_CS}')
A(f'v_lshl_add_u32 v{yc}, v{vL}, 1, s{sT0}')
A(f'ds_read_u16 v{ya}, v{yc}')
A(f'ds_read_u16 v{yb}, v{yc} offset:128')
A(f's_ashr_i32 s{sT2}, s{sKEY}, 31')
A(f's_not_b32 s{sT2}, s{sT2}')
A(f's_or_b32 s{sT2}, s{sT2}, 0x80000000')
A(f's_xor_b32 s{sT2}, s{sT2}, s{sKEY}')
A(f'v_mov_b32 v{sg}, s{sT2}')
bf_round(sg, sg)
A(f'v_mul_f32 v{sg}, {hex(f2u(-1.4426950408889634))}, v{sg}')
A(f'v_exp_f32 v{sg}, v{sg}')
A(f'v_add_f32 v{sg}, 1.0, v{sg}')
A(f'v_rcp_f32 v{sg}, v{sg}')
bf_round(sg, sg)
A('s_waitcnt lgkmcnt(0)')
A(f'v_lshlrev_b32 v{ya}, 16, v{ya}')
A(f'v_lshlrev_b32 v{yb}, 16, v{yb}')
A(f'v_lshlrev_b32 v{yc}, 4, v0')
A(f'v_add_u32 v{yc}, {L_RED}, v{yc}')
A(f's_lshl_b32 s{sT2}, s{sHG}, 7')
A(f's_and_b32 s{sU0}, s{sRHO}, 1023')
A(f's_lshl_b32 s{sU0}, s{sU0}, 11')
A(f's_and_b32 s{sT0}, s{sRHO}, 1024')
A(f's_add_u32 s{sU0}, s{sU0}, s{sT0}')
A(f's_add_u32 s{sU0}, s{sU0}, s{sT2}')
A(f's_lshl_b32 s{sU1}, s{sTOK}, 10')
A(f's_add_u32 s{sU1}, s{sU1}, s{sT2}')
A(f's_add_u32 s{sU1}, s{sU1}, {WS_X2R}')
repoll(y_issue, y_check, 'YP')
fine()
for a_, b_ in ((0, 4), (8, 12), (16, 20), (0, 8), (0, 16)):
    for h in range(2):
        A(f'v_pk_add_f32 {vr(yp+a_+2*h,2)}, {vr(yp+a_+2*h,2)}, {vr(yp+b_+2*h,2)}')
A(f'ds_write_b128 v{yc}, {vr(yp,4)}')
A(f'v_lshlrev_b32 v{t0}, 2, v{vL}')
A(f'v_add_u32 v{t0}, {L_RED}, v{t0}')
A('s_waitcnt lgkmcnt(0)')
A('s_barrier')
A(f's_cmp_lg_u32 s{sW}, 3')
A('s_cbranch_scc1 L_own_sync')
for j in range(8):
    A(f'ds_read2st64_b32 {vr(yp + 2*j, 2)}, v{t0} offset0:{2*j} offset1:{2*j+1}')
A(f'v_lshlrev_b32 v{t0}, 1, v{vL}')
for n_, (a_, b_) in enumerate(((0, 2), (4, 6), (8, 10), (12, 14), (0, 4), (8, 12), (0, 8))):
    if n_ < 4: A(f's_waitcnt lgkmcnt({6 - 2 * n_})')
    A(f'v_pk_add_f32 {vr(yp+a_,2)}, {vr(yp+a_,2)}, {vr(yp+b_,2)}')
A(f'v_add_f32 v{yp}, v{yp}, v{yp+1}')
bf_round(yp, yp)
A(f'v_mul_f32 v{yp}, v{yp}, v{sg}')
bf_round(yp, yp)
A(f'v_add_f32 v{yp}, v{yp}, v{yb}')
bf_round(yp, yp)
A(f'v_add_f32 v{yp}, v{yp}, v{ya}')
A(f'v_mov_b32_dpp v{yp+1}, v{yp} quad_perm:[1,0,3,2] {DP}')
A(f'v_cvt_pk_bf16_f32 v{yp}, v{yp}, v{yp+1}')
A('s_mov_b32 exec_lo, 0x55555555')
A('s_mov_b32 exec_hi, 0x55555555')
A(f's_cmp_eq_u32 s{sLAYER}, 0')
A('s_cbranch_scc1 L_own_x2')
A(f'buffer_store_dword v{yp}, v{t0}, {srd(SRD_OUT)}, s{sU0} offen')
A('s_branch L_own_fin')
A.label('L_own_x2')
local_stores([f'buffer_store_dword v{yp}, v{t0}, {srd(SRD_WS)}, s{sU1} offen'])
A(f's_and_b32 s{sT0}, s{sRHO}, 63')
A(f's_cmp_lt_u32 s{sT0}, 56')
A('s_cbranch_scc1 L_own_nh')
A(f'buffer_store_dword v{yp}, v{t0}, {srd(SRD_WS)}, s{sU1} offen offset:2048 sc1')
A.label('L_own_nh')
A(f'v_add_u32 v{t0}, {L_X2S}, v{t0}')
A(f'ds_write_b32 v{t0}, v{yp}')
A.label('L_own_fin')
A('s_mov_b64 exec, -1')
A.label('L_own_sync')
A('s_waitcnt lgkmcnt(0)')
A('s_barrier')
A(f's_bfe_u32 s{sT0}, s{sRHO}, 0x20004')
A(f's_cmp_lg_u32 s{sT0}, s{sW}')
A('s_cbranch_scc1 L_own_next')
A(f's_and_b32 s{sT0}, s{sRHO}, 15')
A(f'v_add_u32 v{t0}, {L_X2S}, v{vGm}')
A(f'v_cmp_eq_u32 vcc, s{sT0}, v{vQ}')
A('s_mov_b64 exec, vcc')
A(f'ds_read_b128 {vr(xP,4)}, v{t0}')
A(f'ds_read_b128 {vr(xP+4,4)}, v{t0} offset:64')
A('s_mov_b64 exec, -1')
A('s_waitcnt lgkmcnt(0)')
V.release(yp, 24); V.release(yo, 2); V.release(sg); V.release(ya); V.release(yb); V.release(yc)
A.label('L_own_next')
A(f's_mov_b32 s{sKEY}, s{sK1}')
A(f's_add_u32 s{sTOK}, s{sTOK}, 1')
A(f's_cmp_lt_u32 s{sTOK}, 2')
A('s_cbranch_scc1 L_own')
A.label('L_own_end')
A(f's_cmp_eq_u32 s{sLAYER}, 1')
A('s_cbranch_scc1 L_fin')
stamp()
G = gemm_groups(N2, 16)
for x in G.pop(0): A(x)
A.sprinkle = (G, 1, emit)
sS0, sS1 = sU2, sU3
for key_, dst in ((sK0, sS0), (sK1, sS1)):
    A(f's_and_b32 s{sT0}, s{key_}, 2047')
    A(f's_lshl_b32 s{sT1}, s{sRB}, 6')
    A(f's_sub_u32 s{sT0}, s{sT0}, s{sT1}')
    A(f's_add_u32 s{dst}, s{sT0}, 16')
    A(f's_cmp_lt_u32 s{dst}, 80')
    A(f's_cselect_b32 s{dst}, s{dst}, 0')
    A(f's_lshl_b32 s{sT1}, s{sFIRST}, 3')
    A(f's_add_u32 s{sT1}, s{sT1}, 8')
    A(f's_cmp_ge_u32 s{dst}, s{sT1}')
    A(f's_cselect_b32 s{dst}, s{dst}, 0')
A(f's_cmp_eq_u32 s{sW}, 2')
A.sprinkle = None
A(f's_cselect_b32 s{sT4}, s{sS0}, s{sS1}')
A(f's_cselect_b32 s{sTOK}, 0, 1')
A(f's_bitcmp1_b32 s{sW}, 0')
A(f's_cselect_b32 s{sT4}, 0, s{sT4}')
rw = V.take(144, 4); rc = V.take(148, 4); vc = V.take(152, 16); dfl = V.take(168, 2); vRw = V.take(170); vDf = V.take(171)
df_issue = lambda: A(f'buffer_load_dwordx2 {vr(dfl,2)}, v{vDf}, {srd(SRD_WS)}, s{aX1Fp} offen offset:256 sc1')
bump = [f'v_mov_b32 v{vXs}, 0x40000000', f'v_and_b32 v{vDf}, 56, v{vL8}',
        f'v_lshrrev_b32 v{vRw}, 3, v{vL}', f'v_mul_u32_u24 v{vRw}, {HST - 128}, v{vRw}', f'v_add_u32 v{vRw}, v{vRw}, v{vL16}', f'v_add_u32 v{vRw}, {L_HA + 1024}, v{vRw}']
for a_, d_ in ((aFLp, 1 << 14), (aFLs, 1 << 14), (aSTp, 1 << 18), (aSTs, 1 << 18), (aKEYs, 1 << 13), (aKEYp, 1 << 13),
               (aCANDs, 1 << 18), (aCANDb, 1 << 18), (aYPs, 86 * 4096), (aYPb, 86 * 4096)):
    bump.append(f's_add_u32 s{a_}, s{a_}, {d_}')
PS = {0: 4, 1: 20}
for tok, sl in ((0, sS0), (1, sS1)):
    p = PS[tok]
    bump += [f's_and_b32 s{p+5}, s{sl}, 15', f's_lshl_b32 s{p}, 0x00010001, s{p+5}', f's_mov_b32 s{p+1}, s{p}',
             f's_lshr_b32 s{p+4}, s{sl}, 4', f's_lshl_b32 s{p+2}, s{p+4}, 2', f's_lshl_b32 s{p+4}, s{p+4}, 1',
             f's_sub_u32 s{p+3}, s{p+4}, 2', f's_min_u32 s{p+3}, s{p+3}, 7',
             f's_bfe_u32 s{p+6}, s{p+5}, 0x10001', f's_add_u32 s{p+4}, s{p+4}, s{p+6}',
             f's_and_b32 s{p+6}, s{p+5}, 12', f's_lshl_b32 s{p+6}, s{p+6}, 2', f's_lshl_b64 s[{p+6}:{p+7}], 0xffff, s{p+6}',
             f's_lshl_b32 s{p+5}, s{p+5}, 4', f's_lshl_b32 s{p+5}, 0xffff, s{p+5}']
for g_ in G:
    for x in g_: emit(x)
    for _ in range(3):
        if bump: A(bump.pop(0))
while bump: A(bump.pop(0))
df_issue()
A(f'ds_read2_b32 {vr(rc,2)}, v{vQ4} offset0:96 offset1:112')
A(f'ds_read2_b32 {vr(rc+2,2)}, v{vQ4} offset0:128 offset1:144')
for T in range(4): A(f'ds_read_b128 {vr(vc + 4 * T, 4)}, v{vG16} offset:{320 + 64 * (T + 1)}')
for b in fr: V.release(b, 16)
E = skip_unless([f's_cmp_eq_u32 s{sT4}, 0'])
A(f's_cmp_lt_u32 s{sT4}, 16')
A(f's_cselect_b32 s{sT1}, 2, 0')
A(f's_add_u32 s{sT0}, s{sTOK}, s{sT1}')
A(f's_lshl_b32 s{sT0}, s{sT0}, 10')
A(f's_add_u32 s{sT0}, s{sT0}, {WS_X2R}')
r_issue = lambda: A(f'buffer_load_dwordx4 {vr(rw,4)}, v{vL16}, {srd(SRD_WS)}, s{sT0} offen sc1')
r_issue()
A(f's_lshl_b32 s{sT1}, s{sTOK}, 7')
A(f'v_add_u32 v{t2}, s{sT1}, v{vRw}')
def r_check():
    A(f'v_max3_u32 v{t0}, v{rw}, v{rw+1}, v{rw+2}')
    A(f'ds_write_b128 v{t2}, {vr(rw,4)}')
    A(f'v_max_u32 v{t0}, v{t0}, v{rw+3}')
    A(f'v_cmp_eq_u32 vcc, -1, v{t0}')
    A('s_waitcnt lgkmcnt(0)')
repoll(r_issue, r_check, 'X2R')
endif(E, False)
A('s_waitcnt vmcnt(0) lgkmcnt(0)')
fine()
A('s_barrier')
fine()
xr = V.alloc(64, 2); hp_ = vc
def h_read(ks): return f'ds_read_b128 {vr(xr + 4*ks, 4)}, v{vH + (ks & 1)} offset:{(ks >> 1) * HST}'
def shadow():
    sh = []
    for T in range(4):
        sh += [f'v_mul_f32 v{accV+4*T+4+r}, v{accV+4*T+4+r}, v{vc+4*T+r}' for r in range(4)] + pack2(hV + 2 * T + 2, accV + 4 * T + 4)
    for T in range(4):
        sh += pack2(hQ(T), hQ(T))
        sh += [f'v_mul_f32 v{hK(T)+r}, v{hK(T)+r}, v{rc+T}' for r in range(4)] + pack2(hK(T), hK(T))
        sh += [f'v_mul_f32 v{mxc+2*T}, {hex(f2u(QSC))}, v{rc+T}']
    return sh
def halo_gemm(with_q, sh):
    hr = [h_read(ks) for ks in range(10, 16)]
    hr2 = [f'ds_read2_b32 {vr(hp_,2)}, v{vQ4} offset0:0 offset1:80', f'ds_read_b128 {vr(hp_+2,4)}, v{vG16}', f'ds_read_b128 {vr(hp_+6,4)}, v{vG16} offset:320']
    for ks in range(16):
        c = lambda x: '0' if ks == 0 else vr(x, 4)
        X = vr(xr + 4 * ks, 4)
        if ks == 0: A('s_waitcnt lgkmcnt(7)')
        if ks == 3: A('s_waitcnt lgkmcnt(3)')
        if ks == 9: A('s_waitcnt lgkmcnt(0)')
        M = [mf(vr(accK, 4), ar(aW(ks, 1), 4), X, c(accK)), mf(vr(accV, 4), X, ar(aW(ks, 2), 4), c(accV))]
        if with_q: M.append(mf(vr(accQ, 4), ar(aW(ks, 0), 4), X, c(accQ)))
        for n_, m_ in enumerate(M):
            A(m_)
            if n_ == 0 and hr: A(hr.pop(0))
            if n_ == 0 and ks >= 10 and hr2: A(hr2.pop(0))
            for _ in range(2):
                if sh: A(sh.pop(0))
    while sh: A(sh.pop(0))
    A('s_waitcnt lgkmcnt(0)')
A(f's_or_b32 s{sT0}, s{sS0}, s{sS1}')
A('s_cbranch_scc0 L_nofix')
nq = xr; rr = xr + 56; s12 = V.take(172, 4); pp = accV + 16
for tok in range(2): A(f'ds_read_b128 {vr(rr + 4 * tok, 4)}, v{vRw} offset:{128 * tok}')
for ks in range(10): A(h_read(ks))
for r in range(4): A(f'v_mov_b32 v{s12+r}, 0')
A('s_waitcnt lgkmcnt(10)')
for j in range(4):
    for tok in range(2):
        A(f'v_dot2c_f32_bf16 v{s12+2*tok}, v{rr+4*tok+j}, v{vOnes}')
        A(f'v_dot2c_f32_bf16 v{s12+2*tok+1}, v{rr+4*tok+j}, v{rr+4*tok+j}')
save = A.lines; A.lines = []
for r in range(2): A(f'v_permlane32_swap_b32 v{s12+r}, v{s12+2+r}')
for r in range(2): A(f'v_add_f32 v{s12+r}, v{s12+r}, v{s12+2+r}')
for sh_ in (8, 4, 2, 1):
    for r in range(2): A(f'v_add_f32_dpp v{s12+r}, v{s12+r}, v{s12+r} row_ror:{sh_} {DP}')
for r in range(2): A(f'v_mov_b32 v{s12+2+r}, v{s12+r}')
for r in range(2): A(f'v_permlane16_swap_b32 v{s12+r}, v{s12+2+r}')
for r in range(2): A(f'v_add_f32 v{s12+r}, v{s12+r}, v{s12+2+r}')
ln_params(s12, s12 + 1, rw, rw + 1, pp, pp + 1, t0)
A(f'v_xor_b32 v{pp}, 0x80000000, v{pp}')
A(f'v_mov_b32 v{pp+3}, v{pp+1}')
A(f'v_mov_b32 v{pp+2}, v{pp}')
for r in range(2): A(f'v_permlane32_swap_b32 v{pp+r}, v{pp+2+r}')
st_ = [l.text for l in A.lines if l.op != 's_nop']; A.lines = save
halo_gemm(True, shadow() + st_)
V.release(s12, 4)
stamp()
tag_check(dfl)
for tok in range(2):
    for r in range(4): A(f'v_mov_b32_dpp v{nq+10*tok+4+r}, v{accK+r} row_newbcast:{tok} {DP}')
    A(f'v_mov_b32 v{nq+10*tok+8}, v{accV+tok}')
    A(f'v_mov_b32 v{nq+10*tok+9}, v{accV+tok}')
norm_pk(-1, hp_, hp_ + 2, hp_ + 6)
for tok in range(2):
    A(f'v_permlane32_swap_b32 v{nq+10*tok+8}, v{nq+10*tok+9}')
for x in pack2(hK(-1), hK(-1)) + pack2(hV, accV): A(x)
for tok, sl in ((0, sS0), (1, sS1)):
    E = skip_unless([f's_cmp_eq_u32 s{sl}, 0'])
    n_ = nq + 10 * tok; p_ = pp + 2 * tok
    for r in range(4): A(f'v_mov_b32_dpp v{n_+r}, v{accQ+r} row_newbcast:{tok} {DP}')
    for h in range(2):
        A(f'v_pk_fma_f32 {vr(n_+4+2*h,2)}, {vr(csK+2*h,2)}, {vr(p_,2)}, {vr(n_+4+2*h,2)} op_sel_hi:[1,0,1]')
        A(f'v_pk_fma_f32 {vr(n_+2*h,2)}, {vr(csQ+2*h,2)}, {vr(p_,2)}, {vr(n_+2*h,2)} op_sel_hi:[1,0,1]')
    A(f'v_fma_f32 v{n_+8}, v{csV}, v{p_}, v{n_+8}')
    for h in range(2):
        A(f'v_pk_mul_f32 {vr(n_+4+2*h,2)}, {vr(n_+4+2*h,2)}, {vr(p_,2)} op_sel:[0,1] op_sel_hi:[1,1]')
    A(f'v_mul_f32 v{n_+8}, v{n_+8}, v{p_+1}')
    for x in pack2(n_, n_) + pack2(n_ + 4, n_ + 4): A(x)
    A(f'v_cvt_pk_bf16_f32 v{n_+8}, v{n_+8}, v{n_+8}')
    A(f'v_mul_f32 v{n_+9}, {hex(f2u(QSC))}, v{p_+1}')
    p = PS[tok]
    A(f's_mov_b64 exec, s[{p}:{p+1}]')
    A(f's_set_gpr_idx_on s{p+2}, gpr_idx(SRC2,DST)')
    for r in range(2): A(f'v_mov_b32 v{accQ+r}, v{n_+r}')
    for r in range(2): A(f'v_mov_b32 v{accK+r}, v{n_+4+r}')
    A(f's_set_gpr_idx_idx s{p+3}')
    A(f'v_mov_b32 v{mxc}, v{n_+9}')
    A(f's_set_gpr_idx_idx s{p+4}')
    A(f's_mov_b64 exec, s[{p+6}:{p+7}]')
    A(f'v_bfi_b32 v{hV}, s{p+5}, v{n_+8}, v{hV}')
    A('s_set_gpr_idx_off')
    A('s_mov_b64 exec, -1')
    endif(E, False)
A('s_branch L_fixed')
A.label('L_nofix')
for ks in range(10): A(h_read(ks))
sh = shadow()
for _ in range(6): A(sh.pop(0))
halo_gemm(False, sh)
stamp_n[0] -= 1; stamp()
tag_check(dfl)
norm_pk(-1, hp_, hp_ + 2, hp_ + 6)
for x in pack2(hK(-1), hK(-1)) + pack2(hV, accV): A(x)
A.label('L_fixed')
V.release(rw, 4); V.release(xr, 64); V.release(rc, 4); V.release(vc, 16); V.release(vRw)
A(f's_cbranch_vccz L_dfok')
poll(df_issue, lambda: tag_check(dfl), 'DF')
A.label('L_dfok')
V.release(dfl, 2); V.release(vDf)
stamp()
A(f's_mov_b32 s{sLAYER}, 1')
V.take(oP, 8)
attention([])
A('s_branch L_pub')
A.label('L_fin')
A(f's_or_b32 s{sT0}, s2, s{sW}')
A('s_cbranch_scc1 L_fin2')
A(f's_mov_b32 s{sT1}, {WS_EPOCH}')
A('s_mov_b64 exec, 1')
A(f'buffer_store_dword v{tg}, v{vL16}, {srd(SRD_WS)}, s{sT1} offen')
A('s_mov_b64 exec, -1')
A.label('L_fin2')
if 'wb' in OPT:
    A(f's_lshl_b32 s{sT0}, s{sI}, 2')
    A(f's_add_u32 s{sT0}, s{sT0}, s{sW}')
    A(f's_lshl_b32 s{sT1}, s{sOWN}, 8')
    A(f's_add_u32 s{sT0}, s{sT0}, s{sT1}')
    A(f's_cmp_lg_u32 s{sT0}, {31 * 4 + 1}')
    A('s_cbranch_scc1 L_fin3')
    A('buffer_wbl2 sc1')
    A.label('L_fin3')
finish()
emit_far()
A.label('L_end')
A('s_endpgm')

hdr = f"""; @launch grid=(256,1,1) block=(256,1,1) lds={LDS_SIZE}
.amdgcn_target "amdgcn-amd-amdhsa--gfx950"
.text
.globl {NAME}_kernel
.p2align 8
.type {NAME}_kernel,@function
"""
tail = f"""
.section .rodata,"a"
.p2align 6
.amdhsa_kernel {NAME}_kernel
  .amdhsa_next_free_vgpr 512
  .amdhsa_next_free_sgpr 102
  .amdhsa_accum_offset 256
  .amdhsa_group_segment_fixed_size 0
  .amdhsa_kernarg_size 88
  .amdhsa_user_sgpr_count 2
  .amdhsa_user_sgpr_kernarg_segment_ptr 1
  .amdhsa_system_sgpr_workgroup_id_x 1
.end_amdhsa_kernel
"""
open(sys.argv[1], 'w').write(hdr + A.text() + tail)
print('vgpr high water', V.hw, 'nops added', A.nops_added, 'lines', len(A.lines))
```

```python
import sys, struct
from asmlib import *

NAME = "interleave_layers__sliding_local_dilated__moe_arch_mod__prompt"
STOP = None
STAMPS = False
FORCE_REMOTE = False
OPT = set(sys.argv[2:])
for a in sys.argv[2:]:
    if a.startswith('stop='): STOP = a[5:]
    if a == 'stamps': STAMPS = True
    if a == 'remote': FORCE_REMOTE = True

def f2u(x): return struct.unpack('<I', struct.pack('<f', x))[0]
MB = 1 << 20
WS_O = 0
WS_X1 = WS_O
WS_SENT = 4 * MB
WS_KEYS = WS_SENT + 16384
WS_HS = WS_SENT + 32768
WS_X2R = WS_SENT
WS_CAND = WS_SENT + 64 * 1024
WS_YP = WS_SENT + 576 * 1024
assert WS_YP + 2 * 86 * 4096 <= WS_SENT + 1280 * 1024
WS_ST = WS_SENT + 1280 * 1024
WS_HALO = 6 * MB
WS_ST0 = WS_HALO + 256 * 1024 + 128
WS_FL = WS_HALO + 320 * 1024
WS_X1F = WS_HALO + 352 * 1024
WS_HELLO = WS_HALO + 384 * 1024
WS_EPOCH = WS_HELLO + 8 * 4096
WS_FT = 10 * MB
WS_STAMP = 8 * MB
WS_SIZE = 16 * MB
L_A = 0
L_HA = 65536
HST = 1280
L_W = L_HA + 8 * HST
SLOT = {1: 0, 0: 24576, 2: 49152}
L_WO = L_W + 12288
def wo_off(ks): return 61440 if ks == 15 else ((ks - 12) * 4096 if ks >= 12 else (12288 + (ks - 6) * 4096 if ks >= 6 else 36864 + ks * 4096))
L_W15 = L_A
L_FT = L_A + 12288
L_WD = L_A + 24576
L_RED = L_W
L_ROW = L_W + 4096
L_XS = L_W + 8192
L_TAB = L_W + 3 * 24576 + 4096
L_CS = L_TAB + 640
L_H = L_CS + 2048
L_X2S = L_H + 64
L_KEY = L_X2S + 128
LDS_SIZE = 160 * 1024
assert L_KEY + 64 <= LDS_SIZE
SRD_X, SRD_W, SRD_WS, SRD_OUT, SRD_U, SRD_T = 4, 8, 12, 16, 20, 24
P = 28
sW, sSET, sI, sHG, sRB, sP, sJ0, sFIRST, sLOCAL, sLAYER = range(50, 60)
sT0, sT1, sT2, sT3, sT4, sT5 = range(60, 66)
sM0, sM1 = 66, 68
sRET = 70
sSTAMP = 72
sGUARD = 75
sTAG, sTAGB = 76, 77
sFS, sHASF, sK0, sK1, sTOK, sRHO, sKEY, sST = range(78, 86)
sAB, sAM, sWM, sOM = range(86, 90)
sSTB = 92
sU0, sU1, sU2, sU3 = range(94, 98)
stamp_n = [0]

A = Asm()
VP = Pool(1, 80)
V = Pool(80, 256)
vST = VP.alloc()
oP = V.take(80, 8); wra = V.take(88, 4)
fr = [V.take(136, 20), V.take(156, 20)]; vc = V.take(176, 20); srow = V.take(124, 8); s12 = V.take(132, 4)
def srd(n): return sr(n, 4)
DP = 'row_mask:0xf bank_mask:0xf'

PADAT = next((a[6:].split(',') for a in OPT if a.startswith('padat=')), None)
pad_n = [1]
def stamp(force=False):
    if PADAT:
        n = pad_n[0]; pad_n[0] += 1
        if n == int(PADAT[1]):
            L = A.newlabel('L_pad')
            A(f's_cmp_lg_u32 s{sLAYER}, {PADAT[0]}')
            A(f's_cbranch_scc1 {L}e')
            A.label(L)
            A(f's_memrealtime {sr(sSTAMP,2)}')
            A('s_waitcnt lgkmcnt(0)')
            A(f's_sub_u32 s{sSTAMP}, s{sSTAMP}, s90')
            A(f's_cmp_lt_u32 s{sSTAMP}, {PADAT[2]}')
            A(f's_cbranch_scc1 {L}')
            A.label(L + 'e')
    if not STAMPS: return
    n = stamp_n[0]; stamp_n[0] += 1
    if 'minstamp' in OPT and not force: return
    assert n < 32
    A(f'{"s_memtime" if "cyc" in sys.argv else "s_memrealtime"} {sr(sSTAMP,2)}')
    A(f's_lshl_b32 s{sST}, s{sLAYER}, 5')
    A(f's_add_u32 s{sST}, s{sST}, {n}')
    A('s_waitcnt lgkmcnt(0)')
    A(f's_mov_b32 m0, s{sST}')
    A('s_nop 0')
    A(f'v_writelane_b32 v{vST}, s{sSTAMP}, m0')

def mk_srd(d, ptr, size):
    A(f's_mov_b32 s{d}, s{ptr}')
    A(f's_and_b32 s{d+1}, s{ptr+1}, 0xffff')
    A(f's_mov_b32 s{d+2}, {size}')
    A(f's_mov_b32 s{d+3}, 0x20000')

def bf_round(dst, src):
    A(f'v_cvt_pk_bf16_f32 v{dst}, 0, v{src}')

def ln_params(s1, s2, mu, var, m, rs, t):
    A(f'v_mul_f32 v{mu}, {hex(f2u(1/512))}, v{s1}')
    A(f'v_mul_f32 v{var}, {hex(f2u(1/512))}, v{s2}')
    A(f'v_fma_f32 v{var}, -v{mu}, v{mu}, v{var}')
    A(f'v_max_f32 v{var}, 0, v{var}')
    round_params(mu, var, m, rs, t)

def round_params(mu, var, m, rs, t):
    bf_round(t, var)
    A(f'v_add_f32 v{t}, {hex(f2u(1e-5))}, v{t}')
    bf_round(t, t)
    A(f'v_sqrt_f32 v{t}, v{t}')
    bf_round(m, mu)
    bf_round(t, t)
    A(f'v_rcp_f32 v{rs}, v{t}')

def finish():
    if PAD:
        L = A.newlabel('L_pad')
        A.label(L)
        A(f's_memrealtime {sr(sSTAMP,2)}')
        A('s_waitcnt lgkmcnt(0)')
        A(f's_sub_u32 s{sSTAMP}, s{sSTAMP}, s90')
        A(f's_cmp_lt_u32 s{sSTAMP}, {PAD}')
        A(f's_cbranch_scc1 {L}')
    if STAMPS:
        stamp(True)
        A(f's_lshl_b32 s{sT0}, s2, 10')
        A(f's_add_u32 s{sT0}, s{sT0}, {WS_STAMP}')
        A(f'v_lshlrev_b32 v{t0}, 2, v0')
        A(f'buffer_store_dword v{vST}, v{t0}, {srd(SRD_WS)}, s{sT0} offen')
    A('s_endpgm')

def mf(d, a, b, c, k32=True):
    return f'v_mfma_f32_16x16x{32 if k32 else 16}_bf16 {d}, {a}, {b}, {c}'
def emit(x):
    if callable(x): x()
    elif isinstance(x, tuple): A(x[0], tag=x[1])
    else: A(x)

A.raw(f'{NAME}_kernel:')
A('s_cmp_ge_u32 s2, 256')
A('s_cbranch_scc1 L_end')
PAD = int(next((a[6:] for a in OPT if a.startswith('padto=')), '0'))
if PAD or PADAT: A('s_memrealtime s[90:91]')
if STAMPS: A(f'{"s_memtime" if "cyc" in sys.argv else "s_memrealtime"} s[90:91]')
A(f's_load_dwordx2 {sr(SRD_W,2)}, s[0:1], 8')
A(f's_load_dwordx2 {sr(SRD_X,2)}, s[0:1], 0')
P_X, P_W, P_WO, P_BX, P_WR, P_WG, P_WU, P_WD, P_OUT, P_DBG, P_WS = [P + 2 * i for i in range(11)]
vL = VP.alloc(); vQ = VP.alloc(); vG = VP.alloc(); vL16 = VP.alloc()
t0 = VP.alloc(); t1 = VP.alloc(); t2 = VP.alloc(); t3 = VP.alloc()
vDum = VP.alloc()
vXe = VP.alloc(); vXo = VP.alloc()
vR8 = V.take(93); vWo = V.take(92); vWd = V.alloc(); vSt = V.alloc()
A(f'v_lshrrev_b32 v{t0}, 6, v0')
A(f'v_lshrrev_b32 v{t1}, 3, v0')
A(f'v_readfirstlane_b32 s{sW}, v{t0}')
A(f'v_and_b32 v{t2}, 2, v{t1}')
A(f'v_and_b32 v{t0}, 1, v{t0}')
A(f'v_lshl_or_b32 v{t2}, v{t0}, 2, v{t2}')
A(f'v_and_b32 v{t3}, 7, v0')
A(f'v_xor_b32 v{t2}, v{t2}, v{t3}')
A(f's_bfe_u32 s{sHG}, s2, 0x30003')
A(f's_lshl_b32 s{sT0}, s{sHG}, 7')
A(f'v_lshl_add_u32 v{t2}, v{t2}, 4, s{sT0}')
A(f'v_mul_u32_u24 v{vWd}, 3072, v{t1}')
A(f'v_add_u32 v{vWd}, v{vWd}, v{t2}')
A(f's_mul_i32 s{sWM}, s{sW}, 3072')
A(f's_add_u32 s{sWM}, s{sWM}, {L_W}')
A(f's_mov_b32 s{SRD_W+2}, {512 * 3072}')
A(f's_mov_b32 s{SRD_W+3}, 0x20000')
A(f's_mov_b32 s{SRD_X+2}, {2 * MB}')
A(f's_mov_b32 s{SRD_X+3}, 0x20000')
A(f'v_lshl_add_u32 v{vWo}, v{t1}, 10, v{t2}')
A(f'v_bfe_u32 v{vG}, v0, 4, 2')
A(f'v_and_b32 v{vR8}, 7, v{t1}')
A(f'v_xor_b32 v{t2}, v{t3}, v{vG}')
A(f'v_lshlrev_b32 v{t2}, 4, v{t2}')
A(f'v_lshl_add_u32 v{vXe}, v{vR8}, 11, v{t2}')
A(f'v_xor_b32 v{vXo}, 64, v{vXe}')
A(f'v_add_u32 v{vXo}, {8 * 2048}, v{vXo}')
A(f's_and_b32 s{sSET}, s2, 7')
A(f's_lshr_b32 s{sT0}, s2, 6')
A(f's_lshl_b32 s{sRB}, s{sSET}, 2')
A(f's_add_u32 s{sRB}, s{sRB}, s{sT0}')
A(f's_and_b32 s{sJ0}, s{sRB}, 15')
A(f's_lshl_b32 s{sT4}, s{sJ0}, 17')
A(f's_and_b32 s{sT1}, s{sRB}, 16')
A(f's_lshl_b32 s{sT1}, s{sT1}, 6')
A(f's_add_u32 s{sT4}, s{sT4}, s{sT1}')
A(f's_lshl_b32 s{sAB}, s{sW}, 15')
A(f's_add_u32 s{sAB}, s{sAB}, s{sT4}')
A(f's_lshl_b32 s{sAM}, s{sW}, 11')
A(f's_mov_b32 s{sLAYER}, 0')
if STAMPS: A(f'v_mov_b32 v{vST}, 0')
A('s_waitcnt lgkmcnt(0)')
if STAMPS:
    A(f'v_writelane_b32 v{vST}, s90, 0'); stamp_n[0] = 1
stamp()
def stage_dma(s):
    H = []
    for ksl in range(2):
        ks = 2 * s + ksl
        H.append([f's_add_u32 m0, s{sAM}, {L_A + s * 8192 + ksl * 1024}',
                  f's_add_u32 s{sT3}, s{sAB}, {s * 128}',
                  (f'buffer_load_dwordx4 v{vXo if ksl else vXe}, {srd(SRD_X)}, s{sT3} offen{NTX if s == 0 else ""} lds', f'S{s}'),
                  (f's_sub_u32 m0, s{sWM}, {L_W - L_W15}' if ks == 15 else f's_add_u32 m0, s{sWM}, {SLOT[s % 3] + ksl * 12288}'),
                  f's_mov_b32 s{sT3}, {ks * 98304}'] +
                 [(f'buffer_load_dwordx4 v{vWd}, {srd(SRD_W)}, s{sT3} offen offset:{m * 1024} lds', f'S{s}') for m in range(3)])
    return H
NTX = ' nt' if 'ntx' in OPT else ''; NTP = ''
def halo_dma(j): return [f's_add_u32 m0, s{sT4}, {L_HA + 4 * j * HST}'] + ([f's_add_u32 s{sT5}, s{sT5}, 512'] if j else []) + \
                        [(f'buffer_load_dwordx4 v{vXo}, {srd(SRD_X)}, s{sT5} offen{NTX} lds', 'S2' if j else 'S0')]
g0 = []
for hh in stage_dma(0): g0 += [hh[:3], hh[3:6], hh[6:7], hh[7:8]]
for _ in range(2):
    for x in g0.pop(0): emit(x)
A(f's_load_dwordx16 s[{P}:{P+15}], s[0:1], 0')
A(f's_load_dwordx4 s[{P+16}:{P+19}], s[0:1], 64')
A(f's_load_dwordx2 s[{P+20}:{P+21}], s[0:1], 80')
vTw = V.alloc(); vTo = V.alloc()
A.sprinkle = (g0, 5, emit)
A(f'v_and_b32 v{vL}, 63, v0')
A(f'v_and_b32 v{vQ}, 15, v0')
A(f'v_lshlrev_b32 v{vL16}, 4, v{vL}')
A(f's_lshr_b32 s{sI}, s2, 3')
A(f's_lshr_b32 s{sP}, s{sRB}, 4')
A(f's_lshl_b32 s{sT2}, s{sHG}, 2')
A(f's_add_u32 s{sT2}, s{sT2}, s{sW}')
A(f's_lshl_b32 s{sT2}, s{sT2}, 12')
A(f's_add_u32 s{sT2}, s{sT2}, s{sT4}')
A(f'v_lshrrev_b32 v{t0}, 5, v{vL}')
A(f'v_and_b32 v{t1}, 31, v{vL}')
A(f'v_lshlrev_b32 v{t1}, 4, v{t1}')
A(f'v_lshl_add_u32 v{vSt}, v{t0}, 11, v{t1}')
A(f's_min_u32 s{sT5}, s{sJ0}, 1')
A(f's_xor_b32 s{sFIRST}, s{sT5}, 1')
A(f's_lshl_b32 s{sT5}, s{sT5}, 15')
A(f's_sub_u32 s{sT5}, s{sT4}, s{sT5}')
A(f's_lshl_b32 s{sT1}, s{sW}, 7')
A(f's_add_u32 s{sT5}, s{sT5}, s{sT1}')
A(f's_mul_i32 s{sT4}, s{sW}, {HST}')
A(f's_lshl_b32 s{sJ0}, s{sJ0}, 6')
A(f's_lshl_b32 s{sT0}, s2, 2')
A(f's_add_u32 s{sT0}, s{sT0}, s{sW}')
A(f's_mul_i32 s{sT1}, s{sT0}, {12 * 128}')
A(f's_lshl_b32 s{sT0}, s{sT0}, 9')
A(f'v_lshl_add_u32 v{vTw}, v{vL}, 7, s{sT1}')
A(f'v_lshl_add_u32 v{vTo}, v{vL}, 7, s{sT0}')
A(f's_lshl_b32 s{sU0}, s{sI}, 2')
A(f's_add_u32 s{sU0}, s{sU0}, s{sW}')
A(f's_lshl_b32 s{sT0}, s{sU0}, 10')
A(f'v_lshl_add_u32 v{t3}, v{vQ}, 17, s{sT0}')
A(f'v_cmp_lt_u32 vcc, 15, v{vL}')
A.sprinkle = None
assert not g0
for x in halo_dma(0): emit(x)
A(f's_sub_u32 s{sT0}, 384, s{SRD_W}')
A(f's_and_b32 s{sT0}, s{sT0}, 0x380')
A(f'v_add_u32 v{t0}, s{sT0}, v{t3}')
A(f'v_cndmask_b32 v{vTw}, v{vTw}, v{t0}, vcc')
A(f's_getpc_b64 {sr(sT0,2)}')
A.label('L_pc')
A(f's_lshl_b32 s{sU0}, s{sU0}, 8')
A(f'v_lshl_add_u32 v{t0}, v{vL}, 7, s{sU0}')
A(f'v_min_u32 v{t0}, L_end-L_pc, v{t0}')
A('s_mov_b64 exec, 3')
A(f'global_load_dword v{vDum}, v{t0}, {sr(sT0,2)}', tag='code')
A('s_mov_b64 exec, 0x0fff0fff')
A(f'buffer_load_dword v{vDum}, v{vTw}, {srd(SRD_W)}, 0 offen', tag='touch')
A('s_mov_b64 exec, -1')
A(f'buffer_load_dwordx4 {vr(srow,4)}, v{vSt}, {srd(SRD_X)}, s{sT2} offen{NTX}', tag='srow')
A(f'buffer_load_dwordx4 {vr(srow+4,4)}, v{vSt}, {srd(SRD_X)}, s{sT2} offen offset:512{NTX}', tag='srow')
A('s_waitcnt lgkmcnt(0)')
A(f's_add_u32 s{sT0}, s{P_WS}, {WS_EPOCH}')
A(f's_addc_u32 s{sT1}, s{P_WS+1}, 0')
A(f's_load_dword s{sTAG}, {sr(sT0,2)}, 0')
A(f's_sub_u32 s{sT0}, 384, s{P_WO}')
A(f's_and_b32 s{sT0}, s{sT0}, 0x380')
A(f'v_add_u32 v{t0}, s{sT0}, v{t3}')
A(f'v_cndmask_b32 v{vTo}, v{vTo}, v{t0}, vcc')
V.release(vSt); V.release(vTw)
tp = V.alloc(2, 2)
A(f'v_mov_b32 v{tp}, s{P_WR}')
A(f'v_mov_b32 v{tp+1}, s{P_WR+1}')
A(f'v_lshl_add_u32 v{tp}, v{vL}, 7, v{tp}')
pages = [(P_WS, 2 * MB - 128), (P_WS, 4 * MB), (P_WS, 6 * MB), (P_WS, 10 * MB), (P_WS, 12 * MB), (P_OUT, 0), (P_WG, 0), (P_WU, 0), (P_WD, 0)]
for n, (p_, off) in enumerate(pages):
    if off == 6 * MB:
        A(f's_lshl_b32 s{sT0}, s{sRB}, 3')
        A(f's_add_u32 s{sT0}, s{sT0}, s{sHG}')
        A(f's_lshl_b32 s{sT0}, s{sT0}, 7')
        A(f's_add_u32 s{sT0}, s{sT0}, {WS_ST0}')
        A(f's_add_u32 s{sT0}, s{p_}, s{sT0}')
        A(f's_addc_u32 s{sT1}, s{p_+1}, 0')
        A(f'v_writelane_b32 v{tp}, s{sT0}, {8 + n}')
        A(f'v_writelane_b32 v{tp+1}, s{sT1}, {8 + n}')
    elif off:
        A(f's_add_u32 s{sT0}, s{p_}, {off}')
        A(f's_addc_u32 s{sT1}, s{p_+1}, 0')
        A(f'v_writelane_b32 v{tp}, s{sT0}, {8 + n}')
        A(f'v_writelane_b32 v{tp+1}, s{sT1}, {8 + n}')
    else:
        A(f'v_writelane_b32 v{tp}, s{p_}, {8 + n}')
        A(f'v_writelane_b32 v{tp+1}, s{p_+1}, {8 + n}')
A(f's_add_u32 s{sT0}, s{P_WR}, 1024')
A(f's_cselect_b32 s{sT0}, {hex(((1 << len(pages)) - 1) << 8)}, {0}')
A(f's_cselect_b32 s{sT0}, s{sT0}, {hex((1 << (8 + len(pages))) - 1)}')
A(f's_lshl_b32 s{sT1}, 0x11111111, s{sW}')
A(f's_and_b32 exec_lo, s{sT0}, s{sT1}')
A('s_mov_b32 exec_hi, 0')
A(f'global_load_dword v{vDum}, {vr(tp,2)}, off sc1', tag='touch')
if True:
    A('s_mov_b64 exec, 0x000f000f')
    A(f'global_load_dword v{vDum}, v{vTo}, {sr(P_WO,2)}', tag='touch')
A('s_mov_b64 exec, -1')
V.release(vTo)
V.release(tp, 2)
mk_srd(SRD_WS, P_WS, WS_SIZE)
mk_srd(SRD_OUT, P_OUT, 2 * MB)
A(f's_cmp_lt_u32 s{sW}, 2')
A(f's_cselect_b64 {sr(SRD_T,2)}, {sr(P_WG,2)}, {sr(P_WU,2)}')
A(f's_and_b32 s{SRD_T+1}, s{SRD_T+1}, 0xffff')
A(f's_mov_b32 s{SRD_T+2}, {512 * 2752}')
A(f's_mov_b32 s{SRD_T+3}, 0x20000')
mk_srd(SRD_U, P_WD, 1376 * 1024)
A(f's_mul_i32 s{sFS}, s{sSET}, 11')
A(f's_add_u32 s{sFS}, s{sFS}, s{sI}')
A(f's_cmp_lt_u32 s{sI}, 11')
A(f's_cselect_b32 s{sHASF}, 1, 0')
A(f's_cmp_lt_u32 s{sFS}, 86')
A(f's_cselect_b32 s{sHASF}, s{sHASF}, 0')
vFp = V.alloc(3); vFd = vR8; vFr = VP.alloc(); vFs = VP.alloc()
A(f's_lshl_b32 s{sT0}, s{sI}, 1')
A(f's_and_b32 s{sT1}, s{sW}, 1')
A(f's_add_u32 s{sT0}, s{sT0}, s{sT1}')
A(f's_mul_i32 s{sT0}, s{sT0}, {8 * 2752}')
A(f's_mul_i32 s{sT1}, s{sSET}, 352')
A(f's_add_u32 s{sT0}, s{sT0}, s{sT1}')
vDt = V.alloc()
A(f's_lshl_b32 s{sT1}, s{sSET}, 5')
A(f's_add_u32 s{sT1}, s{sT1}, s{sI}')
A(f's_lshl_b32 s{sT1}, s{sT1}, 2')
A(f's_add_u32 s{sT1}, s{sT1}, s{sW}')
A(f's_mul_i32 s{sT1}, s{sT1}, {11 * 128}')
A(f'v_min_u32 v{t0}, 10, v{vL}')
A(f'v_lshl_add_u32 v{vDt}, v{t0}, 7, s{sT1}')
for n in range(3):
    A(f'v_add_u32 v{t0}, {64 * n}, v{vL}')
    A(f'v_mul_u32_u24 v{t1}, 171, v{t0}')
    A(f'v_lshrrev_b32 v{t1}, 12, v{t1}')
    A(f'v_mul_u32_u24 v{t1}, {2752 - 384}, v{t1}')
    A(f'v_lshl_add_u32 v{t0}, v{t0}, 4, s{sT0}')
    A(f'v_add_u32 v{vFp+n}, v{t0}, v{t1}')
A(f'v_bfe_u32 v{t1}, v{vL}, 2, 2')
A(f'v_lshl_add_u32 v{t0}, v{vG}, 3, v{t1}')
A(f'v_mul_u32_u24 v{vFr}, 384, v{t0}')
A(f'v_and_b32 v{t0}, 3, v{vL}')
A(f'v_lshl_add_u32 v{vFr}, v{t0}, 3, v{vFr}')
A(f's_lshl_b32 s{sT0}, s{sW}, 5')
A(f's_add_u32 s{sT0}, s{sT0}, {L_FT}')
A(f'v_add_u32 v{vFr}, s{sT0}, v{vFr}')
A(f'v_lshlrev_b32 v{vFs}, 4, v{t0}')
A(f'v_lshl_add_u32 v{vFs}, v{t1}, 13, v{vFs}')
A(f'v_and_b32 v{t0}, 1, v{vG}')
A(f'v_lshl_add_u32 v{vFs}, v{t0}, 8, v{vFs}')
A(f'v_lshrrev_b32 v{t0}, 1, v{vG}')
A(f'v_lshl_add_u32 v{vFs}, v{t0}, 6, v{vFs}')
A(f's_mul_i32 s{sT0}, s{sSET}, 12')
A(f's_add_u32 s{sT0}, s{sT0}, s{sW}')
A(f's_lshl_b32 s{sT0}, s{sT0}, 15')
A(f's_and_b32 s{sT1}, s{sI}, 15')
A(f's_lshl_b32 s{sT1}, s{sT1}, 9')
A(f's_add_u32 s{sT0}, s{sT0}, s{sT1}')
A(f's_lshr_b32 s{sT1}, s{sI}, 4')
A(f's_lshl_b32 s{sT1}, s{sT1}, 7')
A(f's_add_u32 s{sT0}, s{sT0}, s{sT1}')
A(f's_add_u32 s{sT0}, s{sT0}, {WS_FT}')
A(f'v_add_u32 v{vFs}, s{sT0}, v{vFs}')
A(f's_lshl_b32 s{sT1}, s{sFS}, 14')
A(f's_cmp_eq_u32 s{sHASF}, 1')
A(f's_cselect_b32 s{sT1}, s{sT1}, 0x40000000')
A(f's_lshl_b32 s{sT0}, s{sW}, 12')
A(f's_add_u32 s{sT1}, s{sT1}, s{sT0}')
A(f'v_add_u32 v{vFd}, s{sT1}, v{vL16}')
aFG, aFD = 192, 224
vOnes = VP.alloc(2, 2)
A(f'v_mov_b32 v{vOnes}, 0x3f803f80')
A(f'v_mov_b32 v{vOnes+1}, 0x3f803f80')
A(f'v_lshrrev_b32 v{t0}, 5, v0')
A(f'v_mul_u32_u24 v{t0}, {HST}, v{t0}')
A(f'v_and_b32 v{t1}, 31, v0')
A(f'v_lshl_add_u32 v{t0}, v{t1}, 2, v{t0}')
A(f'v_add_u32 v{t0}, {L_HA + 1024}, v{t0}')
A(f'ds_write2_b32 v{t0}, v{vOnes}, v{vOnes} offset0:0 offset1:32')
vQ4 = VP.alloc(); vG16 = VP.alloc(); vGm = VP.alloc()
A(f'v_lshlrev_b32 v{vQ4}, 2, v{vQ}')
A(f'v_add_u32 v{vQ4}, {L_TAB}, v{vQ4}')
A(f'v_lshlrev_b32 v{vG16}, 4, v{vG}')
A(f'v_add_u32 v{vG16}, {L_TAB}, v{vG16}')
A(f'v_mov_b32 v{t0}, 0')
A(f'ds_write2_b32 v{vQ4}, v{t0}, v{t0} offset0:0 offset1:80')
A(f'v_and_b32 v{t0}, 1, v{vG}')
A(f'v_lshlrev_b32 v{vGm}, 5, v{t0}')
A(f'v_lshrrev_b32 v{t1}, 1, v{vG}')
A(f'v_lshl_add_u32 v{vGm}, v{t1}, 4, v{vGm}')
vOst = VP.alloc()
A(f'v_lshlrev_b32 v{vOst}, 14, v{t0}')
A(f'v_lshl_add_u32 v{vOst}, v{t1}, 8, v{vOst}')
A(f'v_lshl_add_u32 v{vOst}, v{vQ}, 4, v{vOst}')
A(f's_lshl_b32 s{sT0}, s{sRB}, 16')
A(f's_lshl_b32 s{sT1}, s{sHG}, 11')
A(f's_add_u32 s{sT0}, s{sT0}, s{sT1}')
A(f's_lshl_b32 s{sT1}, s{sW}, 9')
A(f's_add_u32 s{sT0}, s{sT0}, s{sT1}')
A(f'v_add_u32 v{vOst}, s{sT0}, v{vOst}')
vA = VP.alloc(2); vH = VP.alloc(2)
A(f'v_lshrrev_b32 v{t0}, 1, v{vQ}')
A(f'v_xor_b32 v{t0}, v{vG}, v{t0}')
A(f'v_lshlrev_b32 v{t0}, 4, v{t0}')
A(f'v_lshl_add_u32 v{vA}, v{vQ}, 7, v{t0}')
A(f'v_and_b32 v{t1}, 1, v{vQ}')
A(f'v_lshlrev_b32 v{t1}, 7, v{t1}')
A(f'v_lshl_add_u32 v{t1}, v{vG}, 4, v{t1}')
A(f'v_add_u32 v{t1}, {L_HA + 1024}, v{t1}')
A(f'v_add_u32 v{t2}, {L_HA - 1024}, v{vA}')
A(f'v_cmp_lt_u32 vcc, 7, v{vQ}')
A(f'v_cndmask_b32 v{vH}, v{t1}, v{t2}, vcc')
A(f'v_xor_b32 v{vA+1}, 64, v{vA}')
A(f'v_xor_b32 v{vH+1}, 64, v{vH}')
vWr = V.alloc(); vBo = VP.alloc(4)
A(f'v_bfe_u32 v{t0}, v{vL}, 2, 2')
A(f'v_and_b32 v{t2}, 3, v{vL}')
A(f'v_lshlrev_b32 v{t2}, 3, v{t2}')
A(f'v_lshl_add_u32 v{t2}, v{t0}, 7, v{t2}')
A(f'v_lshrrev_b32 v{t0}, 1, v{t0}')
A(f'v_and_b32 v{t1}, 1, v{vG}')
A(f'v_lshl_or_b32 v{t0}, v{t1}, 1, v{t0}')
A(f'v_lshl_add_u32 v{t2}, v{t0}, 5, v{t2}')
A(f'v_lshl_add_u32 v{vBo}, v{vG}, 10, v{t2}')
A(f'v_add_u32 v{vBo}, {L_WO}, v{vBo}')
assert L_WO % 128 == 0 and L_W % 128 == 0
for t in range(1, 4): A(f'v_xor_b32 v{vBo+t}, {t << 5}, v{vBo}')
A(f's_lshl_b32 s{sT0}, s{sW}, 5')
A(f'v_xor_b32 v{t2}, s{sT0}, v{t2}')
A(f'v_mul_u32_u24 v{vWr}, 3072, v{vG}')
vWr15 = V.alloc()
A(f'v_add_u32 v{vWr15}, v{vWr}, v{t2}')
A(f'v_add_u32 v{vWr}, {L_W}, v{vWr15}')
assert L_W15 == 0
A(f's_lshl_b32 s{sOM}, s{sW}, 10')
A(f's_add_u32 s{sOM}, s{sOM}, {L_WO}')
vBP = VP.alloc(4, 2); vBC = VP.alloc(4, 2); vBP0 = VP.alloc(4, 2); vMP = VP.alloc(2)
A(f'v_lshlrev_b32 v{t0}, 2, v{vG}')
A(f'v_sub_u32 v{t0}, v{vQ}, v{t0}')
A(f'v_mov_b32 v{t2}, 0xff800000')
A(f's_cmp_eq_u32 s{sFIRST}, 1')
A(f's_cselect_b64 {sr(sM0,2)}, 0, -1')
for r in range(4):
    A(f'v_add_u32 v{t1}, {-r}, v{t0}')
    A(f'v_cmp_lt_u32 vcc, 7, v{t1}')
    A(f'v_cndmask_b32 v{vBC+r}, 0, v{t2}, vcc')
    A(f'v_cmp_lt_i32 vcc, -9, v{t1}')
    A(f'v_cndmask_b32 v{vBP+r}, 0, v{t2}, vcc')
    A(f'v_cndmask_b32 v{vBP0+r}, v{t2}, v{vBP+r}, {sr(sM0,2)}')
    A(f'v_mov_b32 v{t3}, {hex(0xffff0000 if r & 1 else 0xffff)}')
    if r & 1:
        A(f'v_cndmask_b32 v{t3}, v{t3}, 0, vcc')
        A(f'v_or_b32 v{vMP + (r >> 1)}, v{vMP + (r >> 1)}, v{t3}')
    else:
        A(f'v_cndmask_b32 v{vMP + (r >> 1)}, v{t3}, 0, vcc')
A(f's_mov_b32 s{sM0}, 0xaaaaaaaa')
A(f's_mov_b32 s{sM0+1}, 0xaaaaaaaa')
A(f's_mov_b32 s{sM1}, 0xcccccccc')
A(f's_mov_b32 s{sM1+1}, 0xcccccccc')
vS0 = V.alloc(); vS0w = V.alloc(); vPf = V.alloc(); vS4 = V.alloc(4, 2)
A(f's_lshl_b32 s{sT0}, s{sRB}, 10')
A(f's_add_u32 s{sT0}, s{sT0}, {WS_ST0 - 128}')
A(f'v_lshl_add_u32 v{vS0}, v0, 4, s{sT0}')
A(f's_lshl_b32 s{sT0}, s{sSET}, 12')
A(f's_add_u32 s{sT0}, s{sT0}, {WS_ST0}')
A(f'v_and_b32 v{t0}, 31, v{vL}')
A(f'v_lshl_add_u32 v{t0}, v{t0}, 7, s{sT0}')
A(f'v_cmp_le_u32 vcc, 128, v0')
A(f'v_cndmask_b32 v{vS0}, v{vS0}, v{t0}, vcc')
A(f'v_lshlrev_b32 v{vS0w}, 2, v0')
A(f'v_add_u32 v{vS0w}, {L_TAB + 32}, v{vS0w}')
vPf2 = V.alloc()
A(f's_mul_i32 s{sT0}, s2, 5120')
A(f's_add_u32 s{sT0}, s{sT0}, {WS_SENT}')
A(f'v_lshl_add_u32 v{vPf}, v0, 4, s{sT0}')
A(f's_lshl_b32 s{sT1}, s{sW}, 8')
A(f's_add_u32 s{sT0}, s{sT0}, s{sT1}')
A(f's_add_u32 s{sT0}, s{sT0}, 4096')
A(f'v_lshl_add_u32 v{t0}, v{vQ}, 4, s{sT0}')
A(f's_lshl_b32 s{sSTB}, s{sRB}, 2')
A(f's_add_u32 s{sSTB}, s{sSTB}, s{sW}')
A(f'v_mov_b32 v{t1}, 0x40000000')
A(f'v_cmp_gt_u32 vcc, 16, v{vL}')
A(f'v_cndmask_b32 v{vPf2}, v{t1}, v{t0}, vcc')
vTs = V.alloc()
A(f'v_mov_b32 v{vTs}, v{t1}')
if 'olocal' in OPT:
    A(f's_lshl_b32 s{sT0}, s{sI}, 2')
    A(f's_add_u32 s{sT0}, s{sT0}, s{sW}')
    A(f's_lshl_b32 s{sT0}, s{sT0}, 11')
    A(f's_lshl_b32 s{sT1}, s{sSET}, 18')
    A(f's_add_u32 s{sT0}, s{sT0}, s{sT1}')
    A(f'v_lshl_add_u32 v{t0}, v{vL}, 7, s{sT0}')
    A(f'v_cndmask_b32 v{vTs}, v{t1}, v{t0}, vcc')
A(f's_lshl_b32 s{sT0}, s{sSTB}, 11')
A(f's_lshl_b32 s{sT1}, s{sHG}, 8')
A(f's_add_u32 s{sT0}, s{sT0}, s{sT1}')
for n, off in enumerate((0, 128, 1 << 18, (1 << 18) + 128)):
    A(f's_add_u32 s{sT1}, s{sT0}, {WS_ST + off}')
    A(f'v_writelane_b32 v{vTs}, s{sT1}, {16 + n}')
A(f's_lshl_b32 s{sT0}, s{sRB}, 9')
for n, off in enumerate((0, 128, 1 << 14, (1 << 14) + 128)):
    A(f's_add_u32 s{sT1}, s{sT0}, {WS_FL + off}')
    A(f'v_writelane_b32 v{vTs}, s{sT1}, {20 + n}')
for n, off in enumerate((0, 128, 256)):
    A(f's_add_u32 s{sT1}, s{sT0}, {WS_X1F + off}')
    A(f'v_writelane_b32 v{vTs}, s{sT1}, {27 + n}')
for r in range(4): A(f'v_mov_b32 v{vS4+r}, -1')
if 'tsearly' in OPT: A(f'buffer_load_dword v{vDum}, v{vTs}, {srd(SRD_WS)}, 0 offen sc1', tag='to')
gr = V.alloc(4, 2)
A(f'v_mov_b32 v{s12}, 0')
A(f'v_mov_b32 v{s12+1}, 0')
A(f's_getreg_b32 s{sTAGB}, hwreg(HW_REG_XCC_ID)')
A(f's_and_b32 s{sTAGB}, s{sTAGB}, 15')
A(f's_lshl_b32 s{sT2}, s{sRB}, 3')
A(f's_add_u32 s{sT2}, s{sT2}, s{sHG}')
A(f's_lshl_b32 s{sT2}, s{sT2}, 2')
A(f's_add_u32 s{sT2}, s{sT2}, s{sW}')
A(f's_lshl_b32 s{sT2}, s{sT2}, 5')
A(f's_add_u32 s{sT2}, s{sT2}, {WS_ST0}')
A(f'v_lshrrev_b32 v{t1}, 1, v{vL}')
g1 = []; g2 = []
for hh in stage_dma(1): g1 += [hh[:3], hh[3:6], hh[6:7], hh[7:8]]
for hh in stage_dma(2): g2 += [hh[:3], hh[3:6], hh[6:7], hh[7:8]]
g2.append(halo_dma(1))
def dots():
    A.wait_vm('srow')
    for j in range(8):
        A(f'v_dot2c_f32_bf16 v{s12}, v{srow+j}, v{vOnes}')
        A(f'v_dot2c_f32_bf16 v{s12+1}, v{srow+j}, v{srow+j}')
if 's0old' in OPT:
    A.wait_vm('srow', 'lgkmcnt(0)')
    stamp()
    A.sprinkle = (g1, 2 if 'stlate' in OPT else 4, emit)
    for j in range(8):
        A(f'v_dot2c_f32_bf16 v{s12}, v{srow+j}, v{vOnes}')
        A(f'v_dot2c_f32_bf16 v{s12+1}, v{srow+j}, v{srow+j}')
else:
    OPT.add('stlate')
    A.wait_vm('S0')
    stamp()
if 'stlate' in OPT:
    A.sprinkle = None
    for g_ in g1:
        for x in g_: emit(x)
    save = A.lines; vmsave = list(A.vm); A.lines = []
    A(f's_mul_i32 s{sTAG}, s{sTAG}, 0x9e3779b1')
    A(f's_add_u32 s{sTAG}, s{sTAG}, 0x7f4a7c15')
    A(f's_mul_i32 s{sT0}, s{sTAG}, 0x85ebca6b')
    for sh in (8, 4, 2, 1):
        for r in range(2): A(f'v_add_f32_dpp v{s12+r}, v{s12+r}, v{s12+r} row_ror:{sh} {DP}')
        if sh == 8: A(f's_brev_b32 s{sT0}, s{sT0}')
        if sh == 4: A(f's_and_b32 s{sT0}, s{sT0}, 0xfffffff0')
        if sh == 2: A(f's_or_b32 s{sTAGB}, s{sTAGB}, s{sT0}')
    for r in range(2): A(f'v_mov_b32 v{s12+2+r}, v{s12+r}')
    A(f'v_mov_b32 v{gr+2}, s{sTAG}')
    for r in range(2): A(f'v_permlane16_swap_b32 v{s12+r}, v{s12+2+r}')
    for r in range(2): A(f'v_add_f32 v{s12+r}, v{s12+r}, v{s12+2+r}')
    ln_params(s12, s12 + 1, s12 + 2, s12 + 3, gr, gr + 1, t0)
    A(f'v_xor_b32 v{gr}, 0x80000000, v{gr}')
    A(f'v_mov_b32 v{gr+3}, s{sTAGB}')
    A('s_mov_b32 exec_lo, 1')
    A('s_mov_b32 exec_hi, 1')
    A(f'buffer_store_dwordx4 {vr(gr,4)}, v{t1}, {srd(SRD_WS)}, s{sT2} offen sc1', tag='st0')
    A('s_mov_b64 exec, -1')
    st_lines = [l.text for l in A.lines if l.op != 's_nop']; A.lines = save; A.vm = vmsave
else:
    A(f's_mul_i32 s{sTAG}, s{sTAG}, 0x9e3779b1')
    A(f's_add_u32 s{sTAG}, s{sTAG}, 0x7f4a7c15')
    A(f's_mul_i32 s{sT0}, s{sTAG}, 0x85ebca6b')
    for sh in (8, 4, 2, 1):
        for r in range(2): A(f'v_add_f32_dpp v{s12+r}, v{s12+r}, v{s12+r} row_ror:{sh} {DP}')
        if sh == 8: A(f's_brev_b32 s{sT0}, s{sT0}')
        if sh == 4: A(f's_and_b32 s{sT0}, s{sT0}, 0xfffffff0')
        if sh == 2: A(f's_or_b32 s{sTAGB}, s{sTAGB}, s{sT0}')
    for r in range(2): A(f'v_mov_b32 v{s12+2+r}, v{s12+r}')
    A(f'v_mov_b32 v{gr+2}, s{sTAG}')
    for r in range(2): A(f'v_permlane16_swap_b32 v{s12+r}, v{s12+2+r}')
    for r in range(2): A(f'v_add_f32 v{s12+r}, v{s12+r}, v{s12+2+r}')
    ln_params(s12, s12 + 1, s12 + 2, s12 + 3, gr, gr + 1, t0)
    A(f'v_xor_b32 v{gr}, 0x80000000, v{gr}')
    A(f'v_mov_b32 v{gr+3}, s{sTAGB}')
    A.sprinkle = None
    assert not g1
    A('s_mov_b32 exec_lo, 1')
    A('s_mov_b32 exec_hi, 1')
    A(f'buffer_store_dwordx4 {vr(gr,4)}, v{t1}, {srd(SRD_WS)}, s{sT2} offen sc1', tag='st0')
    A('s_mov_b64 exec, -1')

accQ = V.take(196, 20); accK = V.take(216, 20); accV = V.take(236, 20)
xP = VP.alloc(8, 2)
aux = VP.alloc(8, 2)
vSW = VP.alloc()
def aW(ks, m): return (ks * 3 + m) * 4
def x_reads(ks, b):
    u = ks & 1; kc = ks >> 1
    return [f'ds_read_b128 {vr(b, 4)}, v{vH+u} offset:{kc * HST}'] + \
           [f'ds_read_b128 {vr(b + 4 + 4 * T, 4)}, v{vA+u} offset:{(kc * 8 + 2 * T) * 1024}' for T in range(4)]
def p1_reads(ks):
    so = SLOT[(ks >> 1) % 3] + (ks & 1) * 12288
    if ks == 15: so = 0
    W_ = [f'ds_read_b64_tr_b16 {ar(aW(ks, m) + 2 * h, 2)}, v{vWr15 if ks == 15 else vWr} offset:{so + m * 1024 + h * 512}' for m in range(3) for h in range(2)]
    X_ = x_reads(ks, fr[ks & 1])
    return W_[:2] + X_[:1] + W_[2:] + X_[1:]
def p1_mfmas(ks):
    b = fr[ks & 1]; L = []
    c = lambda x: '0' if ks == 0 else vr(x, 4)
    for T in range(5):
        X = vr(b + 4 * T, 4)
        L.append(mf(vr(accQ + 4 * T, 4), ar(aW(ks, 0), 4), X, c(accQ + 4 * T)))
        L.append(mf(vr(accK + 4 * T, 4), ar(aW(ks, 1), 4), X, c(accK + 4 * T)))
        L.append(mf(vr(accV + 4 * T, 4), X, ar(aW(ks, 2), 4), c(accV + 4 * T)))
    return L
def wo_dma(kss):
    L = []
    for ks in kss:
        L += [f's_add_u32 m0, s{sOM}, {wo_off(ks)}', f's_mov_b32 s{sT3}, {ks * 32768}',
              (f'buffer_load_dwordx4 v{vWo}, {srd(SRD_W)}, s{sT3} offen lds', 'woa' if ks < 4 else 'wo')]
    return L
def hello():
    A('s_mov_b64 exec, 1')
    A(f'buffer_store_dwordx2 {vr(gr+2,2)}, v{vPf}, {srd(SRD_WS)}, s{sU2} offen sc1')
    A('s_mov_b64 exec, -1')
def srd_lines(d, ptr, size):
    return [f's_mov_b32 s{d}, s{ptr}', f's_and_b32 s{d+1}, s{ptr+1}, 0xffff', f's_mov_b32 s{d+2}, {size}', f's_mov_b32 s{d+3}, 0x20000']
s0g = V.alloc(4, 2)
extra = {ks: [] for ks in range(16)}
for g_ in g2: extra[0] += g_
for s in range(5):
    H = stage_dma(s + 3); extra[2 * s + 1] += H[0]; extra[2 * s + 2] += H[1]
extra[11] += [(f'buffer_store_dwordx4 {vr(vS4,4)}, v{vPf}, {srd(SRD_WS)}, 0 offen sc1{NTP}', 'pre'),
              (f'buffer_store_dwordx4 {vr(vS4,4)}, v{vPf2}, {srd(SRD_WS)}, 0 offen sc1{NTP}', 'pre')]
extra[11] = [(f'buffer_load_dwordx4 {vr(s0g,4)}, v{vS0}, {srd(SRD_WS)}, 0 offen sc1', 's0g')] + extra[11]
extra[12] += [f's_lshl_b32 s{sU2}, s{sSET}, 9', f's_add_u32 s{sU2}, s{sU2}, s{sI}', f's_lshl_b32 s{sU2}, s{sU2}, 3',
              f's_add_u32 s{sU2}, s{sU2}, {WS_HELLO}', f's_lshl_b32 s{sT0}, s{sW}, 30', f'v_mov_b32 v{vPf}, s{sT0}']
if 'stlate' in OPT:
    tailn = st_lines[-4:]; st_lines = st_lines[:-4]
    nh = len(st_lines) // 2
    valu_extra = {1: st_lines[:nh], 2: st_lines[nh:]}
    extra[3] = [lambda: [A(x) for x in tailn]] + extra[3]
else: valu_extra = {}
vRs = V.alloc(2)
def res_read(early):
    def f():
        L = A.newlabel('L_res')
        A(f's_cmp_lt_u32 s{sHG}, 5')
        A(f's_cbranch_scc{0 if early else 1} {L}')
        A(f'ds_read_b128 {vr(xP,4)}, v{vRs}')
        A(f'ds_read_b128 {vr(xP+4,4)}, v{vRs+1}')
        A.label(L)
    return f
extra[0] += [f'v_lshlrev_b32 v{t0}, 3, v{vQ}', f'v_and_b32 v{t0}, 0x70, v{t0}', f'v_xor_b32 v{t0}, v{t0}, v{vGm}',
             f'v_lshl_add_u32 v{t0}, v{vQ}, 7, v{t0}', f's_lshl_b32 s{sT0}, s{sHG}, 13', f's_add_u32 s{sT0}, s{sT0}, s{sAM}',
             f'v_add_u32 v{vRs}, s{sT0}, v{t0}', f'v_xor_b32 v{vRs+1}, 64, v{vRs}']
extra[8] += [res_read(True)]
NTF = NTD = '' if 'nont' in OPT else ' nt'
ft_dma = []
for n in range(3):
    ft_dma += [f's_sub_u32 m0, s{sWM}, {L_W - L_FT - n * 1024}', (f'buffer_load_dwordx4 v{vFp+n}, {srd(SRD_T)}, 0 offen{NTF} lds', 'ft')]
wd_dma = [f's_lshl_b32 s{sT0}, s{sW}, 12', f's_add_u32 m0, s{sT0}, {L_WD}'] + \
         [(f'buffer_load_dwordx4 v{vFd}, {srd(SRD_U)}, 0 offen offset:{f * 1024}{NTD} lds', 'wd') for f in range(4)]
extra[11] += srd_lines(SRD_W, P_WO, 512 * 1024)
aux_ld = [f's_lshl_b32 s{sT0}, s{sHG}, 7', f'buffer_load_dwordx4 {vr(aux,4)}, v{vGm}, {srd(SRD_X)}, s{sT0} offen',
          f'buffer_load_dwordx4 {vr(aux+4,4)}, v{vGm}, {srd(SRD_X)}, s{sT0} offen offset:64',
          f'buffer_load_dwordx4 {vr(wra,4)}, v{vL16}, {srd(SRD_X)}, 0 offen']
wd_touch = [(f'buffer_load_dword v{vDum}, v{vDt}, {srd(SRD_U)}, 0 offen', 'to')]
if 'wdnew' not in OPT and 'lean' not in OPT and 'lean2' not in OPT:
    extra[11] += wo_dma([0]); extra[12] += wo_dma([1, 2, 3, 4]); extra[13] += wo_dma([5, 12, 13, 14]); extra[14] += wo_dma([15]) + ft_dma; extra[15] += wd_dma
    wo_rest = [6, 7, 8, 9, 10, 11]; wd_late = []
elif 'wdnew' in OPT and 'c11' in OPT:
    extra[11] += ft_dma; extra[12] += wd_dma
    wo_rest = list(range(16)); wd_late = []
elif 'wdnew' in OPT and 'c12' in OPT:
    extra[11] += wo_dma([0]); extra[12] += wo_dma([1, 2, 3]) + ft_dma[:2]; extra[13] += ft_dma[2:] + wd_dma
    wo_rest = [4, 5, 6, 7, 8, 9, 10, 11, 12, 13, 14, 15]; wd_late = []
elif 'wdnew' in OPT and 'c13' in OPT:
    extra[11] += wo_dma([0]); extra[12] += wo_dma([1, 2, 3, 4]); extra[13] += wo_dma([5]) + ft_dma; extra[14] += wd_dma
    wo_rest = [6, 7, 8, 9, 10, 11, 12, 13, 14, 15]; wd_late = []
elif 'lean' in OPT:
    extra[12] += wo_dma([0, 1, 2]); extra[13] += wo_dma([3, 4, 5]); extra[14] += wd_touch + ft_dma
    wo_rest = [6, 7, 8, 9, 10, 11, 12, 13, 14, 15]; wd_late = wd_dma
elif 'lean2' in OPT:
    extra[12] += wo_dma([0, 1, 2]); extra[13] += wo_dma([3, 4, 5]); extra[14] += wo_dma([6, 7, 8]); extra[15] += wd_touch + ft_dma
    wo_rest = [9, 10, 11, 12, 13, 14, 15]; wd_late = wd_dma
else:
    extra[11] += wo_dma([0]); extra[12] += wo_dma([1, 2, 3, 4]); extra[13] += wo_dma([5, 12, 13, 14]); extra[14] += wo_dma([15]) + wd_touch + ft_dma
    wo_rest = [6, 7, 8, 9, 10, 11]; wd_late = wd_dma
extra[12] += srd_lines(SRD_X, P_WR, 1024)
TSM = next((' ' + a[4:].replace('+', ' ') for a in OPT if a.startswith('tsm=')), ' sc1')
KTS = int(next((a[4:] for a in OPT if a.startswith('kts=')), '14'))
if 'tsearly' not in OPT: extra[KTS] += [(f'buffer_load_dword v{vDum}, v{vTs}, {srd(SRD_WS)}, 0 offen{TSM}', 'to')]
extra[15] += [res_read(False)]
csQ = VP.alloc(4, 2); csK = VP.alloc(4, 2); csV = VP.alloc(2, 2)
far2 = []
def s0_check():
    A.wait_vm('s0g')
    A.label('L_s0')
    A(f'v_xor_b32 v{t0}, s{sTAG}, v{s0g+2}')
    A(f'v_xor_b32 v{t1}, s{sTAGB}, v{s0g+3}')
    A(f'v_lshrrev_b32 v{t3}, 4, v{t1}')
    A(f'v_or_b32 v{t0}, v{t0}, v{t3}')
    A(f'v_cmp_ne_u32 vcc, 0, v{t0}')
    A(f's_and_b64 vcc, vcc, {sr(sU0,2)}')
    A('s_cbranch_vccnz L_s0r')
    A.label('L_s0ok')
    A(f's_mov_b64 exec, {sr(sT4,2)}')
    A(f'ds_write2_b32 v{vS0w}, v{s0g}, v{s0g+1} offset0:0 offset1:80')
    A('s_mov_b64 exec, -1')
    A(f'ds_write_b32 v{vS0w}, v{t1} offset:{640 - 32}')
far2 += ['L_s0r:', f'buffer_load_dwordx4 {vr(s0g,4)}, v{vS0}, {srd(SRD_WS)}, 0 offen sc1', 's_waitcnt vmcnt(0)',
         f's_sub_u32 s{sGUARD}, s{sGUARD}, 1', 's_cbranch_scc0 L_s0', 's_branch L_s0ok']
def s0_masks():
    A(f's_cmp_eq_u32 s{sW}, 2')
    A(f's_cselect_b64 {sr(sU0,2)}, -1, {sr(sT4,2)}')
valu_extra[13] = [f's_lshl_b32 s{sT1}, s{sFIRST}, 3', f'v_subrev_u32 v{t2}, s{sT1}, v0', f's_sub_u32 s{sT1}, 72, s{sT1}',
                  f'v_cmp_gt_u32 {sr(sT4,2)}, s{sT1}, v{t2}', f's_mov_b32 s{sGUARD}, 20000', f'v_lshlrev_b32 v{t2}, 2, v{vL}',
                  f'v_add_u32 v{t2}, {L_CS + 512}, v{t2}', s0_masks]
extra[14] = [s0_check] + extra[14]
V.release(srow, 8); V.release(s12, 4)
rp = V.alloc(10, 2); vm = fr[0]
tab_reads = [f'ds_read_b32 v{t1}, v{t2}']
for T in range(5):
    tab_reads += [f'ds_read2_b32 {vr(rp + 2 * T, 2)}, v{vQ4} offset0:{16 * T} offset1:{80 + 16 * T}',
                  f'ds_read_b128 {vr(vm + 4 * T, 4)}, v{vG16} offset:{64 * T}',
                  f'ds_read_b128 {vr(vc + 4 * T, 4)}, v{vG16} offset:{320 + 64 * T}']
cs_lines = []
for r in range(4):
    cs_lines += [f'v_mov_b32_dpp v{csQ+r}, v{accQ+r} row_newbcast:0 {DP}', f'v_mov_b32_dpp v{csK+r}, v{accK+r} row_newbcast:0 {DP}']
cs_lines = [f'v_mov_b32 v{csV}, v{accV}', f'v_mov_b32 v{csV+1}, v{accV}'] + cs_lines + [f'v_permlane32_swap_b32 v{csV}, v{csV+1}']
def drop(L, key): return [x for x in L if not (isinstance(x, tuple) and x[1] == key)]
for key in ('pre', 'wo', 'ft', 'wd', 'to'):
    if 'x' + key in OPT:
        for ks in extra: extra[ks] = drop(extra[ks], key)
if 's0old' in OPT: A.wait_vm('S0', 'lgkmcnt(0)')
else: A('s_waitcnt lgkmcnt(0)')
A('s_barrier')
stamp()
for x in p1_reads(0): A(x)
for ks in range(16):
    A('s_waitcnt lgkmcnt(0)')
    if 'loopstamps' in OPT and ks % 2 == 0 and ks: stamp()
    M = p1_mfmas(ks)
    if ks == 1 and 's0old' not in OPT: dots()
    A(M[0])
    if ks & 1 and ks < 15:
        if not ('nodma' in OPT and ks > 1): A.wait_vm(f'S{(ks + 1) >> 1}')
        if 'nobar' not in OPT: A('s_barrier')
    if ks == 15:
        A.wait_vm('woa')
        A('s_barrier')
    rd = p1_reads(ks + 1) if ks < 15 else tab_reads
    if 'nord' in OPT: rd = []
    if 'notr' in OPT: rd = [x for x in rd if '_tr_' not in x]
    if 'nob128' in OPT: rd = [x for x in rd if '_tr_' in x]
    ex = list(extra[ks])
    if 'nodma' in OPT: ex = [x for x in ex if not (isinstance(x, tuple) and x[0].endswith(' lds'))]
    isvm = lambda x: callable(x) or (x[0] if isinstance(x, tuple) else x).startswith('buffer_')
    nvm = sum(map(isvm, ex)); gaps = len(M) - 1
    slots = [int((j + 0.5) * gaps / nvm) for j in range(nvm)] if nvm else []
    groups = []; cur = []
    for x in ex:
        cur.append(x)
        if isvm(x): groups.append(cur); cur = []
    tail_ = cur
    place = {gi: [] for gi in range(gaps)}
    prev = -1
    for j, grp in enumerate(groups):
        lo = prev + 1 if prev + 1 <= slots[j] else slots[j]
        pre = grp[:-1]
        span = slots[j] - lo + 1
        for n_, x in enumerate(pre): place[lo + n_ * span // max(1, len(pre))].append(x)
        place[slots[j]].append(grp[-1]); prev = slots[j]
    lo = min(prev + 1, gaps - 1); span = gaps - lo
    for n_, x in enumerate(tail_): place[lo + n_ * span // len(tail_)].append(x)
    for mi, m in enumerate(M[1:]):
        A(m)
        if rd: A(rd.pop(0))
        for x in place[mi]: emit(x)
        ve = valu_extra.get(ks, [])
        for _ in range(-(-len(ve) // (gaps - mi))): emit(ve.pop(0))
        if ks == 15:
            if mi < 2: A(rd.pop(0))
            if mi >= 7:
                for _ in range(2):
                    if cs_lines: A(cs_lines.pop(0))
assert not cs_lines and not tab_reads
stamp()
V.release(fr[1], 20)
V.release(vWr); V.release(vWr15); V.release(vRs, 2); V.release(vWd); V.release(vDt); V.release(vPf2); V.release(vTs); V.release(vS4, 4)
V.release(s0g, 4); V.release(vS0); V.release(vS0w)
epi_ins = [[hello]] + ([] if 'v1' in OPT else [[]] * 8 + [aux_ld[:2], aux_ld[2:3], aux_ld[3:]])
SPIN = 20000
def fine():
    if 'fine' in OPT: stamp()
def poll(issue, check, name):
    L = A.newlabel('L_poll'); E = A.newlabel('L_ok')
    A(f's_mov_b32 s{sGUARD}, {SPIN}')
    A.label(L)
    issue()
    A.wait_vm0()
    check()
    A(f's_cbranch_vccz {E}')
    backoff(name)
    A(f's_sub_u32 s{sGUARD}, s{sGUARD}, 1')
    A(f's_cbranch_scc0 {L}')
    A.label(E)
def backoff(name):
    n = int(next((x.split('=')[1] for x in OPT if x.startswith('sl' + name + '=')), next((x[3:] for x in OPT if x.startswith('sl=')), '0')))
    if n: A(f's_sleep {n}')
def repoll(issue, check, name):
    L = A.newlabel('L_rp'); E = A.newlabel('L_ok')
    A(f's_mov_b32 s{sGUARD}, {SPIN}')
    A.label(L)
    A.wait_vm0()
    check()
    A(f's_cbranch_vccz {E}')
    backoff(name)
    issue(); A.vm = []
    A(f's_sub_u32 s{sGUARD}, s{sGUARD}, 1')
    A(f's_cbranch_scc0 {L}')
    A.label(E)
PD = int(next((x[3:] for x in OPT if x.startswith('pd=')), '3'))
def ppoll(issue, check, nld, depth=None, pre=0, gap=7):
    D = depth or PD
    L = A.newlabel('L_pp'); E = A.newlabel('L_ok')
    A(f's_mov_b32 s{sGUARD}, {SPIN}')
    for j in range(pre, D):
        if j and gap: A(f's_nop {gap}'); A(f's_nop {gap}'); A(f's_nop {gap}')
        issue(j)
    A.label(L)
    for j in range(D):
        A(f's_waitcnt vmcnt({(D - 1) * nld})')
        check(j)
        A(f's_cbranch_vccz {E}')
        issue(j)
    A(f's_sub_u32 s{sGUARD}, s{sGUARD}, 1')
    A(f's_cbranch_scc0 {L}')
    A.label(E)
    A.vm = []
def local_stores(lines):
    R = A.newlabel('L_rem'); E = A.newlabel('L_st')
    A(f's_cmp_eq_u32 s{sLOCAL}, 0')
    A(f's_cbranch_scc1 {R}')
    for l in lines: A(l)
    A.label(E)
    A('s_nop 0')
    far.append((R, E, lines))
far = []
def emit_far():
    for l in far2:
        if l.endswith(':'): A.label(l[:-1])
        else: A(l)
    for R, E, lines in far:
        A.label(R)
        for l in lines:
            A(l + (' sc1' if l.startswith('buffer_') else ''))
        A(f's_branch {E}')
def skip_unless(cond_lines):
    E = A.newlabel('L_sk')
    for l in cond_lines: A(l)
    A(f's_cbranch_scc1 {E}')
    return E
def if_layer(n): return skip_unless([f's_cmp_lg_u32 s{sLAYER}, {n}'])
def if_wave(n): return skip_unless([f's_cmp_lg_u32 s{sW}, {n}'])
def if_ffn(): return skip_unless([f's_cmp_eq_u32 s{sHASF}, 0'])
def endif(E, pad=True):
    A.label(E)
    if pad: A('s_nop 1')
def tag_check(r):
    A(f'v_xor_b32 v{r+1}, s{sTAGB}, v{r+1}')
    A(f'v_xor_b32 v{r}, s{sTAG}, v{r}')
    A(f'v_lshrrev_b32 v{r+1}, 4, v{r+1}')
    A(f'v_or_b32 v{r}, v{r}, v{r+1}')
    A(f'v_cmp_ne_u32 vcc, 0, v{r}')

QSC = 0.25 * 1.4426950408889634
hV = 176; mxc = 186
hQ = lambda T: accQ + 4 * (T + 1)
hK = lambda T: accK + 4 * (T + 1)
def s_mfmas(T, Sp, Sc):
    return [mf(vr(Sp + 4 * T, 4), vr(hK(T - 1), 2), vr(hQ(T), 2), vr(vBP0 if T == 0 else vBP, 4), False),
            mf(vr(Sc + 4 * T, 4), vr(hK(T), 2), vr(hQ(T), 2), vr(vBC, 4), False)]
def attention(pre):
    Sp = V.alloc(16, 2); Sc = V.alloc(16, 2); mx = V.alloc(4); pk = V.alloc(8, 2); Ls = accV
    pre = list(pre)
    for T in (1, 2, 3, 0):
        for m_ in s_mfmas(T, Sp, Sc):
            A(m_)
            for _ in range(2):
                if pre: A(pre.pop(0))
    while pre: A(pre.pop(0))
    for T in (1, 2, 3, 0):
        for r in range(4):
            A(f'v_max_f32 v{Sc+4*T+r}, v{Sp+4*T+r}, v{Sc+4*T+r}')
        A(f'v_max3_f32 v{mx+T}, v{Sc+4*T}, v{Sc+4*T+1}, v{Sc+4*T+2}')
        A(f'v_max_f32 v{mx+T}, v{mx+T}, v{Sc+4*T+3}')
    prs = [(mx + 1, mx + 2), (mx + 3, mx)]
    for a_, b_ in prs: A(f'v_permlane16_swap_b32 v{a_}, v{b_}')
    for a_, b_ in prs: A(f'v_max_f32 v{a_}, v{a_}, v{b_}')
    for a_, b_ in prs: A(f'v_mov_b32 v{b_}, v{a_}')
    for a_, b_ in prs: A(f'v_permlane32_swap_b32 v{a_}, v{b_}')
    for a_, b_ in prs: A(f'v_max_f32 v{a_}, v{a_}, v{b_}')
    for a_, b_ in prs: A(f'v_mov_b32 v{b_}, v{a_}')
    for a_, b_ in prs: A(f'v_permlane16_swap_b32 v{a_}, v{b_}')
    for T in range(4):
        A(f'v_mul_f32 v{mxc+2*T+1}, v{mx+T}, v{mxc+2*T}')
    for T in range(4):
        for h in range(2):
            A(f'v_pk_fma_f32 {vr(Sc+4*T+2*h,2)}, {vr(Sc+4*T+2*h,2)}, {vr(mxc+2*T,2)}, {vr(mxc+2*T,2)} op_sel:[0,0,1] op_sel_hi:[1,0,1] neg_lo:[0,0,1] neg_hi:[0,0,1]')
    pend = []
    for T in range(4):
        for r in range(4):
            A(f'v_exp_f32 v{Sc+4*T+r}, v{Sc+4*T+r}')
            if pend and r in (0, 2): A(pend.pop(0))
        for h in range(2):
            A(f'v_cvt_pk_bf16_f32 v{pk+2*T+h}, v{Sc+4*T+2*h}, v{Sc+4*T+2*h+1}')
        for h in range(2):
            A(f'v_and_b32 v{Sp+4*T+h}, v{pk+2*T+h}, v{vMP+h}')
        for h in range(2):
            A(f'v_xor_b32 v{Sp+4*T+2+h}, v{pk+2*T+h}, v{Sp+4*T+h}')
        pend = [mf(vr(Ls + 4 * T, 4), vr(vOnes, 2), vr(pk + 2 * T, 2), '0', False),
                mf(vr(Sc + 4 * T, 4), vr(hV + 2 * T, 4), vr(Sp + 4 * T, 4), '0')]
    A(pend.pop(0))
    A(f'v_rcp_f32 v{Ls}, v{Ls}')
    A(pend.pop(0))
    for T in (1, 2): A(f'v_rcp_f32 v{Ls+4*T}, v{Ls+4*T}')
    for T in range(4):
        if T == 3: A(f'v_rcp_f32 v{Ls+12}, v{Ls+12}')
        if T == 2:
            for h in range(2): A(f'v_permlane16_swap_b32 v{oP+h}, v{oP+2+h}')
        for h in range(2):
            A(f'v_pk_mul_f32 {vr(Sc+4*T+2*h,2)}, {vr(Sc+4*T+2*h,2)}, {vr(Ls+4*T,2)} op_sel_hi:[1,0]')
        for h in range(2):
            A(f'v_cvt_pk_bf16_f32 v{oP+2*T+h}, v{Sc+4*T+2*h}, v{Sc+4*T+2*h+1}')
    for h in range(2): A(f'v_permlane16_swap_b32 v{oP+4+h}, v{oP+6+h}')
    V.release(Sp, 16); V.release(Sc, 16); V.release(mx, 4); V.release(pk, 8)
def norm_pk(T, rpp, vmm, vcc_):
    aq, ak, av = accQ + 4 * (T + 1), accK + 4 * (T + 1), accV + 4 * (T + 1)
    for h in range(2):
        if T >= 0:
            A(f'v_pk_fma_f32 {vr(aq+2*h,2)}, {vr(csQ+2*h,2)}, {vr(rpp,2)}, {vr(aq+2*h,2)} op_sel_hi:[1,0,1]')
        A(f'v_pk_fma_f32 {vr(ak+2*h,2)}, {vr(csK+2*h,2)}, {vr(rpp,2)}, {vr(ak+2*h,2)} op_sel_hi:[1,0,1]')
        A(f'v_pk_fma_f32 {vr(av+2*h,2)}, {vr(vmm+2*h,2)}, {vr(csV,2)}, {vr(av+2*h,2)} op_sel_hi:[1,0,1]')
    for h in range(2):
        A(f'v_pk_mul_f32 {vr(ak+2*h,2)}, {vr(ak+2*h,2)}, {vr(rpp,2)} op_sel:[0,1] op_sel_hi:[1,1]')
        A(f'v_pk_mul_f32 {vr(av+2*h,2)}, {vr(av+2*h,2)}, {vr(vcc_+2*h,2)}')
def pack2(dst, src): return [f'v_cvt_pk_bf16_f32 v{dst+h}, v{src+2*h}, v{src+2*h+1}' for h in range(2)]
def epilogue(first):
    A.sprinkle = (epi_ins, 12, emit)
    for T in range(5):
        if T == 0: A('s_waitcnt lgkmcnt(6)')
        if T == 2: A('s_waitcnt lgkmcnt(0)')
        if T == 0: A(f'v_cmp_ne_u32 vcc, 0, v{t1}')
        norm_pk(T - 1, rp + 2 * T, vm + 4 * T, vc + 4 * T)
        for x in pack2(hK(T - 1), hK(T - 1)) + (pack2(hQ(T - 1), hQ(T - 1)) if T else []): A(x)
        if T == 0:
            sp = A.sprinkle; A.sprinkle = None
            A(f's_cmp_eq_u64 vcc, 0')
            A(f's_cselect_b32 s{sLOCAL}, {0 if FORCE_REMOTE else 1}, 0')
            A.sprinkle = sp
    pre = [f'v_mul_f32 v{mxc+2*T}, {hex(f2u(QSC))}, v{rp+2*T+3}' for T in range(4)]
    for T in range(5): pre += pack2(hV + 2 * T, accV + 4 * T)
    V.release(vm, 20); V.release(vc, 20); V.take(hV, 10); V.take(mxc, 8)
    attention(pre)
    sp = A.sprinkle; A.sprinkle = None
    for grp in sp[0]:
        for x in grp: emit(x)
    V.release(rp, 10)
    V.release(accQ, 20); V.release(accK, 20); V.release(accV, 20); V.release(hV, 10); V.release(mxc, 8)
epilogue(True)
V.release(vPf); V.release(gr, 4); V.release(vFp, 3)

(aFLp, aFLs, aSTp, aSTs, aKEYs, aKEYp, aCANDs, aCANDb, aYPs, aYPb, aXs, aX1Fp, aX1Fs, aFTFs, aFTFp, aFT, aROW, aOUT) = range(28, 46)
A(f's_lshl_b32 s{aFLp}, s{sRB}, 9')
A(f's_add_u32 s{aFLp}, s{aFLp}, {WS_FL}')
tg = VP.alloc(2, 2)
vRow = VP.alloc(); vXs = VP.alloc(); vStash = VP.alloc(); vQ16 = VP.alloc(); vL8 = VP.alloc(); vO4 = VP.alloc(2)
A.label('L_pub')
stamp()
A(f's_mov_b32 s{sT0}, 32768')
A(f's_and_b32 s{sT1}, s{sLOCAL}, s{sLOCAL if "olocal" in OPT else sLAYER}')
A(f's_cbranch_scc0 L_opr')
A(f'buffer_store_dwordx4 {vr(oP,4)}, v{vOst}, {srd(SRD_WS)}, 0 offen')
A(f'buffer_store_dwordx4 {vr(oP+4,4)}, v{vOst}, {srd(SRD_WS)}, s{sT0} offen')
A.label('L_opd')
far.append(('L_opr', 'L_opd', [f'buffer_store_dwordx4 {vr(oP,4)}, v{vOst}, {srd(SRD_WS)}, 0 offen',
                               f'buffer_store_dwordx4 {vr(oP+4,4)}, v{vOst}, {srd(SRD_WS)}, s{sT0} offen']))
acc = V.alloc(16, 2); oF = V.alloc(64, 2); bR = V.alloc(64, 2)
for a_ in (0, 1, 4, 5): A(f'v_permlane16_swap_b32 v{xP+a_}, v{xP+a_+2}')
for j in range(8):
    A(f'v_lshlrev_b32 v{acc+2*j}, 16, v{xP+j}')
    A(f'v_and_b32 v{acc+2*j+1}, 0xffff0000, v{xP+j}')
def b_read(ks, t, h): return f'ds_read_b64_tr_b16 {vr(bR + ((ks & 3)*4 + t)*4 + 2*h, 2)}, v{vBo+t} offset:{wo_off(ks) + h*512}'
def b_read_a(ks, t, h): return f'ds_read_b64_tr_b16 {ar(((ks - 4)*4 + t)*4 + 2*h, 2)}, v{vBo+t} offset:{wo_off(ks) + h*512}'
fl = V.alloc(2, 2)
fl_issue = lambda: A(f'buffer_load_dwordx2 {vr(fl,2)}, v{vL8}, {srd(SRD_WS)}, s{aFLp} offen sc1')
def o_flag(n=0):
    A(f's_waitcnt vmcnt({n})')
    A('s_mov_b64 exec, 1')
    local_stores([f'buffer_store_dwordx2 {vr(tg,2)}, v{vL16}, {srd(SRD_WS)}, s{aFLs} offen'])
    A('s_mov_b64 exec, -1')
def o_load(ks): return (f'buffer_load_dwordx4 {vr(oF + 4*ks, 4)}, v{vO4 + (ks >> 3)}, {srd(SRD_WS)}, {"s%d" % sT4 if ks & 4 else 0} offen offset:{(ks%4)*1024} sc1', f'o{ks}')
NPRE = 6
A(f's_mov_b32 s{sT4}, 4096')
A(f's_cmp_lg_u32 s{sLAYER}, 0')
A('s_cbranch_scc1 L_p5')
nyo = 0
if 'otouch' in OPT:
    A('s_mov_b32 exec_lo, 0x01010101')
    A('s_mov_b32 exec_hi, 0x01010101')
    A(f'buffer_load_dword v{vDum}, v{vOst}, {srd(SRD_WS)}, 0 offen sc1')
    A(f'buffer_load_dword v{vDum}, v{vOst}, {srd(SRD_WS)}, s{sT0} offen sc1')
    A('s_mov_b64 exec, -1')
    nyo += 2
if True:
    A.sprinkle = ([wo_dma([k_]) for k_ in wo_rest], 50 // len(wo_rest) if len(wo_rest) > 10 else 5, emit); nyo += len(wo_rest)
A(f's_lshl_b32 s{sT2}, s{sHG}, 2')
A(f's_add_u32 s{sT2}, s{sT2}, s{sW}')
A(f's_lshl_b32 s{sT2}, s{sT2}, 3')
A(f's_add_u32 s{aFLs}, s{sT2}, s{aFLp}')
A(f'v_mov_b32 v{tg}, s{sTAG}')
A(f'v_mov_b32 v{tg+1}, s{sTAGB}')
A(f'v_and_b32 v{vL8}, 31, v{vL}')
A(f'v_lshlrev_b32 v{vL8}, 3, v{vL8}')
A(f's_lshl_b32 s{sT0}, s{sSTB}, 14')
A(f'v_add_u32 v{vO4}, s{sT0}, v{vL16}')
A(f'v_add_u32 v{vO4+1}, 8192, v{vO4}')
A(f's_lshl_b32 s{sT1}, s{sHG}, 7')
A(f's_add_u32 s{aXs}, s{sT0}, s{sT1}')
A(f's_add_u32 s{aOUT}, s{sAB}, s{sT1}')
A(f's_lshl_b32 s{aCANDs}, s{sRB}, 13')
A(f's_add_u32 s{aCANDs}, s{aCANDs}, s{sT1}')
A(f's_add_u32 s{aCANDs}, s{aCANDs}, {WS_CAND}')
A(f's_mov_b32 s{aCANDb}, {WS_CAND}')
A(f's_lshl_b32 s{aSTp}, s{sSTB}, 11')
A(f's_add_u32 s{aSTp}, s{aSTp}, {WS_ST}')
A(f's_lshl_b32 s{sT1}, s{sHG}, 8')
A(f's_add_u32 s{aSTs}, s{aSTp}, s{sT1}')
A(f's_add_u32 s{aYPb}, s{sT1}, {WS_YP}')
A(f's_lshl_b32 s{aYPs}, s{sFS}, 12')
A(f's_add_u32 s{aYPs}, s{aYPs}, {WS_YP}')
A(f's_lshl_b32 s{aKEYs}, s{sHG}, 7')
A(f's_add_u32 s{aKEYs}, s{aKEYs}, s{sSTB}')
A(f's_lshl_b32 s{aKEYs}, s{aKEYs}, 3')
A(f's_add_u32 s{aKEYs}, s{aKEYs}, {WS_KEYS}')
A(f's_lshl_b32 s{aKEYp}, s{sSET}, 10')
A(f's_add_u32 s{aKEYp}, s{aKEYp}, {WS_KEYS}')
A(f's_add_u32 s{aX1Fp}, s{aFLp}, {WS_X1F - WS_FL}')
A(f's_lshl_b32 s{sT2}, s{sW}, 3')
A(f's_add_u32 s{sT2}, s{sT2}, s{sHG}')
A(f's_lshl_b32 s{sT2}, s{sT2}, 3')
A(f's_add_u32 s{aX1Fs}, s{aX1Fp}, s{sT2}')
A(f's_lshl_b32 s{sT2}, s{sI}, 2')
A(f's_add_u32 s{sT2}, s{sT2}, s{sW}')
A(f's_mul_i32 s{sT1}, s{sSET}, 48')
A(f's_add_u32 s{sT1}, s{sT1}, s{sT2}')
A(f's_lshl_b32 s{aFT}, s{sT1}, 13')
A(f's_add_u32 s{aFT}, s{aFT}, {WS_FT}')
A(f's_lshl_b32 s{aROW}, s{sSTB}, 4')
A(f'v_lshl_add_u32 v{vRow}, v{vQ}, 10, v{vGm}')
A(f'v_mov_b32 v{vXs}, v{vRow}')
A(f'v_lshlrev_b32 v{vQ16}, 4, v{vQ}')
A(f's_lshl_b32 s{sT2}, s{sW}, 9')
A(f's_add_u32 s{sT2}, s{sT2}, {L_CS}')
A(f'v_add_u32 v{vStash}, s{sT2}, v{vGm}')
A(f'v_lshrrev_b32 v{t0}, 3, v{vL}')
A(f'v_lshlrev_b32 v{t0}, 10, v{t0}')
A(f'v_sub_u32 v{vXe}, v{vXe}, v{t0}')
A(f'v_xor_b32 v{vXo}, 64, v{vXe}')
A(f'v_add_u32 v{vXo}, 8192, v{vXo}')
assert not A.sprinkle or not A.sprinkle[0]
A.sprinkle = None
V.release(vWo); V.release(vFd)
ftr = V.alloc(12, 2)
A(f'v_lshlrev_b32 v{t2}, 2, v{t0}')
A(f'v_and_b32 v{t3}, 7, v{vL}')
A(f'v_lshl_add_u32 v{t2}, v{t3}, 5, v{t2}')
A(f'v_add_u32 v{t2}, {WS_HELLO}, v{t2}')
A(f'v_and_b32 v{t3}, 127, v0')
A(f'v_lshlrev_b32 v{t3}, 3, v{t3}')
assert min(wo_rest) >= 4 and not wd_late
for ks in range(4):
    for t in range(4):
        for h in range(2): A(b_read(ks, t, h))
o_flag(nyo)
stamp()
if STOP == 'o1': finish()
fl_issue()
A(f's_mov_b32 vcc_lo, 0x11111111')
A(f's_mov_b32 vcc_hi, 0x11111111')
for a_ in (0, 1, 4, 5): A(f'v_permlane16_swap_b32 v{aux+a_}, v{aux+a_+2}')
for r in range(8): A(f'v_cndmask_b32 v{aux+r}, v{aux+r}, v{vOnes}, vcc')
A(f'v_mov_b32 v{vSW}, 0')
for r in range(4): A(f'v_dot2c_f32_bf16 v{vSW}, v{wra+r}, v{vOnes}')
for sh in (8, 4, 2, 1):
    A(f'v_add_f32_dpp v{vSW}, v{vSW}, v{vSW} row_ror:{sh} {DP}')
for sw in ('v_permlane16_swap_b32', 'v_permlane32_swap_b32'):
    A(f'v_mov_b32 v{t0}, v{vSW}')
    A(f'{sw} v{vSW}, v{t0}')
    A(f'v_add_f32 v{vSW}, v{vSW}, v{t0}')
V.release(wra, 4)
V.release(oP, 8)
hel = V.alloc(8, 2)
hel_issue = lambda: (A(f'buffer_load_dwordx4 {vr(hel,4)}, v{t2}, {srd(SRD_WS)}, 0 offen sc1'),
                     A(f'buffer_load_dwordx4 {vr(hel+4,4)}, v{t2}, {srd(SRD_WS)}, 0 offen offset:16 sc1'))
repoll(fl_issue, lambda: tag_check(fl), 'FL')
stamp()
NP0 = int(next((a[4:] for a in OPT if a.startswith('np0=')), '8'))
assert NP0 <= 8
for ks in range(3): emit(o_load(ks))
A('s_barrier')
A.sprinkle = ([[o_load(ks)] for ks in range(3, NP0)], 4, emit)
for f in range(16):
    A(f'ds_read_b64 {vr(oF + 32 + 2 * f, 2)}, v{t3} offset:{L_WD + f * 1024}')
for n in range(3):
    for hh in range(2):
        A(f'ds_read_b64_tr_b16 {vr(ftr + 4 * n + 2 * hh, 2)}, v{vFr} offset:{n * 128 + hh * 4 * 384}')
assert not A.sprinkle[0]
A.sprinkle = None
late = {ks: [o_load(ks + NP0)] for ks in range(16 - NP0)}
late[16 - NP0] = [hel_issue]
for n in range(3):
    late[17 - NP0 + n] = [f's_mov_b32 s{sT0}, {n * 4 * 32768}', f'buffer_store_dwordx4 {vr(ftr + 4 * n, 4)}, v{vFs}, {srd(SRD_WS)}, s{sT0} offen sc1']
NY = 4
if True:
    def ft_touch():
        A('s_mov_b32 exec_lo, 0x11111111')
        A('s_mov_b32 exec_hi, 0')
        for n in range(3):
            A(f's_mov_b32 s{sT0}, {n * 4 * 32768}')
            A(f'buffer_load_dword v{vDum}, v{vFs}, {srd(SRD_WS)}, s{sT0} offen sc1')
        A('s_mov_b64 exec, -1')
E = if_ffn()
A(f's_mov_b32 s{sT0}, 0x05040100')
A(f's_mov_b32 s{sT1}, 0x07060302')
A('s_waitcnt lgkmcnt(6)')
for j in range(8):
    b = oF + 32 + 4 * j
    for c, (hi_, lo_, sel) in enumerate(((2, 0, sT0), (2, 0, sT1), (3, 1, sT0), (3, 1, sT1))):
        A(f'v_perm_b32 v{hel+c}, v{b+hi_}, v{b+lo_}, s{sel}')
    for c in range(4): A(f'v_accvgpr_write_b32 a{aFD + 4*j + c}, v{hel+c}')
endif(E, False)
A('s_waitcnt lgkmcnt(0)')
for ks in range(16):
    nl = min(15, (15 - ks) * 8)
    A.wait_vm(f'o{ks}', f'lgkmcnt({nl})')
    for t in range(4):
        A(mf(vr(acc + 4*t, 4), vr(bR + ((ks & 3)*4 + t)*4, 4), vr(oF + 4*ks, 4), vr(acc + 4*t, 4)))
        if t == 0:
            for x in late.get(ks, []): emit(x)
        if ks + 4 < 16:
            A(b_read(ks + 4, t, 0)); A(b_read(ks + 4, t, 1))
V.release(ftr, 12)
A('s_branch L_p2e')
A.label('L_p5')
rdl = [b_read(ks, t, h) for ks in range(4) for t in range(4) for h in range(2)] + \
      [b_read_a(ks, t, h) for ks in range(4, 16) for t in range(4) for h in range(2)]
for _ in range(40): A(rdl.pop(0))
o_flag()
stamp_n[0] -= 2; stamp()
fl_issue()
for _ in range(40): A(rdl.pop(0))
repoll(fl_issue, lambda: tag_check(fl), 'FL')
stamp()
for ks in range(NPRE): emit(o_load(ks))
while rdl: A(rdl.pop(0))
for ks in range(16):
    A.wait_vm(f'o{ks}', {0: 'lgkmcnt(14)', 2: 'lgkmcnt(0)'}.get(ks, ''))
    for t in range(4):
        B_ = vr(bR + (ks*4 + t)*4, 4) if ks < 4 else ar(((ks - 4)*4 + t)*4, 4)
        A(mf(vr(acc + 4*t, 4), B_, vr(oF + 4*ks, 4), vr(acc + 4*t, 4)))
        if t == 0 and ks + NPRE < 16: emit(o_load(ks + NPRE))
A.label('L_p2e')
V.release(oF, 64); V.release(bR, 64); V.release(fl, 2)
gG = V.alloc(4, 2); gS = V.take(96, 4) if False else V.alloc(4, 2)
A('s_nop 3')
for j in range(4):
    A(f'v_cvt_pk_bf16_f32 v{xP+j}, v{acc+2*j}, v{acc+2*j+1}')
A(f'v_cvt_pk_bf16_f32 v{xP+4}, v{acc+8}, v{acc+9}')
A(f'v_cvt_pk_bf16_f32 v{xP+5}, v{acc+10}, v{acc+11}')
A(mf(vr(gG, 4), vr(xP, 4), vr(xP, 4), '0'))
A(f'v_cvt_pk_bf16_f32 v{xP+6}, v{acc+12}, v{acc+13}')
A(f'v_cvt_pk_bf16_f32 v{xP+7}, v{acc+14}, v{acc+15}')
A(mf(vr(gS, 4), vr(aux, 4), vr(xP, 4), '0'))
A(f'v_permlane16_swap_b32 v{xP}, v{xP+2}')
A(mf(vr(gG, 4), vr(xP + 4, 4), vr(xP + 4, 4), vr(gG, 4)))
A(f'v_permlane16_swap_b32 v{xP+1}, v{xP+3}')
A(mf(vr(gS, 4), vr(aux + 4, 4), vr(xP + 4, 4), vr(gS, 4)))
A(f'v_permlane16_swap_b32 v{xP+4}, v{xP+6}')
A(f'v_permlane16_swap_b32 v{xP+5}, v{xP+7}')
unp = []
for j in range(8):
    unp += [f'v_lshlrev_b32 v{acc+2*j}, 16, v{xP+j}', f'v_and_b32 v{acc+2*j+1}, 0xffff0000, v{xP+j}']
for _ in range(4): A(unp.pop(0))
A(f'v_cndmask_b32 v{t0}, v{gG}, v{gG+1}, {sr(sM0,2)}')
A(f'v_cndmask_b32 v{t1}, v{gG+2}, v{gG+3}, {sr(sM0,2)}')
A(f'v_cndmask_b32 v{gS+2}, v{t0}, v{t1}, {sr(sM1,2)}')
A(f'v_mov_b32 v{gS+3}, s{sTAG}')
A('s_mov_b32 exec_lo, 0x00f0000f')
A('s_mov_b32 exec_hi, 0xf0000f00')
local_stores([f'buffer_store_dwordx4 {vr(gS,4)}, v{vQ16}, {srd(SRD_WS)}, s{aSTs} offen'])
A('s_mov_b64 exec, -1')
stamp()
V.release(gG, 4)
sa = V.alloc(8, 2)
def h1_issue():
    A(f'buffer_load_dwordx4 {vr(sa,4)}, v{vL16}, {srd(SRD_WS)}, s{aSTp} offen sc1')
    A(f'buffer_load_dwordx4 {vr(sa+4,4)}, v{vL16}, {srd(SRD_WS)}, s{aSTp} offen offset:1024 sc1')
while unp: A(unp.pop(0))
E = if_layer(0)
Lh = A.newlabel('L_hel'); Lhk = A.newlabel('L_helok')
A(f's_mov_b32 s{sGUARD}, {SPIN}')
A(f's_waitcnt vmcnt({NY})')
A.label(Lh)
for r in range(8): A(f'v_xor_b32 v{hel+r}, s{sTAGB if r & 1 else sTAG}, v{hel+r}')
A(f'v_or3_b32 v{t0}, v{hel+1}, v{hel+3}, v{hel+5}')
A(f'v_or_b32 v{t0}, v{t0}, v{hel+7}')
A(f'v_lshrrev_b32 v{t0}, 4, v{t0}')
A(f'v_or3_b32 v{t0}, v{t0}, v{hel}, v{hel+2}')
A(f'v_or3_b32 v{t0}, v{t0}, v{hel+4}, v{hel+6}')
A(f'v_cmp_ne_u32 vcc, 0, v{t0}')
A(f's_cbranch_vccz {E}')
A('s_sleep 8')
hel_issue(); A.wait_vm0()
A(f's_sub_u32 s{sGUARD}, s{sGUARD}, 1')
A(f's_cbranch_scc0 {Lh}')
endif(E, False)
V.release(hel, 8)

def h1_check():
    A(f'v_cmp_ne_u32 vcc, s{sTAG}, v{sa+3}')
    A(f'v_cmp_ne_u32 {sr(sT2,2)}, s{sTAG}, v{sa+7}')
    A(f'v_pk_add_f32 {vr(sa,2)}, {vr(sa,2)}, {vr(sa+4,2)}')
    A(f's_or_b64 vcc, vcc, {sr(sT2,2)}')
poll(h1_issue, h1_check, 'ST')
stamp()
A(f'v_add_f32 v{sa+2}, v{sa+2}, v{sa+6}')
A(f'v_mov_b32 v{sa+4}, v{sa}')
A(f'v_mov_b32 v{sa+5}, v{sa+1}')
A(f'v_mov_b32 v{sa+6}, v{sa+2}')
local_stores([f'buffer_store_dwordx4 {vr(xP,4)}, v{vXs}, {srd(SRD_WS)}, s{aXs} offen',
              f'buffer_store_dwordx4 {vr(xP+4,4)}, v{vXs}, {srd(SRD_WS)}, s{aXs} offen offset:64'])
for r in range(3): A(f'v_permlane16_swap_b32 v{sa+r}, v{sa+4+r}')
A(f'v_pk_add_f32 {vr(sa,2)}, {vr(sa,2)}, {vr(sa+4,2)}')
A(f'v_add_f32 v{sa+2}, v{sa+2}, v{sa+6}')
for r in range(3): A(f'v_mov_b32 v{sa+4+r}, v{sa+r}')
for r in range(3): A(f'v_permlane32_swap_b32 v{sa+r}, v{sa+4+r}')
A(f'v_pk_add_f32 {vr(sa,2)}, {vr(sa,2)}, {vr(sa+4,2)}')
A(f'v_add_f32 v{sa+2}, v{sa+2}, v{sa+6}')
mu = V.alloc(); var = V.alloc(); pr = V.alloc(2, 2); mm = V.alloc()
ln_params(sa, sa + 2, mu, var, mm, pr, t0)
key = V.alloc(); ka = V.alloc(2, 2); kb = ka + 1
A(f'v_fma_f32 v{key}, -v{mm}, v{vSW}, v{sa+1}')
A(f'v_mul_f32 v{key}, v{key}, v{pr}')
A(f'v_mul_f32 v{pr+1}, -v{mm}, v{pr}')
A(f'v_ashrrev_i32 v{t0}, 31, v{key}')
A(f'v_or_b32 v{t0}, 0x80000000, v{t0}')
A(f'v_xor_b32 v{key}, v{key}, v{t0}')
A(f'v_and_b32 v{key}, 0xfffff800, v{key}')
A(f'v_or3_b32 v{key}, v{key}, v{vQ}, s{aROW}')
xn = V.alloc(8, 2); xf = V.alloc(16, 2)
fillx = [f'v_pk_fma_f32 {vr(xf+2*j,2)}, {vr(acc+2*j,2)}, {vr(pr,2)}, {vr(pr,2)} op_sel:[0,0,1] op_sel_hi:[1,0,1]' for j in range(8)] + \
        [f'v_cvt_pk_bf16_f32 v{xn+j}, v{xf+2*j}, v{xf+2*j+1}' for j in range(8)]
def top2_levels(a, b, levels, fill):
    for lv in levels:
        if fill: A(fill.pop(0))
        A(f'v_min_u32_dpp v{t0}, v{a}, v{a} {lv} {DP}')
        A(f'v_max_u32_dpp v{t1}, v{b}, v{b} {lv} {DP}')
        A(f'v_max_u32_dpp v{a}, v{a}, v{a} {lv} {DP}')
        A(f'v_max_u32 v{b}, v{t0}, v{t1}')
A(fillx.pop(0)); A(fillx.pop(0))
A(f'v_max_u32_dpp v{ka}, v{key}, v{key} quad_perm:[1,0,3,2] {DP}')
A(f'v_min_u32_dpp v{kb}, v{key}, v{key} quad_perm:[1,0,3,2] {DP}')
top2_levels(ka, kb, ['quad_perm:[2,3,0,1]', 'row_half_mirror', 'row_mirror'], fillx)
A('s_mov_b64 exec, 1')
A(f'buffer_store_dwordx2 {vr(ka,2)}, v{vL16}, {srd(SRD_WS)}, s{aKEYs} offen sc1')
E = if_layer(0)
A('s_waitcnt vmcnt(1)')
local_stores([f'buffer_store_dwordx2 {vr(tg,2)}, v{vL16}, {srd(SRD_WS)}, s{aX1Fs} offen'])
FTT = int(next((a[4:] for a in OPT if a.startswith('ftt=')), '0'))
if FTT == 0: ft_touch()
endif(E, False)
A('s_mov_b64 exec, -1')
stamp()
A(f'v_cmp_eq_u32 vcc, v{key}, v{kb}')
A(f'v_add_u32 v{t2}, 256, v{vStash}')
while fillx: A(fillx.pop(0))
A(f'v_cndmask_b32 v{t3}, v{vStash}, v{t2}, vcc')
A(f'v_cmp_ge_u32 vcc, v{key}, v{kb}')
A(f'v_lshrrev_b32 v{t0}, 3, v{vL}')
A(f'v_and_b32 v{t1}, 0x70, v{vL16}')
A(f's_mov_b64 exec, vcc')
A(f'ds_write_b128 v{t3}, {vr(xn,4)} offset:128')
A(f'ds_write_b128 v{t3}, {vr(xn+4,4)} offset:192')
A(f'ds_write_b128 v{t3}, {vr(xP,4)}')
A(f'ds_write_b128 v{t3}, {vr(xP+4,4)} offset:64')
A('s_mov_b64 exec, -1')
V.release(key); V.release(ka, 2)
A(f'v_lshl_add_u32 v{t2}, v{t0}, 8, v{t1}')
A(f'v_add_u32 v{t2}, {L_CS + 128}, v{t2}')
A(f'v_lshl_add_u32 v{t3}, v{t0}, 10, v{t1}')
A(f's_lshl_b32 s{sT0}, s{sW}, 4')
A('s_waitcnt lgkmcnt(2)')
A(f'ds_read_b128 {vr(sa,4)}, v{t2}')
A(f'v_lshl_add_u32 v{t0}, v{vQ}, 7, v{vGm}')
A(f'v_add_u32 v{t0}, {L_ROW}, v{t0}')
A(f'v_add_u32 v{t1}, {L_ROW + 1024}, v{vL16}')
A(f's_lshl_b64 exec, 0xffff, s{sT0}')
A('s_waitcnt lgkmcnt(0)')
A(f'buffer_store_dwordx4 {vr(sa,4)}, v{t3}, {srd(SRD_WS)}, s{aCANDs} offen sc1')
A('s_mov_b64 exec, -1')
E3 = skip_unless([f's_xor_b32 s{sT0}, s{sW}, 3', f's_or_b32 s{sT0}, s{sT0}, s{sLAYER}'])
A(f'ds_write_b128 v{t0}, {vr(xP,4)}')
A(f'ds_write_b128 v{t0}, {vr(xP+4,4)} offset:64')
A(f's_add_u32 s{sT0}, s{aCANDs}, {WS_HALO - WS_CAND}')
A('s_waitcnt lgkmcnt(0)')
A(f'ds_read_b128 {vr(sa+4,4)}, v{t1}')
A('s_waitcnt lgkmcnt(0)')
A(f'buffer_store_dwordx4 {vr(sa+4,4)}, v{t3}, {srd(SRD_WS)}, s{sT0} offen sc1')
endif(E3)
fine()
def chain_params(mu, var, mm, rs, om, oc):
    a = V.alloc(); u = V.alloc(); w_ = V.alloc(); m2 = V.alloc(); r2 = V.alloc()
    A(f'v_add_f32 v{a}, 1.0, v{rs}')
    A(f'v_mul_f32 v{u}, v{mm}, v{rs}')
    A(f'v_fma_f32 v{mu}, v{mu}, v{a}, -v{u}')
    A(f'v_mul_f32 v{w_}, v{a}, v{a}')
    A(f'v_mul_f32 v{var}, v{var}, v{w_}')
    round_params(mu, var, m2, r2, w_)
    A(f'v_rcp_f32 v{w_}, v{a}')
    A(f'v_add_f32 v{u}, v{u}, v{m2}')
    A(f'v_mul_f32 v{oc}, v{a}, v{r2}')
    A(f'v_mul_f32 v{om}, -v{u}, v{w_}')
    for x in (a, u, w_, m2, r2): V.release(x)
xfl = sa
xf_issue = lambda: A(f'buffer_load_dwordx2 {vr(xfl,2)}, v{vL8}, {srd(SRD_WS)}, s{aX1Fp} offen sc1')
for j in range(8):
    A(f'v_lshlrev_b32 v{xf+2*j}, 16, v{xn+j}')
    A(f'v_and_b32 v{xf+2*j+1}, 0xffff0000, v{xn+j}')
for j in range(8):
    A(f'v_pk_add_f32 {vr(xf+2*j,2)}, {vr(xf+2*j,2)}, {vr(acc+2*j,2)}')
for j in range(8):
    A(f'v_cvt_pk_bf16_f32 v{xP+j}, v{xf+2*j}, v{xf+2*j+1}')
V.release(xn, 8); V.release(xf, 16); V.release(acc, 16)
A(f's_cmp_eq_u32 s{sLAYER}, 0')
A('s_cbranch_scc1 L_x1')
for j in range(4):
    A(f'v_mov_b32 v{sa+j}, v{xP+j}')
for j in range(4):
    A(f'v_mov_b32_dpp v{xP+j}, v{xP+4+j} row_ror:8 row_mask:0xf bank_mask:0xc')
for j in range(4):
    A(f'v_mov_b32_dpp v{xP+4+j}, v{sa+j} row_ror:8 row_mask:0xf bank_mask:0x3')
A(f'v_and_b32 v{t0}, 7, v{vQ}')
A(f'v_lshl_add_u32 v{vXs}, v{t0}, 11, v{vGm}')
A(f'v_and_b32 v{t0}, 8, v{vQ}')
A(f'v_lshl_add_u32 v{vXs}, v{t0}, 3, v{vXs}')
def out_stores():
    A(f's_add_u32 s{sT0}, s{aOUT}, 16384')
    A(f'buffer_store_dwordx4 {vr(xP,4)}, v{vXs}, {srd(SRD_OUT)}, s{aOUT} offen{OSC}')
    A(f'buffer_store_dwordx4 {vr(xP+4,4)}, v{vXs}, {srd(SRD_OUT)}, s{sT0} offen{OSC}')
    if 'clean' in OPT:
        A(f's_lshl_b32 s{sT0}, s{sHG}, 11')
        A(f'buffer_store_dwordx4 {vr(xP,4)}, v{vO4}, {srd(SRD_WS)}, s{sT0} offen sc1')
        A(f'buffer_store_dwordx4 {vr(xP,4)}, v{vO4}, {srd(SRD_WS)}, s{sT0} offen offset:1024 sc1')
OSC = ' sc1 nt' if 'ont' in OPT else ' sc1'
if 'outearly' in OPT:
    A(f's_cmp_eq_u32 s{sHASF}, 1')
    A('s_cbranch_scc1 L_x1e')
    out_stores()
A('s_branch L_x1e')
A.label('L_x1')
chain_params(mu, var, mm, pr, t2, t3)
A(f's_lshl_b32 s{sT0}, s{sW}, 6')
A(f'v_add_u32 v{t0}, s{sT0}, v{vQ4}')
A(f'ds_write2_b32 v{t0}, v{t2}, v{t3} offset0:16 offset1:96')
V.release(mu); V.release(var); V.release(pr, 2); V.release(mm)
E1 = if_wave(1)
poll(xf_issue, lambda: tag_check(xfl), 'X1F')
endif(E1, False)
A('s_waitcnt lgkmcnt(0)')
A('s_barrier')
fine()
V.take(accQ, 20); V.take(accK, 20); V.take(accV, 20); V.take(hV, 10); V.take(mxc, 8)
fr = [V.alloc(16, 2), V.alloc(16, 2)]
def own_reads(ks):
    u = ks & 1; kc = ks >> 1; b = fr[ks & 1]
    return [f'ds_read_b128 {vr(b + 4 * T, 4)}, v{vA+u} offset:{(kc * 8 + 2 * T) * 1024}' for T in range(4)]
def gemm_groups(k0, k1, noread=()):
    G = []
    for ks in range(k0, k1):
        b = fr[ks & 1]; fill = own_reads(ks + 1) if ks < 15 and ks not in noread else []
        for T in range(1, 5):
            X = vr(b + 4 * (T - 1), 4)
            for m_, (d_, a_, b_) in enumerate(((accQ, ar(aW(ks, 0), 4), X), (accK, ar(aW(ks, 1), 4), X), (accV, X, ar(aW(ks, 2), 4)))):
                g_ = [mf(vr(d_ + 4 * T, 4), a_, b_, vr(d_ + 4 * T, 4))]
                if T == 1 and m_ == 0: g_ = ['s_waitcnt lgkmcnt(0)'] + g_
                elif fill and m_ < 2: g_.append(fill.pop(0))
                G.append(g_)
    return G
def gemm_part(k0, k1, ins=None):
    for n_, g_ in enumerate(gemm_groups(k0, k1)):
        for x in g_: A(x)
        for x in (ins or {}).get(n_, []): emit(x)
A.vm = []
def x1_dma(kc, o):
    return ([f's_add_u32 s{sXA}, s{sXB}, {WS_X1 + kc * 128}'] if o == 0 else []) + \
           [f's_add_u32 m0, s{sAM}, {L_A + kc * 8192 + o * 1024}',
            (f'buffer_load_dwordx4 v{vXo if o else vXe}, {srd(SRD_WS)}, s{sXA} offen sc1 lds', f'x{kc >> 1}')]
sXA, sXB = 46, 47
A(f's_lshl_b32 s{sXB}, s{sSTB}, 14')
ci = V.alloc(4, 2); vFo = V.alloc()
A(f'ds_read2_b32 {vr(ci,2)}, v{vQ4} offset0:16 offset1:32')
A(f'ds_read2_b32 {vr(ci+2,2)}, v{vQ4} offset0:48 offset1:64')
for T in range(1, 5): A(f'ds_read_b128 {vr(accV + 4 * T, 4)}, v{vG16} offset:{64 * T}')
grp = [x1_dma(kc, o) for kc in range(4) for o in range(2)]
for _ in range(2):
    for x in grp.pop(0): emit(x)
A.sprinkle = (grp, 4, emit)
A('s_waitcnt lgkmcnt(4)')
for T in range(1, 5):
    sel = (T - 1) & 1
    for acc_, cs_ in ((accQ, csQ), (accK, csK)):
        for h in range(2):
            A(f'v_pk_mul_f32 {vr(acc_+4*T+2*h,2)}, {vr(cs_+2*h,2)}, {vr(ci + ((T-1)&2),2)} op_sel:[0,{sel}] op_sel_hi:[1,{sel}]')
A('s_waitcnt lgkmcnt(0)')
for T in range(1, 5):
    for h in range(2):
        A(f'v_pk_mul_f32 {vr(accV+4*T+2*h,2)}, {vr(accV+4*T+2*h,2)}, {vr(csV,2)} op_sel_hi:[1,0]')
A.sprinkle = None
assert not grp
V.release(ci, 4)
A(f's_xor_b32 s{sT0}, s{sHASF}, 1')
A(f's_lshl_b32 s{sT0}, s{sT0}, 30')
A(f'v_add_u32 v{vFo}, s{sT0}, v{vL16}')
vSf = V.alloc()
A(f's_lshl_b32 s{sT0}, s{sSET}, 11')
A(f's_add_u32 s{sT0}, s{sT0}, {WS_X1F}')
A(f'v_lshl_add_u32 v{vSf}, v{vG}, 9, v{vQ16}')
A(f'v_add_u32 v{vSf}, s{sT0}, v{vSf}')
A(f's_add_u32 s{sT5}, s{aFT}, 4096')
if FTT == 1: ft_touch()
A.wait_vm('x0')
A('s_barrier')
fine()
for x in own_reads(0): A(x)
key_issue = lambda: A(f'buffer_load_dwordx4 {vr(sa,4)}, v{vL16}, {srd(SRD_WS)}, s{aKEYp} offen sc1', tag='key')
ft_ld = [f'buffer_load_dwordx4 {ar(aFG + 4*s_, 4)}, v{vFo}, {srd(SRD_WS)}, s{sT5 if s_ >= 4 else aFT} offen offset:{(s_ & 3)*1024} sc1' for s_ in range(8)]
KC, N1, N2, PER = [int(x) for x in next((a[2:] for a in OPT if a.startswith('n=')), '3,5,13,3').split(',')]
assert KC <= 3
ins = {1 + PER * n_: x1_dma(kc, o) for n_, (kc, o) in enumerate([(kc, o) for kc in range(4, 8) for o in range(2)])}
for n_, x in enumerate(ft_ld): ins[36 + n_] = [x]
sf_issue = lambda: A(f'buffer_load_dwordx4 {vr(sa+4,4)}, v{vSf}, {srd(SRD_WS)}, 0 offen sc1')
ins[KC * 12 - 14] = ins.get(KC * 12 - 14, []) + [sf_issue, key_issue]
def b2b():
    if A.vm_count('x1') is not None and KC > 3: A.wait_vm('x1')
    A('s_barrier')
ins[36] = [b2b] + ins.get(36, [])
gemm_part(0, KC, ins)
A.wait_vm('key')
A(f's_cmp_lg_u32 s{sW}, 0')
A('s_cbranch_scc1 L_keye')
Lsf = A.newlabel('L_sf')
A(f's_mov_b32 s{sGUARD}, {SPIN}')
A(f's_cmp_eq_u32 s{sHASF}, 0')
A('s_cbranch_scc1 L_keyc')
A.label(Lsf)
for k in range(4): A(f'v_xor_b32 v{sa+4+k}, s{sTAGB if k & 1 else sTAG}, v{sa+4+k}')
A(f'v_or_b32 v{sa+5}, v{sa+5}, v{sa+7}')
A(f'v_lshrrev_b32 v{sa+5}, 4, v{sa+5}')
A(f'v_or3_b32 v{sa+4}, v{sa+4}, v{sa+5}, v{sa+6}')
A(f'v_cmp_ne_u32 vcc, 0, v{sa+4}')
A('s_cbranch_vccz L_keyc')
sf_issue(); key_issue()
A('s_waitcnt vmcnt(0)')
A(f's_sub_u32 s{sGUARD}, s{sGUARD}, 1')
A(f's_cbranch_scc0 {Lsf}')
A('s_branch L_keyc')
V.release(vSf)
A.label('L_x1e')
stamp()
A(f's_cmp_lg_u32 s{sW}, 0')
A('s_cbranch_scc1 L_keye')
A(f's_mov_b32 s{sGUARD}, {SPIN}')
A.label('L_keyp')
key_issue()
A('s_waitcnt vmcnt(0)')
A.label('L_keyc')
A(f'v_max3_u32 v{t0}, v{sa}, v{sa+1}, v{sa+2}')
A(f'v_min_u32 v{t2}, v{sa}, v{sa+2}')
A(f'v_max_u32 v{t0}, v{t0}, v{sa+3}')
A(f'v_max_u32 v{sa}, v{sa}, v{sa+2}')
A(f'v_cmp_eq_u32 vcc, -1, v{t0}')
A(f'v_max3_u32 v{sa+1}, v{sa+1}, v{sa+3}, v{t2}')
A('s_cbranch_vccz L_keyk')
backoff('KEYS')
NS = int(next((a[4:] for a in OPT if a.startswith('nsl=')), '8'))
if NS:
    A(f's_cmp_eq_u32 s{sHASF}, 1')
    A('s_cbranch_scc1 L_keyh')
    A(f's_sleep {NS}')
    A.label('L_keyh')
A(f's_sub_u32 s{sGUARD}, s{sGUARD}, 1')
A('s_cbranch_scc0 L_keyp')
A.label('L_keyk')
stamp()
top2_levels(sa, sa + 1, ['quad_perm:[1,0,3,2]', 'quad_perm:[2,3,0,1]', 'row_half_mirror', 'row_mirror'], [])
for n_, ln in enumerate((0, 16, 32, 48)):
    A(f'v_readlane_b32 s{(sK0, sT0, sT2, sU0)[n_]}, v{sa}, {ln}')
for n_, ln in enumerate((0, 16, 32, 48)):
    A(f'v_readlane_b32 s{(sK1, sT1, sT3, sU1)[n_]}, v{sa+1}, {ln}')
for a_, b_ in ((sT0, sT1), (sT2, sT3), (sU0, sU1)):
    A(f's_max_u32 s{sK1}, s{sK1}, s{b_}')
    A(f's_min_u32 s{b_}, s{sK0}, s{a_}')
    A(f's_max_u32 s{sK0}, s{sK0}, s{a_}')
    A(f's_max_u32 s{sK1}, s{sK1}, s{b_}')
A(f's_and_b32 s{sU2}, s{sK0}, 0x7f0')
A(f's_and_b32 s{sU3}, s{sK1}, 0x7f0')
A(f's_cmp_eq_u32 s{sU2}, s{sU3}')
A(f's_cselect_b32 s{sT2}, 8, 0')
A(f's_lshl_b32 s{sU2}, s{sU2}, 7')
A(f's_add_u32 s{sU2}, s{sU2}, s{aCANDb}')
A(f's_or_b32 s{sU3}, s{sU3}, s{sT2}')
A(f's_lshl_b32 s{sU3}, s{sU3}, 7')
A(f's_add_u32 s{sU3}, s{sU3}, s{aCANDb}')
def f_issue():
    A(f'buffer_load_dwordx4 {vr(sa,4)}, v{vL16}, {srd(SRD_WS)}, s{sU2} offen sc1')
    A(f'buffer_load_dwordx4 {vr(sa+4,4)}, v{vL16}, {srd(SRD_WS)}, s{sU3} offen sc1')
E = if_ffn()
f_issue()
endif(E, False)
A(f'v_mov_b32 v{t0}, s{sK0}')
A(f'v_mov_b32 v{t1}, s{sK1}')
A(f'v_mov_b32 v{t2}, {L_KEY}')
A(f'ds_write2_b32 v{t2}, v{t0}, v{t1} offset0:0 offset1:1')
A.label('L_keye')
E = if_layer(0)
gemm_part(KC, N1, {k_ - KC * 12: v_ for k_, v_ in ins.items()})
V.release(vFo)
A('s_waitcnt vmcnt(0)')
A(f's_cmp_lg_u32 s{sW}, 3')
A(f's_cbranch_scc1 {E}')
A(f's_lshl_b32 s{sT0}, s{sRB}, 10')
A(f's_lshl_b32 s{sT1}, s{sHG}, 7')
A(f's_add_u32 s{sT0}, s{sT0}, s{sT1}')
A(f's_add_u32 s{sT0}, s{sT0}, {WS_HS - 128}')
A('s_mov_b32 exec_lo, 0')
A('s_mov_b32 exec_hi, 0xf0000f00')
A(f'buffer_store_dwordx4 {vr(gS,4)}, v{vQ16}, {srd(SRD_WS)}, s{sT0} offen sc1')
A('s_mov_b64 exec, -1')
endif(E, False)
V.release(gS, 4)
fine()
fa = V.alloc(4)
A(f'v_bfe_u32 v{t0}, v{vL}, 2, 1')
A(f'v_and_b32 v{t1}, 1, v{vL}')
A(f'v_lshl_or_b32 v{t0}, v{t0}, 1, v{t1}')
A(f'v_mul_u32_u24 v{fa}, 576, v{t0}')
A(f'v_lshl_add_u32 v{fa}, v{vG}, 4, v{fa}')
A(f'v_add_u32 v{fa}, {L_XS}, v{fa}')
A(f's_lshl_b32 s{sT1}, s{sW}, 3')
A(f's_add_u32 s{sT1}, s{sT1}, {L_H}')
A(f'v_lshlrev_b32 v{fa+1}, 5, v{vG}')
A(f'v_lshl_add_u32 v{fa+1}, v{vQ}, 1, v{fa+1}')
A(f'v_add_u32 v{fa+1}, s{sT1}, v{fa+1}')
A(f's_lshr_b32 s{sT1}, s{sW}, 1')
A(f's_lshl_b32 s{sT1}, s{sT1}, 5')
A(f's_add_u32 s{sT1}, s{sT1}, {L_H}')
A(f'v_mov_b32 v{fa+2}, s{sT1}')
A(f'v_lshlrev_b32 v{fa+3}, 4, v0')
A(f'v_mov_b32 v{t3}, {L_KEY}')
A(f'v_lshrrev_b32 v{t2}, 5, v{vL}')
A(f'v_lshl_add_u32 v{t2}, v{t2}, 6, v{vL16}')
A(f'v_add_u32 v{t2}, {L_XS}, v{t2}')
E = skip_unless([f's_cmp_eq_u32 s{sW}, 0', f's_cselect_b32 s{sT0}, s{sHASF}, 0', f's_cmp_eq_u32 s{sT0}, 0'])
def f_check():
    A(f'v_max_u32 v{t0}, v{sa}, v{sa+4}')
    A(f'ds_write_b128 v{t2}, {vr(sa,4)}')
    A(f'v_cmp_eq_u32 vcc, -1, v{t0}')
    A(f'ds_write_b128 v{t2}, {vr(sa+4,4)} offset:1152')
    A('s_waitcnt lgkmcnt(0)')
repoll(f_issue, f_check, 'CAND')
endif(E, False)
A('s_waitcnt lgkmcnt(0)')
A('s_barrier')
fine()
A(f's_cmp_eq_u32 s{sHASF}, 0')
A('s_cbranch_scc1 L_noffn')
xs = V.alloc(32, 2); d4 = V.alloc(4, 2); hp = V.alloc(8, 2); y4 = V.alloc(4, 2); wd = xs
for s_ in range(8):
    A(f'ds_read_b128 {vr(xs + 4*s_, 4)}, v{fa} offset:{64*s_}')
for c in range(4): A(f'v_mov_b32 v{y4+c}, 0')
wrd = [f'v_accvgpr_read_b32 v{wd+j}, a{aFD+j}' for j in range(32)]
for s_ in range(8):
    A(f's_waitcnt lgkmcnt({7 - s_})')
    A(mf(vr(d4, 4), vr(xs + 4*s_, 4), ar(aFG + 4*s_, 4), '0' if s_ == 0 else vr(d4, 4)))
    if s_: A(wrd.pop(0)); A(wrd.pop(0))
for _ in range(6): A(wrd.pop(0))
A(f'v_add_f32_dpp v{t0}, v{d4+1}, v{d4} row_shl:8 {DP}')
bf_round(t0, t0)
A(f'v_mul_f32 v{t1}, {hex(f2u(-1.4426950408889634))}, v{t0}')
A(f'v_exp_f32 v{t1}, v{t1}')
A(f'v_mov_b32_dpp v{t2}, v{t0} row_shl:4 {DP}')
A(f'v_add_f32 v{t1}, 1.0, v{t1}')
A(f'v_rcp_f32 v{t1}, v{t1}')
A('s_mov_b64 exec, 0x000f000f')
A(f'v_mul_f32 v{t1}, v{t0}, v{t1}')
bf_round(t1, t1)
A(f'v_mul_f32 v{t1}, v{t2}, v{t1}')
A(f'v_cvt_pk_bf16_f32 v{t1}, v{t1}, v{t1}')
A(f'ds_write_b16 v{fa+1}, v{t1}')
A('s_mov_b64 exec, -1')
for _ in range(8): A(wrd.pop(0))
A('s_waitcnt lgkmcnt(0)')
A('s_barrier')
A(f'ds_read_b128 {vr(hp,4)}, v{fa+2}')
A(f'ds_read_b128 {vr(hp+4,4)}, v{fa+2} offset:16')
while wrd: A(wrd.pop(0))
for j in range(8):
    if j % 4 == 0: A(f's_waitcnt lgkmcnt({1 - j // 4})')
    for c in range(4):
        A(f'v_dot2c_f32_bf16 v{y4+c}, v{wd+4*j+c}, v{hp+j}')
A(f'buffer_store_dwordx4 {vr(y4,4)}, v{fa+3}, {srd(SRD_WS)}, s{aYPs} offen sc1')
V.release(xs, 32); V.release(d4, 4); V.release(hp, 8); V.release(y4, 4)
if 'outearly' not in OPT: A.label('L_noffn')
A(f's_cmp_eq_u32 s{sLAYER}, 0')
A('s_cbranch_scc1 L_noffn2')
out_stores()
if 'outearly' in OPT: A.label('L_noffn')
A.label('L_noffn2')
A(f'ds_read_b64 {vr(sa,2)}, v{t3}')
V.release(fa, 4)
A('s_waitcnt lgkmcnt(0)')
A(f'v_readfirstlane_b32 s{sK0}, v{sa}')
A(f'v_readfirstlane_b32 s{sK1}, v{sa+1}')
stamp()
sOWN = 48
A(f's_bfe_u32 s{sT0}, s{sK0}, 0x50006')
A(f's_bfe_u32 s{sT1}, s{sK1}, 0x50006')
A(f's_cmp_eq_u32 s{sT0}, s{sRB}')
A(f's_cselect_b32 s{sT1}, s{sRB}, s{sT1}')
A(f's_cselect_b32 s{sTOK}, 0, 1')
A(f's_cselect_b32 s{sKEY}, s{sK0}, s{sK1}')
A(f's_cmp_eq_u32 s{sT1}, s{sRB}')
A(f's_cselect_b32 s{sOWN}, 1, 0')
yp = V.alloc(24, 2); yo = V.alloc(2)
def y_issue():
    for j in range(6):
        A(f's_mov_b32 s{sT1}, {j * 65536}')
        A(f'buffer_load_dwordx4 {vr(yp + 4*j, 4)}, v{yo + 1 if j == 5 else yo}, {srd(SRD_WS)}, s{sT1} offen sc1')
def y_start():
    A(f's_lshl_b32 s{sT0}, s{sTOK}, 11')
    A(f's_add_u32 s{sT0}, s{sT0}, s{aYPb}')
    A(f'v_lshrrev_b32 v{t0}, 4, v0')
    A(f'v_lshl_add_u32 v{yo}, v{t0}, 12, v{vQ16}')
    A(f'v_cmp_gt_u32 vcc, 6, v{t0}')
    A(f'v_add_u32 v{yo}, s{sT0}, v{yo}')
    A(f'v_mov_b32 v{t1}, 0x40000000')
    A(f'v_cndmask_b32 v{yo+1}, v{t1}, v{yo}, vcc')
    y_issue()
E = if_layer(0)
E2 = if_wave(2)
A(f's_lshl_b32 s{sT0}, s{sHG}, 3')
A(f's_add_u32 s{sT0}, s{sT0}, s{aX1Fp}')
A('s_mov_b64 exec, 1')
local_stores([f'buffer_store_dwordx2 {vr(tg,2)}, v{vL16}, {srd(SRD_WS)}, s{sT0} offen offset:256'])
A('s_mov_b64 exec, -1')
endif(E2, False)
NH = int(next((a[3:] for a in OPT if a.startswith('nh=')), '10'))
hs_ld = f'buffer_load_dwordx4 {vr(sa,4)}, v{vL16}, {srd(SRD_WS)}, s{sU0} offen sc1'
vHo = V.alloc()
prep = [f's_lshl_b32 s{sU0}, s{sRB}, 10', f's_add_u32 s{sU0}, s{sU0}, {WS_HS - 1024}',
        f's_lshl_b32 s{sU1}, s{sRB}, 13', f's_lshl_b32 s{sT0}, s{sW}, 8', f's_add_u32 s{sU1}, s{sU1}, s{sT0}', f's_add_u32 s{sU1}, s{sU1}, {WS_HALO - 16384}',
        f's_add_u32 s{sU2}, s{sU1}, 128', f's_mul_i32 s{sU3}, s{sW}, {2 * HST}', f's_lshl_b32 s{sT0}, s{sFIRST}, 30', f'v_add_u32 v{vHo}, s{sT0}, v{vXo}',
        f's_sub_u32 s{sT4}, s{sFIRST}, 1', f's_mov_b32 s{sT5}, s{sT4}', f's_mov_b32 s{sGUARD}, {SPIN}']
def hs_check():
    A('s_waitcnt vmcnt(0)')
    A.label('L_hs')
    A(f'v_cmp_ne_u32 vcc, s{sTAG}, v{sa+3}')
    A(f's_and_b64 vcc, vcc, {sr(sT4,2)}')
    A('s_cbranch_vccnz L_hsr')
    A.label('L_hsok')
far2 += ['L_hsr:', hs_ld, 's_waitcnt vmcnt(0)', f's_sub_u32 s{sGUARD}, s{sGUARD}, 1', 's_cbranch_scc0 L_hs', 's_branch L_hsok']
def own_pre():
    A(f's_cmp_lg_u32 s{sOWN}, 0')
    A('s_cbranch_scc1 L_ys')
    A.label('L_ysr')
save = A.lines; A.lines = []
y_start()
far2 += ['L_ys:'] + [l.text for l in A.lines] + ['s_branch L_ysr']; A.lines = save
ins = {2 + n_: [x] for n_, x in enumerate(prep)}
k_ = (NH - 1 - N1) * 12
assert k_ > len(prep) + 2
ins[k_] = [hs_ld]
ins[k_ + 24] = [hs_check]
ins[k_ + 25] = [f's_add_u32 m0, s{sU3}, {L_HA}', f'buffer_load_dwordx4 v{vHo}, {srd(SRD_WS)}, s{sU1} offen sc1 lds']
ins[k_ + 26] = [f's_add_u32 m0, s{sU3}, {L_HA + HST}', f'buffer_load_dwordx4 v{vHo}, {srd(SRD_WS)}, s{sU2} offen sc1 lds', own_pre]
G = gemm_groups(N1, N2)
for n_ in range(k_ + 27):
    for x in G.pop(0): A(x)
    for x in ins.get(n_, []): emit(x)
V.release(vHo)
A.sprinkle = (G, 2, emit)
mu = V.alloc(); var = V.alloc(); pr = V.alloc(); mm = V.alloc()
for r in (0, 2): A(f'v_add_f32_dpp v{sa+r}, v{sa+r}, v{sa+r} row_ror:8 {DP}')
for sw in ('v_permlane16_swap_b32', 'v_permlane32_swap_b32'):
    for r in (0, 2): A(f'v_mov_b32 v{sa+4+r}, v{sa+r}')
    for r in (0, 2): A(f'{sw} v{sa+r}, v{sa+4+r}')
    for r in (0, 2): A(f'v_add_f32 v{sa+r}, v{sa+r}, v{sa+4+r}')
ln_params(sa, sa + 2, mu, var, mm, pr, t0)
chain_params(mu, var, mm, pr, t2, t3)
A.sprinkle = None
for g_ in G:
    for x in g_: emit(x)
A(f's_mov_b64 exec, {sr(sT4,2)}')
A(f'ds_write2_b32 v{vQ4}, v{t2}, v{t3} offset0:0 offset1:80')
A('s_mov_b64 exec, -1')
V.release(mu); V.release(var); V.release(pr); V.release(mm)
endif(E, False)
V.release(sa, 8)
stamp()
A(f's_cmp_eq_u32 s{sOWN}, 0')
A('s_cbranch_scc1 L_own_end')
A(f's_cmp_eq_u32 s{sLAYER}, 0')
A('s_cbranch_scc1 L_own2')
A.label('L_own')
A(f's_bfe_u32 s{sT0}, s{sKEY}, 0x50006')
A(f's_cmp_lg_u32 s{sT0}, s{sRB}')
A('s_cbranch_scc1 L_own_end')
y_start()
A.label('L_own2')
A(f's_and_b32 s{sRHO}, s{sKEY}, 2047')
sg = V.alloc(); ya = V.alloc(); yb = V.alloc(); yc = V.alloc()
def y_check():
    A(f'v_max3_u32 v{t0}, v{yp}, v{yp+4}, v{yp+8}')
    A(f'v_max3_u32 v{t1}, v{yp+12}, v{yp+16}, v{yp+20}')
    A(f'v_max_u32 v{t0}, v{t0}, v{t1}')
    A(f'v_cmp_eq_u32 vcc, -1, v{t0}')
A(f's_bfe_u32 s{sT0}, s{sK0}, 0x70004')
A(f's_bfe_u32 s{sT2}, s{sKEY}, 0x70004')
A(f's_cmp_eq_u32 s{sT0}, s{sT2}')
A(f's_cselect_b32 s{sT0}, s{sTOK}, 0')
A(f's_lshl_b32 s{sT0}, s{sT0}, 8')
A(f's_and_b32 s{sT2}, s{sT2}, 3')
A(f's_lshl_b32 s{sT2}, s{sT2}, 9')
A(f's_add_u32 s{sT0}, s{sT0}, s{sT2}')
A(f's_add_u32 s{sT0}, s{sT0}, {L_CS}')
A(f'v_lshl_add_u32 v{yc}, v{vL}, 1, s{sT0}')
A(f'ds_read_u16 v{ya}, v{yc}')
A(f'ds_read_u16 v{yb}, v{yc} offset:128')
A(f's_ashr_i32 s{sT2}, s{sKEY}, 31')
A(f's_not_b32 s{sT2}, s{sT2}')
A(f's_or_b32 s{sT2}, s{sT2}, 0x80000000')
A(f's_xor_b32 s{sT2}, s{sT2}, s{sKEY}')
A(f'v_mov_b32 v{sg}, s{sT2}')
bf_round(sg, sg)
A(f'v_mul_f32 v{sg}, {hex(f2u(-1.4426950408889634))}, v{sg}')
A(f'v_exp_f32 v{sg}, v{sg}')
A(f'v_add_f32 v{sg}, 1.0, v{sg}')
A(f'v_rcp_f32 v{sg}, v{sg}')
bf_round(sg, sg)
A('s_waitcnt lgkmcnt(0)')
A(f'v_lshlrev_b32 v{ya}, 16, v{ya}')
A(f'v_lshlrev_b32 v{yb}, 16, v{yb}')
A(f'v_lshlrev_b32 v{yc}, 4, v0')
A(f'v_add_u32 v{yc}, {L_RED}, v{yc}')
A(f's_lshl_b32 s{sT2}, s{sHG}, 7')
A(f's_and_b32 s{sU0}, s{sRHO}, 1023')
A(f's_lshl_b32 s{sU0}, s{sU0}, 11')
A(f's_and_b32 s{sT0}, s{sRHO}, 1024')
A(f's_add_u32 s{sU0}, s{sU0}, s{sT0}')
A(f's_add_u32 s{sU0}, s{sU0}, s{sT2}')
A(f's_lshl_b32 s{sU1}, s{sTOK}, 10')
A(f's_add_u32 s{sU1}, s{sU1}, s{sT2}')
A(f's_add_u32 s{sU1}, s{sU1}, {WS_X2R}')
repoll(y_issue, y_check, 'YP')
fine()
for a_, b_ in ((0, 4), (8, 12), (16, 20), (0, 8), (0, 16)):
    for h in range(2):
        A(f'v_pk_add_f32 {vr(yp+a_+2*h,2)}, {vr(yp+a_+2*h,2)}, {vr(yp+b_+2*h,2)}')
A(f'ds_write_b128 v{yc}, {vr(yp,4)}')
A(f'v_lshlrev_b32 v{t0}, 2, v{vL}')
A(f'v_add_u32 v{t0}, {L_RED}, v{t0}')
A('s_waitcnt lgkmcnt(0)')
A('s_barrier')
A(f's_cmp_lg_u32 s{sW}, 3')
A('s_cbranch_scc1 L_own_sync')
for j in range(8):
    A(f'ds_read2st64_b32 {vr(yp + 2*j, 2)}, v{t0} offset0:{2*j} offset1:{2*j+1}')
A(f'v_lshlrev_b32 v{t0}, 1, v{vL}')
for n_, (a_, b_) in enumerate(((0, 2), (4, 6), (8, 10), (12, 14), (0, 4), (8, 12), (0, 8))):
    if n_ < 4: A(f's_waitcnt lgkmcnt({6 - 2 * n_})')
    A(f'v_pk_add_f32 {vr(yp+a_,2)}, {vr(yp+a_,2)}, {vr(yp+b_,2)}')
A(f'v_add_f32 v{yp}, v{yp}, v{yp+1}')
bf_round(yp, yp)
A(f'v_mul_f32 v{yp}, v{yp}, v{sg}')
bf_round(yp, yp)
A(f'v_add_f32 v{yp}, v{yp}, v{yb}')
bf_round(yp, yp)
A(f'v_add_f32 v{yp}, v{yp}, v{ya}')
A(f'v_mov_b32_dpp v{yp+1}, v{yp} quad_perm:[1,0,3,2] {DP}')
A(f'v_cvt_pk_bf16_f32 v{yp}, v{yp}, v{yp+1}')
A('s_mov_b32 exec_lo, 0x55555555')
A('s_mov_b32 exec_hi, 0x55555555')
A(f's_cmp_eq_u32 s{sLAYER}, 0')
A('s_cbranch_scc1 L_own_x2')
A(f'buffer_store_dword v{yp}, v{t0}, {srd(SRD_OUT)}, s{sU0} offen')
A('s_branch L_own_fin')
A.label('L_own_x2')
local_stores([f'buffer_store_dword v{yp}, v{t0}, {srd(SRD_WS)}, s{sU1} offen'])
A(f's_and_b32 s{sT0}, s{sRHO}, 63')
A(f's_cmp_lt_u32 s{sT0}, 56')
A('s_cbranch_scc1 L_own_nh')
A(f'buffer_store_dword v{yp}, v{t0}, {srd(SRD_WS)}, s{sU1} offen offset:2048 sc1')
A.label('L_own_nh')
A(f'v_add_u32 v{t0}, {L_X2S}, v{t0}')
A(f'ds_write_b32 v{t0}, v{yp}')
A.label('L_own_fin')
A('s_mov_b64 exec, -1')
A.label('L_own_sync')
A('s_waitcnt lgkmcnt(0)')
A('s_barrier')
A(f's_bfe_u32 s{sT0}, s{sRHO}, 0x20004')
A(f's_cmp_lg_u32 s{sT0}, s{sW}')
A('s_cbranch_scc1 L_own_next')
A(f's_and_b32 s{sT0}, s{sRHO}, 15')
A(f'v_add_u32 v{t0}, {L_X2S}, v{vGm}')
A(f'v_cmp_eq_u32 vcc, s{sT0}, v{vQ}')
A('s_mov_b64 exec, vcc')
A(f'ds_read_b128 {vr(xP,4)}, v{t0}')
A(f'ds_read_b128 {vr(xP+4,4)}, v{t0} offset:64')
A('s_mov_b64 exec, -1')
A('s_waitcnt lgkmcnt(0)')
V.release(yp, 24); V.release(yo, 2); V.release(sg); V.release(ya); V.release(yb); V.release(yc)
A.label('L_own_next')
A(f's_mov_b32 s{sKEY}, s{sK1}')
A(f's_add_u32 s{sTOK}, s{sTOK}, 1')
A(f's_cmp_lt_u32 s{sTOK}, 2')
A('s_cbranch_scc1 L_own')
A.label('L_own_end')
A(f's_cmp_eq_u32 s{sLAYER}, 1')
A('s_cbranch_scc1 L_fin')
stamp()
G = gemm_groups(N2, 16)
for x in G.pop(0): A(x)
A.sprinkle = (G, 1, emit)
sS0, sS1 = sU2, sU3
for key_, dst in ((sK0, sS0), (sK1, sS1)):
    A(f's_and_b32 s{sT0}, s{key_}, 2047')
    A(f's_lshl_b32 s{sT1}, s{sRB}, 6')
    A(f's_sub_u32 s{sT0}, s{sT0}, s{sT1}')
    A(f's_add_u32 s{dst}, s{sT0}, 16')
    A(f's_cmp_lt_u32 s{dst}, 80')
    A(f's_cselect_b32 s{dst}, s{dst}, 0')
    A(f's_lshl_b32 s{sT1}, s{sFIRST}, 3')
    A(f's_add_u32 s{sT1}, s{sT1}, 8')
    A(f's_cmp_ge_u32 s{dst}, s{sT1}')
    A(f's_cselect_b32 s{dst}, s{dst}, 0')
A(f's_cmp_eq_u32 s{sW}, 2')
A.sprinkle = None
A(f's_cselect_b32 s{sT4}, s{sS0}, s{sS1}')
A(f's_cselect_b32 s{sTOK}, 0, 1')
A(f's_bitcmp1_b32 s{sW}, 0')
A(f's_cselect_b32 s{sT4}, 0, s{sT4}')
rw = V.take(144, 4); rc = V.take(148, 4); vc = V.take(152, 16); dfl = V.take(168, 2); vRw = V.take(170); vDf = V.take(171)
df_issue = lambda: A(f'buffer_load_dwordx2 {vr(dfl,2)}, v{vDf}, {srd(SRD_WS)}, s{aX1Fp} offen offset:256 sc1')
bump = [f'v_mov_b32 v{vXs}, 0x40000000', f'v_and_b32 v{vDf}, 56, v{vL8}',
        f'v_lshrrev_b32 v{vRw}, 3, v{vL}', f'v_mul_u32_u24 v{vRw}, {HST - 128}, v{vRw}', f'v_add_u32 v{vRw}, v{vRw}, v{vL16}', f'v_add_u32 v{vRw}, {L_HA + 1024}, v{vRw}']
for a_, d_ in ((aFLp, 1 << 14), (aFLs, 1 << 14), (aSTp, 1 << 18), (aSTs, 1 << 18), (aKEYs, 1 << 13), (aKEYp, 1 << 13),
               (aCANDs, 1 << 18), (aCANDb, 1 << 18), (aYPs, 86 * 4096), (aYPb, 86 * 4096)):
    bump.append(f's_add_u32 s{a_}, s{a_}, {d_}')
PS = {0: 4, 1: 20}
for tok, sl in ((0, sS0), (1, sS1)):
    p = PS[tok]
    bump += [f's_and_b32 s{p+5}, s{sl}, 15', f's_lshl_b32 s{p}, 0x00010001, s{p+5}', f's_mov_b32 s{p+1}, s{p}',
             f's_lshr_b32 s{p+4}, s{sl}, 4', f's_lshl_b32 s{p+2}, s{p+4}, 2', f's_lshl_b32 s{p+4}, s{p+4}, 1',
             f's_sub_u32 s{p+3}, s{p+4}, 2', f's_min_u32 s{p+3}, s{p+3}, 7',
             f's_bfe_u32 s{p+6}, s{p+5}, 0x10001', f's_add_u32 s{p+4}, s{p+4}, s{p+6}',
             f's_and_b32 s{p+6}, s{p+5}, 12', f's_lshl_b32 s{p+6}, s{p+6}, 2', f's_lshl_b64 s[{p+6}:{p+7}], 0xffff, s{p+6}',
             f's_lshl_b32 s{p+5}, s{p+5}, 4', f's_lshl_b32 s{p+5}, 0xffff, s{p+5}']
for g_ in G:
    for x in g_: emit(x)
    for _ in range(3):
        if bump: A(bump.pop(0))
while bump: A(bump.pop(0))
df_issue()
A(f'ds_read2_b32 {vr(rc,2)}, v{vQ4} offset0:96 offset1:112')
A(f'ds_read2_b32 {vr(rc+2,2)}, v{vQ4} offset0:128 offset1:144')
for T in range(4): A(f'ds_read_b128 {vr(vc + 4 * T, 4)}, v{vG16} offset:{320 + 64 * (T + 1)}')
for b in fr: V.release(b, 16)
E = skip_unless([f's_cmp_eq_u32 s{sT4}, 0'])
A(f's_cmp_lt_u32 s{sT4}, 16')
A(f's_cselect_b32 s{sT1}, 2, 0')
A(f's_add_u32 s{sT0}, s{sTOK}, s{sT1}')
A(f's_lshl_b32 s{sT0}, s{sT0}, 10')
A(f's_add_u32 s{sT0}, s{sT0}, {WS_X2R}')
r_issue = lambda: A(f'buffer_load_dwordx4 {vr(rw,4)}, v{vL16}, {srd(SRD_WS)}, s{sT0} offen sc1')
r_issue()
A(f's_lshl_b32 s{sT1}, s{sTOK}, 7')
A(f'v_add_u32 v{t2}, s{sT1}, v{vRw}')
def r_check():
    A(f'v_max3_u32 v{t0}, v{rw}, v{rw+1}, v{rw+2}')
    A(f'ds_write_b128 v{t2}, {vr(rw,4)}')
    A(f'v_max_u32 v{t0}, v{t0}, v{rw+3}')
    A(f'v_cmp_eq_u32 vcc, -1, v{t0}')
    A('s_waitcnt lgkmcnt(0)')
repoll(r_issue, r_check, 'X2R')
endif(E, False)
A('s_waitcnt vmcnt(0) lgkmcnt(0)')
fine()
A('s_barrier')
fine()
xr = V.alloc(64, 2); hp_ = vc
def h_read(ks): return f'ds_read_b128 {vr(xr + 4*ks, 4)}, v{vH + (ks & 1)} offset:{(ks >> 1) * HST}'
def shadow():
    sh = []
    for T in range(4):
        sh += [f'v_mul_f32 v{accV+4*T+4+r}, v{accV+4*T+4+r}, v{vc+4*T+r}' for r in range(4)] + pack2(hV + 2 * T + 2, accV + 4 * T + 4)
    for T in range(4):
        sh += pack2(hQ(T), hQ(T))
        sh += [f'v_mul_f32 v{hK(T)+r}, v{hK(T)+r}, v{rc+T}' for r in range(4)] + pack2(hK(T), hK(T))
        sh += [f'v_mul_f32 v{mxc+2*T}, {hex(f2u(QSC))}, v{rc+T}']
    return sh
def halo_gemm(with_q, sh):
    hr = [h_read(ks) for ks in range(10, 16)]
    hr2 = [f'ds_read2_b32 {vr(hp_,2)}, v{vQ4} offset0:0 offset1:80', f'ds_read_b128 {vr(hp_+2,4)}, v{vG16}', f'ds_read_b128 {vr(hp_+6,4)}, v{vG16} offset:320']
    for ks in range(16):
        c = lambda x: '0' if ks == 0 else vr(x, 4)
        X = vr(xr + 4 * ks, 4)
        if ks == 0: A('s_waitcnt lgkmcnt(7)')
        if ks == 3: A('s_waitcnt lgkmcnt(3)')
        if ks == 9: A('s_waitcnt lgkmcnt(0)')
        M = [mf(vr(accK, 4), ar(aW(ks, 1), 4), X, c(accK)), mf(vr(accV, 4), X, ar(aW(ks, 2), 4), c(accV))]
        if with_q: M.append(mf(vr(accQ, 4), ar(aW(ks, 0), 4), X, c(accQ)))
        for n_, m_ in enumerate(M):
            A(m_)
            if n_ == 0 and hr: A(hr.pop(0))
            if n_ == 0 and ks >= 10 and hr2: A(hr2.pop(0))
            for _ in range(2):
                if sh: A(sh.pop(0))
    while sh: A(sh.pop(0))
    A('s_waitcnt lgkmcnt(0)')
A(f's_or_b32 s{sT0}, s{sS0}, s{sS1}')
A('s_cbranch_scc0 L_nofix')
nq = xr; rr = xr + 56; s12 = V.take(172, 4); pp = accV + 16
for tok in range(2): A(f'ds_read_b128 {vr(rr + 4 * tok, 4)}, v{vRw} offset:{128 * tok}')
for ks in range(10): A(h_read(ks))
for r in range(4): A(f'v_mov_b32 v{s12+r}, 0')
A('s_waitcnt lgkmcnt(10)')
for j in range(4):
    for tok in range(2):
        A(f'v_dot2c_f32_bf16 v{s12+2*tok}, v{rr+4*tok+j}, v{vOnes}')
        A(f'v_dot2c_f32_bf16 v{s12+2*tok+1}, v{rr+4*tok+j}, v{rr+4*tok+j}')
save = A.lines; A.lines = []
for r in range(2): A(f'v_permlane32_swap_b32 v{s12+r}, v{s12+2+r}')
for r in range(2): A(f'v_add_f32 v{s12+r}, v{s12+r}, v{s12+2+r}')
for sh_ in (8, 4, 2, 1):
    for r in range(2): A(f'v_add_f32_dpp v{s12+r}, v{s12+r}, v{s12+r} row_ror:{sh_} {DP}')
for r in range(2): A(f'v_mov_b32 v{s12+2+r}, v{s12+r}')
for r in range(2): A(f'v_permlane16_swap_b32 v{s12+r}, v{s12+2+r}')
for r in range(2): A(f'v_add_f32 v{s12+r}, v{s12+r}, v{s12+2+r}')
ln_params(s12, s12 + 1, rw, rw + 1, pp, pp + 1, t0)
A(f'v_xor_b32 v{pp}, 0x80000000, v{pp}')
A(f'v_mov_b32 v{pp+3}, v{pp+1}')
A(f'v_mov_b32 v{pp+2}, v{pp}')
for r in range(2): A(f'v_permlane32_swap_b32 v{pp+r}, v{pp+2+r}')
st_ = [l.text for l in A.lines if l.op != 's_nop']; A.lines = save
halo_gemm(True, shadow() + st_)
V.release(s12, 4)
stamp()
tag_check(dfl)
for tok in range(2):
    for r in range(4): A(f'v_mov_b32_dpp v{nq+10*tok+4+r}, v{accK+r} row_newbcast:{tok} {DP}')
    A(f'v_mov_b32 v{nq+10*tok+8}, v{accV+tok}')
    A(f'v_mov_b32 v{nq+10*tok+9}, v{accV+tok}')
norm_pk(-1, hp_, hp_ + 2, hp_ + 6)
for tok in range(2):
    A(f'v_permlane32_swap_b32 v{nq+10*tok+8}, v{nq+10*tok+9}')
for x in pack2(hK(-1), hK(-1)) + pack2(hV, accV): A(x)
for tok, sl in ((0, sS0), (1, sS1)):
    E = skip_unless([f's_cmp_eq_u32 s{sl}, 0'])
    n_ = nq + 10 * tok; p_ = pp + 2 * tok
    for r in range(4): A(f'v_mov_b32_dpp v{n_+r}, v{accQ+r} row_newbcast:{tok} {DP}')
    for h in range(2):
        A(f'v_pk_fma_f32 {vr(n_+4+2*h,2)}, {vr(csK+2*h,2)}, {vr(p_,2)}, {vr(n_+4+2*h,2)} op_sel_hi:[1,0,1]')
        A(f'v_pk_fma_f32 {vr(n_+2*h,2)}, {vr(csQ+2*h,2)}, {vr(p_,2)}, {vr(n_+2*h,2)} op_sel_hi:[1,0,1]')
    A(f'v_fma_f32 v{n_+8}, v{csV}, v{p_}, v{n_+8}')
    for h in range(2):
        A(f'v_pk_mul_f32 {vr(n_+4+2*h,2)}, {vr(n_+4+2*h,2)}, {vr(p_,2)} op_sel:[0,1] op_sel_hi:[1,1]')
    A(f'v_mul_f32 v{n_+8}, v{n_+8}, v{p_+1}')
    for x in pack2(n_, n_) + pack2(n_ + 4, n_ + 4): A(x)
    A(f'v_cvt_pk_bf16_f32 v{n_+8}, v{n_+8}, v{n_+8}')
    A(f'v_mul_f32 v{n_+9}, {hex(f2u(QSC))}, v{p_+1}')
    p = PS[tok]
    A(f's_mov_b64 exec, s[{p}:{p+1}]')
    A(f's_set_gpr_idx_on s{p+2}, gpr_idx(SRC2,DST)')
    for r in range(2): A(f'v_mov_b32 v{accQ+r}, v{n_+r}')
    for r in range(2): A(f'v_mov_b32 v{accK+r}, v{n_+4+r}')
    A(f's_set_gpr_idx_idx s{p+3}')
    A(f'v_mov_b32 v{mxc}, v{n_+9}')
    A(f's_set_gpr_idx_idx s{p+4}')
    A(f's_mov_b64 exec, s[{p+6}:{p+7}]')
    A(f'v_bfi_b32 v{hV}, s{p+5}, v{n_+8}, v{hV}')
    A('s_set_gpr_idx_off')
    A('s_mov_b64 exec, -1')
    endif(E, False)
A('s_branch L_fixed')
A.label('L_nofix')
for ks in range(10): A(h_read(ks))
sh = shadow()
for _ in range(6): A(sh.pop(0))
halo_gemm(False, sh)
stamp_n[0] -= 1; stamp()
tag_check(dfl)
norm_pk(-1, hp_, hp_ + 2, hp_ + 6)
for x in pack2(hK(-1), hK(-1)) + pack2(hV, accV): A(x)
A.label('L_fixed')
V.release(rw, 4); V.release(xr, 64); V.release(rc, 4); V.release(vc, 16); V.release(vRw)
A(f's_cbranch_vccz L_dfok')
poll(df_issue, lambda: tag_check(dfl), 'DF')
A.label('L_dfok')
V.release(dfl, 2); V.release(vDf)
stamp()
A(f's_mov_b32 s{sLAYER}, 1')
V.take(oP, 8)
attention([])
A('s_branch L_pub')
A.label('L_fin')
A(f's_or_b32 s{sT0}, s2, s{sW}')
A('s_cbranch_scc1 L_fin2')
A(f's_mov_b32 s{sT1}, {WS_EPOCH}')
A('s_mov_b64 exec, 1')
A(f'buffer_store_dword v{tg}, v{vL16}, {srd(SRD_WS)}, s{sT1} offen')
A('s_mov_b64 exec, -1')
A.label('L_fin2')
if 'wb' in OPT:
    A(f's_lshl_b32 s{sT0}, s{sI}, 2')
    A(f's_add_u32 s{sT0}, s{sT0}, s{sW}')
    A(f's_lshl_b32 s{sT1}, s{sOWN}, 8')
    A(f's_add_u32 s{sT0}, s{sT0}, s{sT1}')
    A(f's_cmp_lg_u32 s{sT0}, {31 * 4 + 1}')
    A('s_cbranch_scc1 L_fin3')
    A('buffer_wbl2 sc1')
    A.label('L_fin3')
finish()
emit_far()
A.label('L_end')
A('s_endpgm')

hdr = f"""; @launch grid=(256,1,1) block=(256,1,1) lds={LDS_SIZE}
.amdgcn_target "amdgcn-amd-amdhsa--gfx950"
.text
.globl {NAME}_kernel
.p2align 8
.type {NAME}_kernel,@function
"""
tail = f"""
.section .rodata,"a"
.p2align 6
.amdhsa_kernel {NAME}_kernel
  .amdhsa_next_free_vgpr 512
  .amdhsa_next_free_sgpr 102
  .amdhsa_accum_offset 256
  .amdhsa_group_segment_fixed_size 0
  .amdhsa_kernarg_size 88
  .amdhsa_user_sgpr_count 2
  .amdhsa_user_sgpr_kernarg_segment_ptr 1
  .amdhsa_system_sgpr_workgroup_id_x 1
.end_amdhsa_kernel
"""
open(sys.argv[1], 'w').write(hdr + A.text() + tail)
print('vgpr high water', V.hw, 'nops added', A.nops_added, 'lines', len(A.lines))
```

```python
import sys, struct
from asmlib import *

NAME = "interleave_layers__sliding_local_dilated__moe_arch_mod__prompt"
STOP = None
STAMPS = False
FORCE_REMOTE = False
OPT = set(sys.argv[2:])
for a in sys.argv[2:]:
    if a.startswith('stop='): STOP = a[5:]
    if a == 'stamps': STAMPS = True
    if a == 'remote': FORCE_REMOTE = True

def f2u(x): return struct.unpack('<I', struct.pack('<f', x))[0]
MB = 1 << 20
WS_O = 0
WS_X1 = WS_O
WS_SENT = 4 * MB
WS_KEYS = WS_SENT + 16384
WS_HS = WS_SENT + 32768
WS_X2R = WS_SENT
WS_CAND = WS_SENT + 64 * 1024
WS_YP = WS_SENT + 576 * 1024
assert WS_YP + 2 * 86 * 4096 <= WS_SENT + 1280 * 1024
WS_ST = WS_SENT + 1280 * 1024
WS_HALO = 6 * MB
WS_ST0 = WS_HALO + 256 * 1024 + 128
WS_FL = WS_HALO + 320 * 1024
WS_X1F = WS_HALO + 352 * 1024
WS_HELLO = WS_HALO + 384 * 1024
WS_EPOCH = WS_HELLO + 8 * 4096
WS_FT = 10 * MB
WS_STAMP = 8 * MB
WS_SIZE = 16 * MB
L_A = 0
L_HA = 65536
HST = 1280
L_W = L_HA + 8 * HST
SLOT = {1: 0, 0: 24576, 2: 49152}
L_WO = L_W + 12288
def wo_off(ks): return 61440 if ks == 15 else ((ks - 12) * 4096 if ks >= 12 else (12288 + (ks - 6) * 4096 if ks >= 6 else 36864 + ks * 4096))
L_W15 = L_A
L_FT = L_A + 12288
L_WD = L_A + 24576
L_RED = L_W
L_ROW = L_W + 4096
L_XS = L_W + 8192
L_TAB = L_W + 3 * 24576 + 4096
L_CS = L_TAB + 640
L_H = L_CS + 2048
L_X2S = L_H + 64
L_KEY = L_X2S + 128
LDS_SIZE = 160 * 1024
assert L_KEY + 64 <= LDS_SIZE
SRD_X, SRD_W, SRD_WS, SRD_OUT, SRD_U, SRD_T = 4, 8, 12, 16, 20, 24
P = 28
sW, sSET, sI, sHG, sRB, sP, sJ0, sFIRST, sLOCAL, sLAYER = range(50, 60)
sT0, sT1, sT2, sT3, sT4, sT5 = range(60, 66)
sM0, sM1 = 66, 68
sRET = 70
sSTAMP = 72
sGUARD = 75
sTAG, sTAGB = 76, 77
sFS, sHASF, sK0, sK1, sTOK, sRHO, sKEY, sST = range(78, 86)
sAB, sAM, sWM, sOM = range(86, 90)
sSTB = 92
sU0, sU1, sU2, sU3 = range(94, 98)
stamp_n = [0]

A = Asm()
VP = Pool(1, 80)
V = Pool(80, 256)
vST = VP.alloc()
oP = V.take(80, 8); wra = V.take(88, 4)
fr = [V.take(136, 20), V.take(156, 20)]; vc = V.take(176, 20); srow = V.take(124, 8); s12 = V.take(132, 4)
def srd(n): return sr(n, 4)
DP = 'row_mask:0xf bank_mask:0xf'

PADAT = next((a[6:].split(',') for a in OPT if a.startswith('padat=')), None)
pad_n = [1]
def stamp(force=False):
    if PADAT:
        n = pad_n[0]; pad_n[0] += 1
        if n == int(PADAT[1]):
            L = A.newlabel('L_pad')
            A(f's_cmp_lg_u32 s{sLAYER}, {PADAT[0]}')
            A(f's_cbranch_scc1 {L}e')
            A.label(L)
            A(f's_memrealtime {sr(sSTAMP,2)}')
            A('s_waitcnt lgkmcnt(0)')
            A(f's_sub_u32 s{sSTAMP}, s{sSTAMP}, s90')
            A(f's_cmp_lt_u32 s{sSTAMP}, {PADAT[2]}')
            A(f's_cbranch_scc1 {L}')
            A.label(L + 'e')
    if not STAMPS: return
    n = stamp_n[0]; stamp_n[0] += 1
    if 'minstamp' in OPT and not force: return
    assert n < 32
    A(f'{"s_memtime" if "cyc" in sys.argv else "s_memrealtime"} {sr(sSTAMP,2)}')
    A(f's_lshl_b32 s{sST}, s{sLAYER}, 5')
    A(f's_add_u32 s{sST}, s{sST}, {n}')
    A('s_waitcnt lgkmcnt(0)')
    A(f's_mov_b32 m0, s{sST}')
    A('s_nop 0')
    A(f'v_writelane_b32 v{vST}, s{sSTAMP}, m0')

def mk_srd(d, ptr, size):
    A(f's_mov_b32 s{d}, s{ptr}')
    A(f's_and_b32 s{d+1}, s{ptr+1}, 0xffff')
    A(f's_mov_b32 s{d+2}, {size}')
    A(f's_mov_b32 s{d+3}, 0x20000')

def bf_round(dst, src):
    A(f'v_cvt_pk_bf16_f32 v{dst}, 0, v{src}')

def ln_params(s1, s2, mu, var, m, rs, t):
    A(f'v_mul_f32 v{mu}, {hex(f2u(1/512))}, v{s1}')
    A(f'v_mul_f32 v{var}, {hex(f2u(1/512))}, v{s2}')
    A(f'v_fma_f32 v{var}, -v{mu}, v{mu}, v{var}')
    A(f'v_max_f32 v{var}, 0, v{var}')
    round_params(mu, var, m, rs, t)

def round_params(mu, var, m, rs, t):
    bf_round(t, var)
    A(f'v_add_f32 v{t}, {hex(f2u(1e-5))}, v{t}')
    bf_round(t, t)
    A(f'v_sqrt_f32 v{t}, v{t}')
    bf_round(m, mu)
    bf_round(t, t)
    A(f'v_rcp_f32 v{rs}, v{t}')

def finish():
    if PAD:
        L = A.newlabel('L_pad')
        A.label(L)
        A(f's_memrealtime {sr(sSTAMP,2)}')
        A('s_waitcnt lgkmcnt(0)')
        A(f's_sub_u32 s{sSTAMP}, s{sSTAMP}, s90')
        A(f's_cmp_lt_u32 s{sSTAMP}, {PAD}')
        A(f's_cbranch_scc1 {L}')
    if STAMPS:
        stamp(True)
        A(f's_lshl_b32 s{sT0}, s2, 10')
        A(f's_add_u32 s{sT0}, s{sT0}, {WS_STAMP}')
        A(f'v_lshlrev_b32 v{t0}, 2, v0')
        A(f'buffer_store_dword v{vST}, v{t0}, {srd(SRD_WS)}, s{sT0} offen')
    A('s_endpgm')

def mf(d, a, b, c, k32=True):
    return f'v_mfma_f32_16x16x{32 if k32 else 16}_bf16 {d}, {a}, {b}, {c}'
def emit(x):
    if callable(x): x()
    elif isinstance(x, tuple): A(x[0], tag=x[1])
    else: A(x)


class Defer:
    def __init__(self, out): self.out = out
    def __enter__(self):
        if 'defer' in OPT: self.save = A.lines; A.lines = []
    def __exit__(self, *a):
        if 'defer' not in OPT: return
        for l in A.lines:
            if l.op == 's_nop': continue
            if l.op.startswith(('s_cselect', 's_addc', 's_subb')): self.out[-1].append(l.text)
            else: self.out.append([l.text])
        A.lines = self.save
D1, D2, D3, D4 = [], [], [], []
A.raw(f'{NAME}_kernel:')
A('s_cmp_ge_u32 s2, 256')
A('s_cbranch_scc1 L_end')
PAD = int(next((a[6:] for a in OPT if a.startswith('padto=')), '0'))
if PAD or PADAT: A('s_memrealtime s[90:91]')
if STAMPS: A(f'{"s_memtime" if "cyc" in sys.argv else "s_memrealtime"} s[90:91]')
A(f's_load_dwordx2 {sr(SRD_W,2)}, s[0:1], 8')
A(f's_load_dwordx2 {sr(SRD_X,2)}, s[0:1], 0')
P_X, P_W, P_WO, P_BX, P_WR, P_WG, P_WU, P_WD, P_OUT, P_DBG, P_WS = [P + 2 * i for i in range(11)]
vL = VP.alloc(); vQ = VP.alloc(); vG = VP.alloc(); vL16 = VP.alloc()
t0 = VP.alloc(); t1 = VP.alloc(); t2 = VP.alloc(); t3 = VP.alloc()
vDum = VP.alloc()
vXe = VP.alloc(); vXo = VP.alloc()
vR8 = V.take(93); vWo = V.take(92); vWd = V.alloc(); vSt = V.alloc()
A(f'v_lshrrev_b32 v{t0}, 6, v0')
A(f'v_lshrrev_b32 v{t1}, 3, v0')
A(f'v_readfirstlane_b32 s{sW}, v{t0}')
A(f'v_and_b32 v{t2}, 2, v{t1}')
A(f'v_and_b32 v{t0}, 1, v{t0}')
A(f'v_lshl_or_b32 v{t2}, v{t0}, 2, v{t2}')
A(f'v_and_b32 v{t3}, 7, v0')
A(f'v_xor_b32 v{t2}, v{t2}, v{t3}')
A(f's_bfe_u32 s{sHG}, s2, 0x30003')
A(f's_lshl_b32 s{sT0}, s{sHG}, 7')
A(f'v_lshl_add_u32 v{t2}, v{t2}, 4, s{sT0}')
A(f'v_mul_u32_u24 v{vWd}, 3072, v{t1}')
A(f'v_add_u32 v{vWd}, v{vWd}, v{t2}')
A(f's_mul_i32 s{sWM}, s{sW}, 3072')
A(f's_add_u32 s{sWM}, s{sWM}, {L_W}')
A(f's_mov_b32 s{SRD_W+2}, {512 * 3072}')
A(f's_mov_b32 s{SRD_W+3}, 0x20000')
A(f's_mov_b32 s{SRD_X+2}, {2 * MB}')
A(f's_mov_b32 s{SRD_X+3}, 0x20000')
A(f'v_lshl_add_u32 v{vWo}, v{t1}, 10, v{t2}')
A(f'v_bfe_u32 v{vG}, v0, 4, 2')
A(f'v_and_b32 v{vR8}, 7, v{t1}')
A(f'v_xor_b32 v{t2}, v{t3}, v{vG}')
A(f'v_lshlrev_b32 v{t2}, 4, v{t2}')
A(f'v_lshl_add_u32 v{vXe}, v{vR8}, 11, v{t2}')
A(f'v_xor_b32 v{vXo}, 64, v{vXe}')
A(f'v_add_u32 v{vXo}, {8 * 2048}, v{vXo}')
A(f's_and_b32 s{sSET}, s2, 7')
A(f's_lshr_b32 s{sT0}, s2, 6')
A(f's_lshl_b32 s{sRB}, s{sSET}, 2')
A(f's_add_u32 s{sRB}, s{sRB}, s{sT0}')
A(f's_and_b32 s{sJ0}, s{sRB}, 15')
A(f's_lshl_b32 s{sT4}, s{sJ0}, 17')
A(f's_and_b32 s{sT1}, s{sRB}, 16')
A(f's_lshl_b32 s{sT1}, s{sT1}, 6')
A(f's_add_u32 s{sT4}, s{sT4}, s{sT1}')
A(f's_lshl_b32 s{sAB}, s{sW}, 15')
A(f's_add_u32 s{sAB}, s{sAB}, s{sT4}')
A(f's_lshl_b32 s{sAM}, s{sW}, 11')
A(f's_mov_b32 s{sLAYER}, 0')
if STAMPS: A(f'v_mov_b32 v{vST}, 0')
A('s_waitcnt lgkmcnt(0)')
if STAMPS:
    A(f'v_writelane_b32 v{vST}, s90, 0'); stamp_n[0] = 1
stamp()
def stage_dma(s):
    H = []
    for ksl in range(2):
        ks = 2 * s + ksl
        H.append([f's_add_u32 m0, s{sAM}, {L_A + s * 8192 + ksl * 1024}',
                  f's_add_u32 s{sT3}, s{sAB}, {s * 128}',
                  (f'buffer_load_dwordx4 v{vXo if ksl else vXe}, {srd(SRD_X)}, s{sT3} offen{NTX if s == 0 else ""} lds', f'S{s}'),
                  (f's_sub_u32 m0, s{sWM}, {L_W - L_W15}' if ks == 15 else f's_add_u32 m0, s{sWM}, {SLOT[s % 3] + ksl * 12288}'),
                  f's_mov_b32 s{sT3}, {ks * 98304}'] +
                 [(f'buffer_load_dwordx4 v{vWd}, {srd(SRD_W)}, s{sT3} offen offset:{m * 1024} lds', f'S{s}') for m in range(3)])
    return H
NTX = ' nt' if 'ntx' in OPT else ''; NTP = ''
def halo_dma(j): return [f's_add_u32 m0, s{sT4}, {L_HA + 4 * j * HST}'] + ([f's_add_u32 s{sT5}, s{sT5}, 512'] if j else []) + \
                        [(f'buffer_load_dwordx4 v{vXo}, {srd(SRD_X)}, s{sT5} offen{NTX} lds', 'S2' if j else 'S0')]
g0 = []
for hh in stage_dma(0): g0 += [hh[:3], hh[3:6], hh[6:7], hh[7:8]]
for _ in range(2):
    for x in g0.pop(0): emit(x)
A(f's_load_dwordx16 s[{P}:{P+15}], s[0:1], 0')
A(f's_load_dwordx4 s[{P+16}:{P+19}], s[0:1], 64')
A(f's_load_dwordx2 s[{P+20}:{P+21}], s[0:1], 80')
vTw = V.alloc(); vTo = V.alloc()
A.sprinkle = (g0, 5, emit)
A(f'v_and_b32 v{vL}, 63, v0')
A(f'v_and_b32 v{vQ}, 15, v0')
A(f'v_lshlrev_b32 v{vL16}, 4, v{vL}')
A(f's_lshr_b32 s{sI}, s2, 3')
A(f's_lshr_b32 s{sP}, s{sRB}, 4')
A(f's_lshl_b32 s{sT2}, s{sHG}, 2')
A(f's_add_u32 s{sT2}, s{sT2}, s{sW}')
A(f's_lshl_b32 s{sT2}, s{sT2}, 12')
A(f's_add_u32 s{sT2}, s{sT2}, s{sT4}')
A(f'v_lshrrev_b32 v{t0}, 5, v{vL}')
A(f'v_and_b32 v{t1}, 31, v{vL}')
A(f'v_lshlrev_b32 v{t1}, 4, v{t1}')
A(f'v_lshl_add_u32 v{vSt}, v{t0}, 11, v{t1}')
A(f's_min_u32 s{sT5}, s{sJ0}, 1')
A(f's_xor_b32 s{sFIRST}, s{sT5}, 1')
A(f's_lshl_b32 s{sT5}, s{sT5}, 15')
A(f's_sub_u32 s{sT5}, s{sT4}, s{sT5}')
A(f's_lshl_b32 s{sT1}, s{sW}, 7')
A(f's_add_u32 s{sT5}, s{sT5}, s{sT1}')
A(f's_mul_i32 s{sT4}, s{sW}, {HST}')
A(f's_lshl_b32 s{sJ0}, s{sJ0}, 6')
A(f's_lshl_b32 s{sT0}, s2, 2')
A(f's_add_u32 s{sT0}, s{sT0}, s{sW}')
A(f's_mul_i32 s{sT1}, s{sT0}, {12 * 128}')
A(f's_lshl_b32 s{sT0}, s{sT0}, 9')
A(f'v_lshl_add_u32 v{vTw}, v{vL}, 7, s{sT1}')
A(f'v_lshl_add_u32 v{vTo}, v{vL}, 7, s{sT0}')
A(f's_lshl_b32 s{sU0}, s{sI}, 2')
A(f's_add_u32 s{sU0}, s{sU0}, s{sW}')
A(f's_lshl_b32 s{sT0}, s{sU0}, 10')
A(f'v_lshl_add_u32 v{t3}, v{vQ}, 17, s{sT0}')
A(f'v_cmp_lt_u32 vcc, 15, v{vL}')
A.sprinkle = None
assert not g0
for x in halo_dma(0): emit(x)
A(f's_sub_u32 s{sT0}, 384, s{SRD_W}')
A(f's_and_b32 s{sT0}, s{sT0}, 0x380')
A(f'v_add_u32 v{t0}, s{sT0}, v{t3}')
A(f'v_cndmask_b32 v{vTw}, v{vTw}, v{t0}, vcc')
A(f's_getpc_b64 {sr(sT0,2)}')
A.label('L_pc')
A(f's_lshl_b32 s{sU0}, s{sU0}, 8')
A(f'v_lshl_add_u32 v{t0}, v{vL}, 7, s{sU0}')
A(f'v_min_u32 v{t0}, L_end-L_pc, v{t0}')
A('s_mov_b64 exec, 3')
A(f'global_load_dword v{vDum}, v{t0}, {sr(sT0,2)}', tag='code')
A('s_mov_b64 exec, 0x0fff0fff')
A(f'buffer_load_dword v{vDum}, v{vTw}, {srd(SRD_W)}, 0 offen', tag='touch')
A('s_mov_b64 exec, -1')
A(f'buffer_load_dwordx4 {vr(srow,4)}, v{vSt}, {srd(SRD_X)}, s{sT2} offen{NTX}', tag='srow')
A(f'buffer_load_dwordx4 {vr(srow+4,4)}, v{vSt}, {srd(SRD_X)}, s{sT2} offen offset:512{NTX}', tag='srow')
A('s_waitcnt lgkmcnt(0)')
A(f's_add_u32 s{sT0}, s{P_WS}, {WS_EPOCH}')
A(f's_addc_u32 s{sT1}, s{P_WS+1}, 0')
A(f's_load_dword s{sTAG}, {sr(sT0,2)}, 0')
A(f's_sub_u32 s{sT0}, 384, s{P_WO}')
A(f's_and_b32 s{sT0}, s{sT0}, 0x380')
A(f'v_add_u32 v{t0}, s{sT0}, v{t3}')
A(f'v_cndmask_b32 v{vTo}, v{vTo}, v{t0}, vcc')
V.release(vSt); V.release(vTw)
tp = V.alloc(2, 2)
A(f'v_mov_b32 v{tp}, s{P_WR}')
A(f'v_mov_b32 v{tp+1}, s{P_WR+1}')
A(f'v_lshl_add_u32 v{tp}, v{vL}, 7, v{tp}')
pages = [(P_WS, 2 * MB - 128), (P_WS, 4 * MB), (P_WS, 6 * MB), (P_WS, 10 * MB), (P_WS, 12 * MB), (P_OUT, 0), (P_WG, 0), (P_WU, 0), (P_WD, 0)]
for n, (p_, off) in enumerate(pages):
    if off == 6 * MB:
        A(f's_lshl_b32 s{sT0}, s{sRB}, 3')
        A(f's_add_u32 s{sT0}, s{sT0}, s{sHG}')
        A(f's_lshl_b32 s{sT0}, s{sT0}, 7')
        A(f's_add_u32 s{sT0}, s{sT0}, {WS_ST0}')
        A(f's_add_u32 s{sT0}, s{p_}, s{sT0}')
        A(f's_addc_u32 s{sT1}, s{p_+1}, 0')
        A(f'v_writelane_b32 v{tp}, s{sT0}, {8 + n}')
        A(f'v_writelane_b32 v{tp+1}, s{sT1}, {8 + n}')
    elif off:
        A(f's_add_u32 s{sT0}, s{p_}, {off}')
        A(f's_addc_u32 s{sT1}, s{p_+1}, 0')
        A(f'v_writelane_b32 v{tp}, s{sT0}, {8 + n}')
        A(f'v_writelane_b32 v{tp+1}, s{sT1}, {8 + n}')
    else:
        A(f'v_writelane_b32 v{tp}, s{p_}, {8 + n}')
        A(f'v_writelane_b32 v{tp+1}, s{p_+1}, {8 + n}')
A(f's_add_u32 s{sT0}, s{P_WR}, 1024')
A(f's_cselect_b32 s{sT0}, {hex(((1 << len(pages)) - 1) << 8)}, {0}')
A(f's_cselect_b32 s{sT0}, s{sT0}, {hex((1 << (8 + len(pages))) - 1)}')
A(f's_lshl_b32 s{sT1}, 0x11111111, s{sW}')
A(f's_and_b32 exec_lo, s{sT0}, s{sT1}')
A('s_mov_b32 exec_hi, 0')
A(f'global_load_dword v{vDum}, {vr(tp,2)}, off sc1', tag='touch')
if True:
    A('s_mov_b64 exec, 0x000f000f')
    A(f'global_load_dword v{vDum}, v{vTo}, {sr(P_WO,2)}', tag='touch')
A('s_mov_b64 exec, -1')
V.release(vTo)
V.release(tp, 2)
mk_srd(SRD_WS, P_WS, WS_SIZE)
with Defer(D3):
    mk_srd(SRD_OUT, P_OUT, 2 * MB)
    A(f's_cmp_lt_u32 s{sW}, 2')
    A(f's_cselect_b64 {sr(SRD_T,2)}, {sr(P_WG,2)}, {sr(P_WU,2)}')
    A(f's_and_b32 s{SRD_T+1}, s{SRD_T+1}, 0xffff')
    A(f's_mov_b32 s{SRD_T+2}, {512 * 2752}')
    A(f's_mov_b32 s{SRD_T+3}, 0x20000')
    mk_srd(SRD_U, P_WD, 1376 * 1024)
    A(f's_mul_i32 s{sFS}, s{sSET}, 11')
    A(f's_add_u32 s{sFS}, s{sFS}, s{sI}')
    A(f's_cmp_lt_u32 s{sI}, 11')
    A(f's_cselect_b32 s{sHASF}, 1, 0')
    A(f's_cmp_lt_u32 s{sFS}, 86')
    A(f's_cselect_b32 s{sHASF}, s{sHASF}, 0')
    vFp = V.alloc(3); vFd = vR8; vFr = VP.alloc(); vFs = VP.alloc()
    A(f's_lshl_b32 s{sT0}, s{sI}, 1')
    A(f's_and_b32 s{sT1}, s{sW}, 1')
    A(f's_add_u32 s{sT0}, s{sT0}, s{sT1}')
    A(f's_mul_i32 s{sT0}, s{sT0}, {8 * 2752}')
    A(f's_mul_i32 s{sT1}, s{sSET}, 352')
    A(f's_add_u32 s{sT0}, s{sT0}, s{sT1}')
    for n in range(3):
        A(f'v_add_u32 v{t0}, {64 * n}, v{vL}')
        A(f'v_mul_u32_u24 v{t1}, 171, v{t0}')
        A(f'v_lshrrev_b32 v{t1}, 12, v{t1}')
        A(f'v_mul_u32_u24 v{t1}, {2752 - 384}, v{t1}')
        A(f'v_lshl_add_u32 v{t0}, v{t0}, 4, s{sT0}')
        A(f'v_add_u32 v{vFp+n}, v{t0}, v{t1}')
    A(f'v_bfe_u32 v{t1}, v{vL}, 2, 2')
    A(f'v_lshl_add_u32 v{t0}, v{vG}, 3, v{t1}')
    A(f'v_mul_u32_u24 v{vFr}, 384, v{t0}')
    A(f'v_and_b32 v{t0}, 3, v{vL}')
    A(f'v_lshl_add_u32 v{vFr}, v{t0}, 3, v{vFr}')
    A(f's_lshl_b32 s{sT0}, s{sW}, 5')
    A(f's_add_u32 s{sT0}, s{sT0}, {L_FT}')
    A(f'v_add_u32 v{vFr}, s{sT0}, v{vFr}')
    A(f'v_lshlrev_b32 v{vFs}, 4, v{t0}')
    A(f'v_lshl_add_u32 v{vFs}, v{t1}, 13, v{vFs}')
    A(f'v_and_b32 v{t0}, 1, v{vG}')
    A(f'v_lshl_add_u32 v{vFs}, v{t0}, 8, v{vFs}')
    A(f'v_lshrrev_b32 v{t0}, 1, v{vG}')
    A(f'v_lshl_add_u32 v{vFs}, v{t0}, 6, v{vFs}')
    A(f's_mul_i32 s{sT0}, s{sSET}, 12')
    A(f's_add_u32 s{sT0}, s{sT0}, s{sW}')
    A(f's_lshl_b32 s{sT0}, s{sT0}, 15')
    A(f's_and_b32 s{sT1}, s{sI}, 15')
    A(f's_lshl_b32 s{sT1}, s{sT1}, 9')
    A(f's_add_u32 s{sT0}, s{sT0}, s{sT1}')
    A(f's_lshr_b32 s{sT1}, s{sI}, 4')
    A(f's_lshl_b32 s{sT1}, s{sT1}, 7')
    A(f's_add_u32 s{sT0}, s{sT0}, s{sT1}')
    A(f's_add_u32 s{sT0}, s{sT0}, {WS_FT}')
    A(f'v_add_u32 v{vFs}, s{sT0}, v{vFs}')
    A(f's_lshl_b32 s{sT1}, s{sFS}, 14')
    A(f's_cmp_eq_u32 s{sHASF}, 1')
    A(f's_cselect_b32 s{sT1}, s{sT1}, 0x40000000')
    A(f's_lshl_b32 s{sT0}, s{sW}, 12')
    A(f's_add_u32 s{sT1}, s{sT1}, s{sT0}')
    A(f'v_add_u32 v{vFd}, s{sT1}, v{vL16}')
aFG, aFD = 192, 224
vOnes = VP.alloc(2, 2)
A(f'v_mov_b32 v{vOnes}, 0x3f803f80')
A(f'v_mov_b32 v{vOnes+1}, 0x3f803f80')
A(f'v_lshrrev_b32 v{t0}, 5, v0')
A(f'v_mul_u32_u24 v{t0}, {HST}, v{t0}')
A(f'v_and_b32 v{t1}, 31, v0')
A(f'v_lshl_add_u32 v{t0}, v{t1}, 2, v{t0}')
A(f'v_add_u32 v{t0}, {L_HA + 1024}, v{t0}')
A(f'ds_write2_b32 v{t0}, v{vOnes}, v{vOnes} offset0:0 offset1:32')
with Defer(D1):
    vQ4 = VP.alloc(); vG16 = VP.alloc(); vGm = VP.alloc()
    A(f'v_lshlrev_b32 v{vQ4}, 2, v{vQ}')
    A(f'v_add_u32 v{vQ4}, {L_TAB}, v{vQ4}')
    A(f'v_lshlrev_b32 v{vG16}, 4, v{vG}')
    A(f'v_add_u32 v{vG16}, {L_TAB}, v{vG16}')
    A(f'v_mov_b32 v{t0}, 0')
    A(f'ds_write2_b32 v{vQ4}, v{t0}, v{t0} offset0:0 offset1:80')
    A(f'v_and_b32 v{t0}, 1, v{vG}')
    A(f'v_lshlrev_b32 v{vGm}, 5, v{t0}')
    A(f'v_lshrrev_b32 v{t1}, 1, v{vG}')
    A(f'v_lshl_add_u32 v{vGm}, v{t1}, 4, v{vGm}')
    vOst = VP.alloc()
    A(f'v_lshlrev_b32 v{vOst}, 14, v{t0}')
    A(f'v_lshl_add_u32 v{vOst}, v{t1}, 8, v{vOst}')
    A(f'v_lshl_add_u32 v{vOst}, v{vQ}, 4, v{vOst}')
    A(f's_lshl_b32 s{sT0}, s{sRB}, 16')
    A(f's_lshl_b32 s{sT1}, s{sHG}, 11')
    A(f's_add_u32 s{sT0}, s{sT0}, s{sT1}')
    A(f's_lshl_b32 s{sT1}, s{sW}, 9')
    A(f's_add_u32 s{sT0}, s{sT0}, s{sT1}')
    A(f'v_add_u32 v{vOst}, s{sT0}, v{vOst}')
vA = VP.alloc(2); vH = VP.alloc(2)
A(f'v_lshrrev_b32 v{t0}, 1, v{vQ}')
A(f'v_xor_b32 v{t0}, v{vG}, v{t0}')
A(f'v_lshlrev_b32 v{t0}, 4, v{t0}')
A(f'v_lshl_add_u32 v{vA}, v{vQ}, 7, v{t0}')
A(f'v_and_b32 v{t1}, 1, v{vQ}')
A(f'v_lshlrev_b32 v{t1}, 7, v{t1}')
A(f'v_lshl_add_u32 v{t1}, v{vG}, 4, v{t1}')
A(f'v_add_u32 v{t1}, {L_HA + 1024}, v{t1}')
A(f'v_add_u32 v{t2}, {L_HA - 1024}, v{vA}')
A(f'v_cmp_lt_u32 vcc, 7, v{vQ}')
A(f'v_cndmask_b32 v{vH}, v{t1}, v{t2}, vcc')
A(f'v_xor_b32 v{vA+1}, 64, v{vA}')
A(f'v_xor_b32 v{vH+1}, 64, v{vH}')
vWr = V.alloc(); vBo = VP.alloc(4)
A(f'v_bfe_u32 v{t0}, v{vL}, 2, 2')
A(f'v_and_b32 v{t2}, 3, v{vL}')
A(f'v_lshlrev_b32 v{t2}, 3, v{t2}')
A(f'v_lshl_add_u32 v{t2}, v{t0}, 7, v{t2}')
A(f'v_lshrrev_b32 v{t0}, 1, v{t0}')
A(f'v_and_b32 v{t1}, 1, v{vG}')
A(f'v_lshl_or_b32 v{t0}, v{t1}, 1, v{t0}')
A(f'v_lshl_add_u32 v{t2}, v{t0}, 5, v{t2}')
A(f'v_lshl_add_u32 v{vBo}, v{vG}, 10, v{t2}')
A(f'v_add_u32 v{vBo}, {L_WO}, v{vBo}')
assert L_WO % 128 == 0 and L_W % 128 == 0
for t in range(1, 4): A(f'v_xor_b32 v{vBo+t}, {t << 5}, v{vBo}')
A(f's_lshl_b32 s{sT0}, s{sW}, 5')
A(f'v_xor_b32 v{t2}, s{sT0}, v{t2}')
A(f'v_mul_u32_u24 v{vWr}, 3072, v{vG}')
vWr15 = V.alloc()
A(f'v_add_u32 v{vWr15}, v{vWr}, v{t2}')
A(f'v_add_u32 v{vWr}, {L_W}, v{vWr15}')
assert L_W15 == 0
with Defer(D1):
    A(f's_lshl_b32 s{sOM}, s{sW}, 10')
    A(f's_add_u32 s{sOM}, s{sOM}, {L_WO}')
with Defer(D4):
    vBP = VP.alloc(4, 2); vBC = VP.alloc(4, 2); vBP0 = VP.alloc(4, 2); vMP = VP.alloc(2)
    A(f'v_lshlrev_b32 v{t0}, 2, v{vG}')
    A(f'v_sub_u32 v{t0}, v{vQ}, v{t0}')
    A(f'v_mov_b32 v{t2}, 0xff800000')
    A(f's_cmp_eq_u32 s{sFIRST}, 1')
    A(f's_cselect_b64 {sr(sM0,2)}, 0, -1')
    for r in range(4):
        A(f'v_add_u32 v{t1}, {-r}, v{t0}')
        A(f'v_cmp_lt_u32 vcc, 7, v{t1}')
        A(f'v_cndmask_b32 v{vBC+r}, 0, v{t2}, vcc')
        A(f'v_cmp_lt_i32 vcc, -9, v{t1}')
        A(f'v_cndmask_b32 v{vBP+r}, 0, v{t2}, vcc')
        A(f'v_cndmask_b32 v{vBP0+r}, v{t2}, v{vBP+r}, {sr(sM0,2)}')
        A(f'v_mov_b32 v{t3}, {hex(0xffff0000 if r & 1 else 0xffff)}')
        if r & 1:
            A(f'v_cndmask_b32 v{t3}, v{t3}, 0, vcc')
            A(f'v_or_b32 v{vMP + (r >> 1)}, v{vMP + (r >> 1)}, v{t3}')
        else:
            A(f'v_cndmask_b32 v{vMP + (r >> 1)}, v{t3}, 0, vcc')
    A(f's_mov_b32 s{sM0}, 0xaaaaaaaa')
    A(f's_mov_b32 s{sM0+1}, 0xaaaaaaaa')
    A(f's_mov_b32 s{sM1}, 0xcccccccc')
    A(f's_mov_b32 s{sM1+1}, 0xcccccccc')
with Defer(D2):
    vS0 = V.alloc(); vS0w = V.alloc(); vPf = V.alloc(); vS4 = V.alloc(4, 2)
    A(f's_lshl_b32 s{sT0}, s{sRB}, 10')
    A(f's_add_u32 s{sT0}, s{sT0}, {WS_ST0 - 128}')
    A(f'v_lshl_add_u32 v{vS0}, v0, 4, s{sT0}')
    A(f's_lshl_b32 s{sT0}, s{sSET}, 12')
    A(f's_add_u32 s{sT0}, s{sT0}, {WS_ST0}')
    A(f'v_and_b32 v{t0}, 31, v{vL}')
    A(f'v_lshl_add_u32 v{t0}, v{t0}, 7, s{sT0}')
    A(f'v_cmp_le_u32 vcc, 128, v0')
    A(f'v_cndmask_b32 v{vS0}, v{vS0}, v{t0}, vcc')
    A(f'v_lshlrev_b32 v{vS0w}, 2, v0')
    A(f'v_add_u32 v{vS0w}, {L_TAB + 32}, v{vS0w}')
    vPf2 = V.alloc()
    A(f's_mul_i32 s{sT0}, s2, 5120')
    A(f's_add_u32 s{sT0}, s{sT0}, {WS_SENT}')
    A(f'v_lshl_add_u32 v{vPf}, v0, 4, s{sT0}')
    A(f's_lshl_b32 s{sT1}, s{sW}, 8')
    A(f's_add_u32 s{sT0}, s{sT0}, s{sT1}')
    A(f's_add_u32 s{sT0}, s{sT0}, 4096')
    A(f'v_lshl_add_u32 v{t0}, v{vQ}, 4, s{sT0}')
    A(f's_lshl_b32 s{sSTB}, s{sRB}, 2')
    A(f's_add_u32 s{sSTB}, s{sSTB}, s{sW}')
    A(f'v_mov_b32 v{t1}, 0x40000000')
    A(f'v_cmp_gt_u32 vcc, 16, v{vL}')
    A(f'v_cndmask_b32 v{vPf2}, v{t1}, v{t0}, vcc')
    vTs = V.alloc()
    A(f'v_mov_b32 v{vTs}, v{t1}')
    if 'olocal' in OPT:
        A(f's_lshl_b32 s{sT0}, s{sI}, 2')
        A(f's_add_u32 s{sT0}, s{sT0}, s{sW}')
        A(f's_lshl_b32 s{sT0}, s{sT0}, 11')
        A(f's_lshl_b32 s{sT1}, s{sSET}, 18')
        A(f's_add_u32 s{sT0}, s{sT0}, s{sT1}')
        A(f'v_lshl_add_u32 v{t0}, v{vL}, 7, s{sT0}')
        A(f'v_cndmask_b32 v{vTs}, v{t1}, v{t0}, vcc')
    A(f's_lshl_b32 s{sT0}, s{sSTB}, 11')
    A(f's_lshl_b32 s{sT1}, s{sHG}, 8')
    A(f's_add_u32 s{sT0}, s{sT0}, s{sT1}')
    for n, off in enumerate((0, 128, 1 << 18, (1 << 18) + 128)):
        A(f's_add_u32 s{sT1}, s{sT0}, {WS_ST + off}')
        A(f'v_writelane_b32 v{vTs}, s{sT1}, {16 + n}')
    A(f's_lshl_b32 s{sT0}, s{sRB}, 9')
    for n, off in enumerate((0, 128, 1 << 14, (1 << 14) + 128)):
        A(f's_add_u32 s{sT1}, s{sT0}, {WS_FL + off}')
        A(f'v_writelane_b32 v{vTs}, s{sT1}, {20 + n}')
    for n, off in enumerate((0, 128, 256)):
        A(f's_add_u32 s{sT1}, s{sT0}, {WS_X1F + off}')
        A(f'v_writelane_b32 v{vTs}, s{sT1}, {27 + n}')
    for r in range(4): A(f'v_mov_b32 v{vS4+r}, -1')
if 'tsearly' in OPT: A(f'buffer_load_dword v{vDum}, v{vTs}, {srd(SRD_WS)}, 0 offen sc1', tag='to')
gr = V.alloc(4, 2)
A(f'v_mov_b32 v{s12}, 0')
A(f'v_mov_b32 v{s12+1}, 0')
A(f's_getreg_b32 s{sTAGB}, hwreg(HW_REG_XCC_ID)')
A(f's_and_b32 s{sTAGB}, s{sTAGB}, 15')
A(f's_lshl_b32 s{sT2}, s{sRB}, 3')
A(f's_add_u32 s{sT2}, s{sT2}, s{sHG}')
A(f's_lshl_b32 s{sT2}, s{sT2}, 2')
A(f's_add_u32 s{sT2}, s{sT2}, s{sW}')
A(f's_lshl_b32 s{sT2}, s{sT2}, 5')
A(f's_add_u32 s{sT2}, s{sT2}, {WS_ST0}')
A(f'v_lshrrev_b32 v{t1}, 1, v{vL}')
g1 = []; g2 = []
for hh in stage_dma(1): g1 += [hh[:3], hh[3:6], hh[6:7], hh[7:8]]
for hh in stage_dma(2): g2 += [hh[:3], hh[3:6], hh[6:7], hh[7:8]]
g2.append(halo_dma(1))
def dots():
    A.wait_vm('srow')
    for j in range(8):
        A(f'v_dot2c_f32_bf16 v{s12}, v{srow+j}, v{vOnes}')
        A(f'v_dot2c_f32_bf16 v{s12+1}, v{srow+j}, v{srow+j}')
if 's0old' in OPT:
    A.wait_vm('srow', 'lgkmcnt(0)')
    stamp()
    A.sprinkle = (g1, 2 if 'stlate' in OPT else 4, emit)
    for j in range(8):
        A(f'v_dot2c_f32_bf16 v{s12}, v{srow+j}, v{vOnes}')
        A(f'v_dot2c_f32_bf16 v{s12+1}, v{srow+j}, v{srow+j}')
else:
    OPT.add('stlate')
    A.wait_vm('S0')
    stamp()
if 'stlate' in OPT:
    A.sprinkle = None
    for g_ in g1:
        for x in g_: emit(x)
    save = A.lines; vmsave = list(A.vm); A.lines = []
    A(f's_mul_i32 s{sTAG}, s{sTAG}, 0x9e3779b1')
    A(f's_add_u32 s{sTAG}, s{sTAG}, 0x7f4a7c15')
    A(f's_mul_i32 s{sT0}, s{sTAG}, 0x85ebca6b')
    for sh in (8, 4, 2, 1):
        for r in range(2): A(f'v_add_f32_dpp v{s12+r}, v{s12+r}, v{s12+r} row_ror:{sh} {DP}')
        if sh == 8: A(f's_brev_b32 s{sT0}, s{sT0}')
        if sh == 4: A(f's_and_b32 s{sT0}, s{sT0}, 0xfffffff0')
        if sh == 2: A(f's_or_b32 s{sTAGB}, s{sTAGB}, s{sT0}')
    for r in range(2): A(f'v_mov_b32 v{s12+2+r}, v{s12+r}')
    A(f'v_mov_b32 v{gr+2}, s{sTAG}')
    for r in range(2): A(f'v_permlane16_swap_b32 v{s12+r}, v{s12+2+r}')
    for r in range(2): A(f'v_add_f32 v{s12+r}, v{s12+r}, v{s12+2+r}')
    ln_params(s12, s12 + 1, s12 + 2, s12 + 3, gr, gr + 1, t0)
    A(f'v_xor_b32 v{gr}, 0x80000000, v{gr}')
    A(f'v_mov_b32 v{gr+3}, s{sTAGB}')
    A('s_mov_b32 exec_lo, 1')
    A('s_mov_b32 exec_hi, 1')
    A(f'buffer_store_dwordx4 {vr(gr,4)}, v{t1}, {srd(SRD_WS)}, s{sT2} offen sc1', tag='st0')
    A('s_mov_b64 exec, -1')
    st_lines = [l.text for l in A.lines if l.op != 's_nop']; A.lines = save; A.vm = vmsave
else:
    A(f's_mul_i32 s{sTAG}, s{sTAG}, 0x9e3779b1')
    A(f's_add_u32 s{sTAG}, s{sTAG}, 0x7f4a7c15')
    A(f's_mul_i32 s{sT0}, s{sTAG}, 0x85ebca6b')
    for sh in (8, 4, 2, 1):
        for r in range(2): A(f'v_add_f32_dpp v{s12+r}, v{s12+r}, v{s12+r} row_ror:{sh} {DP}')
        if sh == 8: A(f's_brev_b32 s{sT0}, s{sT0}')
        if sh == 4: A(f's_and_b32 s{sT0}, s{sT0}, 0xfffffff0')
        if sh == 2: A(f's_or_b32 s{sTAGB}, s{sTAGB}, s{sT0}')
    for r in range(2): A(f'v_mov_b32 v{s12+2+r}, v{s12+r}')
    A(f'v_mov_b32 v{gr+2}, s{sTAG}')
    for r in range(2): A(f'v_permlane16_swap_b32 v{s12+r}, v{s12+2+r}')
    for r in range(2): A(f'v_add_f32 v{s12+r}, v{s12+r}, v{s12+2+r}')
    ln_params(s12, s12 + 1, s12 + 2, s12 + 3, gr, gr + 1, t0)
    A(f'v_xor_b32 v{gr}, 0x80000000, v{gr}')
    A(f'v_mov_b32 v{gr+3}, s{sTAGB}')
    A.sprinkle = None
    assert not g1
    A('s_mov_b32 exec_lo, 1')
    A('s_mov_b32 exec_hi, 1')
    A(f'buffer_store_dwordx4 {vr(gr,4)}, v{t1}, {srd(SRD_WS)}, s{sT2} offen sc1', tag='st0')
    A('s_mov_b64 exec, -1')

accQ = V.take(196, 20); accK = V.take(216, 20); accV = V.take(236, 20)
xP = VP.alloc(8, 2)
aux = VP.alloc(8, 2)
vSW = VP.alloc()
def aW(ks, m): return (ks * 3 + m) * 4
def x_reads(ks, b):
    u = ks & 1; kc = ks >> 1
    return [f'ds_read_b128 {vr(b, 4)}, v{vH+u} offset:{kc * HST}'] + \
           [f'ds_read_b128 {vr(b + 4 + 4 * T, 4)}, v{vA+u} offset:{(kc * 8 + 2 * T) * 1024}' for T in range(4)]
def p1_reads(ks):
    so = SLOT[(ks >> 1) % 3] + (ks & 1) * 12288
    if ks == 15: so = 0
    W_ = [f'ds_read_b64_tr_b16 {ar(aW(ks, m) + 2 * h, 2)}, v{vWr15 if ks == 15 else vWr} offset:{so + m * 1024 + h * 512}' for m in range(3) for h in range(2)]
    X_ = x_reads(ks, fr[ks & 1])
    return W_[:2] + X_[:1] + W_[2:] + X_[1:]
def p1_mfmas(ks):
    b = fr[ks & 1]; L = []
    c = lambda x: '0' if ks == 0 else vr(x, 4)
    for T in range(5):
        X = vr(b + 4 * T, 4)
        L.append(mf(vr(accQ + 4 * T, 4), ar(aW(ks, 0), 4), X, c(accQ + 4 * T)))
        L.append(mf(vr(accK + 4 * T, 4), ar(aW(ks, 1), 4), X, c(accK + 4 * T)))
        L.append(mf(vr(accV + 4 * T, 4), X, ar(aW(ks, 2), 4), c(accV + 4 * T)))
    return L
def wo_dma(kss):
    L = []
    for ks in kss:
        L += [f's_add_u32 m0, s{sOM}, {wo_off(ks)}', f's_mov_b32 s{sT3}, {ks * 32768}',
              (f'buffer_load_dwordx4 v{vWo}, {srd(SRD_W)}, s{sT3} offen lds', 'woa' if ks < 4 else 'wo')]
    return L
def hello():
    A('s_mov_b64 exec, 1')
    A(f'buffer_store_dwordx2 {vr(gr+2,2)}, v{vPf}, {srd(SRD_WS)}, s{sU2} offen sc1')
    A('s_mov_b64 exec, -1')
def srd_lines(d, ptr, size):
    return [f's_mov_b32 s{d}, s{ptr}', f's_and_b32 s{d+1}, s{ptr+1}, 0xffff', f's_mov_b32 s{d+2}, {size}', f's_mov_b32 s{d+3}, 0x20000']
s0g = V.alloc(4, 2)
extra = {ks: [] for ks in range(16)}
for g_ in g2: extra[0] += g_
for s in range(5):
    H = stage_dma(s + 3); extra[2 * s + 1] += H[0]; extra[2 * s + 2] += H[1]
extra[11] += [(f'buffer_store_dwordx4 {vr(vS4,4)}, v{vPf}, {srd(SRD_WS)}, 0 offen sc1{NTP}', 'pre'),
              (f'buffer_store_dwordx4 {vr(vS4,4)}, v{vPf2}, {srd(SRD_WS)}, 0 offen sc1{NTP}', 'pre')]
extra[11] = [(f'buffer_load_dwordx4 {vr(s0g,4)}, v{vS0}, {srd(SRD_WS)}, 0 offen sc1', 's0g')] + extra[11]
extra[12] += [f's_lshl_b32 s{sU2}, s{sSET}, 9', f's_add_u32 s{sU2}, s{sU2}, s{sI}', f's_lshl_b32 s{sU2}, s{sU2}, 3',
              f's_add_u32 s{sU2}, s{sU2}, {WS_HELLO}', f's_lshl_b32 s{sT0}, s{sW}, 30', f'v_mov_b32 v{vPf}, s{sT0}']
if 'stlate' in OPT:
    tailn = st_lines[-4:]; st_lines = st_lines[:-4]
    nh = len(st_lines) // 2
    valu_extra = {1: st_lines[:nh], 2: st_lines[nh:]}
    extra[3] = [lambda: [A(x) for x in tailn]] + extra[3]
else: valu_extra = {}
vRs = V.alloc(2)
def res_read(early):
    def f():
        L = A.newlabel('L_res')
        A(f's_cmp_lt_u32 s{sHG}, 5')
        A(f's_cbranch_scc{0 if early else 1} {L}')
        A(f'ds_read_b128 {vr(xP,4)}, v{vRs}')
        A(f'ds_read_b128 {vr(xP+4,4)}, v{vRs+1}')
        A.label(L)
    return f
rs_lines = [f'v_lshlrev_b32 v{t0}, 3, v{vQ}', f'v_and_b32 v{t0}, 0x70, v{t0}', f'v_xor_b32 v{t0}, v{t0}, v{vGm}',
            f'v_lshl_add_u32 v{t0}, v{vQ}, 7, v{t0}', f's_lshl_b32 s{sT0}, s{sHG}, 13', f's_add_u32 s{sT0}, s{sT0}, s{sAM}',
            f'v_add_u32 v{vRs}, s{sT0}, v{t0}', f'v_xor_b32 v{vRs+1}, 64, v{vRs}']
grp2fn = lambda g_: (lambda: [A(x) for x in g_])
DD = [grp2fn(g_) for g_ in D1 + [[x] for x in rs_lines] + D2 + D3]
per = -(-len(DD) // 7)
for k_ in range(7): valu_extra[4 + k_] = DD[k_ * per:(k_ + 1) * per]
DD = [grp2fn(g_) for g_ in D4]
valu_extra[11] = DD[:len(DD) // 2]; valu_extra[12] = DD[len(DD) // 2:]
extra[8] += [res_read(True)]
NTF = NTD = '' if 'nont' in OPT else ' nt'
ft_dma = []
for n in range(3):
    ft_dma += [f's_sub_u32 m0, s{sWM}, {L_W - L_FT - n * 1024}', (f'buffer_load_dwordx4 v{vFp+n}, {srd(SRD_T)}, 0 offen{NTF} lds', 'ft')]
wd_dma = [f's_lshl_b32 s{sT0}, s{sW}, 12', f's_add_u32 m0, s{sT0}, {L_WD}'] + \
         [(f'buffer_load_dwordx4 v{vFd}, {srd(SRD_U)}, 0 offen offset:{f * 1024}{NTD} lds', 'wd') for f in range(4)]
extra[11] += srd_lines(SRD_W, P_WO, 512 * 1024)
aux_ld = [f's_lshl_b32 s{sT0}, s{sHG}, 7', f'buffer_load_dwordx4 {vr(aux,4)}, v{vGm}, {srd(SRD_X)}, s{sT0} offen',
          f'buffer_load_dwordx4 {vr(aux+4,4)}, v{vGm}, {srd(SRD_X)}, s{sT0} offen offset:64',
          f'buffer_load_dwordx4 {vr(wra,4)}, v{vL16}, {srd(SRD_X)}, 0 offen']
extra[11] += wo_dma([0]); extra[12] += wo_dma([1, 2, 3, 4]); extra[13] += wo_dma([5, 12, 13, 14]); extra[14] += wo_dma([15]) + ft_dma; extra[15] += wd_dma
wo_rest = [6, 7, 8, 9, 10, 11]; wd_late = []
extra[12] += srd_lines(SRD_X, P_WR, 1024)
TSM = next((' ' + a[4:].replace('+', ' ') for a in OPT if a.startswith('tsm=')), ' sc1')
KTS = int(next((a[4:] for a in OPT if a.startswith('kts=')), '14'))
if 'tsearly' not in OPT: extra[KTS] += [(f'buffer_load_dword v{vDum}, v{vTs}, {srd(SRD_WS)}, 0 offen{TSM}', 'to')]
extra[15] += [res_read(False)]
csQ = VP.alloc(4, 2); csK = VP.alloc(4, 2); csV = VP.alloc(2, 2)
far2 = []
def s0_check():
    A.wait_vm('s0g')
    A.label('L_s0')
    A(f'v_xor_b32 v{t0}, s{sTAG}, v{s0g+2}')
    A(f'v_xor_b32 v{t1}, s{sTAGB}, v{s0g+3}')
    A(f'v_lshrrev_b32 v{t3}, 4, v{t1}')
    A(f'v_or_b32 v{t0}, v{t0}, v{t3}')
    A(f'v_cmp_ne_u32 vcc, 0, v{t0}')
    A(f's_and_b64 vcc, vcc, {sr(sU0,2)}')
    A('s_cbranch_vccnz L_s0r')
    A.label('L_s0ok')
    A(f's_mov_b64 exec, {sr(sT4,2)}')
    A(f'ds_write2_b32 v{vS0w}, v{s0g}, v{s0g+1} offset0:0 offset1:80')
    A('s_mov_b64 exec, -1')
    A(f'ds_write_b32 v{vS0w}, v{t1} offset:{640 - 32}')
far2 += ['L_s0r:', f'buffer_load_dwordx4 {vr(s0g,4)}, v{vS0}, {srd(SRD_WS)}, 0 offen sc1', 's_waitcnt vmcnt(0)',
         f's_sub_u32 s{sGUARD}, s{sGUARD}, 1', 's_cbranch_scc0 L_s0', 's_branch L_s0ok']
def s0_masks():
    A(f's_cmp_eq_u32 s{sW}, 2')
    A(f's_cselect_b64 {sr(sU0,2)}, -1, {sr(sT4,2)}')
valu_extra[13] = [f's_lshl_b32 s{sT1}, s{sFIRST}, 3', f'v_subrev_u32 v{t2}, s{sT1}, v0', f's_sub_u32 s{sT1}, 72, s{sT1}',
                  f'v_cmp_gt_u32 {sr(sT4,2)}, s{sT1}, v{t2}', f's_mov_b32 s{sGUARD}, 20000', f'v_lshlrev_b32 v{t2}, 2, v{vL}',
                  f'v_add_u32 v{t2}, {L_CS + 512}, v{t2}', s0_masks]
extra[14] = [s0_check] + extra[14]
V.release(srow, 8); V.release(s12, 4)
rp = V.alloc(10, 2); vm = fr[0]
tab_reads = [f'ds_read_b32 v{t1}, v{t2}']
for T in range(5):
    tab_reads += [f'ds_read2_b32 {vr(rp + 2 * T, 2)}, v{vQ4} offset0:{16 * T} offset1:{80 + 16 * T}',
                  f'ds_read_b128 {vr(vm + 4 * T, 4)}, v{vG16} offset:{64 * T}',
                  f'ds_read_b128 {vr(vc + 4 * T, 4)}, v{vG16} offset:{320 + 64 * T}']
cs_lines = []
for r in range(4):
    cs_lines += [f'v_mov_b32_dpp v{csQ+r}, v{accQ+r} row_newbcast:0 {DP}', f'v_mov_b32_dpp v{csK+r}, v{accK+r} row_newbcast:0 {DP}']
cs_lines = [f'v_mov_b32 v{csV}, v{accV}', f'v_mov_b32 v{csV+1}, v{accV}'] + cs_lines + [f'v_permlane32_swap_b32 v{csV}, v{csV+1}']
def drop(L, key): return [x for x in L if not (isinstance(x, tuple) and x[1] == key)]
for key in ('pre', 'wo', 'ft', 'wd', 'to'):
    if 'x' + key in OPT:
        for ks in extra: extra[ks] = drop(extra[ks], key)
if 's0old' in OPT: A.wait_vm('S0', 'lgkmcnt(0)')
else: A('s_waitcnt lgkmcnt(0)')
A('s_barrier')
stamp()
for x in p1_reads(0): A(x)
for ks in range(16):
    A('s_waitcnt lgkmcnt(0)')
    if 'loopstamps' in OPT and ks % 2 == 0 and ks: stamp()
    M = p1_mfmas(ks)
    if ks == 1 and 's0old' not in OPT: dots()
    A(M[0])
    if ks & 1 and ks < 15:
        if not ('nodma' in OPT and ks > 1): A.wait_vm(f'S{(ks + 1) >> 1}')
        if 'nobar' not in OPT: A('s_barrier')
    if ks == 15:
        A.wait_vm('woa')
        A('s_barrier')
    rd = p1_reads(ks + 1) if ks < 15 else tab_reads
    if 'nord' in OPT: rd = []
    if 'notr' in OPT: rd = [x for x in rd if '_tr_' not in x]
    if 'nob128' in OPT: rd = [x for x in rd if '_tr_' in x]
    ex = list(extra[ks])
    if 'nodma' in OPT: ex = [x for x in ex if not (isinstance(x, tuple) and x[0].endswith(' lds'))]
    isvm = lambda x: callable(x) or (x[0] if isinstance(x, tuple) else x).startswith('buffer_')
    nvm = sum(map(isvm, ex)); gaps = len(M) - 1
    slots = [int((j + 0.5) * gaps / nvm) for j in range(nvm)] if nvm else []
    groups = []; cur = []
    for x in ex:
        cur.append(x)
        if isvm(x): groups.append(cur); cur = []
    tail_ = cur
    place = {gi: [] for gi in range(gaps)}
    prev = -1
    for j, grp in enumerate(groups):
        lo = prev + 1 if prev + 1 <= slots[j] else slots[j]
        pre = grp[:-1]
        span = slots[j] - lo + 1
        for n_, x in enumerate(pre): place[lo + n_ * span // max(1, len(pre))].append(x)
        place[slots[j]].append(grp[-1]); prev = slots[j]
    lo = min(prev + 1, gaps - 1); span = gaps - lo
    for n_, x in enumerate(tail_): place[lo + n_ * span // len(tail_)].append(x)
    for mi, m in enumerate(M[1:]):
        A(m)
        if rd: A(rd.pop(0))
        for x in place[mi]: emit(x)
        ve = valu_extra.get(ks, [])
        for _ in range(-(-len(ve) // (gaps - mi))): emit(ve.pop(0))
        if ks == 15:
            if mi < 2: A(rd.pop(0))
            if mi >= 7:
                for _ in range(2):
                    if cs_lines: A(cs_lines.pop(0))
assert not cs_lines and not tab_reads
stamp()
V.release(fr[1], 20)
V.release(vWr); V.release(vWr15); V.release(vRs, 2); V.release(vWd); V.release(vPf2); V.release(vTs); V.release(vS4, 4)
V.release(s0g, 4); V.release(vS0); V.release(vS0w)
epi_ins = [[hello]] + ([] if 'v1' in OPT else [[]] * 8 + [aux_ld[:2], aux_ld[2:3], aux_ld[3:]])
SPIN = 20000
def fine():
    if 'fine' in OPT: stamp()
def poll(issue, check, name):
    L = A.newlabel('L_poll'); E = A.newlabel('L_ok')
    A(f's_mov_b32 s{sGUARD}, {SPIN}')
    A.label(L)
    issue()
    A.wait_vm0()
    check()
    A(f's_cbranch_vccz {E}')
    backoff(name)
    A(f's_sub_u32 s{sGUARD}, s{sGUARD}, 1')
    A(f's_cbranch_scc0 {L}')
    A.label(E)
def backoff(name):
    n = int(next((x.split('=')[1] for x in OPT if x.startswith('sl' + name + '=')), next((x[3:] for x in OPT if x.startswith('sl=')), '0')))
    if n: A(f's_sleep {n}')
def repoll(issue, check, name):
    L = A.newlabel('L_rp'); E = A.newlabel('L_ok')
    A(f's_mov_b32 s{sGUARD}, {SPIN}')
    A.label(L)
    A.wait_vm0()
    check()
    A(f's_cbranch_vccz {E}')
    backoff(name)
    issue(); A.vm = []
    A(f's_sub_u32 s{sGUARD}, s{sGUARD}, 1')
    A(f's_cbranch_scc0 {L}')
    A.label(E)
PD = int(next((x[3:] for x in OPT if x.startswith('pd=')), '3'))
def ppoll(issue, check, nld, depth=None, pre=0, gap=7):
    D = depth or PD
    L = A.newlabel('L_pp'); E = A.newlabel('L_ok')
    A(f's_mov_b32 s{sGUARD}, {SPIN}')
    for j in range(pre, D):
        if j and gap: A(f's_nop {gap}'); A(f's_nop {gap}'); A(f's_nop {gap}')
        issue(j)
    A.label(L)
    for j in range(D):
        A(f's_waitcnt vmcnt({(D - 1) * nld})')
        check(j)
        A(f's_cbranch_vccz {E}')
        issue(j)
    A(f's_sub_u32 s{sGUARD}, s{sGUARD}, 1')
    A(f's_cbranch_scc0 {L}')
    A.label(E)
    A.vm = []
def local_stores(lines):
    R = A.newlabel('L_rem'); E = A.newlabel('L_st')
    A(f's_cmp_eq_u32 s{sLOCAL}, 0')
    A(f's_cbranch_scc1 {R}')
    for l in lines: A(l)
    A.label(E)
    A('s_nop 0')
    far.append((R, E, lines))
far = []
def emit_far():
    for l in far2:
        if l.endswith(':'): A.label(l[:-1])
        else: A(l)
    for R, E, lines in far:
        A.label(R)
        for l in lines:
            A(l + (' sc1' if l.startswith('buffer_') else ''))
        A(f's_branch {E}')
def skip_unless(cond_lines):
    E = A.newlabel('L_sk')
    for l in cond_lines: A(l)
    A(f's_cbranch_scc1 {E}')
    return E
def if_layer(n): return skip_unless([f's_cmp_lg_u32 s{sLAYER}, {n}'])
def if_wave(n): return skip_unless([f's_cmp_lg_u32 s{sW}, {n}'])
def if_ffn(): return skip_unless([f's_cmp_eq_u32 s{sHASF}, 0'])
def endif(E, pad=True):
    A.label(E)
    if pad: A('s_nop 1')
def tag_check(r):
    A(f'v_xor_b32 v{r+1}, s{sTAGB}, v{r+1}')
    A(f'v_xor_b32 v{r}, s{sTAG}, v{r}')
    A(f'v_lshrrev_b32 v{r+1}, 4, v{r+1}')
    A(f'v_or_b32 v{r}, v{r}, v{r+1}')
    A(f'v_cmp_ne_u32 vcc, 0, v{r}')

QSC = 0.25 * 1.4426950408889634
hV = 176; mxc = 186
hQ = lambda T: accQ + 4 * (T + 1)
hK = lambda T: accK + 4 * (T + 1)
def s_mfmas(T, Sp, Sc):
    return [mf(vr(Sp + 4 * T, 4), vr(hK(T - 1), 2), vr(hQ(T), 2), vr(vBP0 if T == 0 else vBP, 4), False),
            mf(vr(Sc + 4 * T, 4), vr(hK(T), 2), vr(hQ(T), 2), vr(vBC, 4), False)]
def attention(pre):
    Sp = V.alloc(16, 2); Sc = V.alloc(16, 2); mx = V.alloc(4); pk = V.alloc(8, 2); Ls = accV
    pre = list(pre)
    for T in (1, 2, 3, 0):
        for m_ in s_mfmas(T, Sp, Sc):
            A(m_)
            for _ in range(2):
                if pre: A(pre.pop(0))
    while pre: A(pre.pop(0))
    for T in (1, 2, 3, 0):
        for r in range(4):
            A(f'v_max_f32 v{Sc+4*T+r}, v{Sp+4*T+r}, v{Sc+4*T+r}')
        A(f'v_max3_f32 v{mx+T}, v{Sc+4*T}, v{Sc+4*T+1}, v{Sc+4*T+2}')
        A(f'v_max_f32 v{mx+T}, v{mx+T}, v{Sc+4*T+3}')
    prs = [(mx + 1, mx + 2), (mx + 3, mx)]
    for a_, b_ in prs: A(f'v_permlane16_swap_b32 v{a_}, v{b_}')
    for a_, b_ in prs: A(f'v_max_f32 v{a_}, v{a_}, v{b_}')
    for a_, b_ in prs: A(f'v_mov_b32 v{b_}, v{a_}')
    for a_, b_ in prs: A(f'v_permlane32_swap_b32 v{a_}, v{b_}')
    for a_, b_ in prs: A(f'v_max_f32 v{a_}, v{a_}, v{b_}')
    for a_, b_ in prs: A(f'v_mov_b32 v{b_}, v{a_}')
    for a_, b_ in prs: A(f'v_permlane16_swap_b32 v{a_}, v{b_}')
    for T in range(4):
        A(f'v_mul_f32 v{mxc+2*T+1}, v{mx+T}, v{mxc+2*T}')
    for T in range(4):
        for h in range(2):
            A(f'v_pk_fma_f32 {vr(Sc+4*T+2*h,2)}, {vr(Sc+4*T+2*h,2)}, {vr(mxc+2*T,2)}, {vr(mxc+2*T,2)} op_sel:[0,0,1] op_sel_hi:[1,0,1] neg_lo:[0,0,1] neg_hi:[0,0,1]')
    pend = []
    for T in range(4):
        for r in range(4):
            A(f'v_exp_f32 v{Sc+4*T+r}, v{Sc+4*T+r}')
            if pend and r in (0, 2): A(pend.pop(0))
        for h in range(2):
            A(f'v_cvt_pk_bf16_f32 v{pk+2*T+h}, v{Sc+4*T+2*h}, v{Sc+4*T+2*h+1}')
        for h in range(2):
            A(f'v_and_b32 v{Sp+4*T+h}, v{pk+2*T+h}, v{vMP+h}')
        for h in range(2):
            A(f'v_xor_b32 v{Sp+4*T+2+h}, v{pk+2*T+h}, v{Sp+4*T+h}')
        pend = [mf(vr(Ls + 4 * T, 4), vr(vOnes, 2), vr(pk + 2 * T, 2), '0', False),
                mf(vr(Sc + 4 * T, 4), vr(hV + 2 * T, 4), vr(Sp + 4 * T, 4), '0')]
    A(pend.pop(0))
    A(f'v_rcp_f32 v{Ls}, v{Ls}')
    A(pend.pop(0))
    for T in (1, 2): A(f'v_rcp_f32 v{Ls+4*T}, v{Ls+4*T}')
    for T in range(4):
        if T == 3: A(f'v_rcp_f32 v{Ls+12}, v{Ls+12}')
        if T == 2:
            for h in range(2): A(f'v_permlane16_swap_b32 v{oP+h}, v{oP+2+h}')
        for h in range(2):
            A(f'v_pk_mul_f32 {vr(Sc+4*T+2*h,2)}, {vr(Sc+4*T+2*h,2)}, {vr(Ls+4*T,2)} op_sel_hi:[1,0]')
        for h in range(2):
            A(f'v_cvt_pk_bf16_f32 v{oP+2*T+h}, v{Sc+4*T+2*h}, v{Sc+4*T+2*h+1}')
    for h in range(2): A(f'v_permlane16_swap_b32 v{oP+4+h}, v{oP+6+h}')
    V.release(Sp, 16); V.release(Sc, 16); V.release(mx, 4); V.release(pk, 8)
def norm_pk(T, rpp, vmm, vcc_):
    aq, ak, av = accQ + 4 * (T + 1), accK + 4 * (T + 1), accV + 4 * (T + 1)
    for h in range(2):
        if T >= 0:
            A(f'v_pk_fma_f32 {vr(aq+2*h,2)}, {vr(csQ+2*h,2)}, {vr(rpp,2)}, {vr(aq+2*h,2)} op_sel_hi:[1,0,1]')
        A(f'v_pk_fma_f32 {vr(ak+2*h,2)}, {vr(csK+2*h,2)}, {vr(rpp,2)}, {vr(ak+2*h,2)} op_sel_hi:[1,0,1]')
        A(f'v_pk_fma_f32 {vr(av+2*h,2)}, {vr(vmm+2*h,2)}, {vr(csV,2)}, {vr(av+2*h,2)} op_sel_hi:[1,0,1]')
    for h in range(2):
        A(f'v_pk_mul_f32 {vr(ak+2*h,2)}, {vr(ak+2*h,2)}, {vr(rpp,2)} op_sel:[0,1] op_sel_hi:[1,1]')
        A(f'v_pk_mul_f32 {vr(av+2*h,2)}, {vr(av+2*h,2)}, {vr(vcc_+2*h,2)}')
def pack2(dst, src): return [f'v_cvt_pk_bf16_f32 v{dst+h}, v{src+2*h}, v{src+2*h+1}' for h in range(2)]
def epilogue(first):
    A.sprinkle = (epi_ins, 12, emit)
    for T in range(5):
        if T == 0: A('s_waitcnt lgkmcnt(6)')
        if T == 2: A('s_waitcnt lgkmcnt(0)')
        if T == 0: A(f'v_cmp_ne_u32 vcc, 0, v{t1}')
        norm_pk(T - 1, rp + 2 * T, vm + 4 * T, vc + 4 * T)
        for x in pack2(hK(T - 1), hK(T - 1)) + (pack2(hQ(T - 1), hQ(T - 1)) if T else []): A(x)
        if T == 0:
            sp = A.sprinkle; A.sprinkle = None
            A(f's_cmp_eq_u64 vcc, 0')
            A(f's_cselect_b32 s{sLOCAL}, {0 if FORCE_REMOTE else 1}, 0')
            A.sprinkle = sp
    pre = [f'v_mul_f32 v{mxc+2*T}, {hex(f2u(QSC))}, v{rp+2*T+3}' for T in range(4)]
    for T in range(5): pre += pack2(hV + 2 * T, accV + 4 * T)
    V.release(vm, 20); V.release(vc, 20); V.take(hV, 10); V.take(mxc, 8)
    attention(pre)
    sp = A.sprinkle; A.sprinkle = None
    for grp in sp[0]:
        for x in grp: emit(x)
    V.release(rp, 10)
    V.release(accQ, 20); V.release(accK, 20); V.release(accV, 20); V.release(hV, 10); V.release(mxc, 8)
epilogue(True)
V.release(vPf); V.release(gr, 4); V.release(vFp, 3)

(aFLp, aFLs, aSTp, aSTs, aKEYs, aKEYp, aCANDs, aCANDb, aYPs, aYPb, aXs, aX1Fp, aX1Fs, aFTFs, aFTFp, aFT, aROW, aOUT) = range(28, 46)
A(f's_lshl_b32 s{aFLp}, s{sRB}, 9')
A(f's_add_u32 s{aFLp}, s{aFLp}, {WS_FL}')
tg = VP.alloc(2, 2)
vRow = VP.alloc(); vXs = VP.alloc(); vStash = VP.alloc(); vQ16 = VP.alloc(); vL8 = VP.alloc(); vO4 = VP.alloc(2)
A.label('L_pub')
stamp()
A(f's_mov_b32 s{sT0}, 32768')
A(f's_and_b32 s{sT1}, s{sLOCAL}, s{sLOCAL if "olocal" in OPT else sLAYER}')
A(f's_cbranch_scc0 L_opr')
A(f'buffer_store_dwordx4 {vr(oP,4)}, v{vOst}, {srd(SRD_WS)}, 0 offen')
A(f'buffer_store_dwordx4 {vr(oP+4,4)}, v{vOst}, {srd(SRD_WS)}, s{sT0} offen')
A.label('L_opd')
far.append(('L_opr', 'L_opd', [f'buffer_store_dwordx4 {vr(oP,4)}, v{vOst}, {srd(SRD_WS)}, 0 offen',
                               f'buffer_store_dwordx4 {vr(oP+4,4)}, v{vOst}, {srd(SRD_WS)}, s{sT0} offen']))
acc = V.alloc(16, 2); oF = V.alloc(64, 2); bR = V.alloc(64, 2)
for a_ in (0, 1, 4, 5): A(f'v_permlane16_swap_b32 v{xP+a_}, v{xP+a_+2}')
for j in range(8):
    A(f'v_lshlrev_b32 v{acc+2*j}, 16, v{xP+j}')
    A(f'v_and_b32 v{acc+2*j+1}, 0xffff0000, v{xP+j}')
def b_read(ks, t, h): return f'ds_read_b64_tr_b16 {vr(bR + ((ks & 3)*4 + t)*4 + 2*h, 2)}, v{vBo+t} offset:{wo_off(ks) + h*512}'
def b_read_a(ks, t, h): return f'ds_read_b64_tr_b16 {ar(((ks - 4)*4 + t)*4 + 2*h, 2)}, v{vBo+t} offset:{wo_off(ks) + h*512}'
fl = V.alloc(2, 2)
fl_issue = lambda: A(f'buffer_load_dwordx2 {vr(fl,2)}, v{vL8}, {srd(SRD_WS)}, s{aFLp} offen sc1')
def o_flag(n=0):
    A(f's_waitcnt vmcnt({n})')
    A('s_mov_b64 exec, 1')
    local_stores([f'buffer_store_dwordx2 {vr(tg,2)}, v{vL16}, {srd(SRD_WS)}, s{aFLs} offen'])
    A('s_mov_b64 exec, -1')
def o_load(ks): return (f'buffer_load_dwordx4 {vr(oF + 4*ks, 4)}, v{vO4 + (ks >> 3)}, {srd(SRD_WS)}, {"s%d" % sT4 if ks & 4 else 0} offen offset:{(ks%4)*1024} sc1', f'o{ks}')
NPRE = 6
A(f's_mov_b32 s{sT4}, 4096')
A(f's_cmp_lg_u32 s{sLAYER}, 0')
A('s_cbranch_scc1 L_p5')
nyo = 0
if 'otouch' in OPT:
    A('s_mov_b32 exec_lo, 0x01010101')
    A('s_mov_b32 exec_hi, 0x01010101')
    A(f'buffer_load_dword v{vDum}, v{vOst}, {srd(SRD_WS)}, 0 offen sc1')
    A(f'buffer_load_dword v{vDum}, v{vOst}, {srd(SRD_WS)}, s{sT0} offen sc1')
    A('s_mov_b64 exec, -1')
    nyo += 2
if True:
    A.sprinkle = ([wo_dma([k_]) for k_ in wo_rest], 50 // len(wo_rest) if len(wo_rest) > 10 else 5, emit); nyo += len(wo_rest)
A(f's_lshl_b32 s{sT2}, s{sHG}, 2')
A(f's_add_u32 s{sT2}, s{sT2}, s{sW}')
A(f's_lshl_b32 s{sT2}, s{sT2}, 3')
A(f's_add_u32 s{aFLs}, s{sT2}, s{aFLp}')
A(f'v_mov_b32 v{tg}, s{sTAG}')
A(f'v_mov_b32 v{tg+1}, s{sTAGB}')
A(f'v_and_b32 v{vL8}, 31, v{vL}')
A(f'v_lshlrev_b32 v{vL8}, 3, v{vL8}')
A(f's_lshl_b32 s{sT0}, s{sSTB}, 14')
A(f'v_add_u32 v{vO4}, s{sT0}, v{vL16}')
A(f'v_add_u32 v{vO4+1}, 8192, v{vO4}')
A(f's_lshl_b32 s{sT1}, s{sHG}, 7')
A(f's_add_u32 s{aXs}, s{sT0}, s{sT1}')
A(f's_add_u32 s{aOUT}, s{sAB}, s{sT1}')
A(f's_lshl_b32 s{aCANDs}, s{sRB}, 13')
A(f's_add_u32 s{aCANDs}, s{aCANDs}, s{sT1}')
A(f's_add_u32 s{aCANDs}, s{aCANDs}, {WS_CAND}')
A(f's_mov_b32 s{aCANDb}, {WS_CAND}')
A(f's_lshl_b32 s{aSTp}, s{sSTB}, 11')
A(f's_add_u32 s{aSTp}, s{aSTp}, {WS_ST}')
A(f's_lshl_b32 s{sT1}, s{sHG}, 8')
A(f's_add_u32 s{aSTs}, s{aSTp}, s{sT1}')
A(f's_add_u32 s{aYPb}, s{sT1}, {WS_YP}')
A(f's_lshl_b32 s{aYPs}, s{sFS}, 12')
A(f's_add_u32 s{aYPs}, s{aYPs}, {WS_YP}')
A(f's_lshl_b32 s{aKEYs}, s{sHG}, 7')
A(f's_add_u32 s{aKEYs}, s{aKEYs}, s{sSTB}')
A(f's_lshl_b32 s{aKEYs}, s{aKEYs}, 3')
A(f's_add_u32 s{aKEYs}, s{aKEYs}, {WS_KEYS}')
A(f's_lshl_b32 s{aKEYp}, s{sSET}, 10')
A(f's_add_u32 s{aKEYp}, s{aKEYp}, {WS_KEYS}')
A(f's_add_u32 s{aX1Fp}, s{aFLp}, {WS_X1F - WS_FL}')
A(f's_lshl_b32 s{sT2}, s{sW}, 3')
A(f's_add_u32 s{sT2}, s{sT2}, s{sHG}')
A(f's_lshl_b32 s{sT2}, s{sT2}, 3')
A(f's_add_u32 s{aX1Fs}, s{aX1Fp}, s{sT2}')
A(f's_lshl_b32 s{sT2}, s{sI}, 2')
A(f's_add_u32 s{sT2}, s{sT2}, s{sW}')
A(f's_mul_i32 s{sT1}, s{sSET}, 48')
A(f's_add_u32 s{sT1}, s{sT1}, s{sT2}')
A(f's_lshl_b32 s{aFT}, s{sT1}, 13')
A(f's_add_u32 s{aFT}, s{aFT}, {WS_FT}')
A(f's_lshl_b32 s{aROW}, s{sSTB}, 4')
A(f'v_lshl_add_u32 v{vRow}, v{vQ}, 10, v{vGm}')
A(f'v_mov_b32 v{vXs}, v{vRow}')
A(f'v_lshlrev_b32 v{vQ16}, 4, v{vQ}')
A(f's_lshl_b32 s{sT2}, s{sW}, 9')
A(f's_add_u32 s{sT2}, s{sT2}, {L_CS}')
A(f'v_add_u32 v{vStash}, s{sT2}, v{vGm}')
A(f'v_lshrrev_b32 v{t0}, 3, v{vL}')
A(f'v_lshlrev_b32 v{t0}, 10, v{t0}')
A(f'v_sub_u32 v{vXe}, v{vXe}, v{t0}')
A(f'v_xor_b32 v{vXo}, 64, v{vXe}')
A(f'v_add_u32 v{vXo}, 8192, v{vXo}')
assert not A.sprinkle or not A.sprinkle[0]
A.sprinkle = None
V.release(vWo); V.release(vFd)
ftr = V.alloc(12, 2)
A(f'v_lshlrev_b32 v{t2}, 2, v{t0}')
A(f'v_and_b32 v{t3}, 7, v{vL}')
A(f'v_lshl_add_u32 v{t2}, v{t3}, 5, v{t2}')
A(f'v_add_u32 v{t2}, {WS_HELLO}, v{t2}')
A(f'v_and_b32 v{t3}, 127, v0')
A(f'v_lshlrev_b32 v{t3}, 3, v{t3}')
assert min(wo_rest) >= 4 and not wd_late
for ks in range(4):
    for t in range(4):
        for h in range(2): A(b_read(ks, t, h))
o_flag(nyo)
stamp()
if STOP == 'o1': finish()
fl_issue()
A(f's_mov_b32 vcc_lo, 0x11111111')
A(f's_mov_b32 vcc_hi, 0x11111111')
for a_ in (0, 1, 4, 5): A(f'v_permlane16_swap_b32 v{aux+a_}, v{aux+a_+2}')
for r in range(8): A(f'v_cndmask_b32 v{aux+r}, v{aux+r}, v{vOnes}, vcc')
A(f'v_mov_b32 v{vSW}, 0')
for r in range(4): A(f'v_dot2c_f32_bf16 v{vSW}, v{wra+r}, v{vOnes}')
for sh in (8, 4, 2, 1):
    A(f'v_add_f32_dpp v{vSW}, v{vSW}, v{vSW} row_ror:{sh} {DP}')
for sw in ('v_permlane16_swap_b32', 'v_permlane32_swap_b32'):
    A(f'v_mov_b32 v{t0}, v{vSW}')
    A(f'{sw} v{vSW}, v{t0}')
    A(f'v_add_f32 v{vSW}, v{vSW}, v{t0}')
V.release(wra, 4)
V.release(oP, 8)
hel = V.alloc(8, 2)
hel_issue = lambda: (A(f'buffer_load_dwordx4 {vr(hel,4)}, v{t2}, {srd(SRD_WS)}, 0 offen sc1'),
                     A(f'buffer_load_dwordx4 {vr(hel+4,4)}, v{t2}, {srd(SRD_WS)}, 0 offen offset:16 sc1'))
repoll(fl_issue, lambda: tag_check(fl), 'FL')
stamp()
NP0 = int(next((a[4:] for a in OPT if a.startswith('np0=')), '8'))
assert NP0 <= 8
for ks in range(3): emit(o_load(ks))
A('s_barrier')
A.sprinkle = ([[o_load(ks)] for ks in range(3, NP0)], 4, emit)
for f in range(16):
    A(f'ds_read_b64 {vr(oF + 32 + 2 * f, 2)}, v{t3} offset:{L_WD + f * 1024}')
for n in range(3):
    for hh in range(2):
        A(f'ds_read_b64_tr_b16 {vr(ftr + 4 * n + 2 * hh, 2)}, v{vFr} offset:{n * 128 + hh * 4 * 384}')
assert not A.sprinkle[0]
A.sprinkle = None
late = {ks: [o_load(ks + NP0)] for ks in range(16 - NP0)}
late[16 - NP0] = [hel_issue]
for n in range(3):
    late[17 - NP0 + n] = [f's_mov_b32 s{sT0}, {n * 4 * 32768}', f'buffer_store_dwordx4 {vr(ftr + 4 * n, 4)}, v{vFs}, {srd(SRD_WS)}, s{sT0} offen sc1']
NY = 4
if True:
    def ft_touch():
        A('s_mov_b32 exec_lo, 0x11111111')
        A('s_mov_b32 exec_hi, 0')
        for n in range(3):
            A(f's_mov_b32 s{sT0}, {n * 4 * 32768}')
            A(f'buffer_load_dword v{vDum}, v{vFs}, {srd(SRD_WS)}, s{sT0} offen sc1')
        A('s_mov_b64 exec, -1')
E = if_ffn()
A(f's_mov_b32 s{sT0}, 0x05040100')
A(f's_mov_b32 s{sT1}, 0x07060302')
A('s_waitcnt lgkmcnt(6)')
for j in range(8):
    b = oF + 32 + 4 * j
    for c, (hi_, lo_, sel) in enumerate(((2, 0, sT0), (2, 0, sT1), (3, 1, sT0), (3, 1, sT1))):
        A(f'v_perm_b32 v{hel+c}, v{b+hi_}, v{b+lo_}, s{sel}')
    for c in range(4): A(f'v_accvgpr_write_b32 a{aFD + 4*j + c}, v{hel+c}')
endif(E, False)
A('s_waitcnt lgkmcnt(0)')
for ks in range(16):
    nl = min(15, (15 - ks) * 8)
    A.wait_vm(f'o{ks}', f'lgkmcnt({nl})')
    for t in range(4):
        A(mf(vr(acc + 4*t, 4), vr(bR + ((ks & 3)*4 + t)*4, 4), vr(oF + 4*ks, 4), vr(acc + 4*t, 4)))
        if t == 0:
            for x in late.get(ks, []): emit(x)
        if ks + 4 < 16:
            A(b_read(ks + 4, t, 0)); A(b_read(ks + 4, t, 1))
V.release(ftr, 12)
A('s_branch L_p2e')
A.label('L_p5')
rdl = [b_read(ks, t, h) for ks in range(4) for t in range(4) for h in range(2)] + \
      [b_read_a(ks, t, h) for ks in range(4, 16) for t in range(4) for h in range(2)]
RA, RB, NP1 = [int(x) for x in next((a[3:] for a in OPT if a.startswith('p5=')), '16,40,8').split(',')]
for _ in range(RA): A(rdl.pop(0))
o_flag()
stamp_n[0] -= 2; stamp()
for _ in range(16): A(rdl.pop(0))
fl_issue()
for _ in range(RB - 16): A(rdl.pop(0))
repoll(fl_issue, lambda: tag_check(fl), 'FL')
stamp()
for ks in range(NP1):
    emit(o_load(ks))
    for _ in range(3):
        if rdl: A(rdl.pop(0))
done = False
for ks in range(16):
    lg = ''
    if ks == 0: lg = 'lgkmcnt(14)'
    elif not rdl and not done: lg = 'lgkmcnt(0)'; done = True
    assert done or (128 - len(rdl) - 15) // 8 > ks
    if lg == '' and not done: lg = 'lgkmcnt(14)'
    A.wait_vm(f'o{ks}', lg)
    for t in range(4):
        B_ = vr(bR + (ks*4 + t)*4, 4) if ks < 4 else ar(((ks - 4)*4 + t)*4, 4)
        A(mf(vr(acc + 4*t, 4), B_, vr(oF + 4*ks, 4), vr(acc + 4*t, 4)))
        if t == 0 and ks + NP1 < 16: emit(o_load(ks + NP1))
        for _ in range(2):
            if rdl: A(rdl.pop(0))
A.label('L_p2e')
V.release(oF, 64); V.release(bR, 64); V.release(fl, 2)
gG = V.alloc(4, 2); gS = V.take(96, 4) if False else V.alloc(4, 2)
A('s_nop 3')
for j in range(4):
    A(f'v_cvt_pk_bf16_f32 v{xP+j}, v{acc+2*j}, v{acc+2*j+1}')
A(f'v_cvt_pk_bf16_f32 v{xP+4}, v{acc+8}, v{acc+9}')
A(f'v_cvt_pk_bf16_f32 v{xP+5}, v{acc+10}, v{acc+11}')
A(mf(vr(gG, 4), vr(xP, 4), vr(xP, 4), '0'))
A(f'v_cvt_pk_bf16_f32 v{xP+6}, v{acc+12}, v{acc+13}')
A(f'v_cvt_pk_bf16_f32 v{xP+7}, v{acc+14}, v{acc+15}')
A(mf(vr(gS, 4), vr(aux, 4), vr(xP, 4), '0'))
A(f'v_permlane16_swap_b32 v{xP}, v{xP+2}')
A(mf(vr(gG, 4), vr(xP + 4, 4), vr(xP + 4, 4), vr(gG, 4)))
A(f'v_permlane16_swap_b32 v{xP+1}, v{xP+3}')
A(mf(vr(gS, 4), vr(aux + 4, 4), vr(xP + 4, 4), vr(gS, 4)))
A(f'v_permlane16_swap_b32 v{xP+4}, v{xP+6}')
A(f'v_permlane16_swap_b32 v{xP+5}, v{xP+7}')
unp = []
for j in range(8):
    unp += [f'v_lshlrev_b32 v{acc+2*j}, 16, v{xP+j}', f'v_and_b32 v{acc+2*j+1}, 0xffff0000, v{xP+j}']
for _ in range(4): A(unp.pop(0))
A(f'v_cndmask_b32 v{t0}, v{gG}, v{gG+1}, {sr(sM0,2)}')
A(f'v_cndmask_b32 v{t1}, v{gG+2}, v{gG+3}, {sr(sM0,2)}')
A(f'v_cndmask_b32 v{gS+2}, v{t0}, v{t1}, {sr(sM1,2)}')
A(f'v_mov_b32 v{gS+3}, s{sTAG}')
A('s_mov_b32 exec_lo, 0x00f0000f')
A('s_mov_b32 exec_hi, 0xf0000f00')
local_stores([f'buffer_store_dwordx4 {vr(gS,4)}, v{vQ16}, {srd(SRD_WS)}, s{aSTs} offen'])
A('s_mov_b64 exec, -1')
stamp()
V.release(gG, 4)
sa = V.alloc(8, 2)
def h1_issue():
    A(f'buffer_load_dwordx4 {vr(sa,4)}, v{vL16}, {srd(SRD_WS)}, s{aSTp} offen sc1')
    A(f'buffer_load_dwordx4 {vr(sa+4,4)}, v{vL16}, {srd(SRD_WS)}, s{aSTp} offen offset:1024 sc1')
while unp: A(unp.pop(0))
hl = V.alloc(4, 2); vLn = V.alloc()
A(f'v_lshrrev_b32 v{t0}, 3, v{vL}')
A(f'v_and_b32 v{t1}, 0x70, v{vL16}')
A(f'v_lshl_add_u32 v{vLn}, v{t0}, 10, v{t1}')
E = if_layer(0)
E3 = if_wave(3)
A(f'v_lshl_add_u32 v{t0}, v{vQ}, 7, v{vGm}')
A(f'v_add_u32 v{t0}, {L_ROW}, v{t0}')
A(f'v_add_u32 v{t1}, {L_ROW + 1024}, v{vL16}')
A(f'ds_write_b128 v{t0}, {vr(xP,4)}')
A(f'ds_write_b128 v{t0}, {vr(xP+4,4)} offset:64')
A('s_waitcnt lgkmcnt(0)')
A(f'ds_read_b128 {vr(hl,4)}, v{t1}')
endif(E3, False)
Lh = A.newlabel('L_hel'); Lhk = A.newlabel('L_helok')
A(f's_mov_b32 s{sGUARD}, {SPIN}')
A(f's_waitcnt vmcnt({NY})')
A.label(Lh)
for r in range(8): A(f'v_xor_b32 v{hel+r}, s{sTAGB if r & 1 else sTAG}, v{hel+r}')
A(f'v_or3_b32 v{t0}, v{hel+1}, v{hel+3}, v{hel+5}')
A(f'v_or_b32 v{t0}, v{t0}, v{hel+7}')
A(f'v_lshrrev_b32 v{t0}, 4, v{t0}')
A(f'v_or3_b32 v{t0}, v{t0}, v{hel}, v{hel+2}')
A(f'v_or3_b32 v{t0}, v{t0}, v{hel+4}, v{hel+6}')
A(f'v_cmp_ne_u32 vcc, 0, v{t0}')
A(f's_cbranch_vccz {E}')
A('s_sleep 8')
hel_issue(); A.wait_vm0()
A(f's_sub_u32 s{sGUARD}, s{sGUARD}, 1')
A(f's_cbranch_scc0 {Lh}')
endif(E, False)
V.release(hel, 8)

def h1_check():
    A(f'v_cmp_ne_u32 vcc, s{sTAG}, v{sa+3}')
    A(f'v_cmp_ne_u32 {sr(sT2,2)}, s{sTAG}, v{sa+7}')
    A(f'v_pk_add_f32 {vr(sa,2)}, {vr(sa,2)}, {vr(sa+4,2)}')
    A(f's_or_b64 vcc, vcc, {sr(sT2,2)}')
poll(h1_issue, h1_check, 'ST')
stamp()
A(f'v_add_f32 v{sa+2}, v{sa+2}, v{sa+6}')
A(f'v_mov_b32 v{sa+4}, v{sa}')
A(f'v_mov_b32 v{sa+5}, v{sa+1}')
A(f'v_mov_b32 v{sa+6}, v{sa+2}')
local_stores([f'buffer_store_dwordx4 {vr(xP,4)}, v{vXs}, {srd(SRD_WS)}, s{aXs} offen',
              f'buffer_store_dwordx4 {vr(xP+4,4)}, v{vXs}, {srd(SRD_WS)}, s{aXs} offen offset:64'])
for r in range(3): A(f'v_permlane16_swap_b32 v{sa+r}, v{sa+4+r}')
A(f'v_pk_add_f32 {vr(sa,2)}, {vr(sa,2)}, {vr(sa+4,2)}')
A(f'v_add_f32 v{sa+2}, v{sa+2}, v{sa+6}')
for r in range(3): A(f'v_mov_b32 v{sa+4+r}, v{sa+r}')
for r in range(3): A(f'v_permlane32_swap_b32 v{sa+r}, v{sa+4+r}')
A(f'v_pk_add_f32 {vr(sa,2)}, {vr(sa,2)}, {vr(sa+4,2)}')
A(f'v_add_f32 v{sa+2}, v{sa+2}, v{sa+6}')
mu = V.alloc(); var = V.alloc(); pr = V.alloc(2, 2); mm = V.alloc()
ln_params(sa, sa + 2, mu, var, mm, pr, t0)
key = V.alloc(); ka = V.alloc(2, 2); kb = ka + 1
A(f'v_fma_f32 v{key}, -v{mm}, v{vSW}, v{sa+1}')
A(f'v_mul_f32 v{key}, v{key}, v{pr}')
A(f'v_mul_f32 v{pr+1}, -v{mm}, v{pr}')
A(f'v_ashrrev_i32 v{t0}, 31, v{key}')
A(f'v_or_b32 v{t0}, 0x80000000, v{t0}')
A(f'v_xor_b32 v{key}, v{key}, v{t0}')
A(f'v_and_b32 v{key}, 0xfffff800, v{key}')
A(f'v_or3_b32 v{key}, v{key}, v{vQ}, s{aROW}')
xn = V.alloc(8, 2); xf = V.alloc(16, 2)
fillx = [f'v_pk_fma_f32 {vr(xf+2*j,2)}, {vr(acc+2*j,2)}, {vr(pr,2)}, {vr(pr,2)} op_sel:[0,0,1] op_sel_hi:[1,0,1]' for j in range(8)] + \
        [f'v_cvt_pk_bf16_f32 v{xn+j}, v{xf+2*j}, v{xf+2*j+1}' for j in range(8)]
def top2_levels(a, b, levels, fill):
    for lv in levels:
        if fill: A(fill.pop(0))
        A(f'v_min_u32_dpp v{t0}, v{a}, v{a} {lv} {DP}')
        A(f'v_max_u32_dpp v{t1}, v{b}, v{b} {lv} {DP}')
        A(f'v_max_u32_dpp v{a}, v{a}, v{a} {lv} {DP}')
        A(f'v_max_u32 v{b}, v{t0}, v{t1}')
A(fillx.pop(0)); A(fillx.pop(0))
A(f'v_max_u32_dpp v{ka}, v{key}, v{key} quad_perm:[1,0,3,2] {DP}')
A(f'v_min_u32_dpp v{kb}, v{key}, v{key} quad_perm:[1,0,3,2] {DP}')
top2_levels(ka, kb, ['quad_perm:[2,3,0,1]', 'row_half_mirror', 'row_mirror'], fillx)
A('s_mov_b64 exec, 1')
A(f'buffer_store_dwordx2 {vr(ka,2)}, v{vL16}, {srd(SRD_WS)}, s{aKEYs} offen sc1')
E = if_layer(0)
A('s_waitcnt vmcnt(1)')
local_stores([f'buffer_store_dwordx2 {vr(tg,2)}, v{vL16}, {srd(SRD_WS)}, s{aX1Fs} offen'])
FTT = int(next((a[4:] for a in OPT if a.startswith('ftt=')), '0'))
if FTT == 0: ft_touch()
A(f's_cmp_lg_u32 s{sW}, 3')
A(f's_cbranch_scc1 {E}')
A('s_mov_b64 exec, -1')
A(f's_add_u32 s{sT0}, s{aCANDs}, {WS_HALO - WS_CAND}')
A('s_waitcnt lgkmcnt(0)')
A(f'buffer_store_dwordx4 {vr(hl,4)}, v{vLn}, {srd(SRD_WS)}, s{sT0} offen sc1')
endif(E, False)
A('s_mov_b64 exec, -1')
stamp()
A(f'v_cmp_eq_u32 vcc, v{key}, v{kb}')
A(f'v_add_u32 v{t2}, 256, v{vStash}')
if 'cstash' not in OPT:
    A(f's_lshl_b32 s{sT0}, s{sW}, 11')
    A(f's_add_u32 s{sT0}, s{sT0}, s{aCANDs}')
    A(f'v_add_u32 v{t1}, 1024, v{vGm}')
    A(f'v_cndmask_b32 v{t1}, v{vGm}, v{t1}, vcc')
while fillx: A(fillx.pop(0))
A(f'v_cndmask_b32 v{t3}, v{vStash}, v{t2}, vcc')
A(f'v_cmp_ge_u32 vcc, v{key}, v{kb}')
A(f'v_lshrrev_b32 v{t0}, 3, v{vL}')
A(f's_mov_b64 exec, vcc')
if 'cstash' not in OPT:
    A(f'buffer_store_dwordx4 {vr(xn,4)}, v{t1}, {srd(SRD_WS)}, s{sT0} offen sc1')
    A(f'buffer_store_dwordx4 {vr(xn+4,4)}, v{t1}, {srd(SRD_WS)}, s{sT0} offen offset:64 sc1')
A(f'ds_write_b128 v{t3}, {vr(xn,4)} offset:128')
A(f'ds_write_b128 v{t3}, {vr(xn+4,4)} offset:192')
A(f'ds_write_b128 v{t3}, {vr(xP,4)}')
A(f'ds_write_b128 v{t3}, {vr(xP+4,4)} offset:64')
A('s_mov_b64 exec, -1')
V.release(key); V.release(ka, 2)
if 'cstash' in OPT:
    A(f'v_and_b32 v{t1}, 0x70, v{vL16}')
    A(f'v_lshl_add_u32 v{t2}, v{t0}, 8, v{t1}')
    A(f'v_add_u32 v{t2}, {L_CS + 128}, v{t2}')
    A(f's_lshl_b32 s{sT0}, s{sW}, 4')
    A('s_waitcnt lgkmcnt(2)')
    A(f'ds_read_b128 {vr(sa,4)}, v{t2}')
    A(f's_lshl_b64 exec, 0xffff, s{sT0}')
    A('s_waitcnt lgkmcnt(0)')
    A(f'buffer_store_dwordx4 {vr(sa,4)}, v{vLn}, {srd(SRD_WS)}, s{aCANDs} offen sc1')
    A('s_mov_b64 exec, -1')
else:
    A('s_waitcnt lgkmcnt(0)')
V.release(hl, 4); V.release(vLn)
fine()
def chain_params(mu, var, mm, rs, om, oc):
    a = V.alloc(); u = V.alloc(); w_ = V.alloc(); m2 = V.alloc(); r2 = V.alloc()
    A(f'v_add_f32 v{a}, 1.0, v{rs}')
    A(f'v_mul_f32 v{u}, v{mm}, v{rs}')
    A(f'v_fma_f32 v{mu}, v{mu}, v{a}, -v{u}')
    A(f'v_mul_f32 v{w_}, v{a}, v{a}')
    A(f'v_mul_f32 v{var}, v{var}, v{w_}')
    round_params(mu, var, m2, r2, w_)
    A(f'v_rcp_f32 v{w_}, v{a}')
    A(f'v_add_f32 v{u}, v{u}, v{m2}')
    A(f'v_mul_f32 v{oc}, v{a}, v{r2}')
    A(f'v_mul_f32 v{om}, -v{u}, v{w_}')
    for x in (a, u, w_, m2, r2): V.release(x)
xfl = sa
xf_issue = lambda: A(f'buffer_load_dwordx2 {vr(xfl,2)}, v{vL8}, {srd(SRD_WS)}, s{aX1Fp} offen sc1')
for j in range(8):
    A(f'v_lshlrev_b32 v{xf+2*j}, 16, v{xn+j}')
    A(f'v_and_b32 v{xf+2*j+1}, 0xffff0000, v{xn+j}')
for j in range(8):
    A(f'v_pk_add_f32 {vr(xf+2*j,2)}, {vr(xf+2*j,2)}, {vr(acc+2*j,2)}')
for j in range(8):
    A(f'v_cvt_pk_bf16_f32 v{xP+j}, v{xf+2*j}, v{xf+2*j+1}')
V.release(xn, 8); V.release(xf, 16); V.release(acc, 16)
A(f's_cmp_eq_u32 s{sLAYER}, 0')
A('s_cbranch_scc1 L_x1')
for j in range(4):
    A(f'v_mov_b32 v{sa+j}, v{xP+j}')
for j in range(4):
    A(f'v_mov_b32_dpp v{xP+j}, v{xP+4+j} row_ror:8 row_mask:0xf bank_mask:0xc')
for j in range(4):
    A(f'v_mov_b32_dpp v{xP+4+j}, v{sa+j} row_ror:8 row_mask:0xf bank_mask:0x3')
A(f'v_and_b32 v{t0}, 7, v{vQ}')
A(f'v_lshl_add_u32 v{vXs}, v{t0}, 11, v{vGm}')
A(f'v_and_b32 v{t0}, 8, v{vQ}')
A(f'v_lshl_add_u32 v{vXs}, v{t0}, 3, v{vXs}')
def out_stores():
    A(f's_add_u32 s{sT0}, s{aOUT}, 16384')
    A(f'buffer_store_dwordx4 {vr(xP,4)}, v{vXs}, {srd(SRD_OUT)}, s{aOUT} offen{OSC}')
    A(f'buffer_store_dwordx4 {vr(xP+4,4)}, v{vXs}, {srd(SRD_OUT)}, s{sT0} offen{OSC}')
    if 'clean' in OPT:
        A(f's_lshl_b32 s{sT0}, s{sHG}, 11')
        A(f'buffer_store_dwordx4 {vr(xP,4)}, v{vO4}, {srd(SRD_WS)}, s{sT0} offen sc1')
        A(f'buffer_store_dwordx4 {vr(xP,4)}, v{vO4}, {srd(SRD_WS)}, s{sT0} offen offset:1024 sc1')
OSC = ' sc1 nt' if 'ont' in OPT else ' sc1'
if 'outearly' in OPT:
    A(f's_cmp_eq_u32 s{sHASF}, 1')
    A('s_cbranch_scc1 L_x1e')
    out_stores()
A('s_branch L_x1e')
A.label('L_x1')
chain_params(mu, var, mm, pr, t2, t3)
A(f's_lshl_b32 s{sT0}, s{sW}, 6')
A(f'v_add_u32 v{t0}, s{sT0}, v{vQ4}')
A(f'ds_write2_b32 v{t0}, v{t2}, v{t3} offset0:16 offset1:96')
V.release(mu); V.release(var); V.release(pr, 2); V.release(mm)
vSf = V.alloc()
A(f's_lshl_b32 s{sT0}, s{sSET}, 11')
A(f's_add_u32 s{sT0}, s{sT0}, {WS_X1F}')
A(f'v_lshl_add_u32 v{vSf}, v{vG}, 9, v{vQ16}')
A(f'v_add_u32 v{vSf}, s{sT0}, v{vSf}')
E1 = if_wave(1)
poll(xf_issue, lambda: tag_check(xfl), 'X1F')
endif(E1, False)
A('s_waitcnt lgkmcnt(0)')
A('s_barrier')
fine()
V.take(accQ, 20); V.take(accK, 20); V.take(accV, 20); V.take(hV, 10); V.take(mxc, 8)
fr = [V.alloc(16, 2), V.alloc(16, 2)]
def own_reads(ks):
    u = ks & 1; kc = ks >> 1; b = fr[ks & 1]
    return [f'ds_read_b128 {vr(b + 4 * T, 4)}, v{vA+u} offset:{(kc * 8 + 2 * T) * 1024}' for T in range(4)]
def gemm_groups(k0, k1, noread=()):
    G = []
    for ks in range(k0, k1):
        b = fr[ks & 1]; fill = own_reads(ks + 1) if ks < 15 and ks not in noread else []
        for T in range(1, 5):
            X = vr(b + 4 * (T - 1), 4)
            for m_, (d_, a_, b_) in enumerate(((accQ, ar(aW(ks, 0), 4), X), (accK, ar(aW(ks, 1), 4), X), (accV, X, ar(aW(ks, 2), 4)))):
                g_ = [mf(vr(d_ + 4 * T, 4), a_, b_, vr(d_ + 4 * T, 4))]
                if T == 1 and m_ == 0: g_ = ['s_waitcnt lgkmcnt(0)'] + g_
                elif fill and m_ < 2: g_.append(fill.pop(0))
                G.append(g_)
    return G
def gemm_part(k0, k1, ins=None):
    for n_, g_ in enumerate(gemm_groups(k0, k1)):
        for x in g_: A(x)
        for x in (ins or {}).get(n_, []): emit(x)
A.vm = []
def x1_dma(kc, o):
    return ([f's_add_u32 s{sXA}, s{sXB}, {WS_X1 + kc * 128}'] if o == 0 else []) + \
           [f's_add_u32 m0, s{sAM}, {L_A + kc * 8192 + o * 1024}',
            (f'buffer_load_dwordx4 v{vXo if o else vXe}, {srd(SRD_WS)}, s{sXA} offen sc1 lds', f'x{kc >> 1}')]
sXA, sXB = 46, 47
A(f's_lshl_b32 s{sXB}, s{sSTB}, 14')
ci = V.alloc(4, 2); vFo = V.alloc()
A(f'ds_read2_b32 {vr(ci,2)}, v{vQ4} offset0:16 offset1:32')
A(f'ds_read2_b32 {vr(ci+2,2)}, v{vQ4} offset0:48 offset1:64')
for T in range(1, 5): A(f'ds_read_b128 {vr(accV + 4 * T, 4)}, v{vG16} offset:{64 * T}')
sf_issue = lambda: A(f'buffer_load_dwordx4 {vr(sa+4,4)}, v{vSf}, {srd(SRD_WS)}, 0 offen sc1', tag='sf')
sf_issue()
grp = [x1_dma(kc, o) for kc in range(4) for o in range(2)]
for _ in range(2):
    for x in grp.pop(0): emit(x)
A.sprinkle = (grp, 4, emit)
A('s_waitcnt lgkmcnt(4)')
for T in range(1, 5):
    sel = (T - 1) & 1
    for acc_, cs_ in ((accQ, csQ), (accK, csK)):
        for h in range(2):
            A(f'v_pk_mul_f32 {vr(acc_+4*T+2*h,2)}, {vr(cs_+2*h,2)}, {vr(ci + ((T-1)&2),2)} op_sel:[0,{sel}] op_sel_hi:[1,{sel}]')
A('s_waitcnt lgkmcnt(0)')
for T in range(1, 5):
    for h in range(2):
        A(f'v_pk_mul_f32 {vr(accV+4*T+2*h,2)}, {vr(accV+4*T+2*h,2)}, {vr(csV,2)} op_sel_hi:[1,0]')
A.sprinkle = None
assert not grp
V.release(ci, 4)
A(f's_add_u32 s{sT5}, s{aFT}, 4096')
if FTT == 1: ft_touch()
A.wait_vm('x0')
A('s_barrier')
fine()
for x in own_reads(0): A(x)
key_issue = lambda: A(f'buffer_load_dwordx4 {vr(sa,4)}, v{vL16}, {srd(SRD_WS)}, s{aKEYp} offen sc1', tag='key')
ft_ld = [f'buffer_load_dwordx4 {ar(aFG + 4*s_, 4)}, v{vFo}, {srd(SRD_WS)}, s{sT5 if s_ >= 4 else aFT} offen offset:{(s_ & 3)*1024} sc1' for s_ in range(8)]
KC, N1, N2, PER = [int(x) for x in next((a[2:] for a in OPT if a.startswith('n=')), '2,4,13,3').split(',')]
assert KC <= 3
sFTOK = 49
sf_issue = lambda: A(f'buffer_load_dwordx4 {vr(sa+4,4)}, v{vSf}, {srd(SRD_WS)}, 0 offen sc1', tag='sf')
sf_lines = [f'v_xor_b32 v{sa+4+k}, s{sTAGB if k & 1 else sTAG}, v{sa+4+k}' for k in range(4)] + \
           [f'v_or_b32 v{sa+5}, v{sa+5}, v{sa+7}', f'v_lshrrev_b32 v{sa+5}, 4, v{sa+5}', f'v_or3_b32 v{sa+4}, v{sa+4}, v{sa+5}, v{sa+6}', f'v_cmp_ne_u32 vcc, 0, v{sa+4}']
def sf_early():
    A('s_cmp_eq_u64 vcc, 0')
    A(f's_cselect_b32 s{sFTOK}, s{sHASF}, 0')
    A(f's_xor_b32 s{sT0}, s{sFTOK}, 1')
    A(f's_lshl_b32 s{sT0}, s{sT0}, 30')
    A(f'v_add_u32 v{vFo}, s{sT0}, v{vL16}')
for x in sf_lines: A(x)
sf_early()
ins = {2 * n_: [x] for n_, x in enumerate(ft_ld)}
for n_, (kc, o) in enumerate([(kc, o) for kc in range(4, 8) for o in range(2)]): ins[KC * 12 + 1 + PER * n_] = x1_dma(kc, o)
assert KC * 12 + 1 + PER * 7 < N1 * 12 and N1 >= 4
def ft_late():
    A(f's_cmp_gt_u32 s{sHASF}, s{sFTOK}')
    A('s_cbranch_scc1 L_ftl')
    A.label('L_ftr')
far2 += ['L_ftl:'] + [x.replace(f'v{vFo},', f'v{vL16},') for x in ft_ld] + ['s_waitcnt vmcnt(0)', 's_branch L_ftr']
ins[36] = [ft_late] + ins.get(36, [])
KI = int(next((a[3:] for a in OPT if a.startswith('ki=')), '9'))
ins[KI] = ins.get(KI, []) + [sf_issue, key_issue]
def b2b():
    if A.vm_count('x1') is not None and KC > 3: A.wait_vm('x1')
    A('s_barrier')
ins[36] = [b2b] + ins.get(36, [])
gemm_part(0, KC, ins)
A.wait_vm('key')
A(f's_cmp_lg_u32 s{sW}, 0')
A('s_cbranch_scc1 L_keye')
Lsf = A.newlabel('L_sf')
A(f's_mov_b32 s{sGUARD}, {SPIN}')
A(f's_cmp_le_u32 s{sHASF}, s{sFTOK}')
A('s_cbranch_scc1 L_keyc')
A.label(Lsf)
for x in sf_lines: A(x)
A('s_cbranch_vccz L_keyc')
sf_issue(); key_issue()
A('s_waitcnt vmcnt(0)')
A(f's_sub_u32 s{sGUARD}, s{sGUARD}, 1')
A(f's_cbranch_scc0 {Lsf}')
A('s_branch L_keyc')
V.release(vSf)
A.label('L_x1e')
stamp()
A(f's_cmp_lg_u32 s{sW}, 0')
A('s_cbranch_scc1 L_keye')
A(f's_mov_b32 s{sGUARD}, {SPIN}')
A.label('L_keyp')
key_issue()
A('s_waitcnt vmcnt(0)')
A.label('L_keyc')
A(f'v_max3_u32 v{t0}, v{sa}, v{sa+1}, v{sa+2}')
A(f'v_min_u32 v{t2}, v{sa}, v{sa+2}')
A(f'v_max_u32 v{t0}, v{t0}, v{sa+3}')
A(f'v_max_u32 v{sa}, v{sa}, v{sa+2}')
A(f'v_cmp_eq_u32 vcc, -1, v{t0}')
A(f'v_max3_u32 v{sa+1}, v{sa+1}, v{sa+3}, v{t2}')
A('s_cbranch_vccz L_keyk')
backoff('KEYS')
NS = int(next((a[4:] for a in OPT if a.startswith('nsl=')), '8'))
if NS:
    A(f's_cmp_eq_u32 s{sHASF}, 1')
    A('s_cbranch_scc1 L_keyh')
    A(f's_sleep {NS}')
    A.label('L_keyh')
A(f's_sub_u32 s{sGUARD}, s{sGUARD}, 1')
A('s_cbranch_scc0 L_keyp')
A.label('L_keyk')
stamp()
top2_levels(sa, sa + 1, ['quad_perm:[1,0,3,2]', 'quad_perm:[2,3,0,1]', 'row_half_mirror', 'row_mirror'], [])
for n_, ln in enumerate((0, 16, 32, 48)):
    A(f'v_readlane_b32 s{(sK0, sT0, sT2, sU0)[n_]}, v{sa}, {ln}')
for n_, ln in enumerate((0, 16, 32, 48)):
    A(f'v_readlane_b32 s{(sK1, sT1, sT3, sU1)[n_]}, v{sa+1}, {ln}')
for a_, b_ in ((sT0, sT1), (sT2, sT3), (sU0, sU1)):
    A(f's_max_u32 s{sK1}, s{sK1}, s{b_}')
    A(f's_min_u32 s{b_}, s{sK0}, s{a_}')
    A(f's_max_u32 s{sK0}, s{sK0}, s{a_}')
    A(f's_max_u32 s{sK1}, s{sK1}, s{b_}')
A(f's_and_b32 s{sU2}, s{sK0}, 0x7f0')
A(f's_and_b32 s{sU3}, s{sK1}, 0x7f0')
A(f's_cmp_eq_u32 s{sU2}, s{sU3}')
A(f's_cselect_b32 s{sT2}, 8, 0')
A(f's_lshl_b32 s{sU2}, s{sU2}, 7')
A(f's_add_u32 s{sU2}, s{sU2}, s{aCANDb}')
A(f's_or_b32 s{sU3}, s{sU3}, s{sT2}')
A(f's_lshl_b32 s{sU3}, s{sU3}, 7')
A(f's_add_u32 s{sU3}, s{sU3}, s{aCANDb}')
def f_issue():
    A(f'buffer_load_dwordx4 {vr(sa,4)}, v{vL16}, {srd(SRD_WS)}, s{sU2} offen sc1')
    A(f'buffer_load_dwordx4 {vr(sa+4,4)}, v{vL16}, {srd(SRD_WS)}, s{sU3} offen sc1')
E = if_ffn()
f_issue()
endif(E, False)
A(f'v_mov_b32 v{t0}, s{sK0}')
A(f'v_mov_b32 v{t1}, s{sK1}')
A(f'v_mov_b32 v{t2}, {L_KEY}')
A(f'ds_write2_b32 v{t2}, v{t0}, v{t1} offset0:0 offset1:1')
A.label('L_keye')
E = if_layer(0)
gemm_part(KC, N1, {k_ - KC * 12: v_ for k_, v_ in ins.items()})
V.release(vFo)
A('s_waitcnt vmcnt(8)')
A(f's_cmp_lg_u32 s{sW}, 3')
A(f's_cbranch_scc1 {E}')
A(f's_lshl_b32 s{sT0}, s{sRB}, 10')
A(f's_lshl_b32 s{sT1}, s{sHG}, 7')
A(f's_add_u32 s{sT0}, s{sT0}, s{sT1}')
A(f's_add_u32 s{sT0}, s{sT0}, {WS_HS - 128}')
A('s_mov_b32 exec_lo, 0')
A('s_mov_b32 exec_hi, 0xf0000f00')
A(f'buffer_store_dwordx4 {vr(gS,4)}, v{vQ16}, {srd(SRD_WS)}, s{sT0} offen sc1')
A('s_mov_b64 exec, -1')
endif(E, False)
V.release(gS, 4)
fine()
fa = V.alloc(4)
A(f'v_bfe_u32 v{t0}, v{vL}, 2, 1')
A(f'v_and_b32 v{t1}, 1, v{vL}')
A(f'v_lshl_or_b32 v{t0}, v{t0}, 1, v{t1}')
A(f'v_mul_u32_u24 v{fa}, 576, v{t0}')
A(f'v_lshl_add_u32 v{fa}, v{vG}, 4, v{fa}')
A(f'v_add_u32 v{fa}, {L_XS}, v{fa}')
A(f's_lshl_b32 s{sT1}, s{sW}, 3')
A(f's_add_u32 s{sT1}, s{sT1}, {L_H}')
A(f'v_lshlrev_b32 v{fa+1}, 5, v{vG}')
A(f'v_lshl_add_u32 v{fa+1}, v{vQ}, 1, v{fa+1}')
A(f'v_add_u32 v{fa+1}, s{sT1}, v{fa+1}')
A(f's_lshr_b32 s{sT1}, s{sW}, 1')
A(f's_lshl_b32 s{sT1}, s{sT1}, 5')
A(f's_add_u32 s{sT1}, s{sT1}, {L_H}')
A(f'v_mov_b32 v{fa+2}, s{sT1}')
A(f'v_lshlrev_b32 v{fa+3}, 4, v0')
A(f'v_mov_b32 v{t3}, {L_KEY}')
A(f'v_lshrrev_b32 v{t2}, 5, v{vL}')
A(f'v_lshl_add_u32 v{t2}, v{t2}, 6, v{vL16}')
A(f'v_add_u32 v{t2}, {L_XS}, v{t2}')
E = skip_unless([f's_cmp_eq_u32 s{sW}, 0', f's_cselect_b32 s{sT0}, s{sHASF}, 0', f's_cmp_eq_u32 s{sT0}, 0'])
def f_check():
    A(f'v_max_u32 v{t0}, v{sa}, v{sa+4}')
    A(f'ds_write_b128 v{t2}, {vr(sa,4)}')
    A(f'v_cmp_eq_u32 vcc, -1, v{t0}')
    A(f'ds_write_b128 v{t2}, {vr(sa+4,4)} offset:1152')
    A('s_waitcnt lgkmcnt(0)')
Lc = A.newlabel('L_cd')
A(f's_mov_b32 s{sGUARD}, {SPIN}')
A(f's_cmp_eq_u32 s{sLAYER}, 0')
A(f's_cbranch_scc1 {Lc}c')
A.label(Lc)
A('s_waitcnt vmcnt(0)')
A.label(Lc + 'c')
f_check()
A(f's_cbranch_vccz {E}')
f_issue()
A(f's_sub_u32 s{sGUARD}, s{sGUARD}, 1')
A(f's_cbranch_scc0 {Lc}')
endif(E, False)
A('s_waitcnt lgkmcnt(0)')
A('s_barrier')
fine()
A(f's_cmp_eq_u32 s{sHASF}, 0')
A('s_cbranch_scc1 L_noffn')
xs = V.alloc(32, 2); d4 = V.alloc(4, 2); hp = V.alloc(8, 2); y4 = V.alloc(4, 2); wd = xs
for s_ in range(8):
    A(f'ds_read_b128 {vr(xs + 4*s_, 4)}, v{fa} offset:{64*s_}')
for c in range(4): A(f'v_mov_b32 v{y4+c}, 0')
wrd = [f'v_accvgpr_read_b32 v{wd+j}, a{aFD+j}' for j in range(32)]
for s_ in range(8):
    A(f's_waitcnt lgkmcnt({7 - s_})')
    A(mf(vr(d4, 4), vr(xs + 4*s_, 4), ar(aFG + 4*s_, 4), '0' if s_ == 0 else vr(d4, 4)))
    if s_: A(wrd.pop(0)); A(wrd.pop(0))
for _ in range(6): A(wrd.pop(0))
A(f'v_add_f32_dpp v{t0}, v{d4+1}, v{d4} row_shl:8 {DP}')
bf_round(t0, t0)
A(f'v_mul_f32 v{t1}, {hex(f2u(-1.4426950408889634))}, v{t0}')
A(f'v_exp_f32 v{t1}, v{t1}')
A(f'v_mov_b32_dpp v{t2}, v{t0} row_shl:4 {DP}')
A(f'v_add_f32 v{t1}, 1.0, v{t1}')
A(f'v_rcp_f32 v{t1}, v{t1}')
A('s_mov_b64 exec, 0x000f000f')
A(f'v_mul_f32 v{t1}, v{t0}, v{t1}')
bf_round(t1, t1)
A(f'v_mul_f32 v{t1}, v{t2}, v{t1}')
A(f'v_cvt_pk_bf16_f32 v{t1}, v{t1}, v{t1}')
A(f'ds_write_b16 v{fa+1}, v{t1}')
A('s_mov_b64 exec, -1')
for _ in range(8): A(wrd.pop(0))
A('s_waitcnt lgkmcnt(0)')
A('s_barrier')
A(f'ds_read_b128 {vr(hp,4)}, v{fa+2}')
A(f'ds_read_b128 {vr(hp+4,4)}, v{fa+2} offset:16')
while wrd: A(wrd.pop(0))
for j in range(8):
    if j % 4 == 0: A(f's_waitcnt lgkmcnt({1 - j // 4})')
    for c in range(4):
        A(f'v_dot2c_f32_bf16 v{y4+c}, v{wd+4*j+c}, v{hp+j}')
A(f'buffer_store_dwordx4 {vr(y4,4)}, v{fa+3}, {srd(SRD_WS)}, s{aYPs} offen sc1')
V.release(xs, 32); V.release(d4, 4); V.release(hp, 8); V.release(y4, 4)
if 'outearly' not in OPT: A.label('L_noffn')
A(f's_cmp_eq_u32 s{sLAYER}, 0')
A('s_cbranch_scc1 L_noffn2')
out_stores()
if 'outearly' in OPT: A.label('L_noffn')
A.label('L_noffn2')
A(f'ds_read_b64 {vr(sa,2)}, v{t3}')
V.release(fa, 4)
A('s_waitcnt lgkmcnt(0)')
A(f'v_readfirstlane_b32 s{sK0}, v{sa}')
A(f'v_readfirstlane_b32 s{sK1}, v{sa+1}')
stamp()
sOWN = 48
A(f's_bfe_u32 s{sT0}, s{sK0}, 0x50006')
A(f's_bfe_u32 s{sT1}, s{sK1}, 0x50006')
A(f's_cmp_eq_u32 s{sT0}, s{sRB}')
A(f's_cselect_b32 s{sT1}, s{sRB}, s{sT1}')
A(f's_cselect_b32 s{sTOK}, 0, 1')
A(f's_cselect_b32 s{sKEY}, s{sK0}, s{sK1}')
A(f's_cmp_eq_u32 s{sT1}, s{sRB}')
A(f's_cselect_b32 s{sOWN}, 1, 0')
yp = V.alloc(24, 2); yo = V.alloc(2)
def y_issue():
    for j in range(6):
        A(f's_mov_b32 s{sT1}, {j * 65536}')
        A(f'buffer_load_dwordx4 {vr(yp + 4*j, 4)}, v{yo + 1 if j == 5 else yo}, {srd(SRD_WS)}, s{sT1} offen sc1')
def y_start():
    A(f's_lshl_b32 s{sT0}, s{sTOK}, 11')
    A(f's_add_u32 s{sT0}, s{sT0}, s{aYPb}')
    A(f'v_lshrrev_b32 v{t0}, 4, v0')
    A(f'v_lshl_add_u32 v{yo}, v{t0}, 12, v{vQ16}')
    A(f'v_cmp_gt_u32 vcc, 6, v{t0}')
    A(f'v_add_u32 v{yo}, s{sT0}, v{yo}')
    A(f'v_mov_b32 v{t1}, 0x40000000')
    A(f'v_cndmask_b32 v{yo+1}, v{t1}, v{yo}, vcc')
    y_issue()
E = if_layer(0)
def done_flag():
    A('s_waitcnt vmcnt(0)')
    A('s_barrier')
    E2 = if_wave(2)
    A(f's_lshl_b32 s{sT1}, s{sHG}, 3')
    A(f's_add_u32 s{sT1}, s{sT1}, s{aX1Fp}')
    A('s_mov_b64 exec, 1')
    local_stores([f'buffer_store_dwordx2 {vr(tg,2)}, v{vL16}, {srd(SRD_WS)}, s{sT1} offen offset:256'])
    A('s_mov_b64 exec, -1')
    endif(E2, False)
NH = int(next((a[3:] for a in OPT if a.startswith('nh=')), '10'))
hs_ld = f'buffer_load_dwordx4 {vr(sa,4)}, v{vL16}, {srd(SRD_WS)}, s{sU0} offen sc1'
vHo = V.alloc()
prep = [f's_lshl_b32 s{sU0}, s{sRB}, 10', f's_add_u32 s{sU0}, s{sU0}, {WS_HS - 1024}',
        f's_lshl_b32 s{sU1}, s{sRB}, 13', f's_lshl_b32 s{sT0}, s{sW}, 8', f's_add_u32 s{sU1}, s{sU1}, s{sT0}', f's_add_u32 s{sU1}, s{sU1}, {WS_HALO - 16384}',
        f's_add_u32 s{sU2}, s{sU1}, 128', f's_mul_i32 s{sU3}, s{sW}, {2 * HST}', f's_lshl_b32 s{sT0}, s{sFIRST}, 30', f'v_add_u32 v{vHo}, s{sT0}, v{vXo}',
        f's_sub_u32 s{sT4}, s{sFIRST}, 1', f's_mov_b32 s{sT5}, s{sT4}', f's_mov_b32 s{sGUARD}, {SPIN}']
def hs_check():
    A('s_waitcnt vmcnt(0)')
    A.label('L_hs')
    A(f'v_cmp_ne_u32 vcc, s{sTAG}, v{sa+3}')
    A(f's_and_b64 vcc, vcc, {sr(sT4,2)}')
    A('s_cbranch_vccnz L_hsr')
    A.label('L_hsok')
far2 += ['L_hsr:', hs_ld, 's_waitcnt vmcnt(0)', f's_sub_u32 s{sGUARD}, s{sGUARD}, 1', 's_cbranch_scc0 L_hs', 's_branch L_hsok']
def own_pre():
    A(f's_cmp_lg_u32 s{sOWN}, 0')
    A('s_cbranch_scc1 L_ys')
    A.label('L_ysr')
save = A.lines; A.lines = []
if 'nox2t' not in OPT:
    A(f's_mov_b32 s{sT0}, {WS_X2R}')
    A(f'v_lshlrev_b32 v{t0}, 7, v{vQ}')
    A(f'buffer_load_dword v{vDum}, v{t0}, {srd(SRD_WS)}, s{sT0} offen sc1')
y_start()
far2 += ['L_ys:'] + [l.text for l in A.lines] + ['s_branch L_ysr']; A.lines = save
ins = {2 + n_: [x] for n_, x in enumerate(prep)}
k_ = (NH - 1 - N1) * 12
assert k_ > len(prep) + 2
ins[(7 - N1) * 12] = [done_flag]
assert (7 - N1) * 12 > len(prep) + 2 and (7 - N1) * 12 < k_
ins[k_] = [hs_ld]
ins[k_ + 24] = [hs_check]
ins[k_ + 25] = [f's_add_u32 m0, s{sU3}, {L_HA}', f'buffer_load_dwordx4 v{vHo}, {srd(SRD_WS)}, s{sU1} offen sc1 lds']
ins[k_ + 26] = [f's_add_u32 m0, s{sU3}, {L_HA + HST}', f'buffer_load_dwordx4 v{vHo}, {srd(SRD_WS)}, s{sU2} offen sc1 lds', own_pre]
G = gemm_groups(N1, N2)
for n_ in range(k_ + 27):
    for x in G.pop(0): A(x)
    for x in ins.get(n_, []): emit(x)
V.release(vHo)
A.sprinkle = (G, 2, emit)
mu = V.alloc(); var = V.alloc(); pr = V.alloc(); mm = V.alloc()
for r in (0, 2): A(f'v_add_f32_dpp v{sa+r}, v{sa+r}, v{sa+r} row_ror:8 {DP}')
for sw in ('v_permlane16_swap_b32', 'v_permlane32_swap_b32'):
    for r in (0, 2): A(f'v_mov_b32 v{sa+4+r}, v{sa+r}')
    for r in (0, 2): A(f'{sw} v{sa+r}, v{sa+4+r}')
    for r in (0, 2): A(f'v_add_f32 v{sa+r}, v{sa+r}, v{sa+4+r}')
ln_params(sa, sa + 2, mu, var, mm, pr, t0)
chain_params(mu, var, mm, pr, t2, t3)
A.sprinkle = None
for g_ in G:
    for x in g_: emit(x)
A(f's_mov_b64 exec, {sr(sT4,2)}')
A(f'ds_write2_b32 v{vQ4}, v{t2}, v{t3} offset0:0 offset1:80')
A('s_mov_b64 exec, -1')
V.release(mu); V.release(var); V.release(pr); V.release(mm)
endif(E, False)
V.release(sa, 8)
stamp()
A(f's_cmp_eq_u32 s{sOWN}, 0')
A('s_cbranch_scc1 L_own_end')
A(f's_cmp_eq_u32 s{sLAYER}, 0')
A('s_cbranch_scc1 L_own2')
A.label('L_own')
A(f's_bfe_u32 s{sT0}, s{sKEY}, 0x50006')
A(f's_cmp_lg_u32 s{sT0}, s{sRB}')
A('s_cbranch_scc1 L_own_end')
y_start()
A.label('L_own2')
A(f's_and_b32 s{sRHO}, s{sKEY}, 2047')
sg = V.alloc(); ya = V.alloc(); yb = V.alloc(); yc = V.alloc()
def y_check():
    A(f'v_max3_u32 v{t0}, v{yp}, v{yp+4}, v{yp+8}')
    A(f'v_max3_u32 v{t1}, v{yp+12}, v{yp+16}, v{yp+20}')
    A(f'v_max_u32 v{t0}, v{t0}, v{t1}')
    A(f'v_cmp_eq_u32 vcc, -1, v{t0}')
A(f's_bfe_u32 s{sT0}, s{sK0}, 0x70004')
A(f's_bfe_u32 s{sT2}, s{sKEY}, 0x70004')
A(f's_cmp_eq_u32 s{sT0}, s{sT2}')
A(f's_cselect_b32 s{sT0}, s{sTOK}, 0')
A(f's_lshl_b32 s{sT0}, s{sT0}, 8')
A(f's_and_b32 s{sT2}, s{sT2}, 3')
A(f's_lshl_b32 s{sT2}, s{sT2}, 9')
A(f's_add_u32 s{sT0}, s{sT0}, s{sT2}')
A(f's_add_u32 s{sT0}, s{sT0}, {L_CS}')
A(f'v_lshl_add_u32 v{yc}, v{vL}, 1, s{sT0}')
A(f'ds_read_u16 v{ya}, v{yc}')
A(f'ds_read_u16 v{yb}, v{yc} offset:128')
A(f's_ashr_i32 s{sT2}, s{sKEY}, 31')
A(f's_not_b32 s{sT2}, s{sT2}')
A(f's_or_b32 s{sT2}, s{sT2}, 0x80000000')
A(f's_xor_b32 s{sT2}, s{sT2}, s{sKEY}')
A(f'v_mov_b32 v{sg}, s{sT2}')
bf_round(sg, sg)
A(f'v_mul_f32 v{sg}, {hex(f2u(-1.4426950408889634))}, v{sg}')
A(f'v_exp_f32 v{sg}, v{sg}')
A(f'v_add_f32 v{sg}, 1.0, v{sg}')
A(f'v_rcp_f32 v{sg}, v{sg}')
bf_round(sg, sg)
A('s_waitcnt lgkmcnt(0)')
A(f'v_lshlrev_b32 v{ya}, 16, v{ya}')
A(f'v_lshlrev_b32 v{yb}, 16, v{yb}')
A(f'v_lshlrev_b32 v{yc}, 4, v0')
A(f'v_add_u32 v{yc}, {L_RED}, v{yc}')
A(f's_lshl_b32 s{sT2}, s{sHG}, 7')
A(f's_and_b32 s{sU0}, s{sRHO}, 1023')
A(f's_lshl_b32 s{sU0}, s{sU0}, 11')
A(f's_and_b32 s{sT0}, s{sRHO}, 1024')
A(f's_add_u32 s{sU0}, s{sU0}, s{sT0}')
A(f's_add_u32 s{sU0}, s{sU0}, s{sT2}')
A(f's_lshl_b32 s{sU1}, s{sTOK}, 10')
A(f's_add_u32 s{sU1}, s{sU1}, s{sT2}')
A(f's_add_u32 s{sU1}, s{sU1}, {WS_X2R}')
if 'ypold' in OPT: repoll(y_issue, y_check, 'YP')
else:
    MK = [4, 6, 8, 10, 20, 22]
    A(f's_mov_b32 s{sGUARD}, {SPIN}')
    for j in range(1, 6): A(f's_mov_b32 s{(24, 25, 26, 27, 74)[j-1]}, {j * 65536}')
    A.label('L_yp')
    A('s_waitcnt vmcnt(0)')
    for j in range(6): A(f'v_cmp_eq_u32 {sr(MK[j],2)}, -1, v{yp+4*j}')
    A(f's_or_b64 vcc, {sr(MK[0],2)}, {sr(MK[1],2)}')
    A(f's_or_b64 {sr(sT0,2)}, {sr(MK[2],2)}, {sr(MK[3],2)}')
    A(f's_or_b64 vcc, vcc, {sr(MK[4],2)}')
    A(f's_or_b64 {sr(sT0,2)}, {sr(sT0,2)}, {sr(MK[5],2)}')
    A(f's_or_b64 vcc, vcc, {sr(sT0,2)}')
    A('s_cbranch_scc0 L_ypok')
    for j in range(6):
        A(f's_mov_b64 exec, {sr(MK[j],2)}')
        A(f's_cbranch_execz L_yp{j}')
        A(f'buffer_load_dwordx4 {vr(yp + 4*j, 4)}, v{yo + 1 if j == 5 else yo}, {srd(SRD_WS)}, {"s%d" % (24, 25, 26, 27, 74)[j-1] if j else 0} offen sc1')
        A.label(f'L_yp{j}')
    A('s_mov_b64 exec, -1')
    A(f's_sub_u32 s{sGUARD}, s{sGUARD}, 1')
    A('s_cbranch_scc0 L_yp')
    A.label('L_ypok')
    A.vm = []
fine()
for a_, b_ in ((0, 4), (8, 12), (16, 20), (0, 8), (0, 16)):
    for h in range(2):
        A(f'v_pk_add_f32 {vr(yp+a_+2*h,2)}, {vr(yp+a_+2*h,2)}, {vr(yp+b_+2*h,2)}')
A(f'ds_write_b128 v{yc}, {vr(yp,4)}')
A(f'v_lshlrev_b32 v{t0}, 2, v{vL}')
A(f'v_add_u32 v{t0}, {L_RED}, v{t0}')
A('s_waitcnt lgkmcnt(0)')
A('s_barrier')
A(f's_cmp_lg_u32 s{sW}, 3')
A('s_cbranch_scc1 L_own_sync')
for j in range(8):
    A(f'ds_read2st64_b32 {vr(yp + 2*j, 2)}, v{t0} offset0:{2*j} offset1:{2*j+1}')
A(f'v_lshlrev_b32 v{t0}, 1, v{vL}')
for n_, (a_, b_) in enumerate(((0, 2), (4, 6), (8, 10), (12, 14), (0, 4), (8, 12), (0, 8))):
    if n_ < 4: A(f's_waitcnt lgkmcnt({6 - 2 * n_})')
    A(f'v_pk_add_f32 {vr(yp+a_,2)}, {vr(yp+a_,2)}, {vr(yp+b_,2)}')
A(f'v_add_f32 v{yp}, v{yp}, v{yp+1}')
bf_round(yp, yp)
A(f'v_mul_f32 v{yp}, v{yp}, v{sg}')
bf_round(yp, yp)
A(f'v_add_f32 v{yp}, v{yp}, v{yb}')
bf_round(yp, yp)
A(f'v_add_f32 v{yp}, v{yp}, v{ya}')
A(f'v_mov_b32_dpp v{yp+1}, v{yp} quad_perm:[1,0,3,2] {DP}')
A(f'v_cvt_pk_bf16_f32 v{yp}, v{yp}, v{yp+1}')
A('s_mov_b32 exec_lo, 0x55555555')
A('s_mov_b32 exec_hi, 0x55555555')
A(f's_cmp_eq_u32 s{sLAYER}, 0')
A('s_cbranch_scc1 L_own_x2')
A(f'buffer_store_dword v{yp}, v{t0}, {srd(SRD_OUT)}, s{sU0} offen')
A('s_branch L_own_fin')
A.label('L_own_x2')
local_stores([f'buffer_store_dword v{yp}, v{t0}, {srd(SRD_WS)}, s{sU1} offen'])
A(f's_and_b32 s{sT0}, s{sRHO}, 63')
A(f's_cmp_lt_u32 s{sT0}, 56')
A('s_cbranch_scc1 L_own_nh')
A(f'buffer_store_dword v{yp}, v{t0}, {srd(SRD_WS)}, s{sU1} offen offset:2048 sc1')
A.label('L_own_nh')
A(f'v_add_u32 v{t0}, {L_X2S}, v{t0}')
A(f'ds_write_b32 v{t0}, v{yp}')
A.label('L_own_fin')
A('s_mov_b64 exec, -1')
A.label('L_own_sync')
A('s_waitcnt lgkmcnt(0)')
A('s_barrier')
A(f's_bfe_u32 s{sT0}, s{sRHO}, 0x20004')
A(f's_cmp_lg_u32 s{sT0}, s{sW}')
A('s_cbranch_scc1 L_own_next')
A(f's_and_b32 s{sT0}, s{sRHO}, 15')
A(f'v_add_u32 v{t0}, {L_X2S}, v{vGm}')
A(f'v_cmp_eq_u32 vcc, s{sT0}, v{vQ}')
A('s_mov_b64 exec, vcc')
A(f'ds_read_b128 {vr(xP,4)}, v{t0}')
A(f'ds_read_b128 {vr(xP+4,4)}, v{t0} offset:64')
A('s_mov_b64 exec, -1')
A('s_waitcnt lgkmcnt(0)')
V.release(yp, 24); V.release(yo, 2); V.release(sg); V.release(ya); V.release(yb); V.release(yc)
A.label('L_own_next')
A(f's_mov_b32 s{sKEY}, s{sK1}')
A(f's_add_u32 s{sTOK}, s{sTOK}, 1')
A(f's_cmp_lt_u32 s{sTOK}, 2')
A('s_cbranch_scc1 L_own')
A.label('L_own_end')
A(f's_cmp_eq_u32 s{sLAYER}, 1')
A('s_cbranch_scc1 L_fin')
stamp()
G = gemm_groups(N2, 16)
for x in G.pop(0): A(x)
A.sprinkle = (G, 1, emit)
sS0, sS1 = sU2, sU3
for key_, dst in ((sK0, sS0), (sK1, sS1)):
    A(f's_and_b32 s{sT0}, s{key_}, 2047')
    A(f's_lshl_b32 s{sT1}, s{sRB}, 6')
    A(f's_sub_u32 s{sT0}, s{sT0}, s{sT1}')
    A(f's_add_u32 s{dst}, s{sT0}, 16')
    A(f's_cmp_lt_u32 s{dst}, 80')
    A(f's_cselect_b32 s{dst}, s{dst}, 0')
    A(f's_lshl_b32 s{sT1}, s{sFIRST}, 3')
    A(f's_add_u32 s{sT1}, s{sT1}, 8')
    A(f's_cmp_ge_u32 s{dst}, s{sT1}')
    A(f's_cselect_b32 s{dst}, s{dst}, 0')
A(f's_cmp_eq_u32 s{sW}, 2')
A.sprinkle = None
A(f's_cselect_b32 s{sT4}, s{sS0}, s{sS1}')
A(f's_cselect_b32 s{sTOK}, 0, 1')
A(f's_bitcmp1_b32 s{sW}, 0')
A(f's_cselect_b32 s{sT4}, 0, s{sT4}')
rw = V.take(144, 4); rc = V.take(148, 4); vc = V.take(152, 16); dfl = V.take(168, 2); vRw = V.take(170); vDf = V.take(171)
df_issue = lambda: A(f'buffer_load_dwordx2 {vr(dfl,2)}, v{vDf}, {srd(SRD_WS)}, s{aX1Fp} offen offset:256 sc1')
bump = [f'v_mov_b32 v{vXs}, 0x40000000', f'v_and_b32 v{vDf}, 56, v{vL8}',
        f'v_lshrrev_b32 v{vRw}, 3, v{vL}', f'v_mul_u32_u24 v{vRw}, {HST - 128}, v{vRw}', f'v_add_u32 v{vRw}, v{vRw}, v{vL16}', f'v_add_u32 v{vRw}, {L_HA + 1024}, v{vRw}']
for a_, d_ in ((aFLp, 1 << 14), (aFLs, 1 << 14), (aSTp, 1 << 18), (aSTs, 1 << 18), (aKEYs, 1 << 13), (aKEYp, 1 << 13),
               (aCANDs, 1 << 18), (aCANDb, 1 << 18), (aYPs, 86 * 4096), (aYPb, 86 * 4096)):
    bump.append(f's_add_u32 s{a_}, s{a_}, {d_}')
PS = {0: 4, 1: 20}
for tok, sl in ((0, sS0), (1, sS1)):
    p = PS[tok]
    bump += [f's_and_b32 s{p+5}, s{sl}, 15', f's_lshl_b32 s{p}, 0x00010001, s{p+5}', f's_mov_b32 s{p+1}, s{p}',
             f's_lshr_b32 s{p+4}, s{sl}, 4', f's_lshl_b32 s{p+2}, s{p+4}, 2', f's_lshl_b32 s{p+4}, s{p+4}, 1',
             f's_sub_u32 s{p+3}, s{p+4}, 2', f's_min_u32 s{p+3}, s{p+3}, 7',
             f's_bfe_u32 s{p+6}, s{p+5}, 0x10001', f's_add_u32 s{p+4}, s{p+4}, s{p+6}',
             f's_and_b32 s{p+6}, s{p+5}, 12', f's_lshl_b32 s{p+6}, s{p+6}, 2', f's_lshl_b64 s[{p+6}:{p+7}], 0xffff, s{p+6}',
             f's_lshl_b32 s{p+5}, s{p+5}, 4', f's_lshl_b32 s{p+5}, 0xffff, s{p+5}']
for g_ in G:
    for x in g_: emit(x)
    for _ in range(3):
        if bump: A(bump.pop(0))
while bump: A(bump.pop(0))
df_issue()
A(f'ds_read2_b32 {vr(rc,2)}, v{vQ4} offset0:96 offset1:112')
A(f'ds_read2_b32 {vr(rc+2,2)}, v{vQ4} offset0:128 offset1:144')
for T in range(4): A(f'ds_read_b128 {vr(vc + 4 * T, 4)}, v{vG16} offset:{320 + 64 * (T + 1)}')
for b in fr: V.release(b, 16)
E = skip_unless([f's_cmp_eq_u32 s{sT4}, 0'])
A(f's_cmp_lt_u32 s{sT4}, 16')
A(f's_cselect_b32 s{sT1}, 2, 0')
A(f's_add_u32 s{sT0}, s{sTOK}, s{sT1}')
A(f's_lshl_b32 s{sT0}, s{sT0}, 10')
A(f's_add_u32 s{sT0}, s{sT0}, {WS_X2R}')
r_issue = lambda: A(f'buffer_load_dwordx4 {vr(rw,4)}, v{vL16}, {srd(SRD_WS)}, s{sT0} offen sc1')
r_issue()
A(f's_lshl_b32 s{sT1}, s{sTOK}, 7')
A(f'v_add_u32 v{t2}, s{sT1}, v{vRw}')
def r_check():
    A(f'v_max3_u32 v{t0}, v{rw}, v{rw+1}, v{rw+2}')
    A(f'ds_write_b128 v{t2}, {vr(rw,4)}')
    A(f'v_max_u32 v{t0}, v{t0}, v{rw+3}')
    A(f'v_cmp_eq_u32 vcc, -1, v{t0}')
    A('s_waitcnt lgkmcnt(0)')
repoll(r_issue, r_check, 'X2R')
endif(E, False)
A('s_waitcnt vmcnt(0) lgkmcnt(0)')
fine()
A('s_barrier')
fine()
xr = V.alloc(64, 2); hp_ = vc
def h_read(ks): return f'ds_read_b128 {vr(xr + 4*ks, 4)}, v{vH + (ks & 1)} offset:{(ks >> 1) * HST}'
def shadow():
    sh = []
    for T in range(4):
        sh += [f'v_mul_f32 v{accV+4*T+4+r}, v{accV+4*T+4+r}, v{vc+4*T+r}' for r in range(4)] + pack2(hV + 2 * T + 2, accV + 4 * T + 4)
    for T in range(4):
        sh += pack2(hQ(T), hQ(T))
        sh += [f'v_mul_f32 v{hK(T)+r}, v{hK(T)+r}, v{rc+T}' for r in range(4)] + pack2(hK(T), hK(T))
        sh += [f'v_mul_f32 v{mxc+2*T}, {hex(f2u(QSC))}, v{rc+T}']
    return sh
def halo_gemm(with_q, sh):
    hr = [h_read(ks) for ks in range(10, 16)]
    hr2 = [f'ds_read2_b32 {vr(hp_,2)}, v{vQ4} offset0:0 offset1:80', f'ds_read_b128 {vr(hp_+2,4)}, v{vG16}', f'ds_read_b128 {vr(hp_+6,4)}, v{vG16} offset:320']
    for ks in range(16):
        c = lambda x: '0' if ks == 0 else vr(x, 4)
        X = vr(xr + 4 * ks, 4)
        if ks == 0: A('s_waitcnt lgkmcnt(7)')
        if ks == 3: A('s_waitcnt lgkmcnt(3)')
        if ks == 9: A('s_waitcnt lgkmcnt(0)')
        M = [mf(vr(accK, 4), ar(aW(ks, 1), 4), X, c(accK)), mf(vr(accV, 4), X, ar(aW(ks, 2), 4), c(accV))]
        if with_q: M.append(mf(vr(accQ, 4), ar(aW(ks, 0), 4), X, c(accQ)))
        for n_, m_ in enumerate(M):
            A(m_)
            if n_ == 0 and hr: A(hr.pop(0))
            if n_ == 0 and ks >= 10 and hr2: A(hr2.pop(0))
            for _ in range(2):
                if sh: A(sh.pop(0))
    while sh: A(sh.pop(0))
    A('s_waitcnt lgkmcnt(0)')
A(f's_or_b32 s{sT0}, s{sS0}, s{sS1}')
A('s_cbranch_scc0 L_nofix')
nq = xr; rr = xr + 56; s12 = V.take(172, 4); pp = accV + 16
for tok in range(2): A(f'ds_read_b128 {vr(rr + 4 * tok, 4)}, v{vRw} offset:{128 * tok}')
for ks in range(10): A(h_read(ks))
for r in range(4): A(f'v_mov_b32 v{s12+r}, 0')
A('s_waitcnt lgkmcnt(10)')
for j in range(4):
    for tok in range(2):
        A(f'v_dot2c_f32_bf16 v{s12+2*tok}, v{rr+4*tok+j}, v{vOnes}')
        A(f'v_dot2c_f32_bf16 v{s12+2*tok+1}, v{rr+4*tok+j}, v{rr+4*tok+j}')
save = A.lines; A.lines = []
for r in range(2): A(f'v_permlane32_swap_b32 v{s12+r}, v{s12+2+r}')
for r in range(2): A(f'v_add_f32 v{s12+r}, v{s12+r}, v{s12+2+r}')
for sh_ in (8, 4, 2, 1):
    for r in range(2): A(f'v_add_f32_dpp v{s12+r}, v{s12+r}, v{s12+r} row_ror:{sh_} {DP}')
for r in range(2): A(f'v_mov_b32 v{s12+2+r}, v{s12+r}')
for r in range(2): A(f'v_permlane16_swap_b32 v{s12+r}, v{s12+2+r}')
for r in range(2): A(f'v_add_f32 v{s12+r}, v{s12+r}, v{s12+2+r}')
ln_params(s12, s12 + 1, rw, rw + 1, pp, pp + 1, t0)
A(f'v_xor_b32 v{pp}, 0x80000000, v{pp}')
A(f'v_mov_b32 v{pp+3}, v{pp+1}')
A(f'v_mov_b32 v{pp+2}, v{pp}')
for r in range(2): A(f'v_permlane32_swap_b32 v{pp+r}, v{pp+2+r}')
st_ = [l.text for l in A.lines if l.op != 's_nop']; A.lines = save
halo_gemm(True, shadow() + st_)
V.release(s12, 4)
stamp()
tag_check(dfl)
for tok in range(2):
    for r in range(4): A(f'v_mov_b32_dpp v{nq+10*tok+4+r}, v{accK+r} row_newbcast:{tok} {DP}')
    A(f'v_mov_b32 v{nq+10*tok+8}, v{accV+tok}')
    A(f'v_mov_b32 v{nq+10*tok+9}, v{accV+tok}')
norm_pk(-1, hp_, hp_ + 2, hp_ + 6)
for tok in range(2):
    A(f'v_permlane32_swap_b32 v{nq+10*tok+8}, v{nq+10*tok+9}')
for x in pack2(hK(-1), hK(-1)) + pack2(hV, accV): A(x)
for tok, sl in ((0, sS0), (1, sS1)):
    E = skip_unless([f's_cmp_eq_u32 s{sl}, 0'])
    n_ = nq + 10 * tok; p_ = pp + 2 * tok
    for r in range(4): A(f'v_mov_b32_dpp v{n_+r}, v{accQ+r} row_newbcast:{tok} {DP}')
    for h in range(2):
        A(f'v_pk_fma_f32 {vr(n_+4+2*h,2)}, {vr(csK+2*h,2)}, {vr(p_,2)}, {vr(n_+4+2*h,2)} op_sel_hi:[1,0,1]')
        A(f'v_pk_fma_f32 {vr(n_+2*h,2)}, {vr(csQ+2*h,2)}, {vr(p_,2)}, {vr(n_+2*h,2)} op_sel_hi:[1,0,1]')
    A(f'v_fma_f32 v{n_+8}, v{csV}, v{p_}, v{n_+8}')
    for h in range(2):
        A(f'v_pk_mul_f32 {vr(n_+4+2*h,2)}, {vr(n_+4+2*h,2)}, {vr(p_,2)} op_sel:[0,1] op_sel_hi:[1,1]')
    A(f'v_mul_f32 v{n_+8}, v{n_+8}, v{p_+1}')
    for x in pack2(n_, n_) + pack2(n_ + 4, n_ + 4): A(x)
    A(f'v_cvt_pk_bf16_f32 v{n_+8}, v{n_+8}, v{n_+8}')
    A(f'v_mul_f32 v{n_+9}, {hex(f2u(QSC))}, v{p_+1}')
    p = PS[tok]
    A(f's_mov_b64 exec, s[{p}:{p+1}]')
    A(f's_set_gpr_idx_on s{p+2}, gpr_idx(SRC2,DST)')
    for r in range(2): A(f'v_mov_b32 v{accQ+r}, v{n_+r}')
    for r in range(2): A(f'v_mov_b32 v{accK+r}, v{n_+4+r}')
    A(f's_set_gpr_idx_idx s{p+3}')
    A(f'v_mov_b32 v{mxc}, v{n_+9}')
    A(f's_set_gpr_idx_idx s{p+4}')
    A(f's_mov_b64 exec, s[{p+6}:{p+7}]')
    A(f'v_bfi_b32 v{hV}, s{p+5}, v{n_+8}, v{hV}')
    A('s_set_gpr_idx_off')
    A('s_mov_b64 exec, -1')
    endif(E, False)
A('s_branch L_fixed')
A.label('L_nofix')
for ks in range(10): A(h_read(ks))
sh = shadow()
for _ in range(6): A(sh.pop(0))
halo_gemm(False, sh)
stamp_n[0] -= 1; stamp()
tag_check(dfl)
norm_pk(-1, hp_, hp_ + 2, hp_ + 6)
for x in pack2(hK(-1), hK(-1)) + pack2(hV, accV): A(x)
A.label('L_fixed')
V.release(rw, 4); V.release(xr, 64); V.release(rc, 4); V.release(vc, 16); V.release(vRw)
A(f's_cbranch_vccz L_dfok')
poll(df_issue, lambda: tag_check(dfl), 'DF')
A.label('L_dfok')
V.release(dfl, 2); V.release(vDf)
stamp()
A(f's_mov_b32 s{sLAYER}, 1')
V.take(oP, 8)
attention([])
A('s_branch L_pub')
A.label('L_fin')
A(f's_or_b32 s{sT0}, s2, s{sW}')
A('s_cbranch_scc1 L_fin2')
A(f's_mov_b32 s{sT1}, {WS_EPOCH}')
A('s_mov_b64 exec, 1')
A(f'buffer_store_dword v{tg}, v{vL16}, {srd(SRD_WS)}, s{sT1} offen')
A('s_mov_b64 exec, -1')
A.label('L_fin2')
if 'wb' in OPT:
    A(f's_lshl_b32 s{sT0}, s{sI}, 2')
    A(f's_add_u32 s{sT0}, s{sT0}, s{sW}')
    A(f's_lshl_b32 s{sT1}, s{sOWN}, 8')
    A(f's_add_u32 s{sT0}, s{sT0}, s{sT1}')
    A(f's_cmp_lg_u32 s{sT0}, {31 * 4 + 1}')
    A('s_cbranch_scc1 L_fin3')
    A('buffer_wbl2 sc1')
    A.label('L_fin3')
finish()
emit_far()
A.label('L_end')
A('s_endpgm')

hdr = f"""; @launch grid=(256,1,1) block=(256,1,1) lds={LDS_SIZE}
.amdgcn_target "amdgcn-amd-amdhsa--gfx950"
.text
.globl {NAME}_kernel
.p2align 8
.type {NAME}_kernel,@function
"""
tail = f"""
.section .rodata,"a"
.p2align 6
.amdhsa_kernel {NAME}_kernel
  .amdhsa_next_free_vgpr 512
  .amdhsa_next_free_sgpr 102
  .amdhsa_accum_offset 256
  .amdhsa_group_segment_fixed_size 0
  .amdhsa_kernarg_size 88
  .amdhsa_user_sgpr_count 2
  .amdhsa_user_sgpr_kernarg_segment_ptr 1
  .amdhsa_system_sgpr_workgroup_id_x 1
.end_amdhsa_kernel
"""
open(sys.argv[1], 'w').write(hdr + A.text() + tail)
print('vgpr high water', V.hw, 'nops added', A.nops_added, 'lines', len(A.lines))
```

```python
import sys, struct
from asmlib import *

NAME = "interleave_layers__sliding_local_dilated__moe_arch_mod__prompt"
STOP = None
STAMPS = False
FORCE_REMOTE = False
OPT = set(sys.argv[2:])
for a in sys.argv[2:]:
    if a.startswith('stop='): STOP = a[5:]
    if a == 'stamps': STAMPS = True
    if a == 'remote': FORCE_REMOTE = True

def f2u(x): return struct.unpack('<I', struct.pack('<f', x))[0]
MB = 1 << 20
WS_O = 0
WS_X1 = WS_O
WS_SENT = 4 * MB
WS_KEYS = WS_SENT + 16384
WS_HS = WS_SENT + 32768
WS_X2R = WS_SENT
WS_CAND = WS_SENT + 64 * 1024
WS_YP = WS_SENT + 576 * 1024
assert WS_YP + 2 * 86 * 4096 <= WS_SENT + 1280 * 1024
WS_ST = WS_SENT + 1280 * 1024
WS_HALO = 6 * MB
WS_ST0 = WS_HALO + 256 * 1024 + 128
WS_FL = WS_HALO + 320 * 1024
WS_X1F = WS_HALO + 352 * 1024
WS_HELLO = WS_HALO + 384 * 1024
WS_EPOCH = WS_HELLO + 8 * 4096
WS_FT = 10 * MB
WS_STAMP = 8 * MB
WS_SIZE = 16 * MB
L_A = 0
L_HA = 65536
HST = 1280
L_W = L_HA + 8 * HST
SLOT = {1: 0, 0: 24576, 2: 49152}
L_WO = L_W + 12288
def wo_off(ks): return 61440 if ks == 15 else ((ks - 12) * 4096 if ks >= 12 else (12288 + (ks - 6) * 4096 if ks >= 6 else 36864 + ks * 4096))
L_W15 = L_A
L_FT = L_A + 12288
L_WD = L_A + 24576
L_RED = L_W
L_ROW = L_W + 4096
L_XS = L_W + 8192
L_TAB = L_W + 3 * 24576 + 4096
L_CS = L_TAB + 640
L_H = L_CS + 2048
L_X2S = L_H + 64
L_KEY = L_X2S + 128
LDS_SIZE = 160 * 1024
assert L_KEY + 64 <= LDS_SIZE
SRD_X, SRD_W, SRD_WS, SRD_OUT, SRD_U, SRD_T = 4, 8, 12, 16, 20, 24
P = 28
sW, sSET, sI, sHG, sRB, sP, sJ0, sFIRST, sLOCAL, sLAYER = range(50, 60)
sT0, sT1, sT2, sT3, sT4, sT5 = range(60, 66)
sM0, sM1 = 66, 68
sRET = 70
sSTAMP = 72
sGUARD = 75
sTAG, sTAGB = 76, 77
sFS, sHASF, sK0, sK1, sTOK, sRHO, sKEY, sST = range(78, 86)
sAB, sAM, sWM, sOM = range(86, 90)
sSTB = 92
sU0, sU1, sU2, sU3 = range(94, 98)
stamp_n = [0]

A = Asm()
VP = Pool(1, 80)
V = Pool(80, 256)
vST = VP.alloc()
oP = V.take(80, 8); wra = V.take(88, 4)
fr = [V.take(136, 20), V.take(156, 20)]; vc = V.take(176, 20); srow = V.take(124, 8); s12 = V.take(132, 4)
def srd(n): return sr(n, 4)
DP = 'row_mask:0xf bank_mask:0xf'

PADAT = next((a[6:].split(',') for a in OPT if a.startswith('padat=')), None)
pad_n = [1]
def stamp(force=False):
    if PADAT:
        n = pad_n[0]; pad_n[0] += 1
        if n == int(PADAT[1]):
            L = A.newlabel('L_pad')
            A(f's_cmp_lg_u32 s{sLAYER}, {PADAT[0]}')
            A(f's_cbranch_scc1 {L}e')
            A.label(L)
            A(f's_memrealtime {sr(sSTAMP,2)}')
            A('s_waitcnt lgkmcnt(0)')
            A(f's_sub_u32 s{sSTAMP}, s{sSTAMP}, s90')
            A(f's_cmp_lt_u32 s{sSTAMP}, {PADAT[2]}')
            A(f's_cbranch_scc1 {L}')
            A.label(L + 'e')
    if not STAMPS: return
    n = stamp_n[0]; stamp_n[0] += 1
    if 'minstamp' in OPT and not force: return
    assert n < 32
    A(f'{"s_memtime" if "cyc" in sys.argv else "s_memrealtime"} {sr(sSTAMP,2)}')
    A(f's_lshl_b32 s{sST}, s{sLAYER}, 5')
    A(f's_add_u32 s{sST}, s{sST}, {n}')
    A('s_waitcnt lgkmcnt(0)')
    A(f's_mov_b32 m0, s{sST}')
    A('s_nop 0')
    A(f'v_writelane_b32 v{vST}, s{sSTAMP}, m0')

def mk_srd(d, ptr, size):
    A(f's_mov_b32 s{d}, s{ptr}')
    A(f's_and_b32 s{d+1}, s{ptr+1}, 0xffff')
    A(f's_mov_b32 s{d+2}, {size}')
    A(f's_mov_b32 s{d+3}, 0x20000')

def bf_round(dst, src):
    A(f'v_cvt_pk_bf16_f32 v{dst}, 0, v{src}')

def ln_params(s1, s2, mu, var, m, rs, t):
    A(f'v_mul_f32 v{mu}, {hex(f2u(1/512))}, v{s1}')
    A(f'v_mul_f32 v{var}, {hex(f2u(1/512))}, v{s2}')
    A(f'v_fma_f32 v{var}, -v{mu}, v{mu}, v{var}')
    A(f'v_max_f32 v{var}, 0, v{var}')
    round_params(mu, var, m, rs, t)

def round_params(mu, var, m, rs, t):
    bf_round(t, var)
    A(f'v_add_f32 v{t}, {hex(f2u(1e-5))}, v{t}')
    bf_round(t, t)
    A(f'v_sqrt_f32 v{t}, v{t}')
    bf_round(m, mu)
    bf_round(t, t)
    A(f'v_rcp_f32 v{rs}, v{t}')

def finish():
    if PAD:
        L = A.newlabel('L_pad')
        A.label(L)
        A(f's_memrealtime {sr(sSTAMP,2)}')
        A('s_waitcnt lgkmcnt(0)')
        A(f's_sub_u32 s{sSTAMP}, s{sSTAMP}, s90')
        A(f's_cmp_lt_u32 s{sSTAMP}, {PAD}')
        A(f's_cbranch_scc1 {L}')
    if STAMPS:
        stamp(True)
        A(f's_lshl_b32 s{sT0}, s2, 10')
        A(f's_add_u32 s{sT0}, s{sT0}, {WS_STAMP}')
        A(f'v_lshlrev_b32 v{t0}, 2, v0')
        A(f'buffer_store_dword v{vST}, v{t0}, {srd(SRD_WS)}, s{sT0} offen')
    A('s_endpgm')

def mf(d, a, b, c, k32=True):
    return f'v_mfma_f32_16x16x{32 if k32 else 16}_bf16 {d}, {a}, {b}, {c}'
def emit(x):
    if callable(x): x()
    elif isinstance(x, tuple): A(x[0], tag=x[1])
    else: A(x)


class Defer:
    def __init__(self, out): self.out = out
    def __enter__(self):
        if 'defer' in OPT: self.save = A.lines; A.lines = []
    def __exit__(self, *a):
        if 'defer' not in OPT: return
        for l in A.lines:
            if l.op == 's_nop': continue
            if l.op.startswith(('s_cselect', 's_addc', 's_subb')): self.out[-1].append(l.text)
            else: self.out.append([l.text])
        A.lines = self.save
D1, D2, D3, D4 = [], [], [], []
A.raw(f'{NAME}_kernel:')
A('s_cmp_ge_u32 s2, 256')
A('s_cbranch_scc1 L_end')
PAD = int(next((a[6:] for a in OPT if a.startswith('padto=')), '0'))
if PAD or PADAT: A('s_memrealtime s[90:91]')
if STAMPS: A(f'{"s_memtime" if "cyc" in sys.argv else "s_memrealtime"} s[90:91]')
A(f's_load_dwordx2 {sr(SRD_W,2)}, s[0:1], 8')
A(f's_load_dwordx2 {sr(SRD_X,2)}, s[0:1], 0')
P_X, P_W, P_WO, P_BX, P_WR, P_WG, P_WU, P_WD, P_OUT, P_DBG, P_WS = [P + 2 * i for i in range(11)]
vL = VP.alloc(); vQ = VP.alloc(); vG = VP.alloc(); vL16 = VP.alloc()
t0 = VP.alloc(); t1 = VP.alloc(); t2 = VP.alloc(); t3 = VP.alloc()
vDum = VP.alloc()
vXe = VP.alloc(); vXo = VP.alloc()
vR8 = V.take(93); vWo = V.take(92); vWd = V.alloc(); vSt = V.alloc()
A(f'v_lshrrev_b32 v{t0}, 6, v0')
A(f'v_lshrrev_b32 v{t1}, 3, v0')
A(f'v_readfirstlane_b32 s{sW}, v{t0}')
A(f'v_and_b32 v{t2}, 2, v{t1}')
A(f'v_and_b32 v{t0}, 1, v{t0}')
A(f'v_lshl_or_b32 v{t2}, v{t0}, 2, v{t2}')
A(f'v_and_b32 v{t3}, 7, v0')
A(f'v_xor_b32 v{t2}, v{t2}, v{t3}')
A(f's_bfe_u32 s{sHG}, s2, 0x30003')
A(f's_lshl_b32 s{sT0}, s{sHG}, 7')
A(f'v_lshl_add_u32 v{t2}, v{t2}, 4, s{sT0}')
A(f'v_mul_u32_u24 v{vWd}, 3072, v{t1}')
A(f'v_add_u32 v{vWd}, v{vWd}, v{t2}')
A(f's_mul_i32 s{sWM}, s{sW}, 3072')
A(f's_add_u32 s{sWM}, s{sWM}, {L_W}')
A(f's_mov_b32 s{SRD_W+2}, {512 * 3072}')
A(f's_mov_b32 s{SRD_W+3}, 0x20000')
A(f's_mov_b32 s{SRD_X+2}, {2 * MB}')
A(f's_mov_b32 s{SRD_X+3}, 0x20000')
A(f'v_lshl_add_u32 v{vWo}, v{t1}, 10, v{t2}')
A(f'v_bfe_u32 v{vG}, v0, 4, 2')
A(f'v_and_b32 v{vR8}, 7, v{t1}')
A(f'v_xor_b32 v{t2}, v{t3}, v{vG}')
A(f'v_lshlrev_b32 v{t2}, 4, v{t2}')
A(f'v_lshl_add_u32 v{vXe}, v{vR8}, 11, v{t2}')
A(f'v_xor_b32 v{vXo}, 64, v{vXe}')
A(f'v_add_u32 v{vXo}, {8 * 2048}, v{vXo}')
A(f's_and_b32 s{sSET}, s2, 7')
A(f's_lshr_b32 s{sT0}, s2, 6')
A(f's_lshl_b32 s{sRB}, s{sSET}, 2')
A(f's_add_u32 s{sRB}, s{sRB}, s{sT0}')
A(f's_and_b32 s{sJ0}, s{sRB}, 15')
A(f's_lshl_b32 s{sT4}, s{sJ0}, 17')
A(f's_and_b32 s{sT1}, s{sRB}, 16')
A(f's_lshl_b32 s{sT1}, s{sT1}, 6')
A(f's_add_u32 s{sT4}, s{sT4}, s{sT1}')
A(f's_lshl_b32 s{sAB}, s{sW}, 15')
A(f's_add_u32 s{sAB}, s{sAB}, s{sT4}')
A(f's_lshl_b32 s{sAM}, s{sW}, 11')
A(f's_mov_b32 s{sLAYER}, 0')
if STAMPS: A(f'v_mov_b32 v{vST}, 0')
A('s_waitcnt lgkmcnt(0)')
if STAMPS:
    A(f'v_writelane_b32 v{vST}, s90, 0'); stamp_n[0] = 1
stamp()
def stage_dma(s):
    H = []
    for ksl in range(2):
        ks = 2 * s + ksl
        H.append([f's_add_u32 m0, s{sAM}, {L_A + s * 8192 + ksl * 1024}',
                  f's_add_u32 s{sT3}, s{sAB}, {s * 128}',
                  (f'buffer_load_dwordx4 v{vXo if ksl else vXe}, {srd(SRD_X)}, s{sT3} offen{NTX if s == 0 else ""} lds', f'S{s}'),
                  (f's_sub_u32 m0, s{sWM}, {L_W - L_W15}' if ks == 15 else f's_add_u32 m0, s{sWM}, {SLOT[s % 3] + ksl * 12288}'),
                  f's_mov_b32 s{sT3}, {ks * 98304}'] +
                 [(f'buffer_load_dwordx4 v{vWd}, {srd(SRD_W)}, s{sT3} offen offset:{m * 1024} lds', f'S{s}') for m in range(3)])
    return H
NTX = ' nt' if 'ntx' in OPT else ''; NTP = ''
def halo_dma(j): return [f's_add_u32 m0, s{sT4}, {L_HA + 4 * j * HST}'] + ([f's_add_u32 s{sT5}, s{sT5}, 512'] if j else []) + \
                        [(f'buffer_load_dwordx4 v{vXo}, {srd(SRD_X)}, s{sT5} offen{NTX} lds', 'S2' if j else 'S0')]
g0 = []
for hh in stage_dma(0): g0 += [hh[:3], hh[3:6], hh[6:7], hh[7:8]]
for _ in range(2):
    for x in g0.pop(0): emit(x)
A(f's_load_dwordx16 s[{P}:{P+15}], s[0:1], 0')
A(f's_load_dwordx4 s[{P+16}:{P+19}], s[0:1], 64')
A(f's_load_dwordx2 s[{P+20}:{P+21}], s[0:1], 80')
vTw = V.alloc(); vTo = V.alloc()
A.sprinkle = (g0, 5, emit)
A(f'v_and_b32 v{vL}, 63, v0')
A(f'v_and_b32 v{vQ}, 15, v0')
A(f'v_lshlrev_b32 v{vL16}, 4, v{vL}')
A(f's_lshr_b32 s{sI}, s2, 3')
A(f's_lshr_b32 s{sP}, s{sRB}, 4')
A(f's_lshl_b32 s{sT2}, s{sHG}, 2')
A(f's_add_u32 s{sT2}, s{sT2}, s{sW}')
A(f's_lshl_b32 s{sT2}, s{sT2}, 12')
A(f's_add_u32 s{sT2}, s{sT2}, s{sT4}')
A(f'v_lshrrev_b32 v{t0}, 5, v{vL}')
A(f'v_and_b32 v{t1}, 31, v{vL}')
A(f'v_lshlrev_b32 v{t1}, 4, v{t1}')
A(f'v_lshl_add_u32 v{vSt}, v{t0}, 11, v{t1}')
A(f's_min_u32 s{sT5}, s{sJ0}, 1')
A(f's_xor_b32 s{sFIRST}, s{sT5}, 1')
A(f's_lshl_b32 s{sT5}, s{sT5}, 15')
A(f's_sub_u32 s{sT5}, s{sT4}, s{sT5}')
A(f's_lshl_b32 s{sT1}, s{sW}, 7')
A(f's_add_u32 s{sT5}, s{sT5}, s{sT1}')
A(f's_mul_i32 s{sT4}, s{sW}, {HST}')
A(f's_lshl_b32 s{sJ0}, s{sJ0}, 6')
A(f's_lshl_b32 s{sT0}, s2, 2')
A(f's_add_u32 s{sT0}, s{sT0}, s{sW}')
A(f's_mul_i32 s{sT1}, s{sT0}, {12 * 128}')
A(f's_lshl_b32 s{sT0}, s{sT0}, 9')
A(f'v_lshl_add_u32 v{vTw}, v{vL}, 7, s{sT1}')
A(f'v_lshl_add_u32 v{vTo}, v{vL}, 7, s{sT0}')
A(f's_lshl_b32 s{sU0}, s{sI}, 2')
A(f's_add_u32 s{sU0}, s{sU0}, s{sW}')
A(f's_lshl_b32 s{sT0}, s{sU0}, 10')
A(f'v_lshl_add_u32 v{t3}, v{vQ}, 17, s{sT0}')
A(f'v_cmp_lt_u32 vcc, 15, v{vL}')
A.sprinkle = None
assert not g0
for x in halo_dma(0): emit(x)
A(f's_sub_u32 s{sT0}, 384, s{SRD_W}')
A(f's_and_b32 s{sT0}, s{sT0}, 0x380')
A(f'v_add_u32 v{t0}, s{sT0}, v{t3}')
A(f'v_cndmask_b32 v{vTw}, v{vTw}, v{t0}, vcc')
A(f's_getpc_b64 {sr(sT0,2)}')
A.label('L_pc')
A(f's_lshl_b32 s{sU0}, s{sU0}, 8')
A(f'v_lshl_add_u32 v{t0}, v{vL}, 7, s{sU0}')
A(f'v_min_u32 v{t0}, L_end-L_pc, v{t0}')
A('s_mov_b64 exec, 3')
A(f'global_load_dword v{vDum}, v{t0}, {sr(sT0,2)}', tag='code')
A('s_mov_b64 exec, 0x0fff0fff')
A(f'buffer_load_dword v{vDum}, v{vTw}, {srd(SRD_W)}, 0 offen', tag='touch')
A('s_mov_b64 exec, -1')
A(f'buffer_load_dwordx4 {vr(srow,4)}, v{vSt}, {srd(SRD_X)}, s{sT2} offen{NTX}', tag='srow')
A(f'buffer_load_dwordx4 {vr(srow+4,4)}, v{vSt}, {srd(SRD_X)}, s{sT2} offen offset:512{NTX}', tag='srow')
A('s_waitcnt lgkmcnt(0)')
A(f's_add_u32 s{sT0}, s{P_WS}, {WS_EPOCH}')
A(f's_addc_u32 s{sT1}, s{P_WS+1}, 0')
A(f's_load_dword s{sTAG}, {sr(sT0,2)}, 0')
A(f's_sub_u32 s{sT0}, 384, s{P_WO}')
A(f's_and_b32 s{sT0}, s{sT0}, 0x380')
A(f'v_add_u32 v{t0}, s{sT0}, v{t3}')
A(f'v_cndmask_b32 v{vTo}, v{vTo}, v{t0}, vcc')
V.release(vSt); V.release(vTw)
tp = V.alloc(2, 2)
A(f'v_mov_b32 v{tp}, s{P_WR}')
A(f'v_mov_b32 v{tp+1}, s{P_WR+1}')
A(f'v_lshl_add_u32 v{tp}, v{vL}, 7, v{tp}')
pages = [(P_WS, 2 * MB - 128), (P_WS, 4 * MB), (P_WS, 6 * MB), (P_WS, 10 * MB), (P_WS, 12 * MB), (P_OUT, 0), (P_WG, 0), (P_WU, 0), (P_WD, 0)]
for n, (p_, off) in enumerate(pages):
    if off == 6 * MB:
        A(f's_lshl_b32 s{sT0}, s{sRB}, 3')
        A(f's_add_u32 s{sT0}, s{sT0}, s{sHG}')
        A(f's_lshl_b32 s{sT0}, s{sT0}, 7')
        A(f's_add_u32 s{sT0}, s{sT0}, {WS_ST0}')
        A(f's_add_u32 s{sT0}, s{p_}, s{sT0}')
        A(f's_addc_u32 s{sT1}, s{p_+1}, 0')
        A(f'v_writelane_b32 v{tp}, s{sT0}, {8 + n}')
        A(f'v_writelane_b32 v{tp+1}, s{sT1}, {8 + n}')
    elif off:
        A(f's_add_u32 s{sT0}, s{p_}, {off}')
        A(f's_addc_u32 s{sT1}, s{p_+1}, 0')
        A(f'v_writelane_b32 v{tp}, s{sT0}, {8 + n}')
        A(f'v_writelane_b32 v{tp+1}, s{sT1}, {8 + n}')
    else:
        A(f'v_writelane_b32 v{tp}, s{p_}, {8 + n}')
        A(f'v_writelane_b32 v{tp+1}, s{p_+1}, {8 + n}')
A(f's_add_u32 s{sT0}, s{P_WR}, 1024')
A(f's_cselect_b32 s{sT0}, {hex(((1 << len(pages)) - 1) << 8)}, {0}')
A(f's_cselect_b32 s{sT0}, s{sT0}, {hex((1 << (8 + len(pages))) - 1)}')
A(f's_lshl_b32 s{sT1}, 0x11111111, s{sW}')
A(f's_and_b32 exec_lo, s{sT0}, s{sT1}')
A('s_mov_b32 exec_hi, 0')
A(f'global_load_dword v{vDum}, {vr(tp,2)}, off sc1', tag='touch')
if True:
    A('s_mov_b64 exec, 0x000f000f')
    A(f'global_load_dword v{vDum}, v{vTo}, {sr(P_WO,2)}', tag='touch')
A('s_mov_b64 exec, -1')
V.release(vTo)
V.release(tp, 2)
mk_srd(SRD_WS, P_WS, WS_SIZE)
with Defer(D3):
    mk_srd(SRD_OUT, P_OUT, 2 * MB)
    A(f's_cmp_lt_u32 s{sW}, 2')
    A(f's_cselect_b64 {sr(SRD_T,2)}, {sr(P_WG,2)}, {sr(P_WU,2)}')
    A(f's_and_b32 s{SRD_T+1}, s{SRD_T+1}, 0xffff')
    A(f's_mov_b32 s{SRD_T+2}, {512 * 2752}')
    A(f's_mov_b32 s{SRD_T+3}, 0x20000')
    mk_srd(SRD_U, P_WD, 1376 * 1024)
    A(f's_and_b32 s{sT0}, s{sI}, {31 if "static" in OPT else 15}')
    A(f's_mul_i32 s{sFS}, s{sSET}, 11')
    A(f's_add_u32 s{sFS}, s{sFS}, s{sT0}')
    A(f's_cmp_lt_u32 s{sT0}, 11')
    A(f's_cselect_b32 s{sHASF}, 1, 0')
    A(f's_cmp_lt_u32 s{sFS}, 86')
    A(f's_cselect_b32 s{sHASF}, s{sHASF}, 0')
    vFp = V.alloc(3); vFd = vR8; vFr = VP.alloc(); vFs = VP.alloc()
    A(f's_lshl_b32 s{sT0}, s{sI}, 1')
    A(f's_and_b32 s{sT1}, s{sW}, 1')
    A(f's_add_u32 s{sT0}, s{sT0}, s{sT1}')
    A(f's_mul_i32 s{sT0}, s{sT0}, {8 * 2752}')
    A(f's_mul_i32 s{sT1}, s{sSET}, 352')
    A(f's_add_u32 s{sT0}, s{sT0}, s{sT1}')
    for n in range(3):
        A(f'v_add_u32 v{t0}, {64 * n}, v{vL}')
        A(f'v_mul_u32_u24 v{t1}, 171, v{t0}')
        A(f'v_lshrrev_b32 v{t1}, 12, v{t1}')
        A(f'v_mul_u32_u24 v{t1}, {2752 - 384}, v{t1}')
        A(f'v_lshl_add_u32 v{t0}, v{t0}, 4, s{sT0}')
        A(f'v_add_u32 v{vFp+n}, v{t0}, v{t1}')
    A(f'v_bfe_u32 v{t1}, v{vL}, 2, 2')
    A(f'v_lshl_add_u32 v{t0}, v{vG}, 3, v{t1}')
    A(f'v_mul_u32_u24 v{vFr}, 384, v{t0}')
    A(f'v_and_b32 v{t0}, 3, v{vL}')
    A(f'v_lshl_add_u32 v{vFr}, v{t0}, 3, v{vFr}')
    A(f's_lshl_b32 s{sT0}, s{sW}, 5')
    A(f's_add_u32 s{sT0}, s{sT0}, {L_FT}')
    A(f'v_add_u32 v{vFr}, s{sT0}, v{vFr}')
    A(f'v_lshlrev_b32 v{vFs}, 4, v{t0}')
    A(f'v_lshl_add_u32 v{vFs}, v{t1}, 13, v{vFs}')
    A(f'v_and_b32 v{t0}, 1, v{vG}')
    A(f'v_lshl_add_u32 v{vFs}, v{t0}, 8, v{vFs}')
    A(f'v_lshrrev_b32 v{t0}, 1, v{vG}')
    A(f'v_lshl_add_u32 v{vFs}, v{t0}, 6, v{vFs}')
    A(f's_mul_i32 s{sT0}, s{sSET}, 12')
    A(f's_add_u32 s{sT0}, s{sT0}, s{sW}')
    A(f's_lshl_b32 s{sT0}, s{sT0}, 15')
    A(f's_and_b32 s{sT1}, s{sI}, 15')
    A(f's_lshl_b32 s{sT1}, s{sT1}, 9')
    A(f's_add_u32 s{sT0}, s{sT0}, s{sT1}')
    A(f's_lshr_b32 s{sT1}, s{sI}, 4')
    A(f's_lshl_b32 s{sT1}, s{sT1}, 7')
    A(f's_add_u32 s{sT0}, s{sT0}, s{sT1}')
    A(f's_add_u32 s{sT0}, s{sT0}, {WS_FT}')
    A(f'v_add_u32 v{vFs}, s{sT0}, v{vFs}')
    A(f's_lshl_b32 s{sT1}, s{sFS}, 14')
    A(f's_cmp_eq_u32 s{sHASF}, 1')
    A(f's_cselect_b32 s{sT1}, s{sT1}, 0x40000000')
    A(f's_lshl_b32 s{sT0}, s{sW}, 12')
    A(f's_add_u32 s{sT1}, s{sT1}, s{sT0}')
    A(f'v_add_u32 v{vFd}, s{sT1}, v{vL16}')
aFG, aFD = 192, 224
vOnes = VP.alloc(2, 2)
A(f'v_mov_b32 v{vOnes}, 0x3f803f80')
A(f'v_mov_b32 v{vOnes+1}, 0x3f803f80')
A(f'v_lshrrev_b32 v{t0}, 5, v0')
A(f'v_mul_u32_u24 v{t0}, {HST}, v{t0}')
A(f'v_and_b32 v{t1}, 31, v0')
A(f'v_lshl_add_u32 v{t0}, v{t1}, 2, v{t0}')
A(f'v_add_u32 v{t0}, {L_HA + 1024}, v{t0}')
A(f'ds_write2_b32 v{t0}, v{vOnes}, v{vOnes} offset0:0 offset1:32')
with Defer(D1):
    vQ4 = VP.alloc(); vG16 = VP.alloc(); vGm = VP.alloc()
    A(f'v_lshlrev_b32 v{vQ4}, 2, v{vQ}')
    A(f'v_add_u32 v{vQ4}, {L_TAB}, v{vQ4}')
    A(f'v_lshlrev_b32 v{vG16}, 4, v{vG}')
    A(f'v_add_u32 v{vG16}, {L_TAB}, v{vG16}')
    A(f'v_mov_b32 v{t0}, 0')
    A(f'ds_write2_b32 v{vQ4}, v{t0}, v{t0} offset0:0 offset1:80')
    A(f'v_and_b32 v{t0}, 1, v{vG}')
    A(f'v_lshlrev_b32 v{vGm}, 5, v{t0}')
    A(f'v_lshrrev_b32 v{t1}, 1, v{vG}')
    A(f'v_lshl_add_u32 v{vGm}, v{t1}, 4, v{vGm}')
    vOst = VP.alloc()
    A(f'v_lshlrev_b32 v{vOst}, 14, v{t0}')
    A(f'v_lshl_add_u32 v{vOst}, v{t1}, 8, v{vOst}')
    A(f'v_lshl_add_u32 v{vOst}, v{vQ}, 4, v{vOst}')
    A(f's_lshl_b32 s{sT0}, s{sRB}, 16')
    A(f's_lshl_b32 s{sT1}, s{sHG}, 11')
    A(f's_add_u32 s{sT0}, s{sT0}, s{sT1}')
    A(f's_lshl_b32 s{sT1}, s{sW}, 9')
    A(f's_add_u32 s{sT0}, s{sT0}, s{sT1}')
    A(f'v_add_u32 v{vOst}, s{sT0}, v{vOst}')
vA = VP.alloc(2); vH = VP.alloc(2)
A(f'v_lshrrev_b32 v{t0}, 1, v{vQ}')
A(f'v_xor_b32 v{t0}, v{vG}, v{t0}')
A(f'v_lshlrev_b32 v{t0}, 4, v{t0}')
A(f'v_lshl_add_u32 v{vA}, v{vQ}, 7, v{t0}')
A(f'v_and_b32 v{t1}, 1, v{vQ}')
A(f'v_lshlrev_b32 v{t1}, 7, v{t1}')
A(f'v_lshl_add_u32 v{t1}, v{vG}, 4, v{t1}')
A(f'v_add_u32 v{t1}, {L_HA + 1024}, v{t1}')
A(f'v_add_u32 v{t2}, {L_HA - 1024}, v{vA}')
A(f'v_cmp_lt_u32 vcc, 7, v{vQ}')
A(f'v_cndmask_b32 v{vH}, v{t1}, v{t2}, vcc')
A(f'v_xor_b32 v{vA+1}, 64, v{vA}')
A(f'v_xor_b32 v{vH+1}, 64, v{vH}')
vWr = V.alloc(); vBo = VP.alloc(4)
A(f'v_bfe_u32 v{t0}, v{vL}, 2, 2')
A(f'v_and_b32 v{t2}, 3, v{vL}')
A(f'v_lshlrev_b32 v{t2}, 3, v{t2}')
A(f'v_lshl_add_u32 v{t2}, v{t0}, 7, v{t2}')
A(f'v_lshrrev_b32 v{t0}, 1, v{t0}')
A(f'v_and_b32 v{t1}, 1, v{vG}')
A(f'v_lshl_or_b32 v{t0}, v{t1}, 1, v{t0}')
A(f'v_lshl_add_u32 v{t2}, v{t0}, 5, v{t2}')
A(f'v_lshl_add_u32 v{vBo}, v{vG}, 10, v{t2}')
A(f'v_add_u32 v{vBo}, {L_WO}, v{vBo}')
assert L_WO % 128 == 0 and L_W % 128 == 0
for t in range(1, 4): A(f'v_xor_b32 v{vBo+t}, {t << 5}, v{vBo}')
A(f's_lshl_b32 s{sT0}, s{sW}, 5')
A(f'v_xor_b32 v{t2}, s{sT0}, v{t2}')
A(f'v_mul_u32_u24 v{vWr}, 3072, v{vG}')
vWr15 = V.alloc()
A(f'v_add_u32 v{vWr15}, v{vWr}, v{t2}')
A(f'v_add_u32 v{vWr}, {L_W}, v{vWr15}')
assert L_W15 == 0
with Defer(D1):
    A(f's_lshl_b32 s{sOM}, s{sW}, 10')
    A(f's_add_u32 s{sOM}, s{sOM}, {L_WO}')
with Defer(D4):
    vBP = VP.alloc(4, 2); vBC = VP.alloc(4, 2); vBP0 = VP.alloc(4, 2); vMP = VP.alloc(2)
    A(f'v_lshlrev_b32 v{t0}, 2, v{vG}')
    A(f'v_sub_u32 v{t0}, v{vQ}, v{t0}')
    A(f'v_mov_b32 v{t2}, 0xff800000')
    A(f's_cmp_eq_u32 s{sFIRST}, 1')
    A(f's_cselect_b64 {sr(sM0,2)}, 0, -1')
    for r in range(4):
        A(f'v_add_u32 v{t1}, {-r}, v{t0}')
        A(f'v_cmp_lt_u32 vcc, 7, v{t1}')
        A(f'v_cndmask_b32 v{vBC+r}, 0, v{t2}, vcc')
        A(f'v_cmp_lt_i32 vcc, -9, v{t1}')
        A(f'v_cndmask_b32 v{vBP+r}, 0, v{t2}, vcc')
        A(f'v_cndmask_b32 v{vBP0+r}, v{t2}, v{vBP+r}, {sr(sM0,2)}')
        A(f'v_mov_b32 v{t3}, {hex(0xffff0000 if r & 1 else 0xffff)}')
        if r & 1:
            A(f'v_cndmask_b32 v{t3}, v{t3}, 0, vcc')
            A(f'v_or_b32 v{vMP + (r >> 1)}, v{vMP + (r >> 1)}, v{t3}')
        else:
            A(f'v_cndmask_b32 v{vMP + (r >> 1)}, v{t3}, 0, vcc')
    A(f's_mov_b32 s{sM0}, 0xaaaaaaaa')
    A(f's_mov_b32 s{sM0+1}, 0xaaaaaaaa')
    A(f's_mov_b32 s{sM1}, 0xcccccccc')
    A(f's_mov_b32 s{sM1+1}, 0xcccccccc')
with Defer(D2):
    vS0 = V.alloc(); vS0w = V.alloc(); vPf = V.alloc(); vS4 = V.alloc(4, 2)
    A(f's_lshl_b32 s{sT0}, s{sRB}, 10')
    A(f's_add_u32 s{sT0}, s{sT0}, {WS_ST0 - 128}')
    A(f'v_lshl_add_u32 v{vS0}, v0, 4, s{sT0}')
    A(f's_lshl_b32 s{sT0}, s{sSET}, 12')
    A(f's_add_u32 s{sT0}, s{sT0}, {WS_ST0}')
    A(f'v_and_b32 v{t0}, 31, v{vL}')
    A(f'v_lshl_add_u32 v{t0}, v{t0}, 7, s{sT0}')
    A(f'v_cmp_le_u32 vcc, 128, v0')
    A(f'v_cndmask_b32 v{vS0}, v{vS0}, v{t0}, vcc')
    A(f'v_lshlrev_b32 v{vS0w}, 2, v0')
    A(f'v_add_u32 v{vS0w}, {L_TAB + 32}, v{vS0w}')
    vPf2 = V.alloc()
    A(f's_mul_i32 s{sT0}, s2, 5120')
    A(f's_add_u32 s{sT0}, s{sT0}, {WS_SENT}')
    A(f'v_lshl_add_u32 v{vPf}, v0, 4, s{sT0}')
    A(f's_lshl_b32 s{sT1}, s{sW}, 8')
    A(f's_add_u32 s{sT0}, s{sT0}, s{sT1}')
    A(f's_add_u32 s{sT0}, s{sT0}, 4096')
    A(f'v_lshl_add_u32 v{t0}, v{vQ}, 4, s{sT0}')
    A(f's_lshl_b32 s{sSTB}, s{sRB}, 2')
    A(f's_add_u32 s{sSTB}, s{sSTB}, s{sW}')
    A(f'v_mov_b32 v{t1}, 0x40000000')
    A(f'v_cmp_gt_u32 vcc, 16, v{vL}')
    A(f'v_cndmask_b32 v{vPf2}, v{t1}, v{t0}, vcc')
    vTs = V.alloc()
    A(f'v_mov_b32 v{vTs}, v{t1}')
    if 'oremote' not in OPT:
        A(f's_lshl_b32 s{sT0}, s{sI}, 2')
        A(f's_add_u32 s{sT0}, s{sT0}, s{sW}')
        A(f's_lshl_b32 s{sT0}, s{sT0}, 11')
        A(f's_lshl_b32 s{sT1}, s{sSET}, 18')
        A(f's_add_u32 s{sT0}, s{sT0}, s{sT1}')
        A(f'v_lshl_add_u32 v{t0}, v{vL}, 7, s{sT0}')
        A(f'v_cndmask_b32 v{vTs}, v{t1}, v{t0}, vcc')
    A(f's_lshl_b32 s{sT0}, s{sSTB}, 11')
    A(f's_lshl_b32 s{sT1}, s{sHG}, 8')
    A(f's_add_u32 s{sT0}, s{sT0}, s{sT1}')
    for n, off in enumerate((0, 128, 1 << 18, (1 << 18) + 128)):
        A(f's_add_u32 s{sT1}, s{sT0}, {WS_ST + off}')
        A(f'v_writelane_b32 v{vTs}, s{sT1}, {16 + n}')
    A(f's_lshl_b32 s{sT0}, s{sRB}, 9')
    for n, off in enumerate((0, 128, 1 << 14, (1 << 14) + 128)):
        A(f's_add_u32 s{sT1}, s{sT0}, {WS_FL + off}')
        A(f'v_writelane_b32 v{vTs}, s{sT1}, {20 + n}')
    for n, off in enumerate((0, 128, 256)):
        A(f's_add_u32 s{sT1}, s{sT0}, {WS_X1F + off}')
        A(f'v_writelane_b32 v{vTs}, s{sT1}, {27 + n}')
    for r in range(4): A(f'v_mov_b32 v{vS4+r}, -1')
if 'tsearly' in OPT: A(f'buffer_load_dword v{vDum}, v{vTs}, {srd(SRD_WS)}, 0 offen sc1', tag='to')
A(f's_mov_b64 s[70:71], {sr(P_WO,2)}')
A(f's_mov_b64 s[98:99], {sr(P_WR,2)}')
P_WO, P_WR = 70, 98
(aFLp, aFLs, aSTp, aSTs, aKEYs, aKEYp, aCANDs, aCANDb, aYPs, aYPb, aXs, aX1Fp, aX1Fs, aFTFs, aFTFp, aFT, aROW, aOUT) = range(28, 46)
A(f's_lshl_b32 s{aFLp}, s{sRB}, 9')
A(f's_add_u32 s{aFLp}, s{aFLp}, {WS_FL}')
tg = VP.alloc(2, 2)
vRow = VP.alloc(); vXs = VP.alloc(); vStash = VP.alloc(); vQ16 = VP.alloc(); vL8 = VP.alloc(); vO4 = VP.alloc(2)
A(f's_lshl_b32 s{sT2}, s{sHG}, 2')
A(f's_add_u32 s{sT2}, s{sT2}, s{sW}')
A(f's_lshl_b32 s{sT2}, s{sT2}, 3')
A(f's_add_u32 s{aFLs}, s{sT2}, s{aFLp}')
A(f'v_and_b32 v{vL8}, 31, v{vL}')
A(f'v_lshlrev_b32 v{vL8}, 3, v{vL8}')
A(f's_lshl_b32 s{sT0}, s{sSTB}, 14')
A(f'v_add_u32 v{vO4}, s{sT0}, v{vL16}')
A(f'v_add_u32 v{vO4+1}, 8192, v{vO4}')
A(f's_lshl_b32 s{sT1}, s{sHG}, 7')
A(f's_add_u32 s{aXs}, s{sT0}, s{sT1}')
A(f's_add_u32 s{aOUT}, s{sAB}, s{sT1}')
A(f's_lshl_b32 s{aCANDs}, s{sRB}, 13')
A(f's_add_u32 s{aCANDs}, s{aCANDs}, s{sT1}')
A(f's_add_u32 s{aCANDs}, s{aCANDs}, {WS_CAND}')
A(f's_mov_b32 s{aCANDb}, {WS_CAND}')
A(f's_lshl_b32 s{aSTp}, s{sSTB}, 11')
A(f's_add_u32 s{aSTp}, s{aSTp}, {WS_ST}')
A(f's_lshl_b32 s{sT1}, s{sHG}, 8')
A(f's_add_u32 s{aSTs}, s{aSTp}, s{sT1}')
A(f's_add_u32 s{aYPb}, s{sT1}, {WS_YP}')
A(f's_lshl_b32 s{aYPs}, s{sFS}, 12')
A(f's_add_u32 s{aYPs}, s{aYPs}, {WS_YP}')
A(f's_lshl_b32 s{aKEYs}, s{sHG}, 7')
A(f's_add_u32 s{aKEYs}, s{aKEYs}, s{sSTB}')
A(f's_lshl_b32 s{aKEYs}, s{aKEYs}, 3')
A(f's_add_u32 s{aKEYs}, s{aKEYs}, {WS_KEYS}')
A(f's_lshl_b32 s{aKEYp}, s{sSET}, 10')
A(f's_add_u32 s{aKEYp}, s{aKEYp}, {WS_KEYS}')
A(f's_add_u32 s{aX1Fp}, s{aFLp}, {WS_X1F - WS_FL}')
A(f's_lshl_b32 s{sT2}, s{sW}, 3')
A(f's_add_u32 s{sT2}, s{sT2}, s{sHG}')
A(f's_lshl_b32 s{sT2}, s{sT2}, 3')
A(f's_add_u32 s{aX1Fs}, s{aX1Fp}, s{sT2}')
A(f's_and_b32 s{sT2}, s{sI}, 15')
A(f's_lshl_b32 s{sT2}, s{sT2}, 2')
A(f's_add_u32 s{sT2}, s{sT2}, s{sW}')
A(f's_mul_i32 s{sT1}, s{sSET}, 48')
A(f's_add_u32 s{sT1}, s{sT1}, s{sT2}')
A(f's_lshl_b32 s{aFT}, s{sT1}, 13')
A(f's_add_u32 s{aFT}, s{aFT}, {WS_FT}')
A(f's_lshl_b32 s{aROW}, s{sSTB}, 4')
A(f'v_lshl_add_u32 v{vRow}, v{vQ}, 10, v{vGm}')
A(f'v_mov_b32 v{vXs}, v{vRow}')
A(f'v_lshlrev_b32 v{vQ16}, 4, v{vQ}')
A(f's_lshl_b32 s{sT2}, s{sW}, 9')
A(f's_add_u32 s{sT2}, s{sT2}, {L_CS}')
A(f'v_add_u32 v{vStash}, s{sT2}, v{vGm}')
gr = V.alloc(4, 2)
A(f'v_mov_b32 v{s12}, 0')
A(f'v_mov_b32 v{s12+1}, 0')
A(f's_getreg_b32 s{sTAGB}, hwreg(HW_REG_XCC_ID)')
A(f's_and_b32 s{sTAGB}, s{sTAGB}, 15')
A(f's_lshl_b32 s{sT2}, s{sRB}, 3')
A(f's_add_u32 s{sT2}, s{sT2}, s{sHG}')
A(f's_lshl_b32 s{sT2}, s{sT2}, 2')
A(f's_add_u32 s{sT2}, s{sT2}, s{sW}')
A(f's_lshl_b32 s{sT2}, s{sT2}, 5')
A(f's_add_u32 s{sT2}, s{sT2}, {WS_ST0}')
A(f'v_lshrrev_b32 v{t1}, 1, v{vL}')
g1 = []; g2 = []
for hh in stage_dma(1): g1 += [hh[:3], hh[3:6], hh[6:7], hh[7:8]]
for hh in stage_dma(2): g2 += [hh[:3], hh[3:6], hh[6:7], hh[7:8]]
g2.append(halo_dma(1))
def dots():
    A.wait_vm('srow')
    for j in range(8):
        A(f'v_dot2c_f32_bf16 v{s12}, v{srow+j}, v{vOnes}')
        A(f'v_dot2c_f32_bf16 v{s12+1}, v{srow+j}, v{srow+j}')
if 's0old' in OPT:
    A.wait_vm('srow', 'lgkmcnt(0)')
    stamp()
    A.sprinkle = (g1, 2 if 'stlate' in OPT else 4, emit)
    for j in range(8):
        A(f'v_dot2c_f32_bf16 v{s12}, v{srow+j}, v{vOnes}')
        A(f'v_dot2c_f32_bf16 v{s12+1}, v{srow+j}, v{srow+j}')
else:
    OPT.add('stlate')
    A.wait_vm('S0')
    stamp()
if 'stlate' in OPT:
    A.sprinkle = None
    for g_ in g1:
        for x in g_: emit(x)
    save = A.lines; vmsave = list(A.vm); A.lines = []
    A(f's_mul_i32 s{sTAG}, s{sTAG}, 0x9e3779b1')
    A(f's_add_u32 s{sTAG}, s{sTAG}, 0x7f4a7c15')
    A(f's_mul_i32 s{sT0}, s{sTAG}, 0x85ebca6b')
    for sh in (8, 4, 2, 1):
        for r in range(2): A(f'v_add_f32_dpp v{s12+r}, v{s12+r}, v{s12+r} row_ror:{sh} {DP}')
        if sh == 8: A(f's_brev_b32 s{sT0}, s{sT0}')
        if sh == 4: A(f's_and_b32 s{sT0}, s{sT0}, 0xfffffff0')
        if sh == 2: A(f's_or_b32 s{sTAGB}, s{sTAGB}, s{sT0}')
    for r in range(2): A(f'v_mov_b32 v{s12+2+r}, v{s12+r}')
    A(f'v_mov_b32 v{gr+2}, s{sTAG}')
    for r in range(2): A(f'v_permlane16_swap_b32 v{s12+r}, v{s12+2+r}')
    for r in range(2): A(f'v_add_f32 v{s12+r}, v{s12+r}, v{s12+2+r}')
    ln_params(s12, s12 + 1, s12 + 2, s12 + 3, gr, gr + 1, t0)
    A(f'v_xor_b32 v{gr}, 0x80000000, v{gr}')
    A(f'v_mov_b32 v{gr+3}, s{sTAGB}')
    A('s_mov_b32 exec_lo, 1')
    A('s_mov_b32 exec_hi, 1')
    A(f'buffer_store_dwordx4 {vr(gr,4)}, v{t1}, {srd(SRD_WS)}, s{sT2} offen sc1', tag='st0')
    A('s_mov_b64 exec, -1')
    st_lines = [l.text for l in A.lines if l.op != 's_nop']; A.lines = save; A.vm = vmsave
else:
    A(f's_mul_i32 s{sTAG}, s{sTAG}, 0x9e3779b1')
    A(f's_add_u32 s{sTAG}, s{sTAG}, 0x7f4a7c15')
    A(f's_mul_i32 s{sT0}, s{sTAG}, 0x85ebca6b')
    for sh in (8, 4, 2, 1):
        for r in range(2): A(f'v_add_f32_dpp v{s12+r}, v{s12+r}, v{s12+r} row_ror:{sh} {DP}')
        if sh == 8: A(f's_brev_b32 s{sT0}, s{sT0}')
        if sh == 4: A(f's_and_b32 s{sT0}, s{sT0}, 0xfffffff0')
        if sh == 2: A(f's_or_b32 s{sTAGB}, s{sTAGB}, s{sT0}')
    for r in range(2): A(f'v_mov_b32 v{s12+2+r}, v{s12+r}')
    A(f'v_mov_b32 v{gr+2}, s{sTAG}')
    for r in range(2): A(f'v_permlane16_swap_b32 v{s12+r}, v{s12+2+r}')
    for r in range(2): A(f'v_add_f32 v{s12+r}, v{s12+r}, v{s12+2+r}')
    ln_params(s12, s12 + 1, s12 + 2, s12 + 3, gr, gr + 1, t0)
    A(f'v_xor_b32 v{gr}, 0x80000000, v{gr}')
    A(f'v_mov_b32 v{gr+3}, s{sTAGB}')
    A.sprinkle = None
    assert not g1
    A('s_mov_b32 exec_lo, 1')
    A('s_mov_b32 exec_hi, 1')
    A(f'buffer_store_dwordx4 {vr(gr,4)}, v{t1}, {srd(SRD_WS)}, s{sT2} offen sc1', tag='st0')
    A('s_mov_b64 exec, -1')

accQ = V.take(196, 20); accK = V.take(216, 20); accV = V.take(236, 20)
xP = VP.alloc(8, 2)
aux = VP.alloc(8, 2)
vSW = VP.alloc()
def aW(ks, m): return (ks * 3 + m) * 4
def x_reads(ks, b):
    u = ks & 1; kc = ks >> 1
    return [f'ds_read_b128 {vr(b, 4)}, v{vH+u} offset:{kc * HST}'] + \
           [f'ds_read_b128 {vr(b + 4 + 4 * T, 4)}, v{vA+u} offset:{(kc * 8 + 2 * T) * 1024}' for T in range(4)]
def p1_reads(ks):
    so = SLOT[(ks >> 1) % 3] + (ks & 1) * 12288
    if ks == 15: so = 0
    W_ = [f'ds_read_b64_tr_b16 {ar(aW(ks, m) + 2 * h, 2)}, v{vWr15 if ks == 15 else vWr} offset:{so + m * 1024 + h * 512}' for m in range(3) for h in range(2)]
    X_ = x_reads(ks, fr[ks & 1])
    return W_[:2] + X_[:1] + W_[2:] + X_[1:]
def p1_mfmas(ks):
    b = fr[ks & 1]; L = []
    c = lambda x: '0' if ks == 0 else vr(x, 4)
    for T in range(5):
        X = vr(b + 4 * T, 4)
        L.append(mf(vr(accQ + 4 * T, 4), ar(aW(ks, 0), 4), X, c(accQ + 4 * T)))
        L.append(mf(vr(accK + 4 * T, 4), ar(aW(ks, 1), 4), X, c(accK + 4 * T)))
        L.append(mf(vr(accV + 4 * T, 4), X, ar(aW(ks, 2), 4), c(accV + 4 * T)))
    return L
def wo_dma(kss):
    L = []
    for ks in kss:
        L += [f's_add_u32 m0, s{sOM}, {wo_off(ks)}', f's_mov_b32 s{sT3}, {ks * 32768}',
              (f'buffer_load_dwordx4 v{vWo}, {srd(SRD_W)}, s{sT3} offen lds', 'woa' if ks < 4 else 'wo')]
    return L
def hello():
    A('s_mov_b64 exec, 1')
    A(f'buffer_store_dwordx2 {vr(gr+2,2)}, v{vPf}, {srd(SRD_WS)}, s{sU2} offen sc1')
    A('s_mov_b64 exec, -1')
def srd_lines(d, ptr, size):
    return [f's_mov_b32 s{d}, s{ptr}', f's_and_b32 s{d+1}, s{ptr+1}, 0xffff', f's_mov_b32 s{d+2}, {size}', f's_mov_b32 s{d+3}, 0x20000']
s0g = V.alloc(4, 2)
extra = {ks: [] for ks in range(16)}
for g_ in g2: extra[0] += g_
for s in range(5):
    H = stage_dma(s + 3); extra[2 * s + 1] += H[0]; extra[2 * s + 2] += H[1]
extra[11] += [(f'buffer_store_dwordx4 {vr(vS4,4)}, v{vPf}, {srd(SRD_WS)}, 0 offen sc1{NTP}', 'pre'),
              (f'buffer_store_dwordx4 {vr(vS4,4)}, v{vPf2}, {srd(SRD_WS)}, 0 offen sc1{NTP}', 'pre')]
extra[11] = [(f'buffer_load_dwordx4 {vr(s0g,4)}, v{vS0}, {srd(SRD_WS)}, 0 offen sc1', 's0g')] + extra[11]
extra[12] += [f's_lshl_b32 s{sU2}, s{sSET}, 9', f's_add_u32 s{sU2}, s{sU2}, s{sI}', f's_lshl_b32 s{sU2}, s{sU2}, 3',
              f's_add_u32 s{sU2}, s{sU2}, {WS_HELLO}', f's_lshl_b32 s{sT0}, s{sW}, 30', f'v_mov_b32 v{vPf}, s{sT0}']
if 'stlate' in OPT:
    tailn = st_lines[-4:]; st_lines = st_lines[:-4]
    nh = len(st_lines) // 2
    valu_extra = {1: st_lines[:nh], 2: st_lines[nh:]}
    extra[3] = [lambda: [A(x) for x in tailn]] + extra[3]
else: valu_extra = {}
vRs = V.alloc(2)
def res_read(early):
    def f():
        L = A.newlabel('L_res')
        A(f's_cmp_lt_u32 s{sHG}, 5')
        A(f's_cbranch_scc{0 if early else 1} {L}')
        A(f'ds_read_b128 {vr(xP,4)}, v{vRs}')
        A(f'ds_read_b128 {vr(xP+4,4)}, v{vRs+1}')
        A.label(L)
    return f
rs_lines = [f'v_lshlrev_b32 v{t0}, 3, v{vQ}', f'v_and_b32 v{t0}, 0x70, v{t0}', f'v_xor_b32 v{t0}, v{t0}, v{vGm}',
            f'v_lshl_add_u32 v{t0}, v{vQ}, 7, v{t0}', f's_lshl_b32 s{sT0}, s{sHG}, 13', f's_add_u32 s{sT0}, s{sT0}, s{sAM}',
            f'v_add_u32 v{vRs}, s{sT0}, v{t0}', f'v_xor_b32 v{vRs+1}, 64, v{vRs}']
grp2fn = lambda g_: (lambda: [A(x) for x in g_])
DD = [grp2fn(g_) for g_ in D1 + [[x] for x in rs_lines] + D2 + D3]
per = -(-len(DD) // 7)
for k_ in range(7): valu_extra[4 + k_] = DD[k_ * per:(k_ + 1) * per]
DD = [grp2fn(g_) for g_ in D4]
valu_extra[11] = DD[:len(DD) // 2]; valu_extra[12] = DD[len(DD) // 2:]
extra[8] += [res_read(True)]
NTF = '' if 'nont' in OPT else ' nt'
NTD = ''
ft_dma = []
for n in range(3):
    ft_dma += [f's_sub_u32 m0, s{sWM}, {L_W - L_FT - n * 1024}', (f'buffer_load_dwordx4 v{vFp+n}, {srd(SRD_T)}, 0 offen{NTF} lds', 'ft')]
wd_dma = [f's_lshl_b32 s{sT0}, s{sW}, 12', f's_add_u32 m0, s{sT0}, {L_WD}'] + \
         [(f'buffer_load_dwordx4 v{vFd}, {srd(SRD_U)}, 0 offen offset:{f * 1024}{NTD} lds', 'wd') for f in range(4)]
extra[11] += srd_lines(SRD_W, P_WO, 512 * 1024)
aux_ld = [f's_lshl_b32 s{sT0}, s{sHG}, 7', f'buffer_load_dwordx4 {vr(aux,4)}, v{vGm}, {srd(SRD_X)}, s{sT0} offen',
          f'buffer_load_dwordx4 {vr(aux+4,4)}, v{vGm}, {srd(SRD_X)}, s{sT0} offen offset:64',
          f'buffer_load_dwordx4 {vr(wra,4)}, v{vL16}, {srd(SRD_X)}, 0 offen']
extra[11] += wo_dma([0]); extra[12] += wo_dma([1, 2, 3, 4]); extra[13] += wo_dma([5, 12, 13, 14]); extra[14] += wo_dma([15]) + ft_dma; extra[15] += wd_dma
wo_rest = [6, 7, 8, 9, 10, 11]; wd_late = []
extra[12] += srd_lines(SRD_X, P_WR, 1024)
TSM = next((' ' + a[4:].replace('+', ' ') for a in OPT if a.startswith('tsm=')), ' sc1')
KTS = int(next((a[4:] for a in OPT if a.startswith('kts=')), '15'))
if 'tsearly' not in OPT: extra[KTS] += [(f'buffer_load_dword v{vDum}, v{vTs}, {srd(SRD_WS)}, 0 offen{TSM}', 'to')]
extra[15] += [res_read(False)]
csQ = VP.alloc(4, 2); csK = VP.alloc(4, 2); csV = VP.alloc(2, 2)
far2 = []
def s0_check():
    A.wait_vm('s0g')
    A.label('L_s0')
    A(f'v_xor_b32 v{t0}, s{sTAG}, v{s0g+2}')
    A(f'v_xor_b32 v{t1}, s{sTAGB}, v{s0g+3}')
    A(f'v_lshrrev_b32 v{t3}, 4, v{t1}')
    A(f'v_or_b32 v{t0}, v{t0}, v{t3}')
    A(f'v_cmp_ne_u32 vcc, 0, v{t0}')
    A(f's_and_b64 vcc, vcc, {sr(sU0,2)}')
    A('s_cbranch_vccnz L_s0r')
    A.label('L_s0ok')
    A(f's_mov_b64 exec, {sr(sT4,2)}')
    A(f'ds_write2_b32 v{vS0w}, v{s0g}, v{s0g+1} offset0:0 offset1:80')
    A('s_mov_b64 exec, -1')
    A(f'ds_write_b32 v{vS0w}, v{t1} offset:{640 - 32}')
far2 += ['L_s0r:', f'buffer_load_dwordx4 {vr(s0g,4)}, v{vS0}, {srd(SRD_WS)}, 0 offen sc1', 's_waitcnt vmcnt(0)',
         f's_sub_u32 s{sGUARD}, s{sGUARD}, 1', 's_cbranch_scc0 L_s0', 's_branch L_s0ok']
def s0_masks():
    A(f's_cmp_eq_u32 s{sW}, 2')
    A(f's_cselect_b64 {sr(sU0,2)}, -1, {sr(sT4,2)}')
valu_extra[13] = [f's_lshl_b32 s{sT1}, s{sFIRST}, 3', f'v_subrev_u32 v{t2}, s{sT1}, v0', f's_sub_u32 s{sT1}, 72, s{sT1}',
                  f'v_cmp_gt_u32 {sr(sT4,2)}, s{sT1}, v{t2}', f's_mov_b32 s{sGUARD}, 20000', f'v_lshlrev_b32 v{t2}, 2, v{vL}',
                  f'v_add_u32 v{t2}, {L_CS + 512}, v{t2}', s0_masks]
extra[14] = [s0_check] + extra[14]
V.release(srow, 8); V.release(s12, 4)
rp = V.alloc(10, 2); vm = fr[0]
tab_reads = [f'ds_read_b32 v{t1}, v{t2}']
for T in range(5):
    tab_reads += [f'ds_read2_b32 {vr(rp + 2 * T, 2)}, v{vQ4} offset0:{16 * T} offset1:{80 + 16 * T}',
                  f'ds_read_b128 {vr(vm + 4 * T, 4)}, v{vG16} offset:{64 * T}',
                  f'ds_read_b128 {vr(vc + 4 * T, 4)}, v{vG16} offset:{320 + 64 * T}']
cs_lines = []
for r in range(4):
    cs_lines += [f'v_mov_b32_dpp v{csQ+r}, v{accQ+r} row_newbcast:0 {DP}', f'v_mov_b32_dpp v{csK+r}, v{accK+r} row_newbcast:0 {DP}']
cs_lines = [f'v_mov_b32 v{csV}, v{accV}', f'v_mov_b32 v{csV+1}, v{accV}'] + cs_lines + [f'v_permlane32_swap_b32 v{csV}, v{csV+1}']
def drop(L, key): return [x for x in L if not (isinstance(x, tuple) and x[1] == key)]
for key in ('pre', 'wo', 'ft', 'wd', 'to'):
    if 'x' + key in OPT:
        for ks in extra: extra[ks] = drop(extra[ks], key)
if 's0old' in OPT: A.wait_vm('S0', 'lgkmcnt(0)')
else: A('s_waitcnt lgkmcnt(0)')
A('s_barrier')
stamp()
for x in p1_reads(0): A(x)
for ks in range(16):
    A('s_waitcnt lgkmcnt(0)')
    if 'loopstamps' in OPT and ks % 2 == 0 and ks: stamp()
    M = p1_mfmas(ks)
    if ks == 1 and 's0old' not in OPT: dots()
    A(M[0])
    if ks & 1 and ks < 15:
        if not ('nodma' in OPT and ks > 1): A.wait_vm(f'S{(ks + 1) >> 1}')
        if 'nobar' not in OPT: A('s_barrier')
    if ks == 15:
        A.wait_vm('woa')
        A('s_barrier')
    rd = p1_reads(ks + 1) if ks < 15 else tab_reads
    if 'nord' in OPT: rd = []
    if 'notr' in OPT: rd = [x for x in rd if '_tr_' not in x]
    if 'nob128' in OPT: rd = [x for x in rd if '_tr_' in x]
    ex = list(extra[ks])
    if 'nodma' in OPT: ex = [x for x in ex if not (isinstance(x, tuple) and x[0].endswith(' lds'))]
    isvm = lambda x: callable(x) or (x[0] if isinstance(x, tuple) else x).startswith('buffer_')
    nvm = sum(map(isvm, ex)); gaps = len(M) - 1
    slots = [int((j + 0.5) * gaps / nvm) for j in range(nvm)] if nvm else []
    groups = []; cur = []
    for x in ex:
        cur.append(x)
        if isvm(x): groups.append(cur); cur = []
    tail_ = cur
    place = {gi: [] for gi in range(gaps)}
    prev = -1
    for j, grp in enumerate(groups):
        lo = prev + 1 if prev + 1 <= slots[j] else slots[j]
        pre = grp[:-1]
        span = slots[j] - lo + 1
        for n_, x in enumerate(pre): place[lo + n_ * span // max(1, len(pre))].append(x)
        place[slots[j]].append(grp[-1]); prev = slots[j]
    lo = min(prev + 1, gaps - 1); span = gaps - lo
    for n_, x in enumerate(tail_): place[lo + n_ * span // len(tail_)].append(x)
    for mi, m in enumerate(M[1:]):
        A(m)
        if rd: A(rd.pop(0))
        for x in place[mi]: emit(x)
        ve = valu_extra.get(ks, [])
        for _ in range(-(-len(ve) // (gaps - mi))): emit(ve.pop(0))
        if ks == 15:
            if mi < 2: A(rd.pop(0))
            if mi >= 7:
                for _ in range(2):
                    if cs_lines: A(cs_lines.pop(0))
assert not cs_lines and not tab_reads
stamp()
V.release(fr[1], 20)
V.release(vWr); V.release(vWr15); V.release(vRs, 2); V.release(vWd); V.release(vPf2); V.release(vTs); V.release(vS4, 4)
V.release(s0g, 4); V.release(vS0); V.release(vS0w)
epi_ins = [[hello]] + ([] if 'v1' in OPT else [[]] * 8 + [aux_ld[:2], aux_ld[2:3], aux_ld[3:]])
SPIN = 20000
def fine():
    if 'fine' in OPT: stamp()
def poll(issue, check, name):
    L = A.newlabel('L_poll'); E = A.newlabel('L_ok')
    A(f's_mov_b32 s{sGUARD}, {SPIN}')
    A.label(L)
    issue()
    A.wait_vm0()
    check()
    A(f's_cbranch_vccz {E}')
    backoff(name)
    A(f's_sub_u32 s{sGUARD}, s{sGUARD}, 1')
    A(f's_cbranch_scc0 {L}')
    A.label(E)
def backoff(name):
    n = int(next((x.split('=')[1] for x in OPT if x.startswith('sl' + name + '=')), next((x[3:] for x in OPT if x.startswith('sl=')), '0')))
    if n: A(f's_sleep {n}')
def repoll(issue, check, name):
    L = A.newlabel('L_rp'); E = A.newlabel('L_ok')
    A(f's_mov_b32 s{sGUARD}, {SPIN}')
    A.label(L)
    A.wait_vm0()
    check()
    A(f's_cbranch_vccz {E}')
    backoff(name)
    issue(); A.vm = []
    A(f's_sub_u32 s{sGUARD}, s{sGUARD}, 1')
    A(f's_cbranch_scc0 {L}')
    A.label(E)
PD = int(next((x[3:] for x in OPT if x.startswith('pd=')), '3'))
def ppoll(issue, check, nld, depth=None, pre=0, gap=7):
    D = depth or PD
    L = A.newlabel('L_pp'); E = A.newlabel('L_ok')
    A(f's_mov_b32 s{sGUARD}, {SPIN}')
    for j in range(pre, D):
        if j and gap: A(f's_nop {gap}'); A(f's_nop {gap}'); A(f's_nop {gap}')
        issue(j)
    A.label(L)
    for j in range(D):
        A(f's_waitcnt vmcnt({(D - 1) * nld})')
        check(j)
        A(f's_cbranch_vccz {E}')
        issue(j)
    A(f's_sub_u32 s{sGUARD}, s{sGUARD}, 1')
    A(f's_cbranch_scc0 {L}')
    A.label(E)
    A.vm = []
def local_stores(lines):
    R = A.newlabel('L_rem'); E = A.newlabel('L_st')
    A(f's_cmp_eq_u32 s{sLOCAL}, 0')
    A(f's_cbranch_scc1 {R}')
    for l in lines: A(l)
    A.label(E)
    A('s_nop 0')
    far.append((R, E, lines))
far = []
def emit_far():
    for l in far2:
        if l.endswith(':'): A.label(l[:-1])
        else: A(l)
    for R, E, lines in far:
        A.label(R)
        for l in lines:
            A(l + (' sc1' if l.startswith('buffer_') else ''))
        A(f's_branch {E}')
def skip_unless(cond_lines):
    E = A.newlabel('L_sk')
    for l in cond_lines: A(l)
    A(f's_cbranch_scc1 {E}')
    return E
def if_layer(n): return skip_unless([f's_cmp_lg_u32 s{sLAYER}, {n}'])
def if_wave(n): return skip_unless([f's_cmp_lg_u32 s{sW}, {n}'])
def if_ffn(): return skip_unless([f's_cmp_eq_u32 s{sHASF}, 0'])
def endif(E, pad=True):
    A.label(E)
    if pad: A('s_nop 1')
def tag_check(r):
    A(f'v_xor_b32 v{r+1}, s{sTAGB}, v{r+1}')
    A(f'v_xor_b32 v{r}, s{sTAG}, v{r}')
    A(f'v_lshrrev_b32 v{r+1}, 4, v{r+1}')
    A(f'v_or_b32 v{r}, v{r}, v{r+1}')
    A(f'v_cmp_ne_u32 vcc, 0, v{r}')

QSC = 0.25 * 1.4426950408889634
hV = 176; mxc = 186
hQ = lambda T: accQ + 4 * (T + 1)
hK = lambda T: accK + 4 * (T + 1)
def s_mfmas(T, Sp, Sc):
    return [mf(vr(Sp + 4 * T, 4), vr(hK(T - 1), 2), vr(hQ(T), 2), vr(vBP0 if T == 0 else vBP, 4), False),
            mf(vr(Sc + 4 * T, 4), vr(hK(T), 2), vr(hQ(T), 2), vr(vBC, 4), False)]
def attention(pre):
    Sp = V.alloc(16, 2); Sc = V.alloc(16, 2); mx = V.alloc(4); pk = V.alloc(8, 2); Ls = accV
    pre = list(pre)
    for T in (1, 2, 3, 0):
        for m_ in s_mfmas(T, Sp, Sc):
            A(m_)
            for _ in range(2):
                if pre: A(pre.pop(0))
    while pre: A(pre.pop(0))
    for T in (1, 2, 3, 0):
        for r in range(4):
            A(f'v_max_f32 v{Sc+4*T+r}, v{Sp+4*T+r}, v{Sc+4*T+r}')
        A(f'v_max3_f32 v{mx+T}, v{Sc+4*T}, v{Sc+4*T+1}, v{Sc+4*T+2}')
        A(f'v_max_f32 v{mx+T}, v{mx+T}, v{Sc+4*T+3}')
    prs = [(mx + 1, mx + 2), (mx + 3, mx)]
    for a_, b_ in prs: A(f'v_permlane16_swap_b32 v{a_}, v{b_}')
    for a_, b_ in prs: A(f'v_max_f32 v{a_}, v{a_}, v{b_}')
    for a_, b_ in prs: A(f'v_mov_b32 v{b_}, v{a_}')
    for a_, b_ in prs: A(f'v_permlane32_swap_b32 v{a_}, v{b_}')
    for a_, b_ in prs: A(f'v_max_f32 v{a_}, v{a_}, v{b_}')
    for a_, b_ in prs: A(f'v_mov_b32 v{b_}, v{a_}')
    for a_, b_ in prs: A(f'v_permlane16_swap_b32 v{a_}, v{b_}')
    for T in range(4):
        A(f'v_mul_f32 v{mxc+2*T+1}, v{mx+T}, v{mxc+2*T}')
    for T in range(4):
        for h in range(2):
            A(f'v_pk_fma_f32 {vr(Sc+4*T+2*h,2)}, {vr(Sc+4*T+2*h,2)}, {vr(mxc+2*T,2)}, {vr(mxc+2*T,2)} op_sel:[0,0,1] op_sel_hi:[1,0,1] neg_lo:[0,0,1] neg_hi:[0,0,1]')
    pend = []
    for T in range(4):
        for r in range(4):
            A(f'v_exp_f32 v{Sc+4*T+r}, v{Sc+4*T+r}')
            if pend and r in (0, 2): A(pend.pop(0))
        for h in range(2):
            A(f'v_cvt_pk_bf16_f32 v{pk+2*T+h}, v{Sc+4*T+2*h}, v{Sc+4*T+2*h+1}')
        for h in range(2):
            A(f'v_and_b32 v{Sp+4*T+h}, v{pk+2*T+h}, v{vMP+h}')
        for h in range(2):
            A(f'v_xor_b32 v{Sp+4*T+2+h}, v{pk+2*T+h}, v{Sp+4*T+h}')
        pend = [mf(vr(Ls + 4 * T, 4), vr(vOnes, 2), vr(pk + 2 * T, 2), '0', False),
                mf(vr(Sc + 4 * T, 4), vr(hV + 2 * T, 4), vr(Sp + 4 * T, 4), '0')]
    A(pend.pop(0))
    A(f'v_rcp_f32 v{Ls}, v{Ls}')
    A(pend.pop(0))
    for T in (1, 2): A(f'v_rcp_f32 v{Ls+4*T}, v{Ls+4*T}')
    for T in range(4):
        if T == 3: A(f'v_rcp_f32 v{Ls+12}, v{Ls+12}')
        if T == 2:
            for h in range(2): A(f'v_permlane16_swap_b32 v{oP+h}, v{oP+2+h}')
        for h in range(2):
            A(f'v_pk_mul_f32 {vr(Sc+4*T+2*h,2)}, {vr(Sc+4*T+2*h,2)}, {vr(Ls+4*T,2)} op_sel_hi:[1,0]')
        for h in range(2):
            A(f'v_cvt_pk_bf16_f32 v{oP+2*T+h}, v{Sc+4*T+2*h}, v{Sc+4*T+2*h+1}')
    for h in range(2): A(f'v_permlane16_swap_b32 v{oP+4+h}, v{oP+6+h}')
    V.release(Sp, 16); V.release(Sc, 16); V.release(mx, 4); V.release(pk, 8)
def norm_pk(T, rpp, vmm, vcc_):
    aq, ak, av = accQ + 4 * (T + 1), accK + 4 * (T + 1), accV + 4 * (T + 1)
    for h in range(2):
        if T >= 0:
            A(f'v_pk_fma_f32 {vr(aq+2*h,2)}, {vr(csQ+2*h,2)}, {vr(rpp,2)}, {vr(aq+2*h,2)} op_sel_hi:[1,0,1]')
        A(f'v_pk_fma_f32 {vr(ak+2*h,2)}, {vr(csK+2*h,2)}, {vr(rpp,2)}, {vr(ak+2*h,2)} op_sel_hi:[1,0,1]')
        A(f'v_pk_fma_f32 {vr(av+2*h,2)}, {vr(vmm+2*h,2)}, {vr(csV,2)}, {vr(av+2*h,2)} op_sel_hi:[1,0,1]')
    for h in range(2):
        A(f'v_pk_mul_f32 {vr(ak+2*h,2)}, {vr(ak+2*h,2)}, {vr(rpp,2)} op_sel:[0,1] op_sel_hi:[1,1]')
        A(f'v_pk_mul_f32 {vr(av+2*h,2)}, {vr(av+2*h,2)}, {vr(vcc_+2*h,2)}')
def pack2(dst, src): return [f'v_cvt_pk_bf16_f32 v{dst+h}, v{src+2*h}, v{src+2*h+1}' for h in range(2)]
def epilogue(first):
    A.sprinkle = (epi_ins, 12, emit)
    for T in range(5):
        if T == 0: A('s_waitcnt lgkmcnt(6)')
        if T == 2: A('s_waitcnt lgkmcnt(0)')
        if T == 0: A(f'v_cmp_ne_u32 vcc, 0, v{t1}')
        norm_pk(T - 1, rp + 2 * T, vm + 4 * T, vc + 4 * T)
        for x in pack2(hK(T - 1), hK(T - 1)) + (pack2(hQ(T - 1), hQ(T - 1)) if T else []): A(x)
        if T == 0:
            sp = A.sprinkle; A.sprinkle = None
            A(f's_cmp_eq_u64 vcc, 0')
            A(f's_cselect_b32 s{sLOCAL}, {0 if FORCE_REMOTE else 1}, 0')
            A.sprinkle = sp
    pre = [f'v_mul_f32 v{mxc+2*T}, {hex(f2u(QSC))}, v{rp+2*T+3}' for T in range(4)]
    for T in range(5): pre += pack2(hV + 2 * T, accV + 4 * T)
    V.release(vm, 20); V.release(vc, 20); V.take(hV, 10); V.take(mxc, 8)
    attention(pre)
    sp = A.sprinkle; A.sprinkle = None
    for grp in sp[0]:
        for x in grp: emit(x)
    V.release(rp, 10)
    V.release(accQ, 20); V.release(accK, 20); V.release(accV, 20); V.release(hV, 10); V.release(mxc, 8)
epilogue(True)
V.release(vPf); V.release(gr, 4); V.release(vFp, 3)

A.label('L_pub')
stamp()
A(f's_mov_b32 s{sT0}, 32768')
A(f's_and_b32 s{sT1}, s{sLOCAL}, s{sLOCAL if "oremote" not in OPT else sLAYER}')
A(f's_cbranch_scc0 L_opr')
A(f'buffer_store_dwordx4 {vr(oP,4)}, v{vOst}, {srd(SRD_WS)}, 0 offen')
A(f'buffer_store_dwordx4 {vr(oP+4,4)}, v{vOst}, {srd(SRD_WS)}, s{sT0} offen')
A.label('L_opd')
far.append(('L_opr', 'L_opd', [f'buffer_store_dwordx4 {vr(oP,4)}, v{vOst}, {srd(SRD_WS)}, 0 offen',
                               f'buffer_store_dwordx4 {vr(oP+4,4)}, v{vOst}, {srd(SRD_WS)}, s{sT0} offen']))
acc = V.alloc(16, 2); oF = V.alloc(64, 2); bR = V.alloc(64, 2)
for a_ in (0, 1, 4, 5): A(f'v_permlane16_swap_b32 v{xP+a_}, v{xP+a_+2}')
for j in range(8):
    A(f'v_lshlrev_b32 v{acc+2*j}, 16, v{xP+j}')
    A(f'v_and_b32 v{acc+2*j+1}, 0xffff0000, v{xP+j}')
def b_read(ks, t, h): return f'ds_read_b64_tr_b16 {vr(bR + ((ks & 3)*4 + t)*4 + 2*h, 2)}, v{vBo+t} offset:{wo_off(ks) + h*512}'
def b_read_a(ks, t, h): return f'ds_read_b64_tr_b16 {ar(((ks - 4)*4 + t)*4 + 2*h, 2)}, v{vBo+t} offset:{wo_off(ks) + h*512}'
fl = V.alloc(2, 2)
fl_issue = lambda: A(f'buffer_load_dwordx2 {vr(fl,2)}, v{vL8}, {srd(SRD_WS)}, s{aFLp} offen sc1')
def o_flag(n=0):
    A(f's_waitcnt vmcnt({n})')
    A('s_mov_b64 exec, 1')
    local_stores([f'buffer_store_dwordx2 {vr(tg,2)}, v{vL16}, {srd(SRD_WS)}, s{aFLs} offen'])
    A('s_mov_b64 exec, -1')
def o_load(ks): return (f'buffer_load_dwordx4 {vr(oF + 4*ks, 4)}, v{vO4 + (ks >> 3)}, {srd(SRD_WS)}, {"s%d" % sT4 if ks & 4 else 0} offen offset:{(ks%4)*1024} sc1', f'o{ks}')
NPRE = 6
A(f's_mov_b32 s{sT4}, 4096')
A(f's_cmp_lg_u32 s{sLAYER}, 0')
A('s_cbranch_scc1 L_p5')
A(f'v_mov_b32 v{tg}, s{sTAG}')
A(f'v_mov_b32 v{tg+1}, s{sTAGB}')
rdl = [b_read(ks, t, h) for ks in range(4) for t in range(4) for h in range(2)]
NB0 = int(next((a[4:] for a in OPT if a.startswith('nb0=')), '8'))
for _ in range(NB0): A(rdl.pop(0))
o_flag(0)
stamp()
if STOP == 'o1': finish()
A.sprinkle = ([wo_dma([k_]) for k_ in wo_rest], 3, emit)
while rdl: A(rdl.pop(0))
A(f'v_lshrrev_b32 v{t0}, 3, v{vL}')
A(f'v_lshlrev_b32 v{t0}, 10, v{t0}')
A(f'v_sub_u32 v{vXe}, v{vXe}, v{t0}')
A(f'v_xor_b32 v{vXo}, 64, v{vXe}')
A(f'v_add_u32 v{vXo}, 8192, v{vXo}')
A(f'v_lshlrev_b32 v{t2}, 2, v{t0}')
A(f'v_and_b32 v{t3}, 7, v{vL}')
A(f'v_lshl_add_u32 v{t2}, v{t3}, 5, v{t2}')
A(f'v_add_u32 v{t2}, {WS_HELLO}, v{t2}')
A(f'v_and_b32 v{t3}, 127, v0')
A(f'v_lshlrev_b32 v{t3}, 3, v{t3}')
sp = A.sprinkle; A.sprinkle = None
for g_ in sp[0]:
    for x in g_: emit(x)
V.release(vWo); V.release(vFd)
ftr = V.alloc(12, 2)
assert min(wo_rest) >= 4 and not wd_late
fl_issue()
A(f's_mov_b32 vcc_lo, 0x11111111')
A(f's_mov_b32 vcc_hi, 0x11111111')
for a_ in (0, 1, 4, 5): A(f'v_permlane16_swap_b32 v{aux+a_}, v{aux+a_+2}')
for r in range(8): A(f'v_cndmask_b32 v{aux+r}, v{aux+r}, v{vOnes}, vcc')
A(f'v_mov_b32 v{vSW}, 0')
for r in range(4): A(f'v_dot2c_f32_bf16 v{vSW}, v{wra+r}, v{vOnes}')
for sh in (8, 4, 2, 1):
    A(f'v_add_f32_dpp v{vSW}, v{vSW}, v{vSW} row_ror:{sh} {DP}')
for sw in ('v_permlane16_swap_b32', 'v_permlane32_swap_b32'):
    A(f'v_mov_b32 v{t0}, v{vSW}')
    A(f'{sw} v{vSW}, v{t0}')
    A(f'v_add_f32 v{vSW}, v{vSW}, v{t0}')
V.release(wra, 4)
V.release(oP, 8)
hel = V.alloc(8, 2)
hel_issue = lambda: (A(f'buffer_load_dwordx4 {vr(hel,4)}, v{t2}, {srd(SRD_WS)}, 0 offen sc1'),
                     A(f'buffer_load_dwordx4 {vr(hel+4,4)}, v{t2}, {srd(SRD_WS)}, 0 offen offset:16 sc1'))
repoll(fl_issue, lambda: tag_check(fl), 'FL')
stamp()
NP0 = int(next((a[4:] for a in OPT if a.startswith('np0=')), '10'))
for ks in range(3): emit(o_load(ks))
A('s_barrier')
ftl = [f'ds_read_b64_tr_b16 {vr(ftr + 4 * n + 2 * hh, 2)}, v{vFr} offset:{n * 128 + hh * 4 * 384}' for n in range(3) for hh in range(2)]
for ks in range(3, NP0):
    emit(o_load(ks))
    for _ in range(2):
        if ftl: A(ftl.pop(0))
assert not ftl
wdl = [f'ds_read_b64 {ar(aFD + 2 * f, 2)}, v{t3} offset:{L_WD + f * 1024}' for f in range(16)]
late = {ks: [o_load(ks + NP0)] for ks in range(16 - NP0)}
late[16 - NP0] = [hel_issue]
for n in range(3):
    late[17 - NP0 + n] = [f's_mov_b32 s{sT0}, {n * 4 * 32768}', f'buffer_store_dwordx4 {vr(ftr + 4 * n, 4)}, v{vFs}, {srd(SRD_WS)}, s{sT0} offen sc1']
NY = 4
if True:
    def ft_touch():
        A('s_mov_b32 exec_lo, 0x11111111')
        A('s_mov_b32 exec_hi, 0')
        for n in range(3):
            A(f's_mov_b32 s{sT0}, {n * 4 * 32768}')
            A(f'buffer_load_dword v{vDum}, v{vFs}, {srd(SRD_WS)}, s{sT0} offen sc1')
        A('s_mov_b64 exec, -1')
for ks in range(16):
    nl = {12: 14, 13: 14, 14: 14, 15: 12}.get(ks, 14 if ks else 6)
    A.wait_vm(f'o{ks}', f'lgkmcnt({nl})')
    for t in range(4):
        A(mf(vr(acc + 4*t, 4), vr(bR + ((ks & 3)*4 + t)*4, 4), vr(oF + 4*ks, 4), vr(acc + 4*t, 4)))
        if t == 0:
            for x in late.get(ks, []): emit(x)
        if ks + 4 < 16:
            A(b_read(ks + 4, t, 0)); A(b_read(ks + 4, t, 1))
        else:
            A(wdl.pop(0))
V.release(ftr, 12)
A('s_branch L_p2e')
A.label('L_p5')
rdl = [b_read(ks, t, h) for ks in range(4) for t in range(4) for h in range(2)] + \
      [b_read_a(ks, t, h) for ks in range(4, 16) for t in range(4) for h in range(2)]
RA, RB, NP1 = [int(x) for x in next((a[3:] for a in OPT if a.startswith('p5=')), '16,40,8').split(',')]
for _ in range(RA): A(rdl.pop(0))
o_flag()
stamp_n[0] -= 2; stamp()
for _ in range(16): A(rdl.pop(0))
fl_issue()
for _ in range(RB - 16): A(rdl.pop(0))
repoll(fl_issue, lambda: tag_check(fl), 'FL')
stamp()
for ks in range(NP1):
    emit(o_load(ks))
    for _ in range(3):
        if rdl: A(rdl.pop(0))
done = False
for ks in range(16):
    lg = ''
    if ks == 0: lg = 'lgkmcnt(14)'
    elif not rdl and not done: lg = 'lgkmcnt(0)'; done = True
    assert done or (128 - len(rdl) - 15) // 8 > ks
    if lg == '' and not done: lg = 'lgkmcnt(14)'
    A.wait_vm(f'o{ks}', lg)
    for t in range(4):
        B_ = vr(bR + (ks*4 + t)*4, 4) if ks < 4 else ar(((ks - 4)*4 + t)*4, 4)
        A(mf(vr(acc + 4*t, 4), B_, vr(oF + 4*ks, 4), vr(acc + 4*t, 4)))
        if t == 0 and ks + NP1 < 16: emit(o_load(ks + NP1))
        for _ in range(2):
            if rdl: A(rdl.pop(0))
A.label('L_p2e')
V.release(oF, 64); V.release(bR, 64); V.release(fl, 2)
gG = V.alloc(4, 2); gS = V.take(96, 4) if False else V.alloc(4, 2)
A('s_nop 3')
for j in range(4):
    A(f'v_cvt_pk_bf16_f32 v{xP+j}, v{acc+2*j}, v{acc+2*j+1}')
A(f'v_cvt_pk_bf16_f32 v{xP+4}, v{acc+8}, v{acc+9}')
A(f'v_cvt_pk_bf16_f32 v{xP+5}, v{acc+10}, v{acc+11}')
A(mf(vr(gG, 4), vr(xP, 4), vr(xP, 4), '0'))
A(f'v_cvt_pk_bf16_f32 v{xP+6}, v{acc+12}, v{acc+13}')
A(f'v_cvt_pk_bf16_f32 v{xP+7}, v{acc+14}, v{acc+15}')
A(mf(vr(gS, 4), vr(aux, 4), vr(xP, 4), '0'))
A(f'v_permlane16_swap_b32 v{xP}, v{xP+2}')
A(mf(vr(gG, 4), vr(xP + 4, 4), vr(xP + 4, 4), vr(gG, 4)))
A(f'v_permlane16_swap_b32 v{xP+1}, v{xP+3}')
A(mf(vr(gS, 4), vr(aux + 4, 4), vr(xP + 4, 4), vr(gS, 4)))
A(f'v_permlane16_swap_b32 v{xP+4}, v{xP+6}')
A(f'v_permlane16_swap_b32 v{xP+5}, v{xP+7}')
unp = []
for j in range(8):
    unp += [f'v_lshlrev_b32 v{acc+2*j}, 16, v{xP+j}', f'v_and_b32 v{acc+2*j+1}, 0xffff0000, v{xP+j}']
for _ in range(4): A(unp.pop(0))
A(f'v_cndmask_b32 v{t0}, v{gG}, v{gG+1}, {sr(sM0,2)}')
A(f'v_cndmask_b32 v{t1}, v{gG+2}, v{gG+3}, {sr(sM0,2)}')
A(f'v_cndmask_b32 v{gS+2}, v{t0}, v{t1}, {sr(sM1,2)}')
A(f'v_mov_b32 v{gS+3}, s{sTAG}')
A('s_mov_b32 exec_lo, 0x00f0000f')
A('s_mov_b32 exec_hi, 0xf0000f00')
local_stores([f'buffer_store_dwordx4 {vr(gS,4)}, v{vQ16}, {srd(SRD_WS)}, s{aSTs} offen'])
A('s_mov_b64 exec, -1')
stamp()
V.release(gG, 4)
sa = V.alloc(8, 2)
def h1_issue():
    A(f'buffer_load_dwordx4 {vr(sa,4)}, v{vL16}, {srd(SRD_WS)}, s{aSTp} offen sc1')
    A(f'buffer_load_dwordx4 {vr(sa+4,4)}, v{vL16}, {srd(SRD_WS)}, s{aSTp} offen offset:1024 sc1')
while unp: A(unp.pop(0))
hl = V.alloc(4, 2); vLn = V.alloc()
A(f'v_lshrrev_b32 v{t0}, 3, v{vL}')
A(f'v_and_b32 v{t1}, 0x70, v{vL16}')
A(f'v_lshl_add_u32 v{vLn}, v{t0}, 10, v{t1}')
E = if_layer(0)
E3 = if_wave(3)
A(f'v_lshl_add_u32 v{t0}, v{vQ}, 7, v{vGm}')
A(f'v_add_u32 v{t0}, {L_ROW}, v{t0}')
A(f'v_add_u32 v{t1}, {L_ROW + 1024}, v{vL16}')
A(f'ds_write_b128 v{t0}, {vr(xP,4)}')
A(f'ds_write_b128 v{t0}, {vr(xP+4,4)} offset:64')
A('s_waitcnt lgkmcnt(0)')
A(f'ds_read_b128 {vr(hl,4)}, v{t1}')
endif(E3, False)
Lh = A.newlabel('L_hel'); Lhk = A.newlabel('L_helok')
A(f's_mov_b32 s{sGUARD}, {SPIN}')
A(f's_waitcnt vmcnt({NY})')
A.label(Lh)
for r in range(8): A(f'v_xor_b32 v{hel+r}, s{sTAGB if r & 1 else sTAG}, v{hel+r}')
A(f'v_or3_b32 v{t0}, v{hel+1}, v{hel+3}, v{hel+5}')
A(f'v_or_b32 v{t0}, v{t0}, v{hel+7}')
A(f'v_lshrrev_b32 v{t0}, 4, v{t0}')
A(f'v_or3_b32 v{t0}, v{t0}, v{hel}, v{hel+2}')
A(f'v_or3_b32 v{t0}, v{t0}, v{hel+4}, v{hel+6}')
A(f'v_cmp_ne_u32 vcc, 0, v{t0}')
A(f's_cbranch_vccz {Lhk}')
A('s_sleep 8')
hel_issue(); A.wait_vm0()
A(f's_sub_u32 s{sGUARD}, s{sGUARD}, 1')
A(f's_cbranch_scc0 {Lh}')
A.label(Lhk)
endif(E, False)
h1_issue()
V.release(hel, 8)

def h1_check():
    A(f'v_cmp_ne_u32 vcc, s{sTAG}, v{sa+3}')
    A(f'v_cmp_ne_u32 {sr(sT2,2)}, s{sTAG}, v{sa+7}')
    A(f'v_pk_add_f32 {vr(sa,2)}, {vr(sa,2)}, {vr(sa+4,2)}')
    A(f's_or_b64 vcc, vcc, {sr(sT2,2)}')
repoll(h1_issue, h1_check, 'ST')
stamp()
A(f'v_add_f32 v{sa+2}, v{sa+2}, v{sa+6}')
A(f'v_mov_b32 v{sa+4}, v{sa}')
A(f'v_mov_b32 v{sa+5}, v{sa+1}')
A(f'v_mov_b32 v{sa+6}, v{sa+2}')
local_stores([f'buffer_store_dwordx4 {vr(xP,4)}, v{vXs}, {srd(SRD_WS)}, s{aXs} offen',
              f'buffer_store_dwordx4 {vr(xP+4,4)}, v{vXs}, {srd(SRD_WS)}, s{aXs} offen offset:64'])
for r in range(3): A(f'v_permlane16_swap_b32 v{sa+r}, v{sa+4+r}')
A(f'v_pk_add_f32 {vr(sa,2)}, {vr(sa,2)}, {vr(sa+4,2)}')
A(f'v_add_f32 v{sa+2}, v{sa+2}, v{sa+6}')
for r in range(3): A(f'v_mov_b32 v{sa+4+r}, v{sa+r}')
for r in range(3): A(f'v_permlane32_swap_b32 v{sa+r}, v{sa+4+r}')
A(f'v_pk_add_f32 {vr(sa,2)}, {vr(sa,2)}, {vr(sa+4,2)}')
A(f'v_add_f32 v{sa+2}, v{sa+2}, v{sa+6}')
mu = V.alloc(); var = V.alloc(); pr = V.alloc(2, 2); mm = V.alloc()
ln_params(sa, sa + 2, mu, var, mm, pr, t0)
key = V.alloc(); ka = V.alloc(2, 2); kb = ka + 1
A(f'v_fma_f32 v{key}, -v{mm}, v{vSW}, v{sa+1}')
A(f'v_mul_f32 v{key}, v{key}, v{pr}')
A(f'v_mul_f32 v{pr+1}, -v{mm}, v{pr}')
A(f'v_ashrrev_i32 v{t0}, 31, v{key}')
A(f'v_or_b32 v{t0}, 0x80000000, v{t0}')
A(f'v_xor_b32 v{key}, v{key}, v{t0}')
A(f'v_and_b32 v{key}, 0xfffff800, v{key}')
A(f'v_or3_b32 v{key}, v{key}, v{vQ}, s{aROW}')
xn = V.alloc(8, 2); xf = V.alloc(16, 2)
fillx = [f'v_pk_fma_f32 {vr(xf+2*j,2)}, {vr(acc+2*j,2)}, {vr(pr,2)}, {vr(pr,2)} op_sel:[0,0,1] op_sel_hi:[1,0,1]' for j in range(8)] + \
        [f'v_cvt_pk_bf16_f32 v{xn+j}, v{xf+2*j}, v{xf+2*j+1}' for j in range(8)]
def top2_levels(a, b, levels, fill):
    for lv in levels:
        if fill: A(fill.pop(0))
        A(f'v_min_u32_dpp v{t0}, v{a}, v{a} {lv} {DP}')
        A(f'v_max_u32_dpp v{t1}, v{b}, v{b} {lv} {DP}')
        A(f'v_max_u32_dpp v{a}, v{a}, v{a} {lv} {DP}')
        A(f'v_max_u32 v{b}, v{t0}, v{t1}')
A(fillx.pop(0)); A(fillx.pop(0))
A(f'v_max_u32_dpp v{ka}, v{key}, v{key} quad_perm:[1,0,3,2] {DP}')
A(f'v_min_u32_dpp v{kb}, v{key}, v{key} quad_perm:[1,0,3,2] {DP}')
top2_levels(ka, kb, ['quad_perm:[2,3,0,1]', 'row_half_mirror', 'row_mirror'], fillx)
A('s_mov_b64 exec, 1')
A(f'buffer_store_dwordx2 {vr(ka,2)}, v{vL16}, {srd(SRD_WS)}, s{aKEYs} offen sc1')
E = if_layer(0)
A('s_waitcnt vmcnt(1)')
local_stores([f'buffer_store_dwordx2 {vr(tg,2)}, v{vL16}, {srd(SRD_WS)}, s{aX1Fs} offen'])
FTT = int(next((a[4:] for a in OPT if a.startswith('ftt=')), '0'))
if FTT == 0: ft_touch()
A(f's_cmp_lg_u32 s{sW}, 3')
A(f's_cbranch_scc1 {E}')
A('s_mov_b64 exec, -1')
A(f's_add_u32 s{sT0}, s{aCANDs}, {WS_HALO - WS_CAND}')
A('s_waitcnt lgkmcnt(0)')
A(f'buffer_store_dwordx4 {vr(hl,4)}, v{vLn}, {srd(SRD_WS)}, s{sT0} offen sc1')
endif(E, False)
A('s_mov_b64 exec, -1')
stamp()
A(f'v_cmp_eq_u32 vcc, v{key}, v{kb}')
A(f'v_add_u32 v{t2}, 256, v{vStash}')
if 'cstash' not in OPT:
    A(f's_lshl_b32 s{sT0}, s{sW}, 11')
    A(f's_add_u32 s{sT0}, s{sT0}, s{aCANDs}')
    A(f'v_add_u32 v{t1}, 1024, v{vGm}')
    A(f'v_cndmask_b32 v{t1}, v{vGm}, v{t1}, vcc')
while fillx: A(fillx.pop(0))
A(f'v_cndmask_b32 v{t3}, v{vStash}, v{t2}, vcc')
A(f'v_cmp_ge_u32 vcc, v{key}, v{kb}')
A(f'v_lshrrev_b32 v{t0}, 3, v{vL}')
A(f's_mov_b64 exec, vcc')
if 'cstash' not in OPT:
    A(f'buffer_store_dwordx4 {vr(xn,4)}, v{t1}, {srd(SRD_WS)}, s{sT0} offen sc1')
    A(f'buffer_store_dwordx4 {vr(xn+4,4)}, v{t1}, {srd(SRD_WS)}, s{sT0} offen offset:64 sc1')
A(f'ds_write_b128 v{t3}, {vr(xn,4)} offset:128')
A(f'ds_write_b128 v{t3}, {vr(xn+4,4)} offset:192')
A(f'ds_write_b128 v{t3}, {vr(xP,4)}')
A(f'ds_write_b128 v{t3}, {vr(xP+4,4)} offset:64')
A('s_mov_b64 exec, -1')
V.release(key); V.release(ka, 2)
if 'cstash' in OPT:
    A(f'v_and_b32 v{t1}, 0x70, v{vL16}')
    A(f'v_lshl_add_u32 v{t2}, v{t0}, 8, v{t1}')
    A(f'v_add_u32 v{t2}, {L_CS + 128}, v{t2}')
    A(f's_lshl_b32 s{sT0}, s{sW}, 4')
    A('s_waitcnt lgkmcnt(2)')
    A(f'ds_read_b128 {vr(sa,4)}, v{t2}')
    A(f's_lshl_b64 exec, 0xffff, s{sT0}')
    A('s_waitcnt lgkmcnt(0)')
    A(f'buffer_store_dwordx4 {vr(sa,4)}, v{vLn}, {srd(SRD_WS)}, s{aCANDs} offen sc1')
    A('s_mov_b64 exec, -1')
else:
    A('s_waitcnt lgkmcnt(0)')
V.release(hl, 4); V.release(vLn)
fine()
def chain_params(mu, var, mm, rs, om, oc):
    a = V.alloc(); u = V.alloc(); w_ = V.alloc(); m2 = V.alloc(); r2 = V.alloc()
    A(f'v_add_f32 v{a}, 1.0, v{rs}')
    A(f'v_mul_f32 v{u}, v{mm}, v{rs}')
    A(f'v_fma_f32 v{mu}, v{mu}, v{a}, -v{u}')
    A(f'v_mul_f32 v{w_}, v{a}, v{a}')
    A(f'v_mul_f32 v{var}, v{var}, v{w_}')
    round_params(mu, var, m2, r2, w_)
    A(f'v_rcp_f32 v{w_}, v{a}')
    A(f'v_add_f32 v{u}, v{u}, v{m2}')
    A(f'v_mul_f32 v{oc}, v{a}, v{r2}')
    A(f'v_mul_f32 v{om}, -v{u}, v{w_}')
    for x in (a, u, w_, m2, r2): V.release(x)
xfl = sa
xf_issue = lambda: A(f'buffer_load_dwordx2 {vr(xfl,2)}, v{vL8}, {srd(SRD_WS)}, s{aX1Fp} offen sc1')
for j in range(8):
    A(f'v_lshlrev_b32 v{xf+2*j}, 16, v{xn+j}')
    A(f'v_and_b32 v{xf+2*j+1}, 0xffff0000, v{xn+j}')
for j in range(8):
    A(f'v_pk_add_f32 {vr(xf+2*j,2)}, {vr(xf+2*j,2)}, {vr(acc+2*j,2)}')
for j in range(8):
    A(f'v_cvt_pk_bf16_f32 v{xP+j}, v{xf+2*j}, v{xf+2*j+1}')
V.release(xn, 8); V.release(xf, 16); V.release(acc, 16)
fa = V.take(170, 6)
A(f'v_bfe_u32 v{t0}, v{vL}, 2, 1')
A(f'v_and_b32 v{t1}, 1, v{vL}')
A(f'v_lshl_or_b32 v{t0}, v{t0}, 1, v{t1}')
A(f'v_mul_u32_u24 v{fa}, 576, v{t0}')
A(f'v_lshl_add_u32 v{fa}, v{vG}, 4, v{fa}')
A(f'v_add_u32 v{fa}, {L_XS}, v{fa}')
A(f's_lshl_b32 s{sT1}, s{sW}, 3')
A(f's_add_u32 s{sT1}, s{sT1}, {L_H}')
A(f'v_lshlrev_b32 v{fa+1}, 5, v{vG}')
A(f'v_lshl_add_u32 v{fa+1}, v{vQ}, 1, v{fa+1}')
A(f'v_add_u32 v{fa+1}, s{sT1}, v{fa+1}')
A(f's_lshr_b32 s{sT1}, s{sW}, 1')
A(f's_lshl_b32 s{sT1}, s{sT1}, 5')
A(f's_add_u32 s{sT1}, s{sT1}, {L_H}')
A(f'v_mov_b32 v{fa+2}, s{sT1}')
A(f'v_lshlrev_b32 v{fa+3}, 4, v0')
A(f'v_mov_b32 v{fa+4}, {L_KEY}')
A(f'v_lshrrev_b32 v{fa+5}, 5, v{vL}')
A(f'v_lshl_add_u32 v{fa+5}, v{fa+5}, 6, v{vL16}')
A(f'v_add_u32 v{fa+5}, {L_XS}, v{fa+5}')
A(f's_cmp_eq_u32 s{sLAYER}, 0')
A('s_cbranch_scc1 L_x1')
for j in range(4):
    A(f'v_mov_b32 v{sa+j}, v{xP+j}')
for j in range(4):
    A(f'v_mov_b32_dpp v{xP+j}, v{xP+4+j} row_ror:8 row_mask:0xf bank_mask:0xc')
for j in range(4):
    A(f'v_mov_b32_dpp v{xP+4+j}, v{sa+j} row_ror:8 row_mask:0xf bank_mask:0x3')
A(f'v_and_b32 v{t0}, 7, v{vQ}')
A(f'v_lshl_add_u32 v{vXs}, v{t0}, 11, v{vGm}')
A(f'v_and_b32 v{t0}, 8, v{vQ}')
A(f'v_lshl_add_u32 v{vXs}, v{t0}, 3, v{vXs}')
def out_stores():
    A(f's_add_u32 s{sT0}, s{aOUT}, 16384')
    A(f'buffer_store_dwordx4 {vr(xP,4)}, v{vXs}, {srd(SRD_OUT)}, s{aOUT} offen{OSC}')
    A(f'buffer_store_dwordx4 {vr(xP+4,4)}, v{vXs}, {srd(SRD_OUT)}, s{sT0} offen{OSC}')
    if 'clean' in OPT:
        A(f's_lshl_b32 s{sT0}, s{sHG}, 11')
        A(f'buffer_store_dwordx4 {vr(xP,4)}, v{vO4}, {srd(SRD_WS)}, s{sT0} offen sc1')
        A(f'buffer_store_dwordx4 {vr(xP,4)}, v{vO4}, {srd(SRD_WS)}, s{sT0} offen offset:1024 sc1')
OSC = ' sc1 nt' if 'ont' in OPT else ' sc1'
if 'outearly' in OPT:
    A(f's_cmp_eq_u32 s{sHASF}, 1')
    A('s_cbranch_scc1 L_x1e')
    out_stores()
A('s_branch L_x1e')
A.label('L_x1')
chain_params(mu, var, mm, pr, t2, t3)
A(f's_lshl_b32 s{sT0}, s{sW}, 6')
A(f'v_add_u32 v{t0}, s{sT0}, v{vQ4}')
A(f'ds_write2_b32 v{t0}, v{t2}, v{t3} offset0:16 offset1:96')
V.release(mu); V.release(var); V.release(pr, 2); V.release(mm)
pk8 = V.alloc(8, 2)
E = if_ffn()
A(f's_mov_b32 s{sT0}, 0x05040100')
A(f's_mov_b32 s{sT1}, 0x07060302')
A('s_waitcnt lgkmcnt(0)')
for j in range(8):
    for c in range(4): A(f'v_accvgpr_read_b32 v{pk8+c}, a{aFD + 4*j + c}')
    for c, (hi_, lo_, sel) in enumerate(((2, 0, sT0), (2, 0, sT1), (3, 1, sT0), (3, 1, sT1))):
        A(f'v_perm_b32 v{pk8+4+c}, v{pk8+hi_}, v{pk8+lo_}, s{sel}')
    for c in range(4): A(f'v_accvgpr_write_b32 a{aFD + 4*j + c}, v{pk8+4+c}')
endif(E, False)
V.release(pk8, 8)
E1 = if_wave(1)
A(f's_lshl_b32 s{sT0}, s{sSET}, 11')
A(f's_add_u32 s{sT0}, s{sT0}, {WS_X1F}')
A(f's_cmp_eq_u32 s{sHASF}, 1')
A(f's_cselect_b32 s{sT0}, s{sT0}, s{aX1Fp}')
A(f's_lshl_b32 s{sT1}, s{sHASF}, 9')
A(f'v_mad_u32_u24 v{t3}, v{vG}, s{sT1}, v{vQ16}')
def sf_check():
    for k in range(4): A(f'v_xor_b32 v{sa+k}, s{sTAGB if k & 1 else sTAG}, v{sa+k}')
    A(f'v_or_b32 v{sa+1}, v{sa+1}, v{sa+3}')
    A(f'v_lshrrev_b32 v{sa+1}, 4, v{sa+1}')
    A(f'v_or3_b32 v{sa}, v{sa}, v{sa+1}, v{sa+2}')
    A(f'v_cmp_ne_u32 vcc, 0, v{sa}')
poll(lambda: A(f'buffer_load_dwordx4 {vr(sa,4)}, v{t3}, {srd(SRD_WS)}, s{sT0} offen sc1'), sf_check, 'X1F')
endif(E1, False)
A(f's_mov_b32 s49, s{sHASF}')
A(f's_cmp_eq_u32 s{sHASF}, 0')
A('s_cbranch_scc1 L_b1b')
A.label('L_x1e')
stamp()
key_issue = lambda: A(f'buffer_load_dwordx4 {vr(sa,4)}, v{vL16}, {srd(SRD_WS)}, s{aKEYp} offen sc1', tag='key')
A(f's_cmp_lg_u32 s{sW}, 0')
A('s_cbranch_scc1 L_keye')
A(f's_mov_b32 s{sGUARD}, {SPIN}')
A.label('L_keyp')
key_issue()
A('s_waitcnt vmcnt(0)')
A.label('L_keyc')
A(f'v_max3_u32 v{t0}, v{sa}, v{sa+1}, v{sa+2}')
A(f'v_min_u32 v{t2}, v{sa}, v{sa+2}')
A(f'v_max_u32 v{t0}, v{t0}, v{sa+3}')
A(f'v_max_u32 v{sa}, v{sa}, v{sa+2}')
A(f'v_cmp_eq_u32 vcc, -1, v{t0}')
A(f'v_max3_u32 v{sa+1}, v{sa+1}, v{sa+3}, v{t2}')
A('s_cbranch_vccz L_keyk')
A('s_sleep 1')
NS = int(next((a[4:] for a in OPT if a.startswith('nsl=')), '8'))
if NS:
    A(f's_cmp_eq_u32 s{sHASF}, 1')
    A('s_cbranch_scc1 L_keyh')
    A(f's_sleep {NS}')
    A.label('L_keyh')
A(f's_sub_u32 s{sGUARD}, s{sGUARD}, 1')
A('s_cbranch_scc0 L_keyp')
A.label('L_keyk')
stamp()
top2_levels(sa, sa + 1, ['quad_perm:[1,0,3,2]', 'quad_perm:[2,3,0,1]', 'row_half_mirror', 'row_mirror'], [])
for n_, ln in enumerate((0, 16, 32, 48)):
    A(f'v_readlane_b32 s{(sK0, sT0, sT2, sU0)[n_]}, v{sa}, {ln}')
for n_, ln in enumerate((0, 16, 32, 48)):
    A(f'v_readlane_b32 s{(sK1, sT1, sT3, sU1)[n_]}, v{sa+1}, {ln}')
for a_, b_ in ((sT0, sT1), (sT2, sT3), (sU0, sU1)):
    A(f's_max_u32 s{sK1}, s{sK1}, s{b_}')
    A(f's_min_u32 s{b_}, s{sK0}, s{a_}')
    A(f's_max_u32 s{sK0}, s{sK0}, s{a_}')
    A(f's_max_u32 s{sK1}, s{sK1}, s{b_}')
A(f's_and_b32 s{sU2}, s{sK0}, 0x7f0')
A(f's_and_b32 s{sU3}, s{sK1}, 0x7f0')
A(f's_cmp_eq_u32 s{sU2}, s{sU3}')
A(f's_cselect_b32 s{sT2}, 8, 0')
A(f's_lshl_b32 s{sU2}, s{sU2}, 7')
A(f's_add_u32 s{sU2}, s{sU2}, s{aCANDb}')
A(f's_or_b32 s{sU3}, s{sU3}, s{sT2}')
A(f's_lshl_b32 s{sU3}, s{sU3}, 7')
A(f's_add_u32 s{sU3}, s{sU3}, s{aCANDb}')
def f_issue():
    A(f'buffer_load_dwordx4 {vr(sa,4)}, v{vL16}, {srd(SRD_WS)}, s{sU2} offen sc1')
    A(f'buffer_load_dwordx4 {vr(sa+4,4)}, v{vL16}, {srd(SRD_WS)}, s{sU3} offen sc1')
sCAND = 49
A(f's_mov_b32 s{sCAND}, s{sHASF}')
if 'static' not in OPT:
    E = if_layer(0)
    A(f's_mov_b32 s{sT2}, 0')
    for k_ in (sK0, sK1):
        A(f's_bfe_u32 s{sT0}, s{k_}, 0x50006')
        A(f's_bitset1_b32 s{sT2}, s{sT0}')
        A(f's_add_u32 s{sT0}, s{k_}, 8')
        A(f's_bfe_u32 s{sT0}, s{sT0}, 0x50006')
        A(f's_bitset1_b32 s{sT2}, s{sT0}')
    A(f's_and_b32 s{sT0}, s{sRB}, 29')
    A(f's_lshr_b32 s{sT2}, s{sT2}, s{sT0}')
    A(f's_and_b32 s{sT2}, s{sT2}, 5')
    A(f's_cmp_eq_u32 s{sT2}, 1')
    A(f's_cselect_b32 s{sT2}, 2, 0')
    A(f's_and_b32 s{sT0}, s{sRB}, 2')
    A(f's_cmp_eq_u32 s{sT0}, s{sT2}')
    A(f's_cselect_b32 s{sHASF}, s{sHASF}, 0')
    endif(E, False)
E = if_ffn()
f_issue()
endif(E, False)
A(f'v_mov_b32 v{t2}, s{sHASF}')
A(f'ds_write_b32 v{fa+4}, v{t2} offset:8')
A(f'v_mov_b32 v{t0}, s{sK0}')
A(f'v_mov_b32 v{t1}, s{sK1}')
A(f'ds_write2_b32 v{fa+4}, v{t0}, v{t1} offset0:0 offset1:1')
A(f's_or_b32 s{sT0}, s{sCAND}, s{sLAYER}')
A('s_cbranch_scc0 L_k2')
A.label('L_keye')
A(f's_cmp_lg_u32 s{sLAYER}, 0')
A('s_cbranch_scc1 L_pre3')
A.label('L_b1b')
A('s_waitcnt lgkmcnt(0)')
A('s_barrier')
fine()
V.take(accQ, 20); V.take(accK, 20); V.take(accV, 20); V.take(hV, 10); V.take(mxc, 8)
def own_reads(ks):
    u = ks & 1; kc = ks >> 1; b = fr[ks & 1]
    return [f'ds_read_b128 {vr(b + 4 * T, 4)}, v{vA+u} offset:{(kc * 8 + 2 * T) * 1024}' for T in range(4)]
def gemm_groups(k0, k1, noread=()):
    G = []
    for ks in range(k0, k1):
        b = fr[ks & 1]; fill = own_reads(ks + 1) if ks < 15 and ks not in noread else []
        for T in range(1, 5):
            X = vr(b + 4 * (T - 1), 4)
            for m_, (d_, a_, b_) in enumerate(((accQ, ar(aW(ks, 0), 4), X), (accK, ar(aW(ks, 1), 4), X), (accV, X, ar(aW(ks, 2), 4)))):
                g_ = [mf(vr(d_ + 4 * T, 4), a_, b_, vr(d_ + 4 * T, 4))]
                if T == 1 and m_ == 0: g_ = ['s_waitcnt lgkmcnt(0)'] + g_
                elif fill and m_ < 2: g_.append(fill.pop(0))
                G.append(g_)
    return G
def gemm_part(k0, k1, ins=None):
    for n_, g_ in enumerate(gemm_groups(k0, k1)):
        for x in g_: A(x)
        for x in (ins or {}).get(n_, []): emit(x)
def x1_dma(kc, o):
    return ([f's_add_u32 s{sXA}, s{sXB}, {WS_X1 + kc * 128}'] if o == 0 else []) + \
           [f's_add_u32 m0, s{sAM}, {L_A + kc * 8192 + o * 1024}',
            (f'buffer_load_dwordx4 v{vXo if o else vXe}, {srd(SRD_WS)}, s{sXA} offen sc1 lds', f'x{kc >> 1}')]
sXA, sXB = 46, 47
ci = V.alloc(4, 2); vHs = V.alloc()
A(f'ds_read_b32 v{t0}, v{fa+4} offset:8')
A(f'ds_read2_b32 {vr(ci,2)}, v{vQ4} offset0:16 offset1:32')
A(f'ds_read2_b32 {vr(ci+2,2)}, v{vQ4} offset0:48 offset1:64')
for T in range(1, 5): A(f'ds_read_b128 {vr(accV + 4 * T, 4)}, v{vG16} offset:{64 * T}')
A(f's_lshl_b32 s{sXB}, s{sSTB}, 14')
A(f's_add_u32 s{sT5}, s{aFT}, 4096')
A(f's_xor_b32 s{sT0}, s{sW}, 3')
A(f's_lshl_b32 s{sT0}, s{sT0}, 29')
A(f'v_add_u32 v{vHs}, s{sT0}, v{vQ16}')
A(f's_lshl_b32 s{sT4}, s{sRB}, 10')
A(f's_lshl_b32 s{sT1}, s{sHG}, 7')
A(f's_add_u32 s{sT4}, s{sT4}, s{sT1}')
A(f's_add_u32 s{sT4}, s{sT4}, {WS_HS - 128}')
A('s_waitcnt lgkmcnt(6)')
A(f'v_readfirstlane_b32 s{sT0}, v{t0}')
A(f's_and_b32 s{sHASF}, s{sHASF}, s{sT0}')
A('s_cbranch_scc0 L_noft')
for s_ in range(8):
    A(f'buffer_load_dwordx4 {ar(aFG + 4*s_, 4)}, v{vL16}, {srd(SRD_WS)}, s{sT5 if s_ >= 4 else aFT} offen offset:{(s_ & 3)*1024} sc1')
A.label('L_noft')
A.vm = []
NX = int(next((a[3:] for a in OPT if a.startswith('nx=')), '2'))
grp = [x1_dma(kc, o) for kc in range(NX) for o in range(2)]
for _ in range(2):
    for x in grp.pop(0): emit(x)
A.sprinkle = (grp, 4, emit)
A('s_waitcnt lgkmcnt(4)')
for T in range(1, 5):
    sel = (T - 1) & 1
    for acc_, cs_ in ((accQ, csQ), (accK, csK)):
        for h in range(2):
            A(f'v_pk_mul_f32 {vr(acc_+4*T+2*h,2)}, {vr(cs_+2*h,2)}, {vr(ci + ((T-1)&2),2)} op_sel:[0,{sel}] op_sel_hi:[1,{sel}]')
A('s_waitcnt lgkmcnt(0)')
for T in range(1, 5):
    for h in range(2):
        A(f'v_pk_mul_f32 {vr(accV+4*T+2*h,2)}, {vr(accV+4*T+2*h,2)}, {vr(csV,2)} op_sel_hi:[1,0]')
A.sprinkle = None
assert not grp
V.release(ci, 4)
A(f's_waitcnt vmcnt({2 * NX})')
A('s_mov_b32 exec_lo, 0')
A('s_mov_b32 exec_hi, 0xf0000f00')
A(f'buffer_store_dwordx4 {vr(gS,4)}, v{vHs}, {srd(SRD_WS)}, s{sT4} offen sc1')
A('s_mov_b64 exec, -1')
V.release(vHs); V.release(gS, 4)
vm_x = list(A.vm)
A(f's_cmp_eq_u32 s{sHASF}, 0')
A('s_cbranch_scc1 L_g0')
A.label('L_pre3')
fine()
E = skip_unless([f's_cmp_eq_u32 s{sW}, 0', f's_cselect_b32 s{sT0}, s{sHASF}, 0', f's_cmp_eq_u32 s{sT0}, 0'])
def f_check():
    A(f'v_max_u32 v{t0}, v{sa}, v{sa+4}')
    A(f'ds_write_b128 v{fa+5}, {vr(sa,4)}')
    A(f'v_cmp_eq_u32 vcc, -1, v{t0}')
    A(f'ds_write_b128 v{fa+5}, {vr(sa+4,4)} offset:1152')
    A('s_waitcnt lgkmcnt(0)')
Lc = A.newlabel('L_cd')
A(f's_mov_b32 s{sGUARD}, {SPIN}')
A(f's_cmp_eq_u32 s{sLAYER}, 0')
A(f's_cbranch_scc1 {Lc}c')
A.label(Lc)
A('s_waitcnt vmcnt(0)')
A.label(Lc + 'c')
f_check()
A(f's_cbranch_vccz {E}')
f_issue()
A(f's_sub_u32 s{sGUARD}, s{sGUARD}, 1')
A(f's_cbranch_scc0 {Lc}')
endif(E, False)
A('s_waitcnt lgkmcnt(0)')
A('s_barrier')
fine()
A(f's_cmp_eq_u32 s{sHASF}, 0')
A('s_cbranch_scc1 L_noffn')
xs = V.alloc(32, 2); d4 = V.alloc(4, 2); hp = V.alloc(8, 2); y4 = V.alloc(4, 2); wd = xs
for s_ in range(8):
    A(f'ds_read_b128 {vr(xs + 4*s_, 4)}, v{fa} offset:{64*s_}')
for c in range(4): A(f'v_mov_b32 v{y4+c}, 0')
wrd = [f'v_accvgpr_read_b32 v{wd+j}, a{aFD+j}' for j in range(32)]
for s_ in range(8):
    A(f's_waitcnt lgkmcnt({7 - s_})')
    A(mf(vr(d4, 4), vr(xs + 4*s_, 4), ar(aFG + 4*s_, 4), '0' if s_ == 0 else vr(d4, 4)))
    if s_: A(wrd.pop(0)); A(wrd.pop(0))
for _ in range(6): A(wrd.pop(0))
A(f'v_add_f32_dpp v{t0}, v{d4+1}, v{d4} row_shl:8 {DP}')
bf_round(t0, t0)
A(f'v_mul_f32 v{t1}, {hex(f2u(-1.4426950408889634))}, v{t0}')
A(f'v_exp_f32 v{t1}, v{t1}')
A(f'v_mov_b32_dpp v{t2}, v{t0} row_shl:4 {DP}')
A(f'v_add_f32 v{t1}, 1.0, v{t1}')
A(f'v_rcp_f32 v{t1}, v{t1}')
A('s_mov_b64 exec, 0x000f000f')
A(f'v_mul_f32 v{t1}, v{t0}, v{t1}')
bf_round(t1, t1)
A(f'v_mul_f32 v{t1}, v{t2}, v{t1}')
A(f'v_cvt_pk_bf16_f32 v{t1}, v{t1}, v{t1}')
A(f'ds_write_b16 v{fa+1}, v{t1}')
A('s_mov_b64 exec, -1')
for _ in range(8): A(wrd.pop(0))
A('s_waitcnt lgkmcnt(0)')
A('s_barrier')
A(f'ds_read_b128 {vr(hp,4)}, v{fa+2}')
A(f'ds_read_b128 {vr(hp+4,4)}, v{fa+2} offset:16')
while wrd: A(wrd.pop(0))
for j in range(8):
    if j % 4 == 0: A(f's_waitcnt lgkmcnt({1 - j // 4})')
    for c in range(4):
        A(f'v_dot2c_f32_bf16 v{y4+c}, v{wd+4*j+c}, v{hp+j}')
A(f'buffer_store_dwordx4 {vr(y4,4)}, v{fa+3}, {srd(SRD_WS)}, s{aYPs} offen sc1')
V.release(xs, 32); V.release(d4, 4); V.release(hp, 8); V.release(y4, 4)
A.label('L_noffn')
stamp()
sOWN = 48
own_lines = [f'v_readfirstlane_b32 s{sK0}, v{sa}', f'v_readfirstlane_b32 s{sK1}, v{sa+1}',
             f's_bfe_u32 s{sT0}, s{sK0}, 0x50006', f's_bfe_u32 s{sT1}, s{sK1}, 0x50006', f's_cmp_eq_u32 s{sT0}, s{sRB}',
             f's_cselect_b32 s{sT1}, s{sRB}, s{sT1}', f's_cselect_b32 s{sTOK}, 0, 1', f's_cselect_b32 s{sKEY}, s{sK0}, s{sK1}',
             f's_cmp_eq_u32 s{sT1}, s{sRB}', f's_cselect_b32 s{sOWN}, 1, 0']
A(f's_cmp_eq_u32 s{sLAYER}, 0')
A('s_cbranch_scc1 L_g0')
A(f'ds_read_b64 {vr(sa,2)}, v{fa+4}')
out_stores()
A('s_waitcnt lgkmcnt(0)')
for x in own_lines: A(x)
E = 'L_gend'
A(f's_branch {E}')
fr = [V.alloc(16, 2), V.alloc(16, 2)]
yp = V.alloc(24, 2); yo = V.alloc(2)
def y_issue():
    for j in range(6):
        A(f's_mov_b32 s{sT1}, {j * 65536}')
        A(f'buffer_load_dwordx4 {vr(yp + 4*j, 4)}, v{yo + 1 if j == 5 else yo}, {srd(SRD_WS)}, s{sT1} offen sc1')
sg = V.alloc(); ya = V.alloc(); yb = V.alloc(); yc = V.alloc()
sD0, sD1 = 100, 101
def own_prep():
    A(f's_and_b32 s{sRHO}, s{sKEY}, 2047')
    A(f's_bfe_u32 s{sT0}, s{sK0}, 0x70004')
    A(f's_bfe_u32 s{sT2}, s{sKEY}, 0x70004')
    A(f's_cmp_eq_u32 s{sT0}, s{sT2}')
    A(f's_cselect_b32 s{sT0}, s{sTOK}, 0')
    A(f's_lshl_b32 s{sT0}, s{sT0}, 8')
    A(f's_and_b32 s{sT2}, s{sT2}, 3')
    A(f's_lshl_b32 s{sT2}, s{sT2}, 9')
    A(f's_add_u32 s{sT0}, s{sT0}, s{sT2}')
    A(f's_add_u32 s{sT0}, s{sT0}, {L_CS}')
    A(f'v_lshl_add_u32 v{yc}, v{vL}, 1, s{sT0}')
    A(f'ds_read_u16 v{ya}, v{yc}')
    A(f'ds_read_u16 v{yb}, v{yc} offset:128')
    A(f's_ashr_i32 s{sT2}, s{sKEY}, 31')
    A(f's_not_b32 s{sT2}, s{sT2}')
    A(f's_or_b32 s{sT2}, s{sT2}, 0x80000000')
    A(f's_xor_b32 s{sT2}, s{sT2}, s{sKEY}')
    A(f'v_mov_b32 v{sg}, s{sT2}')
    bf_round(sg, sg)
    A(f'v_mul_f32 v{sg}, {hex(f2u(-1.4426950408889634))}, v{sg}')
    A(f'v_exp_f32 v{sg}, v{sg}')
    A(f'v_add_f32 v{sg}, 1.0, v{sg}')
    A(f'v_rcp_f32 v{sg}, v{sg}')
    bf_round(sg, sg)
    A('s_waitcnt lgkmcnt(0)')
    A(f'v_lshlrev_b32 v{ya}, 16, v{ya}')
    A(f'v_lshlrev_b32 v{yb}, 16, v{yb}')
    A(f'v_lshlrev_b32 v{yc}, 4, v0')
    A(f'v_add_u32 v{yc}, {L_RED}, v{yc}')
    A(f's_lshl_b32 s{sT2}, s{sHG}, 7')
    A(f's_and_b32 s{sD0}, s{sRHO}, 1023')
    A(f's_lshl_b32 s{sD0}, s{sD0}, 11')
    A(f's_and_b32 s{sT0}, s{sRHO}, 1024')
    A(f's_add_u32 s{sD0}, s{sD0}, s{sT0}')
    A(f's_add_u32 s{sD0}, s{sD0}, s{sT2}')
    A(f's_lshl_b32 s{sD1}, s{sTOK}, 10')
    A(f's_add_u32 s{sD1}, s{sD1}, s{sT2}')
    A(f's_add_u32 s{sD1}, s{sD1}, {WS_X2R}')
def y_addr():
    A(f's_lshl_b32 s{sT0}, s{sTOK}, 11')
    A(f's_add_u32 s{sT0}, s{sT0}, s{aYPb}')
    A(f'v_lshrrev_b32 v{t0}, 4, v0')
    A(f'v_lshl_add_u32 v{yo}, v{t0}, 12, v{vQ16}')
    A(f'v_cmp_gt_u32 vcc, 6, v{t0}')
    A(f'v_add_u32 v{yo}, s{sT0}, v{yo}')
    A(f'v_mov_b32 v{t1}, 0x40000000')
    A(f'v_cndmask_b32 v{yo+1}, v{t1}, v{yo}, vcc')
def done_flag():
    A('s_waitcnt vmcnt(0)')
    A('s_barrier')
    E2 = if_wave(2)
    A(f's_lshl_b32 s{sT1}, s{sHG}, 3')
    A(f's_add_u32 s{sT1}, s{sT1}, s{aX1Fp}')
    A('s_mov_b64 exec, 1')
    local_stores([f'buffer_store_dwordx2 {vr(tg,2)}, v{vL16}, {srd(SRD_WS)}, s{sT1} offen offset:256'])
    A('s_mov_b64 exec, -1')
    endif(E2, False)
NH = int(next((a[3:] for a in OPT if a.startswith('nh=')), '10'))
hs_ld = f'buffer_load_dwordx4 {vr(sa,4)}, v{vL16}, {srd(SRD_WS)}, s{sU0} offen sc1'
vHo = V.alloc()
prep = [f's_lshl_b32 s{sU0}, s{sRB}, 10', f's_add_u32 s{sU0}, s{sU0}, {WS_HS - 1024}',
        f's_lshl_b32 s{sU1}, s{sRB}, 13', f's_lshl_b32 s{sT0}, s{sW}, 8', f's_add_u32 s{sU1}, s{sU1}, s{sT0}', f's_add_u32 s{sU1}, s{sU1}, {WS_HALO - 16384}',
        f's_add_u32 s{sU2}, s{sU1}, 128', f's_mul_i32 s{sU3}, s{sW}, {2 * HST}', f's_lshl_b32 s{sT0}, s{sFIRST}, 30', f'v_add_u32 v{vHo}, s{sT0}, v{vXo}',
        f's_sub_u32 s{sT4}, s{sFIRST}, 1', f's_mov_b32 s{sT5}, s{sT4}', f's_mov_b32 s{sGUARD}, {SPIN}']
def hs_check():
    A('s_waitcnt vmcnt(0)')
    A.label('L_hs')
    A(f'v_cmp_ne_u32 vcc, s{sTAG}, v{sa+3}')
    A(f's_and_b64 vcc, vcc, {sr(sT4,2)}')
    A('s_cbranch_vccnz L_hsr')
    A.label('L_hsok')
far2 += ['L_hsr:', hs_ld, 's_waitcnt vmcnt(0)', f's_sub_u32 s{sGUARD}, s{sGUARD}, 1', 's_cbranch_scc0 L_hs', 's_branch L_hsok']
def own_pre():
    A(f's_cmp_lg_u32 s{sOWN}, 0')
    A('s_cbranch_scc1 L_ys')
    A.label('L_ysr')
save = A.lines; A.lines = []
if 'nox2t' not in OPT:
    A(f's_mov_b32 s{sT0}, {WS_X2R}')
    A(f'v_lshlrev_b32 v{t0}, 7, v{vQ}')
    A(f'buffer_load_dword v{vDum}, v{t0}, {srd(SRD_WS)}, s{sT0} offen sc1')
y_issue()
far2 += ['L_ys:'] + [l.text for l in A.lines] + ['s_branch L_ysr']; A.lines = save
A.label('L_g0')
A.vm = vm_x
A.wait_vm('x0')
A('s_barrier')
fine()
for x in own_reads(0): A(x)
KN, N2, PER = [int(x) for x in next((a[2:] for a in OPT if a.startswith('n=')), '6,14,3').split(',')]
ins = {}
pos = 0
for kc in range(NX, 8):
    for o in range(2):
        ins[pos] = x1_dma(kc, o); pos += (2 if kc < 4 else PER)
assert pos < KN * 12 - 14
ins[36] = [lambda: A.wait_vm('x1'), 's_barrier'] + ins.get(36, [])
ins[KN * 12 - 14] = [key_issue]
def late_keys():
    A.wait_vm('key')
    A(f's_mov_b32 s{sGUARD}, {SPIN}')
    A(f's_or_b32 s{sT0}, s{sCAND}, s{sW}')
    A('s_cbranch_scc0 L_keyc')
    A.label('L_k2')
ins[KN * 12 - 1] = [late_keys]
ins[84] = [done_flag, f'ds_read_b64 {vr(sa,2)}, v{fa+4}']
for n_, x in enumerate(prep): ins[85 + n_ // 2] = ins.get(85 + n_ // 2, []) + [x]
ins[96] = own_lines[:2]; ins[97] = own_lines[2:4]; ins[98] = [lambda: [A(x) for x in own_lines[4:]]]
k_ = (NH - 1) * 12
assert k_ > 98
OPT.add('defer'); og = []
with Defer(og):
    y_addr(); own_prep()
OPT.discard('defer')
og = [g_ for g_ in og if not g_[0].startswith('s_waitcnt')]
og = [g_ for g_ in og if not g_[0].startswith((f'v_lshlrev_b32 v{ya}, 16', f'v_lshlrev_b32 v{yb}, 16'))] + [[f'v_lshlrev_b32 v{ya}, 16, v{ya}'], [f'v_lshlrev_b32 v{yb}, 16, v{yb}']]
wpos = next(n_ for n_, g_ in enumerate(og) if g_[0].startswith(f'v_lshlrev_b32 v{ya}, 16'))
rpos = max(n_ for n_, g_ in enumerate(og) if g_[0].startswith('ds_read_u16'))
for n_, g_ in enumerate(og): ins[99 + n_ // 2] = ins.get(99 + n_ // 2, []) + g_
assert (99 + rpos // 2) // 12 < (99 + wpos // 2) // 12 and 99 + len(og) // 2 < k_ + 24
ins[k_] = [hs_ld] + ins.get(k_, [])
ins[k_ + 24] = [hs_check]
ins[k_ + 25] = [f's_add_u32 m0, s{sU3}, {L_HA}', f'buffer_load_dwordx4 v{vHo}, {srd(SRD_WS)}, s{sU1} offen sc1 lds']
ins[k_ + 26] = [f's_add_u32 m0, s{sU3}, {L_HA + HST}', f'buffer_load_dwordx4 v{vHo}, {srd(SRD_WS)}, s{sU2} offen sc1 lds', own_pre]
G = gemm_groups(0, N2)
for n_ in range(k_ + 27):
    for x in G.pop(0): A(x)
    for x in ins.get(n_, []): emit(x)
V.release(fa, 6)
V.release(vHo)
A.sprinkle = (G, 2, emit)
mu = V.alloc(); var = V.alloc(); pr = V.alloc(); mm = V.alloc()
for r in (0, 2): A(f'v_add_f32_dpp v{sa+r}, v{sa+r}, v{sa+r} row_ror:8 {DP}')
for sw in ('v_permlane16_swap_b32', 'v_permlane32_swap_b32'):
    for r in (0, 2): A(f'v_mov_b32 v{sa+4+r}, v{sa+r}')
    for r in (0, 2): A(f'{sw} v{sa+r}, v{sa+4+r}')
    for r in (0, 2): A(f'v_add_f32 v{sa+r}, v{sa+r}, v{sa+4+r}')
ln_params(sa, sa + 2, mu, var, mm, pr, t0)
chain_params(mu, var, mm, pr, t2, t3)
A.sprinkle = None
for g_ in G:
    for x in g_: emit(x)
A(f's_mov_b64 exec, {sr(sT4,2)}')
A(f'ds_write2_b32 v{vQ4}, v{t2}, v{t3} offset0:0 offset1:80')
A('s_mov_b64 exec, -1')
V.release(mu); V.release(var); V.release(pr); V.release(mm)
endif(E, False)
V.release(sa, 8)
stamp()
A(f's_cmp_eq_u32 s{sOWN}, 0')
A('s_cbranch_scc1 L_own_end')
A(f's_cmp_eq_u32 s{sLAYER}, 0')
A('s_cbranch_scc1 L_own2')
A.label('L_own')
A(f's_bfe_u32 s{sT0}, s{sKEY}, 0x50006')
A(f's_cmp_lg_u32 s{sT0}, s{sRB}')
A('s_cbranch_scc1 L_own_end')
A('s_barrier')
y_addr(); y_issue(); own_prep()
A.label('L_own2')
if True:
    MK = [4, 6, 8, 10, 20, 22]
    A(f's_mov_b32 s{sGUARD}, {SPIN}')
    for j in range(1, 6): A(f's_mov_b32 s{(24, 25, 26, 27, 74)[j-1]}, {j * 65536}')
    A.label('L_yp')
    A('s_waitcnt vmcnt(0)')
    for j in range(6): A(f'v_cmp_eq_u32 {sr(MK[j],2)}, -1, v{yp+4*j}')
    A(f's_or_b64 vcc, {sr(MK[0],2)}, {sr(MK[1],2)}')
    A(f's_or_b64 {sr(sT0,2)}, {sr(MK[2],2)}, {sr(MK[3],2)}')
    A(f's_or_b64 vcc, vcc, {sr(MK[4],2)}')
    A(f's_or_b64 {sr(sT0,2)}, {sr(sT0,2)}, {sr(MK[5],2)}')
    A(f's_or_b64 vcc, vcc, {sr(sT0,2)}')
    A('s_cbranch_scc0 L_ypok')
    for j in range(6):
        A(f's_mov_b64 exec, {sr(MK[j],2)}')
        A(f's_cbranch_execz L_yp{j}')
        A(f'buffer_load_dwordx4 {vr(yp + 4*j, 4)}, v{yo + 1 if j == 5 else yo}, {srd(SRD_WS)}, {"s%d" % (24, 25, 26, 27, 74)[j-1] if j else 0} offen sc1')
        A.label(f'L_yp{j}')
    A('s_mov_b64 exec, -1')
    A(f's_sub_u32 s{sGUARD}, s{sGUARD}, 1')
    A('s_cbranch_scc0 L_yp')
    A.label('L_ypok')
    A.vm = []
fine()
for a_, b_ in ((0, 4), (8, 12), (16, 20), (0, 8), (0, 16)):
    for h in range(2):
        A(f'v_pk_add_f32 {vr(yp+a_+2*h,2)}, {vr(yp+a_+2*h,2)}, {vr(yp+b_+2*h,2)}')
A(f'ds_write_b128 v{yc}, {vr(yp,4)}')
A(f'v_lshlrev_b32 v{t0}, 2, v{vL}')
A(f'v_add_u32 v{t0}, {L_RED}, v{t0}')
A('s_waitcnt lgkmcnt(0)')
A('s_barrier')
A(f's_cmp_lg_u32 s{sW}, 3')
A('s_cbranch_scc1 L_own_sync')
for j in range(8):
    A(f'ds_read2st64_b32 {vr(yp + 2*j, 2)}, v{t0} offset0:{2*j} offset1:{2*j+1}')
A(f'v_lshlrev_b32 v{t0}, 1, v{vL}')
for n_, (a_, b_) in enumerate(((0, 2), (4, 6), (8, 10), (12, 14), (0, 4), (8, 12), (0, 8))):
    if n_ < 4: A(f's_waitcnt lgkmcnt({6 - 2 * n_})')
    A(f'v_pk_add_f32 {vr(yp+a_,2)}, {vr(yp+a_,2)}, {vr(yp+b_,2)}')
A(f'v_add_f32 v{yp}, v{yp}, v{yp+1}')
bf_round(yp, yp)
A(f'v_mul_f32 v{yp}, v{yp}, v{sg}')
bf_round(yp, yp)
A(f'v_add_f32 v{yp}, v{yp}, v{yb}')
bf_round(yp, yp)
A(f'v_add_f32 v{yp}, v{yp}, v{ya}')
A(f'v_mov_b32_dpp v{yp+1}, v{yp} quad_perm:[1,0,3,2] {DP}')
A(f'v_cvt_pk_bf16_f32 v{yp}, v{yp}, v{yp+1}')
A('s_mov_b32 exec_lo, 0x55555555')
A('s_mov_b32 exec_hi, 0x55555555')
A(f's_cmp_eq_u32 s{sLAYER}, 0')
A('s_cbranch_scc1 L_own_x2')
A(f'buffer_store_dword v{yp}, v{t0}, {srd(SRD_OUT)}, s{sD0} offen')
A('s_branch L_own_fin')
A.label('L_own_x2')
local_stores([f'buffer_store_dword v{yp}, v{t0}, {srd(SRD_WS)}, s{sD1} offen'])
A(f's_and_b32 s{sT0}, s{sRHO}, 63')
A(f's_cmp_lt_u32 s{sT0}, 56')
A('s_cbranch_scc1 L_own_nh')
A(f'buffer_store_dword v{yp}, v{t0}, {srd(SRD_WS)}, s{sD1} offen offset:2048 sc1')
A.label('L_own_nh')
A(f's_lshl_b32 s{sT0}, s{sTOK}, 7')
A(f's_add_u32 s{sT0}, s{sT0}, {L_ROW + 2048}')
A(f'v_add_u32 v{t0}, s{sT0}, v{t0}')
A(f'ds_write_b32 v{t0}, v{yp}')
A.label('L_own_fin')
A('s_mov_b64 exec, -1')
A.label('L_own_sync')
V.release(yp, 24); V.release(yo, 2); V.release(sg); V.release(ya); V.release(yb); V.release(yc)
A.label('L_own_next')
A(f's_mov_b32 s{sKEY}, s{sK1}')
A(f's_add_u32 s{sTOK}, s{sTOK}, 1')
A(f's_cmp_lt_u32 s{sTOK}, 2')
A('s_cbranch_scc1 L_own')
A.label('L_own_end')
A(f's_cmp_eq_u32 s{sLAYER}, 1')
A('s_cbranch_scc1 L_fin')
stamp()
G = gemm_groups(N2, 16)
for x in G.pop(0): A(x)
A.sprinkle = (G, 1, emit)
sS0, sS1 = sU2, sU3
for key_, dst in ((sK0, sS0), (sK1, sS1)):
    A(f's_and_b32 s{sT0}, s{key_}, 2047')
    A(f's_lshl_b32 s{sT1}, s{sRB}, 6')
    A(f's_sub_u32 s{sT0}, s{sT0}, s{sT1}')
    A(f's_add_u32 s{dst}, s{sT0}, 16')
    A(f's_cmp_lt_u32 s{dst}, 80')
    A(f's_cselect_b32 s{dst}, s{dst}, 0')
    A(f's_lshl_b32 s{sT1}, s{sFIRST}, 3')
    A(f's_add_u32 s{sT1}, s{sT1}, 8')
    A(f's_cmp_ge_u32 s{dst}, s{sT1}')
    A(f's_cselect_b32 s{dst}, s{dst}, 0')
A(f's_cmp_eq_u32 s{sW}, 2')
A.sprinkle = None
A(f's_cselect_b32 s{sT4}, s{sS0}, s{sS1}')
A(f's_cselect_b32 s{sTOK}, 0, 1')
A(f's_bitcmp1_b32 s{sW}, 0')
A(f's_cselect_b32 s{sT4}, 0, s{sT4}')
rw = V.take(144, 4); rc = V.take(148, 4); vc = V.take(152, 16); dfl = V.take(168, 2); vRw = V.take(170); vDf = V.take(171)
df_issue = lambda: A(f'buffer_load_dwordx2 {vr(dfl,2)}, v{vDf}, {srd(SRD_WS)}, s{aX1Fp} offen offset:256 sc1')
bump = [f'v_mov_b32 v{vXs}, 0x40000000', f'v_and_b32 v{vDf}, 56, v{vL8}',
        f'v_lshrrev_b32 v{vRw}, 3, v{vL}', f'v_mul_u32_u24 v{vRw}, {HST - 128}, v{vRw}', f'v_add_u32 v{vRw}, v{vRw}, v{vL16}', f'v_add_u32 v{vRw}, {L_HA + 1024}, v{vRw}']
for a_, d_ in ((aFLp, 1 << 14), (aFLs, 1 << 14), (aSTp, 1 << 18), (aSTs, 1 << 18), (aKEYs, 1 << 13), (aKEYp, 1 << 13),
               (aCANDs, 1 << 18), (aCANDb, 1 << 18), (aYPs, 86 * 4096), (aYPb, 86 * 4096)):
    bump.append(f's_add_u32 s{a_}, s{a_}, {d_}')
PS = {0: 4, 1: 20}
for tok, sl in ((0, sS0), (1, sS1)):
    p = PS[tok]
    bump += [f's_and_b32 s{p+5}, s{sl}, 15', f's_lshl_b32 s{p}, 0x00010001, s{p+5}', f's_mov_b32 s{p+1}, s{p}',
             f's_lshr_b32 s{p+4}, s{sl}, 4', f's_lshl_b32 s{p+2}, s{p+4}, 2', f's_lshl_b32 s{p+4}, s{p+4}, 1',
             f's_sub_u32 s{p+3}, s{p+4}, 2', f's_min_u32 s{p+3}, s{p+3}, 7',
             f's_bfe_u32 s{p+6}, s{p+5}, 0x10001', f's_add_u32 s{p+4}, s{p+4}, s{p+6}',
             f's_and_b32 s{p+6}, s{p+5}, 12', f's_lshl_b32 s{p+6}, s{p+6}, 2', f's_lshl_b64 s[{p+6}:{p+7}], 0xffff, s{p+6}',
             f's_lshl_b32 s{p+5}, s{p+5}, 4', f's_lshl_b32 s{p+5}, 0xffff, s{p+5}']
for g_ in G:
    for x in g_: emit(x)
    for _ in range(3):
        if bump: A(bump.pop(0))
while bump: A(bump.pop(0))
df_issue()
A(f'ds_read2_b32 {vr(rc,2)}, v{vQ4} offset0:96 offset1:112')
A(f'ds_read2_b32 {vr(rc+2,2)}, v{vQ4} offset0:128 offset1:144')
for T in range(4): A(f'ds_read_b128 {vr(vc + 4 * T, 4)}, v{vG16} offset:{320 + 64 * (T + 1)}')
for b in fr: V.release(b, 16)
E = skip_unless([f's_cmp_eq_u32 s{sT4}, 0'])
A(f's_cmp_lt_u32 s{sT4}, 16')
A(f's_cselect_b32 s{sT1}, 2, 0')
A(f's_add_u32 s{sT0}, s{sTOK}, s{sT1}')
A(f's_lshl_b32 s{sT0}, s{sT0}, 10')
A(f's_add_u32 s{sT0}, s{sT0}, {WS_X2R}')
r_issue = lambda: A(f'buffer_load_dwordx4 {vr(rw,4)}, v{vL16}, {srd(SRD_WS)}, s{sT0} offen sc1')
r_issue()
A(f's_lshl_b32 s{sT1}, s{sTOK}, 7')
A(f'v_add_u32 v{t2}, s{sT1}, v{vRw}')
def r_check():
    A(f'v_max3_u32 v{t0}, v{rw}, v{rw+1}, v{rw+2}')
    A(f'ds_write_b128 v{t2}, {vr(rw,4)}')
    A(f'v_max_u32 v{t0}, v{t0}, v{rw+3}')
    A(f'v_cmp_eq_u32 vcc, -1, v{t0}')
    A('s_waitcnt lgkmcnt(0)')
repoll(r_issue, r_check, 'X2R')
endif(E, False)
A('s_waitcnt vmcnt(0) lgkmcnt(0)')
fine()
A('s_barrier')
fine()
xr = V.alloc(64, 2); hp_ = vc
def h_read(ks): return f'ds_read_b128 {vr(xr + 4*ks, 4)}, v{vH + (ks & 1)} offset:{(ks >> 1) * HST}'
def shadow():
    sh = []
    for T in range(4):
        sh += [f'v_mul_f32 v{accV+4*T+4+r}, v{accV+4*T+4+r}, v{vc+4*T+r}' for r in range(4)] + pack2(hV + 2 * T + 2, accV + 4 * T + 4)
    for T in range(4):
        sh += pack2(hQ(T), hQ(T))
        sh += [f'v_mul_f32 v{hK(T)+r}, v{hK(T)+r}, v{rc+T}' for r in range(4)] + pack2(hK(T), hK(T))
        sh += [f'v_mul_f32 v{mxc+2*T}, {hex(f2u(QSC))}, v{rc+T}']
    return sh
def halo_gemm(with_q, sh):
    hr = [h_read(ks) for ks in range(10, 16)]
    hr2 = [f'ds_read2_b32 {vr(hp_,2)}, v{vQ4} offset0:0 offset1:80', f'ds_read_b128 {vr(hp_+2,4)}, v{vG16}', f'ds_read_b128 {vr(hp_+6,4)}, v{vG16} offset:320']
    for ks in range(16):
        c = lambda x: '0' if ks == 0 else vr(x, 4)
        X = vr(xr + 4 * ks, 4)
        if ks == 0: A('s_waitcnt lgkmcnt(7)')
        if ks == 3: A('s_waitcnt lgkmcnt(3)')
        if ks == 9: A('s_waitcnt lgkmcnt(0)')
        M = [mf(vr(accK, 4), ar(aW(ks, 1), 4), X, c(accK)), mf(vr(accV, 4), X, ar(aW(ks, 2), 4), c(accV))]
        if with_q: M.append(mf(vr(accQ, 4), ar(aW(ks, 0), 4), X, c(accQ)))
        for n_, m_ in enumerate(M):
            A(m_)
            if n_ == 0 and hr: A(hr.pop(0))
            if n_ == 0 and ks >= 10 and hr2: A(hr2.pop(0))
            for _ in range(2):
                if sh: A(sh.pop(0))
    while sh: A(sh.pop(0))
    A('s_waitcnt lgkmcnt(0)')
A(f's_or_b32 s{sT0}, s{sS0}, s{sS1}')
A('s_cbranch_scc0 L_nofix')
nq = xr; rr = xr + 56; s12 = V.take(172, 4); pp = accV + 16
for tok in range(2): A(f'ds_read_b128 {vr(rr + 4 * tok, 4)}, v{vRw} offset:{128 * tok}')
for ks in range(10): A(h_read(ks))
for r in range(4): A(f'v_mov_b32 v{s12+r}, 0')
A('s_waitcnt lgkmcnt(10)')
for j in range(4):
    for tok in range(2):
        A(f'v_dot2c_f32_bf16 v{s12+2*tok}, v{rr+4*tok+j}, v{vOnes}')
        A(f'v_dot2c_f32_bf16 v{s12+2*tok+1}, v{rr+4*tok+j}, v{rr+4*tok+j}')
save = A.lines; A.lines = []
for r in range(2): A(f'v_permlane32_swap_b32 v{s12+r}, v{s12+2+r}')
for r in range(2): A(f'v_add_f32 v{s12+r}, v{s12+r}, v{s12+2+r}')
for sh_ in (8, 4, 2, 1):
    for r in range(2): A(f'v_add_f32_dpp v{s12+r}, v{s12+r}, v{s12+r} row_ror:{sh_} {DP}')
for r in range(2): A(f'v_mov_b32 v{s12+2+r}, v{s12+r}')
for r in range(2): A(f'v_permlane16_swap_b32 v{s12+r}, v{s12+2+r}')
for r in range(2): A(f'v_add_f32 v{s12+r}, v{s12+r}, v{s12+2+r}')
ln_params(s12, s12 + 1, rw, rw + 1, pp, pp + 1, t0)
A(f'v_xor_b32 v{pp}, 0x80000000, v{pp}')
A(f'v_mov_b32 v{pp+3}, v{pp+1}')
A(f'v_mov_b32 v{pp+2}, v{pp}')
for r in range(2): A(f'v_permlane32_swap_b32 v{pp+r}, v{pp+2+r}')
st_ = [l.text for l in A.lines if l.op != 's_nop']; A.lines = save
halo_gemm(True, shadow() + st_)
V.release(s12, 4)
stamp()
tag_check(dfl)
for tok in range(2):
    for r in range(4): A(f'v_mov_b32_dpp v{nq+10*tok+4+r}, v{accK+r} row_newbcast:{tok} {DP}')
    A(f'v_mov_b32 v{nq+10*tok+8}, v{accV+tok}')
    A(f'v_mov_b32 v{nq+10*tok+9}, v{accV+tok}')
norm_pk(-1, hp_, hp_ + 2, hp_ + 6)
for tok in range(2):
    A(f'v_permlane32_swap_b32 v{nq+10*tok+8}, v{nq+10*tok+9}')
for x in pack2(hK(-1), hK(-1)) + pack2(hV, accV): A(x)
for tok, sl in ((0, sS0), (1, sS1)):
    E = skip_unless([f's_cmp_eq_u32 s{sl}, 0'])
    n_ = nq + 10 * tok; p_ = pp + 2 * tok
    for r in range(4): A(f'v_mov_b32_dpp v{n_+r}, v{accQ+r} row_newbcast:{tok} {DP}')
    for h in range(2):
        A(f'v_pk_fma_f32 {vr(n_+4+2*h,2)}, {vr(csK+2*h,2)}, {vr(p_,2)}, {vr(n_+4+2*h,2)} op_sel_hi:[1,0,1]')
        A(f'v_pk_fma_f32 {vr(n_+2*h,2)}, {vr(csQ+2*h,2)}, {vr(p_,2)}, {vr(n_+2*h,2)} op_sel_hi:[1,0,1]')
    A(f'v_fma_f32 v{n_+8}, v{csV}, v{p_}, v{n_+8}')
    for h in range(2):
        A(f'v_pk_mul_f32 {vr(n_+4+2*h,2)}, {vr(n_+4+2*h,2)}, {vr(p_,2)} op_sel:[0,1] op_sel_hi:[1,1]')
    A(f'v_mul_f32 v{n_+8}, v{n_+8}, v{p_+1}')
    for x in pack2(n_, n_) + pack2(n_ + 4, n_ + 4): A(x)
    A(f'v_cvt_pk_bf16_f32 v{n_+8}, v{n_+8}, v{n_+8}')
    A(f'v_mul_f32 v{n_+9}, {hex(f2u(QSC))}, v{p_+1}')
    p = PS[tok]
    A(f's_mov_b64 exec, s[{p}:{p+1}]')
    A(f's_lshr_b32 s{sT0}, s{sl}, 4')
    A(f's_sub_u32 s{sT0}, s{sT0}, 1')
    A(f's_cmp_lg_u32 s{sT0}, s{sW}')
    A(f's_cbranch_scc1 L_np{tok}')
    A(f'v_add_u32 v{t0}, {L_ROW + 2048 + 128 * tok}, v{vGm}')
    A(f'ds_read_b128 {vr(xP,4)}, v{t0}')
    A(f'ds_read_b128 {vr(xP+4,4)}, v{t0} offset:64')
    A.label(f'L_np{tok}')
    A(f's_set_gpr_idx_on s{p+2}, gpr_idx(SRC2,DST)')
    for r in range(2): A(f'v_mov_b32 v{accQ+r}, v{n_+r}')
    for r in range(2): A(f'v_mov_b32 v{accK+r}, v{n_+4+r}')
    A(f's_set_gpr_idx_idx s{p+3}')
    A(f'v_mov_b32 v{mxc}, v{n_+9}')
    A(f's_set_gpr_idx_idx s{p+4}')
    A(f's_mov_b64 exec, s[{p+6}:{p+7}]')
    A(f'v_bfi_b32 v{hV}, s{p+5}, v{n_+8}, v{hV}')
    A('s_set_gpr_idx_off')
    A('s_mov_b64 exec, -1')
    endif(E, False)
A('s_branch L_fixed')
A.label('L_nofix')
for ks in range(10): A(h_read(ks))
sh = shadow()
for _ in range(6): A(sh.pop(0))
halo_gemm(False, sh)
stamp_n[0] -= 1; stamp()
tag_check(dfl)
norm_pk(-1, hp_, hp_ + 2, hp_ + 6)
for x in pack2(hK(-1), hK(-1)) + pack2(hV, accV): A(x)
A.label('L_fixed')
V.release(rw, 4); V.release(xr, 64); V.release(rc, 4); V.release(vc, 16); V.release(vRw)
A(f's_cbranch_vccz L_dfok')
poll(df_issue, lambda: tag_check(dfl), 'DF')
A.label('L_dfok')
V.release(dfl, 2); V.release(vDf)
stamp()
A(f's_mov_b32 s{sLAYER}, 1')
V.take(oP, 8)
attention([])
A('s_waitcnt lgkmcnt(0)')
A('s_branch L_pub')
A.label('L_fin')
A(f's_or_b32 s{sT0}, s2, s{sW}')
A('s_cbranch_scc1 L_fin2')
A(f's_mov_b32 s{sT1}, {WS_EPOCH}')
A('s_mov_b64 exec, 1')
A(f'buffer_store_dword v{tg}, v{vL16}, {srd(SRD_WS)}, s{sT1} offen')
A('s_mov_b64 exec, -1')
A.label('L_fin2')
if 'wb' in OPT:
    A(f's_lshl_b32 s{sT0}, s{sI}, 2')
    A(f's_add_u32 s{sT0}, s{sT0}, s{sW}')
    A(f's_lshl_b32 s{sT1}, s{sOWN}, 8')
    A(f's_add_u32 s{sT0}, s{sT0}, s{sT1}')
    A(f's_cmp_lg_u32 s{sT0}, {31 * 4 + 1}')
    A('s_cbranch_scc1 L_fin3')
    A('buffer_wbl2 sc1')
    A.label('L_fin3')
finish()
emit_far()
A.label('L_end')
A('s_endpgm')

hdr = f"""; @launch grid=(256,1,1) block=(256,1,1) lds={LDS_SIZE}
.amdgcn_target "amdgcn-amd-amdhsa--gfx950"
.text
.globl {NAME}_kernel
.p2align 8
.type {NAME}_kernel,@function
"""
tail = f"""
.section .rodata,"a"
.p2align 6
.amdhsa_kernel {NAME}_kernel
  .amdhsa_next_free_vgpr 512
  .amdhsa_next_free_sgpr 102
  .amdhsa_accum_offset 256
  .amdhsa_group_segment_fixed_size 0
  .amdhsa_kernarg_size 88
  .amdhsa_user_sgpr_count 2
  .amdhsa_user_sgpr_kernarg_segment_ptr 1
  .amdhsa_system_sgpr_workgroup_id_x 1
.end_amdhsa_kernel
"""
open(sys.argv[1], 'w').write(hdr + A.text() + tail)
print('vgpr high water', V.hw, 'nops added', A.nops_added, 'lines', len(A.lines))
```

```python
import sys, struct
from asmlib import *

NAME = "interleave_layers__sliding_local_dilated__moe_arch_mod__prompt"
STOP = None
STAMPS = False
FORCE_REMOTE = False
OPT = set(sys.argv[2:])
for a in sys.argv[2:]:
    if a.startswith('stop='): STOP = a[5:]
    if a == 'stamps': STAMPS = True
    if a == 'remote': FORCE_REMOTE = True

def f2u(x): return struct.unpack('<I', struct.pack('<f', x))[0]
MB = 1 << 20
WS_O = 0
WS_X1 = WS_O
WS_SENT = 4 * MB
WS_KEYS = WS_SENT + 16384
WS_HS = WS_SENT + 32768
WS_X2R = WS_SENT
WS_CAND = WS_SENT + 64 * 1024
WS_YP = WS_SENT + 576 * 1024
assert WS_YP + 2 * 86 * 4096 <= WS_SENT + 1280 * 1024
WS_ST = WS_SENT + 1280 * 1024
WS_HALO = 6 * MB
WS_ST0 = WS_HALO + 256 * 1024 + 128
WS_FL = WS_HALO + 320 * 1024
WS_X1F = WS_HALO + 352 * 1024
WS_HELLO = WS_HALO + 384 * 1024
WS_EPOCH = WS_HELLO + 8 * 4096
WS_FT = 10 * MB
WS_STAMP = 8 * MB
WS_SIZE = 16 * MB
L_A = 0
L_HA = 65536
HST = 1280
L_W = L_HA + 8 * HST
SLOT = {1: 0, 0: 24576, 2: 49152}
L_WO = L_W + 12288
def wo_off(ks): return 61440 if ks == 15 else ((ks - 12) * 4096 if ks >= 12 else (12288 + (ks - 6) * 4096 if ks >= 6 else 36864 + ks * 4096))
L_W15 = L_A
L_FT = L_A + 12288
L_WD = L_A + 24576
L_RED = L_W
L_ROW = L_W + 4096
L_XS = L_W + 8192
L_TAB = L_W + 3 * 24576 + 4096
L_CS = L_TAB + 640
L_H = L_CS + 2048
L_X2S = L_H + 64
L_KEY = L_X2S + 128
LDS_SIZE = 160 * 1024
assert L_KEY + 64 <= LDS_SIZE
SRD_X, SRD_W, SRD_WS, SRD_OUT, SRD_U, SRD_T = 4, 8, 12, 16, 20, 24
P = 28
sW, sSET, sI, sHG, sRB, sP, sJ0, sFIRST, sLOCAL, sLAYER = range(50, 60)
sT0, sT1, sT2, sT3, sT4, sT5 = range(60, 66)
sM0, sM1 = 66, 68
sRET = 70
sSTAMP = 72
sGUARD = 75
sTAG, sTAGB = 76, 77
sFS, sHASF, sK0, sK1, sTOK, sRHO, sKEY, sST = range(78, 86)
sAB, sAM, sWM, sOM = range(86, 90)
sSTB = 92
sU0, sU1, sU2, sU3 = range(94, 98)
stamp_n = [0]

A = Asm()
VP = Pool(1, 80)
V = Pool(80, 256)
vST = VP.alloc()
oP = V.take(80, 8); wra = V.take(88, 4)
fr = [V.take(136, 20), V.take(156, 20)]; vc = V.take(176, 20); srow = V.take(124, 8); s12 = V.take(132, 4)
def srd(n): return sr(n, 4)
DP = 'row_mask:0xf bank_mask:0xf'

PADAT = next((a[6:].split(',') for a in OPT if a.startswith('padat=')), None)
pad_n = [1]
PADFROM = next((a[8:].split(',') for a in OPT if a.startswith('padfrom=')), None)
def stamp(force=False):
    if PADFROM:
        n = pad_n[0]; pad_n[0] += 1
        if str(n) in PADFROM[1:]:
            L = A.newlabel('L_pf')
            A(f's_cmp_lg_u32 s{sLAYER}, {PADFROM[0]}')
            A(f's_cbranch_scc1 {L}')
            A('s_memrealtime s[90:91]')
            A('s_waitcnt lgkmcnt(0)')
            A.label(L)
    if PADAT:
        n = pad_n[0]; pad_n[0] += 1
        if n == int(PADAT[1]):
            L = A.newlabel('L_pad')
            A(f's_cmp_lg_u32 s{sLAYER}, {PADAT[0]}')
            A(f's_cbranch_scc1 {L}e')
            A.label(L)
            A(f's_memrealtime {sr(sSTAMP,2)}')
            A('s_waitcnt lgkmcnt(0)')
            A(f's_sub_u32 s{sSTAMP}, s{sSTAMP}, s90')
            A(f's_cmp_lt_u32 s{sSTAMP}, {PADAT[2]}')
            A(f's_cbranch_scc1 {L}')
            A.label(L + 'e')
    if not STAMPS: return
    n = stamp_n[0]; stamp_n[0] += 1
    if 'minstamp' in OPT and not force: return
    assert n < 32
    A(f'{"s_memtime" if "cyc" in sys.argv else "s_memrealtime"} {sr(sSTAMP,2)}')
    A(f's_lshl_b32 s{sST}, s{sLAYER}, 5')
    A(f's_add_u32 s{sST}, s{sST}, {n}')
    A('s_waitcnt lgkmcnt(0)')
    A(f's_mov_b32 m0, s{sST}')
    A('s_nop 0')
    A(f'v_writelane_b32 v{vST}, s{sSTAMP}, m0')

def mk_srd(d, ptr, size):
    A(f's_mov_b32 s{d}, s{ptr}')
    A(f's_and_b32 s{d+1}, s{ptr+1}, 0xffff')
    A(f's_mov_b32 s{d+2}, {size}')
    A(f's_mov_b32 s{d+3}, 0x20000')

def bf_round(dst, src):
    A(f'v_cvt_pk_bf16_f32 v{dst}, 0, v{src}')

def ln_params(s1, s2, mu, var, m, rs, t):
    A(f'v_mul_f32 v{mu}, {hex(f2u(1/512))}, v{s1}')
    A(f'v_mul_f32 v{var}, {hex(f2u(1/512))}, v{s2}')
    A(f'v_fma_f32 v{var}, -v{mu}, v{mu}, v{var}')
    A(f'v_max_f32 v{var}, 0, v{var}')
    round_params(mu, var, m, rs, t)

def round_params(mu, var, m, rs, t):
    bf_round(t, var)
    A(f'v_add_f32 v{t}, {hex(f2u(1e-5))}, v{t}')
    bf_round(t, t)
    A(f'v_sqrt_f32 v{t}, v{t}')
    bf_round(m, mu)
    bf_round(t, t)
    A(f'v_rcp_f32 v{rs}, v{t}')

def finish():
    if PAD:
        L = A.newlabel('L_pad')
        A.label(L)
        A(f's_memrealtime {sr(sSTAMP,2)}')
        A('s_waitcnt lgkmcnt(0)')
        A(f's_sub_u32 s{sSTAMP}, s{sSTAMP}, s90')
        A(f's_cmp_lt_u32 s{sSTAMP}, {PAD}')
        A(f's_cbranch_scc1 {L}')
    if STAMPS:
        stamp(True)
        A(f's_lshl_b32 s{sT0}, s2, 10')
        A(f's_add_u32 s{sT0}, s{sT0}, {WS_STAMP}')
        A(f'v_lshlrev_b32 v{t0}, 2, v0')
        A(f'buffer_store_dword v{vST}, v{t0}, {srd(SRD_WS)}, s{sT0} offen')
    A('s_endpgm')

def mf(d, a, b, c, k32=True):
    return f'v_mfma_f32_16x16x{32 if k32 else 16}_bf16 {d}, {a}, {b}, {c}'
def emit(x):
    if callable(x): x()
    elif isinstance(x, tuple): A(x[0], tag=x[1])
    else: A(x)


class Defer:
    def __init__(self, out): self.out = out
    def __enter__(self):
        if 'defer' in OPT: self.save = A.lines; A.lines = []
    def __exit__(self, *a):
        if 'defer' not in OPT: return
        for l in A.lines:
            if l.op == 's_nop': continue
            if l.op.startswith(('s_cselect', 's_addc', 's_subb')): self.out[-1].append(l.text)
            else: self.out.append([l.text])
        A.lines = self.save
D1, D2, D3, D4 = [], [], [], []
A.raw(f'{NAME}_kernel:')
A('s_cmp_ge_u32 s2, 256')
A('s_cbranch_scc1 L_end')
PAD = int(next((a[6:] for a in OPT if a.startswith('padto=')), '0'))
if PAD or PADAT: A('s_memrealtime s[90:91]')
if STAMPS: A(f'{"s_memtime" if "cyc" in sys.argv else "s_memrealtime"} s[90:91]')
A(f's_load_dwordx2 {sr(SRD_W,2)}, s[0:1], 8')
A(f's_load_dwordx2 {sr(SRD_X,2)}, s[0:1], 0')
P_X, P_W, P_WO, P_BX, P_WR, P_WG, P_WU, P_WD, P_OUT, P_DBG, P_WS = [P + 2 * i for i in range(11)]
vL = VP.alloc(); vQ = VP.alloc(); vG = VP.alloc(); vL16 = VP.alloc()
t0 = VP.alloc(); t1 = VP.alloc(); t2 = VP.alloc(); t3 = VP.alloc()
vDum = VP.alloc()
vXe = VP.alloc(); vXo = VP.alloc()
vR8 = V.take(93); vWo = V.take(92); vWd = V.alloc(); vSt = V.alloc()
A(f'v_lshrrev_b32 v{t0}, 6, v0')
A(f'v_lshrrev_b32 v{t1}, 3, v0')
A(f'v_readfirstlane_b32 s{sW}, v{t0}')
A(f'v_and_b32 v{t2}, 2, v{t1}')
A(f'v_and_b32 v{t0}, 1, v{t0}')
A(f'v_lshl_or_b32 v{t2}, v{t0}, 2, v{t2}')
A(f'v_and_b32 v{t3}, 7, v0')
A(f'v_xor_b32 v{t2}, v{t2}, v{t3}')
A(f's_bfe_u32 s{sHG}, s2, 0x30003')
A(f's_lshl_b32 s{sT0}, s{sHG}, 7')
A(f'v_lshl_add_u32 v{t2}, v{t2}, 4, s{sT0}')
A(f'v_mul_u32_u24 v{vWd}, 3072, v{t1}')
A(f'v_add_u32 v{vWd}, v{vWd}, v{t2}')
A(f's_mul_i32 s{sWM}, s{sW}, 3072')
A(f's_add_u32 s{sWM}, s{sWM}, {L_W}')
A(f's_mov_b32 s{SRD_W+2}, {512 * 3072}')
A(f's_mov_b32 s{SRD_W+3}, 0x20000')
A(f's_mov_b32 s{SRD_X+2}, {2 * MB}')
A(f's_mov_b32 s{SRD_X+3}, 0x20000')
A(f'v_lshl_add_u32 v{vWo}, v{t1}, 10, v{t2}')
A(f'v_bfe_u32 v{vG}, v0, 4, 2')
A(f'v_and_b32 v{vR8}, 7, v{t1}')
A(f'v_xor_b32 v{t2}, v{t3}, v{vG}')
A(f'v_lshlrev_b32 v{t2}, 4, v{t2}')
A(f'v_lshl_add_u32 v{vXe}, v{vR8}, 11, v{t2}')
A(f'v_xor_b32 v{vXo}, 64, v{vXe}')
A(f'v_add_u32 v{vXo}, {8 * 2048}, v{vXo}')
A(f's_and_b32 s{sSET}, s2, 7')
A(f's_lshr_b32 s{sT0}, s2, 6')
A(f's_lshl_b32 s{sRB}, s{sSET}, 2')
A(f's_add_u32 s{sRB}, s{sRB}, s{sT0}')
A(f's_and_b32 s{sJ0}, s{sRB}, 15')
A(f's_lshl_b32 s{sT4}, s{sJ0}, 17')
A(f's_and_b32 s{sT1}, s{sRB}, 16')
A(f's_lshl_b32 s{sT1}, s{sT1}, 6')
A(f's_add_u32 s{sT4}, s{sT4}, s{sT1}')
A(f's_lshl_b32 s{sAB}, s{sW}, 15')
A(f's_add_u32 s{sAB}, s{sAB}, s{sT4}')
A(f's_lshl_b32 s{sAM}, s{sW}, 11')
A(f's_mov_b32 s{sLAYER}, 0')
if STAMPS: A(f'v_mov_b32 v{vST}, 0')
A('s_waitcnt lgkmcnt(0)')
if STAMPS:
    A(f'v_writelane_b32 v{vST}, s90, 0'); stamp_n[0] = 1
stamp()
def stage_dma(s):
    H = []
    for ksl in range(2):
        ks = 2 * s + ksl
        H.append([f's_add_u32 m0, s{sAM}, {L_A + s * 8192 + ksl * 1024}',
                  f's_add_u32 s{sT3}, s{sAB}, {s * 128}',
                  (f'buffer_load_dwordx4 v{vXo if ksl else vXe}, {srd(SRD_X)}, s{sT3} offen{NTX if s == 0 else ""} lds', f'S{s}'),
                  (f's_sub_u32 m0, s{sWM}, {L_W - L_W15}' if ks == 15 else f's_add_u32 m0, s{sWM}, {SLOT[s % 3] + ksl * 12288}'),
                  f's_mov_b32 s{sT3}, {ks * 98304}'] +
                 [(f'buffer_load_dwordx4 v{vWd}, {srd(SRD_W)}, s{sT3} offen offset:{m * 1024} lds', f'S{s}') for m in range(3)])
    return H
NTX = ' nt' if 'ntx' in OPT else ''; NTP = ''
def halo_dma(j): return [f's_add_u32 m0, s{sT4}, {L_HA + 4 * j * HST}'] + ([f's_add_u32 s{sT5}, s{sT5}, 512'] if j else []) + \
                        [(f'buffer_load_dwordx4 v{vXo}, {srd(SRD_X)}, s{sT5} offen{NTX} lds', 'S2' if j else 'S0')]
g0 = []
for hh in stage_dma(0): g0 += [hh[:3], hh[3:6], hh[6:7], hh[7:8]]
for _ in range(2):
    for x in g0.pop(0): emit(x)
A(f's_load_dwordx16 s[{P}:{P+15}], s[0:1], 0')
A(f's_load_dwordx4 s[{P+16}:{P+19}], s[0:1], 64')
A(f's_load_dwordx2 s[{P+20}:{P+21}], s[0:1], 80')
vTw = V.alloc(); vTo = V.alloc()
A.sprinkle = (g0, 5, emit)
A(f'v_and_b32 v{vL}, 63, v0')
A(f'v_and_b32 v{vQ}, 15, v0')
A(f'v_lshlrev_b32 v{vL16}, 4, v{vL}')
A(f's_lshr_b32 s{sI}, s2, 3')
A(f's_lshr_b32 s{sP}, s{sRB}, 4')
A(f's_lshl_b32 s{sT2}, s{sHG}, 2')
A(f's_add_u32 s{sT2}, s{sT2}, s{sW}')
A(f's_lshl_b32 s{sT2}, s{sT2}, 12')
A(f's_add_u32 s{sT2}, s{sT2}, s{sT4}')
A(f'v_lshrrev_b32 v{t0}, 5, v{vL}')
A(f'v_and_b32 v{t1}, 31, v{vL}')
A(f'v_lshlrev_b32 v{t1}, 4, v{t1}')
A(f'v_lshl_add_u32 v{vSt}, v{t0}, 11, v{t1}')
A(f's_min_u32 s{sT5}, s{sJ0}, 1')
A(f's_xor_b32 s{sFIRST}, s{sT5}, 1')
A(f's_lshl_b32 s{sT5}, s{sT5}, 15')
A(f's_sub_u32 s{sT5}, s{sT4}, s{sT5}')
A(f's_lshl_b32 s{sT1}, s{sW}, 7')
A(f's_add_u32 s{sT5}, s{sT5}, s{sT1}')
A(f's_mul_i32 s{sT4}, s{sW}, {HST}')
A(f's_lshl_b32 s{sJ0}, s{sJ0}, 6')
A(f's_lshl_b32 s{sT0}, s2, 2')
A(f's_add_u32 s{sT0}, s{sT0}, s{sW}')
A(f's_mul_i32 s{sT1}, s{sT0}, {12 * 128}')
A(f's_lshl_b32 s{sT0}, s{sT0}, 9')
A(f'v_lshl_add_u32 v{vTw}, v{vL}, 7, s{sT1}')
A(f'v_lshl_add_u32 v{vTo}, v{vL}, 7, s{sT0}')
A(f's_lshl_b32 s{sU0}, s{sI}, 2')
A(f's_add_u32 s{sU0}, s{sU0}, s{sW}')
A(f's_lshl_b32 s{sT0}, s{sU0}, 10')
A(f'v_lshl_add_u32 v{t3}, v{vQ}, 17, s{sT0}')
A(f'v_cmp_lt_u32 vcc, 15, v{vL}')
A.sprinkle = None
assert not g0
for x in halo_dma(0): emit(x)
A(f's_sub_u32 s{sT0}, 384, s{SRD_W}')
A(f's_and_b32 s{sT0}, s{sT0}, 0x380')
A(f'v_add_u32 v{t0}, s{sT0}, v{t3}')
A(f'v_cndmask_b32 v{vTw}, v{vTw}, v{t0}, vcc')
A(f's_getpc_b64 {sr(sT0,2)}')
A.label('L_pc')
A(f's_lshl_b32 s{sU0}, s{sU0}, 8')
A(f'v_lshl_add_u32 v{t0}, v{vL}, 7, s{sU0}')
A(f'v_min_u32 v{t0}, L_end-L_pc, v{t0}')
A('s_mov_b64 exec, 3')
A(f'global_load_dword v{vDum}, v{t0}, {sr(sT0,2)}', tag='code')
A('s_mov_b64 exec, 0x0fff0fff')
A(f'buffer_load_dword v{vDum}, v{vTw}, {srd(SRD_W)}, 0 offen', tag='touch')
A('s_mov_b64 exec, -1')
A(f'buffer_load_dwordx4 {vr(srow,4)}, v{vSt}, {srd(SRD_X)}, s{sT2} offen{NTX}', tag='srow')
A(f'buffer_load_dwordx4 {vr(srow+4,4)}, v{vSt}, {srd(SRD_X)}, s{sT2} offen offset:512{NTX}', tag='srow')
A('s_waitcnt lgkmcnt(0)')
A(f's_add_u32 s{sT0}, s{P_WS}, {WS_EPOCH}')
A(f's_addc_u32 s{sT1}, s{P_WS+1}, 0')
A(f's_load_dword s{sTAG}, {sr(sT0,2)}, 0')
A(f's_sub_u32 s{sT0}, 384, s{P_WO}')
A(f's_and_b32 s{sT0}, s{sT0}, 0x380')
A(f'v_add_u32 v{t0}, s{sT0}, v{t3}')
A(f'v_cndmask_b32 v{vTo}, v{vTo}, v{t0}, vcc')
V.release(vSt); V.release(vTw)
tp = V.alloc(2, 2)
A(f'v_mov_b32 v{tp}, s{P_WR}')
A(f'v_mov_b32 v{tp+1}, s{P_WR+1}')
A(f'v_lshl_add_u32 v{tp}, v{vL}, 7, v{tp}')
pages = [(P_WS, 2 * MB - 128), (P_WS, 4 * MB), (P_WS, 6 * MB), (P_WS, 10 * MB), (P_WS, 12 * MB), (P_OUT, 0), (P_WG, 0), (P_WU, 0), (P_WD, 0)]
for n, (p_, off) in enumerate(pages):
    if off == 6 * MB:
        A(f's_lshl_b32 s{sT0}, s{sRB}, 3')
        A(f's_add_u32 s{sT0}, s{sT0}, s{sHG}')
        A(f's_lshl_b32 s{sT0}, s{sT0}, 7')
        A(f's_add_u32 s{sT0}, s{sT0}, {WS_ST0}')
        A(f's_add_u32 s{sT0}, s{p_}, s{sT0}')
        A(f's_addc_u32 s{sT1}, s{p_+1}, 0')
        A(f'v_writelane_b32 v{tp}, s{sT0}, {8 + n}')
        A(f'v_writelane_b32 v{tp+1}, s{sT1}, {8 + n}')
    elif off:
        A(f's_add_u32 s{sT0}, s{p_}, {off}')
        A(f's_addc_u32 s{sT1}, s{p_+1}, 0')
        A(f'v_writelane_b32 v{tp}, s{sT0}, {8 + n}')
        A(f'v_writelane_b32 v{tp+1}, s{sT1}, {8 + n}')
    else:
        A(f'v_writelane_b32 v{tp}, s{p_}, {8 + n}')
        A(f'v_writelane_b32 v{tp+1}, s{p_+1}, {8 + n}')
A(f's_add_u32 s{sT0}, s{P_WR}, 1024')
A(f's_cselect_b32 s{sT0}, {hex(((1 << len(pages)) - 1) << 8)}, {0}')
A(f's_cselect_b32 s{sT0}, s{sT0}, {hex((1 << (8 + len(pages))) - 1)}')
A(f's_lshl_b32 s{sT1}, 0x11111111, s{sW}')
A(f's_and_b32 exec_lo, s{sT0}, s{sT1}')
A('s_mov_b32 exec_hi, 0')
A(f'global_load_dword v{vDum}, {vr(tp,2)}, off sc1', tag='touch')
if True:
    A('s_mov_b64 exec, 0x000f000f')
    A(f'global_load_dword v{vDum}, v{vTo}, {sr(P_WO,2)}', tag='touch')
A('s_mov_b64 exec, -1')
V.release(vTo)
V.release(tp, 2)
mk_srd(SRD_WS, P_WS, WS_SIZE)
with Defer(D3):
    mk_srd(SRD_OUT, P_OUT, 2 * MB)
    A(f's_cmp_lt_u32 s{sW}, 2')
    A(f's_cselect_b64 {sr(SRD_T,2)}, {sr(P_WG,2)}, {sr(P_WU,2)}')
    A(f's_and_b32 s{SRD_T+1}, s{SRD_T+1}, 0xffff')
    A(f's_mov_b32 s{SRD_T+2}, {512 * 2752}')
    A(f's_mov_b32 s{SRD_T+3}, 0x20000')
    mk_srd(SRD_U, P_WD, 1376 * 1024)
    A(f's_and_b32 s{sT0}, s{sI}, {31 if "static" in OPT else 15}')
    A(f's_mul_i32 s{sFS}, s{sSET}, 11')
    A(f's_add_u32 s{sFS}, s{sFS}, s{sT0}')
    A(f's_cmp_lt_u32 s{sT0}, 11')
    A(f's_cselect_b32 s{sHASF}, 1, 0')
    A(f's_cmp_lt_u32 s{sFS}, 86')
    A(f's_cselect_b32 s{sHASF}, s{sHASF}, 0')
    vFp = V.alloc(3); vFd = vR8; vFr = VP.alloc(); vFs = VP.alloc()
    A(f's_lshl_b32 s{sT0}, s{sI}, 1')
    A(f's_and_b32 s{sT1}, s{sW}, 1')
    A(f's_add_u32 s{sT0}, s{sT0}, s{sT1}')
    A(f's_mul_i32 s{sT0}, s{sT0}, {8 * 2752}')
    A(f's_mul_i32 s{sT1}, s{sSET}, 352')
    A(f's_add_u32 s{sT0}, s{sT0}, s{sT1}')
    for n in range(3):
        A(f'v_add_u32 v{t0}, {64 * n}, v{vL}')
        A(f'v_mul_u32_u24 v{t1}, 171, v{t0}')
        A(f'v_lshrrev_b32 v{t1}, 12, v{t1}')
        A(f'v_mul_u32_u24 v{t1}, {2752 - 384}, v{t1}')
        A(f'v_lshl_add_u32 v{t0}, v{t0}, 4, s{sT0}')
        A(f'v_add_u32 v{vFp+n}, v{t0}, v{t1}')
    A(f'v_bfe_u32 v{t1}, v{vL}, 2, 2')
    A(f'v_lshl_add_u32 v{t0}, v{vG}, 3, v{t1}')
    A(f'v_mul_u32_u24 v{vFr}, 384, v{t0}')
    A(f'v_and_b32 v{t0}, 3, v{vL}')
    A(f'v_lshl_add_u32 v{vFr}, v{t0}, 3, v{vFr}')
    A(f's_lshl_b32 s{sT0}, s{sW}, 5')
    A(f's_add_u32 s{sT0}, s{sT0}, {L_FT}')
    A(f'v_add_u32 v{vFr}, s{sT0}, v{vFr}')
    A(f'v_lshlrev_b32 v{vFs}, 4, v{t0}')
    A(f'v_lshl_add_u32 v{vFs}, v{t1}, 13, v{vFs}')
    A(f'v_and_b32 v{t0}, 1, v{vG}')
    A(f'v_lshl_add_u32 v{vFs}, v{t0}, 8, v{vFs}')
    A(f'v_lshrrev_b32 v{t0}, 1, v{vG}')
    A(f'v_lshl_add_u32 v{vFs}, v{t0}, 6, v{vFs}')
    A(f's_mul_i32 s{sT0}, s{sSET}, 12')
    A(f's_add_u32 s{sT0}, s{sT0}, s{sW}')
    A(f's_lshl_b32 s{sT0}, s{sT0}, 15')
    A(f's_and_b32 s{sT1}, s{sI}, 15')
    A(f's_lshl_b32 s{sT1}, s{sT1}, 9')
    A(f's_add_u32 s{sT0}, s{sT0}, s{sT1}')
    A(f's_lshr_b32 s{sT1}, s{sI}, 4')
    A(f's_lshl_b32 s{sT1}, s{sT1}, 7')
    A(f's_add_u32 s{sT0}, s{sT0}, s{sT1}')
    A(f's_add_u32 s{sT0}, s{sT0}, {WS_FT}')
    A(f'v_add_u32 v{vFs}, s{sT0}, v{vFs}')
    A(f's_lshl_b32 s{sT1}, s{sFS}, 14')
    A(f's_cmp_eq_u32 s{sHASF}, 1')
    A(f's_cselect_b32 s{sT1}, s{sT1}, 0x40000000')
    A(f's_lshl_b32 s{sT0}, s{sW}, 12')
    A(f's_add_u32 s{sT1}, s{sT1}, s{sT0}')
    A(f'v_add_u32 v{vFd}, s{sT1}, v{vL16}')
aFG, aFD = 192, 224
vOnes = VP.alloc(2, 2)
A(f'v_mov_b32 v{vOnes}, 0x3f803f80')
A(f'v_mov_b32 v{vOnes+1}, 0x3f803f80')
A(f'v_lshrrev_b32 v{t0}, 5, v0')
A(f'v_mul_u32_u24 v{t0}, {HST}, v{t0}')
A(f'v_and_b32 v{t1}, 31, v0')
A(f'v_lshl_add_u32 v{t0}, v{t1}, 2, v{t0}')
A(f'v_add_u32 v{t0}, {L_HA + 1024}, v{t0}')
A(f'ds_write2_b32 v{t0}, v{vOnes}, v{vOnes} offset0:0 offset1:32')
with Defer(D1):
    vQ4 = VP.alloc(); vG16 = VP.alloc(); vGm = VP.alloc()
    A(f'v_lshlrev_b32 v{vQ4}, 2, v{vQ}')
    A(f'v_add_u32 v{vQ4}, {L_TAB}, v{vQ4}')
    A(f'v_lshlrev_b32 v{vG16}, 4, v{vG}')
    A(f'v_add_u32 v{vG16}, {L_TAB}, v{vG16}')
    A(f'v_mov_b32 v{t0}, 0')
    A(f'ds_write2_b32 v{vQ4}, v{t0}, v{t0} offset0:0 offset1:80')
    A(f'v_and_b32 v{t0}, 1, v{vG}')
    A(f'v_lshlrev_b32 v{vGm}, 5, v{t0}')
    A(f'v_lshrrev_b32 v{t1}, 1, v{vG}')
    A(f'v_lshl_add_u32 v{vGm}, v{t1}, 4, v{vGm}')
    vOst = VP.alloc()
    A(f'v_lshlrev_b32 v{vOst}, 14, v{t0}')
    A(f'v_lshl_add_u32 v{vOst}, v{t1}, 8, v{vOst}')
    A(f'v_lshl_add_u32 v{vOst}, v{vQ}, 4, v{vOst}')
    A(f's_lshl_b32 s{sT0}, s{sRB}, 16')
    A(f's_lshl_b32 s{sT1}, s{sHG}, 11')
    A(f's_add_u32 s{sT0}, s{sT0}, s{sT1}')
    A(f's_lshl_b32 s{sT1}, s{sW}, 9')
    A(f's_add_u32 s{sT0}, s{sT0}, s{sT1}')
    A(f'v_add_u32 v{vOst}, s{sT0}, v{vOst}')
vA = VP.alloc(2); vH = VP.alloc(2)
A(f'v_lshrrev_b32 v{t0}, 1, v{vQ}')
A(f'v_xor_b32 v{t0}, v{vG}, v{t0}')
A(f'v_lshlrev_b32 v{t0}, 4, v{t0}')
A(f'v_lshl_add_u32 v{vA}, v{vQ}, 7, v{t0}')
A(f'v_and_b32 v{t1}, 1, v{vQ}')
A(f'v_lshlrev_b32 v{t1}, 7, v{t1}')
A(f'v_lshl_add_u32 v{t1}, v{vG}, 4, v{t1}')
A(f'v_add_u32 v{t1}, {L_HA + 1024}, v{t1}')
A(f'v_add_u32 v{t2}, {L_HA - 1024}, v{vA}')
A(f'v_cmp_lt_u32 vcc, 7, v{vQ}')
A(f'v_cndmask_b32 v{vH}, v{t1}, v{t2}, vcc')
A(f'v_xor_b32 v{vA+1}, 64, v{vA}')
A(f'v_xor_b32 v{vH+1}, 64, v{vH}')
vWr = V.alloc(); vBo = VP.alloc(4)
A(f'v_bfe_u32 v{t0}, v{vL}, 2, 2')
A(f'v_and_b32 v{t2}, 3, v{vL}')
A(f'v_lshlrev_b32 v{t2}, 3, v{t2}')
A(f'v_lshl_add_u32 v{t2}, v{t0}, 7, v{t2}')
A(f'v_lshrrev_b32 v{t0}, 1, v{t0}')
A(f'v_and_b32 v{t1}, 1, v{vG}')
A(f'v_lshl_or_b32 v{t0}, v{t1}, 1, v{t0}')
A(f'v_lshl_add_u32 v{t2}, v{t0}, 5, v{t2}')
A(f'v_lshl_add_u32 v{vBo}, v{vG}, 10, v{t2}')
A(f'v_add_u32 v{vBo}, {L_WO}, v{vBo}')
assert L_WO % 128 == 0 and L_W % 128 == 0
for t in range(1, 4): A(f'v_xor_b32 v{vBo+t}, {t << 5}, v{vBo}')
A(f's_lshl_b32 s{sT0}, s{sW}, 5')
A(f'v_xor_b32 v{t2}, s{sT0}, v{t2}')
A(f'v_mul_u32_u24 v{vWr}, 3072, v{vG}')
vWr15 = V.alloc()
A(f'v_add_u32 v{vWr15}, v{vWr}, v{t2}')
A(f'v_add_u32 v{vWr}, {L_W}, v{vWr15}')
assert L_W15 == 0
with Defer(D1):
    A(f's_lshl_b32 s{sOM}, s{sW}, 10')
    A(f's_add_u32 s{sOM}, s{sOM}, {L_WO}')
with Defer(D4):
    vBP = VP.alloc(4, 2); vBC = VP.alloc(4, 2); vBP0 = VP.alloc(4, 2); vMP = VP.alloc(2)
    A(f'v_lshlrev_b32 v{t0}, 2, v{vG}')
    A(f'v_sub_u32 v{t0}, v{vQ}, v{t0}')
    A(f'v_mov_b32 v{t2}, 0xff800000')
    A(f's_cmp_eq_u32 s{sFIRST}, 1')
    A(f's_cselect_b64 {sr(sM0,2)}, 0, -1')
    for r in range(4):
        A(f'v_add_u32 v{t1}, {-r}, v{t0}')
        A(f'v_cmp_lt_u32 vcc, 7, v{t1}')
        A(f'v_cndmask_b32 v{vBC+r}, 0, v{t2}, vcc')
        A(f'v_cmp_lt_i32 vcc, -9, v{t1}')
        A(f'v_cndmask_b32 v{vBP+r}, 0, v{t2}, vcc')
        A(f'v_cndmask_b32 v{vBP0+r}, v{t2}, v{vBP+r}, {sr(sM0,2)}')
        A(f'v_mov_b32 v{t3}, {hex(0xffff0000 if r & 1 else 0xffff)}')
        if r & 1:
            A(f'v_cndmask_b32 v{t3}, v{t3}, 0, vcc')
            A(f'v_or_b32 v{vMP + (r >> 1)}, v{vMP + (r >> 1)}, v{t3}')
        else:
            A(f'v_cndmask_b32 v{vMP + (r >> 1)}, v{t3}, 0, vcc')
    A(f's_mov_b32 s{sM0}, 0xaaaaaaaa')
    A(f's_mov_b32 s{sM0+1}, 0xaaaaaaaa')
    A(f's_mov_b32 s{sM1}, 0xcccccccc')
    A(f's_mov_b32 s{sM1+1}, 0xcccccccc')
with Defer(D2):
    vS0 = V.alloc(); vS0w = V.alloc(); vPf = V.alloc(); vS4 = V.alloc(4, 2)
    A(f's_lshl_b32 s{sT0}, s{sRB}, 10')
    A(f's_add_u32 s{sT0}, s{sT0}, {WS_ST0 - 128}')
    A(f'v_lshl_add_u32 v{vS0}, v0, 4, s{sT0}')
    A(f's_lshl_b32 s{sT0}, s{sSET}, 12')
    A(f's_add_u32 s{sT0}, s{sT0}, {WS_ST0}')
    A(f'v_and_b32 v{t0}, 31, v{vL}')
    A(f'v_lshl_add_u32 v{t0}, v{t0}, 7, s{sT0}')
    A(f'v_cmp_le_u32 vcc, 128, v0')
    A(f'v_cndmask_b32 v{vS0}, v{vS0}, v{t0}, vcc')
    A(f'v_lshlrev_b32 v{vS0w}, 2, v0')
    A(f'v_add_u32 v{vS0w}, {L_TAB + 32}, v{vS0w}')
    vPf2 = V.alloc()
    A(f's_mul_i32 s{sT0}, s2, 5120')
    A(f's_add_u32 s{sT0}, s{sT0}, {WS_SENT}')
    A(f'v_lshl_add_u32 v{vPf}, v0, 4, s{sT0}')
    A(f's_lshl_b32 s{sT1}, s{sW}, 8')
    A(f's_add_u32 s{sT0}, s{sT0}, s{sT1}')
    A(f's_add_u32 s{sT0}, s{sT0}, 4096')
    A(f'v_lshl_add_u32 v{t0}, v{vQ}, 4, s{sT0}')
    A(f's_lshl_b32 s{sSTB}, s{sRB}, 2')
    A(f's_add_u32 s{sSTB}, s{sSTB}, s{sW}')
    A(f'v_mov_b32 v{t1}, 0x40000000')
    A(f'v_cmp_gt_u32 vcc, 16, v{vL}')
    A(f'v_cndmask_b32 v{vPf2}, v{t1}, v{t0}, vcc')
    vTs = V.alloc()
    A(f'v_mov_b32 v{vTs}, v{t1}')
    if 'oremote' not in OPT:
        A(f's_lshl_b32 s{sT0}, s{sI}, 2')
        A(f's_add_u32 s{sT0}, s{sT0}, s{sW}')
        A(f's_lshl_b32 s{sT0}, s{sT0}, 11')
        A(f's_lshl_b32 s{sT1}, s{sSET}, 18')
        A(f's_add_u32 s{sT0}, s{sT0}, s{sT1}')
        A(f'v_lshl_add_u32 v{t0}, v{vL}, 7, s{sT0}')
        A(f'v_cndmask_b32 v{vTs}, v{t1}, v{t0}, vcc')
    A(f's_lshl_b32 s{sT0}, s{sSTB}, 11')
    A(f's_lshl_b32 s{sT1}, s{sHG}, 8')
    A(f's_add_u32 s{sT0}, s{sT0}, s{sT1}')
    for n, off in enumerate((0, 128, 1 << 18, (1 << 18) + 128)):
        A(f's_add_u32 s{sT1}, s{sT0}, {WS_ST + off}')
        A(f'v_writelane_b32 v{vTs}, s{sT1}, {16 + n}')
    A(f's_lshl_b32 s{sT0}, s{sRB}, 9')
    for n, off in enumerate((0, 128, 1 << 14, (1 << 14) + 128)):
        A(f's_add_u32 s{sT1}, s{sT0}, {WS_FL + off}')
        A(f'v_writelane_b32 v{vTs}, s{sT1}, {20 + n}')
    for n, off in enumerate((0, 128, 256)):
        A(f's_add_u32 s{sT1}, s{sT0}, {WS_X1F + off}')
        A(f'v_writelane_b32 v{vTs}, s{sT1}, {27 + n}')
    for r in range(4): A(f'v_mov_b32 v{vS4+r}, -1')
if 'tsearly' in OPT: A(f'buffer_load_dword v{vDum}, v{vTs}, {srd(SRD_WS)}, 0 offen sc1', tag='to')
A(f's_mov_b64 s[70:71], {sr(P_WO,2)}')
A(f's_mov_b64 s[98:99], {sr(P_WR,2)}')
P_WO, P_WR = 70, 98
(aFLp, aFLs, aSTp, aSTs, aKEYs, aKEYp, aCANDs, aCANDb, aYPs, aYPb, aXs, aX1Fp, aX1Fs, aFTFs, aFTFp, aFT, aROW, aOUT) = range(28, 46)
A(f's_lshl_b32 s{aFLp}, s{sRB}, 9')
A(f's_add_u32 s{aFLp}, s{aFLp}, {WS_FL}')
tg = VP.alloc(2, 2)
vRow = VP.alloc(); vXs = VP.alloc(); vStash = VP.alloc(); vQ16 = VP.alloc(); vL8 = VP.alloc(); vO4 = VP.alloc(2)
A(f's_lshl_b32 s{sT2}, s{sHG}, 2')
A(f's_add_u32 s{sT2}, s{sT2}, s{sW}')
A(f's_lshl_b32 s{sT2}, s{sT2}, 3')
A(f's_add_u32 s{aFLs}, s{sT2}, s{aFLp}')
A(f'v_and_b32 v{vL8}, 31, v{vL}')
A(f'v_lshlrev_b32 v{vL8}, 3, v{vL8}')
A(f's_lshl_b32 s{sT0}, s{sSTB}, 14')
A(f'v_add_u32 v{vO4}, s{sT0}, v{vL16}')
A(f'v_add_u32 v{vO4+1}, 8192, v{vO4}')
A(f's_lshl_b32 s{sT1}, s{sHG}, 7')
A(f's_add_u32 s{aXs}, s{sT0}, s{sT1}')
A(f's_add_u32 s{aOUT}, s{sAB}, s{sT1}')
A(f's_lshl_b32 s{aCANDs}, s{sRB}, 13')
A(f's_add_u32 s{aCANDs}, s{aCANDs}, s{sT1}')
A(f's_add_u32 s{aCANDs}, s{aCANDs}, {WS_CAND}')
A(f's_mov_b32 s{aCANDb}, {WS_CAND}')
A(f's_lshl_b32 s{aSTp}, s{sSTB}, 11')
A(f's_add_u32 s{aSTp}, s{aSTp}, {WS_ST}')
A(f's_lshl_b32 s{sT1}, s{sHG}, 8')
A(f's_add_u32 s{aSTs}, s{aSTp}, s{sT1}')
A(f's_add_u32 s{aYPb}, s{sT1}, {WS_YP}')
A(f's_lshl_b32 s{aYPs}, s{sFS}, 12')
A(f's_add_u32 s{aYPs}, s{aYPs}, {WS_YP}')
A(f's_lshl_b32 s{aKEYs}, s{sHG}, 7')
A(f's_add_u32 s{aKEYs}, s{aKEYs}, s{sSTB}')
A(f's_lshl_b32 s{aKEYs}, s{aKEYs}, 3')
A(f's_add_u32 s{aKEYs}, s{aKEYs}, {WS_KEYS}')
A(f's_lshl_b32 s{aKEYp}, s{sSET}, 10')
A(f's_add_u32 s{aKEYp}, s{aKEYp}, {WS_KEYS}')
A(f's_add_u32 s{aX1Fp}, s{aFLp}, {WS_X1F - WS_FL}')
A(f's_lshl_b32 s{sT2}, s{sW}, 3')
A(f's_add_u32 s{sT2}, s{sT2}, s{sHG}')
A(f's_lshl_b32 s{sT2}, s{sT2}, 3')
A(f's_add_u32 s{aX1Fs}, s{aX1Fp}, s{sT2}')
A(f's_and_b32 s{sT2}, s{sI}, 15')
A(f's_lshl_b32 s{sT2}, s{sT2}, 2')
A(f's_add_u32 s{sT2}, s{sT2}, s{sW}')
A(f's_mul_i32 s{sT1}, s{sSET}, 48')
A(f's_add_u32 s{sT1}, s{sT1}, s{sT2}')
A(f's_lshl_b32 s{aFT}, s{sT1}, 13')
A(f's_add_u32 s{aFT}, s{aFT}, {WS_FT}')
A(f's_lshl_b32 s{aROW}, s{sSTB}, 4')
A(f'v_lshl_add_u32 v{vRow}, v{vQ}, 10, v{vGm}')
A(f'v_mov_b32 v{vXs}, v{vRow}')
A(f'v_lshlrev_b32 v{vQ16}, 4, v{vQ}')
A(f's_lshl_b32 s{sT2}, s{sW}, 9')
A(f's_add_u32 s{sT2}, s{sT2}, {L_CS}')
A(f'v_add_u32 v{vStash}, s{sT2}, v{vGm}')
gr = V.alloc(4, 2)
A(f'v_mov_b32 v{s12}, 0')
A(f'v_mov_b32 v{s12+1}, 0')
A(f's_getreg_b32 s{sTAGB}, hwreg(HW_REG_XCC_ID)')
A(f's_and_b32 s{sTAGB}, s{sTAGB}, 15')
A(f's_lshl_b32 s{sT2}, s{sRB}, 3')
A(f's_add_u32 s{sT2}, s{sT2}, s{sHG}')
A(f's_lshl_b32 s{sT2}, s{sT2}, 2')
A(f's_add_u32 s{sT2}, s{sT2}, s{sW}')
A(f's_lshl_b32 s{sT2}, s{sT2}, 5')
A(f's_add_u32 s{sT2}, s{sT2}, {WS_ST0}')
A(f'v_lshrrev_b32 v{t1}, 1, v{vL}')
g1 = []; g2 = []
for hh in stage_dma(1): g1 += [hh[:3], hh[3:6], hh[6:7], hh[7:8]]
for hh in stage_dma(2): g2 += [hh[:3], hh[3:6], hh[6:7], hh[7:8]]
g2.append(halo_dma(1))
def dots():
    A.wait_vm('srow')
    for j in range(8):
        A(f'v_dot2c_f32_bf16 v{s12}, v{srow+j}, v{vOnes}')
        A(f'v_dot2c_f32_bf16 v{s12+1}, v{srow+j}, v{srow+j}')
if 's0old' in OPT:
    A.wait_vm('srow', 'lgkmcnt(0)')
    stamp()
    A.sprinkle = (g1, 2 if 'stlate' in OPT else 4, emit)
    for j in range(8):
        A(f'v_dot2c_f32_bf16 v{s12}, v{srow+j}, v{vOnes}')
        A(f'v_dot2c_f32_bf16 v{s12+1}, v{srow+j}, v{srow+j}')
else:
    OPT.add('stlate')
    A.wait_vm('S0')
    stamp()
if 'stlate' in OPT:
    A.sprinkle = None
    for g_ in g1:
        for x in g_: emit(x)
    save = A.lines; vmsave = list(A.vm); A.lines = []
    A(f's_mul_i32 s{sTAG}, s{sTAG}, 0x9e3779b1')
    A(f's_add_u32 s{sTAG}, s{sTAG}, 0x7f4a7c15')
    A(f's_mul_i32 s{sT0}, s{sTAG}, 0x85ebca6b')
    for sh in (8, 4, 2, 1):
        for r in range(2): A(f'v_add_f32_dpp v{s12+r}, v{s12+r}, v{s12+r} row_ror:{sh} {DP}')
        if sh == 8: A(f's_brev_b32 s{sT0}, s{sT0}')
        if sh == 4: A(f's_and_b32 s{sT0}, s{sT0}, 0xfffffff0')
        if sh == 2: A(f's_or_b32 s{sTAGB}, s{sTAGB}, s{sT0}')
    for r in range(2): A(f'v_mov_b32 v{s12+2+r}, v{s12+r}')
    A(f'v_mov_b32 v{gr+2}, s{sTAG}')
    for r in range(2): A(f'v_permlane16_swap_b32 v{s12+r}, v{s12+2+r}')
    for r in range(2): A(f'v_add_f32 v{s12+r}, v{s12+r}, v{s12+2+r}')
    ln_params(s12, s12 + 1, s12 + 2, s12 + 3, gr, gr + 1, t0)
    A(f'v_xor_b32 v{gr}, 0x80000000, v{gr}')
    A(f'v_mov_b32 v{gr+3}, s{sTAGB}')
    A('s_mov_b32 exec_lo, 1')
    A('s_mov_b32 exec_hi, 1')
    A(f'buffer_store_dwordx4 {vr(gr,4)}, v{t1}, {srd(SRD_WS)}, s{sT2} offen sc1', tag='st0')
    A('s_mov_b64 exec, -1')
    st_lines = [l.text for l in A.lines if l.op != 's_nop']; A.lines = save; A.vm = vmsave
else:
    A(f's_mul_i32 s{sTAG}, s{sTAG}, 0x9e3779b1')
    A(f's_add_u32 s{sTAG}, s{sTAG}, 0x7f4a7c15')
    A(f's_mul_i32 s{sT0}, s{sTAG}, 0x85ebca6b')
    for sh in (8, 4, 2, 1):
        for r in range(2): A(f'v_add_f32_dpp v{s12+r}, v{s12+r}, v{s12+r} row_ror:{sh} {DP}')
        if sh == 8: A(f's_brev_b32 s{sT0}, s{sT0}')
        if sh == 4: A(f's_and_b32 s{sT0}, s{sT0}, 0xfffffff0')
        if sh == 2: A(f's_or_b32 s{sTAGB}, s{sTAGB}, s{sT0}')
    for r in range(2): A(f'v_mov_b32 v{s12+2+r}, v{s12+r}')
    A(f'v_mov_b32 v{gr+2}, s{sTAG}')
    for r in range(2): A(f'v_permlane16_swap_b32 v{s12+r}, v{s12+2+r}')
    for r in range(2): A(f'v_add_f32 v{s12+r}, v{s12+r}, v{s12+2+r}')
    ln_params(s12, s12 + 1, s12 + 2, s12 + 3, gr, gr + 1, t0)
    A(f'v_xor_b32 v{gr}, 0x80000000, v{gr}')
    A(f'v_mov_b32 v{gr+3}, s{sTAGB}')
    A.sprinkle = None
    assert not g1
    A('s_mov_b32 exec_lo, 1')
    A('s_mov_b32 exec_hi, 1')
    A(f'buffer_store_dwordx4 {vr(gr,4)}, v{t1}, {srd(SRD_WS)}, s{sT2} offen sc1', tag='st0')
    A('s_mov_b64 exec, -1')

accQ = V.take(196, 20); accK = V.take(216, 20); accV = V.take(236, 20)
xP = VP.alloc(8, 2)
aux = VP.alloc(8, 2)
vSW = VP.alloc()
def aW(ks, m): return (ks * 3 + m) * 4
def x_reads(ks, b):
    u = ks & 1; kc = ks >> 1
    return [f'ds_read_b128 {vr(b, 4)}, v{vH+u} offset:{kc * HST}'] + \
           [f'ds_read_b128 {vr(b + 4 + 4 * T, 4)}, v{vA+u} offset:{(kc * 8 + 2 * T) * 1024}' for T in range(4)]
def p1_reads(ks):
    so = SLOT[(ks >> 1) % 3] + (ks & 1) * 12288
    if ks == 15: so = 0
    W_ = [f'ds_read_b64_tr_b16 {ar(aW(ks, m) + 2 * h, 2)}, v{vWr15 if ks == 15 else vWr} offset:{so + m * 1024 + h * 512}' for m in range(3) for h in range(2)]
    X_ = x_reads(ks, fr[ks & 1])
    return W_[:2] + X_[:1] + W_[2:] + X_[1:]
def p1_mfmas(ks):
    b = fr[ks & 1]; L = []
    c = lambda x: '0' if ks == 0 else vr(x, 4)
    for T in range(5):
        X = vr(b + 4 * T, 4)
        L.append(mf(vr(accQ + 4 * T, 4), ar(aW(ks, 0), 4), X, c(accQ + 4 * T)))
        L.append(mf(vr(accK + 4 * T, 4), ar(aW(ks, 1), 4), X, c(accK + 4 * T)))
        L.append(mf(vr(accV + 4 * T, 4), X, ar(aW(ks, 2), 4), c(accV + 4 * T)))
    return L
def wo_dma(kss):
    L = []
    for ks in kss:
        L += [f's_add_u32 m0, s{sOM}, {wo_off(ks)}', f's_mov_b32 s{sT3}, {ks * 32768}',
              (f'buffer_load_dwordx4 v{vWo}, {srd(SRD_W)}, s{sT3} offen lds', 'woa' if ks < 4 else 'wo')]
    return L
def hello():
    A('s_mov_b64 exec, 1')
    A(f'buffer_store_dwordx2 {vr(gr+2,2)}, v{vPf}, {srd(SRD_WS)}, s{sU2} offen sc1')
    A('s_mov_b64 exec, -1')
def srd_lines(d, ptr, size):
    return [f's_mov_b32 s{d}, s{ptr}', f's_and_b32 s{d+1}, s{ptr+1}, 0xffff', f's_mov_b32 s{d+2}, {size}', f's_mov_b32 s{d+3}, 0x20000']
s0g = V.alloc(4, 2)
extra = {ks: [] for ks in range(16)}
for g_ in g2: extra[0] += g_
for s in range(5):
    H = stage_dma(s + 3); extra[2 * s + 1] += H[0]; extra[2 * s + 2] += H[1]
extra[11] += [(f'buffer_store_dwordx4 {vr(vS4,4)}, v{vPf}, {srd(SRD_WS)}, 0 offen sc1{NTP}', 'pre'),
              (f'buffer_store_dwordx4 {vr(vS4,4)}, v{vPf2}, {srd(SRD_WS)}, 0 offen sc1{NTP}', 'pre')]
extra[11] = [(f'buffer_load_dwordx4 {vr(s0g,4)}, v{vS0}, {srd(SRD_WS)}, 0 offen sc1', 's0g')] + extra[11]
extra[12] += [f's_lshl_b32 s{sU2}, s{sSET}, 9', f's_add_u32 s{sU2}, s{sU2}, s{sI}', f's_lshl_b32 s{sU2}, s{sU2}, 3',
              f's_add_u32 s{sU2}, s{sU2}, {WS_HELLO}', f's_lshl_b32 s{sT0}, s{sW}, 30', f'v_mov_b32 v{vPf}, s{sT0}']
if 'stlate' in OPT:
    tailn = st_lines[-4:]; st_lines = st_lines[:-4]
    nh = len(st_lines) // 2
    valu_extra = {1: st_lines[:nh], 2: st_lines[nh:]}
    extra[3] = [lambda: [A(x) for x in tailn]] + extra[3]
else: valu_extra = {}
vRs = V.alloc(2)
def res_read(early):
    def f():
        L = A.newlabel('L_res')
        A(f's_cmp_lt_u32 s{sHG}, 5')
        A(f's_cbranch_scc{0 if early else 1} {L}')
        A(f'ds_read_b128 {vr(xP,4)}, v{vRs}')
        A(f'ds_read_b128 {vr(xP+4,4)}, v{vRs+1}')
        A.label(L)
    return f
rs_lines = [f'v_lshlrev_b32 v{t0}, 3, v{vQ}', f'v_and_b32 v{t0}, 0x70, v{t0}', f'v_xor_b32 v{t0}, v{t0}, v{vGm}',
            f'v_lshl_add_u32 v{t0}, v{vQ}, 7, v{t0}', f's_lshl_b32 s{sT0}, s{sHG}, 13', f's_add_u32 s{sT0}, s{sT0}, s{sAM}',
            f'v_add_u32 v{vRs}, s{sT0}, v{t0}', f'v_xor_b32 v{vRs+1}, 64, v{vRs}']
grp2fn = lambda g_: (lambda: [A(x) for x in g_])
DD = [grp2fn(g_) for g_ in D1 + [[x] for x in rs_lines] + D2 + D3]
per = -(-len(DD) // 7)
for k_ in range(7): valu_extra[4 + k_] = DD[k_ * per:(k_ + 1) * per]
DD = [grp2fn(g_) for g_ in D4]
valu_extra[11] = DD[:len(DD) // 2]; valu_extra[12] = DD[len(DD) // 2:]
extra[8] += [res_read(True)]
NTF = '' if 'nont' in OPT else ' nt'
NTD = ''
ft_dma = []
for n in range(3):
    ft_dma += [f's_sub_u32 m0, s{sWM}, {L_W - L_FT - n * 1024}', (f'buffer_load_dwordx4 v{vFp+n}, {srd(SRD_T)}, 0 offen{NTF} lds', 'ft')]
wd_dma = [f's_lshl_b32 s{sT0}, s{sW}, 12', f's_add_u32 m0, s{sT0}, {L_WD}'] + \
         [(f'buffer_load_dwordx4 v{vFd}, {srd(SRD_U)}, 0 offen offset:{f * 1024}{NTD} lds', 'wd') for f in range(4)]
extra[11] += srd_lines(SRD_W, P_WO, 512 * 1024)
aux_ld = [f's_lshl_b32 s{sT0}, s{sHG}, 7', f'buffer_load_dwordx4 {vr(aux,4)}, v{vGm}, {srd(SRD_X)}, s{sT0} offen',
          f'buffer_load_dwordx4 {vr(aux+4,4)}, v{vGm}, {srd(SRD_X)}, s{sT0} offen offset:64',
          f'buffer_load_dwordx4 {vr(wra,4)}, v{vL16}, {srd(SRD_X)}, 0 offen']
wd_late = []
if not OPT & {'a0', 'a2', 'a3'}:
    extra[11] += wo_dma([0]); extra[12] += wo_dma([1, 2, 3, 4]); extra[13] += wo_dma([5, 12, 13]) + aux_ld; extra[14] += wo_dma([14]) + ft_dma; extra[15] += wd_dma
    wo_rest = [15, 6, 7, 8, 9, 10, 11]
elif 'a2' in OPT:
    extra[11] += wo_dma([0]); extra[12] += wo_dma([1, 2, 3, 4]); extra[13] += wo_dma([5, 12, 13, 14]); extra[14] += aux_ld + wo_dma([15]) + ft_dma; extra[15] += wd_dma
    wo_rest = [6, 7, 8, 9, 10, 11]
elif 'a3' in OPT:
    extra[11] += wo_dma([0]); extra[12] += wo_dma([1, 2, 3, 4]); extra[13] += wo_dma([5, 12, 13, 14]); extra[14] += wo_dma([15, 6, 7, 8]); extra[15] += aux_ld + ft_dma
    wo_rest = [9, 10, 11]
else:
    extra[11] += wo_dma([0]); extra[12] += wo_dma([1, 2, 3, 4]); extra[13] += wo_dma([5, 12, 13, 14]); extra[14] += wo_dma([15]) + ft_dma; extra[15] += wd_dma
    wo_rest = [6, 7, 8, 9, 10, 11]
extra[12] += srd_lines(SRD_X, P_WR, 1024)
TSM = next((' ' + a[4:].replace('+', ' ') for a in OPT if a.startswith('tsm=')), ' sc1')
KTS = int(next((a[4:] for a in OPT if a.startswith('kts=')), '15'))
if 'tsearly' not in OPT: extra[KTS] += [(f'buffer_load_dword v{vDum}, v{vTs}, {srd(SRD_WS)}, 0 offen{TSM}', 'to')]
extra[15] += [res_read(False)]
csQ = VP.alloc(4, 2); csK = VP.alloc(4, 2); csV = VP.alloc(2, 2)
far2 = []
def s0_check():
    A.wait_vm('s0g')
    A.label('L_s0')
    A(f'v_xor_b32 v{t0}, s{sTAG}, v{s0g+2}')
    A(f'v_xor_b32 v{t1}, s{sTAGB}, v{s0g+3}')
    A(f'v_lshrrev_b32 v{t3}, 4, v{t1}')
    A(f'v_or_b32 v{t0}, v{t0}, v{t3}')
    A(f'v_cmp_ne_u32 vcc, 0, v{t0}')
    A(f's_and_b64 vcc, vcc, {sr(sU0,2)}')
    A('s_cbranch_vccnz L_s0r')
    A.label('L_s0ok')
    A(f's_mov_b64 exec, {sr(sT4,2)}')
    A(f'ds_write2_b32 v{vS0w}, v{s0g}, v{s0g+1} offset0:0 offset1:80')
    A('s_mov_b64 exec, -1')
    A(f'ds_write_b32 v{vS0w}, v{t1} offset:{640 - 32}')
far2 += ['L_s0r:', f'buffer_load_dwordx4 {vr(s0g,4)}, v{vS0}, {srd(SRD_WS)}, 0 offen sc1', 's_waitcnt vmcnt(0)',
         f's_sub_u32 s{sGUARD}, s{sGUARD}, 1', 's_cbranch_scc0 L_s0', 's_branch L_s0ok']
def s0_masks():
    A(f's_cmp_eq_u32 s{sW}, 2')
    A(f's_cselect_b64 {sr(sU0,2)}, -1, {sr(sT4,2)}')
valu_extra[13] = [f's_lshl_b32 s{sT1}, s{sFIRST}, 3', f'v_subrev_u32 v{t2}, s{sT1}, v0', f's_sub_u32 s{sT1}, 72, s{sT1}',
                  f'v_cmp_gt_u32 {sr(sT4,2)}, s{sT1}, v{t2}', f's_mov_b32 s{sGUARD}, {1 << 21}', f'v_lshlrev_b32 v{t2}, 2, v{vL}',
                  f'v_add_u32 v{t2}, {L_CS + 512}, v{t2}', s0_masks]
extra[14] = [s0_check] + extra[14]
V.release(srow, 8); V.release(s12, 4)
rp = V.alloc(10, 2); vm = fr[0]
tab_reads = [f'ds_read_b32 v{t1}, v{t2}']
for T in range(5):
    tab_reads += [f'ds_read2_b32 {vr(rp + 2 * T, 2)}, v{vQ4} offset0:{16 * T} offset1:{80 + 16 * T}',
                  f'ds_read_b128 {vr(vm + 4 * T, 4)}, v{vG16} offset:{64 * T}',
                  f'ds_read_b128 {vr(vc + 4 * T, 4)}, v{vG16} offset:{320 + 64 * T}']
cs_lines = []
for r in range(4):
    cs_lines += [f'v_mov_b32_dpp v{csQ+r}, v{accQ+r} row_newbcast:0 {DP}', f'v_mov_b32_dpp v{csK+r}, v{accK+r} row_newbcast:0 {DP}']
cs_lines = [f'v_mov_b32 v{csV}, v{accV}', f'v_mov_b32 v{csV+1}, v{accV}'] + cs_lines + [f'v_permlane32_swap_b32 v{csV}, v{csV+1}']
def drop(L, key): return [x for x in L if not (isinstance(x, tuple) and x[1] == key)]
for key in ('pre', 'wo', 'ft', 'wd', 'to'):
    if 'x' + key in OPT:
        for ks in extra: extra[ks] = drop(extra[ks], key)
if 's0old' in OPT: A.wait_vm('S0', 'lgkmcnt(0)')
else: A('s_waitcnt lgkmcnt(0)')
A('s_barrier')
stamp()
for x in p1_reads(0): A(x)
for ks in range(16):
    A('s_waitcnt lgkmcnt(0)')
    if 'loopstamps' in OPT and ks % 2 == 0 and ks: stamp()
    M = p1_mfmas(ks)
    if ks == 1 and 's0old' not in OPT: dots()
    A(M[0])
    if ks & 1 and ks < 15:
        if not ('nodma' in OPT and ks > 1): A.wait_vm(f'S{(ks + 1) >> 1}')
        if 'nobar' not in OPT: A('s_barrier')
    if ks == 15:
        A.wait_vm('woa')
        A('s_barrier')
    rd = p1_reads(ks + 1) if ks < 15 else tab_reads
    if 'nord' in OPT: rd = []
    if 'notr' in OPT: rd = [x for x in rd if '_tr_' not in x]
    if 'nob128' in OPT: rd = [x for x in rd if '_tr_' in x]
    ex = list(extra[ks])
    if 'nodma' in OPT: ex = [x for x in ex if not (isinstance(x, tuple) and x[0].endswith(' lds'))]
    isvm = lambda x: callable(x) or (x[0] if isinstance(x, tuple) else x).startswith('buffer_')
    nvm = sum(map(isvm, ex)); gaps = len(M) - 1
    slots = [int((j + 0.5) * gaps / nvm) for j in range(nvm)] if nvm else []
    groups = []; cur = []
    for x in ex:
        cur.append(x)
        if isvm(x): groups.append(cur); cur = []
    tail_ = cur
    place = {gi: [] for gi in range(gaps)}
    prev = -1
    for j, grp in enumerate(groups):
        lo = prev + 1 if prev + 1 <= slots[j] else slots[j]
        pre = grp[:-1]
        span = slots[j] - lo + 1
        for n_, x in enumerate(pre): place[lo + n_ * span // max(1, len(pre))].append(x)
        place[slots[j]].append(grp[-1]); prev = slots[j]
    lo = min(prev + 1, gaps - 1); span = gaps - lo
    for n_, x in enumerate(tail_): place[lo + n_ * span // len(tail_)].append(x)
    for mi, m in enumerate(M[1:]):
        A(m)
        if rd: A(rd.pop(0))
        for x in place[mi]: emit(x)
        ve = valu_extra.get(ks, [])
        for _ in range(-(-len(ve) // (gaps - mi))): emit(ve.pop(0))
        if ks == 15:
            if mi < 2: A(rd.pop(0))
            if mi >= 7:
                for _ in range(2):
                    if cs_lines: A(cs_lines.pop(0))
assert not cs_lines and not tab_reads
stamp()
V.release(fr[1], 20)
V.release(vWr); V.release(vWr15); V.release(vRs, 2); V.release(vWd); V.release(vPf2); V.release(vTs); V.release(vS4, 4)
V.release(s0g, 4); V.release(vS0); V.release(vS0w)
epi_ins = [[hello]] + ([] if 'a0' not in OPT else [[]] * 8 + [aux_ld[:2], aux_ld[2:3], aux_ld[3:]])
if 'a3' in OPT: epi_ins = [wd_dma[:4], wd_dma[4:]] + epi_ins
SPIN = 1 << 21
def fine():
    if 'fine' in OPT: stamp()
def poll(issue, check, name):
    L = A.newlabel('L_poll'); E = A.newlabel('L_ok')
    A(f's_mov_b32 s{sGUARD}, {SPIN}')
    A.label(L)
    issue()
    A.wait_vm0()
    check()
    A(f's_cbranch_vccz {E}')
    backoff(name)
    A(f's_sub_u32 s{sGUARD}, s{sGUARD}, 1')
    A(f's_cbranch_scc0 {L}')
    A.label(E)
def backoff(name):
    n = int(next((x.split('=')[1] for x in OPT if x.startswith('sl' + name + '=')), next((x[3:] for x in OPT if x.startswith('sl=')), '0')))
    if n: A(f's_sleep {n}')
def repoll(issue, check, name):
    L = A.newlabel('L_rp'); E = A.newlabel('L_ok')
    A(f's_mov_b32 s{sGUARD}, {SPIN}')
    A.label(L)
    A.wait_vm0()
    check()
    A(f's_cbranch_vccz {E}')
    backoff(name)
    issue(); A.vm = []
    A(f's_sub_u32 s{sGUARD}, s{sGUARD}, 1')
    A(f's_cbranch_scc0 {L}')
    A.label(E)
PD = int(next((x[3:] for x in OPT if x.startswith('pd=')), '3'))
def ppoll(issue, check, nld, depth=None, pre=0, gap=7):
    D = depth or PD
    L = A.newlabel('L_pp'); E = A.newlabel('L_ok')
    A(f's_mov_b32 s{sGUARD}, {SPIN}')
    for j in range(pre, D):
        if j and gap: A(f's_nop {gap}'); A(f's_nop {gap}'); A(f's_nop {gap}')
        issue(j)
    A.label(L)
    for j in range(D):
        A(f's_waitcnt vmcnt({(D - 1) * nld})')
        check(j)
        A(f's_cbranch_vccz {E}')
        issue(j)
    A(f's_sub_u32 s{sGUARD}, s{sGUARD}, 1')
    A(f's_cbranch_scc0 {L}')
    A.label(E)
    A.vm = []
def local_stores(lines):
    R = A.newlabel('L_rem'); E = A.newlabel('L_st')
    A(f's_cmp_eq_u32 s{sLOCAL}, 0')
    A(f's_cbranch_scc1 {R}')
    for l in lines: A(l)
    A.label(E)
    A('s_nop 0')
    far.append((R, E, lines))
far = []
def emit_far():
    for l in far2:
        if l.endswith(':'): A.label(l[:-1])
        else: A(l)
    for R, E, lines in far:
        A.label(R)
        for l in lines:
            A(l + (' sc1' if l.startswith('buffer_') else ''))
        A(f's_branch {E}')
def skip_unless(cond_lines):
    E = A.newlabel('L_sk')
    for l in cond_lines: A(l)
    A(f's_cbranch_scc1 {E}')
    return E
def if_layer(n): return skip_unless([f's_cmp_lg_u32 s{sLAYER}, {n}'])
def if_wave(n): return skip_unless([f's_cmp_lg_u32 s{sW}, {n}'])
def if_ffn(): return skip_unless([f's_cmp_eq_u32 s{sHASF}, 0'])
def endif(E, pad=True):
    A.label(E)
    if pad: A('s_nop 1')
def tag_check(r):
    A(f'v_xor_b32 v{r+1}, s{sTAGB}, v{r+1}')
    A(f'v_xor_b32 v{r}, s{sTAG}, v{r}')
    A(f'v_lshrrev_b32 v{r+1}, 4, v{r+1}')
    A(f'v_or_b32 v{r}, v{r}, v{r+1}')
    A(f'v_cmp_ne_u32 vcc, 0, v{r}')

QSC = 0.25 * 1.4426950408889634
hV = 176; mxc = 186
hQ = lambda T: accQ + 4 * (T + 1)
hK = lambda T: accK + 4 * (T + 1)
def s_mfmas(T, Sp, Sc):
    return [mf(vr(Sp + 4 * T, 4), vr(hK(T - 1), 2), vr(hQ(T), 2), vr(vBP0 if T == 0 else vBP, 4), False),
            mf(vr(Sc + 4 * T, 4), vr(hK(T), 2), vr(hQ(T), 2), vr(vBC, 4), False)]
def attention(pre):
    Sp = V.alloc(16, 2); Sc = V.alloc(16, 2); mx = V.alloc(4); pk = V.alloc(8, 2); Ls = accV
    pre = list(pre)
    for T in (1, 2, 3, 0):
        for m_ in s_mfmas(T, Sp, Sc):
            A(m_)
            for _ in range(2):
                if pre: A(pre.pop(0))
    while pre: A(pre.pop(0))
    for T in (1, 2, 3, 0):
        for r in range(4):
            A(f'v_max_f32 v{Sc+4*T+r}, v{Sp+4*T+r}, v{Sc+4*T+r}')
        A(f'v_max3_f32 v{mx+T}, v{Sc+4*T}, v{Sc+4*T+1}, v{Sc+4*T+2}')
        A(f'v_max_f32 v{mx+T}, v{mx+T}, v{Sc+4*T+3}')
    prs = [(mx + 1, mx + 2), (mx + 3, mx)]
    for a_, b_ in prs: A(f'v_permlane16_swap_b32 v{a_}, v{b_}')
    for a_, b_ in prs: A(f'v_max_f32 v{a_}, v{a_}, v{b_}')
    for a_, b_ in prs: A(f'v_mov_b32 v{b_}, v{a_}')
    for a_, b_ in prs: A(f'v_permlane32_swap_b32 v{a_}, v{b_}')
    for a_, b_ in prs: A(f'v_max_f32 v{a_}, v{a_}, v{b_}')
    for a_, b_ in prs: A(f'v_mov_b32 v{b_}, v{a_}')
    for a_, b_ in prs: A(f'v_permlane16_swap_b32 v{a_}, v{b_}')
    for T in range(4):
        A(f'v_mul_f32 v{mxc+2*T+1}, v{mx+T}, v{mxc+2*T}')
    for T in range(4):
        for h in range(2):
            A(f'v_pk_fma_f32 {vr(Sc+4*T+2*h,2)}, {vr(Sc+4*T+2*h,2)}, {vr(mxc+2*T,2)}, {vr(mxc+2*T,2)} op_sel:[0,0,1] op_sel_hi:[1,0,1] neg_lo:[0,0,1] neg_hi:[0,0,1]')
    pend = []
    for T in range(4):
        for r in range(4):
            A(f'v_exp_f32 v{Sc+4*T+r}, v{Sc+4*T+r}')
            if pend and r in (0, 2): A(pend.pop(0))
        for h in range(2):
            A(f'v_cvt_pk_bf16_f32 v{pk+2*T+h}, v{Sc+4*T+2*h}, v{Sc+4*T+2*h+1}')
        for h in range(2):
            A(f'v_and_b32 v{Sp+4*T+h}, v{pk+2*T+h}, v{vMP+h}')
        for h in range(2):
            A(f'v_xor_b32 v{Sp+4*T+2+h}, v{pk+2*T+h}, v{Sp+4*T+h}')
        pend = [mf(vr(Ls + 4 * T, 4), vr(vOnes, 2), vr(pk + 2 * T, 2), '0', False),
                mf(vr(Sc + 4 * T, 4), vr(hV + 2 * T, 4), vr(Sp + 4 * T, 4), '0')]
    A(pend.pop(0))
    A(f'v_rcp_f32 v{Ls}, v{Ls}')
    A(pend.pop(0))
    for T in (1, 2): A(f'v_rcp_f32 v{Ls+4*T}, v{Ls+4*T}')
    for T in range(4):
        if T == 3: A(f'v_rcp_f32 v{Ls+12}, v{Ls+12}')
        if T == 2:
            for h in range(2): A(f'v_permlane16_swap_b32 v{oP+h}, v{oP+2+h}')
        for h in range(2):
            A(f'v_pk_mul_f32 {vr(Sc+4*T+2*h,2)}, {vr(Sc+4*T+2*h,2)}, {vr(Ls+4*T,2)} op_sel_hi:[1,0]')
        for h in range(2):
            A(f'v_cvt_pk_bf16_f32 v{oP+2*T+h}, v{Sc+4*T+2*h}, v{Sc+4*T+2*h+1}')
    for h in range(2): A(f'v_permlane16_swap_b32 v{oP+4+h}, v{oP+6+h}')
    V.release(Sp, 16); V.release(Sc, 16); V.release(mx, 4); V.release(pk, 8)
def norm_pk(T, rpp, vmm, vcc_):
    aq, ak, av = accQ + 4 * (T + 1), accK + 4 * (T + 1), accV + 4 * (T + 1)
    for h in range(2):
        if T >= 0:
            A(f'v_pk_fma_f32 {vr(aq+2*h,2)}, {vr(csQ+2*h,2)}, {vr(rpp,2)}, {vr(aq+2*h,2)} op_sel_hi:[1,0,1]')
        A(f'v_pk_fma_f32 {vr(ak+2*h,2)}, {vr(csK+2*h,2)}, {vr(rpp,2)}, {vr(ak+2*h,2)} op_sel_hi:[1,0,1]')
        A(f'v_pk_fma_f32 {vr(av+2*h,2)}, {vr(vmm+2*h,2)}, {vr(csV,2)}, {vr(av+2*h,2)} op_sel_hi:[1,0,1]')
    for h in range(2):
        A(f'v_pk_mul_f32 {vr(ak+2*h,2)}, {vr(ak+2*h,2)}, {vr(rpp,2)} op_sel:[0,1] op_sel_hi:[1,1]')
        A(f'v_pk_mul_f32 {vr(av+2*h,2)}, {vr(av+2*h,2)}, {vr(vcc_+2*h,2)}')
def pack2(dst, src): return [f'v_cvt_pk_bf16_f32 v{dst+h}, v{src+2*h}, v{src+2*h+1}' for h in range(2)]
def epilogue(first):
    A.sprinkle = (epi_ins, 12, emit)
    for T in range(5):
        if T == 0: A('s_waitcnt lgkmcnt(6)')
        if T == 2: A('s_waitcnt lgkmcnt(0)')
        if T == 0: A(f'v_cmp_ne_u32 vcc, 0, v{t1}')
        norm_pk(T - 1, rp + 2 * T, vm + 4 * T, vc + 4 * T)
        for x in pack2(hK(T - 1), hK(T - 1)) + (pack2(hQ(T - 1), hQ(T - 1)) if T else []): A(x)
        if T == 0:
            sp = A.sprinkle; A.sprinkle = None
            A(f's_cmp_eq_u64 vcc, 0')
            A(f's_cselect_b32 s{sLOCAL}, {0 if FORCE_REMOTE else 1}, 0')
            A.sprinkle = sp
    pre = [f'v_mul_f32 v{mxc+2*T}, {hex(f2u(QSC))}, v{rp+2*T+3}' for T in range(4)]
    for T in range(5): pre += pack2(hV + 2 * T, accV + 4 * T)
    V.release(vm, 20); V.release(vc, 20); V.take(hV, 10); V.take(mxc, 8)
    attention(pre)
    sp = A.sprinkle; A.sprinkle = None
    for grp in sp[0]:
        for x in grp: emit(x)
    V.release(rp, 10)
    V.release(accQ, 20); V.release(accK, 20); V.release(accV, 20); V.release(hV, 10); V.release(mxc, 8)
epilogue(True)
V.release(vPf); V.release(gr, 4); V.release(vFp, 3)

A.label('L_pub')
stamp()
A(f's_mov_b32 s{sT0}, 32768')
A(f's_and_b32 s{sT1}, s{sLOCAL}, s{sLOCAL if "oremote" not in OPT else sLAYER}')
A(f's_cbranch_scc0 L_opr')
A(f'buffer_store_dwordx4 {vr(oP,4)}, v{vOst}, {srd(SRD_WS)}, 0 offen')
A(f'buffer_store_dwordx4 {vr(oP+4,4)}, v{vOst}, {srd(SRD_WS)}, s{sT0} offen')
A.label('L_opd')
far.append(('L_opr', 'L_opd', [f'buffer_store_dwordx4 {vr(oP,4)}, v{vOst}, {srd(SRD_WS)}, 0 offen',
                               f'buffer_store_dwordx4 {vr(oP+4,4)}, v{vOst}, {srd(SRD_WS)}, s{sT0} offen']))
acc = V.alloc(16, 2); oF = V.alloc(64, 2); bR = V.alloc(64, 2)
for a_ in (0, 1, 4, 5): A(f'v_permlane16_swap_b32 v{xP+a_}, v{xP+a_+2}')
for j in range(8):
    A(f'v_lshlrev_b32 v{acc+2*j}, 16, v{xP+j}')
    A(f'v_and_b32 v{acc+2*j+1}, 0xffff0000, v{xP+j}')
def b_read(ks, t, h): return f'ds_read_b64_tr_b16 {vr(bR + ((ks & 3)*4 + t)*4 + 2*h, 2)}, v{vBo+t} offset:{wo_off(ks) + h*512}'
def b_read_a(ks, t, h): return f'ds_read_b64_tr_b16 {ar(((ks - 4)*4 + t)*4 + 2*h, 2)}, v{vBo+t} offset:{wo_off(ks) + h*512}'
fl = V.alloc(2, 2)
fl_issue = lambda: A(f'buffer_load_dwordx2 {vr(fl,2)}, v{vL8}, {srd(SRD_WS)}, s{aFLp} offen sc1')
def o_flag(n=0):
    A(f's_waitcnt vmcnt({n})')
    A('s_mov_b64 exec, 1')
    local_stores([f'buffer_store_dwordx2 {vr(tg,2)}, v{vL16}, {srd(SRD_WS)}, s{aFLs} offen'])
    A('s_mov_b64 exec, -1')
def o_load(ks): return (f'buffer_load_dwordx4 {vr(oF + 4*ks, 4)}, v{vO4 + (ks >> 3)}, {srd(SRD_WS)}, {"s%d" % sT4 if ks & 4 else 0} offen offset:{(ks%4)*1024} sc1', f'o{ks}')
NPRE = 6
A(f's_mov_b32 s{sT4}, 4096')
A(f's_cmp_lg_u32 s{sLAYER}, 0')
A('s_cbranch_scc1 L_p5')
A(f'v_mov_b32 v{tg}, s{sTAG}')
A(f'v_mov_b32 v{tg+1}, s{sTAGB}')
rdl = [b_read(ks, t, h) for ks in range(4) for t in range(4) for h in range(2)]
NB0 = int(next((a[4:] for a in OPT if a.startswith('nb0=')), '8'))
for _ in range(NB0): A(rdl.pop(0))
o_flag(0)
stamp()
if STOP == 'o1': finish()
A.sprinkle = ([wo_dma([k_]) for k_ in wo_rest], 3, emit)
while rdl: A(rdl.pop(0))
A(f'v_lshrrev_b32 v{t0}, 3, v{vL}')
A(f'v_lshlrev_b32 v{t0}, 10, v{t0}')
A(f'v_sub_u32 v{vXe}, v{vXe}, v{t0}')
A(f'v_xor_b32 v{vXo}, 64, v{vXe}')
A(f'v_add_u32 v{vXo}, 8192, v{vXo}')
A(f'v_lshlrev_b32 v{t2}, 2, v{t0}')
A(f'v_and_b32 v{t3}, 7, v{vL}')
A(f'v_lshl_add_u32 v{t2}, v{t3}, 5, v{t2}')
A(f'v_add_u32 v{t2}, {WS_HELLO}, v{t2}')
A(f'v_and_b32 v{t3}, 127, v0')
A(f'v_lshlrev_b32 v{t3}, 3, v{t3}')
sp = A.sprinkle; A.sprinkle = None
for g_ in sp[0]:
    for x in g_: emit(x)
V.release(vWo); V.release(vFd)
ftr = V.alloc(12, 2)
assert min(wo_rest) >= 4 and not wd_late
fl_issue()
A(f's_mov_b32 vcc_lo, 0x11111111')
A(f's_mov_b32 vcc_hi, 0x11111111')
for a_ in (0, 1, 4, 5): A(f'v_permlane16_swap_b32 v{aux+a_}, v{aux+a_+2}')
for r in range(8): A(f'v_cndmask_b32 v{aux+r}, v{aux+r}, v{vOnes}, vcc')
A(f'v_mov_b32 v{vSW}, 0')
for r in range(4): A(f'v_dot2c_f32_bf16 v{vSW}, v{wra+r}, v{vOnes}')
for sh in (8, 4, 2, 1):
    A(f'v_add_f32_dpp v{vSW}, v{vSW}, v{vSW} row_ror:{sh} {DP}')
for sw in ('v_permlane16_swap_b32', 'v_permlane32_swap_b32'):
    A(f'v_mov_b32 v{t0}, v{vSW}')
    A(f'{sw} v{vSW}, v{t0}')
    A(f'v_add_f32 v{vSW}, v{vSW}, v{t0}')
V.release(wra, 4)
V.release(oP, 8)
hel = V.alloc(8, 2)
hel_issue = lambda: (A(f'buffer_load_dwordx4 {vr(hel,4)}, v{t2}, {srd(SRD_WS)}, 0 offen sc1'),
                     A(f'buffer_load_dwordx4 {vr(hel+4,4)}, v{t2}, {srd(SRD_WS)}, 0 offen offset:16 sc1'))
repoll(fl_issue, lambda: tag_check(fl), 'FL')
stamp()
NP0 = int(next((a[4:] for a in OPT if a.startswith('np0=')), '10'))
for ks in range(3): emit(o_load(ks))
A('s_barrier')
ftl = [f'ds_read_b64_tr_b16 {vr(ftr + 4 * n + 2 * hh, 2)}, v{vFr} offset:{n * 128 + hh * 4 * 384}' for n in range(3) for hh in range(2)]
for ks in range(3, NP0):
    emit(o_load(ks))
    for _ in range(2):
        if ftl: A(ftl.pop(0))
assert not ftl
wdl = [f'ds_read_b64 {ar(aFD + 2 * f, 2)}, v{t3} offset:{L_WD + f * 1024}' for f in range(16)]
late = {ks: [o_load(ks + NP0)] for ks in range(16 - NP0)}
late[16 - NP0] = [hel_issue]
for n in range(3):
    late[17 - NP0 + n] = [f's_mov_b32 s{sT0}, {n * 4 * 32768}', f'buffer_store_dwordx4 {vr(ftr + 4 * n, 4)}, v{vFs}, {srd(SRD_WS)}, s{sT0} offen sc1']
NY = 4
if True:
    def ft_touch():
        A('s_mov_b32 exec_lo, 0x11111111')
        A('s_mov_b32 exec_hi, 0')
        for n in range(3):
            A(f's_mov_b32 s{sT0}, {n * 4 * 32768}')
            A(f'buffer_load_dword v{vDum}, v{vFs}, {srd(SRD_WS)}, s{sT0} offen sc1')
        A('s_mov_b64 exec, -1')
for ks in range(16):
    nl = {12: 14, 13: 14, 14: 14, 15: 12}.get(ks, 14 if ks else 6)
    A.wait_vm(f'o{ks}', f'lgkmcnt({nl})')
    for t in range(4):
        A(mf(vr(acc + 4*t, 4), vr(bR + ((ks & 3)*4 + t)*4, 4), vr(oF + 4*ks, 4), vr(acc + 4*t, 4)))
        if t == 0:
            for x in late.get(ks, []): emit(x)
        if ks + 4 < 16:
            A(b_read(ks + 4, t, 0)); A(b_read(ks + 4, t, 1))
        else:
            A(wdl.pop(0))
V.release(ftr, 12)
A('s_branch L_p2e')
A.label('L_p5')
rdl = [b_read(ks, t, h) for ks in range(4) for t in range(4) for h in range(2)] + \
      [b_read_a(ks, t, h) for ks in range(4, 16) for t in range(4) for h in range(2)]
RA, RB, NP1 = [int(x) for x in next((a[3:] for a in OPT if a.startswith('p5=')), '16,40,8').split(',')]
for _ in range(RA): A(rdl.pop(0))
o_flag()
stamp_n[0] -= 2; stamp()
for _ in range(16): A(rdl.pop(0))
fl_issue()
for _ in range(RB - 16): A(rdl.pop(0))
repoll(fl_issue, lambda: tag_check(fl), 'FL')
stamp()
for ks in range(NP1):
    emit(o_load(ks))
    for _ in range(3):
        if rdl: A(rdl.pop(0))
done = False
for ks in range(16):
    lg = ''
    if ks == 0: lg = 'lgkmcnt(14)'
    elif not rdl and not done: lg = 'lgkmcnt(0)'; done = True
    assert done or (128 - len(rdl) - 15) // 8 > ks
    if lg == '' and not done: lg = 'lgkmcnt(14)'
    A.wait_vm(f'o{ks}', lg)
    for t in range(4):
        B_ = vr(bR + (ks*4 + t)*4, 4) if ks < 4 else ar(((ks - 4)*4 + t)*4, 4)
        A(mf(vr(acc + 4*t, 4), B_, vr(oF + 4*ks, 4), vr(acc + 4*t, 4)))
        if t == 0 and ks + NP1 < 16: emit(o_load(ks + NP1))
        for _ in range(2):
            if rdl: A(rdl.pop(0))
A.label('L_p2e')
V.release(oF, 64); V.release(bR, 64); V.release(fl, 2)
gG = V.alloc(4, 2); gS = V.take(96, 4) if False else V.alloc(4, 2)
A('s_nop 3')
for j in range(4):
    A(f'v_cvt_pk_bf16_f32 v{xP+j}, v{acc+2*j}, v{acc+2*j+1}')
A(f'v_cvt_pk_bf16_f32 v{xP+4}, v{acc+8}, v{acc+9}')
A(f'v_cvt_pk_bf16_f32 v{xP+5}, v{acc+10}, v{acc+11}')
A(mf(vr(gG, 4), vr(xP, 4), vr(xP, 4), '0'))
A(f'v_cvt_pk_bf16_f32 v{xP+6}, v{acc+12}, v{acc+13}')
A(f'v_cvt_pk_bf16_f32 v{xP+7}, v{acc+14}, v{acc+15}')
A(mf(vr(gS, 4), vr(aux, 4), vr(xP, 4), '0'))
A(f'v_permlane16_swap_b32 v{xP}, v{xP+2}')
A(mf(vr(gG, 4), vr(xP + 4, 4), vr(xP + 4, 4), vr(gG, 4)))
A(f'v_permlane16_swap_b32 v{xP+1}, v{xP+3}')
A(mf(vr(gS, 4), vr(aux + 4, 4), vr(xP + 4, 4), vr(gS, 4)))
A(f'v_permlane16_swap_b32 v{xP+4}, v{xP+6}')
A(f'v_permlane16_swap_b32 v{xP+5}, v{xP+7}')
unp = []
for j in range(8):
    unp += [f'v_lshlrev_b32 v{acc+2*j}, 16, v{xP+j}', f'v_and_b32 v{acc+2*j+1}, 0xffff0000, v{xP+j}']
for _ in range(4): A(unp.pop(0))
A(f'v_cndmask_b32 v{t0}, v{gG}, v{gG+1}, {sr(sM0,2)}')
A(f'v_cndmask_b32 v{t1}, v{gG+2}, v{gG+3}, {sr(sM0,2)}')
A(f'v_cndmask_b32 v{gS+2}, v{t0}, v{t1}, {sr(sM1,2)}')
A(f'v_mov_b32 v{gS+3}, s{sTAG}')
A('s_mov_b32 exec_lo, 0x00f0000f')
A('s_mov_b32 exec_hi, 0xf0000f00')
local_stores([f'buffer_store_dwordx4 {vr(gS,4)}, v{vQ16}, {srd(SRD_WS)}, s{aSTs} offen'])
A('s_mov_b64 exec, -1')
stamp()
V.release(gG, 4)
sa = V.alloc(8, 2)
def h1_issue():
    A(f'buffer_load_dwordx4 {vr(sa,4)}, v{vL16}, {srd(SRD_WS)}, s{aSTp} offen sc1')
    A(f'buffer_load_dwordx4 {vr(sa+4,4)}, v{vL16}, {srd(SRD_WS)}, s{aSTp} offen offset:1024 sc1')
while unp: A(unp.pop(0))
hl = V.alloc(4, 2); vLn = V.alloc()
A(f'v_lshrrev_b32 v{t0}, 3, v{vL}')
A(f'v_and_b32 v{t1}, 0x70, v{vL16}')
A(f'v_lshl_add_u32 v{vLn}, v{t0}, 10, v{t1}')
E = if_layer(0)
E3 = if_wave(3)
A(f'v_lshl_add_u32 v{t0}, v{vQ}, 7, v{vGm}')
A(f'v_add_u32 v{t0}, {L_ROW}, v{t0}')
A(f'v_add_u32 v{t1}, {L_ROW + 1024}, v{vL16}')
A(f'ds_write_b128 v{t0}, {vr(xP,4)}')
A(f'ds_write_b128 v{t0}, {vr(xP+4,4)} offset:64')
A('s_waitcnt lgkmcnt(0)')
A(f'ds_read_b128 {vr(hl,4)}, v{t1}')
endif(E3, False)
Lh = A.newlabel('L_hel'); Lhk = A.newlabel('L_helok')
A(f's_mov_b32 s{sGUARD}, {SPIN}')
A(f's_waitcnt vmcnt({NY})')
A.label(Lh)
for r in range(8): A(f'v_xor_b32 v{hel+r}, s{sTAGB if r & 1 else sTAG}, v{hel+r}')
A(f'v_or3_b32 v{t0}, v{hel+1}, v{hel+3}, v{hel+5}')
A(f'v_or_b32 v{t0}, v{t0}, v{hel+7}')
A(f'v_lshrrev_b32 v{t0}, 4, v{t0}')
A(f'v_or3_b32 v{t0}, v{t0}, v{hel}, v{hel+2}')
A(f'v_or3_b32 v{t0}, v{t0}, v{hel+4}, v{hel+6}')
A(f'v_cmp_ne_u32 vcc, 0, v{t0}')
A(f's_cbranch_vccz {Lhk}')
A('s_sleep 8')
hel_issue(); A.wait_vm0()
A(f's_sub_u32 s{sGUARD}, s{sGUARD}, 1')
A(f's_cbranch_scc0 {Lh}')
A.label(Lhk)
endif(E, False)
h1_issue()
V.release(hel, 8)

def h1_check():
    A(f'v_cmp_ne_u32 vcc, s{sTAG}, v{sa+3}')
    A(f'v_cmp_ne_u32 {sr(sT2,2)}, s{sTAG}, v{sa+7}')
    A(f'v_pk_add_f32 {vr(sa,2)}, {vr(sa,2)}, {vr(sa+4,2)}')
    A(f's_or_b64 vcc, vcc, {sr(sT2,2)}')
repoll(h1_issue, h1_check, 'ST')
stamp()
A(f'v_add_f32 v{sa+2}, v{sa+2}, v{sa+6}')
A(f'v_mov_b32 v{sa+4}, v{sa}')
A(f'v_mov_b32 v{sa+5}, v{sa+1}')
A(f'v_mov_b32 v{sa+6}, v{sa+2}')
local_stores([f'buffer_store_dwordx4 {vr(xP,4)}, v{vXs}, {srd(SRD_WS)}, s{aXs} offen',
              f'buffer_store_dwordx4 {vr(xP+4,4)}, v{vXs}, {srd(SRD_WS)}, s{aXs} offen offset:64'])
for r in range(3): A(f'v_permlane16_swap_b32 v{sa+r}, v{sa+4+r}')
A(f'v_pk_add_f32 {vr(sa,2)}, {vr(sa,2)}, {vr(sa+4,2)}')
A(f'v_add_f32 v{sa+2}, v{sa+2}, v{sa+6}')
for r in range(3): A(f'v_mov_b32 v{sa+4+r}, v{sa+r}')
for r in range(3): A(f'v_permlane32_swap_b32 v{sa+r}, v{sa+4+r}')
A(f'v_pk_add_f32 {vr(sa,2)}, {vr(sa,2)}, {vr(sa+4,2)}')
A(f'v_add_f32 v{sa+2}, v{sa+2}, v{sa+6}')
mu = V.alloc(); var = V.alloc(); pr = V.alloc(2, 2); mm = V.alloc()
ln_params(sa, sa + 2, mu, var, mm, pr, t0)
key = V.alloc(); ka = V.alloc(2, 2); kb = ka + 1
A(f'v_fma_f32 v{key}, -v{mm}, v{vSW}, v{sa+1}')
A(f'v_mul_f32 v{key}, v{key}, v{pr}')
A(f'v_mul_f32 v{pr+1}, -v{mm}, v{pr}')
A(f'v_ashrrev_i32 v{t0}, 31, v{key}')
A(f'v_or_b32 v{t0}, 0x80000000, v{t0}')
A(f'v_xor_b32 v{key}, v{key}, v{t0}')
A(f'v_and_b32 v{key}, 0xfffff800, v{key}')
A(f'v_or3_b32 v{key}, v{key}, v{vQ}, s{aROW}')
xn = V.alloc(8, 2); xf = V.alloc(16, 2)
fillx = [f'v_pk_fma_f32 {vr(xf+2*j,2)}, {vr(acc+2*j,2)}, {vr(pr,2)}, {vr(pr,2)} op_sel:[0,0,1] op_sel_hi:[1,0,1]' for j in range(8)] + \
        [f'v_cvt_pk_bf16_f32 v{xn+j}, v{xf+2*j}, v{xf+2*j+1}' for j in range(8)]
def top2_levels(a, b, levels, fill):
    for lv in levels:
        if fill: A(fill.pop(0))
        A(f'v_min_u32_dpp v{t0}, v{a}, v{a} {lv} {DP}')
        A(f'v_max_u32_dpp v{t1}, v{b}, v{b} {lv} {DP}')
        A(f'v_max_u32_dpp v{a}, v{a}, v{a} {lv} {DP}')
        A(f'v_max_u32 v{b}, v{t0}, v{t1}')
A(fillx.pop(0)); A(fillx.pop(0))
A(f'v_max_u32_dpp v{ka}, v{key}, v{key} quad_perm:[1,0,3,2] {DP}')
A(f'v_min_u32_dpp v{kb}, v{key}, v{key} quad_perm:[1,0,3,2] {DP}')
top2_levels(ka, kb, ['quad_perm:[2,3,0,1]', 'row_half_mirror', 'row_mirror'], fillx)
A('s_mov_b64 exec, 1')
A(f'buffer_store_dwordx2 {vr(ka,2)}, v{vL16}, {srd(SRD_WS)}, s{aKEYs} offen sc1')
E = if_layer(0)
A('s_waitcnt vmcnt(1)')
local_stores([f'buffer_store_dwordx2 {vr(tg,2)}, v{vL16}, {srd(SRD_WS)}, s{aX1Fs} offen'])
FTT = int(next((a[4:] for a in OPT if a.startswith('ftt=')), '0'))
if FTT == 0: ft_touch()
A(f's_cmp_lg_u32 s{sW}, 3')
A(f's_cbranch_scc1 {E}')
A('s_mov_b64 exec, -1')
A(f's_add_u32 s{sT0}, s{aCANDs}, {WS_HALO - WS_CAND}')
A('s_waitcnt lgkmcnt(0)')
A(f'buffer_store_dwordx4 {vr(hl,4)}, v{vLn}, {srd(SRD_WS)}, s{sT0} offen sc1')
endif(E, False)
A('s_mov_b64 exec, -1')
stamp()
A(f'v_cmp_eq_u32 vcc, v{key}, v{kb}')
A(f'v_add_u32 v{t2}, 256, v{vStash}')
if 'cstash' not in OPT:
    A(f's_lshl_b32 s{sT0}, s{sW}, 11')
    A(f's_add_u32 s{sT0}, s{sT0}, s{aCANDs}')
    A(f'v_add_u32 v{t1}, 1024, v{vGm}')
    A(f'v_cndmask_b32 v{t1}, v{vGm}, v{t1}, vcc')
while fillx: A(fillx.pop(0))
A(f'v_cndmask_b32 v{t3}, v{vStash}, v{t2}, vcc')
A(f'v_cmp_ge_u32 vcc, v{key}, v{kb}')
A(f'v_lshrrev_b32 v{t0}, 3, v{vL}')
A(f's_mov_b64 exec, vcc')
if 'cstash' not in OPT:
    A(f'buffer_store_dwordx4 {vr(xn,4)}, v{t1}, {srd(SRD_WS)}, s{sT0} offen sc1')
    A(f'buffer_store_dwordx4 {vr(xn+4,4)}, v{t1}, {srd(SRD_WS)}, s{sT0} offen offset:64 sc1')
A(f'ds_write_b128 v{t3}, {vr(xn,4)} offset:128')
A(f'ds_write_b128 v{t3}, {vr(xn+4,4)} offset:192')
A(f'ds_write_b128 v{t3}, {vr(xP,4)}')
A(f'ds_write_b128 v{t3}, {vr(xP+4,4)} offset:64')
A('s_mov_b64 exec, -1')
V.release(key); V.release(ka, 2)
if 'cstash' in OPT:
    A(f'v_and_b32 v{t1}, 0x70, v{vL16}')
    A(f'v_lshl_add_u32 v{t2}, v{t0}, 8, v{t1}')
    A(f'v_add_u32 v{t2}, {L_CS + 128}, v{t2}')
    A(f's_lshl_b32 s{sT0}, s{sW}, 4')
    A('s_waitcnt lgkmcnt(2)')
    A(f'ds_read_b128 {vr(sa,4)}, v{t2}')
    A(f's_lshl_b64 exec, 0xffff, s{sT0}')
    A('s_waitcnt lgkmcnt(0)')
    A(f'buffer_store_dwordx4 {vr(sa,4)}, v{vLn}, {srd(SRD_WS)}, s{aCANDs} offen sc1')
    A('s_mov_b64 exec, -1')
else:
    A('s_waitcnt lgkmcnt(0)')
V.release(hl, 4); V.release(vLn)
fine()
def chain_params(mu, var, mm, rs, om, oc):
    a = V.alloc(); u = V.alloc(); w_ = V.alloc(); m2 = V.alloc(); r2 = V.alloc()
    A(f'v_add_f32 v{a}, 1.0, v{rs}')
    A(f'v_mul_f32 v{u}, v{mm}, v{rs}')
    A(f'v_fma_f32 v{mu}, v{mu}, v{a}, -v{u}')
    A(f'v_mul_f32 v{w_}, v{a}, v{a}')
    A(f'v_mul_f32 v{var}, v{var}, v{w_}')
    round_params(mu, var, m2, r2, w_)
    A(f'v_rcp_f32 v{w_}, v{a}')
    A(f'v_add_f32 v{u}, v{u}, v{m2}')
    A(f'v_mul_f32 v{oc}, v{a}, v{r2}')
    A(f'v_mul_f32 v{om}, -v{u}, v{w_}')
    for x in (a, u, w_, m2, r2): V.release(x)
xfl = sa
xf_issue = lambda: A(f'buffer_load_dwordx2 {vr(xfl,2)}, v{vL8}, {srd(SRD_WS)}, s{aX1Fp} offen sc1')
for j in range(8):
    A(f'v_lshlrev_b32 v{xf+2*j}, 16, v{xn+j}')
    A(f'v_and_b32 v{xf+2*j+1}, 0xffff0000, v{xn+j}')
for j in range(8):
    A(f'v_pk_add_f32 {vr(xf+2*j,2)}, {vr(xf+2*j,2)}, {vr(acc+2*j,2)}')
for j in range(8):
    A(f'v_cvt_pk_bf16_f32 v{xP+j}, v{xf+2*j}, v{xf+2*j+1}')
V.release(xn, 8); V.release(xf, 16); V.release(acc, 16)
fa = V.take(170, 6)
A(f'v_bfe_u32 v{t0}, v{vL}, 2, 1')
A(f'v_and_b32 v{t1}, 1, v{vL}')
A(f'v_lshl_or_b32 v{t0}, v{t0}, 1, v{t1}')
A(f'v_mul_u32_u24 v{fa}, 576, v{t0}')
A(f'v_lshl_add_u32 v{fa}, v{vG}, 4, v{fa}')
A(f'v_add_u32 v{fa}, {L_XS}, v{fa}')
A(f's_lshl_b32 s{sT1}, s{sW}, 3')
A(f's_add_u32 s{sT1}, s{sT1}, {L_H}')
A(f'v_lshlrev_b32 v{fa+1}, 5, v{vG}')
A(f'v_lshl_add_u32 v{fa+1}, v{vQ}, 1, v{fa+1}')
A(f'v_add_u32 v{fa+1}, s{sT1}, v{fa+1}')
A(f's_lshr_b32 s{sT1}, s{sW}, 1')
A(f's_lshl_b32 s{sT1}, s{sT1}, 5')
A(f's_add_u32 s{sT1}, s{sT1}, {L_H}')
A(f'v_mov_b32 v{fa+2}, s{sT1}')
A(f'v_lshlrev_b32 v{fa+3}, 4, v0')
A(f'v_mov_b32 v{fa+4}, {L_KEY}')
A(f'v_lshrrev_b32 v{fa+5}, 5, v{vL}')
A(f'v_lshl_add_u32 v{fa+5}, v{fa+5}, 6, v{vL16}')
A(f'v_add_u32 v{fa+5}, {L_XS}, v{fa+5}')
A(f's_cmp_eq_u32 s{sLAYER}, 0')
A('s_cbranch_scc1 L_x1')
for j in range(4):
    A(f'v_mov_b32 v{sa+j}, v{xP+j}')
for j in range(4):
    A(f'v_mov_b32_dpp v{xP+j}, v{xP+4+j} row_ror:8 row_mask:0xf bank_mask:0xc')
for j in range(4):
    A(f'v_mov_b32_dpp v{xP+4+j}, v{sa+j} row_ror:8 row_mask:0xf bank_mask:0x3')
A(f'v_and_b32 v{t0}, 7, v{vQ}')
A(f'v_lshl_add_u32 v{vXs}, v{t0}, 11, v{vGm}')
A(f'v_and_b32 v{t0}, 8, v{vQ}')
A(f'v_lshl_add_u32 v{vXs}, v{t0}, 3, v{vXs}')
def out_stores():
    A(f's_add_u32 s{sT0}, s{aOUT}, 16384')
    A(f'buffer_store_dwordx4 {vr(xP,4)}, v{vXs}, {srd(SRD_OUT)}, s{aOUT} offen{OSC}')
    A(f'buffer_store_dwordx4 {vr(xP+4,4)}, v{vXs}, {srd(SRD_OUT)}, s{sT0} offen{OSC}')
    if 'clean' in OPT:
        A(f's_lshl_b32 s{sT0}, s{sHG}, 11')
        A(f'buffer_store_dwordx4 {vr(xP,4)}, v{vO4}, {srd(SRD_WS)}, s{sT0} offen sc1')
        A(f'buffer_store_dwordx4 {vr(xP,4)}, v{vO4}, {srd(SRD_WS)}, s{sT0} offen offset:1024 sc1')
OSC = ' sc1 nt' if 'ont' in OPT else ' sc1'
if 'outearly' in OPT:
    A(f's_cmp_eq_u32 s{sHASF}, 1')
    A('s_cbranch_scc1 L_x1e')
    out_stores()
A('s_branch L_x1e')
A.label('L_x1')
chain_params(mu, var, mm, pr, t2, t3)
A(f's_lshl_b32 s{sT0}, s{sW}, 6')
A(f'v_add_u32 v{t0}, s{sT0}, v{vQ4}')
A(f'ds_write2_b32 v{t0}, v{t2}, v{t3} offset0:16 offset1:96')
V.release(mu); V.release(var); V.release(pr, 2); V.release(mm)
pk8 = V.alloc(8, 2)
E = if_ffn()
A(f's_mov_b32 s{sT0}, 0x05040100')
A(f's_mov_b32 s{sT1}, 0x07060302')
A('s_waitcnt lgkmcnt(0)')
for j in range(8):
    for c in range(4): A(f'v_accvgpr_read_b32 v{pk8+c}, a{aFD + 4*j + c}')
    for c, (hi_, lo_, sel) in enumerate(((2, 0, sT0), (2, 0, sT1), (3, 1, sT0), (3, 1, sT1))):
        A(f'v_perm_b32 v{pk8+4+c}, v{pk8+hi_}, v{pk8+lo_}, s{sel}')
    for c in range(4): A(f'v_accvgpr_write_b32 a{aFD + 4*j + c}, v{pk8+4+c}')
endif(E, False)
V.release(pk8, 8)
E1 = if_wave(1)
A(f's_lshl_b32 s{sT0}, s{sSET}, 11')
A(f's_add_u32 s{sT0}, s{sT0}, {WS_X1F}')
A(f's_cmp_eq_u32 s{sHASF}, 1')
A(f's_cselect_b32 s{sT0}, s{sT0}, s{aX1Fp}')
A(f's_lshl_b32 s{sT1}, s{sHASF}, 9')
A(f'v_mad_u32_u24 v{t3}, v{vG}, s{sT1}, v{vQ16}')
def sf_check():
    for k in range(4): A(f'v_xor_b32 v{sa+k}, s{sTAGB if k & 1 else sTAG}, v{sa+k}')
    A(f'v_or_b32 v{sa+1}, v{sa+1}, v{sa+3}')
    A(f'v_lshrrev_b32 v{sa+1}, 4, v{sa+1}')
    A(f'v_or3_b32 v{sa}, v{sa}, v{sa+1}, v{sa+2}')
    A(f'v_cmp_ne_u32 vcc, 0, v{sa}')
poll(lambda: A(f'buffer_load_dwordx4 {vr(sa,4)}, v{t3}, {srd(SRD_WS)}, s{sT0} offen sc1'), sf_check, 'X1F')
endif(E1, False)
A(f's_mov_b32 s49, s{sHASF}')
A(f's_cmp_eq_u32 s{sHASF}, 0')
A('s_cbranch_scc1 L_b1b')
A.label('L_x1e')
stamp()
key_issue = lambda: A(f'buffer_load_dwordx4 {vr(sa,4)}, v{vL16}, {srd(SRD_WS)}, s{aKEYp} offen sc1', tag='key')
A(f's_cmp_lg_u32 s{sW}, 0')
A('s_cbranch_scc1 L_keye')
A(f's_mov_b32 s{sGUARD}, {SPIN}')
A.label('L_keyp')
key_issue()
A('s_waitcnt vmcnt(0)')
A.label('L_keyc')
A(f'v_max3_u32 v{t0}, v{sa}, v{sa+1}, v{sa+2}')
A(f'v_min_u32 v{t2}, v{sa}, v{sa+2}')
A(f'v_max_u32 v{t0}, v{t0}, v{sa+3}')
A(f'v_max_u32 v{sa}, v{sa}, v{sa+2}')
A(f'v_cmp_eq_u32 vcc, -1, v{t0}')
A(f'v_max3_u32 v{sa+1}, v{sa+1}, v{sa+3}, v{t2}')
A('s_cbranch_vccz L_keyk')
A('s_sleep 1')
NS = int(next((a[4:] for a in OPT if a.startswith('nsl=')), '8'))
if NS:
    A(f's_cmp_eq_u32 s{sHASF}, 1')
    A('s_cbranch_scc1 L_keyh')
    A(f's_sleep {NS}')
    A.label('L_keyh')
A(f's_sub_u32 s{sGUARD}, s{sGUARD}, 1')
A('s_cbranch_scc0 L_keyp')
A.label('L_keyk')
stamp()
top2_levels(sa, sa + 1, ['quad_perm:[1,0,3,2]', 'quad_perm:[2,3,0,1]', 'row_half_mirror', 'row_mirror'], [])
for n_, ln in enumerate((0, 16, 32, 48)):
    A(f'v_readlane_b32 s{(sK0, sT0, sT2, sU0)[n_]}, v{sa}, {ln}')
for n_, ln in enumerate((0, 16, 32, 48)):
    A(f'v_readlane_b32 s{(sK1, sT1, sT3, sU1)[n_]}, v{sa+1}, {ln}')
for a_, b_ in ((sT0, sT1), (sT2, sT3), (sU0, sU1)):
    A(f's_max_u32 s{sK1}, s{sK1}, s{b_}')
    A(f's_min_u32 s{b_}, s{sK0}, s{a_}')
    A(f's_max_u32 s{sK0}, s{sK0}, s{a_}')
    A(f's_max_u32 s{sK1}, s{sK1}, s{b_}')
A(f's_and_b32 s{sU2}, s{sK0}, 0x7f0')
A(f's_and_b32 s{sU3}, s{sK1}, 0x7f0')
A(f's_cmp_eq_u32 s{sU2}, s{sU3}')
A(f's_cselect_b32 s{sT2}, 8, 0')
A(f's_lshl_b32 s{sU2}, s{sU2}, 7')
A(f's_add_u32 s{sU2}, s{sU2}, s{aCANDb}')
A(f's_or_b32 s{sU3}, s{sU3}, s{sT2}')
A(f's_lshl_b32 s{sU3}, s{sU3}, 7')
A(f's_add_u32 s{sU3}, s{sU3}, s{aCANDb}')
def f_issue():
    A(f'buffer_load_dwordx4 {vr(sa,4)}, v{vL16}, {srd(SRD_WS)}, s{sU2} offen sc1')
    A(f'buffer_load_dwordx4 {vr(sa+4,4)}, v{vL16}, {srd(SRD_WS)}, s{sU3} offen sc1')
sCAND = 49
A(f's_mov_b32 s{sCAND}, s{sHASF}')
if 'static' not in OPT:
    E = if_layer(0)
    A(f's_mov_b32 s{sT2}, 0')
    for k_ in (sK0, sK1):
        A(f's_bfe_u32 s{sT0}, s{k_}, 0x50006')
        A(f's_bitset1_b32 s{sT2}, s{sT0}')
        A(f's_add_u32 s{sT0}, s{k_}, 8')
        A(f's_bfe_u32 s{sT0}, s{sT0}, 0x50006')
        A(f's_bitset1_b32 s{sT2}, s{sT0}')
    A(f's_and_b32 s{sT0}, s{sRB}, 29')
    A(f's_lshr_b32 s{sT2}, s{sT2}, s{sT0}')
    A(f's_and_b32 s{sT2}, s{sT2}, 5')
    A(f's_cmp_eq_u32 s{sT2}, 1')
    A(f's_cselect_b32 s{sT2}, 2, 0')
    A(f's_and_b32 s{sT0}, s{sRB}, 2')
    A(f's_cmp_eq_u32 s{sT0}, s{sT2}')
    A(f's_cselect_b32 s{sHASF}, s{sHASF}, 0')
    endif(E, False)
E = if_ffn()
f_issue()
endif(E, False)
A(f'v_mov_b32 v{t2}, s{sHASF}')
A(f'ds_write_b32 v{fa+4}, v{t2} offset:8')
A(f'v_mov_b32 v{t0}, s{sK0}')
A(f'v_mov_b32 v{t1}, s{sK1}')
A(f'ds_write2_b32 v{fa+4}, v{t0}, v{t1} offset0:0 offset1:1')
A(f's_or_b32 s{sT0}, s{sCAND}, s{sLAYER}')
A('s_cbranch_scc0 L_k2')
A.label('L_keye')
A(f's_cmp_lg_u32 s{sLAYER}, 0')
A('s_cbranch_scc1 L_pre3')
A.label('L_b1b')
A('s_waitcnt lgkmcnt(0)')
A('s_barrier')
fine()
V.take(accQ, 20); V.take(accK, 20); V.take(accV, 20); V.take(hV, 10); V.take(mxc, 8)
def own_reads(ks):
    u = ks & 1; kc = ks >> 1; b = fr[ks & 1]
    return [f'ds_read_b128 {vr(b + 4 * T, 4)}, v{vA+u} offset:{(kc * 8 + 2 * T) * 1024}' for T in range(4)]
def gemm_groups(k0, k1, noread=()):
    G = []
    for ks in range(k0, k1):
        b = fr[ks & 1]; fill = own_reads(ks + 1) if ks < 15 and ks not in noread else []
        for T in range(1, 5):
            X = vr(b + 4 * (T - 1), 4)
            for m_, (d_, a_, b_) in enumerate(((accQ, ar(aW(ks, 0), 4), X), (accK, ar(aW(ks, 1), 4), X), (accV, X, ar(aW(ks, 2), 4)))):
                g_ = [mf(vr(d_ + 4 * T, 4), a_, b_, vr(d_ + 4 * T, 4))]
                if T == 1 and m_ == 0: g_ = ['s_waitcnt lgkmcnt(0)'] + g_
                elif fill and m_ < 2: g_.append(fill.pop(0))
                G.append(g_)
    return G
def gemm_part(k0, k1, ins=None):
    for n_, g_ in enumerate(gemm_groups(k0, k1)):
        for x in g_: A(x)
        for x in (ins or {}).get(n_, []): emit(x)
def x1_dma(kc, o):
    return ([f's_add_u32 s{sXA}, s{sXB}, {WS_X1 + kc * 128}'] if o == 0 else []) + \
           [f's_add_u32 m0, s{sAM}, {L_A + kc * 8192 + o * 1024}',
            (f'buffer_load_dwordx4 v{vXo if o else vXe}, {srd(SRD_WS)}, s{sXA} offen sc1 lds', f'x{kc >> 1}')]
sXA, sXB = 46, 47
ci = V.alloc(4, 2); vHs = V.alloc()
A(f'ds_read_b32 v{t0}, v{fa+4} offset:8')
A(f'ds_read2_b32 {vr(ci,2)}, v{vQ4} offset0:16 offset1:32')
A(f'ds_read2_b32 {vr(ci+2,2)}, v{vQ4} offset0:48 offset1:64')
for T in range(1, 5): A(f'ds_read_b128 {vr(accV + 4 * T, 4)}, v{vG16} offset:{64 * T}')
A(f's_lshl_b32 s{sXB}, s{sSTB}, 14')
A(f's_add_u32 s{sT5}, s{aFT}, 4096')
A(f's_xor_b32 s{sT0}, s{sW}, 3')
A(f's_lshl_b32 s{sT0}, s{sT0}, 29')
A(f'v_add_u32 v{vHs}, s{sT0}, v{vQ16}')
A(f's_lshl_b32 s{sT4}, s{sRB}, 10')
A(f's_lshl_b32 s{sT1}, s{sHG}, 7')
A(f's_add_u32 s{sT4}, s{sT4}, s{sT1}')
A(f's_add_u32 s{sT4}, s{sT4}, {WS_HS - 128}')
A('s_waitcnt lgkmcnt(6)')
A(f'v_readfirstlane_b32 s{sT0}, v{t0}')
A(f's_and_b32 s{sHASF}, s{sHASF}, s{sT0}')
A('s_cbranch_scc0 L_noft')
for s_ in range(8):
    A(f'buffer_load_dwordx4 {ar(aFG + 4*s_, 4)}, v{vL16}, {srd(SRD_WS)}, s{sT5 if s_ >= 4 else aFT} offen offset:{(s_ & 3)*1024} sc1')
A.label('L_noft')
A.vm = []
NX = int(next((a[3:] for a in OPT if a.startswith('nx=')), '2'))
grp = [x1_dma(kc, o) for kc in range(NX) for o in range(2)]
for _ in range(2):
    for x in grp.pop(0): emit(x)
A.sprinkle = (grp, 4, emit)
A('s_waitcnt lgkmcnt(4)')
for T in range(1, 5):
    sel = (T - 1) & 1
    for acc_, cs_ in ((accQ, csQ), (accK, csK)):
        for h in range(2):
            A(f'v_pk_mul_f32 {vr(acc_+4*T+2*h,2)}, {vr(cs_+2*h,2)}, {vr(ci + ((T-1)&2),2)} op_sel:[0,{sel}] op_sel_hi:[1,{sel}]')
A('s_waitcnt lgkmcnt(0)')
for T in range(1, 5):
    for h in range(2):
        A(f'v_pk_mul_f32 {vr(accV+4*T+2*h,2)}, {vr(accV+4*T+2*h,2)}, {vr(csV,2)} op_sel_hi:[1,0]')
A.sprinkle = None
assert not grp
V.release(ci, 4)
A(f's_waitcnt vmcnt({2 * NX})')
A('s_mov_b32 exec_lo, 0')
A('s_mov_b32 exec_hi, 0xf0000f00')
A(f'buffer_store_dwordx4 {vr(gS,4)}, v{vHs}, {srd(SRD_WS)}, s{sT4} offen sc1')
A('s_mov_b64 exec, -1')
V.release(vHs); V.release(gS, 4)
vm_x = list(A.vm)
A(f's_cmp_eq_u32 s{sHASF}, 0')
A('s_cbranch_scc1 L_g0')
A.label('L_pre3')
fine()
E = skip_unless([f's_cmp_eq_u32 s{sW}, 0', f's_cselect_b32 s{sT0}, s{sHASF}, 0', f's_cmp_eq_u32 s{sT0}, 0'])
def f_check():
    A(f'v_max_u32 v{t0}, v{sa}, v{sa+4}')
    A(f'ds_write_b128 v{fa+5}, {vr(sa,4)}')
    A(f'v_cmp_eq_u32 vcc, -1, v{t0}')
    A(f'ds_write_b128 v{fa+5}, {vr(sa+4,4)} offset:1152')
    A('s_waitcnt lgkmcnt(0)')
Lc = A.newlabel('L_cd')
A(f's_mov_b32 s{sGUARD}, {SPIN}')
A(f's_cmp_eq_u32 s{sLAYER}, 0')
A(f's_cbranch_scc1 {Lc}c')
A.label(Lc)
A('s_waitcnt vmcnt(0)')
A.label(Lc + 'c')
f_check()
A(f's_cbranch_vccz {E}')
f_issue()
A(f's_sub_u32 s{sGUARD}, s{sGUARD}, 1')
A(f's_cbranch_scc0 {Lc}')
endif(E, False)
A('s_waitcnt lgkmcnt(0)')
A('s_barrier')
fine()
A(f's_cmp_eq_u32 s{sHASF}, 0')
A('s_cbranch_scc1 L_noffn')
xs = V.alloc(32, 2); d4 = V.alloc(4, 2); hp = V.alloc(8, 2); y4 = V.alloc(4, 2); wd = xs
for s_ in range(8):
    A(f'ds_read_b128 {vr(xs + 4*s_, 4)}, v{fa} offset:{64*s_}')
for c in range(4): A(f'v_mov_b32 v{y4+c}, 0')
wrd = [f'v_accvgpr_read_b32 v{wd+j}, a{aFD+j}' for j in range(32)]
for s_ in range(8):
    A(f's_waitcnt lgkmcnt({7 - s_})')
    A(mf(vr(d4, 4), vr(xs + 4*s_, 4), ar(aFG + 4*s_, 4), '0' if s_ == 0 else vr(d4, 4)))
    if s_: A(wrd.pop(0)); A(wrd.pop(0))
for _ in range(6): A(wrd.pop(0))
A(f'v_add_f32_dpp v{t0}, v{d4+1}, v{d4} row_shl:8 {DP}')
bf_round(t0, t0)
A(f'v_mul_f32 v{t1}, {hex(f2u(-1.4426950408889634))}, v{t0}')
A(f'v_exp_f32 v{t1}, v{t1}')
A(f'v_mov_b32_dpp v{t2}, v{t0} row_shl:4 {DP}')
A(f'v_add_f32 v{t1}, 1.0, v{t1}')
A(f'v_rcp_f32 v{t1}, v{t1}')
A('s_mov_b64 exec, 0x000f000f')
A(f'v_mul_f32 v{t1}, v{t0}, v{t1}')
bf_round(t1, t1)
A(f'v_mul_f32 v{t1}, v{t2}, v{t1}')
A(f'v_cvt_pk_bf16_f32 v{t1}, v{t1}, v{t1}')
A(f'ds_write_b16 v{fa+1}, v{t1}')
A('s_mov_b64 exec, -1')
for _ in range(8): A(wrd.pop(0))
A('s_waitcnt lgkmcnt(0)')
A('s_barrier')
A(f'ds_read_b128 {vr(hp,4)}, v{fa+2}')
A(f'ds_read_b128 {vr(hp+4,4)}, v{fa+2} offset:16')
while wrd: A(wrd.pop(0))
for j in range(8):
    if j % 4 == 0: A(f's_waitcnt lgkmcnt({1 - j // 4})')
    for c in range(4):
        A(f'v_dot2c_f32_bf16 v{y4+c}, v{wd+4*j+c}, v{hp+j}')
A(f'buffer_store_dwordx4 {vr(y4,4)}, v{fa+3}, {srd(SRD_WS)}, s{aYPs} offen sc1')
V.release(xs, 32); V.release(d4, 4); V.release(hp, 8); V.release(y4, 4)
A.label('L_noffn')
stamp()
sOWN = 48
own_lines = [f'v_readfirstlane_b32 s{sK0}, v{sa}', f'v_readfirstlane_b32 s{sK1}, v{sa+1}',
             f's_bfe_u32 s{sT0}, s{sK0}, 0x50006', f's_bfe_u32 s{sT1}, s{sK1}, 0x50006', f's_cmp_eq_u32 s{sT0}, s{sRB}',
             f's_cselect_b32 s{sT1}, s{sRB}, s{sT1}', f's_cselect_b32 s{sTOK}, 0, 1', f's_cselect_b32 s{sKEY}, s{sK0}, s{sK1}',
             f's_cmp_eq_u32 s{sT1}, s{sRB}', f's_cselect_b32 s{sOWN}, 1, 0']
A(f's_cmp_eq_u32 s{sLAYER}, 0')
A('s_cbranch_scc1 L_g0')
A(f'ds_read_b64 {vr(sa,2)}, v{fa+4}')
out_stores()
A('s_waitcnt lgkmcnt(0)')
for x in own_lines: A(x)
E = 'L_gend'
A(f's_branch {E}')
fr = [V.alloc(16, 2), V.alloc(16, 2)]
yp = V.alloc(24, 2); yo = V.alloc(2)
def y_issue():
    for j in range(6):
        A(f's_mov_b32 s{sT1}, {j * 65536}')
        A(f'buffer_load_dwordx4 {vr(yp + 4*j, 4)}, v{yo + 1 if j == 5 else yo}, {srd(SRD_WS)}, s{sT1} offen sc1')
sg = V.alloc(); ya = V.alloc(); yb = V.alloc(); yc = V.alloc()
sD0, sD1 = 100, 101
def own_prep():
    A(f's_and_b32 s{sRHO}, s{sKEY}, 2047')
    A(f's_bfe_u32 s{sT0}, s{sK0}, 0x70004')
    A(f's_bfe_u32 s{sT2}, s{sKEY}, 0x70004')
    A(f's_cmp_eq_u32 s{sT0}, s{sT2}')
    A(f's_cselect_b32 s{sT0}, s{sTOK}, 0')
    A(f's_lshl_b32 s{sT0}, s{sT0}, 8')
    A(f's_and_b32 s{sT2}, s{sT2}, 3')
    A(f's_lshl_b32 s{sT2}, s{sT2}, 9')
    A(f's_add_u32 s{sT0}, s{sT0}, s{sT2}')
    A(f's_add_u32 s{sT0}, s{sT0}, {L_CS}')
    A(f'v_lshl_add_u32 v{yc}, v{vL}, 1, s{sT0}')
    A(f'ds_read_u16 v{ya}, v{yc}')
    A(f'ds_read_u16 v{yb}, v{yc} offset:128')
    A(f's_ashr_i32 s{sT2}, s{sKEY}, 31')
    A(f's_not_b32 s{sT2}, s{sT2}')
    A(f's_or_b32 s{sT2}, s{sT2}, 0x80000000')
    A(f's_xor_b32 s{sT2}, s{sT2}, s{sKEY}')
    A(f'v_mov_b32 v{sg}, s{sT2}')
    bf_round(sg, sg)
    A(f'v_mul_f32 v{sg}, {hex(f2u(-1.4426950408889634))}, v{sg}')
    A(f'v_exp_f32 v{sg}, v{sg}')
    A(f'v_add_f32 v{sg}, 1.0, v{sg}')
    A(f'v_rcp_f32 v{sg}, v{sg}')
    bf_round(sg, sg)
    A('s_waitcnt lgkmcnt(0)')
    A(f'v_lshlrev_b32 v{ya}, 16, v{ya}')
    A(f'v_lshlrev_b32 v{yb}, 16, v{yb}')
    A(f'v_lshlrev_b32 v{yc}, 4, v0')
    A(f'v_add_u32 v{yc}, {L_RED}, v{yc}')
    A(f's_lshl_b32 s{sT2}, s{sHG}, 7')
    A(f's_and_b32 s{sD0}, s{sRHO}, 1023')
    A(f's_lshl_b32 s{sD0}, s{sD0}, 11')
    A(f's_and_b32 s{sT0}, s{sRHO}, 1024')
    A(f's_add_u32 s{sD0}, s{sD0}, s{sT0}')
    A(f's_add_u32 s{sD0}, s{sD0}, s{sT2}')
    A(f's_lshl_b32 s{sD1}, s{sTOK}, 10')
    A(f's_add_u32 s{sD1}, s{sD1}, s{sT2}')
    A(f's_add_u32 s{sD1}, s{sD1}, {WS_X2R}')
def y_addr():
    A(f's_lshl_b32 s{sT0}, s{sTOK}, 11')
    A(f's_add_u32 s{sT0}, s{sT0}, s{aYPb}')
    A(f'v_lshrrev_b32 v{t0}, 4, v0')
    A(f'v_lshl_add_u32 v{yo}, v{t0}, 12, v{vQ16}')
    A(f'v_cmp_gt_u32 vcc, 6, v{t0}')
    A(f'v_add_u32 v{yo}, s{sT0}, v{yo}')
    A(f'v_mov_b32 v{t1}, 0x40000000')
    A(f'v_cndmask_b32 v{yo+1}, v{t1}, v{yo}, vcc')
def done_flag():
    A('s_waitcnt vmcnt(0)')
    A('s_barrier')
    E2 = if_wave(2)
    A(f's_lshl_b32 s{sT1}, s{sHG}, 3')
    A(f's_add_u32 s{sT1}, s{sT1}, s{aX1Fp}')
    A('s_mov_b64 exec, 1')
    local_stores([f'buffer_store_dwordx2 {vr(tg,2)}, v{vL16}, {srd(SRD_WS)}, s{sT1} offen offset:256'])
    A('s_mov_b64 exec, -1')
    endif(E2, False)
NH = int(next((a[3:] for a in OPT if a.startswith('nh=')), '10'))
hs_ld = f'buffer_load_dwordx4 {vr(sa,4)}, v{vL16}, {srd(SRD_WS)}, s{sU0} offen sc1'
vHo = V.alloc()
prep = [f's_lshl_b32 s{sU0}, s{sRB}, 10', f's_add_u32 s{sU0}, s{sU0}, {WS_HS - 1024}',
        f's_lshl_b32 s{sU1}, s{sRB}, 13', f's_lshl_b32 s{sT0}, s{sW}, 8', f's_add_u32 s{sU1}, s{sU1}, s{sT0}', f's_add_u32 s{sU1}, s{sU1}, {WS_HALO - 16384}',
        f's_add_u32 s{sU2}, s{sU1}, 128', f's_mul_i32 s{sU3}, s{sW}, {2 * HST}', f's_lshl_b32 s{sT0}, s{sFIRST}, 30', f'v_add_u32 v{vHo}, s{sT0}, v{vXo}',
        f's_sub_u32 s{sT4}, s{sFIRST}, 1', f's_mov_b32 s{sT5}, s{sT4}', f's_mov_b32 s{sGUARD}, {SPIN}']
def hs_check():
    A('s_waitcnt vmcnt(0)')
    A.label('L_hs')
    A(f'v_cmp_ne_u32 vcc, s{sTAG}, v{sa+3}')
    A(f's_and_b64 vcc, vcc, {sr(sT4,2)}')
    A('s_cbranch_vccnz L_hsr')
    A.label('L_hsok')
far2 += ['L_hsr:', hs_ld, 's_waitcnt vmcnt(0)', f's_sub_u32 s{sGUARD}, s{sGUARD}, 1', 's_cbranch_scc0 L_hs', 's_branch L_hsok']
def own_pre():
    A(f's_cmp_lg_u32 s{sOWN}, 0')
    A('s_cbranch_scc1 L_ys')
    A.label('L_ysr')
save = A.lines; A.lines = []
if 'nox2t' not in OPT:
    A(f's_mov_b32 s{sT0}, {WS_X2R}')
    A(f'v_lshlrev_b32 v{t0}, 7, v{vQ}')
    A(f'buffer_load_dword v{vDum}, v{t0}, {srd(SRD_WS)}, s{sT0} offen sc1')
y_issue()
far2 += ['L_ys:'] + [l.text for l in A.lines] + ['s_branch L_ysr']; A.lines = save
A.label('L_g0')
A.vm = vm_x
A.wait_vm('x0')
A('s_barrier')
fine()
for x in own_reads(0): A(x)
KN, N2, PER = [int(x) for x in next((a[2:] for a in OPT if a.startswith('n=')), '6,14,3').split(',')]
ins = {}
pos = 0
for kc in range(NX, 8):
    for o in range(2):
        ins[pos] = x1_dma(kc, o); pos += (2 if kc < 4 else PER)
assert pos < KN * 12 - 14
ins[36] = [lambda: A.wait_vm('x1'), 's_barrier'] + ins.get(36, [])
ins[KN * 12 - 14] = [key_issue]
def late_keys():
    A.wait_vm('key')
    A(f's_mov_b32 s{sGUARD}, {SPIN}')
    A(f's_or_b32 s{sT0}, s{sCAND}, s{sW}')
    A('s_cbranch_scc0 L_keyc')
    A.label('L_k2')
ins[KN * 12 - 1] = [late_keys]
ins[84] = [done_flag, f'ds_read_b64 {vr(sa,2)}, v{fa+4}']
for n_, x in enumerate(prep): ins[85 + n_ // 2] = ins.get(85 + n_ // 2, []) + [x]
ins[96] = own_lines[:2]; ins[97] = own_lines[2:4]; ins[98] = [lambda: [A(x) for x in own_lines[4:]]]
k_ = (NH - 1) * 12
assert k_ > 98
OPT.add('defer'); og = []
with Defer(og):
    y_addr(); own_prep()
OPT.discard('defer')
og = [g_ for g_ in og if not g_[0].startswith('s_waitcnt')]
og = [g_ for g_ in og if not g_[0].startswith((f'v_lshlrev_b32 v{ya}, 16', f'v_lshlrev_b32 v{yb}, 16'))] + [[f'v_lshlrev_b32 v{ya}, 16, v{ya}'], [f'v_lshlrev_b32 v{yb}, 16, v{yb}']]
wpos = next(n_ for n_, g_ in enumerate(og) if g_[0].startswith(f'v_lshlrev_b32 v{ya}, 16'))
rpos = max(n_ for n_, g_ in enumerate(og) if g_[0].startswith('ds_read_u16'))
for n_, g_ in enumerate(og): ins[99 + n_ // 2] = ins.get(99 + n_ // 2, []) + g_
assert (99 + rpos // 2) // 12 < (99 + wpos // 2) // 12 and 99 + len(og) // 2 < k_ + 24
ins[k_] = [hs_ld] + ins.get(k_, [])
ins[k_ + 24] = [hs_check]
ins[k_ + 25] = [f's_add_u32 m0, s{sU3}, {L_HA}', f'buffer_load_dwordx4 v{vHo}, {srd(SRD_WS)}, s{sU1} offen sc1 lds']
ins[k_ + 26] = [f's_add_u32 m0, s{sU3}, {L_HA + HST}', f'buffer_load_dwordx4 v{vHo}, {srd(SRD_WS)}, s{sU2} offen sc1 lds', own_pre]
G = gemm_groups(0, N2)
for n_ in range(k_ + 27):
    for x in G.pop(0): A(x)
    for x in ins.get(n_, []): emit(x)
V.release(fa, 6)
V.release(vHo)
A.sprinkle = (G, 2, emit)
mu = V.alloc(); var = V.alloc(); pr = V.alloc(); mm = V.alloc()
for r in (0, 2): A(f'v_add_f32_dpp v{sa+r}, v{sa+r}, v{sa+r} row_ror:8 {DP}')
for sw in ('v_permlane16_swap_b32', 'v_permlane32_swap_b32'):
    for r in (0, 2): A(f'v_mov_b32 v{sa+4+r}, v{sa+r}')
    for r in (0, 2): A(f'{sw} v{sa+r}, v{sa+4+r}')
    for r in (0, 2): A(f'v_add_f32 v{sa+r}, v{sa+r}, v{sa+4+r}')
ln_params(sa, sa + 2, mu, var, mm, pr, t0)
chain_params(mu, var, mm, pr, t2, t3)
A.sprinkle = None
for g_ in G:
    for x in g_: emit(x)
A(f's_mov_b64 exec, {sr(sT4,2)}')
A(f'ds_write2_b32 v{vQ4}, v{t2}, v{t3} offset0:0 offset1:80')
A('s_mov_b64 exec, -1')
V.release(mu); V.release(var); V.release(pr); V.release(mm)
endif(E, False)
V.release(sa, 8)
stamp()
A(f's_cmp_eq_u32 s{sOWN}, 0')
A('s_cbranch_scc1 L_own_end')
A(f's_cmp_eq_u32 s{sLAYER}, 0')
A('s_cbranch_scc1 L_own2')
A.label('L_own')
A(f's_bfe_u32 s{sT0}, s{sKEY}, 0x50006')
A(f's_cmp_lg_u32 s{sT0}, s{sRB}')
A('s_cbranch_scc1 L_own_end')
A('s_barrier')
y_addr(); y_issue(); own_prep()
A.label('L_own2')
if True:
    MK = [4, 6, 8, 10, 20, 22]
    A(f's_mov_b32 s{sGUARD}, {SPIN}')
    for j in range(1, 6): A(f's_mov_b32 s{(24, 25, 26, 27, 74)[j-1]}, {j * 65536}')
    A.label('L_yp')
    A('s_waitcnt vmcnt(0)')
    for j in range(6): A(f'v_cmp_eq_u32 {sr(MK[j],2)}, -1, v{yp+4*j}')
    A(f's_or_b64 vcc, {sr(MK[0],2)}, {sr(MK[1],2)}')
    A(f's_or_b64 {sr(sT0,2)}, {sr(MK[2],2)}, {sr(MK[3],2)}')
    A(f's_or_b64 vcc, vcc, {sr(MK[4],2)}')
    A(f's_or_b64 {sr(sT0,2)}, {sr(sT0,2)}, {sr(MK[5],2)}')
    A(f's_or_b64 vcc, vcc, {sr(sT0,2)}')
    A('s_cbranch_scc0 L_ypok')
    for j in range(6):
        A(f's_mov_b64 exec, {sr(MK[j],2)}')
        A(f's_cbranch_execz L_yp{j}')
        A(f'buffer_load_dwordx4 {vr(yp + 4*j, 4)}, v{yo + 1 if j == 5 else yo}, {srd(SRD_WS)}, {"s%d" % (24, 25, 26, 27, 74)[j-1] if j else 0} offen sc1')
        A.label(f'L_yp{j}')
    A('s_mov_b64 exec, -1')
    A(f's_sub_u32 s{sGUARD}, s{sGUARD}, 1')
    A('s_cbranch_scc0 L_yp')
    A.label('L_ypok')
    A.vm = []
fine()
for a_, b_ in ((0, 4), (8, 12), (16, 20), (0, 8), (0, 16)):
    for h in range(2):
        A(f'v_pk_add_f32 {vr(yp+a_+2*h,2)}, {vr(yp+a_+2*h,2)}, {vr(yp+b_+2*h,2)}')
A(f'ds_write_b128 v{yc}, {vr(yp,4)}')
A(f'v_lshlrev_b32 v{t0}, 2, v{vL}')
A(f'v_add_u32 v{t0}, {L_RED}, v{t0}')
A('s_waitcnt lgkmcnt(0)')
A('s_barrier')
A(f's_cmp_lg_u32 s{sW}, 3')
A('s_cbranch_scc1 L_own_sync')
for j in range(8):
    A(f'ds_read2st64_b32 {vr(yp + 2*j, 2)}, v{t0} offset0:{2*j} offset1:{2*j+1}')
A(f'v_lshlrev_b32 v{t0}, 1, v{vL}')
for n_, (a_, b_) in enumerate(((0, 2), (4, 6), (8, 10), (12, 14), (0, 4), (8, 12), (0, 8))):
    if n_ < 4: A(f's_waitcnt lgkmcnt({6 - 2 * n_})')
    A(f'v_pk_add_f32 {vr(yp+a_,2)}, {vr(yp+a_,2)}, {vr(yp+b_,2)}')
A(f'v_add_f32 v{yp}, v{yp}, v{yp+1}')
bf_round(yp, yp)
A(f'v_mul_f32 v{yp}, v{yp}, v{sg}')
bf_round(yp, yp)
A(f'v_add_f32 v{yp}, v{yp}, v{yb}')
bf_round(yp, yp)
A(f'v_add_f32 v{yp}, v{yp}, v{ya}')
A(f'v_mov_b32_dpp v{yp+1}, v{yp} quad_perm:[1,0,3,2] {DP}')
A(f'v_cvt_pk_bf16_f32 v{yp}, v{yp}, v{yp+1}')
A('s_mov_b32 exec_lo, 0x55555555')
A('s_mov_b32 exec_hi, 0x55555555')
A(f's_cmp_eq_u32 s{sLAYER}, 0')
A('s_cbranch_scc1 L_own_x2')
A(f'buffer_store_dword v{yp}, v{t0}, {srd(SRD_OUT)}, s{sD0} offen')
A('s_branch L_own_fin')
A.label('L_own_x2')
local_stores([f'buffer_store_dword v{yp}, v{t0}, {srd(SRD_WS)}, s{sD1} offen'])
A(f's_and_b32 s{sT0}, s{sRHO}, 63')
A(f's_cmp_lt_u32 s{sT0}, 56')
A('s_cbranch_scc1 L_own_nh')
A(f'buffer_store_dword v{yp}, v{t0}, {srd(SRD_WS)}, s{sD1} offen offset:2048 sc1')
A.label('L_own_nh')
A(f's_lshl_b32 s{sT0}, s{sTOK}, 7')
A(f's_add_u32 s{sT0}, s{sT0}, {L_ROW + 2048}')
A(f'v_add_u32 v{t0}, s{sT0}, v{t0}')
A(f'ds_write_b32 v{t0}, v{yp}')
A.label('L_own_fin')
A('s_mov_b64 exec, -1')
A.label('L_own_sync')
V.release(yp, 24); V.release(yo, 2); V.release(sg); V.release(ya); V.release(yb); V.release(yc)
A.label('L_own_next')
A(f's_mov_b32 s{sKEY}, s{sK1}')
A(f's_add_u32 s{sTOK}, s{sTOK}, 1')
A(f's_cmp_lt_u32 s{sTOK}, 2')
A('s_cbranch_scc1 L_own')
A.label('L_own_end')
A(f's_cmp_eq_u32 s{sLAYER}, 1')
A('s_cbranch_scc1 L_fin')
stamp()
G = gemm_groups(N2, 16)
for x in G.pop(0): A(x)
A.sprinkle = (G, 1, emit)
sS0, sS1 = sU2, sU3
for key_, dst in ((sK0, sS0), (sK1, sS1)):
    A(f's_and_b32 s{sT0}, s{key_}, 2047')
    A(f's_lshl_b32 s{sT1}, s{sRB}, 6')
    A(f's_sub_u32 s{sT0}, s{sT0}, s{sT1}')
    A(f's_add_u32 s{dst}, s{sT0}, 16')
    A(f's_cmp_lt_u32 s{dst}, 80')
    A(f's_cselect_b32 s{dst}, s{dst}, 0')
    A(f's_lshl_b32 s{sT1}, s{sFIRST}, 3')
    A(f's_add_u32 s{sT1}, s{sT1}, 8')
    A(f's_cmp_ge_u32 s{dst}, s{sT1}')
    A(f's_cselect_b32 s{dst}, s{dst}, 0')
A(f's_cmp_eq_u32 s{sW}, 2')
A.sprinkle = None
A(f's_cselect_b32 s{sT4}, s{sS0}, s{sS1}')
A(f's_cselect_b32 s{sTOK}, 0, 1')
A(f's_bitcmp1_b32 s{sW}, 0')
A(f's_cselect_b32 s{sT4}, 0, s{sT4}')
rw = V.take(144, 4); rc = V.take(148, 4); vc = V.take(152, 16); dfl = V.take(168, 2); vRw = V.take(170); vDf = V.take(171)
df_issue = lambda: A(f'buffer_load_dwordx2 {vr(dfl,2)}, v{vDf}, {srd(SRD_WS)}, s{aX1Fp} offen offset:256 sc1')
bump = [f'v_mov_b32 v{vXs}, 0x40000000', f'v_and_b32 v{vDf}, 56, v{vL8}',
        f'v_lshrrev_b32 v{vRw}, 3, v{vL}', f'v_mul_u32_u24 v{vRw}, {HST - 128}, v{vRw}', f'v_add_u32 v{vRw}, v{vRw}, v{vL16}', f'v_add_u32 v{vRw}, {L_HA + 1024}, v{vRw}']
for a_, d_ in ((aFLp, 1 << 14), (aFLs, 1 << 14), (aSTp, 1 << 18), (aSTs, 1 << 18), (aKEYs, 1 << 13), (aKEYp, 1 << 13),
               (aCANDs, 1 << 18), (aCANDb, 1 << 18), (aYPs, 86 * 4096), (aYPb, 86 * 4096)):
    bump.append(f's_add_u32 s{a_}, s{a_}, {d_}')
PS = {0: 4, 1: 20}
for tok, sl in ((0, sS0), (1, sS1)):
    p = PS[tok]
    bump += [f's_and_b32 s{p+5}, s{sl}, 15', f's_lshl_b32 s{p}, 0x00010001, s{p+5}', f's_mov_b32 s{p+1}, s{p}',
             f's_lshr_b32 s{p+4}, s{sl}, 4', f's_lshl_b32 s{p+2}, s{p+4}, 2', f's_lshl_b32 s{p+4}, s{p+4}, 1',
             f's_sub_u32 s{p+3}, s{p+4}, 2', f's_min_u32 s{p+3}, s{p+3}, 7',
             f's_bfe_u32 s{p+6}, s{p+5}, 0x10001', f's_add_u32 s{p+4}, s{p+4}, s{p+6}',
             f's_and_b32 s{p+6}, s{p+5}, 12', f's_lshl_b32 s{p+6}, s{p+6}, 2', f's_lshl_b64 s[{p+6}:{p+7}], 0xffff, s{p+6}',
             f's_lshl_b32 s{p+5}, s{p+5}, 4', f's_lshl_b32 s{p+5}, 0xffff, s{p+5}']
for g_ in G:
    for x in g_: emit(x)
    for _ in range(3):
        if bump: A(bump.pop(0))
while bump: A(bump.pop(0))
df_issue()
A(f'ds_read2_b32 {vr(rc,2)}, v{vQ4} offset0:96 offset1:112')
A(f'ds_read2_b32 {vr(rc+2,2)}, v{vQ4} offset0:128 offset1:144')
for T in range(4): A(f'ds_read_b128 {vr(vc + 4 * T, 4)}, v{vG16} offset:{320 + 64 * (T + 1)}')
for b in fr: V.release(b, 16)
E = skip_unless([f's_cmp_eq_u32 s{sT4}, 0'])
A(f's_cmp_lt_u32 s{sT4}, 16')
A(f's_cselect_b32 s{sT1}, 2, 0')
A(f's_add_u32 s{sT0}, s{sTOK}, s{sT1}')
A(f's_lshl_b32 s{sT0}, s{sT0}, 10')
A(f's_add_u32 s{sT0}, s{sT0}, {WS_X2R}')
r_issue = lambda: A(f'buffer_load_dwordx4 {vr(rw,4)}, v{vL16}, {srd(SRD_WS)}, s{sT0} offen sc1')
r_issue()
A(f's_lshl_b32 s{sT1}, s{sTOK}, 7')
A(f'v_add_u32 v{t2}, s{sT1}, v{vRw}')
def r_check():
    A(f'v_max3_u32 v{t0}, v{rw}, v{rw+1}, v{rw+2}')
    A(f'ds_write_b128 v{t2}, {vr(rw,4)}')
    A(f'v_max_u32 v{t0}, v{t0}, v{rw+3}')
    A(f'v_cmp_eq_u32 vcc, -1, v{t0}')
    A('s_waitcnt lgkmcnt(0)')
repoll(r_issue, r_check, 'X2R')
endif(E, False)
A('s_waitcnt vmcnt(0) lgkmcnt(0)')
fine()
A('s_barrier')
fine()
xr = V.alloc(64, 2); hp_ = vc
def h_read(ks): return f'ds_read_b128 {vr(xr + 4*ks, 4)}, v{vH + (ks & 1)} offset:{(ks >> 1) * HST}'
def shadow():
    sh = []
    for T in range(4):
        sh += [f'v_mul_f32 v{accV+4*T+4+r}, v{accV+4*T+4+r}, v{vc+4*T+r}' for r in range(4)] + pack2(hV + 2 * T + 2, accV + 4 * T + 4)
    for T in range(4):
        sh += pack2(hQ(T), hQ(T))
        sh += [f'v_mul_f32 v{hK(T)+r}, v{hK(T)+r}, v{rc+T}' for r in range(4)] + pack2(hK(T), hK(T))
        sh += [f'v_mul_f32 v{mxc+2*T}, {hex(f2u(QSC))}, v{rc+T}']
    return sh
def halo_gemm(with_q, sh):
    hr = [h_read(ks) for ks in range(10, 16)]
    hr2 = [f'ds_read2_b32 {vr(hp_,2)}, v{vQ4} offset0:0 offset1:80', f'ds_read_b128 {vr(hp_+2,4)}, v{vG16}', f'ds_read_b128 {vr(hp_+6,4)}, v{vG16} offset:320']
    for ks in range(16):
        c = lambda x: '0' if ks == 0 else vr(x, 4)
        X = vr(xr + 4 * ks, 4)
        if ks == 0: A('s_waitcnt lgkmcnt(7)')
        if ks == 3: A('s_waitcnt lgkmcnt(3)')
        if ks == 9: A('s_waitcnt lgkmcnt(0)')
        M = [mf(vr(accK, 4), ar(aW(ks, 1), 4), X, c(accK)), mf(vr(accV, 4), X, ar(aW(ks, 2), 4), c(accV))]
        if with_q: M.append(mf(vr(accQ, 4), ar(aW(ks, 0), 4), X, c(accQ)))
        for n_, m_ in enumerate(M):
            A(m_)
            if n_ == 0 and hr: A(hr.pop(0))
            if n_ == 0 and ks >= 10 and hr2: A(hr2.pop(0))
            for _ in range(2):
                if sh: A(sh.pop(0))
    while sh: A(sh.pop(0))
    A('s_waitcnt lgkmcnt(0)')
A(f's_or_b32 s{sT0}, s{sS0}, s{sS1}')
A('s_cbranch_scc0 L_nofix')
nq = xr; rr = xr + 56; s12 = V.take(172, 4); pp = accV + 16
for tok in range(2): A(f'ds_read_b128 {vr(rr + 4 * tok, 4)}, v{vRw} offset:{128 * tok}')
for ks in range(10): A(h_read(ks))
for r in range(4): A(f'v_mov_b32 v{s12+r}, 0')
A('s_waitcnt lgkmcnt(10)')
for j in range(4):
    for tok in range(2):
        A(f'v_dot2c_f32_bf16 v{s12+2*tok}, v{rr+4*tok+j}, v{vOnes}')
        A(f'v_dot2c_f32_bf16 v{s12+2*tok+1}, v{rr+4*tok+j}, v{rr+4*tok+j}')
save = A.lines; A.lines = []
for r in range(2): A(f'v_permlane32_swap_b32 v{s12+r}, v{s12+2+r}')
for r in range(2): A(f'v_add_f32 v{s12+r}, v{s12+r}, v{s12+2+r}')
for sh_ in (8, 4, 2, 1):
    for r in range(2): A(f'v_add_f32_dpp v{s12+r}, v{s12+r}, v{s12+r} row_ror:{sh_} {DP}')
for r in range(2): A(f'v_mov_b32 v{s12+2+r}, v{s12+r}')
for r in range(2): A(f'v_permlane16_swap_b32 v{s12+r}, v{s12+2+r}')
for r in range(2): A(f'v_add_f32 v{s12+r}, v{s12+r}, v{s12+2+r}')
ln_params(s12, s12 + 1, rw, rw + 1, pp, pp + 1, t0)
A(f'v_xor_b32 v{pp}, 0x80000000, v{pp}')
A(f'v_mov_b32 v{pp+3}, v{pp+1}')
A(f'v_mov_b32 v{pp+2}, v{pp}')
for r in range(2): A(f'v_permlane32_swap_b32 v{pp+r}, v{pp+2+r}')
st_ = [l.text for l in A.lines if l.op != 's_nop']; A.lines = save
halo_gemm(True, shadow() + st_)
V.release(s12, 4)
stamp()
tag_check(dfl)
for tok in range(2):
    for r in range(4): A(f'v_mov_b32_dpp v{nq+10*tok+4+r}, v{accK+r} row_newbcast:{tok} {DP}')
    A(f'v_mov_b32 v{nq+10*tok+8}, v{accV+tok}')
    A(f'v_mov_b32 v{nq+10*tok+9}, v{accV+tok}')
norm_pk(-1, hp_, hp_ + 2, hp_ + 6)
for tok in range(2):
    A(f'v_permlane32_swap_b32 v{nq+10*tok+8}, v{nq+10*tok+9}')
for x in pack2(hK(-1), hK(-1)) + pack2(hV, accV): A(x)
for tok, sl in ((0, sS0), (1, sS1)):
    E = skip_unless([f's_cmp_eq_u32 s{sl}, 0'])
    n_ = nq + 10 * tok; p_ = pp + 2 * tok
    for r in range(4): A(f'v_mov_b32_dpp v{n_+r}, v{accQ+r} row_newbcast:{tok} {DP}')
    for h in range(2):
        A(f'v_pk_fma_f32 {vr(n_+4+2*h,2)}, {vr(csK+2*h,2)}, {vr(p_,2)}, {vr(n_+4+2*h,2)} op_sel_hi:[1,0,1]')
        A(f'v_pk_fma_f32 {vr(n_+2*h,2)}, {vr(csQ+2*h,2)}, {vr(p_,2)}, {vr(n_+2*h,2)} op_sel_hi:[1,0,1]')
    A(f'v_fma_f32 v{n_+8}, v{csV}, v{p_}, v{n_+8}')
    for h in range(2):
        A(f'v_pk_mul_f32 {vr(n_+4+2*h,2)}, {vr(n_+4+2*h,2)}, {vr(p_,2)} op_sel:[0,1] op_sel_hi:[1,1]')
    A(f'v_mul_f32 v{n_+8}, v{n_+8}, v{p_+1}')
    for x in pack2(n_, n_) + pack2(n_ + 4, n_ + 4): A(x)
    A(f'v_cvt_pk_bf16_f32 v{n_+8}, v{n_+8}, v{n_+8}')
    A(f'v_mul_f32 v{n_+9}, {hex(f2u(QSC))}, v{p_+1}')
    p = PS[tok]
    A(f's_mov_b64 exec, s[{p}:{p+1}]')
    A(f's_lshr_b32 s{sT0}, s{sl}, 4')
    A(f's_sub_u32 s{sT0}, s{sT0}, 1')
    A(f's_cmp_lg_u32 s{sT0}, s{sW}')
    A(f's_cbranch_scc1 L_np{tok}')
    A(f'v_add_u32 v{t0}, {L_ROW + 2048 + 128 * tok}, v{vGm}')
    A(f'ds_read_b128 {vr(xP,4)}, v{t0}')
    A(f'ds_read_b128 {vr(xP+4,4)}, v{t0} offset:64')
    A.label(f'L_np{tok}')
    A(f's_set_gpr_idx_on s{p+2}, gpr_idx(SRC2,DST)')
    for r in range(2): A(f'v_mov_b32 v{accQ+r}, v{n_+r}')
    for r in range(2): A(f'v_mov_b32 v{accK+r}, v{n_+4+r}')
    A(f's_set_gpr_idx_idx s{p+3}')
    A(f'v_mov_b32 v{mxc}, v{n_+9}')
    A(f's_set_gpr_idx_idx s{p+4}')
    A(f's_mov_b64 exec, s[{p+6}:{p+7}]')
    A(f'v_bfi_b32 v{hV}, s{p+5}, v{n_+8}, v{hV}')
    A('s_set_gpr_idx_off')
    A('s_mov_b64 exec, -1')
    endif(E, False)
A('s_branch L_fixed')
A.label('L_nofix')
for ks in range(10): A(h_read(ks))
sh = shadow()
for _ in range(6): A(sh.pop(0))
halo_gemm(False, sh)
stamp_n[0] -= 1; stamp()
tag_check(dfl)
norm_pk(-1, hp_, hp_ + 2, hp_ + 6)
for x in pack2(hK(-1), hK(-1)) + pack2(hV, accV): A(x)
A.label('L_fixed')
V.release(rw, 4); V.release(xr, 64); V.release(rc, 4); V.release(vc, 16); V.release(vRw)
A(f's_cbranch_vccz L_dfok')
poll(df_issue, lambda: tag_check(dfl), 'DF')
A.label('L_dfok')
V.release(dfl, 2); V.release(vDf)
stamp()
A(f's_mov_b32 s{sLAYER}, 1')
V.take(oP, 8)
attention([])
A('s_waitcnt lgkmcnt(0)')
A('s_branch L_pub')
A.label('L_fin')
A(f's_or_b32 s{sT0}, s2, s{sW}')
A('s_cbranch_scc1 L_fin2')
A(f's_mov_b32 s{sT1}, {WS_EPOCH}')
A('s_mov_b64 exec, 1')
A(f'buffer_store_dword v{tg}, v{vL16}, {srd(SRD_WS)}, s{sT1} offen')
A('s_mov_b64 exec, -1')
A.label('L_fin2')
if 'wb' in OPT:
    A(f's_lshl_b32 s{sT0}, s{sI}, 2')
    A(f's_add_u32 s{sT0}, s{sT0}, s{sW}')
    A(f's_lshl_b32 s{sT1}, s{sOWN}, 8')
    A(f's_add_u32 s{sT0}, s{sT0}, s{sT1}')
    A(f's_cmp_lg_u32 s{sT0}, {31 * 4 + 1}')
    A('s_cbranch_scc1 L_fin3')
    A('buffer_wbl2 sc1')
    A.label('L_fin3')
finish()
emit_far()
A.label('L_end')
A('s_endpgm')

hdr = f"""; @launch grid=(256,1,1) block=(256,1,1) lds={LDS_SIZE}
.amdgcn_target "amdgcn-amd-amdhsa--gfx950"
.text
.globl {NAME}_kernel
.p2align 8
.type {NAME}_kernel,@function
"""
tail = f"""
.section .rodata,"a"
.p2align 6
.amdhsa_kernel {NAME}_kernel
  .amdhsa_next_free_vgpr 512
  .amdhsa_next_free_sgpr 102
  .amdhsa_accum_offset 256
  .amdhsa_group_segment_fixed_size 0
  .amdhsa_kernarg_size 88
  .amdhsa_user_sgpr_count 2
  .amdhsa_user_sgpr_kernarg_segment_ptr 1
  .amdhsa_system_sgpr_workgroup_id_x 1
.end_amdhsa_kernel
"""
open(sys.argv[1], 'w').write(hdr + A.text() + tail)
print('vgpr high water', V.hw, 'nops added', A.nops_added, 'lines', len(A.lines))
```

```python
import sys, struct
from asmlib import *

NAME = "interleave_layers__sliding_local_dilated__moe_arch_mod__prompt"
STOP = None
STAMPS = False
FORCE_REMOTE = False
OPT = set(sys.argv[2:])
for a in sys.argv[2:]:
    if a.startswith('stop='): STOP = a[5:]
    if a == 'stamps': STAMPS = True
    if a == 'remote': FORCE_REMOTE = True

def f2u(x): return struct.unpack('<I', struct.pack('<f', x))[0]
MB = 1 << 20
WS_O = 0
WS_X1 = WS_O
WS_SENT = 4 * MB
WS_X2R = WS_SENT
WS_KEYS = WS_SENT + 16384
WS_CAND = WS_SENT + 32 * 1024
WS_YP = WS_CAND + 256 * 1024
assert WS_YP + 86 * 4096 <= WS_SENT + 640 * 1024
L1_OFF = 608 * 1024
assert WS_CAND + L1_OFF == WS_SENT + 640 * 1024
WS_HS = WS_SENT + 1600 * 1024
WS_ST = WS_SENT + 1312 * 1024
WS_HALO = 6 * MB
WS_ST0 = WS_HALO + 256 * 1024 + 128
WS_FL = WS_HALO + 320 * 1024
WS_X1F = WS_HALO + 352 * 1024
WS_HELLO = WS_HALO + 384 * 1024
WS_EPOCH = WS_HELLO + 8 * 4096
WS_FT = 10 * MB
WS_STAMP = 8 * MB
WS_SIZE = 16 * MB
L_A = 0
L_HA = 65536
HST = 1280
L_W = L_HA + 8 * HST
SLOT = {1: 0, 0: 24576, 2: 49152}
L_WO = L_W + 12288
def wo_off(ks): return 61440 if ks == 15 else ((ks - 12) * 4096 if ks >= 12 else (12288 + (ks - 6) * 4096 if ks >= 6 else 36864 + ks * 4096))
L_W15 = L_A
L_FT = L_A + 12288
L_WD = L_A + 24576
L_RED = L_W
L_ROW = L_W + 4096
L_XS = L_W + 8192
L_TAB = L_W + 3 * 24576 + 4096
L_CS = L_TAB + 640
L_H = L_CS + 2048
L_X2S = L_H + 64
L_KEY = L_X2S + 128
LDS_SIZE = 160 * 1024
assert L_KEY + 64 <= LDS_SIZE
SRD_X, SRD_W, SRD_WS, SRD_OUT, SRD_U, SRD_T = 4, 8, 12, 16, 20, 24
P = 28
sW, sSET, sI, sHG, sRB, sP, sJ0, sFIRST, sLOCAL, sLAYER = range(50, 60)
sT0, sT1, sT2, sT3, sT4, sT5 = range(60, 66)
sM0, sM1 = 66, 68
sRET = 70
sSTAMP = 72
sGUARD = 75
sTAG, sTAGB = 76, 77
sFS, sHASF, sK0, sK1, sTOK, sRHO, sKEY, sST = range(78, 86)
sAB, sAM, sWM, sOM = range(86, 90)
sSTB = 92
sU0, sU1, sU2, sU3 = range(94, 98)
stamp_n = [0]

A = Asm()
VP = Pool(1, 80)
V = Pool(80, 256)
vST = VP.alloc()
oP = V.take(80, 8); wra = V.take(88, 4)
fr = [V.take(136, 20), V.take(156, 20)]; vc = V.take(176, 20); srow = V.take(124, 8); s12 = V.take(132, 4)
def srd(n): return sr(n, 4)
DP = 'row_mask:0xf bank_mask:0xf'

PADAT = next((a[6:].split(',') for a in OPT if a.startswith('padat=')), None)
pad_n = [1]
PADFROM = next((a[8:].split(',') for a in OPT if a.startswith('padfrom=')), None)
def stamp(force=False):
    if PADFROM:
        n = pad_n[0]; pad_n[0] += 1
        if str(n) in PADFROM[1:]:
            L = A.newlabel('L_pf')
            A(f's_cmp_lg_u32 s{sLAYER}, {PADFROM[0]}')
            A(f's_cbranch_scc1 {L}')
            A('s_memrealtime s[90:91]')
            A('s_waitcnt lgkmcnt(0)')
            A.label(L)
    if PADAT:
        n = pad_n[0]; pad_n[0] += 1
        if n == int(PADAT[1]):
            L = A.newlabel('L_pad')
            A(f's_cmp_lg_u32 s{sLAYER}, {PADAT[0]}')
            A(f's_cbranch_scc1 {L}e')
            A.label(L)
            A(f's_memrealtime {sr(sSTAMP,2)}')
            A('s_waitcnt lgkmcnt(0)')
            A(f's_sub_u32 s{sSTAMP}, s{sSTAMP}, s90')
            A(f's_cmp_lt_u32 s{sSTAMP}, {PADAT[2]}')
            A(f's_cbranch_scc1 {L}')
            A.label(L + 'e')
    if not STAMPS: return
    n = stamp_n[0]; stamp_n[0] += 1
    if 'minstamp' in OPT and not force: return
    assert n < 32
    A(f'{"s_memtime" if "cyc" in sys.argv else "s_memrealtime"} {sr(sSTAMP,2)}')
    A(f's_lshl_b32 s{sST}, s{sLAYER}, 5')
    A(f's_add_u32 s{sST}, s{sST}, {n}')
    A('s_waitcnt lgkmcnt(0)')
    A(f's_mov_b32 m0, s{sST}')
    A('s_nop 0')
    A(f'v_writelane_b32 v{vST}, s{sSTAMP}, m0')

def mk_srd(d, ptr, size):
    A(f's_mov_b32 s{d}, s{ptr}')
    A(f's_and_b32 s{d+1}, s{ptr+1}, 0xffff')
    A(f's_mov_b32 s{d+2}, {size}')
    A(f's_mov_b32 s{d+3}, 0x20000')

def bf_round(dst, src):
    A(f'v_cvt_pk_bf16_f32 v{dst}, 0, v{src}')

def ln_params(s1, s2, mu, var, m, rs, t):
    A(f'v_mul_f32 v{mu}, {hex(f2u(1/512))}, v{s1}')
    A(f'v_mul_f32 v{var}, {hex(f2u(1/512))}, v{s2}')
    A(f'v_fma_f32 v{var}, -v{mu}, v{mu}, v{var}')
    A(f'v_max_f32 v{var}, 0, v{var}')
    round_params(mu, var, m, rs, t)

def round_params(mu, var, m, rs, t):
    bf_round(t, var)
    A(f'v_add_f32 v{t}, {hex(f2u(1e-5))}, v{t}')
    bf_round(t, t)
    A(f'v_sqrt_f32 v{t}, v{t}')
    bf_round(m, mu)
    bf_round(t, t)
    A(f'v_rcp_f32 v{rs}, v{t}')

def finish():
    if PAD:
        L = A.newlabel('L_pad')
        A.label(L)
        A(f's_memrealtime {sr(sSTAMP,2)}')
        A('s_waitcnt lgkmcnt(0)')
        A(f's_sub_u32 s{sSTAMP}, s{sSTAMP}, s90')
        A(f's_cmp_lt_u32 s{sSTAMP}, {PAD}')
        A(f's_cbranch_scc1 {L}')
    if STAMPS:
        stamp(True)
        A(f's_lshl_b32 s{sT0}, s2, 10')
        A(f's_add_u32 s{sT0}, s{sT0}, {WS_STAMP}')
        A(f'v_lshlrev_b32 v{t0}, 2, v0')
        A(f'buffer_store_dword v{vST}, v{t0}, {srd(SRD_WS)}, s{sT0} offen')
    A('s_endpgm')

def mf(d, a, b, c, k32=True):
    return f'v_mfma_f32_16x16x{32 if k32 else 16}_bf16 {d}, {a}, {b}, {c}'
def emit(x):
    if callable(x): x()
    elif isinstance(x, tuple): A(x[0], tag=x[1])
    else: A(x)


class Defer:
    def __init__(self, out): self.out = out
    def __enter__(self):
        if 'defer' in OPT: self.save = A.lines; A.lines = []
    def __exit__(self, *a):
        if 'defer' not in OPT: return
        for l in A.lines:
            if l.op == 's_nop': continue
            if l.op.startswith(('s_cselect', 's_addc', 's_subb')): self.out[-1].append(l.text)
            else: self.out.append([l.text])
        A.lines = self.save
D1, D2, D3, D4 = [], [], [], []
A.raw(f'{NAME}_kernel:')
A('s_cmp_ge_u32 s2, 256')
A('s_cbranch_scc1 L_end')
PAD = int(next((a[6:] for a in OPT if a.startswith('padto=')), '0'))
if PAD or PADAT: A('s_memrealtime s[90:91]')
if STAMPS: A(f'{"s_memtime" if "cyc" in sys.argv else "s_memrealtime"} s[90:91]')
A(f's_load_dwordx2 {sr(SRD_W,2)}, s[0:1], 8')
A(f's_load_dwordx2 {sr(SRD_X,2)}, s[0:1], 0')
P_X, P_W, P_WO, P_BX, P_WR, P_WG, P_WU, P_WD, P_OUT, P_DBG, P_WS = [P + 2 * i for i in range(11)]
vL = VP.alloc(); vQ = VP.alloc(); vG = VP.alloc(); vL16 = VP.alloc()
t0 = VP.alloc(); t1 = VP.alloc(); t2 = VP.alloc(); t3 = VP.alloc()
vDum = VP.alloc()
vXe = VP.alloc(); vXo = VP.alloc()
vR8 = V.take(93); vWo = V.take(92); vWd = V.alloc(); vSt = V.alloc()
A(f'v_lshrrev_b32 v{t0}, 6, v0')
A(f'v_lshrrev_b32 v{t1}, 3, v0')
A(f'v_readfirstlane_b32 s{sW}, v{t0}')
A(f'v_and_b32 v{t2}, 2, v{t1}')
A(f'v_and_b32 v{t0}, 1, v{t0}')
A(f'v_lshl_or_b32 v{t2}, v{t0}, 2, v{t2}')
A(f'v_and_b32 v{t3}, 7, v0')
A(f'v_xor_b32 v{t2}, v{t2}, v{t3}')
A(f's_bfe_u32 s{sHG}, s2, 0x30003')
A(f's_lshl_b32 s{sT0}, s{sHG}, 7')
A(f'v_lshl_add_u32 v{t2}, v{t2}, 4, s{sT0}')
A(f'v_mul_u32_u24 v{vWd}, 3072, v{t1}')
A(f'v_add_u32 v{vWd}, v{vWd}, v{t2}')
A(f's_mul_i32 s{sWM}, s{sW}, 3072')
A(f's_add_u32 s{sWM}, s{sWM}, {L_W}')
A(f's_mov_b32 s{SRD_W+2}, {512 * 3072}')
A(f's_mov_b32 s{SRD_W+3}, 0x20000')
A(f's_mov_b32 s{SRD_X+2}, {2 * MB}')
A(f's_mov_b32 s{SRD_X+3}, 0x20000')
A(f'v_lshl_add_u32 v{vWo}, v{t1}, 10, v{t2}')
A(f'v_bfe_u32 v{vG}, v0, 4, 2')
A(f'v_and_b32 v{vR8}, 7, v{t1}')
A(f'v_xor_b32 v{t2}, v{t3}, v{vG}')
A(f'v_lshlrev_b32 v{t2}, 4, v{t2}')
A(f'v_lshl_add_u32 v{vXe}, v{vR8}, 11, v{t2}')
A(f'v_xor_b32 v{vXo}, 64, v{vXe}')
A(f'v_add_u32 v{vXo}, {8 * 2048}, v{vXo}')
A(f's_and_b32 s{sSET}, s2, 7')
A(f's_lshr_b32 s{sT0}, s2, 6')
A(f's_lshl_b32 s{sRB}, s{sSET}, 2')
A(f's_add_u32 s{sRB}, s{sRB}, s{sT0}')
A(f's_and_b32 s{sJ0}, s{sRB}, 15')
A(f's_lshl_b32 s{sT4}, s{sJ0}, 17')
A(f's_and_b32 s{sT1}, s{sRB}, 16')
A(f's_lshl_b32 s{sT1}, s{sT1}, 6')
A(f's_add_u32 s{sT4}, s{sT4}, s{sT1}')
A(f's_lshl_b32 s{sAB}, s{sW}, 15')
A(f's_add_u32 s{sAB}, s{sAB}, s{sT4}')
A(f's_lshl_b32 s{sAM}, s{sW}, 11')
A(f's_mov_b32 s{sLAYER}, 0')
if STAMPS: A(f'v_mov_b32 v{vST}, 0')
A('s_waitcnt lgkmcnt(0)')
if STAMPS:
    A(f'v_writelane_b32 v{vST}, s90, 0'); stamp_n[0] = 1
stamp()
def stage_dma(s):
    H = []
    for ksl in range(2):
        ks = 2 * s + ksl
        H.append([f's_add_u32 m0, s{sAM}, {L_A + s * 8192 + ksl * 1024}',
                  f's_add_u32 s{sT3}, s{sAB}, {s * 128}',
                  (f'buffer_load_dwordx4 v{vXo if ksl else vXe}, {srd(SRD_X)}, s{sT3} offen{NTX if s == 0 else ""} lds', f'S{s}'),
                  (f's_sub_u32 m0, s{sWM}, {L_W - L_W15}' if ks == 15 else f's_add_u32 m0, s{sWM}, {SLOT[s % 3] + ksl * 12288}'),
                  f's_mov_b32 s{sT3}, {ks * 98304}'] +
                 [(f'buffer_load_dwordx4 v{vWd}, {srd(SRD_W)}, s{sT3} offen offset:{m * 1024} lds', f'S{s}') for m in range(3)])
    return H
NTX = next((' ' + a[4:].replace('+', ' ') for a in OPT if a.startswith('xpol')), ' nt'); NTP = ''
def halo_dma(j): return [f's_add_u32 m0, s{sT4}, {L_HA + 4 * j * HST}'] + ([f's_add_u32 s{sT5}, s{sT5}, 512'] if j else []) + \
                        [(f'buffer_load_dwordx4 v{vXo}, {srd(SRD_X)}, s{sT5} offen{NTX} lds', 'S2' if j else 'S0')]
g0 = []
for hh in stage_dma(0): g0 += [hh[:3], hh[3:6], hh[6:7], hh[7:8]]
for _ in range(2):
    for x in g0.pop(0): emit(x)
A(f's_load_dwordx16 s[{P}:{P+15}], s[0:1], 0')
A(f's_load_dwordx4 s[{P+16}:{P+19}], s[0:1], 64')
A(f's_load_dwordx2 s[{P+20}:{P+21}], s[0:1], 80')
vTw = V.alloc(); vTo = V.alloc()
A.sprinkle = (g0, 5, emit)
A(f'v_and_b32 v{vL}, 63, v0')
A(f'v_and_b32 v{vQ}, 15, v0')
A(f'v_lshlrev_b32 v{vL16}, 4, v{vL}')
A(f's_lshr_b32 s{sI}, s2, 3')
A(f's_lshr_b32 s{sP}, s{sRB}, 4')
A(f's_lshl_b32 s{sT2}, s{sHG}, 2')
A(f's_add_u32 s{sT2}, s{sT2}, s{sW}')
A(f's_lshl_b32 s{sT2}, s{sT2}, 12')
A(f's_add_u32 s{sT2}, s{sT2}, s{sT4}')
A(f'v_lshrrev_b32 v{t0}, 5, v{vL}')
A(f'v_and_b32 v{t1}, 31, v{vL}')
A(f'v_lshlrev_b32 v{t1}, 4, v{t1}')
A(f'v_lshl_add_u32 v{vSt}, v{t0}, 11, v{t1}')
A(f's_min_u32 s{sT5}, s{sJ0}, 1')
A(f's_xor_b32 s{sFIRST}, s{sT5}, 1')
A(f's_lshl_b32 s{sT5}, s{sT5}, 15')
A(f's_sub_u32 s{sT5}, s{sT4}, s{sT5}')
A(f's_lshl_b32 s{sT1}, s{sW}, 7')
A(f's_add_u32 s{sT5}, s{sT5}, s{sT1}')
A(f's_mul_i32 s{sT4}, s{sW}, {HST}')
A(f's_lshl_b32 s{sJ0}, s{sJ0}, 6')
A(f's_lshl_b32 s{sT0}, s2, 2')
A(f's_add_u32 s{sT0}, s{sT0}, s{sW}')
A(f's_mul_i32 s{sT1}, s{sT0}, {12 * 128}')
A(f's_lshl_b32 s{sT0}, s{sT0}, 9')
A(f'v_lshl_add_u32 v{vTw}, v{vL}, 7, s{sT1}')
A(f'v_lshl_add_u32 v{vTo}, v{vL}, 7, s{sT0}')
A(f's_lshl_b32 s{sU0}, s{sI}, 2')
A(f's_add_u32 s{sU0}, s{sU0}, s{sW}')
A(f's_lshl_b32 s{sT0}, s{sU0}, 10')
A(f'v_lshl_add_u32 v{t3}, v{vQ}, 17, s{sT0}')
A(f'v_cmp_lt_u32 vcc, 15, v{vL}')
A.sprinkle = None
assert not g0
for x in halo_dma(0): emit(x)
A(f's_sub_u32 s{sT0}, 384, s{SRD_W}')
A(f's_and_b32 s{sT0}, s{sT0}, 0x380')
A(f'v_add_u32 v{t0}, s{sT0}, v{t3}')
A(f'v_cndmask_b32 v{vTw}, v{vTw}, v{t0}, vcc')
A(f's_getpc_b64 {sr(sT0,2)}')
A.label('L_pc')
A(f's_lshl_b32 s{sU0}, s{sU0}, 8')
A(f'v_lshl_add_u32 v{t0}, v{vL}, 7, s{sU0}')
A(f'v_min_u32 v{t0}, L_end-L_pc, v{t0}')
A('s_mov_b64 exec, 3')
A(f'global_load_dword v{vDum}, v{t0}, {sr(sT0,2)}', tag='code')
A('s_mov_b64 exec, 0x0fff0fff')
A(f'buffer_load_dword v{vDum}, v{vTw}, {srd(SRD_W)}, 0 offen', tag='touch')
A('s_mov_b64 exec, -1')
A(f'buffer_load_dwordx4 {vr(srow,4)}, v{vSt}, {srd(SRD_X)}, s{sT2} offen{NTX}', tag='srow')
A(f'buffer_load_dwordx4 {vr(srow+4,4)}, v{vSt}, {srd(SRD_X)}, s{sT2} offen offset:512{NTX}', tag='srow')
A('s_waitcnt lgkmcnt(0)')
A(f's_add_u32 s{sT0}, s{P_WS}, {WS_EPOCH}')
A(f's_addc_u32 s{sT1}, s{P_WS+1}, 0')
A(f's_load_dword s{sTAG}, {sr(sT0,2)}, 0')
A(f's_sub_u32 s{sT0}, 384, s{P_WO}')
A(f's_and_b32 s{sT0}, s{sT0}, 0x380')
A(f'v_add_u32 v{t0}, s{sT0}, v{t3}')
A(f'v_cndmask_b32 v{vTo}, v{vTo}, v{t0}, vcc')
def promote():
    A('s_mov_b32 exec_lo, 0x01010101')
    A('s_mov_b32 exec_hi, 0x01010101')
    A(f'buffer_load_dword v{vDum}, v{vSt}, {srd(SRD_X)}, s{sU3} offen sc1')
    A(f'buffer_load_dword v{vDum}, v{vSt}, {srd(SRD_X)}, s{sU3} offen offset:512 sc1')
    A('s_mov_b64 exec, -1')
A(f's_mov_b32 s{sU3}, s{sT2}')
promote()
V.release(vTw)
tp = V.alloc(2, 2)
A(f'v_mov_b32 v{tp}, s{P_WR}')
A(f'v_mov_b32 v{tp+1}, s{P_WR+1}')
A(f'v_lshl_add_u32 v{tp}, v{vL}, 7, v{tp}')
pages = [(P_WS, 2 * MB - 128), (P_WS, 4 * MB), (P_WS, 6 * MB), (P_WS, 10 * MB), (P_WS, 12 * MB), (P_OUT, 0), (P_WG, 0), (P_WU, 0), (P_WD, 0)]
for n, (p_, off) in enumerate(pages):
    if off == 6 * MB:
        A(f's_lshl_b32 s{sT0}, s{sRB}, 3')
        A(f's_add_u32 s{sT0}, s{sT0}, s{sHG}')
        A(f's_lshl_b32 s{sT0}, s{sT0}, 7')
        A(f's_add_u32 s{sT0}, s{sT0}, {WS_ST0}')
        A(f's_add_u32 s{sT0}, s{p_}, s{sT0}')
        A(f's_addc_u32 s{sT1}, s{p_+1}, 0')
        A(f'v_writelane_b32 v{tp}, s{sT0}, {8 + n}')
        A(f'v_writelane_b32 v{tp+1}, s{sT1}, {8 + n}')
    elif off:
        A(f's_add_u32 s{sT0}, s{p_}, {off}')
        A(f's_addc_u32 s{sT1}, s{p_+1}, 0')
        A(f'v_writelane_b32 v{tp}, s{sT0}, {8 + n}')
        A(f'v_writelane_b32 v{tp+1}, s{sT1}, {8 + n}')
    else:
        A(f'v_writelane_b32 v{tp}, s{p_}, {8 + n}')
        A(f'v_writelane_b32 v{tp+1}, s{p_+1}, {8 + n}')
A(f's_add_u32 s{sT0}, s{P_WR}, 1024')
A(f's_cselect_b32 s{sT0}, {hex(((1 << len(pages)) - 1) << 8)}, {0}')
A(f's_cselect_b32 s{sT0}, s{sT0}, {hex((1 << (8 + len(pages))) - 1)}')
A(f's_lshl_b32 s{sT1}, 0x11111111, s{sW}')
A(f's_and_b32 exec_lo, s{sT0}, s{sT1}')
A('s_mov_b32 exec_hi, 0')
A(f'global_load_dword v{vDum}, {vr(tp,2)}, off sc1', tag='touch')
if True:
    A('s_mov_b64 exec, 0x000f000f')
    A(f'global_load_dword v{vDum}, v{vTo}, {sr(P_WO,2)}', tag='touch')
A('s_mov_b64 exec, -1')
V.release(vTo)
V.release(tp, 2)
mk_srd(SRD_WS, P_WS, WS_SIZE)
with Defer(D3):
    mk_srd(SRD_OUT, P_OUT, 2 * MB)
    A(f's_cmp_lt_u32 s{sW}, 2')
    A(f's_cselect_b64 {sr(SRD_T,2)}, {sr(P_WG,2)}, {sr(P_WU,2)}')
    A(f's_and_b32 s{SRD_T+1}, s{SRD_T+1}, 0xffff')
    A(f's_mov_b32 s{SRD_T+2}, {512 * 2752}')
    A(f's_mov_b32 s{SRD_T+3}, 0x20000')
    mk_srd(SRD_U, P_WD, 1376 * 1024)
    A(f's_and_b32 s{sT0}, s{sI}, {31 if "static" in OPT else 15}')
    A(f's_mul_i32 s{sFS}, s{sSET}, 11')
    A(f's_add_u32 s{sFS}, s{sFS}, s{sT0}')
    A(f's_cmp_lt_u32 s{sT0}, 11')
    A(f's_cselect_b32 s{sHASF}, 1, 0')
    A(f's_cmp_lt_u32 s{sFS}, 86')
    A(f's_cselect_b32 s{sHASF}, s{sHASF}, 0')
    vFp = V.alloc(3); vFd = vR8; vFr = VP.alloc(); vFs = VP.alloc()
    A(f's_lshl_b32 s{sT0}, s{sI}, 1')
    A(f's_and_b32 s{sT1}, s{sW}, 1')
    A(f's_add_u32 s{sT0}, s{sT0}, s{sT1}')
    A(f's_mul_i32 s{sT0}, s{sT0}, {8 * 2752}')
    A(f's_mul_i32 s{sT1}, s{sSET}, 352')
    A(f's_add_u32 s{sT0}, s{sT0}, s{sT1}')
    for n in range(3):
        A(f'v_add_u32 v{t0}, {64 * n}, v{vL}')
        A(f'v_mul_u32_u24 v{t1}, 171, v{t0}')
        A(f'v_lshrrev_b32 v{t1}, 12, v{t1}')
        A(f'v_mul_u32_u24 v{t1}, {2752 - 384}, v{t1}')
        A(f'v_lshl_add_u32 v{t0}, v{t0}, 4, s{sT0}')
        A(f'v_add_u32 v{vFp+n}, v{t0}, v{t1}')
    A(f'v_bfe_u32 v{t1}, v{vL}, 2, 2')
    A(f'v_lshl_add_u32 v{t0}, v{vG}, 3, v{t1}')
    A(f'v_mul_u32_u24 v{vFr}, 384, v{t0}')
    A(f'v_and_b32 v{t0}, 3, v{vL}')
    A(f'v_lshl_add_u32 v{vFr}, v{t0}, 3, v{vFr}')
    A(f's_lshl_b32 s{sT0}, s{sW}, 5')
    A(f's_add_u32 s{sT0}, s{sT0}, {L_FT}')
    A(f'v_add_u32 v{vFr}, s{sT0}, v{vFr}')
    A(f'v_lshlrev_b32 v{vFs}, 4, v{t0}')
    A(f'v_lshl_add_u32 v{vFs}, v{t1}, 13, v{vFs}')
    A(f'v_and_b32 v{t0}, 1, v{vG}')
    A(f'v_lshl_add_u32 v{vFs}, v{t0}, 8, v{vFs}')
    A(f'v_lshrrev_b32 v{t0}, 1, v{vG}')
    A(f'v_lshl_add_u32 v{vFs}, v{t0}, 6, v{vFs}')
    A(f's_mul_i32 s{sT0}, s{sSET}, 12')
    A(f's_add_u32 s{sT0}, s{sT0}, s{sW}')
    A(f's_lshl_b32 s{sT0}, s{sT0}, 15')
    A(f's_and_b32 s{sT1}, s{sI}, 15')
    A(f's_lshl_b32 s{sT1}, s{sT1}, 9')
    A(f's_add_u32 s{sT0}, s{sT0}, s{sT1}')
    A(f's_lshr_b32 s{sT1}, s{sI}, 4')
    A(f's_lshl_b32 s{sT1}, s{sT1}, 7')
    A(f's_add_u32 s{sT0}, s{sT0}, s{sT1}')
    A(f's_add_u32 s{sT0}, s{sT0}, {WS_FT}')
    A(f'v_add_u32 v{vFs}, s{sT0}, v{vFs}')
    A(f's_lshl_b32 s{sT1}, s{sFS}, 14')
    A(f's_cmp_eq_u32 s{sHASF}, 1')
    A(f's_cselect_b32 s{sT1}, s{sT1}, 0x40000000')
    A(f's_lshl_b32 s{sT0}, s{sW}, 12')
    A(f's_add_u32 s{sT1}, s{sT1}, s{sT0}')
    A(f'v_add_u32 v{vFd}, s{sT1}, v{vL16}')
aFG, aFD = 192, 224
vOnes = VP.alloc(2, 2)
A(f'v_mov_b32 v{vOnes}, 0x3f803f80')
A(f'v_mov_b32 v{vOnes+1}, 0x3f803f80')
A(f'v_lshrrev_b32 v{t0}, 5, v0')
A(f'v_mul_u32_u24 v{t0}, {HST}, v{t0}')
A(f'v_and_b32 v{t1}, 31, v0')
A(f'v_lshl_add_u32 v{t0}, v{t1}, 2, v{t0}')
A(f'v_add_u32 v{t0}, {L_HA + 1024}, v{t0}')
A(f'ds_write2_b32 v{t0}, v{vOnes}, v{vOnes} offset0:0 offset1:32')
with Defer(D1):
    vQ4 = VP.alloc(); vG16 = VP.alloc(); vGm = VP.alloc()
    A(f'v_lshlrev_b32 v{vQ4}, 2, v{vQ}')
    A(f'v_add_u32 v{vQ4}, {L_TAB}, v{vQ4}')
    A(f'v_lshlrev_b32 v{vG16}, 4, v{vG}')
    A(f'v_add_u32 v{vG16}, {L_TAB}, v{vG16}')
    A(f'v_mov_b32 v{t0}, 0')
    A(f'ds_write2_b32 v{vQ4}, v{t0}, v{t0} offset0:0 offset1:80')
    A(f'v_and_b32 v{t0}, 1, v{vG}')
    A(f'v_lshlrev_b32 v{vGm}, 5, v{t0}')
    A(f'v_lshrrev_b32 v{t1}, 1, v{vG}')
    A(f'v_lshl_add_u32 v{vGm}, v{t1}, 4, v{vGm}')
    vOst = VP.alloc()
    A(f'v_lshlrev_b32 v{vOst}, 14, v{t0}')
    A(f'v_lshl_add_u32 v{vOst}, v{t1}, 8, v{vOst}')
    A(f'v_lshl_add_u32 v{vOst}, v{vQ}, 4, v{vOst}')
    A(f's_lshl_b32 s{sT0}, s{sRB}, 16')
    A(f's_lshl_b32 s{sT1}, s{sHG}, 11')
    A(f's_add_u32 s{sT0}, s{sT0}, s{sT1}')
    A(f's_lshl_b32 s{sT1}, s{sW}, 9')
    A(f's_add_u32 s{sT0}, s{sT0}, s{sT1}')
    A(f'v_add_u32 v{vOst}, s{sT0}, v{vOst}')
vA = VP.alloc(2); vH = VP.alloc(2)
A(f'v_lshrrev_b32 v{t0}, 1, v{vQ}')
A(f'v_xor_b32 v{t0}, v{vG}, v{t0}')
A(f'v_lshlrev_b32 v{t0}, 4, v{t0}')
A(f'v_lshl_add_u32 v{vA}, v{vQ}, 7, v{t0}')
A(f'v_and_b32 v{t1}, 1, v{vQ}')
A(f'v_lshlrev_b32 v{t1}, 7, v{t1}')
A(f'v_lshl_add_u32 v{t1}, v{vG}, 4, v{t1}')
A(f'v_add_u32 v{t1}, {L_HA + 1024}, v{t1}')
A(f'v_add_u32 v{t2}, {L_HA - 1024}, v{vA}')
A(f'v_cmp_lt_u32 vcc, 7, v{vQ}')
A(f'v_cndmask_b32 v{vH}, v{t1}, v{t2}, vcc')
A(f'v_xor_b32 v{vA+1}, 64, v{vA}')
A(f'v_xor_b32 v{vH+1}, 64, v{vH}')
vWr = V.alloc(); vBo = VP.alloc(4)
A(f'v_bfe_u32 v{t0}, v{vL}, 2, 2')
A(f'v_and_b32 v{t2}, 3, v{vL}')
A(f'v_lshlrev_b32 v{t2}, 3, v{t2}')
A(f'v_lshl_add_u32 v{t2}, v{t0}, 7, v{t2}')
A(f'v_lshrrev_b32 v{t0}, 1, v{t0}')
A(f'v_and_b32 v{t1}, 1, v{vG}')
A(f'v_lshl_or_b32 v{t0}, v{t1}, 1, v{t0}')
A(f'v_lshl_add_u32 v{t2}, v{t0}, 5, v{t2}')
A(f'v_lshl_add_u32 v{vBo}, v{vG}, 10, v{t2}')
A(f'v_add_u32 v{vBo}, {L_WO}, v{vBo}')
assert L_WO % 128 == 0 and L_W % 128 == 0
for t in range(1, 4): A(f'v_xor_b32 v{vBo+t}, {t << 5}, v{vBo}')
A(f's_lshl_b32 s{sT0}, s{sW}, 5')
A(f'v_xor_b32 v{t2}, s{sT0}, v{t2}')
A(f'v_mul_u32_u24 v{vWr}, 3072, v{vG}')
vWr15 = V.alloc()
A(f'v_add_u32 v{vWr15}, v{vWr}, v{t2}')
A(f'v_add_u32 v{vWr}, {L_W}, v{vWr15}')
assert L_W15 == 0
with Defer(D1):
    A(f's_lshl_b32 s{sOM}, s{sW}, 10')
    A(f's_add_u32 s{sOM}, s{sOM}, {L_WO}')
with Defer(D4):
    vBP = VP.alloc(4, 2); vBC = VP.alloc(4, 2); vBP0 = VP.alloc(4, 2); vMP = VP.alloc(2)
    A(f'v_lshlrev_b32 v{t0}, 2, v{vG}')
    A(f'v_sub_u32 v{t0}, v{vQ}, v{t0}')
    A(f'v_mov_b32 v{t2}, 0xff800000')
    A(f's_cmp_eq_u32 s{sFIRST}, 1')
    A(f's_cselect_b64 {sr(sM0,2)}, 0, -1')
    for r in range(4):
        A(f'v_add_u32 v{t1}, {-r}, v{t0}')
        A(f'v_cmp_lt_u32 vcc, 7, v{t1}')
        A(f'v_cndmask_b32 v{vBC+r}, 0, v{t2}, vcc')
        A(f'v_cmp_lt_i32 vcc, -9, v{t1}')
        A(f'v_cndmask_b32 v{vBP+r}, 0, v{t2}, vcc')
        A(f'v_cndmask_b32 v{vBP0+r}, v{t2}, v{vBP+r}, {sr(sM0,2)}')
        A(f'v_mov_b32 v{t3}, {hex(0xffff0000 if r & 1 else 0xffff)}')
        if r & 1:
            A(f'v_cndmask_b32 v{t3}, v{t3}, 0, vcc')
            A(f'v_or_b32 v{vMP + (r >> 1)}, v{vMP + (r >> 1)}, v{t3}')
        else:
            A(f'v_cndmask_b32 v{vMP + (r >> 1)}, v{t3}, 0, vcc')
    A(f's_mov_b32 s{sM0}, 0xaaaaaaaa')
    A(f's_mov_b32 s{sM0+1}, 0xaaaaaaaa')
    A(f's_mov_b32 s{sM1}, 0xcccccccc')
    A(f's_mov_b32 s{sM1+1}, 0xcccccccc')
with Defer(D2):
    vS0 = V.alloc(); vS0w = V.alloc(); vPf = V.alloc(); vS4 = V.alloc(4, 2)
    A(f's_lshl_b32 s{sT0}, s{sRB}, 10')
    A(f's_add_u32 s{sT0}, s{sT0}, {WS_ST0 - 128}')
    A(f'v_lshl_add_u32 v{vS0}, v0, 4, s{sT0}')
    A(f's_lshl_b32 s{sT0}, s{sSET}, 12')
    A(f's_add_u32 s{sT0}, s{sT0}, {WS_ST0}')
    A(f'v_and_b32 v{t0}, 31, v{vL}')
    A(f'v_lshl_add_u32 v{t0}, v{t0}, 7, s{sT0}')
    A(f'v_cmp_le_u32 vcc, 128, v0')
    A(f'v_cndmask_b32 v{vS0}, v{vS0}, v{t0}, vcc')
    A(f'v_lshlrev_b32 v{vS0w}, 2, v0')
    A(f'v_add_u32 v{vS0w}, {L_TAB + 32}, v{vS0w}')
    A(f's_lshl_b32 s{sT0}, s2, 2')
    A(f's_add_u32 s{sT0}, s{sT0}, s{sW}')
    A(f's_mul_i32 s{sT0}, s{sT0}, 640')
    A(f's_add_u32 s{sT0}, s{sT0}, {WS_SENT}')
    A(f'v_add_u32 v{t0}, s{sT0}, v{vL16}')
    A(f's_lshl_b32 s{sSTB}, s{sRB}, 2')
    A(f's_add_u32 s{sSTB}, s{sSTB}, s{sW}')
    A(f'v_mov_b32 v{t1}, 0x40000000')
    A(f'v_cmp_gt_u32 vcc, 40, v{vL}')
    A(f'v_cndmask_b32 v{vPf}, v{t1}, v{t0}, vcc')
    A(f'v_cmp_gt_u32 vcc, 16, v{vL}')
    vTs = V.alloc()
    A(f'v_mov_b32 v{vTs}, v{t1}')
    if 'olocal' in OPT:
        A(f's_lshl_b32 s{sT0}, s{sI}, 2')
        A(f's_add_u32 s{sT0}, s{sT0}, s{sW}')
        A(f's_lshl_b32 s{sT0}, s{sT0}, 11')
        A(f's_lshl_b32 s{sT1}, s{sSET}, 18')
        A(f's_add_u32 s{sT0}, s{sT0}, s{sT1}')
        A(f'v_lshl_add_u32 v{t0}, v{vL}, 7, s{sT0}')
        A(f'v_cndmask_b32 v{vTs}, v{t1}, v{t0}, vcc')
    A(f's_lshl_b32 s{sT0}, s{sSTB}, 11')
    A(f's_lshl_b32 s{sT1}, s{sHG}, 8')
    A(f's_add_u32 s{sT0}, s{sT0}, s{sT1}')
    for n, off in enumerate((0, 128)):
        A(f's_add_u32 s{sT1}, s{sT0}, {WS_ST + off}')
        A(f'v_writelane_b32 v{vTs}, s{sT1}, {16 + n}')
    A(f's_lshl_b32 s{sT0}, s{sRB}, 9')
    for n, off in enumerate((0, 128, 1 << 14, (1 << 14) + 128)):
        A(f's_add_u32 s{sT1}, s{sT0}, {WS_FL + off}')
        A(f'v_writelane_b32 v{vTs}, s{sT1}, {20 + n}')
    for n, off in enumerate((0, 128, 256)):
        A(f's_add_u32 s{sT1}, s{sT0}, {WS_X1F + off}')
        A(f'v_writelane_b32 v{vTs}, s{sT1}, {27 + n}')
    for r in range(4): A(f'v_mov_b32 v{vS4+r}, -1')
if 'tsearly' in OPT: A(f'buffer_load_dword v{vDum}, v{vTs}, {srd(SRD_WS)}, 0 offen sc1', tag='to')
A(f's_mov_b64 s[70:71], {sr(P_WO,2)}')
A(f's_mov_b64 s[98:99], {sr(P_WR,2)}')
P_WO, P_WR = 70, 98
(aFLp, aFLs, aSTp, aSTs, aKEYs, aKEYp, aCANDs, aCANDb, aYPs, aYPb, aXs, aX1Fp, aX1Fs, aFTFs, aFTFp, aFT, aROW, aOUT) = range(28, 46)
A(f's_lshl_b32 s{aFLp}, s{sRB}, 9')
A(f's_add_u32 s{aFLp}, s{aFLp}, {WS_FL}')
tg = VP.alloc(2, 2)
vRow = VP.alloc(); vXs = VP.alloc(); vStash = VP.alloc(); vQ16 = VP.alloc(); vL8 = VP.alloc(); vO4 = VP.alloc(2)
A(f's_lshl_b32 s{sT2}, s{sHG}, 2')
A(f's_add_u32 s{sT2}, s{sT2}, s{sW}')
A(f's_lshl_b32 s{sT2}, s{sT2}, 3')
A(f's_add_u32 s{aFLs}, s{sT2}, s{aFLp}')
A(f'v_and_b32 v{vL8}, 31, v{vL}')
A(f'v_lshlrev_b32 v{vL8}, 3, v{vL8}')
A(f's_lshl_b32 s{sT0}, s{sSTB}, 14')
A(f'v_add_u32 v{vO4}, s{sT0}, v{vL16}')
A(f'v_add_u32 v{vO4+1}, 8192, v{vO4}')
A(f's_lshl_b32 s{sT1}, s{sHG}, 7')
A(f's_add_u32 s{aXs}, s{sT0}, s{sT1}')
A(f's_add_u32 s{aOUT}, s{sAB}, s{sT1}')
A(f's_lshl_b32 s{aCANDs}, s{sRB}, 13')
A(f's_add_u32 s{aCANDs}, s{aCANDs}, s{sT1}')
A(f's_add_u32 s{aCANDs}, s{aCANDs}, {WS_CAND}')
A(f's_mov_b32 s{aCANDb}, {WS_CAND}')
A(f's_lshl_b32 s{aSTp}, s{sSTB}, 11')
A(f's_add_u32 s{aSTp}, s{aSTp}, {WS_ST}')
A(f's_lshl_b32 s{sT1}, s{sHG}, 8')
A(f's_add_u32 s{aSTs}, s{aSTp}, s{sT1}')
A(f's_add_u32 s{aYPb}, s{sT1}, {WS_YP}')
A(f's_lshl_b32 s{aYPs}, s{sFS}, 12')
A(f's_add_u32 s{aYPs}, s{aYPs}, {WS_YP}')
A(f's_lshl_b32 s{aKEYs}, s{sHG}, 7')
A(f's_add_u32 s{aKEYs}, s{aKEYs}, s{sSTB}')
A(f's_lshl_b32 s{aKEYs}, s{aKEYs}, 3')
A(f's_add_u32 s{aKEYs}, s{aKEYs}, {WS_KEYS}')
A(f's_lshl_b32 s{aKEYp}, s{sSET}, 10')
A(f's_add_u32 s{aKEYp}, s{aKEYp}, {WS_KEYS}')
A(f's_add_u32 s{aX1Fp}, s{aFLp}, {WS_X1F - WS_FL}')
A(f's_lshl_b32 s{sT2}, s{sW}, 3')
A(f's_add_u32 s{sT2}, s{sT2}, s{sHG}')
A(f's_lshl_b32 s{sT2}, s{sT2}, 3')
A(f's_add_u32 s{aX1Fs}, s{aX1Fp}, s{sT2}')
A(f's_and_b32 s{sT2}, s{sI}, 15')
A(f's_lshl_b32 s{sT2}, s{sT2}, 2')
A(f's_add_u32 s{sT2}, s{sT2}, s{sW}')
A(f's_mul_i32 s{sT1}, s{sSET}, 48')
A(f's_add_u32 s{sT1}, s{sT1}, s{sT2}')
A(f's_lshl_b32 s{aFT}, s{sT1}, 13')
A(f's_add_u32 s{aFT}, s{aFT}, {WS_FT}')
A(f's_lshl_b32 s{aROW}, s{sSTB}, 4')
A(f'v_lshl_add_u32 v{vRow}, v{vQ}, 10, v{vGm}')
A(f'v_mov_b32 v{vXs}, v{vRow}')
A(f'v_lshlrev_b32 v{vQ16}, 4, v{vQ}')
A(f's_lshl_b32 s{sT2}, s{sW}, 9')
A(f's_add_u32 s{sT2}, s{sT2}, {L_CS}')
A(f'v_add_u32 v{vStash}, s{sT2}, v{vGm}')
gr = V.alloc(4, 2)
A(f'v_mov_b32 v{s12}, 0')
A(f'v_mov_b32 v{s12+1}, 0')
A(f's_getreg_b32 s{sTAGB}, hwreg(HW_REG_XCC_ID)')
A(f's_and_b32 s{sTAGB}, s{sTAGB}, 15')
A(f's_lshl_b32 s{sT2}, s{sRB}, 3')
A(f's_add_u32 s{sT2}, s{sT2}, s{sHG}')
A(f's_lshl_b32 s{sT2}, s{sT2}, 2')
A(f's_add_u32 s{sT2}, s{sT2}, s{sW}')
A(f's_lshl_b32 s{sT2}, s{sT2}, 5')
A(f's_add_u32 s{sT2}, s{sT2}, {WS_ST0}')
A(f'v_lshrrev_b32 v{t1}, 1, v{vL}')
g1 = []; g2 = []
for hh in stage_dma(1): g1 += [hh[:3], hh[3:6], hh[6:7], hh[7:8]]
for hh in stage_dma(2): g2 += [hh[:3], hh[3:6], hh[6:7], hh[7:8]]
g2.append(halo_dma(1))
def dots():
    A.wait_vm('srow')
    if 'prom1' in OPT: promote()
    for j in range(8):
        A(f'v_dot2c_f32_bf16 v{s12}, v{srow+j}, v{vOnes}')
        A(f'v_dot2c_f32_bf16 v{s12+1}, v{srow+j}, v{srow+j}')
if 's0old' in OPT:
    A.wait_vm('srow', 'lgkmcnt(0)')
    stamp()
    A.sprinkle = (g1, 2 if 'stlate' in OPT else 4, emit)
    for j in range(8):
        A(f'v_dot2c_f32_bf16 v{s12}, v{srow+j}, v{vOnes}')
        A(f'v_dot2c_f32_bf16 v{s12+1}, v{srow+j}, v{srow+j}')
else:
    OPT.add('stlate')
    A.wait_vm('S0')
    stamp()
if 'stlate' in OPT:
    A.sprinkle = None
    for g_ in g1:
        for x in g_: emit(x)
    save = A.lines; vmsave = list(A.vm); A.lines = []
    A(f's_mul_i32 s{sTAG}, s{sTAG}, 0x9e3779b1')
    A(f's_add_u32 s{sTAG}, s{sTAG}, 0x7f4a7c15')
    A(f's_mul_i32 s{sT0}, s{sTAG}, 0x85ebca6b')
    for sh in (8, 4, 2, 1):
        for r in range(2): A(f'v_add_f32_dpp v{s12+r}, v{s12+r}, v{s12+r} row_ror:{sh} {DP}')
        if sh == 8: A(f's_brev_b32 s{sT0}, s{sT0}')
        if sh == 4: A(f's_and_b32 s{sT0}, s{sT0}, 0xfffffff0')
        if sh == 2: A(f's_or_b32 s{sTAGB}, s{sTAGB}, s{sT0}')
    for r in range(2): A(f'v_mov_b32 v{s12+2+r}, v{s12+r}')
    A(f'v_mov_b32 v{gr+2}, s{sTAG}')
    for r in range(2): A(f'v_permlane16_swap_b32 v{s12+r}, v{s12+2+r}')
    for r in range(2): A(f'v_add_f32 v{s12+r}, v{s12+r}, v{s12+2+r}')
    ln_params(s12, s12 + 1, s12 + 2, s12 + 3, gr, gr + 1, t0)
    A(f'v_xor_b32 v{gr}, 0x80000000, v{gr}')
    A(f'v_mov_b32 v{gr+3}, s{sTAGB}')
    A('s_mov_b32 exec_lo, 1')
    A('s_mov_b32 exec_hi, 1')
    A(f'buffer_store_dwordx4 {vr(gr,4)}, v{t1}, {srd(SRD_WS)}, s{sT2} offen sc1', tag='st0')
    A('s_mov_b64 exec, -1')
    st_lines = [l.text for l in A.lines if l.op != 's_nop']; A.lines = save; A.vm = vmsave
else:
    A(f's_mul_i32 s{sTAG}, s{sTAG}, 0x9e3779b1')
    A(f's_add_u32 s{sTAG}, s{sTAG}, 0x7f4a7c15')
    A(f's_mul_i32 s{sT0}, s{sTAG}, 0x85ebca6b')
    for sh in (8, 4, 2, 1):
        for r in range(2): A(f'v_add_f32_dpp v{s12+r}, v{s12+r}, v{s12+r} row_ror:{sh} {DP}')
        if sh == 8: A(f's_brev_b32 s{sT0}, s{sT0}')
        if sh == 4: A(f's_and_b32 s{sT0}, s{sT0}, 0xfffffff0')
        if sh == 2: A(f's_or_b32 s{sTAGB}, s{sTAGB}, s{sT0}')
    for r in range(2): A(f'v_mov_b32 v{s12+2+r}, v{s12+r}')
    A(f'v_mov_b32 v{gr+2}, s{sTAG}')
    for r in range(2): A(f'v_permlane16_swap_b32 v{s12+r}, v{s12+2+r}')
    for r in range(2): A(f'v_add_f32 v{s12+r}, v{s12+r}, v{s12+2+r}')
    ln_params(s12, s12 + 1, s12 + 2, s12 + 3, gr, gr + 1, t0)
    A(f'v_xor_b32 v{gr}, 0x80000000, v{gr}')
    A(f'v_mov_b32 v{gr+3}, s{sTAGB}')
    A.sprinkle = None
    assert not g1
    A('s_mov_b32 exec_lo, 1')
    A('s_mov_b32 exec_hi, 1')
    A(f'buffer_store_dwordx4 {vr(gr,4)}, v{t1}, {srd(SRD_WS)}, s{sT2} offen sc1', tag='st0')
    A('s_mov_b64 exec, -1')

accQ = V.take(196, 20); accK = V.take(216, 20); accV = V.take(236, 20)
xP = VP.alloc(8, 2)
aux = VP.alloc(8, 2)
vSW = VP.alloc()
def aW(ks, m): return (ks * 3 + m) * 4
def x_reads(ks, b):
    u = ks & 1; kc = ks >> 1
    return [f'ds_read_b128 {vr(b, 4)}, v{vH+u} offset:{kc * HST}'] + \
           [f'ds_read_b128 {vr(b + 4 + 4 * T, 4)}, v{vA+u} offset:{(kc * 8 + 2 * T) * 1024}' for T in range(4)]
def p1_reads(ks):
    so = SLOT[(ks >> 1) % 3] + (ks & 1) * 12288
    if ks == 15: so = 0
    W_ = [f'ds_read_b64_tr_b16 {ar(aW(ks, m) + 2 * h, 2)}, v{vWr15 if ks == 15 else vWr} offset:{so + m * 1024 + h * 512}' for m in range(3) for h in range(2)]
    X_ = x_reads(ks, fr[ks & 1])
    return W_[:2] + X_[:1] + W_[2:] + X_[1:]
def p1_mfmas(ks):
    b = fr[ks & 1]; L = []
    c = lambda x: '0' if ks == 0 else vr(x, 4)
    for T in range(5):
        X = vr(b + 4 * T, 4)
        L.append(mf(vr(accQ + 4 * T, 4), ar(aW(ks, 0), 4), X, c(accQ + 4 * T)))
        L.append(mf(vr(accK + 4 * T, 4), ar(aW(ks, 1), 4), X, c(accK + 4 * T)))
        L.append(mf(vr(accV + 4 * T, 4), X, ar(aW(ks, 2), 4), c(accV + 4 * T)))
    return L
def wo_dma(kss):
    L = []
    for ks in kss:
        L += [f's_add_u32 m0, s{sOM}, {wo_off(ks)}', f's_mov_b32 s{sT3}, {ks * 32768}',
              (f'buffer_load_dwordx4 v{vWo}, {srd(SRD_W)}, s{sT3} offen lds', 'woa' if ks < 4 else 'wo')]
    return L
def hello():
    A('s_mov_b64 exec, 1')
    A(f'buffer_store_dwordx2 {vr(gr+2,2)}, v{vPf}, {srd(SRD_WS)}, s{sU2} offen sc1')
    A('s_mov_b64 exec, -1')
def srd_lines(d, ptr, size):
    return [f's_mov_b32 s{d}, s{ptr}', f's_and_b32 s{d+1}, s{ptr+1}, 0xffff', f's_mov_b32 s{d+2}, {size}', f's_mov_b32 s{d+3}, 0x20000']
s0g = V.alloc(4, 2)
extra = {ks: [] for ks in range(16)}
for g_ in g2: extra[0] += g_
for s in range(5):
    H = stage_dma(s + 3); extra[2 * s + 1] += H[0]; extra[2 * s + 2] += H[1]
extra[11] += [(f'buffer_store_dwordx4 {vr(vS4,4)}, v{vPf}, {srd(SRD_WS)}, 0 offen sc1{NTP}', 'pre')]
extra[11] = [(f'buffer_load_dwordx4 {vr(s0g,4)}, v{vS0}, {srd(SRD_WS)}, 0 offen sc1', 's0g')] + extra[11]
extra[12] += [f's_lshl_b32 s{sU2}, s{sSET}, 9', f's_add_u32 s{sU2}, s{sU2}, s{sI}', f's_lshl_b32 s{sU2}, s{sU2}, 3',
              f's_add_u32 s{sU2}, s{sU2}, {WS_HELLO}', f's_lshl_b32 s{sT0}, s{sW}, 30', f'v_mov_b32 v{vPf}, s{sT0}']
if 'stlate' in OPT:
    tailn = st_lines[-4:]; st_lines = st_lines[:-4]
    nh = len(st_lines) // 2
    valu_extra = {1: st_lines[:nh], 2: st_lines[nh:]}
    extra[3] = [lambda: [A(x) for x in tailn]] + extra[3]
else: valu_extra = {}
vRs = V.alloc(2)
def res_read(early):
    def f():
        L = A.newlabel('L_res')
        A(f's_cmp_lt_u32 s{sHG}, 5')
        A(f's_cbranch_scc{0 if early else 1} {L}')
        A(f'ds_read_b128 {vr(xP,4)}, v{vRs}')
        A(f'ds_read_b128 {vr(xP+4,4)}, v{vRs+1}')
        A.label(L)
    return f
rs_lines = [f'v_lshlrev_b32 v{t0}, 3, v{vQ}', f'v_and_b32 v{t0}, 0x70, v{t0}', f'v_xor_b32 v{t0}, v{t0}, v{vGm}',
            f'v_lshl_add_u32 v{t0}, v{vQ}, 7, v{t0}', f's_lshl_b32 s{sT0}, s{sHG}, 13', f's_add_u32 s{sT0}, s{sT0}, s{sAM}',
            f'v_add_u32 v{vRs}, s{sT0}, v{t0}', f'v_xor_b32 v{vRs+1}, 64, v{vRs}']
grp2fn = lambda g_: (lambda: [A(x) for x in g_])
DD = [grp2fn(g_) for g_ in D1 + [[x] for x in rs_lines] + D2 + D3]
per = -(-len(DD) // 7)
for k_ in range(7): valu_extra[4 + k_] = DD[k_ * per:(k_ + 1) * per]
DD = [grp2fn(g_) for g_ in D4]
valu_extra[11] = DD[:len(DD) // 2]; valu_extra[12] = DD[len(DD) // 2:]
extra[8] += [res_read(True)]
NTF = '' if 'nont' in OPT else ' nt'
NTD = ' nt'
ft_dma = []
for n in range(3):
    ft_dma += [f's_sub_u32 m0, s{sWM}, {L_W - L_FT - n * 1024}', (f'buffer_load_dwordx4 v{vFp+n}, {srd(SRD_T)}, 0 offen{NTF} lds', 'ft')]
wd_dma = [f's_lshl_b32 s{sT0}, s{sW}, 12', f's_add_u32 m0, s{sT0}, {L_WD}'] + \
         [(f'buffer_load_dwordx4 v{vFd}, {srd(SRD_U)}, 0 offen offset:{f * 1024}{NTD} lds', 'wd') for f in range(4)]
extra[11] += srd_lines(SRD_W, P_WO, 512 * 1024)
aux_ld = [f's_lshl_b32 s{sT0}, s{sHG}, 7', f'buffer_load_dwordx4 {vr(aux,4)}, v{vGm}, {srd(SRD_X)}, s{sT0} offen',
          f'buffer_load_dwordx4 {vr(aux+4,4)}, v{vGm}, {srd(SRD_X)}, s{sT0} offen offset:64',
          f'buffer_load_dwordx4 {vr(wra,4)}, v{vL16}, {srd(SRD_X)}, 0 offen']
wd_late = []
if not OPT & {'a0', 'a2', 'a3'}:
    extra[11] += wo_dma([0]); extra[12] += wo_dma([1, 2, 3, 4]); extra[13] += wo_dma([5, 12, 13]) + aux_ld; extra[14] += wo_dma([14]) + ft_dma; extra[15] += wd_dma
    wo_rest = [15, 6, 7, 8, 9, 10, 11]
elif 'a2' in OPT:
    extra[11] += wo_dma([0]); extra[12] += wo_dma([1, 2, 3, 4]); extra[13] += wo_dma([5, 12, 13, 14]); extra[14] += aux_ld + wo_dma([15]) + ft_dma; extra[15] += wd_dma
    wo_rest = [6, 7, 8, 9, 10, 11]
elif 'a3' in OPT:
    extra[11] += wo_dma([0]); extra[12] += wo_dma([1, 2, 3, 4]); extra[13] += wo_dma([5, 12, 13, 14]); extra[14] += wo_dma([15, 6, 7, 8]); extra[15] += aux_ld + ft_dma
    wo_rest = [9, 10, 11]
else:
    extra[11] += wo_dma([0]); extra[12] += wo_dma([1, 2, 3, 4]); extra[13] += wo_dma([5, 12, 13, 14]); extra[14] += wo_dma([15]) + ft_dma; extra[15] += wd_dma
    wo_rest = [6, 7, 8, 9, 10, 11]
extra[12] += srd_lines(SRD_X, P_WR, 1024)
TSM = next((' ' + a[4:].replace('+', ' ') for a in OPT if a.startswith('tsm=')), ' sc1')
KTS = int(next((a[4:] for a in OPT if a.startswith('kts=')), '14'))
if 'tsnt' in OPT: extra[KTS] += [(f'buffer_load_dword v{vDum}, v{vTs}, {srd(SRD_WS)}, 0 offen nt', 'to')]
if 'tsearly' not in OPT: extra[KTS] += [(f'buffer_load_dword v{vDum}, v{vTs}, {srd(SRD_WS)}, 0 offen{TSM}', 'to')]
extra[15] += [res_read(False)]
csQ = VP.alloc(4, 2); csK = VP.alloc(4, 2); csV = VP.alloc(2, 2)
far2 = []
def s0_check():
    A.wait_vm('s0g')
    A.label('L_s0')
    A(f'v_xor_b32 v{t0}, s{sTAG}, v{s0g+2}')
    A(f'v_xor_b32 v{t1}, s{sTAGB}, v{s0g+3}')
    A(f'v_lshrrev_b32 v{t3}, 4, v{t1}')
    A(f'v_or_b32 v{t0}, v{t0}, v{t3}')
    A(f'v_cmp_ne_u32 vcc, 0, v{t0}')
    A(f's_and_b64 vcc, vcc, {sr(sU0,2)}')
    A('s_cbranch_vccnz L_s0r')
    A.label('L_s0ok')
    A(f's_mov_b64 exec, {sr(sT4,2)}')
    A(f'ds_write2_b32 v{vS0w}, v{s0g}, v{s0g+1} offset0:0 offset1:80')
    A('s_mov_b64 exec, -1')
    A(f'ds_write_b32 v{vS0w}, v{t1} offset:{640 - 32}')
far2 += ['L_s0r:', f'buffer_load_dwordx4 {vr(s0g,4)}, v{vS0}, {srd(SRD_WS)}, 0 offen sc1', 's_waitcnt vmcnt(0)',
         f's_sub_u32 s{sGUARD}, s{sGUARD}, 1', 's_cbranch_scc0 L_s0', 's_branch L_s0ok']
def s0_masks():
    A(f's_cmp_eq_u32 s{sW}, 2')
    A(f's_cselect_b64 {sr(sU0,2)}, -1, {sr(sT4,2)}')
valu_extra[13] = [f's_lshl_b32 s{sT1}, s{sFIRST}, 3', f'v_subrev_u32 v{t2}, s{sT1}, v0', f's_sub_u32 s{sT1}, 72, s{sT1}',
                  f'v_cmp_gt_u32 {sr(sT4,2)}, s{sT1}, v{t2}', f's_mov_b32 s{sGUARD}, {1 << 21}', f'v_lshlrev_b32 v{t2}, 2, v{vL}',
                  f'v_add_u32 v{t2}, {L_CS + 512}, v{t2}', s0_masks]
extra[14] = [s0_check] + extra[14]
V.release(srow, 8); V.release(s12, 4)
rp = V.alloc(10, 2); vm = fr[0]
tab_reads = [f'ds_read_b32 v{t1}, v{t2}']
for T in range(5):
    tab_reads += [f'ds_read2_b32 {vr(rp + 2 * T, 2)}, v{vQ4} offset0:{16 * T} offset1:{80 + 16 * T}',
                  f'ds_read_b128 {vr(vm + 4 * T, 4)}, v{vG16} offset:{64 * T}',
                  f'ds_read_b128 {vr(vc + 4 * T, 4)}, v{vG16} offset:{320 + 64 * T}']
cs_lines = []
for r in range(4):
    cs_lines += [f'v_mov_b32_dpp v{csQ+r}, v{accQ+r} row_newbcast:0 {DP}', f'v_mov_b32_dpp v{csK+r}, v{accK+r} row_newbcast:0 {DP}']
cs_lines = [f'v_mov_b32 v{csV}, v{accV}', f'v_mov_b32 v{csV+1}, v{accV}'] + cs_lines + [f'v_permlane32_swap_b32 v{csV}, v{csV+1}']
def drop(L, key): return [x for x in L if not (isinstance(x, tuple) and x[1] == key)]
for key in ('pre', 'wo', 'ft', 'wd', 'to'):
    if 'x' + key in OPT:
        for ks in extra: extra[ks] = drop(extra[ks], key)
if 's0old' in OPT: A.wait_vm('S0', 'lgkmcnt(0)')
else: A('s_waitcnt lgkmcnt(0)')
A('s_barrier')
stamp()
for x in p1_reads(0): A(x)
for ks in range(16):
    A('s_waitcnt lgkmcnt(0)')
    if 'loopstamps' in OPT and ks % 2 == 0 and ks: stamp()
    M = p1_mfmas(ks)
    if ks == 1 and 's0old' not in OPT: dots()
    A(M[0])
    if ks & 1 and ks < 15:
        if not ('nodma' in OPT and ks > 1): A.wait_vm(f'S{(ks + 1) >> 1}')
        if 'nobar' not in OPT: A('s_barrier')
    if ks == 15:
        A.wait_vm('woa')
        A('s_barrier')
    rd = p1_reads(ks + 1) if ks < 15 else tab_reads
    if 'nord' in OPT: rd = []
    if 'notr' in OPT: rd = [x for x in rd if '_tr_' not in x]
    if 'nob128' in OPT: rd = [x for x in rd if '_tr_' in x]
    ex = list(extra[ks])
    if 'nodma' in OPT: ex = [x for x in ex if not (isinstance(x, tuple) and x[0].endswith(' lds'))]
    isvm = lambda x: callable(x) or (x[0] if isinstance(x, tuple) else x).startswith('buffer_')
    nvm = sum(map(isvm, ex)); gaps = len(M) - 1
    slots = [int((j + 0.5) * gaps / nvm) for j in range(nvm)] if nvm else []
    groups = []; cur = []
    for x in ex:
        cur.append(x)
        if isvm(x): groups.append(cur); cur = []
    tail_ = cur
    place = {gi: [] for gi in range(gaps)}
    prev = -1
    for j, grp in enumerate(groups):
        lo = prev + 1 if prev + 1 <= slots[j] else slots[j]
        pre = grp[:-1]
        span = slots[j] - lo + 1
        for n_, x in enumerate(pre): place[lo + n_ * span // max(1, len(pre))].append(x)
        place[slots[j]].append(grp[-1]); prev = slots[j]
    lo = min(prev + 1, gaps - 1); span = gaps - lo
    for n_, x in enumerate(tail_): place[lo + n_ * span // len(tail_)].append(x)
    for mi, m in enumerate(M[1:]):
        A(m)
        if rd: A(rd.pop(0))
        for x in place[mi]: emit(x)
        ve = valu_extra.get(ks, [])
        for _ in range(-(-len(ve) // (gaps - mi))): emit(ve.pop(0))
        if ks == 15:
            if mi < 2: A(rd.pop(0))
            if mi >= 7:
                for _ in range(2):
                    if cs_lines: A(cs_lines.pop(0))
assert not cs_lines and not tab_reads
stamp()
V.release(fr[1], 20)
V.release(vSt); V.release(vWr); V.release(vWr15); V.release(vRs, 2); V.release(vWd); V.release(vTs); V.release(vS4, 4)
V.release(s0g, 4); V.release(vS0); V.release(vS0w)
epi_ins = [[hello]] + ([] if 'a0' not in OPT else [[]] * 8 + [aux_ld[:2], aux_ld[2:3], aux_ld[3:]])
if 'a3' in OPT: epi_ins = [wd_dma[:4], wd_dma[4:]] + epi_ins
SPIN = 1 << 21
def fine():
    if 'fine' in OPT: stamp()
def poll(issue, check, name):
    L = A.newlabel('L_poll'); E = A.newlabel('L_ok')
    A(f's_mov_b32 s{sGUARD}, {SPIN}')
    A.label(L)
    issue()
    A.wait_vm0()
    check()
    A(f's_cbranch_vccz {E}')
    backoff(name)
    A(f's_sub_u32 s{sGUARD}, s{sGUARD}, 1')
    A(f's_cbranch_scc0 {L}')
    A.label(E)
def backoff(name):
    n = int(next((x.split('=')[1] for x in OPT if x.startswith('sl' + name + '=')), next((x[3:] for x in OPT if x.startswith('sl=')), '0')))
    if n: A(f's_sleep {n}')
def repoll(issue, check, name):
    L = A.newlabel('L_rp'); E = A.newlabel('L_ok')
    A(f's_mov_b32 s{sGUARD}, {SPIN}')
    A.label(L)
    A.wait_vm0()
    check()
    A(f's_cbranch_vccz {E}')
    backoff(name)
    issue(); A.vm = []
    A(f's_sub_u32 s{sGUARD}, s{sGUARD}, 1')
    A(f's_cbranch_scc0 {L}')
    A.label(E)
PD = int(next((x[3:] for x in OPT if x.startswith('pd=')), '3'))
def ppoll(issue, check, nld, depth=None, pre=0, gap=7):
    D = depth or PD
    L = A.newlabel('L_pp'); E = A.newlabel('L_ok')
    A(f's_mov_b32 s{sGUARD}, {SPIN}')
    for j in range(pre, D):
        if j and gap: A(f's_nop {gap}'); A(f's_nop {gap}'); A(f's_nop {gap}')
        issue(j)
    A.label(L)
    for j in range(D):
        A(f's_waitcnt vmcnt({(D - 1) * nld})')
        check(j)
        A(f's_cbranch_vccz {E}')
        issue(j)
    A(f's_sub_u32 s{sGUARD}, s{sGUARD}, 1')
    A(f's_cbranch_scc0 {L}')
    A.label(E)
    A.vm = []
def local_stores(lines):
    R = A.newlabel('L_rem'); E = A.newlabel('L_st')
    A(f's_cmp_eq_u32 s{sLOCAL}, 0')
    A(f's_cbranch_scc1 {R}')
    for l in lines: A(l)
    A.label(E)
    A('s_nop 0')
    far.append((R, E, lines))
far = []
def emit_far():
    for l in far2:
        if l.endswith(':'): A.label(l[:-1])
        else: A(l)
    for R, E, lines in far:
        A.label(R)
        for l in lines:
            A(l + (' sc1' if l.startswith('buffer_') else ''))
        A(f's_branch {E}')
def skip_unless(cond_lines):
    E = A.newlabel('L_sk')
    for l in cond_lines: A(l)
    A(f's_cbranch_scc1 {E}')
    return E
def if_layer(n): return skip_unless([f's_cmp_lg_u32 s{sLAYER}, {n}'])
def if_wave(n): return skip_unless([f's_cmp_lg_u32 s{sW}, {n}'])
def if_ffn(): return skip_unless([f's_cmp_eq_u32 s{sHASF}, 0'])
def endif(E, pad=True):
    A.label(E)
    if pad: A('s_nop 1')
def tag_check(r):
    A(f'v_xor_b32 v{r+1}, s{sTAGB}, v{r+1}')
    A(f'v_xor_b32 v{r}, s{sTAG}, v{r}')
    A(f'v_lshrrev_b32 v{r+1}, 4, v{r+1}')
    A(f'v_or_b32 v{r}, v{r}, v{r+1}')
    A(f'v_cmp_ne_u32 vcc, 0, v{r}')

QSC = 0.25 * 1.4426950408889634
hV = 176; mxc = 186
hQ = lambda T: accQ + 4 * (T + 1)
hK = lambda T: accK + 4 * (T + 1)
def s_mfmas(T, Sp, Sc):
    return [mf(vr(Sp + 4 * T, 4), vr(hK(T - 1), 2), vr(hQ(T), 2), vr(vBP0 if T == 0 else vBP, 4), False),
            mf(vr(Sc + 4 * T, 4), vr(hK(T), 2), vr(hQ(T), 2), vr(vBC, 4), False)]
def attention(pre):
    Sp = V.alloc(16, 2); Sc = V.alloc(16, 2); mx = V.alloc(4); pk = V.alloc(8, 2); Ls = accV
    pre = list(pre)
    for T in (1, 2, 3, 0):
        for m_ in s_mfmas(T, Sp, Sc):
            A(m_)
            for _ in range(2):
                if pre: A(pre.pop(0))
    while pre: A(pre.pop(0))
    for T in (1, 2, 3, 0):
        for r in range(4):
            A(f'v_max_f32 v{Sc+4*T+r}, v{Sp+4*T+r}, v{Sc+4*T+r}')
        A(f'v_max3_f32 v{mx+T}, v{Sc+4*T}, v{Sc+4*T+1}, v{Sc+4*T+2}')
        A(f'v_max_f32 v{mx+T}, v{mx+T}, v{Sc+4*T+3}')
    prs = [(mx + 1, mx + 2), (mx + 3, mx)]
    for a_, b_ in prs: A(f'v_permlane16_swap_b32 v{a_}, v{b_}')
    for a_, b_ in prs: A(f'v_max_f32 v{a_}, v{a_}, v{b_}')
    for a_, b_ in prs: A(f'v_mov_b32 v{b_}, v{a_}')
    for a_, b_ in prs: A(f'v_permlane32_swap_b32 v{a_}, v{b_}')
    for a_, b_ in prs: A(f'v_max_f32 v{a_}, v{a_}, v{b_}')
    for a_, b_ in prs: A(f'v_mov_b32 v{b_}, v{a_}')
    for a_, b_ in prs: A(f'v_permlane16_swap_b32 v{a_}, v{b_}')
    for T in range(4):
        A(f'v_mul_f32 v{mxc+2*T+1}, v{mx+T}, v{mxc+2*T}')
    for T in range(4):
        for h in range(2):
            A(f'v_pk_fma_f32 {vr(Sc+4*T+2*h,2)}, {vr(Sc+4*T+2*h,2)}, {vr(mxc+2*T,2)}, {vr(mxc+2*T,2)} op_sel:[0,0,1] op_sel_hi:[1,0,1] neg_lo:[0,0,1] neg_hi:[0,0,1]')
    pend = []
    for T in range(4):
        for r in range(4):
            A(f'v_exp_f32 v{Sc+4*T+r}, v{Sc+4*T+r}')
            if pend and r in (0, 2): A(pend.pop(0))
        for h in range(2):
            A(f'v_cvt_pk_bf16_f32 v{pk+2*T+h}, v{Sc+4*T+2*h}, v{Sc+4*T+2*h+1}')
        for h in range(2):
            A(f'v_and_b32 v{Sp+4*T+h}, v{pk+2*T+h}, v{vMP+h}')
        for h in range(2):
            A(f'v_xor_b32 v{Sp+4*T+2+h}, v{pk+2*T+h}, v{Sp+4*T+h}')
        pend = [mf(vr(Ls + 4 * T, 4), vr(vOnes, 2), vr(pk + 2 * T, 2), '0', False),
                mf(vr(Sc + 4 * T, 4), vr(hV + 2 * T, 4), vr(Sp + 4 * T, 4), '0')]
    A(pend.pop(0))
    A(f'v_rcp_f32 v{Ls}, v{Ls}')
    A(pend.pop(0))
    for T in (1, 2): A(f'v_rcp_f32 v{Ls+4*T}, v{Ls+4*T}')
    for T in range(4):
        if T == 3: A(f'v_rcp_f32 v{Ls+12}, v{Ls+12}')
        if T == 2:
            for h in range(2): A(f'v_permlane16_swap_b32 v{oP+h}, v{oP+2+h}')
        for h in range(2):
            A(f'v_pk_mul_f32 {vr(Sc+4*T+2*h,2)}, {vr(Sc+4*T+2*h,2)}, {vr(Ls+4*T,2)} op_sel_hi:[1,0]')
        for h in range(2):
            A(f'v_cvt_pk_bf16_f32 v{oP+2*T+h}, v{Sc+4*T+2*h}, v{Sc+4*T+2*h+1}')
    for h in range(2): A(f'v_permlane16_swap_b32 v{oP+4+h}, v{oP+6+h}')
    V.release(Sp, 16); V.release(Sc, 16); V.release(mx, 4); V.release(pk, 8)
def norm_pk(T, rpp, vmm, vcc_):
    aq, ak, av = accQ + 4 * (T + 1), accK + 4 * (T + 1), accV + 4 * (T + 1)
    for h in range(2):
        if T >= 0:
            A(f'v_pk_fma_f32 {vr(aq+2*h,2)}, {vr(csQ+2*h,2)}, {vr(rpp,2)}, {vr(aq+2*h,2)} op_sel_hi:[1,0,1]')
        A(f'v_pk_fma_f32 {vr(ak+2*h,2)}, {vr(csK+2*h,2)}, {vr(rpp,2)}, {vr(ak+2*h,2)} op_sel_hi:[1,0,1]')
        A(f'v_pk_fma_f32 {vr(av+2*h,2)}, {vr(vmm+2*h,2)}, {vr(csV,2)}, {vr(av+2*h,2)} op_sel_hi:[1,0,1]')
    for h in range(2):
        A(f'v_pk_mul_f32 {vr(ak+2*h,2)}, {vr(ak+2*h,2)}, {vr(rpp,2)} op_sel:[0,1] op_sel_hi:[1,1]')
        A(f'v_pk_mul_f32 {vr(av+2*h,2)}, {vr(av+2*h,2)}, {vr(vcc_+2*h,2)}')
def pack2(dst, src): return [f'v_cvt_pk_bf16_f32 v{dst+h}, v{src+2*h}, v{src+2*h+1}' for h in range(2)]
def epilogue(first):
    A.sprinkle = (epi_ins, 12, emit)
    for T in range(5):
        if T == 0: A('s_waitcnt lgkmcnt(6)')
        if T == 2: A('s_waitcnt lgkmcnt(0)')
        if T == 0: A(f'v_cmp_ne_u32 vcc, 0, v{t1}')
        norm_pk(T - 1, rp + 2 * T, vm + 4 * T, vc + 4 * T)
        for x in pack2(hK(T - 1), hK(T - 1)) + (pack2(hQ(T - 1), hQ(T - 1)) if T else []): A(x)
        if T == 0:
            sp = A.sprinkle; A.sprinkle = None
            A(f's_cmp_eq_u64 vcc, 0')
            A(f's_cselect_b32 s{sLOCAL}, {0 if FORCE_REMOTE else 1}, 0')
            A.sprinkle = sp
    pre = [f'v_mul_f32 v{mxc+2*T}, {hex(f2u(QSC))}, v{rp+2*T+3}' for T in range(4)]
    for T in range(5): pre += pack2(hV + 2 * T, accV + 4 * T)
    V.release(vm, 20); V.release(vc, 20); V.take(hV, 10); V.take(mxc, 8)
    attention(pre)
    sp = A.sprinkle; A.sprinkle = None
    for grp in sp[0]:
        for x in grp: emit(x)
    V.release(rp, 10)
    V.release(accQ, 20); V.release(accK, 20); V.release(accV, 20); V.release(hV, 10); V.release(mxc, 8)
epilogue(True)
V.release(vPf); V.release(gr, 4); V.release(vFp, 3)

A.label('L_pub')
stamp()
A(f's_mov_b32 s{sT0}, 32768')
A(f's_and_b32 s{sT1}, s{sLOCAL}, s{sLOCAL if "olocal" in OPT else sLAYER}')
A(f's_cbranch_scc0 L_opr')
A(f'buffer_store_dwordx4 {vr(oP,4)}, v{vOst}, {srd(SRD_WS)}, 0 offen')
A(f'buffer_store_dwordx4 {vr(oP+4,4)}, v{vOst}, {srd(SRD_WS)}, s{sT0} offen')
A.label('L_opd')
far.append(('L_opr', 'L_opd', [f'buffer_store_dwordx4 {vr(oP,4)}, v{vOst}, {srd(SRD_WS)}, 0 offen',
                               f'buffer_store_dwordx4 {vr(oP+4,4)}, v{vOst}, {srd(SRD_WS)}, s{sT0} offen']))
acc = V.alloc(16, 2); oF = V.alloc(64, 2); bR = V.alloc(64, 2)
for a_ in (0, 1, 4, 5): A(f'v_permlane16_swap_b32 v{xP+a_}, v{xP+a_+2}')
for j in range(8):
    A(f'v_lshlrev_b32 v{acc+2*j}, 16, v{xP+j}')
    A(f'v_and_b32 v{acc+2*j+1}, 0xffff0000, v{xP+j}')
def b_read(ks, t, h): return f'ds_read_b64_tr_b16 {vr(bR + ((ks & 3)*4 + t)*4 + 2*h, 2)}, v{vBo+t} offset:{wo_off(ks) + h*512}'
def b_read_a(ks, t, h): return f'ds_read_b64_tr_b16 {ar(((ks - 4)*4 + t)*4 + 2*h, 2)}, v{vBo+t} offset:{wo_off(ks) + h*512}'
fl = V.alloc(2, 2)
fl_issue = lambda: A(f'buffer_load_dwordx2 {vr(fl,2)}, v{vL8}, {srd(SRD_WS)}, s{aFLp} offen sc1')
def o_flag(n=0):
    A(f's_waitcnt vmcnt({n})')
    A('s_mov_b64 exec, 1')
    local_stores([f'buffer_store_dwordx2 {vr(tg,2)}, v{vL16}, {srd(SRD_WS)}, s{aFLs} offen'])
    A('s_mov_b64 exec, -1')
def o_load(ks): return (f'buffer_load_dwordx4 {vr(oF + 4*ks, 4)}, v{vO4 + (ks >> 3)}, {srd(SRD_WS)}, {"s%d" % sT4 if ks & 4 else 0} offen offset:{(ks%4)*1024} sc1', f'o{ks}')
NPRE = 6
A(f's_mov_b32 s{sT4}, 4096')
A(f's_cmp_lg_u32 s{sLAYER}, 0')
A('s_cbranch_scc1 L_p5')
sTGS = 93
A(f's_mov_b32 s{sTGS}, s{sTAG}')
A(f'v_mov_b32 v{tg}, s{sTAG}')
A(f'v_mov_b32 v{tg+1}, s{sTAGB}')
rdl = [b_read(ks, t, h) for ks in range(4) for t in range(4) for h in range(2)]
NB0 = int(next((a[4:] for a in OPT if a.startswith('nb0=')), '24'))
for _ in range(NB0): A(rdl.pop(0))
o_flag(0)
stamp()
if STOP == 'o1': finish()
A.sprinkle = ([wo_dma([k_]) for k_ in wo_rest], 3, emit)
while rdl: A(rdl.pop(0))
A(f'v_lshrrev_b32 v{t0}, 3, v{vL}')
A(f'v_lshlrev_b32 v{t0}, 10, v{t0}')
A(f'v_sub_u32 v{vXe}, v{vXe}, v{t0}')
A(f'v_xor_b32 v{vXo}, 64, v{vXe}')
A(f'v_add_u32 v{vXo}, 8192, v{vXo}')
A(f'v_lshlrev_b32 v{t2}, 2, v{t0}')
A(f'v_and_b32 v{t3}, 7, v{vL}')
A(f'v_lshl_add_u32 v{t2}, v{t3}, 5, v{t2}')
A(f'v_add_u32 v{t2}, {WS_HELLO}, v{t2}')
A(f'v_and_b32 v{t3}, 127, v0')
A(f'v_lshlrev_b32 v{t3}, 3, v{t3}')
sp = A.sprinkle; A.sprinkle = None
for g_ in sp[0]:
    for x in g_: emit(x)
V.release(vWo); V.release(vFd)
ftr = V.alloc(12, 2)
assert min(wo_rest) >= 4 and not wd_late
fl_issue()
A(f's_mov_b32 vcc_lo, 0x11111111')
A(f's_mov_b32 vcc_hi, 0x11111111')
for a_ in (0, 1, 4, 5): A(f'v_permlane16_swap_b32 v{aux+a_}, v{aux+a_+2}')
for r in range(8): A(f'v_cndmask_b32 v{aux+r}, v{aux+r}, v{vOnes}, vcc')
A(f'v_mov_b32 v{vSW}, 0')
for r in range(4): A(f'v_dot2c_f32_bf16 v{vSW}, v{wra+r}, v{vOnes}')
for sh in (8, 4, 2, 1):
    A(f'v_add_f32_dpp v{vSW}, v{vSW}, v{vSW} row_ror:{sh} {DP}')
for sw in ('v_permlane16_swap_b32', 'v_permlane32_swap_b32'):
    A(f'v_mov_b32 v{t0}, v{vSW}')
    A(f'{sw} v{vSW}, v{t0}')
    A(f'v_add_f32 v{vSW}, v{vSW}, v{t0}')
V.release(wra, 4)
V.release(oP, 8)
hel = V.alloc(8, 2)
hel_issue = lambda: (A(f'buffer_load_dwordx4 {vr(hel,4)}, v{t2}, {srd(SRD_WS)}, 0 offen sc1'),
                     A(f'buffer_load_dwordx4 {vr(hel+4,4)}, v{t2}, {srd(SRD_WS)}, 0 offen offset:16 sc1'))
repoll(fl_issue, lambda: tag_check(fl), 'FL')
stamp()
NP0 = int(next((a[4:] for a in OPT if a.startswith('np0=')), '10'))
for ks in range(3): emit(o_load(ks))
A('s_barrier')
ftl = [f'ds_read_b64_tr_b16 {vr(ftr + 4 * n + 2 * hh, 2)}, v{vFr} offset:{n * 128 + hh * 4 * 384}' for n in range(3) for hh in range(2)]
for ks in range(3, NP0):
    emit(o_load(ks))
    for _ in range(2):
        if ftl: A(ftl.pop(0))
assert not ftl
A(f's_cmp_eq_u32 s{sSET}, 7')
A(f's_cselect_b32 s{sT0}, 1, 3')
A(f's_cmp_lt_u32 s{sW}, s{sT0}')
A(f's_cselect_b32 s{sT0}, 0, 0x40000000')
A(f'v_add_u32 v{vFr}, s{sT0}, v{vFs}')
wdl = [f'ds_read_b64 {ar(aFD + 2 * f, 2)}, v{t3} offset:{L_WD + f * 1024}' for f in range(16)]
late = {ks: [o_load(ks + NP0)] for ks in range(16 - NP0)}
late[16 - NP0] = [hel_issue]
for n in range(3):
    late[17 - NP0 + n] = [f's_mov_b32 s{sT0}, {n * 4 * 32768}', f'buffer_store_dwordx4 {vr(ftr + 4 * n, 4)}, v{vFr if n == 2 else vFs}, {srd(SRD_WS)}, s{sT0} offen sc1{" nt" if "ftsnt" in OPT else ""}']
NY = 4
if True:
    def ft_touch():
        A('s_mov_b32 exec_lo, 0x11111111')
        A('s_mov_b32 exec_hi, 0')
        for n in range(3):
            A(f's_mov_b32 s{sT0}, {n * 4 * 32768}')
            A(f'buffer_load_dword v{vDum}, v{vFr if n == 2 else vFs}, {srd(SRD_WS)}, s{sT0} offen sc1')
        A('s_mov_b64 exec, -1')
for ks in range(16):
    nl = {12: 14, 13: 14, 14: 14, 15: 12}.get(ks, 14 if ks else 6)
    A.wait_vm(f'o{ks}', f'lgkmcnt({nl})')
    for t in range(4):
        A(mf(vr(acc + 4*t, 4), vr(bR + ((ks & 3)*4 + t)*4, 4), vr(oF + 4*ks, 4), vr(acc + 4*t, 4)))
        if t == 0:
            for x in late.get(ks, []): emit(x)
        if ks + 4 < 16:
            A(b_read(ks + 4, t, 0)); A(b_read(ks + 4, t, 1))
        else:
            A(wdl.pop(0))
V.release(ftr, 12)
A('s_branch L_p2e')
A.label('L_p5')
rdl = [b_read(ks, t, h) for ks in range(4) for t in range(4) for h in range(2)] + \
      [b_read_a(ks, t, h) for ks in range(4, 16) for t in range(4) for h in range(2)]
RA, RB, NP1 = [int(x) for x in next((a[3:] for a in OPT if a.startswith('p5=')), '16,40,8').split(',')]
for _ in range(RA): A(rdl.pop(0))
o_flag()
stamp_n[0] -= 2; stamp()
for _ in range(16): A(rdl.pop(0))
fl_issue()
for _ in range(RB - 16): A(rdl.pop(0))
repoll(fl_issue, lambda: tag_check(fl), 'FL')
stamp()
for ks in range(NP1):
    emit(o_load(ks))
    for _ in range(3):
        if rdl: A(rdl.pop(0))
done = False
for ks in range(16):
    lg = ''
    if ks == 0: lg = 'lgkmcnt(14)'
    elif not rdl and not done: lg = 'lgkmcnt(0)'; done = True
    assert done or (128 - len(rdl) - 15) // 8 > ks
    if lg == '' and not done: lg = 'lgkmcnt(14)'
    A.wait_vm(f'o{ks}', lg)
    for t in range(4):
        B_ = vr(bR + (ks*4 + t)*4, 4) if ks < 4 else ar(((ks - 4)*4 + t)*4, 4)
        A(mf(vr(acc + 4*t, 4), B_, vr(oF + 4*ks, 4), vr(acc + 4*t, 4)))
        if t == 0 and ks + NP1 < 16: emit(o_load(ks + NP1))
        for _ in range(2):
            if rdl: A(rdl.pop(0))
A.label('L_p2e')
V.release(oF, 64); V.release(bR, 64); V.release(fl, 2)
gG = V.alloc(4, 2); gS = V.take(96, 4) if False else V.alloc(4, 2)
A('s_nop 3')
for j in range(4):
    A(f'v_cvt_pk_bf16_f32 v{xP+j}, v{acc+2*j}, v{acc+2*j+1}')
A(f'v_cvt_pk_bf16_f32 v{xP+4}, v{acc+8}, v{acc+9}')
A(f'v_cvt_pk_bf16_f32 v{xP+5}, v{acc+10}, v{acc+11}')
A(mf(vr(gG, 4), vr(xP, 4), vr(xP, 4), '0'))
A(f'v_cvt_pk_bf16_f32 v{xP+6}, v{acc+12}, v{acc+13}')
A(f'v_cvt_pk_bf16_f32 v{xP+7}, v{acc+14}, v{acc+15}')
A(mf(vr(gS, 4), vr(aux, 4), vr(xP, 4), '0'))
A(f'v_permlane16_swap_b32 v{xP}, v{xP+2}')
A(mf(vr(gG, 4), vr(xP + 4, 4), vr(xP + 4, 4), vr(gG, 4)))
A(f'v_permlane16_swap_b32 v{xP+1}, v{xP+3}')
A(mf(vr(gS, 4), vr(aux + 4, 4), vr(xP + 4, 4), vr(gS, 4)))
A(f'v_permlane16_swap_b32 v{xP+4}, v{xP+6}')
A(f'v_permlane16_swap_b32 v{xP+5}, v{xP+7}')
unp = []
for j in range(8):
    unp += [f'v_lshlrev_b32 v{acc+2*j}, 16, v{xP+j}', f'v_and_b32 v{acc+2*j+1}, 0xffff0000, v{xP+j}']
for _ in range(4): A(unp.pop(0))
A(f'v_cndmask_b32 v{t0}, v{gG}, v{gG+1}, {sr(sM0,2)}')
A(f'v_cndmask_b32 v{t1}, v{gG+2}, v{gG+3}, {sr(sM0,2)}')
A(f'v_cndmask_b32 v{gS+2}, v{t0}, v{t1}, {sr(sM1,2)}')
A(f'v_mov_b32 v{gS+3}, s{sTGS}')
A('s_mov_b32 exec_lo, 0x00f0000f')
A('s_mov_b32 exec_hi, 0xf0000f00')
local_stores([f'buffer_store_dwordx4 {vr(gS,4)}, v{vQ16}, {srd(SRD_WS)}, s{aSTs} offen'])
A('s_mov_b64 exec, -1')
stamp()
V.release(gG, 4)
sa = V.alloc(8, 2)
def h1_issue():
    A(f'buffer_load_dwordx4 {vr(sa,4)}, v{vL16}, {srd(SRD_WS)}, s{aSTp} offen sc1')
    A(f'buffer_load_dwordx4 {vr(sa+4,4)}, v{vL16}, {srd(SRD_WS)}, s{aSTp} offen offset:1024 sc1')
while unp: A(unp.pop(0))
hl = V.alloc(4, 2); vLn = V.alloc()
A(f'v_lshrrev_b32 v{t0}, 3, v{vL}')
A(f'v_and_b32 v{t1}, 0x70, v{vL16}')
A(f'v_lshl_add_u32 v{vLn}, v{t0}, 10, v{t1}')
E = if_layer(0)
E3 = if_wave(3)
A(f'v_lshl_add_u32 v{t0}, v{vQ}, 7, v{vGm}')
A(f'v_add_u32 v{t0}, {L_ROW}, v{t0}')
A(f'v_add_u32 v{t1}, {L_ROW + 1024}, v{vL16}')
A(f'ds_write_b128 v{t0}, {vr(xP,4)}')
A(f'ds_write_b128 v{t0}, {vr(xP+4,4)} offset:64')
A('s_waitcnt lgkmcnt(0)')
A(f'ds_read_b128 {vr(hl,4)}, v{t1}')
endif(E3, False)
Lh = A.newlabel('L_hel'); Lhk = A.newlabel('L_helok')
A(f's_mov_b32 s{sGUARD}, {SPIN}')
A(f's_waitcnt vmcnt({NY})')
A.label(Lh)
for r in range(8): A(f'v_xor_b32 v{hel+r}, s{sTAGB if r & 1 else sTAG}, v{hel+r}')
A(f'v_or3_b32 v{t0}, v{hel+1}, v{hel+3}, v{hel+5}')
A(f'v_or_b32 v{t0}, v{t0}, v{hel+7}')
A(f'v_lshrrev_b32 v{t0}, 4, v{t0}')
A(f'v_or3_b32 v{t0}, v{t0}, v{hel}, v{hel+2}')
A(f'v_or3_b32 v{t0}, v{t0}, v{hel+4}, v{hel+6}')
A(f'v_cmp_ne_u32 vcc, 0, v{t0}')
A(f's_cbranch_vccz {Lhk}')
A('s_sleep 8')
hel_issue(); A.wait_vm0()
A(f's_sub_u32 s{sGUARD}, s{sGUARD}, 1')
A(f's_cbranch_scc0 {Lh}')
A.label(Lhk)
endif(E, False)
h1_issue()
V.release(hel, 8)

def h1_check():
    A(f'v_cmp_ne_u32 vcc, s{sTGS}, v{sa+3}')
    A(f'v_cmp_ne_u32 {sr(sT2,2)}, s{sTGS}, v{sa+7}')
    A(f'v_pk_add_f32 {vr(sa,2)}, {vr(sa,2)}, {vr(sa+4,2)}')
    A(f's_or_b64 vcc, vcc, {sr(sT2,2)}')
repoll(h1_issue, h1_check, 'ST')
stamp()
A(f'v_add_f32 v{sa+2}, v{sa+2}, v{sa+6}')
A(f'v_mov_b32 v{sa+4}, v{sa}')
A(f'v_mov_b32 v{sa+5}, v{sa+1}')
A(f'v_mov_b32 v{sa+6}, v{sa+2}')
local_stores([f'buffer_store_dwordx4 {vr(xP,4)}, v{vXs}, {srd(SRD_WS)}, s{aXs} offen',
              f'buffer_store_dwordx4 {vr(xP+4,4)}, v{vXs}, {srd(SRD_WS)}, s{aXs} offen offset:64'])
for r in range(3): A(f'v_permlane16_swap_b32 v{sa+r}, v{sa+4+r}')
A(f'v_pk_add_f32 {vr(sa,2)}, {vr(sa,2)}, {vr(sa+4,2)}')
A(f'v_add_f32 v{sa+2}, v{sa+2}, v{sa+6}')
for r in range(3): A(f'v_mov_b32 v{sa+4+r}, v{sa+r}')
for r in range(3): A(f'v_permlane32_swap_b32 v{sa+r}, v{sa+4+r}')
A(f'v_pk_add_f32 {vr(sa,2)}, {vr(sa,2)}, {vr(sa+4,2)}')
A(f'v_add_f32 v{sa+2}, v{sa+2}, v{sa+6}')
mu = V.alloc(); var = V.alloc(); pr = V.alloc(2, 2); mm = V.alloc()
ln_params(sa, sa + 2, mu, var, mm, pr, t0)
key = V.alloc(); ka = V.alloc(2, 2); kb = ka + 1
A(f'v_fma_f32 v{key}, -v{mm}, v{vSW}, v{sa+1}')
A(f'v_mul_f32 v{key}, v{key}, v{pr}')
A(f'v_mul_f32 v{pr+1}, -v{mm}, v{pr}')
A(f'v_ashrrev_i32 v{t0}, 31, v{key}')
A(f'v_or_b32 v{t0}, 0x80000000, v{t0}')
A(f'v_xor_b32 v{key}, v{key}, v{t0}')
A(f'v_and_b32 v{key}, 0xfffff800, v{key}')
A(f'v_or3_b32 v{key}, v{key}, v{vQ}, s{aROW}')
xn = V.alloc(8, 2); xf = V.alloc(16, 2)
fillx = [f'v_pk_fma_f32 {vr(xf+2*j,2)}, {vr(acc+2*j,2)}, {vr(pr,2)}, {vr(pr,2)} op_sel:[0,0,1] op_sel_hi:[1,0,1]' for j in range(8)] + \
        [f'v_cvt_pk_bf16_f32 v{xn+j}, v{xf+2*j}, v{xf+2*j+1}' for j in range(8)]
def top2_levels(a, b, levels, fill):
    for lv in levels:
        if fill: A(fill.pop(0))
        A(f'v_min_u32_dpp v{t0}, v{a}, v{a} {lv} {DP}')
        A(f'v_max_u32_dpp v{t1}, v{b}, v{b} {lv} {DP}')
        A(f'v_max_u32_dpp v{a}, v{a}, v{a} {lv} {DP}')
        A(f'v_max_u32 v{b}, v{t0}, v{t1}')
A(fillx.pop(0)); A(fillx.pop(0))
A(f'v_max_u32_dpp v{ka}, v{key}, v{key} quad_perm:[1,0,3,2] {DP}')
A(f'v_min_u32_dpp v{kb}, v{key}, v{key} quad_perm:[1,0,3,2] {DP}')
top2_levels(ka, kb, ['quad_perm:[2,3,0,1]', 'row_half_mirror', 'row_mirror'], fillx)
A('s_mov_b64 exec, 1')
A(f'buffer_store_dwordx2 {vr(ka,2)}, v{vL16}, {srd(SRD_WS)}, s{aKEYs} offen sc1')
E = if_layer(0)
A('s_waitcnt vmcnt(1)')
local_stores([f'buffer_store_dwordx2 {vr(tg,2)}, v{vL16}, {srd(SRD_WS)}, s{aX1Fs} offen'])
FTT = int(next((a[4:] for a in OPT if a.startswith('ftt=')), '0'))
if FTT == 0: ft_touch()
A(f's_cmp_lg_u32 s{sW}, 3')
A(f's_cbranch_scc1 {E}')
A('s_mov_b64 exec, -1')
A(f's_add_u32 s{sT0}, s{aCANDs}, {WS_HALO - WS_CAND}')
A('s_waitcnt lgkmcnt(0)')
A(f'buffer_store_dwordx4 {vr(hl,4)}, v{vLn}, {srd(SRD_WS)}, s{sT0} offen sc1')
endif(E, False)
A('s_mov_b64 exec, -1')
stamp()
A(f'v_cmp_eq_u32 vcc, v{key}, v{kb}')
A(f'v_add_u32 v{t2}, 256, v{vStash}')
if 'cstash' not in OPT:
    A(f's_lshl_b32 s{sT0}, s{sW}, 11')
    A(f's_add_u32 s{sT0}, s{sT0}, s{aCANDs}')
    A(f'v_add_u32 v{t1}, 1024, v{vGm}')
    A(f'v_cndmask_b32 v{t1}, v{vGm}, v{t1}, vcc')
while fillx: A(fillx.pop(0))
A(f'v_cndmask_b32 v{t3}, v{vStash}, v{t2}, vcc')
A(f'v_cmp_ge_u32 vcc, v{key}, v{kb}')
A(f'v_lshrrev_b32 v{t0}, 3, v{vL}')
A(f's_mov_b64 exec, vcc')
if 'cstash' not in OPT:
    A(f'buffer_store_dwordx4 {vr(xn,4)}, v{t1}, {srd(SRD_WS)}, s{sT0} offen sc1')
    A(f'buffer_store_dwordx4 {vr(xn+4,4)}, v{t1}, {srd(SRD_WS)}, s{sT0} offen offset:64 sc1')
A(f'ds_write_b128 v{t3}, {vr(xn,4)} offset:128')
A(f'ds_write_b128 v{t3}, {vr(xn+4,4)} offset:192')
A(f'ds_write_b128 v{t3}, {vr(xP,4)}')
A(f'ds_write_b128 v{t3}, {vr(xP+4,4)} offset:64')
A('s_mov_b64 exec, -1')
V.release(key); V.release(ka, 2)
if 'cstash' in OPT:
    A(f'v_and_b32 v{t1}, 0x70, v{vL16}')
    A(f'v_lshl_add_u32 v{t2}, v{t0}, 8, v{t1}')
    A(f'v_add_u32 v{t2}, {L_CS + 128}, v{t2}')
    A(f's_lshl_b32 s{sT0}, s{sW}, 4')
    A('s_waitcnt lgkmcnt(2)')
    A(f'ds_read_b128 {vr(sa,4)}, v{t2}')
    A(f's_lshl_b64 exec, 0xffff, s{sT0}')
    A('s_waitcnt lgkmcnt(0)')
    A(f'buffer_store_dwordx4 {vr(sa,4)}, v{vLn}, {srd(SRD_WS)}, s{aCANDs} offen sc1')
    A('s_mov_b64 exec, -1')
else:
    A('s_waitcnt lgkmcnt(0)')
V.release(hl, 4); V.release(vLn)
fine()
def chain_params(mu, var, mm, rs, om, oc):
    a = V.alloc(); u = V.alloc(); w_ = V.alloc(); m2 = V.alloc(); r2 = V.alloc()
    A(f'v_add_f32 v{a}, 1.0, v{rs}')
    A(f'v_mul_f32 v{u}, v{mm}, v{rs}')
    A(f'v_fma_f32 v{mu}, v{mu}, v{a}, -v{u}')
    A(f'v_mul_f32 v{w_}, v{a}, v{a}')
    A(f'v_mul_f32 v{var}, v{var}, v{w_}')
    round_params(mu, var, m2, r2, w_)
    A(f'v_rcp_f32 v{w_}, v{a}')
    A(f'v_add_f32 v{u}, v{u}, v{m2}')
    A(f'v_mul_f32 v{oc}, v{a}, v{r2}')
    A(f'v_mul_f32 v{om}, -v{u}, v{w_}')
    for x in (a, u, w_, m2, r2): V.release(x)
xfl = sa
xf_issue = lambda: A(f'buffer_load_dwordx2 {vr(xfl,2)}, v{vL8}, {srd(SRD_WS)}, s{aX1Fp} offen sc1')
for j in range(8):
    A(f'v_lshlrev_b32 v{xf+2*j}, 16, v{xn+j}')
    A(f'v_and_b32 v{xf+2*j+1}, 0xffff0000, v{xn+j}')
for j in range(8):
    A(f'v_pk_add_f32 {vr(xf+2*j,2)}, {vr(xf+2*j,2)}, {vr(acc+2*j,2)}')
for j in range(8):
    A(f'v_cvt_pk_bf16_f32 v{xP+j}, v{xf+2*j}, v{xf+2*j+1}')
V.release(xn, 8); V.release(xf, 16); V.release(acc, 16)
fa = V.take(170, 6)
A(f'v_bfe_u32 v{t0}, v{vL}, 2, 1')
A(f'v_and_b32 v{t1}, 1, v{vL}')
A(f'v_lshl_or_b32 v{t0}, v{t0}, 1, v{t1}')
A(f'v_mul_u32_u24 v{fa}, 576, v{t0}')
A(f'v_lshl_add_u32 v{fa}, v{vG}, 4, v{fa}')
A(f'v_add_u32 v{fa}, {L_XS}, v{fa}')
A(f's_lshl_b32 s{sT1}, s{sW}, 3')
A(f's_add_u32 s{sT1}, s{sT1}, {L_H}')
A(f'v_lshlrev_b32 v{fa+1}, 5, v{vG}')
A(f'v_lshl_add_u32 v{fa+1}, v{vQ}, 1, v{fa+1}')
A(f'v_add_u32 v{fa+1}, s{sT1}, v{fa+1}')
A(f's_lshr_b32 s{sT1}, s{sW}, 1')
A(f's_lshl_b32 s{sT1}, s{sT1}, 5')
A(f's_add_u32 s{sT1}, s{sT1}, {L_H}')
A(f'v_mov_b32 v{fa+2}, s{sT1}')
A(f'v_lshlrev_b32 v{fa+3}, 4, v0')
A(f'v_mov_b32 v{fa+4}, {L_KEY}')
A(f'v_lshrrev_b32 v{fa+5}, 5, v{vL}')
A(f'v_lshl_add_u32 v{fa+5}, v{fa+5}, 6, v{vL16}')
A(f'v_add_u32 v{fa+5}, {L_XS}, v{fa+5}')
A(f's_cmp_eq_u32 s{sLAYER}, 0')
A('s_cbranch_scc1 L_x1')
for j in range(4):
    A(f'v_mov_b32 v{sa+j}, v{xP+j}')
for j in range(4):
    A(f'v_mov_b32_dpp v{xP+j}, v{xP+4+j} row_ror:8 row_mask:0xf bank_mask:0xc')
for j in range(4):
    A(f'v_mov_b32_dpp v{xP+4+j}, v{sa+j} row_ror:8 row_mask:0xf bank_mask:0x3')
A(f'v_and_b32 v{t0}, 7, v{vQ}')
A(f'v_lshl_add_u32 v{vXs}, v{t0}, 11, v{vGm}')
A(f'v_and_b32 v{t0}, 8, v{vQ}')
A(f'v_lshl_add_u32 v{vXs}, v{t0}, 3, v{vXs}')
def out_stores():
    A(f's_add_u32 s{sT0}, s{aOUT}, 16384')
    A(f'buffer_store_dwordx4 {vr(xP,4)}, v{vXs}, {srd(SRD_OUT)}, s{aOUT} offen{OSC}')
    A(f'buffer_store_dwordx4 {vr(xP+4,4)}, v{vXs}, {srd(SRD_OUT)}, s{sT0} offen{OSC}')
    if 'clean' in OPT:
        A(f's_lshl_b32 s{sT0}, s{sHG}, 11')
        A(f'buffer_store_dwordx4 {vr(xP,4)}, v{vO4}, {srd(SRD_WS)}, s{sT0} offen sc1')
        A(f'buffer_store_dwordx4 {vr(xP,4)}, v{vO4}, {srd(SRD_WS)}, s{sT0} offen offset:1024 sc1')
OSC = ' sc1 nt' if 'ont' in OPT else ' sc1'
if 'outearly' in OPT:
    A(f's_cmp_eq_u32 s{sHASF}, 1')
    A('s_cbranch_scc1 L_x1e')
    out_stores()
A('s_branch L_x1e')
A.label('L_x1')
chain_params(mu, var, mm, pr, t2, t3)
A(f's_lshl_b32 s{sT0}, s{sW}, 6')
A(f'v_add_u32 v{t0}, s{sT0}, v{vQ4}')
A(f'ds_write2_b32 v{t0}, v{t2}, v{t3} offset0:16 offset1:96')
V.release(mu); V.release(var); V.release(pr, 2); V.release(mm)
pk8 = V.alloc(8, 2)
E = if_ffn()
A(f's_mov_b32 s{sT0}, 0x05040100')
A(f's_mov_b32 s{sT1}, 0x07060302')
A('s_waitcnt lgkmcnt(0)')
for j in range(8):
    for c in range(4): A(f'v_accvgpr_read_b32 v{pk8+c}, a{aFD + 4*j + c}')
    for c, (hi_, lo_, sel) in enumerate(((2, 0, sT0), (2, 0, sT1), (3, 1, sT0), (3, 1, sT1))):
        A(f'v_perm_b32 v{pk8+4+c}, v{pk8+hi_}, v{pk8+lo_}, s{sel}')
    for c in range(4): A(f'v_accvgpr_write_b32 a{aFD + 4*j + c}, v{pk8+4+c}')
endif(E, False)
V.release(pk8, 8)
E1 = if_wave(1)
A(f's_lshl_b32 s{sT0}, s{sSET}, 11')
A(f's_add_u32 s{sT0}, s{sT0}, {WS_X1F}')
A(f's_cmp_eq_u32 s{sHASF}, 1')
A(f's_cselect_b32 s{sT0}, s{sT0}, s{aX1Fp}')
A(f's_lshl_b32 s{sT1}, s{sHASF}, 9')
A(f'v_mad_u32_u24 v{t3}, v{vG}, s{sT1}, v{vQ16}')
def sf_check():
    for k in range(4): A(f'v_xor_b32 v{sa+k}, s{sTAGB if k & 1 else sTAG}, v{sa+k}')
    A(f'v_or_b32 v{sa+1}, v{sa+1}, v{sa+3}')
    A(f'v_lshrrev_b32 v{sa+1}, 4, v{sa+1}')
    A(f'v_or3_b32 v{sa}, v{sa}, v{sa+1}, v{sa+2}')
    A(f'v_cmp_ne_u32 vcc, 0, v{sa}')
poll(lambda: A(f'buffer_load_dwordx4 {vr(sa,4)}, v{t3}, {srd(SRD_WS)}, s{sT0} offen sc1'), sf_check, 'X1F')
endif(E1, False)
A(f's_mov_b32 s49, s{sHASF}')
A(f's_cmp_eq_u32 s{sHASF}, 0')
A('s_cbranch_scc1 L_b1b')
A.label('L_x1e')
stamp()
key_issue = lambda: A(f'buffer_load_dwordx4 {vr(sa,4)}, v{vL16}, {srd(SRD_WS)}, s{aKEYp} offen sc1', tag='key')
A(f's_cmp_lg_u32 s{sW}, 0')
A('s_cbranch_scc1 L_keye')
A(f's_mov_b32 s{sGUARD}, {SPIN}')
A.label('L_keyp')
key_issue()
A('s_waitcnt vmcnt(0)')
A.label('L_keyc')
A(f'v_max3_u32 v{t0}, v{sa}, v{sa+1}, v{sa+2}')
A(f'v_min_u32 v{t2}, v{sa}, v{sa+2}')
A(f'v_max_u32 v{t0}, v{t0}, v{sa+3}')
A(f'v_max_u32 v{sa}, v{sa}, v{sa+2}')
A(f'v_cmp_eq_u32 vcc, -1, v{t0}')
A(f'v_max3_u32 v{sa+1}, v{sa+1}, v{sa+3}, v{t2}')
A('s_cbranch_vccz L_keyk')
A('s_sleep 1')
NS = int(next((a[4:] for a in OPT if a.startswith('nsl=')), '8'))
if NS:
    A(f's_cmp_eq_u32 s{sHASF}, 1')
    A('s_cbranch_scc1 L_keyh')
    A(f's_sleep {NS}')
    A.label('L_keyh')
A(f's_sub_u32 s{sGUARD}, s{sGUARD}, 1')
A('s_cbranch_scc0 L_keyp')
A.label('L_keyk')
stamp()
top2_levels(sa, sa + 1, ['quad_perm:[1,0,3,2]', 'quad_perm:[2,3,0,1]', 'row_half_mirror', 'row_mirror'], [])
for n_, ln in enumerate((0, 16, 32, 48)):
    A(f'v_readlane_b32 s{(sK0, sT0, sT2, sU0)[n_]}, v{sa}, {ln}')
for n_, ln in enumerate((0, 16, 32, 48)):
    A(f'v_readlane_b32 s{(sK1, sT1, sT3, sU1)[n_]}, v{sa+1}, {ln}')
for a_, b_ in ((sT0, sT1), (sT2, sT3), (sU0, sU1)):
    A(f's_max_u32 s{sK1}, s{sK1}, s{b_}')
    A(f's_min_u32 s{b_}, s{sK0}, s{a_}')
    A(f's_max_u32 s{sK0}, s{sK0}, s{a_}')
    A(f's_max_u32 s{sK1}, s{sK1}, s{b_}')
A(f's_and_b32 s{sU2}, s{sK0}, 0x7f0')
A(f's_and_b32 s{sU3}, s{sK1}, 0x7f0')
A(f's_cmp_eq_u32 s{sU2}, s{sU3}')
A(f's_cselect_b32 s{sT2}, 8, 0')
A(f's_lshl_b32 s{sU2}, s{sU2}, 7')
A(f's_add_u32 s{sU2}, s{sU2}, s{aCANDb}')
A(f's_or_b32 s{sU3}, s{sU3}, s{sT2}')
A(f's_lshl_b32 s{sU3}, s{sU3}, 7')
A(f's_add_u32 s{sU3}, s{sU3}, s{aCANDb}')
def f_issue():
    A(f'buffer_load_dwordx4 {vr(sa,4)}, v{vL16}, {srd(SRD_WS)}, s{sU2} offen sc1')
    A(f'buffer_load_dwordx4 {vr(sa+4,4)}, v{vL16}, {srd(SRD_WS)}, s{sU3} offen sc1')
sCAND = 49
A(f's_mov_b32 s{sCAND}, s{sHASF}')
if 'static' not in OPT:
    E = if_layer(0)
    A(f's_mov_b32 s{sT2}, 0')
    for k_ in (sK0, sK1):
        A(f's_bfe_u32 s{sT0}, s{k_}, 0x50006')
        A(f's_bitset1_b32 s{sT2}, s{sT0}')
        A(f's_add_u32 s{sT0}, s{k_}, 8')
        A(f's_bfe_u32 s{sT0}, s{sT0}, 0x50006')
        A(f's_bitset1_b32 s{sT2}, s{sT0}')
    A(f's_and_b32 s{sT0}, s{sRB}, 29')
    A(f's_lshr_b32 s{sT2}, s{sT2}, s{sT0}')
    A(f's_and_b32 s{sT2}, s{sT2}, 5')
    A(f's_cmp_eq_u32 s{sT2}, 1')
    A(f's_cselect_b32 s{sT2}, 2, 0')
    A(f's_and_b32 s{sT0}, s{sRB}, 2')
    A(f's_cmp_eq_u32 s{sT0}, s{sT2}')
    A(f's_cselect_b32 s{sHASF}, s{sHASF}, 0')
    endif(E, False)
E = if_ffn()
f_issue()
endif(E, False)
A(f'v_mov_b32 v{t2}, s{sHASF}')
A(f'ds_write_b32 v{fa+4}, v{t2} offset:8')
A(f'v_mov_b32 v{t0}, s{sK0}')
A(f'v_mov_b32 v{t1}, s{sK1}')
A(f'ds_write2_b32 v{fa+4}, v{t0}, v{t1} offset0:0 offset1:1')
A(f's_or_b32 s{sT0}, s{sCAND}, s{sLAYER}')
A('s_cbranch_scc0 L_k2')
A.label('L_keye')
A(f's_cmp_lg_u32 s{sLAYER}, 0')
A('s_cbranch_scc1 L_pre3')
A.label('L_b1b')
A('s_waitcnt lgkmcnt(0)')
A('s_barrier')
fine()
V.take(accQ, 20); V.take(accK, 20); V.take(accV, 20); V.take(hV, 10); V.take(mxc, 8)
def own_reads(ks):
    u = ks & 1; kc = ks >> 1; b = fr[ks & 1]
    return [f'ds_read_b128 {vr(b + 4 * T, 4)}, v{vA+u} offset:{(kc * 8 + 2 * T) * 1024}' for T in range(4)]
def gemm_groups(k0, k1, noread=()):
    G = []
    for ks in range(k0, k1):
        b = fr[ks & 1]; fill = own_reads(ks + 1) if ks < 15 and ks not in noread else []
        for T in range(1, 5):
            X = vr(b + 4 * (T - 1), 4)
            for m_, (d_, a_, b_) in enumerate(((accQ, ar(aW(ks, 0), 4), X), (accK, ar(aW(ks, 1), 4), X), (accV, X, ar(aW(ks, 2), 4)))):
                g_ = [mf(vr(d_ + 4 * T, 4), a_, b_, vr(d_ + 4 * T, 4))]
                if T == 1 and m_ == 0: g_ = ['s_waitcnt lgkmcnt(0)'] + g_
                elif fill and m_ < 2: g_.append(fill.pop(0))
                G.append(g_)
    return G
def gemm_part(k0, k1, ins=None):
    for n_, g_ in enumerate(gemm_groups(k0, k1)):
        for x in g_: A(x)
        for x in (ins or {}).get(n_, []): emit(x)
def x1_dma(kc, o):
    return ([f's_add_u32 s{sXA}, s{sXB}, {WS_X1 + kc * 128}'] if o == 0 else []) + \
           [f's_add_u32 m0, s{sAM}, {L_A + kc * 8192 + o * 1024}',
            (f'buffer_load_dwordx4 v{vXo if o else vXe}, {srd(SRD_WS)}, s{sXA} offen sc1 lds', f'x{kc >> 1}')]
sXA, sXB = 46, 47
ci = V.alloc(4, 2); vHs = V.alloc()
A(f'ds_read_b32 v{t0}, v{fa+4} offset:8')
A(f'ds_read2_b32 {vr(ci,2)}, v{vQ4} offset0:16 offset1:32')
A(f'ds_read2_b32 {vr(ci+2,2)}, v{vQ4} offset0:48 offset1:64')
for T in range(1, 5): A(f'ds_read_b128 {vr(accV + 4 * T, 4)}, v{vG16} offset:{64 * T}')
A(f's_lshl_b32 s{sXB}, s{sSTB}, 14')
A(f's_add_u32 s{sT5}, s{aFT}, 4096')
A(f's_xor_b32 s{sT0}, s{sW}, 3')
A(f's_lshl_b32 s{sT0}, s{sT0}, 29')
A(f'v_add_u32 v{vHs}, s{sT0}, v{vQ16}')
A(f's_lshl_b32 s{sT4}, s{sRB}, 10')
A(f's_lshl_b32 s{sT1}, s{sHG}, 7')
A(f's_add_u32 s{sT4}, s{sT4}, s{sT1}')
A(f's_add_u32 s{sT4}, s{sT4}, {WS_HS - 128}')
A('s_waitcnt lgkmcnt(6)')
A(f'v_readfirstlane_b32 s{sT0}, v{t0}')
A(f's_and_b32 s{sHASF}, s{sHASF}, s{sT0}')
A('s_cbranch_scc0 L_noft')
for s_ in range(8):
    A(f'buffer_load_dwordx4 {ar(aFG + 4*s_, 4)}, v{vL16}, {srd(SRD_WS)}, s{sT5 if s_ >= 4 else aFT} offen offset:{(s_ & 3)*1024} sc1')
A.label('L_noft')
A.vm = []
NX = int(next((a[3:] for a in OPT if a.startswith('nx=')), '2'))
grp = [x1_dma(kc, o) for kc in range(NX) for o in range(2)]
for _ in range(2):
    for x in grp.pop(0): emit(x)
A.sprinkle = (grp, 4, emit)
A('s_waitcnt lgkmcnt(4)')
for T in range(1, 5):
    sel = (T - 1) & 1
    for acc_, cs_ in ((accQ, csQ), (accK, csK)):
        for h in range(2):
            A(f'v_pk_mul_f32 {vr(acc_+4*T+2*h,2)}, {vr(cs_+2*h,2)}, {vr(ci + ((T-1)&2),2)} op_sel:[0,{sel}] op_sel_hi:[1,{sel}]')
A('s_waitcnt lgkmcnt(0)')
for T in range(1, 5):
    for h in range(2):
        A(f'v_pk_mul_f32 {vr(accV+4*T+2*h,2)}, {vr(accV+4*T+2*h,2)}, {vr(csV,2)} op_sel_hi:[1,0]')
A.sprinkle = None
assert not grp
V.release(ci, 4)
A(f's_waitcnt vmcnt({2 * NX})')
A('s_mov_b32 exec_lo, 0')
A('s_mov_b32 exec_hi, 0xf0000f00')
A(f'buffer_store_dwordx4 {vr(gS,4)}, v{vHs}, {srd(SRD_WS)}, s{sT4} offen sc1')
A('s_mov_b64 exec, -1')
V.release(vHs); V.release(gS, 4)
vm_x = list(A.vm)
A(f's_cmp_eq_u32 s{sHASF}, 0')
A('s_cbranch_scc1 L_g0')
A.label('L_pre3')
fine()
E = skip_unless([f's_cmp_eq_u32 s{sW}, 0', f's_cselect_b32 s{sT0}, s{sHASF}, 0', f's_cmp_eq_u32 s{sT0}, 0'])
def f_check():
    A(f'v_max_u32 v{t0}, v{sa}, v{sa+4}')
    A(f'ds_write_b128 v{fa+5}, {vr(sa,4)}')
    A(f'v_cmp_eq_u32 vcc, -1, v{t0}')
    A(f'ds_write_b128 v{fa+5}, {vr(sa+4,4)} offset:1152')
    A('s_waitcnt lgkmcnt(0)')
Lc = A.newlabel('L_cd')
A(f's_mov_b32 s{sGUARD}, {SPIN}')
A(f's_cmp_eq_u32 s{sLAYER}, 0')
A(f's_cbranch_scc1 {Lc}c')
A.label(Lc)
A('s_waitcnt vmcnt(0)')
A.label(Lc + 'c')
f_check()
A(f's_cbranch_vccz {E}')
f_issue()
A(f's_sub_u32 s{sGUARD}, s{sGUARD}, 1')
A(f's_cbranch_scc0 {Lc}')
endif(E, False)
A('s_waitcnt lgkmcnt(0)')
A('s_barrier')
fine()
A(f's_cmp_eq_u32 s{sHASF}, 0')
A('s_cbranch_scc1 L_noffn')
xs = V.alloc(32, 2); d4 = V.alloc(4, 2); hp = V.alloc(8, 2); y4 = V.alloc(4, 2); wd = xs
for s_ in range(8):
    A(f'ds_read_b128 {vr(xs + 4*s_, 4)}, v{fa} offset:{64*s_}')
for c in range(4): A(f'v_mov_b32 v{y4+c}, 0')
wrd = [f'v_accvgpr_read_b32 v{wd+j}, a{aFD+j}' for j in range(32)]
for s_ in range(8):
    A(f's_waitcnt lgkmcnt({7 - s_})')
    A(mf(vr(d4, 4), vr(xs + 4*s_, 4), ar(aFG + 4*s_, 4), '0' if s_ == 0 else vr(d4, 4)))
    if s_: A(wrd.pop(0)); A(wrd.pop(0))
for _ in range(6): A(wrd.pop(0))
A(f'v_add_f32_dpp v{t0}, v{d4+1}, v{d4} row_shl:8 {DP}')
bf_round(t0, t0)
A(f'v_mul_f32 v{t1}, {hex(f2u(-1.4426950408889634))}, v{t0}')
A(f'v_exp_f32 v{t1}, v{t1}')
A(f'v_mov_b32_dpp v{t2}, v{t0} row_shl:4 {DP}')
A(f'v_add_f32 v{t1}, 1.0, v{t1}')
A(f'v_rcp_f32 v{t1}, v{t1}')
A('s_mov_b64 exec, 0x000f000f')
A(f'v_mul_f32 v{t1}, v{t0}, v{t1}')
bf_round(t1, t1)
A(f'v_mul_f32 v{t1}, v{t2}, v{t1}')
A(f'v_cvt_pk_bf16_f32 v{t1}, v{t1}, v{t1}')
A(f'ds_write_b16 v{fa+1}, v{t1}')
A('s_mov_b64 exec, -1')
for _ in range(8): A(wrd.pop(0))
A('s_waitcnt lgkmcnt(0)')
A('s_barrier')
A(f'ds_read_b128 {vr(hp,4)}, v{fa+2}')
A(f'ds_read_b128 {vr(hp+4,4)}, v{fa+2} offset:16')
while wrd: A(wrd.pop(0))
for j in range(8):
    if j % 4 == 0: A(f's_waitcnt lgkmcnt({1 - j // 4})')
    for c in range(4):
        A(f'v_dot2c_f32_bf16 v{y4+c}, v{wd+4*j+c}, v{hp+j}')
A(f'buffer_store_dwordx4 {vr(y4,4)}, v{fa+3}, {srd(SRD_WS)}, s{aYPs} offen sc1')
V.release(xs, 32); V.release(d4, 4); V.release(hp, 8); V.release(y4, 4)
A.label('L_noffn')
stamp()
sOWN = 48
own_lines = [f'v_readfirstlane_b32 s{sK0}, v{sa}', f'v_readfirstlane_b32 s{sK1}, v{sa+1}',
             f's_bfe_u32 s{sT0}, s{sK0}, 0x50006', f's_bfe_u32 s{sT1}, s{sK1}, 0x50006', f's_cmp_eq_u32 s{sT0}, s{sRB}',
             f's_cselect_b32 s{sT1}, s{sRB}, s{sT1}', f's_cselect_b32 s{sTOK}, 0, 1', f's_cselect_b32 s{sKEY}, s{sK0}, s{sK1}',
             f's_cmp_eq_u32 s{sT1}, s{sRB}', f's_cselect_b32 s{sOWN}, 1, 0']
A(f's_cmp_eq_u32 s{sLAYER}, 0')
A('s_cbranch_scc1 L_g0')
A(f'ds_read_b64 {vr(sa,2)}, v{fa+4}')
out_stores()
A('s_waitcnt lgkmcnt(0)')
for x in own_lines: A(x)
E = 'L_gend'
A(f's_branch {E}')
fr = [V.alloc(16, 2), V.alloc(16, 2)]
yp = V.alloc(24, 2); yo = V.alloc(2)
def y_issue():
    for j in range(6):
        A(f's_mov_b32 s{sT1}, {j * 65536}')
        A(f'buffer_load_dwordx4 {vr(yp + 4*j, 4)}, v{yo + 1 if j == 5 else yo}, {srd(SRD_WS)}, s{sT1} offen sc1')
sg = V.alloc(); ya = V.alloc(); yb = V.alloc(); yc = V.alloc()
sD0, sD1 = 100, 101
def own_prep():
    A(f's_and_b32 s{sRHO}, s{sKEY}, 2047')
    A(f's_bfe_u32 s{sT0}, s{sK0}, 0x70004')
    A(f's_bfe_u32 s{sT2}, s{sKEY}, 0x70004')
    A(f's_cmp_eq_u32 s{sT0}, s{sT2}')
    A(f's_cselect_b32 s{sT0}, s{sTOK}, 0')
    A(f's_lshl_b32 s{sT0}, s{sT0}, 8')
    A(f's_and_b32 s{sT2}, s{sT2}, 3')
    A(f's_lshl_b32 s{sT2}, s{sT2}, 9')
    A(f's_add_u32 s{sT0}, s{sT0}, s{sT2}')
    A(f's_add_u32 s{sT0}, s{sT0}, {L_CS}')
    A(f'v_lshl_add_u32 v{yc}, v{vL}, 1, s{sT0}')
    A(f'ds_read_u16 v{ya}, v{yc}')
    A(f'ds_read_u16 v{yb}, v{yc} offset:128')
    A(f's_ashr_i32 s{sT2}, s{sKEY}, 31')
    A(f's_not_b32 s{sT2}, s{sT2}')
    A(f's_or_b32 s{sT2}, s{sT2}, 0x80000000')
    A(f's_xor_b32 s{sT2}, s{sT2}, s{sKEY}')
    A(f'v_mov_b32 v{sg}, s{sT2}')
    bf_round(sg, sg)
    A(f'v_mul_f32 v{sg}, {hex(f2u(-1.4426950408889634))}, v{sg}')
    A(f'v_exp_f32 v{sg}, v{sg}')
    A(f'v_add_f32 v{sg}, 1.0, v{sg}')
    A(f'v_rcp_f32 v{sg}, v{sg}')
    bf_round(sg, sg)
    A('s_waitcnt lgkmcnt(0)')
    A(f'v_lshlrev_b32 v{ya}, 16, v{ya}')
    A(f'v_lshlrev_b32 v{yb}, 16, v{yb}')
    A(f'v_lshlrev_b32 v{yc}, 4, v0')
    A(f'v_add_u32 v{yc}, {L_RED}, v{yc}')
    A(f's_lshl_b32 s{sT2}, s{sHG}, 7')
    A(f's_and_b32 s{sD0}, s{sRHO}, 1023')
    A(f's_lshl_b32 s{sD0}, s{sD0}, 11')
    A(f's_and_b32 s{sT0}, s{sRHO}, 1024')
    A(f's_add_u32 s{sD0}, s{sD0}, s{sT0}')
    A(f's_add_u32 s{sD0}, s{sD0}, s{sT2}')
    A(f's_lshl_b32 s{sD1}, s{sTOK}, 10')
    A(f's_add_u32 s{sD1}, s{sD1}, s{sT2}')
    A(f's_add_u32 s{sD1}, s{sD1}, {WS_X2R}')
def y_addr():
    A(f's_lshl_b32 s{sT0}, s{sTOK}, 11')
    A(f's_add_u32 s{sT0}, s{sT0}, s{aYPb}')
    A(f'v_lshrrev_b32 v{t0}, 4, v0')
    A(f'v_lshl_add_u32 v{yo}, v{t0}, 12, v{vQ16}')
    A(f'v_cmp_gt_u32 vcc, 6, v{t0}')
    A(f'v_add_u32 v{yo}, s{sT0}, v{yo}')
    A(f'v_mov_b32 v{t1}, 0x40000000')
    A(f'v_cndmask_b32 v{yo+1}, v{t1}, v{yo}, vcc')
def done_flag():
    A('s_waitcnt vmcnt(0)')
    A('s_barrier')
    E2 = if_wave(2)
    A(f's_lshl_b32 s{sT1}, s{sHG}, 3')
    A(f's_add_u32 s{sT1}, s{sT1}, s{aX1Fp}')
    A('s_mov_b64 exec, 1')
    local_stores([f'buffer_store_dwordx2 {vr(tg,2)}, v{vL16}, {srd(SRD_WS)}, s{sT1} offen offset:256'])
    A('s_mov_b64 exec, -1')
    endif(E2, False)
NH = int(next((a[3:] for a in OPT if a.startswith('nh=')), '10'))
hs_ld = f'buffer_load_dwordx4 {vr(sa,4)}, v{vL16}, {srd(SRD_WS)}, s{sU0} offen sc1'
vHo = V.alloc()
prep = [f's_lshl_b32 s{sU0}, s{sRB}, 10', f's_add_u32 s{sU0}, s{sU0}, {WS_HS - 1024}',
        f's_lshl_b32 s{sU1}, s{sRB}, 13', f's_lshl_b32 s{sT0}, s{sW}, 8', f's_add_u32 s{sU1}, s{sU1}, s{sT0}', f's_add_u32 s{sU1}, s{sU1}, {WS_HALO - 16384}',
        f's_add_u32 s{sU2}, s{sU1}, 128', f's_mul_i32 s{sU3}, s{sW}, {2 * HST}', f's_lshl_b32 s{sT0}, s{sFIRST}, 30', f'v_add_u32 v{vHo}, s{sT0}, v{vXo}',
        f's_sub_u32 s{sT4}, s{sFIRST}, 1', f's_mov_b32 s{sT5}, s{sT4}', f's_mov_b32 s{sGUARD}, {SPIN}']
def hs_check():
    A('s_waitcnt vmcnt(0)')
    A.label('L_hs')
    A(f'v_cmp_ne_u32 vcc, s{sTAG}, v{sa+3}')
    A(f's_and_b64 vcc, vcc, {sr(sT4,2)}')
    A('s_cbranch_vccnz L_hsr')
    A.label('L_hsok')
far2 += ['L_hsr:', hs_ld, 's_waitcnt vmcnt(0)', f's_sub_u32 s{sGUARD}, s{sGUARD}, 1', 's_cbranch_scc0 L_hs', 's_branch L_hsok']
def own_pre():
    A(f's_cmp_lg_u32 s{sOWN}, 0')
    A('s_cbranch_scc1 L_ys')
    A.label('L_ysr')
save = A.lines; A.lines = []
if 'nox2t' not in OPT:
    A(f's_mov_b32 s{sT0}, {WS_X2R}')
    A(f'v_lshlrev_b32 v{t0}, 7, v{vQ}')
    A(f'buffer_load_dword v{vDum}, v{t0}, {srd(SRD_WS)}, s{sT0} offen sc1')
y_issue()
far2 += ['L_ys:'] + [l.text for l in A.lines] + ['s_branch L_ysr']; A.lines = save
A.label('L_g0')
A.vm = vm_x
A.wait_vm('x0')
A('s_barrier')
fine()
for x in own_reads(0): A(x)
KN, N2, PER = [int(x) for x in next((a[2:] for a in OPT if a.startswith('n=')), '6,14,3').split(',')]
ins = {}
pos = 0
for kc in range(NX, 8):
    for o in range(2):
        ins[pos] = x1_dma(kc, o); pos += (2 if kc < 4 else PER)
assert pos < KN * 12 - 14
ins[36] = [lambda: A.wait_vm('x1'), 's_barrier'] + ins.get(36, [])
ins[KN * 12 - 14] = [key_issue]
def late_keys():
    A.wait_vm('key')
    A(f's_mov_b32 s{sGUARD}, {SPIN}')
    A(f's_or_b32 s{sT0}, s{sCAND}, s{sW}')
    A('s_cbranch_scc0 L_keyc')
    A.label('L_k2')
ins[KN * 12 - 1] = [late_keys]
m1 = V.alloc(4, 2); vP1 = V.alloc(2)
def late_fill():
    A('s_mov_b32 exec_hi, 0xffffff')
    A('s_mov_b32 exec_lo, 0xffff')
    A(f'buffer_store_dwordx4 {vr(m1,4)}, v{vP1}, {srd(SRD_WS)}, 0 offen sc1')
    A('s_mov_b64 exec, -1')
lf = [f'v_mov_b32 v{m1+r}, -1' for r in range(4)] + [
      f'v_lshrrev_b32 v{vP1}, 3, v{vQ}', f'v_lshlrev_b32 v{vP1}, 10, v{vP1}', f'v_and_b32 v{vP1+1}, 0x70, v{vL16}', f'v_add_u32 v{vP1}, v{vP1}, v{vP1+1}',
      f's_lshl_b32 s{sT0}, s{sW}, 11', f's_add_u32 s{sT0}, s{sT0}, s{aCANDs}', f's_add_u32 s{sT0}, s{sT0}, {L1_OFF}', f'v_add_u32 v{vP1}, s{sT0}, v{vP1}',
      f's_lshl_b32 s{sT0}, s2, 2', f's_add_u32 s{sT0}, s{sT0}, s{sW}', f's_mul_i32 s{sT0}, s{sT0}, 384', f's_add_u32 s{sT0}, s{sT0}, {WS_YP + L1_OFF - 512}',
      f'v_add_u32 v{vP1+1}, s{sT0}, v{vL16}', f'v_cmp_lt_u32 vcc, 31, v{vL}', f'v_cndmask_b32 v{vP1}, v{vP1}, v{vP1+1}, vcc']
assert WS_YP + L1_OFF + 1024 * 384 <= WS_ST and WS_ST + (1 << 18) <= WS_HS
for n_, x in enumerate(lf): ins[72 + n_ // 2] = ins.get(72 + n_ // 2, []) + [x]
assert 72 + len(lf) // 2 < 84 and KN * 12 - 1 < 72
ins[84] = [done_flag, late_fill, f'ds_read_b64 {vr(sa,2)}, v{fa+4}']
for n_, x in enumerate(prep): ins[85 + n_ // 2] = ins.get(85 + n_ // 2, []) + [x]
ins[96] = own_lines[:2]; ins[97] = own_lines[2:4]; ins[98] = [lambda: [A(x) for x in own_lines[4:]]]
k_ = (NH - 1) * 12
assert k_ > 98
OPT.add('defer'); og = []
with Defer(og):
    y_addr(); own_prep()
OPT.discard('defer')
og = [g_ for g_ in og if not g_[0].startswith('s_waitcnt')]
og = [g_ for g_ in og if not g_[0].startswith((f'v_lshlrev_b32 v{ya}, 16', f'v_lshlrev_b32 v{yb}, 16'))] + [[f'v_lshlrev_b32 v{ya}, 16, v{ya}'], [f'v_lshlrev_b32 v{yb}, 16, v{yb}']]
wpos = next(n_ for n_, g_ in enumerate(og) if g_[0].startswith(f'v_lshlrev_b32 v{ya}, 16'))
rpos = max(n_ for n_, g_ in enumerate(og) if g_[0].startswith('ds_read_u16'))
for n_, g_ in enumerate(og): ins[99 + n_ // 2] = ins.get(99 + n_ // 2, []) + g_
assert (99 + rpos // 2) // 12 < (99 + wpos // 2) // 12 and 99 + len(og) // 2 < k_ + 24
ins[k_] = [hs_ld] + ins.get(k_, [])
ins[k_ + 24] = [hs_check]
ins[k_ + 25] = [f's_add_u32 m0, s{sU3}, {L_HA}', f'buffer_load_dwordx4 v{vHo}, {srd(SRD_WS)}, s{sU1} offen sc1 lds']
ins[k_ + 26] = [f's_add_u32 m0, s{sU3}, {L_HA + HST}', f'buffer_load_dwordx4 v{vHo}, {srd(SRD_WS)}, s{sU2} offen sc1 lds', own_pre]
G = gemm_groups(0, N2)
for n_ in range(k_ + 27):
    for x in G.pop(0): A(x)
    for x in ins.get(n_, []): emit(x)
V.release(fa, 6); V.release(m1, 4); V.release(vP1, 2)
V.release(vHo)
A.sprinkle = (G, 2, emit)
mu = V.alloc(); var = V.alloc(); pr = V.alloc(); mm = V.alloc()
for r in (0, 2): A(f'v_add_f32_dpp v{sa+r}, v{sa+r}, v{sa+r} row_ror:8 {DP}')
for sw in ('v_permlane16_swap_b32', 'v_permlane32_swap_b32'):
    for r in (0, 2): A(f'v_mov_b32 v{sa+4+r}, v{sa+r}')
    for r in (0, 2): A(f'{sw} v{sa+r}, v{sa+4+r}')
    for r in (0, 2): A(f'v_add_f32 v{sa+r}, v{sa+r}, v{sa+4+r}')
ln_params(sa, sa + 2, mu, var, mm, pr, t0)
chain_params(mu, var, mm, pr, t2, t3)
A.sprinkle = None
for g_ in G:
    for x in g_: emit(x)
A(f's_mov_b64 exec, {sr(sT4,2)}')
A(f'ds_write2_b32 v{vQ4}, v{t2}, v{t3} offset0:0 offset1:80')
A('s_mov_b64 exec, -1')
V.release(mu); V.release(var); V.release(pr); V.release(mm)
endif(E, False)
V.release(sa, 8)
stamp()
A(f's_cmp_eq_u32 s{sOWN}, 0')
A('s_cbranch_scc1 L_own_end')
A(f's_cmp_eq_u32 s{sLAYER}, 0')
A('s_cbranch_scc1 L_own2')
A.label('L_own')
A(f's_bfe_u32 s{sT0}, s{sKEY}, 0x50006')
A(f's_cmp_lg_u32 s{sT0}, s{sRB}')
A('s_cbranch_scc1 L_own_end')
A('s_barrier')
y_addr(); y_issue(); own_prep()
A.label('L_own2')
if True:
    MK = [4, 6, 8, 10, 20, 22]
    A(f's_mov_b32 s{sGUARD}, {SPIN}')
    for j in range(1, 6): A(f's_mov_b32 s{(24, 25, 26, 27, 74)[j-1]}, {j * 65536}')
    A.label('L_yp')
    A('s_waitcnt vmcnt(0)')
    for j in range(6): A(f'v_cmp_eq_u32 {sr(MK[j],2)}, -1, v{yp+4*j}')
    A(f's_or_b64 vcc, {sr(MK[0],2)}, {sr(MK[1],2)}')
    A(f's_or_b64 {sr(sT0,2)}, {sr(MK[2],2)}, {sr(MK[3],2)}')
    A(f's_or_b64 vcc, vcc, {sr(MK[4],2)}')
    A(f's_or_b64 {sr(sT0,2)}, {sr(sT0,2)}, {sr(MK[5],2)}')
    A(f's_or_b64 vcc, vcc, {sr(sT0,2)}')
    A('s_cbranch_scc0 L_ypok')
    for j in range(6):
        A(f's_mov_b64 exec, {sr(MK[j],2)}')
        A(f's_cbranch_execz L_yp{j}')
        A(f'buffer_load_dwordx4 {vr(yp + 4*j, 4)}, v{yo + 1 if j == 5 else yo}, {srd(SRD_WS)}, {"s%d" % (24, 25, 26, 27, 74)[j-1] if j else 0} offen sc1')
        A.label(f'L_yp{j}')
    A('s_mov_b64 exec, -1')
    A(f's_sub_u32 s{sGUARD}, s{sGUARD}, 1')
    A('s_cbranch_scc0 L_yp')
    A.label('L_ypok')
    A.vm = []
fine()
for a_, b_ in ((0, 4), (8, 12), (16, 20), (0, 8), (0, 16)):
    for h in range(2):
        A(f'v_pk_add_f32 {vr(yp+a_+2*h,2)}, {vr(yp+a_+2*h,2)}, {vr(yp+b_+2*h,2)}')
A(f'ds_write_b128 v{yc}, {vr(yp,4)}')
A(f'v_lshlrev_b32 v{t0}, 2, v{vL}')
A(f'v_add_u32 v{t0}, {L_RED}, v{t0}')
A('s_waitcnt lgkmcnt(0)')
A('s_barrier')
A(f's_cmp_lg_u32 s{sW}, 3')
A('s_cbranch_scc1 L_own_sync')
for j in range(8):
    A(f'ds_read2st64_b32 {vr(yp + 2*j, 2)}, v{t0} offset0:{2*j} offset1:{2*j+1}')
A(f'v_lshlrev_b32 v{t0}, 1, v{vL}')
for n_, (a_, b_) in enumerate(((0, 2), (4, 6), (8, 10), (12, 14), (0, 4), (8, 12), (0, 8))):
    if n_ < 4: A(f's_waitcnt lgkmcnt({6 - 2 * n_})')
    A(f'v_pk_add_f32 {vr(yp+a_,2)}, {vr(yp+a_,2)}, {vr(yp+b_,2)}')
A(f'v_add_f32 v{yp}, v{yp}, v{yp+1}')
bf_round(yp, yp)
A(f'v_mul_f32 v{yp}, v{yp}, v{sg}')
bf_round(yp, yp)
A(f'v_add_f32 v{yp}, v{yp}, v{yb}')
bf_round(yp, yp)
A(f'v_add_f32 v{yp}, v{yp}, v{ya}')
A(f'v_mov_b32_dpp v{yp+1}, v{yp} quad_perm:[1,0,3,2] {DP}')
A(f'v_cvt_pk_bf16_f32 v{yp}, v{yp}, v{yp+1}')
A('s_mov_b32 exec_lo, 0x55555555')
A('s_mov_b32 exec_hi, 0x55555555')
A(f's_cmp_eq_u32 s{sLAYER}, 0')
A('s_cbranch_scc1 L_own_x2')
A(f'buffer_store_dword v{yp}, v{t0}, {srd(SRD_OUT)}, s{sD0} offen')
A('s_branch L_own_fin')
A.label('L_own_x2')
local_stores([f'buffer_store_dword v{yp}, v{t0}, {srd(SRD_WS)}, s{sD1} offen'])
A(f's_and_b32 s{sT0}, s{sRHO}, 63')
A(f's_cmp_lt_u32 s{sT0}, 56')
A('s_cbranch_scc1 L_own_nh')
A(f'buffer_store_dword v{yp}, v{t0}, {srd(SRD_WS)}, s{sD1} offen offset:2048 sc1')
A.label('L_own_nh')
A(f's_lshl_b32 s{sT0}, s{sTOK}, 7')
A(f's_add_u32 s{sT0}, s{sT0}, {L_ROW + 2048}')
A(f'v_add_u32 v{t0}, s{sT0}, v{t0}')
A(f'ds_write_b32 v{t0}, v{yp}')
A.label('L_own_fin')
A('s_mov_b64 exec, -1')
A.label('L_own_sync')
V.release(yp, 24); V.release(yo, 2); V.release(sg); V.release(ya); V.release(yb); V.release(yc)
A.label('L_own_next')
A(f's_mov_b32 s{sKEY}, s{sK1}')
A(f's_add_u32 s{sTOK}, s{sTOK}, 1')
A(f's_cmp_lt_u32 s{sTOK}, 2')
A('s_cbranch_scc1 L_own')
A.label('L_own_end')
A(f's_cmp_eq_u32 s{sLAYER}, 1')
A('s_cbranch_scc1 L_fin')
stamp()
G = gemm_groups(N2, 16)
for x in G.pop(0): A(x)
A.sprinkle = (G, 1, emit)
sS0, sS1 = sU2, sU3
for key_, dst in ((sK0, sS0), (sK1, sS1)):
    A(f's_and_b32 s{sT0}, s{key_}, 2047')
    A(f's_lshl_b32 s{sT1}, s{sRB}, 6')
    A(f's_sub_u32 s{sT0}, s{sT0}, s{sT1}')
    A(f's_add_u32 s{dst}, s{sT0}, 16')
    A(f's_cmp_lt_u32 s{dst}, 80')
    A(f's_cselect_b32 s{dst}, s{dst}, 0')
    A(f's_lshl_b32 s{sT1}, s{sFIRST}, 3')
    A(f's_add_u32 s{sT1}, s{sT1}, 8')
    A(f's_cmp_ge_u32 s{dst}, s{sT1}')
    A(f's_cselect_b32 s{dst}, s{dst}, 0')
A(f's_cmp_eq_u32 s{sW}, 2')
A.sprinkle = None
A(f's_cselect_b32 s{sT4}, s{sS0}, s{sS1}')
A(f's_cselect_b32 s{sTOK}, 0, 1')
A(f's_bitcmp1_b32 s{sW}, 0')
A(f's_cselect_b32 s{sT4}, 0, s{sT4}')
rw = V.take(144, 4); rc = V.take(148, 4); vc = V.take(152, 16); dfl = V.take(168, 2); vRw = V.take(170); vDf = V.take(171)
df_issue = lambda: A(f'buffer_load_dwordx2 {vr(dfl,2)}, v{vDf}, {srd(SRD_WS)}, s{aX1Fp} offen offset:256 sc1')
bump = [f's_not_b32 s{sTGS}, s{sTGS}', f'v_mov_b32 v{vXs}, 0x40000000', f'v_and_b32 v{vDf}, 56, v{vL8}',
        f'v_lshrrev_b32 v{vRw}, 3, v{vL}', f'v_mul_u32_u24 v{vRw}, {HST - 128}, v{vRw}', f'v_add_u32 v{vRw}, v{vRw}, v{vL16}', f'v_add_u32 v{vRw}, {L_HA + 1024}, v{vRw}']
for a_, d_ in ((aFLp, 1 << 14), (aFLs, 1 << 14), (aKEYs, 1 << 13), (aKEYp, 1 << 13),
               (aCANDs, L1_OFF), (aCANDb, L1_OFF), (aYPs, L1_OFF), (aYPb, L1_OFF)):
    bump.append(f's_add_u32 s{a_}, s{a_}, {d_}')
PS = {0: 4, 1: 20}
for tok, sl in ((0, sS0), (1, sS1)):
    p = PS[tok]
    bump += [f's_and_b32 s{p+5}, s{sl}, 15', f's_lshl_b32 s{p}, 0x00010001, s{p+5}', f's_mov_b32 s{p+1}, s{p}',
             f's_lshr_b32 s{p+4}, s{sl}, 4', f's_lshl_b32 s{p+2}, s{p+4}, 2', f's_lshl_b32 s{p+4}, s{p+4}, 1',
             f's_sub_u32 s{p+3}, s{p+4}, 2', f's_min_u32 s{p+3}, s{p+3}, 7',
             f's_bfe_u32 s{p+6}, s{p+5}, 0x10001', f's_add_u32 s{p+4}, s{p+4}, s{p+6}',
             f's_and_b32 s{p+6}, s{p+5}, 12', f's_lshl_b32 s{p+6}, s{p+6}, 2', f's_lshl_b64 s[{p+6}:{p+7}], 0xffff, s{p+6}',
             f's_lshl_b32 s{p+5}, s{p+5}, 4', f's_lshl_b32 s{p+5}, 0xffff, s{p+5}']
for g_ in G:
    for x in g_: emit(x)
    for _ in range(3):
        if bump: A(bump.pop(0))
while bump: A(bump.pop(0))
df_issue()
A(f'ds_read2_b32 {vr(rc,2)}, v{vQ4} offset0:96 offset1:112')
A(f'ds_read2_b32 {vr(rc+2,2)}, v{vQ4} offset0:128 offset1:144')
for T in range(4): A(f'ds_read_b128 {vr(vc + 4 * T, 4)}, v{vG16} offset:{320 + 64 * (T + 1)}')
for b in fr: V.release(b, 16)
E = skip_unless([f's_cmp_eq_u32 s{sT4}, 0'])
A(f's_cmp_lt_u32 s{sT4}, 16')
A(f's_cselect_b32 s{sT1}, 2, 0')
A(f's_add_u32 s{sT0}, s{sTOK}, s{sT1}')
A(f's_lshl_b32 s{sT0}, s{sT0}, 10')
A(f's_add_u32 s{sT0}, s{sT0}, {WS_X2R}')
r_issue = lambda: A(f'buffer_load_dwordx4 {vr(rw,4)}, v{vL16}, {srd(SRD_WS)}, s{sT0} offen sc1')
r_issue()
A(f's_lshl_b32 s{sT1}, s{sTOK}, 7')
A(f'v_add_u32 v{t2}, s{sT1}, v{vRw}')
def r_check():
    A(f'v_max3_u32 v{t0}, v{rw}, v{rw+1}, v{rw+2}')
    A(f'ds_write_b128 v{t2}, {vr(rw,4)}')
    A(f'v_max_u32 v{t0}, v{t0}, v{rw+3}')
    A(f'v_cmp_eq_u32 vcc, -1, v{t0}')
    A('s_waitcnt lgkmcnt(0)')
repoll(r_issue, r_check, 'X2R')
endif(E, False)
A('s_waitcnt vmcnt(0) lgkmcnt(0)')
fine()
A('s_barrier')
fine()
xr = V.alloc(64, 2); hp_ = vc
def h_read(ks): return f'ds_read_b128 {vr(xr + 4*ks, 4)}, v{vH + (ks & 1)} offset:{(ks >> 1) * HST}'
def shadow():
    sh = []
    for T in range(4):
        sh += [f'v_mul_f32 v{accV+4*T+4+r}, v{accV+4*T+4+r}, v{vc+4*T+r}' for r in range(4)] + pack2(hV + 2 * T + 2, accV + 4 * T + 4)
    for T in range(4):
        sh += pack2(hQ(T), hQ(T))
        sh += [f'v_mul_f32 v{hK(T)+r}, v{hK(T)+r}, v{rc+T}' for r in range(4)] + pack2(hK(T), hK(T))
        sh += [f'v_mul_f32 v{mxc+2*T}, {hex(f2u(QSC))}, v{rc+T}']
    return sh
def halo_gemm(with_q, sh):
    hr = [h_read(ks) for ks in range(10, 16)]
    hr2 = [f'ds_read2_b32 {vr(hp_,2)}, v{vQ4} offset0:0 offset1:80', f'ds_read_b128 {vr(hp_+2,4)}, v{vG16}', f'ds_read_b128 {vr(hp_+6,4)}, v{vG16} offset:320']
    for ks in range(16):
        c = lambda x: '0' if ks == 0 else vr(x, 4)
        X = vr(xr + 4 * ks, 4)
        if ks == 0: A('s_waitcnt lgkmcnt(7)')
        if ks == 3: A('s_waitcnt lgkmcnt(3)')
        if ks == 9: A('s_waitcnt lgkmcnt(0)')
        M = [mf(vr(accK, 4), ar(aW(ks, 1), 4), X, c(accK)), mf(vr(accV, 4), X, ar(aW(ks, 2), 4), c(accV))]
        if with_q: M.append(mf(vr(accQ, 4), ar(aW(ks, 0), 4), X, c(accQ)))
        for n_, m_ in enumerate(M):
            A(m_)
            if n_ == 0 and hr: A(hr.pop(0))
            if n_ == 0 and ks >= 10 and hr2: A(hr2.pop(0))
            for _ in range(2):
                if sh: A(sh.pop(0))
    while sh: A(sh.pop(0))
    A('s_waitcnt lgkmcnt(0)')
A(f's_or_b32 s{sT0}, s{sS0}, s{sS1}')
A('s_cbranch_scc0 L_nofix')
nq = xr; rr = xr + 56; s12 = V.take(172, 4); pp = accV + 16
for tok in range(2): A(f'ds_read_b128 {vr(rr + 4 * tok, 4)}, v{vRw} offset:{128 * tok}')
for ks in range(10): A(h_read(ks))
for r in range(4): A(f'v_mov_b32 v{s12+r}, 0')
A('s_waitcnt lgkmcnt(10)')
for j in range(4):
    for tok in range(2):
        A(f'v_dot2c_f32_bf16 v{s12+2*tok}, v{rr+4*tok+j}, v{vOnes}')
        A(f'v_dot2c_f32_bf16 v{s12+2*tok+1}, v{rr+4*tok+j}, v{rr+4*tok+j}')
save = A.lines; A.lines = []
for r in range(2): A(f'v_permlane32_swap_b32 v{s12+r}, v{s12+2+r}')
for r in range(2): A(f'v_add_f32 v{s12+r}, v{s12+r}, v{s12+2+r}')
for sh_ in (8, 4, 2, 1):
    for r in range(2): A(f'v_add_f32_dpp v{s12+r}, v{s12+r}, v{s12+r} row_ror:{sh_} {DP}')
for r in range(2): A(f'v_mov_b32 v{s12+2+r}, v{s12+r}')
for r in range(2): A(f'v_permlane16_swap_b32 v{s12+r}, v{s12+2+r}')
for r in range(2): A(f'v_add_f32 v{s12+r}, v{s12+r}, v{s12+2+r}')
ln_params(s12, s12 + 1, rw, rw + 1, pp, pp + 1, t0)
A(f'v_xor_b32 v{pp}, 0x80000000, v{pp}')
A(f'v_mov_b32 v{pp+3}, v{pp+1}')
A(f'v_mov_b32 v{pp+2}, v{pp}')
for r in range(2): A(f'v_permlane32_swap_b32 v{pp+r}, v{pp+2+r}')
st_ = [l.text for l in A.lines if l.op != 's_nop']; A.lines = save
halo_gemm(True, shadow() + st_)
V.release(s12, 4)
stamp()
tag_check(dfl)
for tok in range(2):
    for r in range(4): A(f'v_mov_b32_dpp v{nq+10*tok+4+r}, v{accK+r} row_newbcast:{tok} {DP}')
    A(f'v_mov_b32 v{nq+10*tok+8}, v{accV+tok}')
    A(f'v_mov_b32 v{nq+10*tok+9}, v{accV+tok}')
norm_pk(-1, hp_, hp_ + 2, hp_ + 6)
for tok in range(2):
    A(f'v_permlane32_swap_b32 v{nq+10*tok+8}, v{nq+10*tok+9}')
for x in pack2(hK(-1), hK(-1)) + pack2(hV, accV): A(x)
for tok, sl in ((0, sS0), (1, sS1)):
    E = skip_unless([f's_cmp_eq_u32 s{sl}, 0'])
    n_ = nq + 10 * tok; p_ = pp + 2 * tok
    for r in range(4): A(f'v_mov_b32_dpp v{n_+r}, v{accQ+r} row_newbcast:{tok} {DP}')
    for h in range(2):
        A(f'v_pk_fma_f32 {vr(n_+4+2*h,2)}, {vr(csK+2*h,2)}, {vr(p_,2)}, {vr(n_+4+2*h,2)} op_sel_hi:[1,0,1]')
        A(f'v_pk_fma_f32 {vr(n_+2*h,2)}, {vr(csQ+2*h,2)}, {vr(p_,2)}, {vr(n_+2*h,2)} op_sel_hi:[1,0,1]')
    A(f'v_fma_f32 v{n_+8}, v{csV}, v{p_}, v{n_+8}')
    for h in range(2):
        A(f'v_pk_mul_f32 {vr(n_+4+2*h,2)}, {vr(n_+4+2*h,2)}, {vr(p_,2)} op_sel:[0,1] op_sel_hi:[1,1]')
    A(f'v_mul_f32 v{n_+8}, v{n_+8}, v{p_+1}')
    for x in pack2(n_, n_) + pack2(n_ + 4, n_ + 4): A(x)
    A(f'v_cvt_pk_bf16_f32 v{n_+8}, v{n_+8}, v{n_+8}')
    A(f'v_mul_f32 v{n_+9}, {hex(f2u(QSC))}, v{p_+1}')
    p = PS[tok]
    A(f's_mov_b64 exec, s[{p}:{p+1}]')
    A(f's_lshr_b32 s{sT0}, s{sl}, 4')
    A(f's_sub_u32 s{sT0}, s{sT0}, 1')
    A(f's_cmp_lg_u32 s{sT0}, s{sW}')
    A(f's_cbranch_scc1 L_np{tok}')
    A(f'v_add_u32 v{t0}, {L_ROW + 2048 + 128 * tok}, v{vGm}')
    A(f'ds_read_b128 {vr(xP,4)}, v{t0}')
    A(f'ds_read_b128 {vr(xP+4,4)}, v{t0} offset:64')
    A.label(f'L_np{tok}')
    A(f's_set_gpr_idx_on s{p+2}, gpr_idx(SRC2,DST)')
    for r in range(2): A(f'v_mov_b32 v{accQ+r}, v{n_+r}')
    for r in range(2): A(f'v_mov_b32 v{accK+r}, v{n_+4+r}')
    A(f's_set_gpr_idx_idx s{p+3}')
    A(f'v_mov_b32 v{mxc}, v{n_+9}')
    A(f's_set_gpr_idx_idx s{p+4}')
    A(f's_mov_b64 exec, s[{p+6}:{p+7}]')
    A(f'v_bfi_b32 v{hV}, s{p+5}, v{n_+8}, v{hV}')
    A('s_set_gpr_idx_off')
    A('s_mov_b64 exec, -1')
    endif(E, False)
A('s_branch L_fixed')
A.label('L_nofix')
for ks in range(10): A(h_read(ks))
sh = shadow()
for _ in range(6): A(sh.pop(0))
halo_gemm(False, sh)
stamp_n[0] -= 1; stamp()
tag_check(dfl)
norm_pk(-1, hp_, hp_ + 2, hp_ + 6)
for x in pack2(hK(-1), hK(-1)) + pack2(hV, accV): A(x)
A.label('L_fixed')
V.release(rw, 4); V.release(xr, 64); V.release(rc, 4); V.release(vc, 16); V.release(vRw)
A(f's_cbranch_vccz L_dfok')
poll(df_issue, lambda: tag_check(dfl), 'DF')
A.label('L_dfok')
V.release(dfl, 2); V.release(vDf)
stamp()
A(f's_mov_b32 s{sLAYER}, 1')
V.take(oP, 8)
attention([])
A('s_waitcnt lgkmcnt(0)')
A('s_branch L_pub')
A.label('L_fin')
A(f's_or_b32 s{sT0}, s2, s{sW}')
A('s_cbranch_scc1 L_fin2')
A(f's_mov_b32 s{sT1}, {WS_EPOCH}')
A('s_mov_b64 exec, 1')
A(f'buffer_store_dword v{tg}, v{vL16}, {srd(SRD_WS)}, s{sT1} offen')
A('s_mov_b64 exec, -1')
A.label('L_fin2')
if 'wb' in OPT:
    A(f's_lshl_b32 s{sT0}, s{sI}, 2')
    A(f's_add_u32 s{sT0}, s{sT0}, s{sW}')
    A(f's_lshl_b32 s{sT1}, s{sOWN}, 8')
    A(f's_add_u32 s{sT0}, s{sT0}, s{sT1}')
    A(f's_cmp_lg_u32 s{sT0}, {31 * 4 + 1}')
    A('s_cbranch_scc1 L_fin3')
    A('buffer_wbl2 sc1')
    A.label('L_fin3')
finish()
emit_far()
A.label('L_end')
A('s_endpgm')

hdr = f"""; @launch grid=(256,1,1) block=(256,1,1) lds={LDS_SIZE}
.amdgcn_target "amdgcn-amd-amdhsa--gfx950"
.text
.globl {NAME}_kernel
.p2align 8
.type {NAME}_kernel,@function
"""
tail = f"""
.section .rodata,"a"
.p2align 6
.amdhsa_kernel {NAME}_kernel
  .amdhsa_next_free_vgpr 512
  .amdhsa_next_free_sgpr 102
  .amdhsa_accum_offset 256
  .amdhsa_group_segment_fixed_size 0
  .amdhsa_kernarg_size 88
  .amdhsa_user_sgpr_count 2
  .amdhsa_user_sgpr_kernarg_segment_ptr 1
  .amdhsa_system_sgpr_workgroup_id_x 1
.end_amdhsa_kernel
"""
open(sys.argv[1], 'w').write(hdr + A.text() + tail)
print('vgpr high water', V.hw, 'nops added', A.nops_added, 'lines', len(A.lines))
```
